```python
import torch

def _softmax(x, axis=-1):
    return torch.softmax(x, dim=axis)
def _gelu(x):
    return torch.nn.functional.gelu(x, approximate="tanh")
def _silu(x):
    return torch.nn.functional.silu(x)
def _sigmoid(x):
    return torch.sigmoid(x)
def _layernorm(x, axis=-1, eps=1e-5):
    m = x.mean(dim=axis, keepdim=True)
    v = x.var(dim=axis, keepdim=True, unbiased=False)
    return (x - m) / torch.sqrt(v + eps)
def _scatter_add(tgt, idx, src, axis=0):
    return tgt.clone().index_add_(axis, idx, src)
def _segment_sum(src, seg, n):
    out = torch.zeros((n,) + src.shape[1:], dtype=src.dtype)
    return out.index_add_(0, seg, src)
def _pad(x, pw):
    flat = tuple(v for pair in reversed(pw) for v in pair)
    return torch.nn.functional.pad(x, flat)

kernel_name = 'recurrent_scan__sliding_local_dilated__dense_activation_silu__prompt'

def setup_inputs():

    _w = (lambda a: (lambda t: t.to(torch.bfloat16) if t.is_floating_point() else t)(torch.as_tensor(a)))
    def _A_setup():
        B, S, D = 1, 2048, 576
        return {
            "x": _w((lambda *s: torch.randn(*s, dtype=torch.bfloat16) * 0.05)(B, S, D)),
            "wqkv": _w((lambda *s: torch.randn(*s, dtype=torch.bfloat16) * 0.2)(D, 3 * D)),
            "wo": _w((lambda *s: torch.randn(*s, dtype=torch.bfloat16) * 0.2)(D, D)),
        }
    _A_in = _A_setup()

    def _B_setup():
        B, S, D, F = 1, 2048, 576, 4608
        return {
            "x": _w((lambda *s: torch.randn(*s, dtype=torch.bfloat16) * 0.05)(B, S, D)),
            "w1": _w((lambda *s: torch.randn(*s, dtype=torch.bfloat16) * 1.6)(D, F) * (D ** -0.5)),
            "w2": _w((lambda *s: torch.randn(*s, dtype=torch.bfloat16) * 0.1)(F, D) * (F ** -0.5)),
        }
    _B_in = _B_setup()

    return {
        "A_x": _A_in["x"],
        "A_wqkv": _A_in["wqkv"],
        "A_wo": _A_in["wo"],
        "B_x": _B_in["x"],
        "B_w1": _B_in["w1"],
        "B_w2": _B_in["w2"],
    }

def reference(A_x, A_wqkv, A_wo, B_x, B_w1, B_w2):
    def _A_ref(x, wqkv, wo):
        B, S, D = x.shape
        H = 32; Dh = D // H
        W, dil = 8, 2
        qkv = (lambda x, *d: x.permute(*d))((x @ wqkv).reshape(B, S, 3, H, Dh), 2, 0, 3, 1, 4)
        q, k, v = qkv[0], qkv[1], qkv[2]
        scale = Dh ** -0.5
        pos = torch.arange(S)
        off = torch.arange(W) * dil
        idx = pos[:, None] - off[None, :]
        mask = idx >= 0
        idx_c = torch.where(mask, idx, 0).reshape(-1)
        kg = k[:, :, idx_c, :].reshape(B, H, S, W, Dh)
        vg = v[:, :, idx_c, :].reshape(B, H, S, W, Dh)
        logits = torch.einsum("bhsd,bhswd->bhsw", q, kg) * scale
        logits = torch.where(mask[None, None, :, :], logits, -1e9)
        attn = _softmax(logits, axis=-1)
        o = torch.einsum("bhsw,bhswd->bhsd", attn, vg)
        return (lambda x, *d: x.permute(*d))(o, 0, 2, 1, 3).reshape(B, S, D) @ wo

    def _B_ref(x, w1, w2):
        h = torch.einsum("bsd,df->bsf", x, w1)
        h = _silu(h)
        out = torch.einsum("bsf,fd->bsd", h, w2)
        return out

    x = A_x
    xn = _layernorm(x, axis=-1)
    s = _A_ref(xn, A_wqkv, A_wo)
    g = _silu(_B_ref(xn, B_w1, B_w2))
    return x + s * g
```

```python
import re

def expand(tok):
    tok = tok.strip()
    neg = tok.lstrip('-')
    if neg.startswith('abs(') : neg = neg[4:-1]
    if neg.startswith('|'): neg = neg.strip('|')
    m = re.fullmatch(r'([vas])\[(\d+):(\d+)\]', neg)
    if m: return [f"{m.group(1)}{i}" for i in range(int(m.group(2)), int(m.group(3)) + 1)]
    m = re.fullmatch(r'([vas])(\d+)', neg)
    if m: return [neg]
    if neg in ('vcc', 'exec'): return [neg]
    if neg in ('vcc_lo', 'vcc_hi'): return ['vcc']
    if neg in ('exec_lo', 'exec_hi'): return ['exec']
    if neg == 'm0': return ['m0']
    return []

TRANS = ('v_exp_f32', 'v_log_f32', 'v_rcp_f32', 'v_rsq_f32', 'v_sqrt_f32', 'v_sin_f32', 'v_cos_f32')

class I:
    def __init__(self, text, tag=None, cost=None, cond=False):
        self.text = text.strip(); self.tag = tag; self.cond = cond
        t = self.text.split(';')[0].strip()
        self.label = t.endswith(':')
        parts = t.split(None, 1)
        self.op = parts[0]
        ops = []
        if len(parts) > 1:
            rest = parts[1]
            depth = 0; cur = ''
            for ch in rest:
                if ch in '[(': depth += 1
                if ch in '])': depth -= 1
                if ch == ',' and depth == 0: ops.append(cur); cur = ''
                else: cur += ch
            ops.append(cur)
            last = ops[-1].strip().split()
            self.mods = last[1:] if last else []
            ops[-1] = last[0] if last else ''
            ops = [o.strip() for o in ops]
        else:
            self.mods = []
        self.ops = ops
        op = re.sub(r'_(e32|e64|dpp|sdwa)$', '', self.op)
        self.base = op
        rd, wr = [], []
        k = None
        if self.label or op.startswith('.'): k = 'label'
        elif op in ('WAITV', 'WAITL', 'WAITVL'): k = 'wait'
        elif op == 's_waitcnt': k = 'wait'
        elif op == 's_barrier': k = 'bar'
        elif op == 's_nop': k = 'nop'
        elif op in ('s_endpgm', 's_sleep', 's_setprio'): k = 'salu'
        elif op.startswith('s_cbranch') or op == 's_branch': k = 'branch'; rd = ['scc'] if 'scc' in op else (['vcc'] if 'vcc' in op else (['exec'] if 'exec' in op else []))
        elif op.startswith('v_mfma'):
            k = 'mfma32' if '32x32' in op else 'mfma16'
            wr = expand(ops[0]); self.A = expand(ops[1]); self.B = expand(ops[2]); self.C = expand(ops[3]); rd = self.A + self.B + self.C
        elif op.startswith('ds_'):
            k = 'ds'
            if op.startswith('ds_read') or op.startswith('ds_bpermute') or op.startswith('ds_swizzle'):
                wr = expand(ops[0]); rd = sum((expand(o) for o in ops[1:]), [])
            else: rd = sum((expand(o) for o in ops), [])
        elif op.startswith('buffer_') or op.startswith('global_'):
            k = 'vmem'
            if op in ('buffer_inv', 'buffer_wbl2'): pass
            elif 'lds' in self.mods or 'load_lds' in op:
                rd = sum((expand(o) for o in ops), []) + ['m0']
            elif '_load' in op:
                wr = expand(ops[0]); rd = sum((expand(o) for o in ops[1:]), [])
            elif 'atomic' in op:
                rd = sum((expand(o) for o in ops), [])
                if 'sc0' in self.mods: wr = expand(ops[0])
            else:
                rd = sum((expand(o) for o in ops), [])
                self.data = expand(ops[0]) if op.startswith('buffer_') else expand(ops[1])
        elif op.startswith('s_load') or op in ('s_memtime', 's_memrealtime'):
            k = 'smem'; wr = expand(ops[0]); rd = sum((expand(o) for o in ops[1:]), [])
        elif op.startswith('s_cmp') or op.startswith('s_bitcmp'):
            k = 'salu'; rd = sum((expand(o) for o in ops), []); wr = ['scc']
        elif op.startswith('s_'):
            k = 'salu'; wr = expand(ops[0]) if ops else []; rd = sum((expand(o) for o in ops[1:]), [])
            if op.startswith('s_cselect') or op == 's_addc_u32': rd.append('scc')
            if 'saveexec' in op: wr.append('exec'); rd.append('exec')
            if op not in ('s_mov_b32', 's_mov_b64', 's_cselect_b32', 's_cselect_b64', 's_mul_i32', 's_mul_hi_u32', 's_getpc_b64', 's_getreg_b32', 's_movk_i32'): wr.append('scc')
        elif op.startswith('v_'):
            k = 'trans' if op in TRANS else 'valu'
            if op.startswith('v_cmp'):
                wr = expand(ops[0]); rd = sum((expand(o) for o in ops[1:]), [])
            elif op.startswith('v_permlane') :
                wr = expand(ops[0]) + expand(ops[1]); rd = list(wr)
            elif op in ('v_add_co_u32', 'v_addc_co_u32', 'v_sub_co_u32'):
                wr = expand(ops[0]) + expand(ops[1]); rd = sum((expand(o) for o in ops[2:]), [])
            else:
                wr = expand(ops[0]); rd = sum((expand(o) for o in ops[1:]), [])
                if op in ('v_fmac_f32', 'v_dot2c_f32_bf16'): rd += wr
                if op == 'v_cndmask_b32' and len(ops) == 3: rd.append('vcc')
        else:
            raise ValueError("unknown instr: " + text)
        self.kind = k; self.rd = set(rd); self.wr = set(wr)
        if cost is None:
            cost = {'mfma32': 8, 'mfma16': 8, 'trans': 8, 'label': 0}.get(k, 4)
        self.cost = cost
    def states(self):
        if self.kind == 'label': return 0
        if self.kind == 'nop': return int(self.ops[0], 0) + 1
        return 1
    def __repr__(self): return self.text

def isdot(i): return i.base.startswith('v_dot2')
def lgkm_inc(i):
    if i.kind == 'ds': return 1
    if i.kind == 'smem': return 2
    return 0

def resolve_waits(prog):
    out = []
    vm = []; lg = []
    for ins in prog:
        if ins.kind == 'wait' and ins.op in ('WAITV', 'WAITL', 'WAITVL'):
            tags = ins.ops
            parts = []
            def count(lst, tag, allowcond):
                idx = [n for n, (t, c) in enumerate(lst) if t == tag]
                assert idx, f"wait on unknown tag {tag}"
                last = idx[-1]
                return sum(1 for (t, c) in lst[last + 1:] if (not c))
            if ins.op in ('WAITV', 'WAITVL'):
                n = count(vm, tags[0], ins.cond); assert n <= 63, (tags, n)
                parts.append(f"vmcnt({n})")
            if ins.op in ('WAITL', 'WAITVL'):
                n = count(lg, tags[-1], ins.cond)
                parts.append(f"lgkmcnt({min(n,15)})")
            out.append(I("s_waitcnt " + " ".join(parts), cond=ins.cond))
            continue
        if ins.kind == 'vmem': vm.append((ins.tag, ins.cond))
        if ins.kind == 'ds': lg.append((ins.tag, ins.cond))
        if ins.kind == 'smem': lg.append((ins.tag, ins.cond)); lg.append((ins.tag, ins.cond))
        out.append(ins)
    return out

def passes(i): return 8 if i.kind == 'mfma32' else 4

def required(p, c):
    need = 0
    pv = p.kind in ('valu', 'trans'); cv = c.kind in ('valu', 'trans')
    pm = p.kind.startswith('mfma'); cm = c.kind.startswith('mfma')
    vw = {r for r in p.wr if r[0] in 'va' and r not in ('vcc',)}
    sw = {r for r in p.wr if r[0] == 's' and r != 'scc' or r == 'vcc'}
    if pv:
        if cm and vw & c.rd: need = max(need, 3 if isdot(p) else 2)
        if p.kind == 'trans' and cv and c.kind != 'trans' and vw & c.rd: need = max(need, 1)
        if cv and c.base.startswith('v_permlane') and vw & c.rd: need = max(need, 2)
        if cv and c.op.endswith('_dpp') and vw & c.rd: need = max(need, 2)
        if cv and c.base in ('v_readlane_b32', 'v_readfirstlane_b32') and vw & c.rd: need = max(need, 1)
        if cv and sw & c.rd: need = max(need, 2)
        if c.kind == 'vmem' and sw & c.rd: need = max(need, 5)
        if 'exec' in p.wr: need = max(need, 5)
        if isdot(p) and (vw & (c.rd | c.wr)) and c.kind in ('valu', 'trans', 'ds', 'vmem'):
            if c.base == p.base and isdot(c):
                srcab = set(expand(c.ops[1]) + expand(c.ops[2]))
                if vw & srcab: need = max(need, 3)
            else: need = max(need, 3)
        if p.op.endswith('_sdwa') and cv and vw & c.rd: need = max(need, 1)
    if pm:
        n = passes(p)
        if cm:
            if p.wr & set(c.A + c.B): need = max(need, {4: 8, 8: 12}[n])
            if p.wr & set(c.C):
                if set(c.C) == p.wr and passes(c) == n: pass
                else: need = max(need, {4: 6, 8: 10}[n])
            if p.wr & c.wr and not (p.wr & set(c.C)):
                need = max(need, {4: 6, 8: 10}[n])
        elif c.kind in ('valu', 'trans', 'ds', 'vmem'):
            if p.wr & (c.rd | c.wr): need = max(need, {4: 8, 8: 12}[n])
            if cv and set(p.C) & c.wr: need = max(need, {4: 3, 8: 7}[n])
    if p.kind == 'salu' and 'm0' in p.wr and c.kind == 'vmem' and 'm0' in c.rd: need = max(need, 1)
    if p.kind == 'vmem' and hasattr(p, 'data') and len(p.data) >= 3 and set(p.data) & c.wr: need = max(need, 2)
    if p.kind == 'ds' and p.base in ('ds_write_b128', 'ds_write_b96') and (p.rd & c.wr): need = max(need, 2)
    return need

def fix_hazards(prog, verbose=False):
    out = []; nfix = 0
    for ins in prog:
        if ins.kind == 'label':
            out.append(ins); continue
        dist = 0; need = 0
        for p in reversed(out):
            if dist >= 20: break
            r = required(p, ins)
            if r - dist > need: need = r - dist; why = p
            dist += p.states()
        if need > 0:
            nfix += 1
            if verbose: print(f"; hazard: {why.text} -> {ins.text} needs +{need}")
            while need > 0:
                k = min(need, 16); out.append(I(f"s_nop {k-1}", cond=ins.cond)); need -= k
        out.append(ins)
    return out, nfix

def check_scoreboard(prog):
    vm = []; lg = []
    errs = []
    for n, ins in enumerate(prog):
        if ins.op == 's_waitcnt':
            m = re.search(r'vmcnt\((\d+)\)', ins.text)
            if m:
                k = int(m.group(1))
                if ins.cond:
                    cnt = 0; keep = []
                    for e in reversed(vm):
                        if cnt < k: keep.append(e); cnt += 1
                        elif not e[1]: keep.append(e)
                    vm = list(reversed(keep))
                else:
                    cnt = 0; keep = []
                    for e in reversed(vm):
                        if cnt >= k: break
                        keep.append(e); cnt += (0 if e[1] else 1)
                    vm = list(reversed(keep))
            m = re.search(r'lgkmcnt\((\d+)\)', ins.text)
            if m:
                k = int(m.group(1))
                if any(e[2] for e in lg) and k > 0: pass
                else:
                    if ins.cond:
                        cnt = 0; keep = []
                        for e in reversed(lg):
                            if cnt < k: keep.append(e); cnt += 1
                            elif not e[1]: keep.append(e)
                        lg = list(reversed(keep))
                    else:
                        cnt = 0; keep = []
                        for e in reversed(lg):
                            if cnt >= k: break
                            keep.append(e); cnt += (0 if e[1] else 1)
                        lg = list(reversed(keep))
            continue
        touched = ins.rd | ins.wr
        for e in vm + lg:
            if e[0] & touched and not (e[3] == 'dummy' and ins.tag == 'dummy'):
                errs.append(f"#{n} {ins.text} touches pending {sorted(e[0] & touched)}")
        if ins.kind == 'vmem': vm.append((set(ins.wr), ins.cond, False, ins.tag))
        if ins.kind == 'ds': lg.append((set(ins.wr), ins.cond, False, ins.tag))
        if ins.kind == 'smem': lg.append((set(ins.wr), ins.cond, True, ins.tag))
    return errs

E32OK = {'v_mov_b32','v_add_f32','v_sub_f32','v_mul_f32','v_max_f32','v_min_f32','v_and_b32','v_or_b32','v_xor_b32','v_lshlrev_b32','v_lshrrev_b32',
         'v_add_u32','v_sub_u32','v_exp_f32','v_rcp_f32','v_sqrt_f32','v_rsq_f32','v_fmac_f32','v_cndmask_b32','v_mul_u32_u24','v_min_u32','v_max_u32'}

class Prog:
    def __init__(self): self.l = []
    def __call__(self, text, tag=None, cost=None, cond=False):
        for t in text.split('\n'):
            if t.strip(): self.l.append(I(t, tag, cost, cond))
        return self
    def add(self, lst): self.l.extend(lst)

def mk(text, tag=None, cost=None, cond=False):
    return [I(t, tag, cost, cond) for t in text.split('\n') if t.strip()]

def interleave(spine, fill, gapcyc, start=0, end=None):
    n = len(spine); end = n if end is None else end
    items = []
    for f in fill:
        if isinstance(f, tuple): g, e = f
        else: g, e = f, 0
        if not isinstance(g, list): g = [g]
        items.append((g, e))
    free = [max(0, gapcyc[i] - sum(x.cost for x in spine[i])) if start <= i < end else 0 for i in range(n)]
    tot_free = sum(free); tot_fill = sum(sum(x.cost for x in g) for g, e in items)
    scale = tot_fill / tot_free if tot_free else 0
    out = []; k = 0; budget = 0.0
    for i in range(n):
        out.extend(spine[i])
        if start <= i < end:
            budget += free[i] * scale
            while k < len(items) and items[k][1] <= i:
                c = sum(x.cost for x in items[k][0])
                if budget + 1e-6 >= c * 0.5 or i == end - 1:
                    out.extend(items[k][0]); budget -= c; k += 1
                else: break
    assert k == len(items), f"unplaced fillers {len(items)-k}"
    return out

class Sched:
    def __init__(self):
        self.head = []; self.mand = []; self.fill = []; self.tail = []; self.cap = []; self.block = []
    def gap(self, head, cyc):
        self.head.append(head); self.mand.append([]); self.fill.append([]); self.tail.append([]); self.cap.append(cyc - sum(x.cost for x in head)); self.block.append(set())
        return len(self.head) - 1
    def used(self, g): return sum(x.cost for x in self.mand[g] + self.fill[g] + self.tail[g])
    def place(self, items, g0, g1, mode='asap', name=''):
        n = len(items); g1 = min(g1, len(self.head))
        tot = sum(x.cost for x in items)
        for extra_num in range(0, 400):
            W = g1 - g0
            over = [0] * W
            for e in range(extra_num):
                lvl, idx = divmod(e, W)
                over[idx] += 4
            full, part = divmod(extra_num, W)
            over = [4 * full + (4 if (i * part) // W != ((i + 1) * part) // W else 0) for i in range(W)]
            add = [0] * W; pos = []; g = g0; acc = 0; ok = True
            hasv = [any(x.kind == 'vmem' for x in self.mand[g0+i] + self.fill[g0+i]) for i in range(W)]
            hass = [any(x.kind == 'salu' for x in self.mand[g0+i] + self.fill[g0+i]) for i in range(W)]
            for it in items:
                if mode == 'spread':
                    g = max(g, g0 + int(acc / tot * W))
                    acc += it.cost
                while g < g1:
                    fits = self.used(g) + add[g - g0] + it.cost <= self.cap[g] + over[g - g0]
                    if it.kind == 'vmem' and (hasv[g - g0] or hass[g - g0]) and extra_num < W: fits = False
                    if it.kind == 'salu' and hasv[g - g0] and extra_num < W: fits = False
                    if fits: break
                    g += 1
                if g >= g1: ok = False; break
                add[g - g0] += it.cost; pos.append(g)
                if it.kind == 'vmem': hasv[g - g0] = True
                if it.kind == 'salu': hass[g - g0] = True
            if ok:
                for it, g in zip(items, pos): self.fill[g].append(it)
                return pos
        raise RuntimeError(f"cannot place stream {name} in [{g0},{g1})")
    def emit(self, g0=0, g1=None):
        out = []
        for g in range(g0, g1 if g1 is not None else len(self.head)):
            out += self.head[g] + self.mand[g] + self.fill[g] + self.tail[g]
        return out
    def overflow(self, g0=0, g1=None):
        return sum(max(0, self.used(g) - self.cap[g]) for g in range(g0, g1 if g1 is not None else len(self.head)))

def size_of(i):
    if i.kind == 'label': return 0, False
    if i.kind in ('mfma32', 'mfma16', 'ds', 'vmem', 'smem'): return 8, False
    lit = False
    for o in i.ops:
        o = o.strip()
        if re.fullmatch(r'-?(0x[0-9a-fA-F]+|\d+)', o):
            v = int(o, 0)
            if not (-16 <= v <= 64): lit = True
        elif re.fullmatch(r'[A-Z_]+', o): lit = True
    if i.kind in ('wait', 'bar', 'nop', 'branch'): return 4, False
    if i.kind == 'salu':
        if i.base in ('s_getreg_b32', 's_movk_i32', 's_endpgm', 's_sleep', 's_setprio'): return 4, False
        return (8 if lit else 4), False
    if i.op.endswith('_e64') or i.op.endswith('_dpp') or i.op.endswith('_sdwa'): return 8, False
    if i.op.endswith('_e32'): return (8 if lit else 4), False
    if i.base in E32OK or i.base.startswith('v_cmp') or i.base in ('v_readfirstlane_b32', 'v_permlane32_swap_b32', 'v_permlane16_swap_b32', 'v_dot2c_f32_bf16', 'v_accvgpr_mov_b32'):
        if lit: return 8, False
        ops = i.ops
        if any(o.startswith('-v') or o.startswith('-s') or o.startswith('abs') for o in ops): return 8, False
        if i.base.startswith('v_cmp'):
            if ops[0] != 'vcc' or not ops[2].startswith('v'): return 8, False
            return 4, True
        if i.base == 'v_cndmask_b32':
            if ops[3] != 'vcc' or not ops[2].startswith('v'): return 8, False
            return 4, True
        if len(ops) >= 3 and not ops[2].startswith('v'): return 8, False
        flex = i.base in E32OK
        return 4, flex
    return 8, False

def align_pass(prog, start=0):
    off = start; cand = None; mis = 0
    for n, i in enumerate(prog):
        s, flex = size_of(i)
        if s == 8 and off % 8 == 4:
            if cand is not None:
                c = prog[cand]
                prog[cand] = I(c.text.replace(c.op, c.op + '_e64', 1), c.tag, c.cost, c.cond)
                off += 4; cand = None
            else: mis += 1
        if s == 8 and off % 8 == 0: cand = None
        if s == 4 and flex: cand = n
        off += s
    return prog, mis, off
```

```python
import sys
from asmlib import *

def attn(G):
    globals().update({k: v for k, v in G.items() if not k.startswith('__') and k not in ('attn', 'final')})
    P = Prog()
    ARING = 18432; ANS = 6; EX = ARING * ANS
    ACC = 40; XR = 112; AF = 192
    KO, KP, VO, VP = 0, 36, 72, 108
    vDQ = [16, 17, 18, 19, 20]; vDW = [21, 22, 23, 24, 25]
    vRX = [26, 27]; vRR = [28, 29]
    vEW, vEP, vST, vFL = 30, 31, 32, 33
    STG = [1, 1]
    sG = sSL
    TQ = 58
    TW = 67
    TS = 40
    sLB = 's3'
    sHS = 's[8:11]'
    sFS = 's[4:7]'
    P(f"s_mov_b32 {sG}, s38")
    P(f"s_mov_b32 s16, s6\ns_mov_b32 s17, s7\ns_mov_b32 s18, {576*1728*2}\ns_mov_b32 s19, 0x20000")
    P(f"s_mov_b32 s20, s8\ns_mov_b32 s21, s9\ns_mov_b32 s22, {576*576*2}\ns_mov_b32 s23, 0x20000")
    P(f"s_cmp_eq_u32 {sWV}, 3\ns_cselect_b32 s10, {WS_BYTES}, 0\ns_cselect_b32 s6, 256, 0")
    P(f"s_mov_b32 s8, s46\ns_mov_b32 s9, s47\ns_mov_b32 s11, 0x20000")
    P(f"s_mov_b32 s4, s44\ns_mov_b32 s5, s45\ns_mov_b32 s7, 0x20000")
    P(f"s_mul_i32 s49, {sWV}, 9\ns_lshr_b32 s49, s49, 1\ns_lshl_b32 {sLB}, s49, 10")
    P(f"s_mul_i32 s51, {sG}, 288\ns_mul_i32 s52, {sG}, {144*1152}")
    P(f"s_lshl_b32 s53, {sM}, 4\ns_add_u32 s53, s53, {sG}\ns_add_u32 s53, s53, 12\ns_lshl_b32 s53, s53, 1\ns_lshr_b32 s96, {sWV}, 1\ns_add_u32 s53, s53, s96")
    P(f"s_mul_i32 s53, s53, {18*4096}\ns_and_b32 s96, {sWV}, 1\ns_lshl_b32 s96, s96, 11\ns_add_u32 s53, s53, s96")
    for st in range(9):
        P(f"s_mul_i32 s{TQ+st}, s50, {64*3456}\ns_add_u32 s{TQ+st}, s{TQ+st}, s51")
        P(f"s_lshl_b32 s{TW+st}, s50, 7\ns_add_u32 s{TW+st}, s{TW+st}, s52")
        P(f"s_lshl_b32 s{TS+st}, s50, 13\ns_add_u32 s{TS+st}, s{TS+st}, s53")
        if st < 8: P(f"s_add_u32 s50, s50, 1\ns_cmp_eq_u32 s50, 9\ns_cselect_b32 s50, 0, s50")
    P(f"s_mov_b32 s96, {-(-(1<<32)//18)}\ns_lshl_b32 s97, s49, 6\ns_lshl_b32 s98, s49, 3")
    for n in range(5):
        imm = 1024 * n if n < 4 else 0
        P(f"v_add_u32 v2, s97, v0")
        if n: P(f"v_add_u32 v2, {64*n}, v2")
        P(f"v_mul_hi_u32 v3, v2, s96\nv_mul_u32_u24 v4, 18, v3\nv_sub_u32 v2, v2, v4\nv_lshlrev_b32 v2, 4, v2")
        P(f"v_and_b32 v4, 35, v3\nv_bfe_u32 v5, v3, 2, 2\nv_lshlrev_b32 v5, 3, v5\nv_add_u32 v4, v4, v5\nv_bfe_u32 v5, v3, 4, 1\nv_lshlrev_b32 v5, 2, v5\nv_add_u32 v4, v4, v5")
        P(f"v_mul_u32_u24 v4, 3456, v4\nv_add_u32 v{vDQ[n]}, v4, v2")
        if imm: P(f"v_subrev_u32 v{vDQ[n]}, {imm}, v{vDQ[n]}")
        P(f"v_lshrrev_b32 v2, 3, v0\nv_add_u32 v2, s98, v2")
        if n: P(f"v_add_u32 v2, {8*n}, v2")
        P(f"v_lshrrev_b32 v3, 4, v2\nv_mul_u32_u24 v4, 18, v3\nv_and_b32 v5, 1, v3\nv_lshlrev_b32 v5, 1, v5\nv_add_u32 v4, v4, v5\nv_and_b32 v5, 15, v2\nv_add_u32 v4, v4, v5")
        P(f"v_bfe_u32 v5, v2, 2, 2\nv_mul_u32_u24 v5, 36, v5\nv_and_b32 v6, 3, v2\nv_add_u32 v5, v5, v6\nv_add_u32 v5, 16, v5")
        P(f"v_cmp_eq_u32 vcc, 8, v3\nv_bfe_u32 v6, v2, 1, 2\nv_lshlrev_b32 v6, 1, v6\nv_cndmask_b32 v4, v4, v5, vcc\nv_and_b32 v5, 7, v0\nv_xor_b32 v5, v5, v6\nv_lshlrev_b32 v5, 4, v5")
        P(f"v_mul_u32_u24 v4, 1152, v4\nv_add_u32 v{vDW[n]}, v4, v5")
        if imm: P(f"v_subrev_u32 v{vDW[n]}, {imm}, v{vDW[n]}")
    PCOL = [1152, 2304, 0]
    def dma(s):
        slot = (s % ANS) * ARING
        if s < 27: srd, vD, so = sWA, vDQ, f"s_add_u32 s99, s{TQ + s % 9}, {PCOL[s // 9]}"
        else: srd, vD, so = sWB, vDW, f"s_mov_b32 s99, s{TW + s - 27}"
        t = f"d{s}"
        L = mk(f"s_add_u32 m0, {sLB}, {slot}\n{so}")
        for n in range(4): L += mk(f"buffer_load_dwordx4 v{vD[n]}, {srd}, s99 offen offset:{1024*n} lds", tag=t, cost=8)
        L += mk(f"s_add_u32 m0, {sLB}, {slot+4096}")
        L += mk(f"buffer_load_dwordx4 v{vD[4]}, {srd}, s99 offen lds", tag=t, cost=8)
        return L
    P(f"v_lshrrev_b32 v2, 2, v0\nv_mul_u32_u24 v2, 288, v2\nv_and_b32 v3, 3, v0\nv_lshlrev_b32 v4, 3, v3\nv_add_u32 v{vRX[0]}, v2, v4")
    P(f"v_mul_u32_u24 v4, 72, v3\nv_add_u32 v4, 32, v4\nv_add_u32 v{vRR[0]}, v2, v4\nv_add_u32 v{vRX[1]}, {3*ARING}, v{vRX[0]}\nv_add_u32 v{vRR[1]}, {3*ARING}, v{vRR[0]}")
    P(f"v_lshlrev_b32 v{vST}, 4, v0\ns_mul_i32 s96, {sWV}, 9216\ns_add_u32 s96, s96, {EX}\nv_add_u32 v{vEW}, s96, v{vST}")
    P(f"s_max_u32 s97, {sWV}, 1\ns_sub_u32 s97, s97, 1\ns_mul_i32 s97, s97, 9216\ns_add_u32 s97, s97, {EX}\nv_add_u32 v{vEP}, s97, v{vST}")
    P(f"v_and_b32 v2, 15, v0\nv_lshlrev_b32 v2, 7, v2\nv_add_u32 v2, s54, v2\nv_bfe_u32 v3, v0, 1, 3\nv_lshrrev_b32 v4, 4, v0\nv_xor_b32 v3, v3, v4\nv_lshlrev_b32 v3, 4, v3")
    P(f"v_add_u32 v34, v2, v3\nv_xor_b32 v35, 64, v34\nv_add_u32 v36, 98304, v34\nv_add_u32 v37, 98304, v35")
    SEL = 48
    sel_consts(P, SEL, 'v2', 'v3', 'v4')
    for r in range(8, 16): P(f"v_mov_b32 v{r}, 0")
    P("s_mov_b32 s57, 0x3f803f80")
    P.l = weave(P.l, [xdma(1, S) for S in range(3)], 30)
    stamp(P, 1)
    def dgroups(lst):
        Gs = []; cur = []
        for x in lst:
            cur.append(x)
            if x.kind == 'vmem': Gs.append(cur); cur = []
        if cur: Gs[-1] += cur
        return Gs
    for st in range(3):
        fr = []
        for f in range(12):
            ks = 6 * st + f // 2; Pp = f % 2
            fr.append((XR + 8 * ks + 4 * Pp, (34 if st < 2 else 36) + (ks & 1), (st % 2) * 49152 + ((ks % 6) // 2) * 4096 + Pp * 2048, Pp))
        sums = [[8, 9], [10, 11]]; sqs = [[12, 13], [14, 15]]
        if st == 0:
            P.add(xdma(2, 0))
            xstats(P, st, fr, sums, sqs, mk("s_barrier"), [xdma(2, 1), xdma(2, 2)])
            P.add(dma(0))
        elif st == 1:
            xstats(P, st, fr, sums, sqs, mk("s_barrier"), dgroups(dma(1)))
            P.add(dma(2)); P.add(dma(3))
            stamp(P, 2)
        else: xstats(P, st, fr, sums, sqs)
    for a in (8, 10, 12, 14): P(f"v_add_f32 v{a}, v{a}, v{a+1}")
    for sw in ('32', '16'):
        for a in (8, 10, 12, 14): P(f"v_mov_b32 v{a+1}, v{a}")
        for a in (8, 10, 12, 14): P(f"v_permlane{sw}_swap_b32 v{a}, v{a+1}")
        for a in (8, 10, 12, 14): P(f"v_add_f32 v{a}, v{a}, v{a+1}")
    A1 = Prog(); ln_stats(A1, 'v8', 'v12', 'v40', 'v2', None)
    A2 = Prog(); ln_stats(A2, 'v10', 'v14', 'v54', 'v3', None)
    for a, b in zip(A1.l, A2.l): P.add([a, b])
    P("v_mov_b32 v41, v40\nv_mov_b32 v42, v40\nv_mov_b32 v43, v40\nv_mov_b32 v55, v54\nv_mov_b32 v56, v54\nv_mov_b32 v57, v54")
    CM = [40, 54]
    D1 = [60, 68, 76]; D2 = [84, 92, 100]
    def xr(F): return XR + 4 * F
    def U1(F): d = D1[F % 3]; return mk(f"v_mfma_f32_16x16x32_bf16 {vr(d,4)}, {vr(SEL+2,4)}, {vr(xr(F),4)}, {vr(CM[F%2],4)}\nv_mfma_f32_16x16x32_bf16 {vr(d+4,4)}, {vr(SEL,4)}, {vr(xr(F),4)}, {vr(CM[F%2],4)}")
    def C1(F): d = D1[F % 3]; return mk("\n".join(f"v_cvt_pk_bf16_f32 v{xr(F)+j}, v{d+2*j}, v{d+2*j+1}" for j in range(4)))
    def U2(F): d = D2[F % 3]; return mk(f"v_mfma_f32_16x16x32_bf16 {vr(d,4)}, {vr(SEL+2,4)}, {vr(xr(F),4)}, 0\nv_mfma_f32_16x16x32_bf16 {vr(d+4,4)}, {vr(SEL,4)}, {vr(xr(F),4)}, 0")
    def M2(F): d = D2[F % 3]; return mk("\n".join(f"v_mul_f32 v{d+j}, v{2+F%2}, v{d+j}" for j in range(8)))
    def C2(F): d = D2[F % 3]; return mk("\n".join(f"v_cvt_pk_bf16_f32 v{xr(F)+j}, v{d+2*j}, v{d+2*j+1}" for j in range(4)))
    for i in range(-2, 37):
        u1 = U1(i + 2) if 0 <= i + 2 < 36 else []
        c1 = C1(i + 1) if 0 <= i + 1 < 36 else []
        u2 = U2(i) if 0 <= i < 36 else []
        m2 = M2(i - 1) + C2(i - 1) if 0 <= i - 1 < 36 else []
        P.add(u1[:1] + m2[0:4] + u1[1:] + m2[4:8] + u2[:1] + c1 + u2[1:] + m2[8:])
    uses = []
    for ps in range(3):
        for ks in range(18):
            s = 9 * ps + ks // 2; slot = s % ANS
            for j in range(9):
                n = len(uses); af = AF + 4 * (n % 16)
                off = (slot % 3) * ARING + (ks & 1) * 9216 + (36 * j + 4 * (j & 1) if j < 8 else 0)
                va = (vRX if j < 8 else vRR)[slot // 3]
                rd = mk(f"ds_read_b64_tr_b16 {ar(af,2)}, v{va} offset:{off}\nds_read_b64_tr_b16 {ar(af+2,2)}, v{va} offset:{off+4608}", tag=f"r{n}")
                mf = []
                for Pp in range(2):
                    acc = vr(ACC + 8 * j + 4 * Pp, 4); x = vr(XR + 8 * ks + 4 * Pp, 4)
                    a, b = (ar(af, 4), x) if ps != 1 else (x, ar(af, 4))
                    mf += mk(f"v_mfma_f32_16x16x32_bf16 {acc}, {a}, {b}, {'0' if ks == 0 else acc}")
                uses.append((s, rd, mf))
    NQ = len(uses); PD = 5
    extra_lw = {10: 'ew0', 19: 'ew1'}
    def barrier(s):
        if s in extra_lw: return mk(f"WAITVL d{s}, {extra_lw[s]}\ns_barrier")
        return mk(f"WAITV d{s}\ns_barrier")
    P.add(barrier(0))
    for n in range(PD): P.add(uses[n][1])
    P("WAITL r2")
    stamp(P, 3)
    SC = Sched(); gi = {}; gbar = {0: -1}
    for n in range(NQ):
        mf = uses[n][2]
        g0 = SC.gap([mf[0]], 16); g1 = SC.gap([mf[1]], 16); gi[n] = g0
        if n + PD < NQ:
            if uses[n + PD][0] != uses[n + PD - 1][0]:
                SC.mand[g0] += barrier(uses[n + PD][0]); gbar[uses[n + PD][0]] = g0
                SC.mand[g1] += uses[n + PD][1]
            else: SC.mand[g0] += uses[n + PD][1]
        if n % 3 == 2 and n + 1 < NQ: SC.tail[g1] += mk(f"WAITL r{n+3}")
    gi[NQ] = len(SC.head); gbar[27] = len(SC.head)
    stg = [4, 8, 12]
    P2 = Prog()
    HOFF = 's100'
    for ps in range(2):
        for j in range(9):
            nlast = 162 * ps + 153 + j
            d = stg[j % 3]; a = ACC + 8 * j
            L = mk("\n".join(f"v_cvt_pk_bf16_f32 v{d+q}, v{a+2*q}, v{a+2*q+1}" for q in range(4)))
            g = gi[nlast + 5]
            SC.fill[g] += L[:1]; SC.fill[g + 1] += L[1:]
            L = mk(f"ds_write_b128 v{vEW}, {vr(d,4)} offset:{1024*j}", tag=f"ew{ps}", cost=8)
            if j % 4 == 0: L += mk(f"s_add_u32 s101, {HOFF}, {(9*ps+j)*1024}")
            L += mk(f"buffer_store_dwordx4 {vr(d,4)}, v{vST}, {sHS}, s101 offen offset:{1024*(j%4)} sc1", tag=f"hs{ps}", cost=8)
            SC.fill[g + 2] += L
        own, prev = (KO, KP) if ps == 0 else (VO, VP)
        L = []
        for j in range(9):
            L += mk(f"ds_read_b128 {ar(own+4*j,4)}, v{vEW} offset:{1024*j}\nds_read_b128 {ar(prev+4*j,4)}, v{vEP} offset:{1024*j}", tag=f"er{ps}")
        sb = 10 if ps == 0 else 19
        SC.place(L, gbar[sb] + 2, gbar[sb + 2], 'spread', f'rb{ps}')
    for s in range(27): SC.place(dma(s + 4), gbar[s] + 1, gbar[s + 1], 'spread', f'dma{s+4}')
    SC.place(mk("WAITV hs1") + mk(f"buffer_store_dword v38, v{vFL}, {sFS}, 0 offen sc1", tag='fl', cost=8), gbar[22] + 2, gbar[23], 'asap', 'flag')
    P(f"s_lshl_b32 s96, {sM}, 2\ns_add_u32 s96, s96, {sG}\ns_mul_i32 {HOFF}, s96, {18*1024}\ns_add_u32 {HOFF}, {HOFF}, {WS_HALO}")
    P(f"s_lshl_b32 s96, s96, 2\nv_lshlrev_b32 v{vFL}, 8, v0\nv_add_u32 v{vFL}, s96, v{vFL}\nv_mov_b32 v38, 1")
    print("; attn qkv overflow %d" % SC.overflow(), file=sys.stderr)
    P.add(SC.emit(0, gi[162])); stamp(P, 4)
    P.add(SC.emit(gi[162], gi[324])); stamp(P, 5)
    P.add(SC.emit(gi[324]))
    QX = XR
    for j in range(9):
        for q in range(4): P(f"v_cvt_pk_bf16_f32 v{QX+4*j+q}, v{ACC+8*j+2*q}, v{ACC+8*j+2*q+1}")
    stamp(P, 6)
    P(f"s_cmp_lg_u32 {sWV}, 0\ns_cbranch_scc1 L_nohalo")
    P(f"s_cmp_eq_u32 {sM}, 0\ns_cbranch_scc1 L_zerohalo", cond=True)
    P(f"s_sub_u32 s96, s96, 16\nv_mov_b32 v2, s96\ns_mov_b32 s98, 0", cond=True)
    P("L_poll:")
    P(f"buffer_load_dword v3, v2, {sDBG}, 0 offen sc1\ns_waitcnt vmcnt(0)\nv_readfirstlane_b32 s97, v3\ns_nop 3\ns_cmp_eq_u32 s97, 0\ns_cbranch_scc0 L_polled\ns_sleep 2\ns_add_u32 s98, s98, 1\ns_cmp_lt_u32 s98, 0x40000\ns_cbranch_scc1 L_poll", cond=True)
    P("L_polled:")
    P(f"s_sub_u32 s97, {HOFF}, {4*18*1024}", cond=True)
    for j in range(18):
        dst = (KP + 4 * j) if j < 9 else (VP + 4 * (j - 9))
        if j % 4 == 0 and j: P(f"s_add_u32 s97, s97, 4096", cond=True)
        P(f"buffer_load_dwordx4 {ar(dst,4)}, v{vST}, {sWS}, s97 offen offset:{1024*(j%4)} sc1", cond=True)
    P("s_waitcnt vmcnt(0)\ns_branch L_nohalo", cond=True)
    P("L_zerohalo:")
    for r in list(range(KP, KP + 36)) + list(range(VP, VP + 36)): P(f"v_accvgpr_write_b32 a{r}, 0", cond=True)
    P("L_nohalo:")
    P("s_nop 1")
    MO, MP, MV, NEG = 244, 246, 248, 250
    sOWN = [f"s[{58+2*r}:{59+2*r}]" for r in range(4)]
    sGRP = ["s[50:51]", "s[52:53]", "s[54:55]", "s[96:97]"]
    P(f"s_or_b32 s98, {sM}, {sWV}\ns_cmp_eq_u32 s98, 0\ns_cselect_b32 s98, 99, 9")
    P("v_and_b32 v2, 15, v0\nv_lshrrev_b32 v3, 4, v0")
    for g in range(4): P(f"v_cmp_eq_u32 {sGRP[g]}, {g}, v3")
    P("v_lshlrev_b32 v3, 2, v3\nv_sub_u32 v3, v3, v2")
    P(f"v_mov_b32 v8, 0xffff\nv_mov_b32 v9, 0xffff0000\nv_mov_b32 v{NEG}, 0xff7fff7f")
    for r in range(4):
        P(f"v_add_u32 v4, {r}, v3")
        P(f"v_cmp_ge_i32 {sOWN[r]}, 0, v4")
        P(f"v_cmp_le_i32 vcc, -7, v4\ns_and_b64 s[66:67], vcc, {sOWN[r]}" if False else f"v_cmp_le_i32 vcc, -7, v4")
        P(f"s_and_b64 vcc, vcc, {sOWN[r]}")
        P(f"v_cndmask_b32 v5, 0, v{8+r%2}, vcc")
        P(f"v_cmp_le_i32 vcc, s98, v4")
        P(f"v_cndmask_b32 v6, 0, v{8+r%2}, vcc")
        if r % 2 == 0: P(f"v_mov_b32 v{MO+r//2}, v5\nv_mov_b32 v{MP+r//2}, v6")
        else: P(f"v_or_b32 v{MO+r//2}, v{MO+r//2}, v5\nv_or_b32 v{MP+r//2}, v{MP+r//2}, v6\nv_or_b32 v{MV+r//2}, v{MO+r//2}, v{MP+r//2}")
    P(f"s_mov_b32 s98, {hx(18 ** -0.5)}\ns_mov_b32 s99, {hx(LOG2E)}\ns_mov_b32 s49, 0xffff0000")
    SB = 40; QRM = 104; W = 148; POP = 188; OP = 204
    for Pp in range(2): P(f"v_mov_b32 v{QRM+4*Pp+1}, 0\nv_mov_b32 v{QRM+4*Pp+2}, 0")
    def sbuf(e, hh, Pp): return SB + 32 * (e % 2) + 16 * hh + 8 * Pp
    def Sm(e):
        L = []
        for hh in range(2):
            for Pp in range(2): L += mk(f"v_cndmask_b32 v{QRM+4*Pp+3*hh}, 0, v{QX+32+2*Pp+hh}, {sGRP[e]}")
        for part in range(2):
            for hh in range(2):
                h = 2 * e + hh
                for Pp in range(2):
                    for k, KB in enumerate((KO, KP)):
                        d = vr(sbuf(e, hh, Pp) + 4 * k, 4)
                        if part == 0: L += mk(f"v_mfma_f32_16x16x16_bf16 {d}, {ar(KB+4*h+2*Pp,2)}, {vr(QX+4*h+2*Pp,2)}, 0")
                        else: L += mk(f"v_mfma_f32_16x16x16_bf16 {d}, {ar(KB+32+2*Pp,2)}, {vr(QRM+4*Pp+2*hh,2)}, {d}")
        return L
    def head(e, hh):
        L = []
        w = W + 20 * hh
        T = [[w + 10 * Pp + r for r in range(4)] for Pp in range(2)]
        K = [[w + 10 * Pp + 4, w + 10 * Pp + 5] for Pp in range(2)]
        M = [w + 6, w + 16]; tmp = w + 7
        def both(f):
            a, b = mk(f(0)), mk(f(1))
            for x, y in zip(a, b): L.append(x); L.append(y)
        both(lambda p: "\n".join(f"v_cndmask_b32 v{T[p][r]}, v{sbuf(e,hh,p)+4+r}, v{sbuf(e,hh,p)+r}, {sOWN[r]}" for r in range(4)))
        cvt = lambda p: f"v_cvt_pk_bf16_f32 v{K[p][0]}, v{T[p][0]}, v{T[p][1]}\nv_cvt_pk_bf16_f32 v{K[p][1]}, v{T[p][2]}, v{T[p][3]}"
        unp = lambda p: f"v_lshlrev_b32 v{T[p][0]}, 16, v{K[p][0]}\nv_and_b32 v{T[p][1]}, s49, v{K[p][0]}\nv_lshlrev_b32 v{T[p][2]}, 16, v{K[p][1]}\nv_and_b32 v{T[p][3]}, s49, v{K[p][1]}"
        both(cvt); both(unp)
        both(lambda p: "\n".join(f"v_mul_f32 v{T[p][r]}, s98, v{T[p][r]}" for r in range(4)))
        both(cvt)
        both(lambda p: f"v_bfi_b32 v{K[p][0]}, v{MV}, v{K[p][0]}, v{NEG}\nv_bfi_b32 v{K[p][1]}, v{MV+1}, v{K[p][1]}, v{NEG}")
        both(unp)
        both(lambda p: f"v_max3_f32 v{M[p]}, v{T[p][0]}, v{T[p][1]}, v{T[p][2]}\nv_max_f32 v{M[p]}, v{M[p]}, v{T[p][3]}")
        L += mk(f"v_permlane32_swap_b32 v{M[0]}, v{M[1]}\nv_max_f32 v{M[0]}, v{M[0]}, v{M[1]}\nv_mov_b32 v{M[1]}, v{M[0]}\nv_permlane16_swap_b32 v{M[0]}, v{M[1]}\nv_max_f32 v{M[0]}, v{M[0]}, v{M[1]}")
        L += mk(f"v_mul_f32 v{M[0]}, s99, v{M[0]}\nv_mov_b32 v{M[1]}, v{M[0]}\nv_permlane32_swap_b32 v{M[0]}, v{M[1]}")
        both(lambda p: "\n".join(f"v_fma_f32 v{T[p][r]}, v{T[p][r]}, s99, -v{M[p]}" for r in range(4)))
        both(lambda p: "\n".join(f"v_exp_f32 v{T[p][r]}, v{T[p][r]}" for r in range(4)))
        both(lambda p: f"v_add_f32 v{M[p]}, v{T[p][0]}, v{T[p][1]}\nv_add_f32 v{K[p][0]}, v{T[p][2]}, v{T[p][3]}\nv_add_f32 v{M[p]}, v{M[p]}, v{K[p][0]}")
        L += mk(f"v_permlane32_swap_b32 v{M[0]}, v{M[1]}\nv_add_f32 v{M[0]}, v{M[0]}, v{M[1]}\nv_mov_b32 v{M[1]}, v{M[0]}\nv_permlane16_swap_b32 v{M[0]}, v{M[1]}\nv_add_f32 v{M[0]}, v{M[0]}, v{M[1]}")
        L += mk(f"v_rcp_f32 v{M[0]}, v{M[0]}\nv_mov_b32 v{M[1]}, v{M[0]}\nv_permlane32_swap_b32 v{M[0]}, v{M[1]}")
        both(lambda p: "\n".join(f"v_mul_f32 v{T[p][r]}, v{M[p]}, v{T[p][r]}" for r in range(4)))
        both(cvt)
        po = lambda p: POP + 8 * hh + 4 * p
        both(lambda p: f"v_and_b32 v{po(p)}, v{MO}, v{K[p][0]}\nv_and_b32 v{po(p)+1}, v{MO+1}, v{K[p][1]}\nv_and_b32 v{po(p)+2}, v{MP}, v{K[p][0]}\nv_and_b32 v{po(p)+3}, v{MP+1}, v{K[p][1]}")
        return L
    def PVm(e):
        L = []
        for part in range(2):
            for hh in range(2):
                h = 2 * e + hh
                for Pp in range(2):
                    for k, tile in enumerate((h, 8)):
                        d = vr(sbuf(e, hh, Pp) + 4 * k, 4)
                        VB = VO if part == 0 else VP
                        L += mk(f"v_mfma_f32_16x16x16_bf16 {d}, {ar(VB+4*tile+2*Pp,2)}, {vr(POP+8*hh+4*Pp+2*part,2)}, {'0' if part == 0 else d}")
        return L
    def Oc(e):
        L = []
        for hh in range(2):
            for Pp in range(2):
                d = sbuf(e, hh, Pp); o = OP + 20 * Pp + 4 * e + 2 * hh
                L += mk(f"v_cvt_pk_bf16_f32 v{o}, v{d}, v{d+1}\nv_cvt_pk_bf16_f32 v{o+1}, v{d+2}, v{d+3}")
                L += mk(f"v_cvt_pk_bf16_f32 v{d+4}, v{d+4+2*hh}, v{d+5+2*hh}")
        for hh in range(2):
            for Pp in range(2):
                d = sbuf(e, hh, Pp); o = OP + 20 * Pp + 16 + hh
                L += mk(f"v_cndmask_b32 v{o}, v{o}, v{d+4}, {sGRP[e]}")
        return L
    for Pp in range(2):
        for q in range(16, 20): P(f"v_mov_b32 v{OP+20*Pp+q}, 0")
    P.add(Sm(0))
    for e in range(4):
        a, b = head(e, 0), head(e, 1)
        merged = []
        for x, y in zip(a, b): merged += [x, y]
        pre = []
        if e >= 1: pre += Oc(e - 1)
        if e + 1 < 4: pre += Sm(e + 1)
        if e == 0: P.add(pre + merged)
        else:
            P.add(merged[:16]); P.add(weave(merged[16:], [[x] for x in pre], 3))
        P.add(PVm(e))
    stamp(P, 7)
    vRW = [164 + i for i in range(8)]; WSTG = 172
    P(f"v_lshrrev_b32 v2, 2, v0\nv_lshlrev_b32 v2, 7, v2\nv_and_b32 v3, 3, v0\nv_lshlrev_b32 v3, 3, v3\nv_add_u32 v2, v2, v3\nv_bfe_u32 v3, v0, 3, 2\nv_lshlrev_b32 v3, 5, v3\nv_add_u32 v{vRW[0]}, v2, v3")
    for ct in range(1, 4): P(f"v_xor_b32 v{vRW[ct]}, {32*ct}, v{vRW[0]}")
    for ct in range(4): P(f"v_add_u32 v{vRW[4+ct]}, {3*ARING}, v{vRW[ct]}")
    P.add(Oc(3))
    WACC = 100
    uses = []
    for st in range(9):
        s = 27 + st; slot = s % ANS
        for ct in range(4):
            for e in range(5):
                n = len(uses); af = AF + 4 * (n % 16)
                off = (slot % 3) * ARING + 32 * e * 128
                va = vRW[4 * (slot // 3) + ct]
                mf = []
                if e < 4:
                    rd = mk(f"ds_read_b64_tr_b16 {ar(af,2)}, v{va} offset:{off}\nds_read_b64_tr_b16 {ar(af+2,2)}, v{va} offset:{off+2048}", tag=f"w{n}")
                else:
                    rd = mk(f"ds_read_b64_tr_b16 {ar(af,2)}, v{va} offset:{off}", tag=f"w{n}")
                for Pp in range(2):
                    acc = vr(40 + 32 * (st % 2) + 8 * ct + 4 * Pp, 4)
                    mf += mk(f"v_mfma_f32_16x16x32_bf16 {acc}, {ar(af,4)}, {vr(OP+20*Pp+4*e,4)}, {'0' if e == 0 else acc}")
                uses.append((s, rd, mf))
    NW = len(uses)
    P.add(barrier(27))
    for n in range(PD): P.add(uses[n][1])
    P("WAITL w2")
    SC = Sched(); gi = {}; gbar = {27: -1}
    for n in range(NW):
        mf = uses[n][2]
        g0 = SC.gap([mf[0]], 16); g1 = SC.gap([mf[1]], 16); gi[n] = g0
        if n + PD < NW:
            if uses[n + PD][0] != uses[n + PD - 1][0]:
                SC.mand[g0] += barrier(uses[n + PD][0]); gbar[uses[n + PD][0]] = g0
                SC.mand[g1] += uses[n + PD][1]
            else: SC.mand[g0] += uses[n + PD][1]
        if n % 3 == 2 and n + 1 < NW: SC.tail[g1] += mk(f"WAITL w{n+3}")
    gi[NW] = len(SC.head)
    for s in range(27, 32): SC.place(dma(s + 4), gbar[s] + 1, gbar[s + 1], 'spread', f'dma{s+4}')
    def epi(st):
        L = []
        for c in range(2):
            L += mk(f"s_add_u32 s101, s{TS+st}, {4096*c}")
            for Pp in range(2):
                d = WSTG + 8 * c + 4 * Pp
                for u in range(2):
                    a = 40 + 32 * (st % 2) + 8 * (2 * c + u) + 4 * Pp
                    L += mk(f"v_cvt_pk_bf16_f32 v{d+2*u}, v{a}, v{a+1}\nv_cvt_pk_bf16_f32 v{d+2*u+1}, v{a+2}, v{a+3}")
                L += mk(f"buffer_store_dwordx4 {vr(d,4)}, v{vST}, {sWS}, s101 offen offset:{1024*Pp}", tag='st', cost=8)
        return L
    for st in range(8): SC.place(epi(st), gi[20 * (st + 1)] + 4, gi[20 * (st + 2)] - 1, 'spread', f'epi{st}')
    print("; attn wo overflow %d" % SC.overflow(), file=sys.stderr)
    P.add(SC.emit())
    P.add(epi(8))
    stamp(P, 8)
    stamp_flush(P, 9)
    P("s_endpgm")
    return P.l

def final(G):
    globals().update({k: v for k, v in G.items() if not k.startswith('__') and k not in ('attn', 'final')})
    P = Prog()
    P("s_cmp_ge_u32 s2, 576\ns_cbranch_scc1 L_fexit")
    P("s_load_dwordx2 s[4:5], s[0:1], 0\ns_load_dwordx2 s[8:9], s[0:1], 48\ns_load_dwordx2 s[12:13], s[0:1], 64")
    P(f"s_mov_b32 s16, {-(-(1<<32)//36)}\ns_mul_hi_u32 s17, s2, s16\ns_mul_i32 s18, s17, 36\ns_sub_u32 s18, s2, s18")
    P(f"s_cmp_ge_u32 s18, 18\ns_cselect_b32 s19, 1, 0\ns_mul_i32 s20, s19, 18\ns_sub_u32 s20, s18, s20")
    P(f"s_mul_i32 s21, s17, {16*36*4096}\ns_lshl_b32 s22, s18, 12\ns_add_u32 s21, s21, s22")
    P("v_lshlrev_b32 v1, 4, v0")
    P("v_lshrrev_b32 v2, 7, v0\nv_lshlrev_b32 v2, 5, v2\nv_bfe_u32 v3, v0, 6, 1\nv_add_u32 v2, v2, v3\nv_and_b32 v3, 15, v0\nv_lshlrev_b32 v3, 1, v3\nv_add_u32 v2, v2, v3")
    P("s_lshl_b32 s22, s17, 7\ns_lshl_b32 s23, s19, 6\ns_add_u32 s22, s22, s23\nv_add_u32 v2, s22, v2\nv_mul_u32_u24 v2, 1152, v2")
    P("v_bfe_u32 v3, v0, 4, 2\nv_lshlrev_b32 v3, 3, v3\nv_add_u32 v2, v2, v3\ns_lshl_b32 s23, s20, 6")
    P("s_waitcnt lgkmcnt(0)")
    P(f"s_mov_b32 s6, {2048*576*2}\ns_mov_b32 s7, 0x20000\ns_mov_b32 s10, {2048*576*2}\ns_mov_b32 s11, 0x20000\ns_mov_b32 s14, {WS_BYTES}\ns_mov_b32 s15, 0x20000")
    for j in range(16):
        P(f"buffer_load_dwordx4 {vr(32+4*j,4)}, v1, s[12:15], s21 offen", tag=f"p{j}")
        if j < 15: P(f"s_add_u32 s21, s21, {36*4096}")
    P("buffer_load_dwordx2 v[4:5], v2, s[4:7], s23 offen\nbuffer_load_dwordx2 v[6:7], v2, s[4:7], s23 offen offset:32", tag="x")
    P("s_mov_b32 s24, 0x3f80\ns_mov_b32 s25, 0x3f800000\ns_mov_b32 s26, 0xffff0000")
    for i in range(8, 24): P(f"v_mov_b32 v{i}, 0")
    for j in range(16):
        P(f"WAITV p{j}")
        b = 8 if j < 12 else 16
        for d in range(4):
            P(f"v_dot2c_f32_bf16 v{b+2*d}, s24, v{32+4*j+d}\nv_dot2c_f32_bf16 v{b+2*d+1}, s25, v{32+4*j+d}")
    def rnd(b):
        for d in range(4): P(f"v_cvt_pk_bf16_f32 v{24+d}, v{b+2*d}, v{b+2*d+1}")
        for d in range(4): P(f"v_lshlrev_b32 v{b+2*d}, 16, v{24+d}\nv_and_b32 v{b+2*d+1}, s26, v{24+d}")
    for i in range(8): P(f"v_mul_f32 v{8+i}, {hx(LN2)}, v{8+i}")
    rnd(8)
    for i in range(8): P(f"v_mul_f32 v{32+i}, {hx(-LOG2E)}, v{8+i}")
    for i in range(8): P(f"v_exp_f32 v{32+i}, v{32+i}")
    for i in range(8): P(f"v_add_f32 v{32+i}, 1.0, v{32+i}")
    for i in range(8): P(f"v_rcp_f32 v{32+i}, v{32+i}")
    for i in range(8): P(f"v_mul_f32 v{8+i}, v{8+i}, v{32+i}")
    rnd(8); rnd(16)
    for i in range(8): P(f"v_mul_f32 v{8+i}, v{8+i}, v{16+i}")
    rnd(8)
    P("WAITV x")
    for d in range(4): P(f"v_lshlrev_b32 v{16+2*d}, 16, v{4+d}\nv_and_b32 v{17+2*d}, s26, v{4+d}")
    for i in range(8): P(f"v_add_f32 v{8+i}, v{8+i}, v{16+i}")
    for d in range(4): P(f"v_cvt_pk_bf16_f32 v{24+d}, v{8+2*d}, v{9+2*d}")
    P("buffer_store_dwordx2 v[24:25], v2, s[8:11], s23 offen\nbuffer_store_dwordx2 v[26:27], v2, s[8:11], s23 offen offset:32")
    P("L_fexit:\ns_endpgm")
    return P.l
```

```python
import sys, math
from asmlib import *

OPT = dict(stmod=0, dbgwg=64, nosilu=0, nodma=0, nobar=0, nost=0, pd1=7, pd2=3, stamp=0, ffn=1, attn=1, verbose=0, rot=1, pfw=2, pfcode=1)
for a in sys.argv[1:]:
    k, v = a.split('='); OPT[k] = int(v)

STMOD = ['', ' sc1', ' nt', ' sc0 sc1', ' sc1 nt'][OPT['stmod']]
NAME = "recurrent_scan__sliding_local_dilated__dense_activation_silu__prompt"
LOG2E = 1.4426950408889634
LN2 = 0.6931471805599453
import struct
def f2u(f): return struct.unpack('<I', struct.pack('<f', f))[0]
def hx(f): return "0x%08x" % f2u(f)

WS_P = 0
WS_HALO = 40 << 20
WS_STAMP = 48 << 20
WS_BYTES = 64 << 20
LDS_BYTES = 155648

sX, sWA, sWB, sWS, sDBG = 's[12:15]', 's[16:19]', 's[20:23]', 's[24:27]', 's[28:31]'
sM, sSL, sWV, sROT, sMEM = 's32', 's33', 's34', 's35', 's36'

def vr(a, n): return f"v[{a}:{a+n-1}]" if n > 1 else f"v{a}"
def ar(a, n): return f"a[{a}:{a+n-1}]" if n > 1 else f"a{a}"

stamp_n = [0]
def stamp(P, idx):
    if not OPT['stamp']: return
    P(f"s_memtime s[78:79]\ns_waitcnt lgkmcnt(0)\ns_mov_b32 s{80+idx}, s78")
def stamp_flush(P, n):
    if not OPT['stamp']: return
    P(f"s_memrealtime s[78:79]\ns_waitcnt lgkmcnt(0)\ns_mov_b32 s{80+15}, s78")
    P(f"s_lshl_b32 s76, s2, 2\ns_add_u32 s76, s76, {sWV}\ns_lshl_b32 s76, s76, 6\ns_add_u32 s76, s76, {WS_STAMP}")
    P("v_mov_b32 v1, 0")
    for i in range(4):
        for j in range(4): P(f"v_mov_b32 v{4+j}, s{80+4*i+j}")
        P(f"buffer_store_dwordx4 v[4:7], v1, {sWS}, s76 offen offset:{16*i}")
        P("s_nop 1")

def round_bf16(P, dst, src):
    P(f"v_cvt_pk_bf16_f32 {dst}, {src}, {src}\nv_and_b32 {dst}, 0xffff0000, {dst}")

def ln_stats(P, vsum, vsq, vnegm, vr_, tmp):
    P(f"v_mul_f32 {vsum}, {hx(1/576)}, {vsum}")
    P(f"v_mul_f32 {vsq}, {hx(1/576)}, {vsq}")
    P(f"v_fma_f32 {vsq}, -{vsum}, {vsum}, {vsq}")
    P(f"v_max_f32 {vsq}, 0, {vsq}")
    round_bf16(P, vnegm, vsum)
    P(f"v_xor_b32 {vnegm}, 0x80000000, {vnegm}")
    round_bf16(P, vsq, vsq)
    P(f"v_add_f32 {vsq}, {hx(1e-5)}, {vsq}")
    round_bf16(P, vsq, vsq)
    P(f"v_sqrt_f32 {vsq}, {vsq}")
    round_bf16(P, vsq, vsq)
    P(f"v_rcp_f32 {vr_}, {vsq}")

def sel_consts(P, vsel, t0, t1, t2):
    P(f"v_mov_b32 v{vsel}, 0\nv_mov_b32 v{vsel+1}, 0\nv_mov_b32 v{vsel+4}, 0\nv_mov_b32 v{vsel+5}, 0")
    P(f"v_and_b32 {t0}, 1, v0\nv_lshlrev_b32 {t0}, 4, {t0}\nv_mov_b32 {t1}, 0x3f80\nv_lshlrev_b32 {t0}, {t0}, {t1}")
    P(f"v_bfe_u32 {t1}, v0, 2, 2\nv_lshrrev_b32 {t2}, 4, v0")
    P(f"v_cmp_eq_u32 vcc, {t1}, {t2}\nv_cndmask_b32 {t0}, 0, {t0}, vcc")
    P(f"v_and_b32 {t1}, 2, v0\nv_cmp_eq_u32 vcc, 0, {t1}")
    P(f"v_cndmask_b32 v{vsel+2}, 0, {t0}, vcc\nv_cndmask_b32 v{vsel+3}, {t0}, v{vsel}, vcc")

def common_prologue(P):
    P("s_cmp_ge_u32 s2, 256\ns_cbranch_scc1 L_exit")
    P("s_load_dwordx4 s[4:7], s[0:1], 0\ns_load_dwordx2 s[8:9], s[0:1], 16\ns_load_dwordx4 s[40:43], s[0:1], 32\ns_load_dwordx4 s[44:47], s[0:1], 56")
    P(f"v_lshrrev_b32 v1, 6, v0\nv_lshlrev_b32 v46, 7, v0\nv_readfirstlane_b32 {sWV}, v1\nv_and_b32 v0, 63, v0")
    if OPT['stamp']:
        for i in range(80, 96): P(f's_mov_b32 s{i}, 0')
        P("s_memrealtime s[78:79]\ns_memtime s[76:77]")
    P("s_and_b32 s37, s2, 1\ns_lshl_b32 s37, s37, 3")
    P("s_bfe_u32 s38, s2, 0x20001")
    P(f"s_lshr_b32 s39, s2, 3\ns_and_b32 {sMEM}, s39, 7\ns_add_u32 {sM}, s37, {sMEM}")
    P(f"s_lshr_b32 {sROT}, s39, 3\ns_sub_u32 {sROT}, {sROT}, 1\ns_mul_i32 s50, {sROT}, 3\ns_cmp_lt_u32 s39, 8\ns_cselect_b32 s50, {sMEM}, s50")
    if not OPT['rot']: P(f"s_mov_b32 s50, 0")
    P(f"s_lshl_b32 s53, {sM}, 7\ns_lshl_b32 s54, {sWV}, 5\ns_add_u32 s53, s53, s54\ns_mul_i32 s53, s53, 1152")
    P(f"v_lshrrev_b32 v2, 3, v0\nv_mul_u32_u24 v2, 2304, v2\nv_lshrrev_b32 v3, 4, v0\nv_and_b32 v44, 7, v0\nv_xor_b32 v3, v3, v44\nv_lshlrev_b32 v3, 4, v3")
    P(f"v_add_u32 v44, v2, v3\nv_add_u32 v44, s53, v44\nv_xor_b32 v45, 64, v44\nv_add_u32 v45, {16*1152-1024}, v45")
    P(f"s_lshl_b32 s55, s50, 7\ns_mul_i32 s54, {sWV}, 12288")
    P("s_waitcnt lgkmcnt(0)")
    if OPT['stamp']: P("s_mov_b32 s94, s78\ns_mov_b32 s80, s76")
    P(f"s_mov_b32 s12, s4\ns_mov_b32 s13, s5\ns_mov_b32 s14, {2048*576*2}\ns_mov_b32 s15, 0x20000")
    P.add(xdma(0, 0)); P.add(xdma(0, 1)); P.add(xdma(0, 2))
    if OPT['pfcode']:
        P("s_getpc_b64 s[48:49]\ns_and_b32 s58, s39, 3\ns_lshl_b32 s58, s58, 15\nv_add_u32 v46, s58, v46")
        P("v_min_u32 v46, CODE_PF_MAX, v46\nglobal_load_dword v47, v46, s[48:49]", tag='dummy')
    P(f"s_mov_b32 s24, s46\ns_mov_b32 s25, s47\ns_mov_b32 s26, {WS_BYTES}\ns_mov_b32 s27, 0x20000")
    P(f"s_mov_b32 s28, s44\ns_mov_b32 s29, s45\ns_mov_b32 s30, 256\ns_mov_b32 s31, 0x20000")
    P("s_cmp_lt_u32 s39, 8\ns_cbranch_scc1 L_attn")

def xdma(st, S):
    Q = Prog()
    Q(f"s_add_u32 m0, s54, {st*49152+S*4096}\ns_add_u32 s56, s55, 1152")
    Q(f"buffer_load_dwordx4 v44, {sX}, s55 offen lds\nbuffer_load_dwordx4 v45, {sX}, s55 offen offset:1024 lds", tag=f"x{st}")
    Q(f"s_add_u32 m0, m0, 2048\ns_add_u32 s55, s55, 128")
    Q(f"buffer_load_dwordx4 v44, {sX}, s56 offen lds\nbuffer_load_dwordx4 v45, {sX}, s56 offen offset:1024 lds", tag=f"x{st}")
    Q(f"s_cmp_eq_u32 s55, 1152\ns_cselect_b32 s55, 0, s55")
    return Q.l

def weave(main, extra, every):
    out = []; k = 0; cnt = 0
    for idx, ins in enumerate(main):
        out.append(ins); cnt += 1
        nxt = main[idx + 1] if idx + 1 < len(main) else None
        safe = nxt is None or ('scc' not in nxt.rd and 'm0' not in nxt.rd)
        if k < len(extra) and cnt >= every and safe:
            out += extra[k]; k += 1; cnt = 0
    for g in extra[k:]: out += g
    return out

def xstats(P, st, frags, sums, sqs, post_reads=None, woven=None):
    P(f"WAITV x{st}")
    for n, (d, a, o, k) in enumerate(frags): P(f"ds_read_b128 {vr(d,4)}, v{a} offset:{o}", tag=f"xr{st}_{n}")
    body = []
    for n, (d, a, o, k) in enumerate(frags):
        if n in (0, 2, 4): body += mk(f"WAITL xr{st}_{n+1}")
        if n == 6:
            body += mk(f"WAITL xr{st}_11")
            if post_reads: body += post_reads
            P.add(body); body = []
        for j in range(4):
            body += mk(f"v_dot2c_f32_bf16 v{sums[k][j%2]}, s57, v{d+j}\nv_dot2c_f32_bf16 v{sqs[k][j%2]}, v{d+j}, v{d+j}")
    if woven: body = weave(body, woven, max(1, len(body) // (len(woven) + 1)))
    P.add(body)

RING = 24576; NSLOT = 5; HX = RING * NSLOT
vA1 = [[16, 17, 18], [19, 20, 21]]; vA2 = [[22, 23, 24], [25, 26, 27]]
vD1 = [28, 29, 30, 31]; vD2 = [32, 33, 34, 35]
vHW, vHR, vST = 36, 37, 38
ACC1 = 48; XR = 112
AF = 192

def flat(groups): return [x for g in groups for x in g]

def ffn():
    P = Prog()
    P(f"s_mov_b32 s50, {sROT}" if OPT['rot'] else "s_mov_b32 s50, 0")
    P(f"s_add_u32 s51, s50, 1\ns_cmp_ge_u32 s51, 3\ns_cselect_b32 s51, 0, s51\ns_add_u32 s52, s51, 1\ns_cmp_ge_u32 s52, 3\ns_cselect_b32 s52, 0, s52")
    P(f"s_mul_i32 {sSL}, s38, 3\ns_add_u32 {sSL}, {sSL}, {sROT}")
    P(f"s_mov_b32 s16, s40\ns_mov_b32 s17, s41\ns_mov_b32 s18, {576*4608*2}\ns_mov_b32 s19, 0x20000")
    P(f"s_mov_b32 s20, s42\ns_mov_b32 s21, s43\ns_mov_b32 s22, {576*4608*2}\ns_mov_b32 s23, 0x20000")
    P(f"s_mul_i32 s59, {sSL}, 768")
    P(f"s_mul_i32 s63, {sSL}, {384*1152}\ns_mul_i32 s64, {sWV}, 6144")
    def pf_w(which):
        Q = Prog()
        if which == 1:
            Q(f"s_mul_i32 s66, {sMEM}, {72*9216}\ns_add_u32 s66, s66, s59\ns_lshl_b32 s67, {sWV}, 6\ns_mov_b32 s68, {-(-(1<<32)//6)}")
            for i in range(2):
                Q(f"v_add_u32 v7, s67, v0")
                if i: Q(f"v_add_u32 v7, 256, v7\nv_min_u32 v7, 431, v7")
                Q(f"v_mul_hi_u32 v8, v7, s68\nv_lshlrev_b32 v7, 7, v7\nv_mul_u32_u24 v8, {9216-768}, v8\nv_add_u32 v7, v7, v8")
                Q(f"buffer_load_dword v47, v7, {sWA}, s66 offen", tag='dummy', cost=8)
        else:
            Q(f"s_mul_i32 s66, {sMEM}, {432*128}\ns_add_u32 s66, s66, s63\ns_lshl_b32 s67, {sWV}, 6")
            for i in range(2):
                Q(f"v_add_u32 v46, s67, v0")
                if i: Q(f"v_add_u32 v46, 256, v46\nv_min_u32 v46, 431, v46")
                Q(f"v_lshlrev_b32 v46, 7, v46")
                Q(f"buffer_load_dword v47, v46, {sWB}, s66 offen", tag='dummy', cost=8)
        return Q.l
    if OPT['pfw'] & 1: P.add(pf_w(1))
    P(f"v_lshrrev_b32 v2, 3, v0\nv_and_b32 v3, 7, v0")
    P(f"s_mul_i32 s58, {sWV}, 48\nv_add_u32 v4, s58, v2")
    P(f"v_bfe_u32 v5, v0, 4, 1\nv_lshlrev_b32 v5, 2, v5\nv_xor_b32 v5, v5, v3\nv_lshlrev_b32 v5, 4, v5")
    P(f"v_mul_u32_u24 v6, 9216, v4\nv_add_u32 v{vD1[0]}, v6, v5")
    for i in range(1, 4): P(f"v_add_u32 v{vD1[i]}, {i*(8*9216-1024)}, v{vD1[0]}")
    P(f"v_bfe_u32 v5, v0, 4, 2\nv_lshlrev_b32 v5, 1, v5\nv_xor_b32 v5, v5, v3\nv_lshlrev_b32 v5, 4, v5")
    P(f"v_mul_u32_u24 v6, 1152, v4\nv_add_u32 v{vD2[0]}, v6, v5")
    for i in range(1, 4): P(f"v_add_u32 v{vD2[i]}, {i*(8*1152-1024)}, v{vD2[0]}")
    for st in range(3): P(f"s_mul_i32 s{60+st}, s{50+st}, {192*9216}\ns_add_u32 s{60+st}, s{60+st}, s59")

    g2 = [(0,0),(1,0),(2,0),(0,1),(1,1),(2,1)] + [(p,k) for p in range(3,9) for k in range(2)]
    def dma(s):
        slot = (s % NSLOT) * RING
        if s < 18:
            p, st = s // 3, s % 3
            srd, vD, base, add, big = sWA, vD1, f"s{60+st}", p * 128, 32 * 9216
        else:
            p, k = g2[s - 18]
            srd, vD, base, add, big = sWB, vD2, "s63", p * 128 + k * 192 * 1152, 32 * 1152
        t = f"d{s}"
        G = mk(f"s_add_u32 m0, s64, {slot}\ns_add_u32 s65, {base}, {add}")
        for i in range(4): G += mk(f"buffer_load_dwordx4 v{vD[i]}, {srd}, s65 offen offset:{1024*i} lds", tag=t, cost=8)
        G += mk(f"s_add_u32 m0, s64, {slot+4096}\ns_add_u32 s65, {base}, {add+big}")
        for i in range(2): G += mk(f"buffer_load_dwordx4 v{vD[i]}, {srd}, s65 offen offset:{1024*i} lds", tag=t, cost=8)
        return G
    P(f"v_lshrrev_b32 v2, 5, v0\nv_lshlrev_b32 v2, 12, v2\nv_bfe_u32 v3, v0, 2, 2\nv_lshlrev_b32 v3, 7, v3\nv_add_u32 v2, v2, v3")
    P(f"v_bfe_u32 v3, v0, 4, 1\nv_lshlrev_b32 v3, 5, v3\nv_add_u32 v2, v2, v3\nv_and_b32 v3, 3, v0\nv_lshlrev_b32 v3, 3, v3\nv_add_u32 v2, v2, v3")
    P(f"v_bfe_u32 v3, v0, 3, 1\nv_lshlrev_b32 v3, 6, v3\nv_add_u32 v{vA1[0][0]}, v2, v3\nv_xor_b32 v{vA1[1][0]}, 64, v{vA1[0][0]}")
    P(f"v_lshrrev_b32 v2, 2, v0\nv_lshlrev_b32 v2, 7, v2\nv_and_b32 v3, 3, v0\nv_lshlrev_b32 v3, 3, v3\nv_add_u32 v2, v2, v3")
    P(f"s_and_b32 s69, {sWV}, 1\ns_lshl_b32 s69, s69, 1\nv_bfe_u32 v3, v0, 3, 2\nv_xor_b32 v3, s69, v3\nv_lshlrev_b32 v3, 5, v3")
    P(f"v_add_u32 v{vA2[0][0]}, v2, v3\nv_xor_b32 v{vA2[1][0]}, 32, v{vA2[0][0]}")
    for vA in (vA1, vA2):
        for u in range(2):
            for b in (1, 2): P(f"v_add_u32 v{vA[u][b]}, {b*2*RING}, v{vA[u][0]}")
    P(f"v_bfe_u32 v2, v0, 4, 1\nv_lshlrev_b32 v2, 10, v2\nv_lshrrev_b32 v3, 5, v0\nv_lshlrev_b32 v3, 8, v3\nv_add_u32 v2, v2, v3")
    P(f"v_and_b32 v3, 15, v0\nv_lshlrev_b32 v3, 4, v3\nv_add_u32 v2, v2, v3\ns_lshl_b32 s69, {sWV}, 11\ns_add_u32 s69, s69, {HX}\nv_add_u32 v{vHW}, s69, v2")
    P(f"v_lshlrev_b32 v{vST}, 4, v0\ns_lshr_b32 s69, {sWV}, 1\ns_lshl_b32 s69, s69, 12\ns_add_u32 s69, s69, {HX}\nv_add_u32 v{vHR}, s69, v{vST}")
    P(f"s_lshl_b32 s70, {sM}, 4\ns_add_u32 s70, s70, {sSL}\ns_lshl_b32 s70, s70, 1\ns_lshr_b32 s69, {sWV}, 1\ns_add_u32 s70, s70, s69")
    P(f"s_mul_i32 s70, s70, 18\ns_and_b32 s69, {sWV}, 1\ns_add_u32 s70, s70, s69\ns_lshl_b32 s70, s70, 12")
    P(f"v_and_b32 v2, 31, v0\nv_lshlrev_b32 v2, 7, v2\nv_add_u32 v2, s54, v2\nv_bfe_u32 v3, v0, 1, 3\nv_lshrrev_b32 v4, 5, v0\nv_lshlrev_b32 v4, 2, v4\nv_xor_b32 v3, v3, v4\nv_lshlrev_b32 v3, 4, v3")
    P(f"v_add_u32 v80, v2, v3\nv_xor_b32 v81, 16, v80\nv_xor_b32 v82, 32, v80\nv_xor_b32 v83, 48, v80")
    for j in range(4): P(f"v_add_u32 v{84+j}, 98304, v{80+j}")
    SEL = 40
    P("v_and_b32 v2, 1, v0\nv_lshlrev_b32 v2, 4, v2\nv_mov_b32 v3, 0x3f80\nv_lshlrev_b32 v2, v2, v3")
    P("v_bfe_u32 v3, v0, 2, 1\nv_lshlrev_b32 v3, 1, v3\nv_lshrrev_b32 v4, 4, v0\nv_cmp_eq_u32 vcc, v3, v4\nv_cndmask_b32 v2, 0, v2, vcc")
    P("v_bfe_u32 v3, v0, 3, 1\nv_lshlrev_b32 v3, 1, v3\nv_bfe_u32 v4, v0, 1, 1\nv_add_u32 v3, v3, v4")
    for j in range(4): P(f"v_cmp_eq_u32 vcc, {j}, v3\nv_cndmask_b32 v{SEL+j}, 0, v2, vcc")
    P("v_mov_b32 v8, 0\nv_mov_b32 v9, 0\nv_mov_b32 v12, 0\nv_mov_b32 v13, 0\ns_mov_b32 s57, 0x3f803f80")
    P.l = weave(P.l, [xdma(1, S) for S in range(3)], len(P.l) // 4)
    stamp(P, 1)
    def dgroups(lst):
        G = []; cur = []
        for x in lst:
            cur.append(x)
            if x.kind == 'vmem': G.append(cur); cur = []
        if cur: G[-1] += cur
        return G
    for st in range(3):
        fr = [(XR + 4 * (12 * st + f), (80 if st < 2 else 84) + f % 4, (st % 2) * 49152 + (f // 4) * 4096, 0) for f in range(12)]
        if st == 0:
            P.add(xdma(2, 0))
            xstats(P, st, fr, [[8, 9]], [[12, 13]], mk("s_barrier") , [xdma(2, 1), xdma(2, 2)])
            P.add(dma(0))
        elif st == 1:
            xstats(P, st, fr, [[8, 9]], [[12, 13]], mk("s_barrier"), dgroups(dma(1)))
            P.add(dma(2))
            stamp(P, 2)
        else: xstats(P, st, fr, [[8, 9]], [[12, 13]])
    P("v_add_f32 v8, v8, v9\nv_add_f32 v12, v12, v13\nv_mov_b32 v9, v8\nv_mov_b32 v13, v12\nv_permlane32_swap_b32 v8, v9\nv_permlane32_swap_b32 v12, v13\nv_add_f32 v8, v8, v9\nv_add_f32 v12, v12, v13")
    def um(F): return mk(f"v_mfma_f32_32x32x16_bf16 {vr(ACC1+32+16*(F%2),16)}, {vr(SEL,4)}, {vr(XR+4*F,4)}, 0")
    def nv(F):
        d = ACC1 + 32 + 16 * (F % 2); x = XR + 4 * F
        o = []
        for j in range(8): o += mk(f"v_fma_f32 v{d+j}, v{d+j}, v2, v3")
        for j in range(4): o += mk(f"v_cvt_pk_bf16_f32 v{x+j}, v{d+2*j}, v{d+2*j+1}")
        return o
    P.add(um(0)); P.add(um(1))
    ln_stats(P, 'v8', 'v12', 'v4', 'v2', 'v3')
    P(f"v_mul_f32 v2, {hx(LOG2E)}, v2\nv_mul_f32 v3, v4, v2")

    uses = []
    for p in range(6):
        for st in range(3):
            s = 3 * p + st; slot = s % NSLOT
            for S in range(3):
                for ss in range(4):
                    F = st * 12 + S * 4 + ss
                    for u in range(2):
                        n = len(uses); af = AF + 4 * (n % 16)
                        off = (slot % 2) * RING + (64 * S + 8 * ss) * 128
                        va = vA1[u][slot // 2]
                        rd = mk(f"ds_read_b64_tr_b16 {ar(af,2)}, v{va} offset:{off}\nds_read_b64_tr_b16 {ar(af+2,2)}, v{va} offset:{off+512}", tag=f"r{n}")
                        acc = vr(ACC1 + 32 * (p % 2) + 16 * u, 16)
                        mf = mk(f"v_mfma_f32_32x32x16_bf16 {acc}, {ar(af,4)}, {vr(XR+4*F,4)}, {'0' if F == 0 else acc}")
                        uses.append((s, rd, mf))
    N1 = len(uses)
    ACC2 = XR; STG = XR + 128
    for si, (p, k) in enumerate(g2):
        s = 18 + si; slot = s % NSLOT
        for kk in range(6):
            ks = 6 * k + kk
            for u in range(2):
                n = len(uses); af = AF + 4 * (n % 16)
                off = (slot % 2) * RING + 32 * kk * 128
                va = vA2[u][slot // 2]
                rd = mk(f"ds_read_b64_tr_b16 {ar(af,2)}, v{va} offset:{off}\nds_read_b64_tr_b16 {ar(af+2,2)}, v{va} offset:{off+2048}", tag=f"r{n}")
                mf = []
                for j in range(4):
                    acc = vr(ACC2 + 32 * (p % 4) + 8 * j + 4 * u, 4)
                    mf += mk(f"v_mfma_f32_16x16x32_bf16 {acc}, {ar(af,4)}, {ar(16*ks+4*j,4)}, {'0' if ks == 0 else acc}")
                uses.append((s, rd, mf))
    NU = len(uses)
    PD1, PD2 = OPT['pd1'], OPT['pd2']
    rd_at = {}
    for n in range(NU):
        if n < N1: g = n - PD1
        else:
            g = n - PD2
            if g < N1: g = N1 - 1 - 2 * (N1 - 1 - g)
        rd_at.setdefault(g, []).append(n)
    bar_at = {}
    for g in sorted(rd_at):
        for n in rd_at[g]:
            s = uses[n][0]
            if s not in bar_at: bar_at[s] = g
    extra_lw = {}
    def hw_tag(ks): return f"hw{ks}"
    def rstage(ks):
        p = ks // 2
        if p <= 3: return 3 * (p + 2) + 1
        if p == 4: return 19
        return 21
    for ks in range(1, 12, 2): extra_lw[rstage(ks)] = hw_tag(ks)
    def barrier(s):
        if s in extra_lw: return mk(f"WAITVL d{s}, {extra_lw[s]}\ns_barrier")
        return mk(f"WAITV d{s}\ns_barrier")
    P.add(barrier(0))
    for g in sorted(rd_at):
        if g < 0:
            for n in rd_at[g]: P.add(uses[n][1])
    P.add(nv(0))
    P("WAITL r3")
    stamp(P, 3)
    SC = Sched()
    gi = {}
    gu = {}
    for n in range(NU):
        mf = uses[n][2]
        if n < 72 and n % 2 == 0 and n // 2 + 2 < 36:
            gu[n // 2 + 2] = SC.gap(um(n // 2 + 2), 32)
        bar = []
        for s, g in bar_at.items():
            if g == n: bar = barrier(s)
        rds = []
        for nn in rd_at.get(n, []): rds += uses[nn][1]
        if n < N1:
            g = SC.gap(mf, 32); gi[n] = g
            SC.mand[g] += bar + rds
            if n % 4 == 3 and n + 1 < N1: SC.tail[g] += mk(f"WAITL r{n+4}")
            if n == N1 - 1: SC.tail[g] += mk(f"WAITL r{n+2}")
        else:
            gs = [SC.gap([m], 16) for m in mf]; gi[n] = gs[0]
            if bar:
                SC.mand[gs[0]] += bar
                for i, t in enumerate(rds): SC.mand[gs[1 + i]].append(t)
            else:
                for i, t in enumerate(rds): SC.mand[gs[2 * i]].append(t)
            if (n - N1) % 2 == 1 and n + 1 < NU: SC.tail[gs[3]] += mk(f"WAITL r{n+2}")
    gi[NU] = len(SC.head)

    def silu(ks):
        p, u = ks // 2, ks % 2
        a = ACC1 + 32 * (p % 2) + 16 * u
        F = []
        T = [1, 2, 3, 4, 5, 6, 7, 39]
        stg = 8
        def E(q, j): return mk(f"v_exp_f32_e64 v{T[4*(q%2)+j]}, -v{a+4*q+j}")
        def Ad(q, j): return mk(f"v_add_f32 v{T[4*(q%2)+j]}, 1.0, v{T[4*(q%2)+j]}")
        def R(q, j): return mk(f"v_rcp_f32 v{T[4*(q%2)+j]}, v{T[4*(q%2)+j]}")
        def M(q, j): return mk(f"v_mul_f32 v{T[4*(q%2)+j]}, v{a+4*q+j}, v{T[4*(q%2)+j]}")
        def C(q):
            d = stg + 4 * (q % 2) + 2 * (q // 2); t = T[4*(q%2):4*(q%2)+4]
            o = mk(f"v_cvt_pk_bf16_f32 v{d}, v{t[0]}, v{t[1]}\nv_cvt_pk_bf16_f32 v{d+1}, v{t[2]}, v{t[3]}")
            if q >= 2: o += mk(f"ds_write_b128 v{vHW}, {vr(stg+4*(q%2),4)} offset:{(ks%4)*8192+512*(q%2)}", tag=hw_tag(ks))
            return o
        for q in range(4):
            F += E(q, 0) + E(q, 1)
            F += E(q, 2) + Ad(q, 0) + Ad(q, 1)
            F += E(q, 3) + Ad(q, 2)
            F += R(q, 0) + Ad(q, 3)
            F += R(q, 1) + M(q, 0)
            F += R(q, 2) + M(q, 1)
            F += R(q, 3) + M(q, 2)
            c = C(q)
            F += [c[0]] + M(q, 3) + c[1:]
        return F
    def hread(ks):
        return flat([mk(f"ds_read_b128 {ar(16*ks+4*j,4)}, v{vHR} offset:{(ks%4)*8192+1024*j}", tag=f"hr{ks}") for j in range(4)])
    def epi(p):
        a = ACC2 + 32 * (p % 4)
        F = mk(f"s_add_u32 s71, s70, {p*2*4096}")
        for j in range(4):
            for u in range(2):
                for h in range(2): F += mk(f"v_cvt_pk_bf16_f32 v{STG+4*j+2*u+h}, v{a+8*j+4*u+2*h}, v{a+8*j+4*u+2*h+1}")
            F += mk(f"buffer_store_dwordx4 {vr(STG+4*j,4)}, v{vST}, {sWS}, s71 offen offset:{1024*j}{STMOD}", tag='st', cost=8)
        return F

    for s in range(0, 33):
        g0 = gi[bar_at[s]] + 1 if bar_at[s] >= 0 else 0
        g1 = gi[bar_at[s + 1]]
        SC.place(dma(s + 3), g0, g1, 'spread', f'dma{s+3}')
    for ks in range(12):
        g0 = gi[bar_at[rstage(ks)]] + 1 + (ks % 2) * 8
        SC.place(hread(ks), g0, g0 + 8, 'spread', f'hr{ks}')
    if OPT['pfw'] & 2: SC.place(pf_w(2), gi[80], gi[140], 'spread', 'pf2')
    for F in range(1, 36):
        g0 = gu.get(F + 1, gi[2 * (F - 1)]); g1 = gi[2 * (F - 1) + 1] + 1
        SC.place(nv(F), g0, g1, 'asap', f'nv{F}')
    for p in range(5):
        b = 72 * (p + 1)
        SC.place(silu(2 * p) + silu(2 * p + 1), gi[b + 2], gi[b + 72], 'asap', f'silu{p}')
    SC.place(silu(10) + silu(11), gi[N1] + 6, gi[bar_at[21]] - 2, 'asap', 'silu5')
    last_stage = {}
    for si, (p, k) in enumerate(g2):
        if k == 1: last_stage[p] = si
    for p in range(8):
        g0 = gi[N1 + 12 * (last_stage[p] + 1)] + 5
        SC.place(epi(p), g0, g0 + 42, 'spread', f'epi{p}')
    print("; overflow cycles: pass0 %d, pass1-5 %d, gemm2 %d" % (SC.overflow(0, gi[72]), SC.overflow(gi[72], gi[N1]), SC.overflow(gi[N1])), file=sys.stderr)
    marks = [gi[72], gi[144], gi[N1], gi[N1 + 72]]
    prev = 0
    for i, g in enumerate(marks):
        P.add(SC.emit(prev, g)); stamp(P, 4 + i); prev = g
    P.add(SC.emit(prev))
    P.add(epi(8))
    k0 = [i for i, x in enumerate(P.l) if x.text.startswith('WAITL r3')][0]
    def keep(x):
        if OPT['nosilu'] and x.base in ('v_exp_f32', 'v_rcp_f32', 'v_add_f32', 'v_mul_f32'): return False
        if OPT['nodma'] and x.kind == 'vmem' and 'lds' in x.mods: return False
        if OPT['nodma'] and x.op == 'WAITV': return False
        if OPT['nobar'] and x.kind == 'bar': return False
        if OPT['nost'] and x.tag == 'st': return False
        return True
    def fix(x):
        if OPT['nodma'] and x.op == 'WAITVL': return I('WAITL ' + x.ops[1])
        return x
    P.l = P.l[:k0] + [fix(x) for x in P.l[k0:] if keep(x)]
    stamp(P, 8)
    stamp_flush(P, 9)
    P("s_endpgm")
    return P.l

def attn():
    P = Prog()
    P("s_endpgm")
    return P.l

def final():
    P = Prog()
    P("s_endpgm")
    return P.l

def finish(lst):
    lst = resolve_waits(lst)
    lst, nfix = fix_hazards(lst, OPT['verbose'])
    errs = check_scoreboard(lst)
    for e in errs[:20]: print("; SCOREBOARD ERR", e, file=sys.stderr)
    assert not errs
    lst, mis, sz = align_pass(lst)
    print(f"; hazard nops inserted: {nfix}, instrs: {len(lst)}, misaligned {mis}, bytes {sz}", file=sys.stderr)
    return lst

def main():
    try:
        import gen_attn
    except ImportError:
        gen_attn = None
    P0 = Prog(); common_prologue(P0)
    f = finish(P0.l + ffn())[:]
    a = finish(P0.l + (gen_attn.attn(globals()) if gen_attn and OPT['attn'] else attn()))
    a = a[[i for i, x in enumerate(a) if x.text.startswith('s_cbranch_scc1 L_attn')][0] + 1:]
    k2 = finish(gen_attn.final(globals()) if gen_attn else final())
    out = []
    out.append(f"; @launch kernel=main_kernel grid=(256,1,1) block=(256,1,1) lds={LDS_BYTES}")
    out.append(f"; @launch kernel=final_kernel grid=(576,1,1) block=(256,1,1) lds=0")
    out.append('.amdgcn_target "amdgcn-amd-amdhsa--gfx950"\n.text')
    out.append(".globl main_kernel\n.p2align 8\n.type main_kernel,@function\nmain_kernel:\nL_main_start:")
    out += [x.text for x in f]
    out.append(".p2align 6\nL_attn:")
    out += [x.text for x in a]
    out.append("L_exit:\ns_endpgm\nL_main_end:")
    out.append(".globl final_kernel\n.p2align 8\n.type final_kernel,@function\nfinal_kernel:")
    out += [x.text for x in k2]
    out.append('.section .rodata,"a"')
    for nm, nv, ao in (("main_kernel", 512, 256), ("final_kernel", 96, 96)):
        out.append(f".p2align 6\n.amdhsa_kernel {nm}\n  .amdhsa_next_free_vgpr {nv}\n  .amdhsa_next_free_sgpr 102\n  .amdhsa_accum_offset {ao}\n  .amdhsa_group_segment_fixed_size 0\n  .amdhsa_kernarg_size 72\n  .amdhsa_user_sgpr_count 2\n  .amdhsa_user_sgpr_kernarg_segment_ptr 1\n  .amdhsa_system_sgpr_workgroup_id_x 1\n  .amdhsa_float_denorm_mode_32 3\n.end_amdhsa_kernel")
    txt = "\n".join(out) + "\n"
    import subprocess, re as _re, tempfile, os
    d = tempfile.mkdtemp()
    open(d + "/a.s", "w").write(txt.replace("CODE_PF_MAX", "0x12345"))
    r = subprocess.run(["clang", "-x", "assembler", "-target", "amdgcn-amd-amdhsa", "-mcpu=gfx950", "-c", d + "/a.s", "-o", d + "/a.o"], capture_output=True, text=True)
    assert r.returncode == 0, r.stderr
    sy = subprocess.run(["llvm-readelf", "-s", d + "/a.o"], capture_output=True, text=True).stdout
    def sym(n): return int([l for l in sy.splitlines() if l.strip().endswith(" " + n)][0].split()[1], 16)
    size = sym("L_main_end") - sym("L_main_start")
    print(f"; main code bytes {size}, attn at {sym('L_attn')}", file=sys.stderr)
    print(txt.replace("CODE_PF_MAX", str(size - 256)))

if __name__ == "__main__":
    main()
```

```python
import sys
from asmlib import *

def attn(G):
    globals().update({k: v for k, v in G.items() if not k.startswith('__') and k not in ('attn', 'final')})
    P = Prog()
    ARING = 18432; ANS = 6; EX = ARING * ANS
    ACC = 40; XR = 112; AF = 192
    KO, KP, VO, VP = 0, 36, 72, 108
    vDQ = [16, 17, 18, 19, 20]; vDW = [21, 22, 23, 24, 25]
    vRX = [26, 27]; vRR = [28, 29]
    vEW, vEP, vST, vFL = 30, 31, 32, 33
    STG = [1, 1]
    sG = sSL
    TQ = 58
    TW = 67
    TS = 40
    sLB = 's3'
    sHS = 's[8:11]'
    sFS = 's[4:7]'
    P(f"s_mov_b32 {sG}, s38")
    P(f"s_mov_b32 s16, s6\ns_mov_b32 s17, s7\ns_mov_b32 s18, {576*1728*2}\ns_mov_b32 s19, 0x20000")
    P(f"s_mov_b32 s20, s8\ns_mov_b32 s21, s9\ns_mov_b32 s22, {576*576*2}\ns_mov_b32 s23, 0x20000")
    P(f"s_cmp_eq_u32 {sWV}, 3\ns_cselect_b32 s10, {WS_BYTES}, 0\ns_cselect_b32 s6, 256, 0")
    P(f"s_mov_b32 s8, s46\ns_mov_b32 s9, s47\ns_mov_b32 s11, 0x20000")
    P(f"s_mov_b32 s4, s44\ns_mov_b32 s5, s45\ns_mov_b32 s7, 0x20000")
    P(f"s_mul_i32 s49, {sWV}, 9\ns_lshr_b32 s49, s49, 1\ns_lshl_b32 {sLB}, s49, 10")
    P(f"s_mul_i32 s51, {sG}, 288\ns_mul_i32 s52, {sG}, {144*1152}")
    P(f"s_lshl_b32 s53, {sM}, 4\ns_add_u32 s53, s53, {sG}\ns_add_u32 s53, s53, 12\ns_lshl_b32 s53, s53, 1\ns_lshr_b32 s96, {sWV}, 1\ns_add_u32 s53, s53, s96")
    P(f"s_mul_i32 s53, s53, {18*4096}\ns_and_b32 s96, {sWV}, 1\ns_lshl_b32 s96, s96, 11\ns_add_u32 s53, s53, s96")
    for st in range(9):
        P(f"s_mul_i32 s{TQ+st}, s50, {64*3456}\ns_add_u32 s{TQ+st}, s{TQ+st}, s51")
        P(f"s_lshl_b32 s{TW+st}, s50, 7\ns_add_u32 s{TW+st}, s{TW+st}, s52")
        P(f"s_lshl_b32 s{TS+st}, s50, 13\ns_add_u32 s{TS+st}, s{TS+st}, s53")
        if st < 8: P(f"s_add_u32 s50, s50, 1\ns_cmp_eq_u32 s50, 9\ns_cselect_b32 s50, 0, s50")
    P(f"s_mov_b32 s96, {-(-(1<<32)//18)}\ns_lshl_b32 s97, s49, 6\ns_lshl_b32 s98, s49, 3")
    for n in range(5):
        imm = 1024 * n if n < 4 else 0
        P(f"v_add_u32 v2, s97, v0")
        if n: P(f"v_add_u32 v2, {64*n}, v2")
        P(f"v_mul_hi_u32 v3, v2, s96\nv_mul_u32_u24 v4, 18, v3\nv_sub_u32 v2, v2, v4\nv_lshlrev_b32 v2, 4, v2")
        P(f"v_and_b32 v4, 35, v3\nv_bfe_u32 v5, v3, 2, 2\nv_lshlrev_b32 v5, 3, v5\nv_add_u32 v4, v4, v5\nv_bfe_u32 v5, v3, 4, 1\nv_lshlrev_b32 v5, 2, v5\nv_add_u32 v4, v4, v5")
        P(f"v_mul_u32_u24 v4, 3456, v4\nv_add_u32 v{vDQ[n]}, v4, v2")
        if imm: P(f"v_subrev_u32 v{vDQ[n]}, {imm}, v{vDQ[n]}")
        P(f"v_lshrrev_b32 v2, 3, v0\nv_add_u32 v2, s98, v2")
        if n: P(f"v_add_u32 v2, {8*n}, v2")
        P(f"v_lshrrev_b32 v3, 4, v2\nv_mul_u32_u24 v4, 18, v3\nv_and_b32 v5, 1, v3\nv_lshlrev_b32 v5, 1, v5\nv_add_u32 v4, v4, v5\nv_and_b32 v5, 15, v2\nv_add_u32 v4, v4, v5")
        P(f"v_bfe_u32 v5, v2, 2, 2\nv_mul_u32_u24 v5, 36, v5\nv_and_b32 v6, 3, v2\nv_add_u32 v5, v5, v6\nv_add_u32 v5, 16, v5")
        P(f"v_cmp_eq_u32 vcc, 8, v3\nv_bfe_u32 v6, v2, 1, 2\nv_lshlrev_b32 v6, 1, v6\nv_cndmask_b32 v4, v4, v5, vcc\nv_and_b32 v5, 7, v0\nv_xor_b32 v5, v5, v6\nv_lshlrev_b32 v5, 4, v5")
        P(f"v_mul_u32_u24 v4, 1152, v4\nv_add_u32 v{vDW[n]}, v4, v5")
        if imm: P(f"v_subrev_u32 v{vDW[n]}, {imm}, v{vDW[n]}")
    PCOL = [1152, 2304, 0]
    def dma(s):
        slot = (s % ANS) * ARING
        if s < 27: srd, vD, so = sWA, vDQ, f"s_add_u32 s99, s{TQ + s % 9}, {PCOL[s // 9]}"
        else: srd, vD, so = sWB, vDW, f"s_mov_b32 s99, s{TW + s - 27}"
        t = f"d{s}"
        L = mk(f"s_add_u32 m0, {sLB}, {slot}\n{so}")
        for n in range(4): L += mk(f"buffer_load_dwordx4 v{vD[n]}, {srd}, s99 offen offset:{1024*n} lds", tag=t, cost=8)
        L += mk(f"s_add_u32 m0, {sLB}, {slot+4096}")
        L += mk(f"buffer_load_dwordx4 v{vD[4]}, {srd}, s99 offen lds", tag=t, cost=8)
        return L
    P(f"v_lshrrev_b32 v2, 2, v0\nv_mul_u32_u24 v2, 288, v2\nv_and_b32 v3, 3, v0\nv_lshlrev_b32 v4, 3, v3\nv_add_u32 v{vRX[0]}, v2, v4")
    P(f"v_mul_u32_u24 v4, 72, v3\nv_add_u32 v4, 32, v4\nv_add_u32 v{vRR[0]}, v2, v4\nv_add_u32 v{vRX[1]}, {3*ARING}, v{vRX[0]}\nv_add_u32 v{vRR[1]}, {3*ARING}, v{vRR[0]}")
    P(f"v_lshlrev_b32 v{vST}, 4, v0\ns_mul_i32 s96, {sWV}, 9216\ns_add_u32 s96, s96, {EX}\nv_add_u32 v{vEW}, s96, v{vST}")
    P(f"s_max_u32 s97, {sWV}, 1\ns_sub_u32 s97, s97, 1\ns_mul_i32 s97, s97, 9216\ns_add_u32 s97, s97, {EX}\nv_add_u32 v{vEP}, s97, v{vST}")
    P(f"v_and_b32 v2, 15, v0\nv_lshlrev_b32 v2, 7, v2\nv_add_u32 v2, s54, v2\nv_bfe_u32 v3, v0, 1, 3\nv_lshrrev_b32 v4, 4, v0\nv_xor_b32 v3, v3, v4\nv_lshlrev_b32 v3, 4, v3")
    P(f"v_add_u32 v34, v2, v3\nv_xor_b32 v35, 64, v34\nv_add_u32 v36, 98304, v34\nv_add_u32 v37, 98304, v35")
    SEL = 48
    sel_consts(P, SEL, 'v2', 'v3', 'v4')
    for r in range(8, 16): P(f"v_mov_b32 v{r}, 0")
    P("s_mov_b32 s57, 0x3f803f80")
    P.l = weave(P.l, [xdma(1, S) for S in range(3)], 30)
    stamp(P, 1)
    def dgroups(lst):
        Gs = []; cur = []
        for x in lst:
            cur.append(x)
            if x.kind == 'vmem': Gs.append(cur); cur = []
        if cur: Gs[-1] += cur
        return Gs
    for st in range(3):
        fr = []
        for f in range(12):
            ks = 6 * st + f // 2; Pp = f % 2
            fr.append((XR + 8 * ks + 4 * Pp, (34 if st < 2 else 36) + (ks & 1), (st % 2) * 49152 + ((ks % 6) // 2) * 4096 + Pp * 2048, Pp))
        sums = [[8, 9], [10, 11]]; sqs = [[12, 13], [14, 15]]
        if st == 0:
            P.add(xdma(2, 0))
            xstats(P, st, fr, sums, sqs, mk("s_barrier"), [xdma(2, 1), xdma(2, 2)])
            P.add(dma(0))
        elif st == 1:
            xstats(P, st, fr, sums, sqs, mk("s_barrier"), dgroups(dma(1)))
            P.add(dma(2)); P.add(dma(3))
            stamp(P, 2)
        else: xstats(P, st, fr, sums, sqs)
    for a in (8, 10, 12, 14): P(f"v_add_f32 v{a}, v{a}, v{a+1}")
    for sw in ('32', '16'):
        for a in (8, 10, 12, 14): P(f"v_mov_b32 v{a+1}, v{a}")
        for a in (8, 10, 12, 14): P(f"v_permlane{sw}_swap_b32 v{a}, v{a+1}")
        for a in (8, 10, 12, 14): P(f"v_add_f32 v{a}, v{a}, v{a+1}")
    A1 = Prog(); ln_stats(A1, 'v8', 'v12', 'v40', 'v2', None)
    A2 = Prog(); ln_stats(A2, 'v10', 'v14', 'v54', 'v3', None)
    for a, b in zip(A1.l, A2.l): P.add([a, b])
    P("v_mov_b32 v41, v40\nv_mov_b32 v42, v40\nv_mov_b32 v43, v40\nv_mov_b32 v55, v54\nv_mov_b32 v56, v54\nv_mov_b32 v57, v54")
    CM = [40, 54]
    D1 = [60, 68, 76]; D2 = [84, 92, 100]
    def xr(F): return XR + 4 * F
    def U1(F): d = D1[F % 3]; return mk(f"v_mfma_f32_16x16x32_bf16 {vr(d,4)}, {vr(SEL+2,4)}, {vr(xr(F),4)}, {vr(CM[F%2],4)}\nv_mfma_f32_16x16x32_bf16 {vr(d+4,4)}, {vr(SEL,4)}, {vr(xr(F),4)}, {vr(CM[F%2],4)}")
    def C1(F): d = D1[F % 3]; return mk("\n".join(f"v_cvt_pk_bf16_f32 v{xr(F)+j}, v{d+2*j}, v{d+2*j+1}" for j in range(4)))
    def U2(F): d = D2[F % 3]; return mk(f"v_mfma_f32_16x16x32_bf16 {vr(d,4)}, {vr(SEL+2,4)}, {vr(xr(F),4)}, 0\nv_mfma_f32_16x16x32_bf16 {vr(d+4,4)}, {vr(SEL,4)}, {vr(xr(F),4)}, 0")
    def M2(F): d = D2[F % 3]; return mk("\n".join(f"v_mul_f32 v{d+j}, v{2+F%2}, v{d+j}" for j in range(8)))
    def C2(F): d = D2[F % 3]; return mk("\n".join(f"v_cvt_pk_bf16_f32 v{xr(F)+j}, v{d+2*j}, v{d+2*j+1}" for j in range(4)))
    for i in range(-2, 37):
        u1 = U1(i + 2) if 0 <= i + 2 < 36 else []
        c1 = C1(i + 1) if 0 <= i + 1 < 36 else []
        u2 = U2(i) if 0 <= i < 36 else []
        m2 = M2(i - 1) + C2(i - 1) if 0 <= i - 1 < 36 else []
        P.add(u1[:1] + m2[0:4] + u1[1:] + m2[4:8] + u2[:1] + c1 + u2[1:] + m2[8:])
    uses = []
    for ps in range(3):
        for ks in range(18):
            s = 9 * ps + ks // 2; slot = s % ANS
            for j in range(9):
                n = len(uses); af = AF + 4 * (n % 16)
                off = (slot % 3) * ARING + (ks & 1) * 9216 + (36 * j + 4 * (j & 1) if j < 8 else 0)
                va = (vRX if j < 8 else vRR)[slot // 3]
                rd = mk(f"ds_read_b64_tr_b16 {ar(af,2)}, v{va} offset:{off}\nds_read_b64_tr_b16 {ar(af+2,2)}, v{va} offset:{off+4608}", tag=f"r{n}")
                mf = []
                for Pp in range(2):
                    acc = vr(ACC + 8 * j + 4 * Pp, 4); x = vr(XR + 8 * ks + 4 * Pp, 4)
                    a, b = (ar(af, 4), x) if ps != 1 else (x, ar(af, 4))
                    mf += mk(f"v_mfma_f32_16x16x32_bf16 {acc}, {a}, {b}, {'0' if ks == 0 else acc}")
                uses.append((s, rd, mf))
    NQ = len(uses); PD = 5
    extra_lw = {10: 'ew0', 19: 'ew1'}
    def barrier(s):
        if s in extra_lw: return mk(f"WAITVL d{s}, {extra_lw[s]}\ns_barrier")
        return mk(f"WAITV d{s}\ns_barrier")
    P.add(barrier(0))
    for n in range(PD): P.add(uses[n][1])
    P("WAITL r2")
    stamp(P, 3)
    SC = Sched(); gi = {}; gbar = {0: -1}
    for n in range(NQ):
        mf = uses[n][2]
        g0 = SC.gap([mf[0]], 16); g1 = SC.gap([mf[1]], 16); gi[n] = g0
        if n + PD < NQ:
            if uses[n + PD][0] != uses[n + PD - 1][0]:
                SC.mand[g0] += barrier(uses[n + PD][0]); gbar[uses[n + PD][0]] = g0
                SC.mand[g1] += uses[n + PD][1]
            else: SC.mand[g0] += uses[n + PD][1]
        if n % 3 == 2 and n + 1 < NQ: SC.tail[g1] += mk(f"WAITL r{n+3}")
    gi[NQ] = len(SC.head); gbar[27] = len(SC.head)
    stg = [4, 8, 12]
    P2 = Prog()
    HOFF = 's100'
    for ps in range(2):
        for j in range(9):
            nlast = 162 * ps + 153 + j
            d = stg[j % 3]; a = ACC + 8 * j
            L = mk("\n".join(f"v_cvt_pk_bf16_f32 v{d+q}, v{a+2*q}, v{a+2*q+1}" for q in range(4)))
            g = gi[nlast + 5]
            SC.fill[g] += L[:1]; SC.fill[g + 1] += L[1:]
            L = mk(f"ds_write_b128 v{vEW}, {vr(d,4)} offset:{1024*j}", tag=f"ew{ps}", cost=8)
            if j % 4 == 0: L += mk(f"s_add_u32 s101, {HOFF}, {(9*ps+j)*1024}")
            L += mk(f"buffer_store_dwordx4 {vr(d,4)}, v{vST}, {sHS}, s101 offen offset:{1024*(j%4)} sc1", tag=f"hs{ps}", cost=8)
            SC.fill[g + 2] += L
        own, prev = (KO, KP) if ps == 0 else (VO, VP)
        L = []
        for j in range(9):
            L += mk(f"ds_read_b128 {ar(own+4*j,4)}, v{vEW} offset:{1024*j}\nds_read_b128 {ar(prev+4*j,4)}, v{vEP} offset:{1024*j}", tag=f"er{ps}")
        sb = 10 if ps == 0 else 19
        SC.place(L, gbar[sb] + 2, gbar[sb + 2], 'spread', f'rb{ps}')
    for s in range(27): SC.place(dma(s + 4), gbar[s] + 1, gbar[s + 1], 'spread', f'dma{s+4}')
    SC.place(mk("WAITV hs1") + mk(f"buffer_store_dword v38, v{vFL}, {sFS}, 0 offen sc1", tag='fl', cost=8), gbar[22] + 2, gbar[23], 'asap', 'flag')
    P(f"s_lshl_b32 s96, {sM}, 2\ns_add_u32 s96, s96, {sG}\ns_mul_i32 {HOFF}, s96, {18*1024}\ns_add_u32 {HOFF}, {HOFF}, {WS_HALO}")
    P(f"s_lshl_b32 s96, s96, 2\nv_lshlrev_b32 v{vFL}, 8, v0\nv_add_u32 v{vFL}, s96, v{vFL}\nv_mov_b32 v38, 1")
    print("; attn qkv overflow %d" % SC.overflow(), file=sys.stderr)
    P.add(SC.emit(0, gi[162])); stamp(P, 4)
    P.add(SC.emit(gi[162], gi[324])); stamp(P, 5)
    P.add(SC.emit(gi[324]))
    QX = XR
    for j in range(9):
        for q in range(4): P(f"v_cvt_pk_bf16_f32 v{QX+4*j+q}, v{ACC+8*j+2*q}, v{ACC+8*j+2*q+1}")
    stamp(P, 6)
    P(f"s_cmp_lg_u32 {sWV}, 0\ns_cbranch_scc1 L_nohalo")
    P(f"s_cmp_eq_u32 {sM}, 0\ns_cbranch_scc1 L_zerohalo", cond=True)
    P(f"s_sub_u32 s96, s96, 16\nv_mov_b32 v2, s96\ns_mov_b32 s98, 0", cond=True)
    P("L_poll:")
    P(f"buffer_load_dword v3, v2, {sDBG}, 0 offen sc1\ns_waitcnt vmcnt(0)\nv_readfirstlane_b32 s97, v3\ns_nop 3\ns_cmp_eq_u32 s97, 0\ns_cbranch_scc0 L_polled\ns_sleep 2\ns_add_u32 s98, s98, 1\ns_cmp_lt_u32 s98, 0x40000\ns_cbranch_scc1 L_poll", cond=True)
    P("L_polled:")
    P(f"s_sub_u32 s97, {HOFF}, {4*18*1024}", cond=True)
    for j in range(18):
        dst = (KP + 4 * j) if j < 9 else (VP + 4 * (j - 9))
        if j % 4 == 0 and j: P(f"s_add_u32 s97, s97, 4096", cond=True)
        P(f"buffer_load_dwordx4 {ar(dst,4)}, v{vST}, {sWS}, s97 offen offset:{1024*(j%4)} sc1", cond=True)
    P("s_waitcnt vmcnt(0)\ns_branch L_nohalo", cond=True)
    P("L_zerohalo:")
    for r in list(range(KP, KP + 36)) + list(range(VP, VP + 36)): P(f"v_accvgpr_write_b32 a{r}, 0", cond=True)
    P("L_nohalo:")
    P("s_nop 1")
    MO, MP, MV, NEG = 244, 246, 248, 250
    sOWN = [f"s[{58+2*r}:{59+2*r}]" for r in range(4)]
    sGRP = ["s[50:51]", "s[52:53]", "s[54:55]", "s[96:97]"]
    P(f"s_or_b32 s98, {sM}, {sWV}\ns_cmp_eq_u32 s98, 0\ns_cselect_b32 s98, 99, 9")
    P("v_and_b32 v2, 15, v0\nv_lshrrev_b32 v3, 4, v0")
    for g in range(4): P(f"v_cmp_eq_u32 {sGRP[g]}, {g}, v3")
    P("v_lshlrev_b32 v3, 2, v3\nv_sub_u32 v3, v3, v2")
    P(f"v_mov_b32 v8, 0xffff\nv_mov_b32 v9, 0xffff0000\nv_mov_b32 v{NEG}, 0xff7fff7f")
    for r in range(4):
        P(f"v_add_u32 v4, {r}, v3")
        P(f"v_cmp_ge_i32 {sOWN[r]}, 0, v4")
        P(f"v_cmp_le_i32 vcc, -7, v4\ns_and_b64 s[66:67], vcc, {sOWN[r]}" if False else f"v_cmp_le_i32 vcc, -7, v4")
        P(f"s_and_b64 vcc, vcc, {sOWN[r]}")
        P(f"v_cndmask_b32 v5, 0, v{8+r%2}, vcc")
        P(f"v_cmp_le_i32 vcc, s98, v4")
        P(f"v_cndmask_b32 v6, 0, v{8+r%2}, vcc")
        if r % 2 == 0: P(f"v_mov_b32 v{MO+r//2}, v5\nv_mov_b32 v{MP+r//2}, v6")
        else: P(f"v_or_b32 v{MO+r//2}, v{MO+r//2}, v5\nv_or_b32 v{MP+r//2}, v{MP+r//2}, v6\nv_or_b32 v{MV+r//2}, v{MO+r//2}, v{MP+r//2}")
    P(f"s_mov_b32 s98, {hx(18 ** -0.5)}\ns_mov_b32 s99, {hx(LOG2E)}\ns_mov_b32 s49, 0xffff0000")
    SB = 40; QRM = 104; W = 148; POP = 188; OP = 204
    for Pp in range(2): P(f"v_mov_b32 v{QRM+4*Pp+1}, 0\nv_mov_b32 v{QRM+4*Pp+2}, 0")
    def sbuf(e, hh, Pp): return SB + 32 * (e % 2) + 16 * hh + 8 * Pp
    def Sm(e):
        L = []
        for hh in range(2):
            for Pp in range(2): L += mk(f"v_cndmask_b32 v{QRM+4*Pp+3*hh}, 0, v{QX+32+2*Pp+hh}, {sGRP[e]}")
        for part in range(2):
            for hh in range(2):
                h = 2 * e + hh
                for Pp in range(2):
                    for k, KB in enumerate((KO, KP)):
                        d = vr(sbuf(e, hh, Pp) + 4 * k, 4)
                        if part == 0: L += mk(f"v_mfma_f32_16x16x16_bf16 {d}, {ar(KB+4*h+2*Pp,2)}, {vr(QX+4*h+2*Pp,2)}, 0")
                        else: L += mk(f"v_mfma_f32_16x16x16_bf16 {d}, {ar(KB+32+2*Pp,2)}, {vr(QRM+4*Pp+2*hh,2)}, {d}")
        return L
    def head(e, hh):
        L = []
        w = W + 20 * hh
        T = [[w + 10 * Pp + r for r in range(4)] for Pp in range(2)]
        K = [[w + 10 * Pp + 4, w + 10 * Pp + 5] for Pp in range(2)]
        M = [w + 6, w + 16]; tmp = w + 7
        def both(f):
            a, b = mk(f(0)), mk(f(1))
            for x, y in zip(a, b): L.append(x); L.append(y)
        both(lambda p: "\n".join(f"v_cndmask_b32 v{T[p][r]}, v{sbuf(e,hh,p)+4+r}, v{sbuf(e,hh,p)+r}, {sOWN[r]}" for r in range(4)))
        cvt = lambda p: f"v_cvt_pk_bf16_f32 v{K[p][0]}, v{T[p][0]}, v{T[p][1]}\nv_cvt_pk_bf16_f32 v{K[p][1]}, v{T[p][2]}, v{T[p][3]}"
        unp = lambda p: f"v_lshlrev_b32 v{T[p][0]}, 16, v{K[p][0]}\nv_and_b32 v{T[p][1]}, s49, v{K[p][0]}\nv_lshlrev_b32 v{T[p][2]}, 16, v{K[p][1]}\nv_and_b32 v{T[p][3]}, s49, v{K[p][1]}"
        both(cvt); both(unp)
        both(lambda p: "\n".join(f"v_mul_f32 v{T[p][r]}, s98, v{T[p][r]}" for r in range(4)))
        both(cvt)
        both(lambda p: f"v_bfi_b32 v{K[p][0]}, v{MV}, v{K[p][0]}, v{NEG}\nv_bfi_b32 v{K[p][1]}, v{MV+1}, v{K[p][1]}, v{NEG}")
        both(unp)
        both(lambda p: f"v_max3_f32 v{M[p]}, v{T[p][0]}, v{T[p][1]}, v{T[p][2]}\nv_max_f32 v{M[p]}, v{M[p]}, v{T[p][3]}")
        L += mk(f"v_permlane32_swap_b32 v{M[0]}, v{M[1]}\nv_max_f32 v{M[0]}, v{M[0]}, v{M[1]}\nv_mov_b32 v{M[1]}, v{M[0]}\nv_permlane16_swap_b32 v{M[0]}, v{M[1]}\nv_max_f32 v{M[0]}, v{M[0]}, v{M[1]}")
        L += mk(f"v_mul_f32 v{M[0]}, s99, v{M[0]}\nv_mov_b32 v{M[1]}, v{M[0]}\nv_permlane32_swap_b32 v{M[0]}, v{M[1]}")
        both(lambda p: "\n".join(f"v_fma_f32 v{T[p][r]}, v{T[p][r]}, s99, -v{M[p]}" for r in range(4)))
        both(lambda p: "\n".join(f"v_exp_f32 v{T[p][r]}, v{T[p][r]}" for r in range(4)))
        both(lambda p: f"v_add_f32 v{M[p]}, v{T[p][0]}, v{T[p][1]}\nv_add_f32 v{K[p][0]}, v{T[p][2]}, v{T[p][3]}\nv_add_f32 v{M[p]}, v{M[p]}, v{K[p][0]}")
        L += mk(f"v_permlane32_swap_b32 v{M[0]}, v{M[1]}\nv_add_f32 v{M[0]}, v{M[0]}, v{M[1]}\nv_mov_b32 v{M[1]}, v{M[0]}\nv_permlane16_swap_b32 v{M[0]}, v{M[1]}\nv_add_f32 v{M[0]}, v{M[0]}, v{M[1]}")
        L += mk(f"v_rcp_f32 v{M[0]}, v{M[0]}\nv_mov_b32 v{M[1]}, v{M[0]}\nv_permlane32_swap_b32 v{M[0]}, v{M[1]}")
        both(lambda p: "\n".join(f"v_mul_f32 v{T[p][r]}, v{M[p]}, v{T[p][r]}" for r in range(4)))
        both(cvt)
        po = lambda p: POP + 8 * hh + 4 * p
        both(lambda p: f"v_and_b32 v{po(p)}, v{MO}, v{K[p][0]}\nv_and_b32 v{po(p)+1}, v{MO+1}, v{K[p][1]}\nv_and_b32 v{po(p)+2}, v{MP}, v{K[p][0]}\nv_and_b32 v{po(p)+3}, v{MP+1}, v{K[p][1]}")
        return L
    def PVm(e):
        L = []
        for part in range(2):
            for hh in range(2):
                h = 2 * e + hh
                for Pp in range(2):
                    for k, tile in enumerate((h, 8)):
                        d = vr(sbuf(e, hh, Pp) + 4 * k, 4)
                        VB = VO if part == 0 else VP
                        L += mk(f"v_mfma_f32_16x16x16_bf16 {d}, {ar(VB+4*tile+2*Pp,2)}, {vr(POP+8*hh+4*Pp+2*part,2)}, {'0' if part == 0 else d}")
        return L
    def Oc(e):
        L = []
        for hh in range(2):
            for Pp in range(2):
                d = sbuf(e, hh, Pp); o = OP + 20 * Pp + 4 * e + 2 * hh
                L += mk(f"v_cvt_pk_bf16_f32 v{o}, v{d}, v{d+1}\nv_cvt_pk_bf16_f32 v{o+1}, v{d+2}, v{d+3}")
                L += mk(f"v_cvt_pk_bf16_f32 v{d+4}, v{d+4+2*hh}, v{d+5+2*hh}")
        for hh in range(2):
            for Pp in range(2):
                d = sbuf(e, hh, Pp); o = OP + 20 * Pp + 16 + hh
                L += mk(f"v_cndmask_b32 v{o}, v{o}, v{d+4}, {sGRP[e]}")
        return L
    for Pp in range(2):
        for q in range(16, 20): P(f"v_mov_b32 v{OP+20*Pp+q}, 0")
    P.add(Sm(0))
    for e in range(4):
        a, b = head(e, 0), head(e, 1)
        merged = []
        for x, y in zip(a, b): merged += [x, y]
        pre = []
        if e >= 1: pre += Oc(e - 1)
        if e + 1 < 4: pre += Sm(e + 1)
        if e == 0: P.add(pre + merged)
        else:
            P.add(merged[:16]); P.add(weave(merged[16:], [[x] for x in pre], 3))
        P.add(PVm(e))
    stamp(P, 7)
    vRW = [164 + i for i in range(8)]; WSTG = 172
    P(f"v_lshrrev_b32 v2, 2, v0\nv_lshlrev_b32 v2, 7, v2\nv_and_b32 v3, 3, v0\nv_lshlrev_b32 v3, 3, v3\nv_add_u32 v2, v2, v3\nv_bfe_u32 v3, v0, 3, 2\nv_lshlrev_b32 v3, 5, v3\nv_add_u32 v{vRW[0]}, v2, v3")
    for ct in range(1, 4): P(f"v_xor_b32 v{vRW[ct]}, {32*ct}, v{vRW[0]}")
    for ct in range(4): P(f"v_add_u32 v{vRW[4+ct]}, {3*ARING}, v{vRW[ct]}")
    P.add(Oc(3))
    WACC = 100
    uses = []
    for st in range(9):
        s = 27 + st; slot = s % ANS
        for ct in range(4):
            for e in range(5):
                n = len(uses); af = AF + 4 * (n % 16)
                off = (slot % 3) * ARING + 32 * e * 128
                va = vRW[4 * (slot // 3) + ct]
                mf = []
                if e < 4:
                    rd = mk(f"ds_read_b64_tr_b16 {ar(af,2)}, v{va} offset:{off}\nds_read_b64_tr_b16 {ar(af+2,2)}, v{va} offset:{off+2048}", tag=f"w{n}")
                else:
                    rd = mk(f"ds_read_b64_tr_b16 {ar(af,2)}, v{va} offset:{off}", tag=f"w{n}")
                for Pp in range(2):
                    acc = vr(40 + 32 * (st % 2) + 8 * ct + 4 * Pp, 4)
                    mf += mk(f"v_mfma_f32_16x16x32_bf16 {acc}, {ar(af,4)}, {vr(OP+20*Pp+4*e,4)}, {'0' if e == 0 else acc}")
                uses.append((s, rd, mf))
    NW = len(uses)
    P.add(barrier(27))
    for n in range(PD): P.add(uses[n][1])
    P("WAITL w2")
    SC = Sched(); gi = {}; gbar = {27: -1}
    for n in range(NW):
        mf = uses[n][2]
        g0 = SC.gap([mf[0]], 16); g1 = SC.gap([mf[1]], 16); gi[n] = g0
        if n + PD < NW:
            if uses[n + PD][0] != uses[n + PD - 1][0]:
                SC.mand[g0] += barrier(uses[n + PD][0]); gbar[uses[n + PD][0]] = g0
                SC.mand[g1] += uses[n + PD][1]
            else: SC.mand[g0] += uses[n + PD][1]
        if n % 3 == 2 and n + 1 < NW: SC.tail[g1] += mk(f"WAITL w{n+3}")
    gi[NW] = len(SC.head)
    for s in range(27, 32): SC.place(dma(s + 4), gbar[s] + 1, gbar[s + 1], 'spread', f'dma{s+4}')
    def epi(st):
        L = []
        for c in range(2):
            L += mk(f"s_add_u32 s101, s{TS+st}, {4096*c}")
            for Pp in range(2):
                d = WSTG + 8 * c + 4 * Pp
                for u in range(2):
                    a = 40 + 32 * (st % 2) + 8 * (2 * c + u) + 4 * Pp
                    L += mk(f"v_cvt_pk_bf16_f32 v{d+2*u}, v{a}, v{a+1}\nv_cvt_pk_bf16_f32 v{d+2*u+1}, v{a+2}, v{a+3}")
                L += mk(f"buffer_store_dwordx4 {vr(d,4)}, v{vST}, {sWS}, s101 offen offset:{1024*Pp}", tag='st', cost=8)
        return L
    for st in range(8): SC.place(epi(st), gi[20 * (st + 1)] + 4, gi[20 * (st + 2)] - 1, 'spread', f'epi{st}')
    print("; attn wo overflow %d" % SC.overflow(), file=sys.stderr)
    P.add(SC.emit())
    P.add(epi(8))
    stamp(P, 8)
    stamp_flush(P, 9)
    P("s_endpgm")
    return P.l

def final(G):
    globals().update({k: v for k, v in G.items() if not k.startswith('__') and k not in ('attn', 'final')})
    P = Prog()
    P("s_cmp_ge_u32 s2, 576\ns_cbranch_scc1 L_fexit")
    if OPT['stamp']: P("s_memrealtime s[40:41]\ns_load_dwordx2 s[44:45], s[0:1], 56")
    P("s_load_dwordx2 s[4:5], s[0:1], 0\ns_load_dwordx2 s[8:9], s[0:1], 48\ns_load_dwordx2 s[12:13], s[0:1], 64")
    P(f"s_mov_b32 s16, {-(-(1<<32)//36)}\ns_mul_hi_u32 s17, s2, s16\ns_mul_i32 s18, s17, 36\ns_sub_u32 s18, s2, s18")
    P(f"s_cmp_ge_u32 s18, 18\ns_cselect_b32 s19, 1, 0\ns_mul_i32 s20, s19, 18\ns_sub_u32 s20, s18, s20")
    P(f"s_mul_i32 s21, s17, {16*36*4096}\ns_lshl_b32 s22, s18, 12\ns_add_u32 s21, s21, s22")
    P("v_lshlrev_b32 v1, 4, v0")
    P("v_lshrrev_b32 v2, 7, v0\nv_lshlrev_b32 v2, 5, v2\nv_bfe_u32 v3, v0, 6, 1\nv_add_u32 v2, v2, v3\nv_and_b32 v3, 15, v0\nv_lshlrev_b32 v3, 1, v3\nv_add_u32 v2, v2, v3")
    P("s_lshl_b32 s22, s17, 7\ns_lshl_b32 s23, s19, 6\ns_add_u32 s22, s22, s23\nv_add_u32 v2, s22, v2\nv_mul_u32_u24 v2, 1152, v2")
    P("v_bfe_u32 v3, v0, 4, 2\nv_lshlrev_b32 v3, 3, v3\nv_add_u32 v2, v2, v3\ns_lshl_b32 s23, s20, 6")
    P("s_waitcnt lgkmcnt(0)")
    P(f"s_mov_b32 s6, {2048*576*2}\ns_mov_b32 s7, 0x20000\ns_mov_b32 s10, {2048*576*2}\ns_mov_b32 s11, 0x20000\ns_mov_b32 s14, {WS_BYTES}\ns_mov_b32 s15, 0x20000")
    for j in range(16):
        P(f"buffer_load_dwordx4 {vr(32+4*j,4)}, v1, s[12:15], s21 offen", tag=f"p{j}")
        if j < 15: P(f"s_add_u32 s21, s21, {36*4096}")
    P("buffer_load_dwordx2 v[4:5], v2, s[4:7], s23 offen\nbuffer_load_dwordx2 v[6:7], v2, s[4:7], s23 offen offset:32", tag="x")
    P("s_mov_b32 s24, 0x3f80\ns_mov_b32 s25, 0x3f800000\ns_mov_b32 s26, 0xffff0000")
    for i in range(8, 24): P(f"v_mov_b32 v{i}, 0")
    for j in range(16):
        P(f"WAITV p{j}")
        b = 8 if j < 12 else 16
        for d in range(4):
            P(f"v_dot2c_f32_bf16 v{b+2*d}, s24, v{32+4*j+d}\nv_dot2c_f32_bf16 v{b+2*d+1}, s25, v{32+4*j+d}")
    def rnd(b):
        for d in range(4): P(f"v_cvt_pk_bf16_f32 v{24+d}, v{b+2*d}, v{b+2*d+1}")
        for d in range(4): P(f"v_lshlrev_b32 v{b+2*d}, 16, v{24+d}\nv_and_b32 v{b+2*d+1}, s26, v{24+d}")
    for i in range(8): P(f"v_mul_f32 v{8+i}, {hx(LN2)}, v{8+i}")
    rnd(8)
    for i in range(8): P(f"v_mul_f32 v{32+i}, {hx(-LOG2E)}, v{8+i}")
    for i in range(8): P(f"v_exp_f32 v{32+i}, v{32+i}")
    for i in range(8): P(f"v_add_f32 v{32+i}, 1.0, v{32+i}")
    for i in range(8): P(f"v_rcp_f32 v{32+i}, v{32+i}")
    for i in range(8): P(f"v_mul_f32 v{8+i}, v{8+i}, v{32+i}")
    rnd(8); rnd(16)
    for i in range(8): P(f"v_mul_f32 v{8+i}, v{8+i}, v{16+i}")
    rnd(8)
    P("WAITV x")
    for d in range(4): P(f"v_lshlrev_b32 v{16+2*d}, 16, v{4+d}\nv_and_b32 v{17+2*d}, s26, v{4+d}")
    for i in range(8): P(f"v_add_f32 v{8+i}, v{8+i}, v{16+i}")
    for d in range(4): P(f"v_cvt_pk_bf16_f32 v{24+d}, v{8+2*d}, v{9+2*d}")
    P("buffer_store_dwordx2 v[24:25], v2, s[8:11], s23 offen\nbuffer_store_dwordx2 v[26:27], v2, s[8:11], s23 offen offset:32")
    if OPT['stamp']:
        P("s_waitcnt vmcnt(0)\ns_memrealtime s[42:43]\ns_mov_b32 s46, 256\ns_mov_b32 s47, 0x20000\ns_waitcnt lgkmcnt(0)")
        P("v_lshlrev_b32 v1, 8, v0\nv_mov_b32 v3, s42\nbuffer_atomic_umax v3, v1, s[44:47], 0 offen offset:12")
        P("s_cmp_lg_u32 s2, 0\ns_cbranch_scc1 L_fexit")
        P(f"s_mov_b32 s48, {WS_STAMP}\nbuffer_load_dwordx2 v[4:5], v1, s[12:15], s48 offen offset:56\nv_mov_b32 v6, 0\nv_mov_b32 v7, s40\ns_waitcnt vmcnt(0)\nv_not_b32 v4, v4")
        P("buffer_atomic_umax v4, v6, s[44:47], 0 offen\nbuffer_atomic_umax v5, v6, s[44:47], 0 offen offset:4\nbuffer_store_dword v7, v1, s[44:47], 0 offen offset:8")
        P(f"v_lshlrev_b32 v1, 2, v0\ns_mov_b32 s48, {WS_STAMP + OPT['dbgwg']*256}\nbuffer_load_dword v4, v1, s[12:15], s48 offen\nv_add_u32 v1, 16, v1\ns_mov_b32 s46, 64\ns_waitcnt vmcnt(0)\nbuffer_store_dword v4, v1, s[44:47], 0 offen")
    P("L_fexit:\ns_endpgm")
    return P.l
```

```python
import sys
from asmlib import *

def attn(G):
    globals().update({k: v for k, v in G.items() if not k.startswith('__') and k not in ('attn', 'final')})
    P = Prog()
    ARING = 18432; ANS = 6; EX = ARING * ANS
    ACC = 40; XR = 112; AF = 192
    KO, KP, VO, VP = 0, 36, 72, 108
    vDQ = [16, 17, 18, 19, 20]; vDW = [21, 22, 23, 24, 25]
    vRX = [26, 27]; vRR = [28, 29]
    vEW, vEP, vST, vFL = 30, 31, 32, 33
    STG = [1, 1]
    sG = sSL
    TQ = 58
    TW = 67
    TS = 40
    sLB = 's3'
    sHS = 's[8:11]'
    sFS = 's[4:7]'
    P(f"s_mov_b32 {sG}, s38")
    P(f"s_mov_b32 s16, s6\ns_mov_b32 s17, s7\ns_mov_b32 s18, {576*1728*2}\ns_mov_b32 s19, 0x20000")
    P(f"s_mov_b32 s20, s8\ns_mov_b32 s21, s9\ns_mov_b32 s22, {576*576*2}\ns_mov_b32 s23, 0x20000")
    P(f"s_cmp_eq_u32 {sWV}, 3\ns_cselect_b32 s10, {WS_BYTES}, 0\ns_cselect_b32 s6, 256, 0")
    P(f"s_mov_b32 s8, s46\ns_mov_b32 s9, s47\ns_mov_b32 s11, 0x20000")
    P(f"s_mov_b32 s4, s44\ns_mov_b32 s5, s45\ns_mov_b32 s7, 0x20000")
    P(f"s_mul_i32 s49, {sWV}, 9\ns_lshr_b32 s49, s49, 1\ns_lshl_b32 {sLB}, s49, 10")
    P(f"s_mul_i32 s51, {sG}, 288\ns_mul_i32 s52, {sG}, {144*1152}")
    P(f"s_lshl_b32 s53, {sM}, 4\ns_add_u32 s53, s53, {sG}\ns_add_u32 s53, s53, 12\ns_lshl_b32 s53, s53, 1\ns_lshr_b32 s96, {sWV}, 1\ns_add_u32 s53, s53, s96")
    P(f"s_mul_i32 s53, s53, {18*4096}\ns_and_b32 s96, {sWV}, 1\ns_lshl_b32 s96, s96, 11\ns_add_u32 s53, s53, s96")
    for st in range(9):
        P(f"s_mul_i32 s{TQ+st}, s50, {64*3456}\ns_add_u32 s{TQ+st}, s{TQ+st}, s51")
        P(f"s_lshl_b32 s{TW+st}, s50, 7\ns_add_u32 s{TW+st}, s{TW+st}, s52")
        P(f"s_lshl_b32 s{TS+st}, s50, 13\ns_add_u32 s{TS+st}, s{TS+st}, s53")
        if st < 8: P(f"s_add_u32 s50, s50, 1\ns_cmp_eq_u32 s50, 9\ns_cselect_b32 s50, 0, s50")
    P(f"s_mov_b32 s96, {-(-(1<<32)//18)}\ns_lshl_b32 s97, s49, 6\ns_lshl_b32 s98, s49, 3")
    for n in range(5):
        imm = 1024 * n if n < 4 else 0
        P(f"v_add_u32 v2, s97, v0")
        if n: P(f"v_add_u32 v2, {64*n}, v2")
        P(f"v_mul_hi_u32 v3, v2, s96\nv_mul_u32_u24 v4, 18, v3\nv_sub_u32 v2, v2, v4\nv_lshlrev_b32 v2, 4, v2")
        P(f"v_and_b32 v4, 35, v3\nv_bfe_u32 v5, v3, 2, 2\nv_lshlrev_b32 v5, 3, v5\nv_add_u32 v4, v4, v5\nv_bfe_u32 v5, v3, 4, 1\nv_lshlrev_b32 v5, 2, v5\nv_add_u32 v4, v4, v5")
        P(f"v_mul_u32_u24 v4, 3456, v4\nv_add_u32 v{vDQ[n]}, v4, v2")
        if imm: P(f"v_subrev_u32 v{vDQ[n]}, {imm}, v{vDQ[n]}")
        P(f"v_lshrrev_b32 v2, 3, v0\nv_add_u32 v2, s98, v2")
        if n: P(f"v_add_u32 v2, {8*n}, v2")
        P(f"v_lshrrev_b32 v3, 4, v2\nv_mul_u32_u24 v4, 18, v3\nv_and_b32 v5, 1, v3\nv_lshlrev_b32 v5, 1, v5\nv_add_u32 v4, v4, v5\nv_and_b32 v5, 15, v2\nv_add_u32 v4, v4, v5")
        P(f"v_bfe_u32 v5, v2, 2, 2\nv_mul_u32_u24 v5, 36, v5\nv_and_b32 v6, 3, v2\nv_add_u32 v5, v5, v6\nv_add_u32 v5, 16, v5")
        P(f"v_cmp_eq_u32 vcc, 8, v3\nv_bfe_u32 v6, v2, 1, 2\nv_lshlrev_b32 v6, 1, v6\nv_cndmask_b32 v4, v4, v5, vcc\nv_and_b32 v5, 7, v0\nv_xor_b32 v5, v5, v6\nv_lshlrev_b32 v5, 4, v5")
        P(f"v_mul_u32_u24 v4, 1152, v4\nv_add_u32 v{vDW[n]}, v4, v5")
        if imm: P(f"v_subrev_u32 v{vDW[n]}, {imm}, v{vDW[n]}")
    PCOL = [1152, 2304, 0]
    def dma(s):
        slot = (s % ANS) * ARING
        if s < 27: srd, vD, so = sWA, vDQ, f"s_add_u32 s99, s{TQ + s % 9}, {PCOL[s // 9]}"
        else: srd, vD, so = sWB, vDW, f"s_mov_b32 s99, s{TW + s - 27}"
        t = f"d{s}"
        L = mk(f"s_add_u32 m0, {sLB}, {slot}\n{so}")
        for n in range(4): L += mk(f"buffer_load_dwordx4 v{vD[n]}, {srd}, s99 offen offset:{1024*n} lds", tag=t, cost=8)
        L += mk(f"s_add_u32 m0, {sLB}, {slot+4096}")
        L += mk(f"buffer_load_dwordx4 v{vD[4]}, {srd}, s99 offen lds", tag=t, cost=8)
        return L
    P(f"v_lshrrev_b32 v2, 2, v0\nv_mul_u32_u24 v2, 288, v2\nv_and_b32 v3, 3, v0\nv_lshlrev_b32 v4, 3, v3\nv_add_u32 v{vRX[0]}, v2, v4")
    P(f"v_mul_u32_u24 v4, 72, v3\nv_add_u32 v4, 32, v4\nv_add_u32 v{vRR[0]}, v2, v4\nv_add_u32 v{vRX[1]}, {3*ARING}, v{vRX[0]}\nv_add_u32 v{vRR[1]}, {3*ARING}, v{vRR[0]}")
    P(f"v_lshlrev_b32 v{vST}, 4, v0\ns_mul_i32 s96, {sWV}, 9216\ns_add_u32 s96, s96, {EX}\nv_add_u32 v{vEW}, s96, v{vST}")
    P(f"s_max_u32 s97, {sWV}, 1\ns_sub_u32 s97, s97, 1\ns_mul_i32 s97, s97, 9216\ns_add_u32 s97, s97, {EX}\nv_add_u32 v{vEP}, s97, v{vST}")
    P(f"v_and_b32 v2, 15, v0\nv_lshlrev_b32 v2, 7, v2\nv_add_u32 v2, s54, v2\nv_bfe_u32 v3, v0, 1, 3\nv_lshrrev_b32 v4, 4, v0\nv_xor_b32 v3, v3, v4\nv_lshlrev_b32 v3, 4, v3")
    P(f"v_add_u32 v34, v2, v3\nv_xor_b32 v35, 64, v34\nv_add_u32 v36, 98304, v34\nv_add_u32 v37, 98304, v35")
    SEL = 48
    sel_consts(P, SEL, 'v2', 'v3', 'v4')
    for r in range(8, 16): P(f"v_mov_b32 v{r}, 0")
    P("s_mov_b32 s57, 0x3f803f80")
    P.l = weave(P.l, [xdma(1, S) for S in range(3)], 30)
    stamp(P, 1)
    def dgroups(lst):
        Gs = []; cur = []
        for x in lst:
            cur.append(x)
            if x.kind == 'vmem': Gs.append(cur); cur = []
        if cur: Gs[-1] += cur
        return Gs
    for st in range(3):
        fr = []
        for f in range(12):
            ks = 6 * st + f // 2; Pp = f % 2
            fr.append((XR + 8 * ks + 4 * Pp, (34 if st < 2 else 36) + (ks & 1), (st % 2) * 49152 + ((ks % 6) // 2) * 4096 + Pp * 2048, Pp))
        sums = [[8, 9], [10, 11]]; sqs = [[12, 13], [14, 15]]
        if st == 0:
            P.add(xdma(2, 0))
            xstats(P, st, fr, sums, sqs, mk("s_barrier"), [xdma(2, 1), xdma(2, 2)])
            P.add(dma(0))
        elif st == 1:
            xstats(P, st, fr, sums, sqs, mk("s_barrier"), dgroups(dma(1)))
            P.add(dma(2)); P.add(dma(3))
            stamp(P, 2)
        else: xstats(P, st, fr, sums, sqs)
    for a in (8, 10, 12, 14): P(f"v_add_f32 v{a}, v{a}, v{a+1}")
    for sw in ('32', '16'):
        for a in (8, 10, 12, 14): P(f"v_mov_b32 v{a+1}, v{a}")
        for a in (8, 10, 12, 14): P(f"v_permlane{sw}_swap_b32 v{a}, v{a+1}")
        for a in (8, 10, 12, 14): P(f"v_add_f32 v{a}, v{a}, v{a+1}")
    A1 = Prog(); ln_stats(A1, 'v8', 'v12', 'v40', 'v2', None)
    A2 = Prog(); ln_stats(A2, 'v10', 'v14', 'v54', 'v3', None)
    for a, b in zip(A1.l, A2.l): P.add([a, b])
    P("v_mov_b32 v41, v40\nv_mov_b32 v42, v40\nv_mov_b32 v43, v40\nv_mov_b32 v55, v54\nv_mov_b32 v56, v54\nv_mov_b32 v57, v54")
    CM = [40, 54]
    D1 = [60, 68, 76]; D2 = [84, 92, 100]
    def xr(F): return XR + 4 * F
    def U1(F): d = D1[F % 3]; return mk(f"v_mfma_f32_16x16x32_bf16 {vr(d,4)}, {vr(SEL+2,4)}, {vr(xr(F),4)}, {vr(CM[F%2],4)}\nv_mfma_f32_16x16x32_bf16 {vr(d+4,4)}, {vr(SEL,4)}, {vr(xr(F),4)}, {vr(CM[F%2],4)}")
    def C1(F): d = D1[F % 3]; return mk("\n".join(f"v_cvt_pk_bf16_f32 v{xr(F)+j}, v{d+2*j}, v{d+2*j+1}" for j in range(4)))
    def U2(F): d = D2[F % 3]; return mk(f"v_mfma_f32_16x16x32_bf16 {vr(d,4)}, {vr(SEL+2,4)}, {vr(xr(F),4)}, 0\nv_mfma_f32_16x16x32_bf16 {vr(d+4,4)}, {vr(SEL,4)}, {vr(xr(F),4)}, 0")
    def M2(F): d = D2[F % 3]; return mk("\n".join(f"v_mul_f32 v{d+j}, v{2+F%2}, v{d+j}" for j in range(8)))
    def C2(F): d = D2[F % 3]; return mk("\n".join(f"v_cvt_pk_bf16_f32 v{xr(F)+j}, v{d+2*j}, v{d+2*j+1}" for j in range(4)))
    for i in range(-2, 37):
        u1 = U1(i + 2) if 0 <= i + 2 < 36 else []
        c1 = C1(i + 1) if 0 <= i + 1 < 36 else []
        u2 = U2(i) if 0 <= i < 36 else []
        m2 = M2(i - 1) + C2(i - 1) if 0 <= i - 1 < 36 else []
        P.add(u1[:1] + m2[0:4] + u1[1:] + m2[4:8] + u2[:1] + c1 + u2[1:] + m2[8:])
    uses = []
    for ps in range(3):
        for ks in range(18):
            s = 9 * ps + ks // 2; slot = s % ANS
            for j in range(9):
                n = len(uses); af = AF + 4 * (n % 16)
                off = (slot % 3) * ARING + (ks & 1) * 9216 + (36 * j + 4 * (j & 1) if j < 8 else 0)
                va = (vRX if j < 8 else vRR)[slot // 3]
                rd = mk(f"ds_read_b64_tr_b16 {ar(af,2)}, v{va} offset:{off}\nds_read_b64_tr_b16 {ar(af+2,2)}, v{va} offset:{off+4608}", tag=f"r{n}")
                mf = []
                for Pp in range(2):
                    acc = vr(ACC + 8 * j + 4 * Pp, 4); x = vr(XR + 8 * ks + 4 * Pp, 4)
                    a, b = (ar(af, 4), x) if ps != 1 else (x, ar(af, 4))
                    mf += mk(f"v_mfma_f32_16x16x32_bf16 {acc}, {a}, {b}, {'0' if ks == 0 else acc}")
                uses.append((s, rd, mf))
    NQ = len(uses); PD = 5
    extra_lw = {10: 'ew0', 19: 'ew1'}
    def barrier(s):
        if s in extra_lw: return mk(f"WAITVL d{s}, {extra_lw[s]}\ns_barrier")
        return mk(f"WAITV d{s}\ns_barrier")
    P.add(barrier(0))
    for n in range(PD): P.add(uses[n][1])
    P("WAITL r2")
    stamp(P, 3)
    SC = Sched(); gi = {}; gbar = {0: -1}
    for n in range(NQ):
        mf = uses[n][2]
        g0 = SC.gap([mf[0]], 16); g1 = SC.gap([mf[1]], 16); gi[n] = g0
        if n + PD < NQ:
            if uses[n + PD][0] != uses[n + PD - 1][0]:
                SC.mand[g0] += barrier(uses[n + PD][0]); gbar[uses[n + PD][0]] = g0
                SC.mand[g1] += uses[n + PD][1]
            else: SC.mand[g0] += uses[n + PD][1]
        if n % 3 == 2 and n + 1 < NQ: SC.tail[g1] += mk(f"WAITL r{n+3}")
    gi[NQ] = len(SC.head); gbar[27] = len(SC.head)
    stg = [4, 8, 12]
    P2 = Prog()
    HOFF = 's100'
    for ps in range(2):
        for j in range(9):
            nlast = 162 * ps + 153 + j
            d = stg[j % 3]; a = ACC + 8 * j
            L = mk("\n".join(f"v_cvt_pk_bf16_f32 v{d+q}, v{a+2*q}, v{a+2*q+1}" for q in range(4)))
            g = gi[nlast + 5]
            SC.fill[g] += L[:1]; SC.fill[g + 1] += L[1:]
            L = mk(f"ds_write_b128 v{vEW}, {vr(d,4)} offset:{1024*j}", tag=f"ew{ps}", cost=8)
            if j % 4 == 0: L += mk(f"s_add_u32 s101, {HOFF}, {(9*ps+j)*1024}")
            L += mk(f"buffer_store_dwordx4 {vr(d,4)}, v{vST}, {sHS}, s101 offen offset:{1024*(j%4)} sc1", tag=f"hs{ps}", cost=8)
            SC.fill[g + 2] += L
        own, prev = (KO, KP) if ps == 0 else (VO, VP)
        L = []
        for j in range(9):
            L += mk(f"ds_read_b128 {ar(own+4*j,4)}, v{vEW} offset:{1024*j}\nds_read_b128 {ar(prev+4*j,4)}, v{vEP} offset:{1024*j}", tag=f"er{ps}")
        sb = 10 if ps == 0 else 19
        SC.place(L, gbar[sb] + 2, gbar[sb + 2], 'spread', f'rb{ps}')
    for s in range(27): SC.place(dma(s + 4), gbar[s] + 1, gbar[s + 1], 'spread', f'dma{s+4}')
    SC.place(mk("WAITV hs1") + mk(f"buffer_store_dword v38, v{vFL}, {sFS}, 0 offen sc1", tag='fl', cost=8), gbar[22] + 2, gbar[23], 'asap', 'flag')
    P(f"s_lshl_b32 s96, {sM}, 2\ns_add_u32 s96, s96, {sG}\ns_mul_i32 {HOFF}, s96, {18*1024}\ns_add_u32 {HOFF}, {HOFF}, {WS_HALO}")
    P(f"s_lshl_b32 s96, s96, 2\nv_lshlrev_b32 v{vFL}, 8, v0\nv_add_u32 v{vFL}, s96, v{vFL}\nv_mov_b32 v38, 1")
    print("; attn qkv overflow %d" % SC.overflow(), file=sys.stderr)
    P.add(SC.emit(0, gi[162])); stamp(P, 4)
    P.add(SC.emit(gi[162], gi[324])); stamp(P, 5)
    P.add(SC.emit(gi[324]))
    QX = XR
    for j in range(9):
        for q in range(4): P(f"v_cvt_pk_bf16_f32 v{QX+4*j+q}, v{ACC+8*j+2*q}, v{ACC+8*j+2*q+1}")
    stamp(P, 6)
    P(f"s_cmp_lg_u32 {sWV}, 0\ns_cbranch_scc1 L_nohalo")
    P(f"s_cmp_eq_u32 {sM}, 0\ns_cbranch_scc1 L_zerohalo", cond=True)
    P(f"s_sub_u32 s96, s96, 16\nv_mov_b32 v2, s96\ns_mov_b32 s98, 0", cond=True)
    P("L_poll:")
    P(f"buffer_load_dword v3, v2, {sDBG}, 0 offen sc1\ns_waitcnt vmcnt(0)\nv_readfirstlane_b32 s97, v3\ns_nop 3\ns_cmp_eq_u32 s97, 0\ns_cbranch_scc0 L_polled\ns_sleep 2\ns_add_u32 s98, s98, 1\ns_cmp_lt_u32 s98, 0x40000\ns_cbranch_scc1 L_poll", cond=True)
    P("L_polled:")
    P(f"s_sub_u32 s97, {HOFF}, {4*18*1024}", cond=True)
    for j in range(18):
        dst = (KP + 4 * j) if j < 9 else (VP + 4 * (j - 9))
        if j % 4 == 0 and j: P(f"s_add_u32 s97, s97, 4096", cond=True)
        P(f"buffer_load_dwordx4 {ar(dst,4)}, v{vST}, {sWS}, s97 offen offset:{1024*(j%4)} sc1", cond=True)
    P("s_waitcnt vmcnt(0)\ns_branch L_nohalo", cond=True)
    P("L_zerohalo:")
    for r in list(range(KP, KP + 36)) + list(range(VP, VP + 36)): P(f"v_accvgpr_write_b32 a{r}, 0", cond=True)
    P("L_nohalo:")
    P("s_nop 1")
    MO, MP, MV, NEG = 244, 246, 248, 250
    sOWN = [f"s[{58+2*r}:{59+2*r}]" for r in range(4)]
    sGRP = ["s[50:51]", "s[52:53]", "s[54:55]", "s[96:97]"]
    P(f"s_or_b32 s98, {sM}, {sWV}\ns_cmp_eq_u32 s98, 0\ns_cselect_b32 s98, 99, 9")
    P("v_and_b32 v2, 15, v0\nv_lshrrev_b32 v3, 4, v0")
    for g in range(4): P(f"v_cmp_eq_u32 {sGRP[g]}, {g}, v3")
    P("v_lshlrev_b32 v3, 2, v3\nv_sub_u32 v3, v3, v2")
    P(f"v_mov_b32 v8, 0xffff\nv_mov_b32 v9, 0xffff0000\nv_mov_b32 v{NEG}, 0xff7fff7f")
    for r in range(4):
        P(f"v_add_u32 v4, {r}, v3")
        P(f"v_cmp_ge_i32 {sOWN[r]}, 0, v4")
        P(f"v_cmp_le_i32 vcc, -7, v4\ns_and_b64 s[66:67], vcc, {sOWN[r]}" if False else f"v_cmp_le_i32 vcc, -7, v4")
        P(f"s_and_b64 vcc, vcc, {sOWN[r]}")
        P(f"v_cndmask_b32 v5, 0, v{8+r%2}, vcc")
        P(f"v_cmp_le_i32 vcc, s98, v4")
        P(f"v_cndmask_b32 v6, 0, v{8+r%2}, vcc")
        if r % 2 == 0: P(f"v_mov_b32 v{MO+r//2}, v5\nv_mov_b32 v{MP+r//2}, v6")
        else: P(f"v_or_b32 v{MO+r//2}, v{MO+r//2}, v5\nv_or_b32 v{MP+r//2}, v{MP+r//2}, v6\nv_or_b32 v{MV+r//2}, v{MO+r//2}, v{MP+r//2}")
    P(f"s_mov_b32 s98, {hx(18 ** -0.5)}\ns_mov_b32 s99, {hx(LOG2E)}\ns_mov_b32 s49, 0xffff0000")
    SB = 40; QRM = 104; W = 148; POP = 188; OP = 204
    for Pp in range(2): P(f"v_mov_b32 v{QRM+4*Pp+1}, 0\nv_mov_b32 v{QRM+4*Pp+2}, 0")
    def sbuf(e, hh, Pp): return SB + 32 * (e % 2) + 16 * hh + 8 * Pp
    def Sm(e):
        L = []
        for hh in range(2):
            for Pp in range(2): L += mk(f"v_cndmask_b32 v{QRM+4*Pp+3*hh}, 0, v{QX+32+2*Pp+hh}, {sGRP[e]}")
        for part in range(2):
            for hh in range(2):
                h = 2 * e + hh
                for Pp in range(2):
                    for k, KB in enumerate((KO, KP)):
                        d = vr(sbuf(e, hh, Pp) + 4 * k, 4)
                        if part == 0: L += mk(f"v_mfma_f32_16x16x16_bf16 {d}, {ar(KB+4*h+2*Pp,2)}, {vr(QX+4*h+2*Pp,2)}, 0")
                        else: L += mk(f"v_mfma_f32_16x16x16_bf16 {d}, {ar(KB+32+2*Pp,2)}, {vr(QRM+4*Pp+2*hh,2)}, {d}")
        return L
    def head(e, hh):
        L = []
        w = W + 20 * hh
        T = [[w + 10 * Pp + r for r in range(4)] for Pp in range(2)]
        K = [[w + 10 * Pp + 4, w + 10 * Pp + 5] for Pp in range(2)]
        M = [w + 6, w + 16]; tmp = w + 7
        def both(f):
            a, b = mk(f(0)), mk(f(1))
            for x, y in zip(a, b): L.append(x); L.append(y)
        both(lambda p: "\n".join(f"v_cndmask_b32 v{T[p][r]}, v{sbuf(e,hh,p)+4+r}, v{sbuf(e,hh,p)+r}, {sOWN[r]}" for r in range(4)))
        cvt = lambda p: f"v_cvt_pk_bf16_f32 v{K[p][0]}, v{T[p][0]}, v{T[p][1]}\nv_cvt_pk_bf16_f32 v{K[p][1]}, v{T[p][2]}, v{T[p][3]}"
        unp = lambda p: f"v_lshlrev_b32 v{T[p][0]}, 16, v{K[p][0]}\nv_and_b32 v{T[p][1]}, s49, v{K[p][0]}\nv_lshlrev_b32 v{T[p][2]}, 16, v{K[p][1]}\nv_and_b32 v{T[p][3]}, s49, v{K[p][1]}"
        both(cvt); both(unp)
        both(lambda p: "\n".join(f"v_mul_f32 v{T[p][r]}, s98, v{T[p][r]}" for r in range(4)))
        both(cvt)
        both(lambda p: f"v_bfi_b32 v{K[p][0]}, v{MV}, v{K[p][0]}, v{NEG}\nv_bfi_b32 v{K[p][1]}, v{MV+1}, v{K[p][1]}, v{NEG}")
        both(unp)
        both(lambda p: f"v_max3_f32 v{M[p]}, v{T[p][0]}, v{T[p][1]}, v{T[p][2]}\nv_max_f32 v{M[p]}, v{M[p]}, v{T[p][3]}")
        L += mk(f"v_permlane32_swap_b32 v{M[0]}, v{M[1]}\nv_max_f32 v{M[0]}, v{M[0]}, v{M[1]}\nv_mov_b32 v{M[1]}, v{M[0]}\nv_permlane16_swap_b32 v{M[0]}, v{M[1]}\nv_max_f32 v{M[0]}, v{M[0]}, v{M[1]}")
        L += mk(f"v_mul_f32 v{M[0]}, s99, v{M[0]}\nv_mov_b32 v{M[1]}, v{M[0]}\nv_permlane32_swap_b32 v{M[0]}, v{M[1]}")
        both(lambda p: "\n".join(f"v_fma_f32 v{T[p][r]}, v{T[p][r]}, s99, -v{M[p]}" for r in range(4)))
        both(lambda p: "\n".join(f"v_exp_f32 v{T[p][r]}, v{T[p][r]}" for r in range(4)))
        both(lambda p: f"v_add_f32 v{M[p]}, v{T[p][0]}, v{T[p][1]}\nv_add_f32 v{K[p][0]}, v{T[p][2]}, v{T[p][3]}\nv_add_f32 v{M[p]}, v{M[p]}, v{K[p][0]}")
        L += mk(f"v_permlane32_swap_b32 v{M[0]}, v{M[1]}\nv_add_f32 v{M[0]}, v{M[0]}, v{M[1]}\nv_mov_b32 v{M[1]}, v{M[0]}\nv_permlane16_swap_b32 v{M[0]}, v{M[1]}\nv_add_f32 v{M[0]}, v{M[0]}, v{M[1]}")
        L += mk(f"v_rcp_f32 v{M[0]}, v{M[0]}\nv_mov_b32 v{M[1]}, v{M[0]}\nv_permlane32_swap_b32 v{M[0]}, v{M[1]}")
        both(lambda p: "\n".join(f"v_mul_f32 v{T[p][r]}, v{M[p]}, v{T[p][r]}" for r in range(4)))
        both(cvt)
        po = lambda p: POP + 8 * hh + 4 * p
        both(lambda p: f"v_and_b32 v{po(p)}, v{MO}, v{K[p][0]}\nv_and_b32 v{po(p)+1}, v{MO+1}, v{K[p][1]}\nv_and_b32 v{po(p)+2}, v{MP}, v{K[p][0]}\nv_and_b32 v{po(p)+3}, v{MP+1}, v{K[p][1]}")
        return L
    def PVm(e):
        L = []
        for part in range(2):
            for hh in range(2):
                h = 2 * e + hh
                for Pp in range(2):
                    for k, tile in enumerate((h, 8)):
                        d = vr(sbuf(e, hh, Pp) + 4 * k, 4)
                        VB = VO if part == 0 else VP
                        L += mk(f"v_mfma_f32_16x16x16_bf16 {d}, {ar(VB+4*tile+2*Pp,2)}, {vr(POP+8*hh+4*Pp+2*part,2)}, {'0' if part == 0 else d}")
        return L
    def Oc(e):
        L = []
        for hh in range(2):
            for Pp in range(2):
                d = sbuf(e, hh, Pp); o = OP + 20 * Pp + 4 * e + 2 * hh
                L += mk(f"v_cvt_pk_bf16_f32 v{o}, v{d}, v{d+1}\nv_cvt_pk_bf16_f32 v{o+1}, v{d+2}, v{d+3}")
                L += mk(f"v_cvt_pk_bf16_f32 v{d+4}, v{d+4+2*hh}, v{d+5+2*hh}")
        for hh in range(2):
            for Pp in range(2):
                d = sbuf(e, hh, Pp); o = OP + 20 * Pp + 16 + hh
                L += mk(f"v_cndmask_b32 v{o}, v{o}, v{d+4}, {sGRP[e]}")
        return L
    for Pp in range(2):
        for q in range(16, 20): P(f"v_mov_b32 v{OP+20*Pp+q}, 0")
    P.add(Sm(0))
    for e in range(4):
        a, b = head(e, 0), head(e, 1)
        merged = []
        for x, y in zip(a, b): merged += [x, y]
        pre = []
        if e >= 1: pre += Oc(e - 1)
        if e + 1 < 4: pre += Sm(e + 1)
        if e == 0: P.add(pre + merged)
        else:
            P.add(merged[:16]); P.add(weave(merged[16:], [[x] for x in pre], 3))
        P.add(PVm(e))
    stamp(P, 7)
    vRW = [164 + i for i in range(8)]; WSTG = 172
    P(f"v_lshrrev_b32 v2, 2, v0\nv_lshlrev_b32 v2, 7, v2\nv_and_b32 v3, 3, v0\nv_lshlrev_b32 v3, 3, v3\nv_add_u32 v2, v2, v3\nv_bfe_u32 v3, v0, 3, 2\nv_lshlrev_b32 v3, 5, v3\nv_add_u32 v{vRW[0]}, v2, v3")
    for ct in range(1, 4): P(f"v_xor_b32 v{vRW[ct]}, {32*ct}, v{vRW[0]}")
    for ct in range(4): P(f"v_add_u32 v{vRW[4+ct]}, {3*ARING}, v{vRW[ct]}")
    P.add(Oc(3))
    WACC = 100
    uses = []
    for st in range(9):
        s = 27 + st; slot = s % ANS
        for ct in range(4):
            for e in range(5):
                n = len(uses); af = AF + 4 * (n % 16)
                off = (slot % 3) * ARING + 32 * e * 128
                va = vRW[4 * (slot // 3) + ct]
                mf = []
                if e < 4:
                    rd = mk(f"ds_read_b64_tr_b16 {ar(af,2)}, v{va} offset:{off}\nds_read_b64_tr_b16 {ar(af+2,2)}, v{va} offset:{off+2048}", tag=f"w{n}")
                else:
                    rd = mk(f"ds_read_b64_tr_b16 {ar(af,2)}, v{va} offset:{off}", tag=f"w{n}")
                for Pp in range(2):
                    acc = vr(40 + 32 * (st % 2) + 8 * ct + 4 * Pp, 4)
                    mf += mk(f"v_mfma_f32_16x16x32_bf16 {acc}, {ar(af,4)}, {vr(OP+20*Pp+4*e,4)}, {'0' if e == 0 else acc}")
                uses.append((s, rd, mf))
    NW = len(uses)
    P.add(barrier(27))
    for n in range(PD): P.add(uses[n][1])
    P("WAITL w2")
    SC = Sched(); gi = {}; gbar = {27: -1}
    for n in range(NW):
        mf = uses[n][2]
        g0 = SC.gap([mf[0]], 16); g1 = SC.gap([mf[1]], 16); gi[n] = g0
        if n + PD < NW:
            if uses[n + PD][0] != uses[n + PD - 1][0]:
                SC.mand[g0] += barrier(uses[n + PD][0]); gbar[uses[n + PD][0]] = g0
                SC.mand[g1] += uses[n + PD][1]
            else: SC.mand[g0] += uses[n + PD][1]
        if n % 3 == 2 and n + 1 < NW: SC.tail[g1] += mk(f"WAITL w{n+3}")
    gi[NW] = len(SC.head)
    for s in range(27, 32): SC.place(dma(s + 4), gbar[s] + 1, gbar[s + 1], 'spread', f'dma{s+4}')
    def epi(st):
        L = []
        for c in range(2):
            L += mk(f"s_add_u32 s101, s{TS+st}, {4096*c}")
            for Pp in range(2):
                d = WSTG + 8 * c + 4 * Pp
                for u in range(2):
                    a = 40 + 32 * (st % 2) + 8 * (2 * c + u) + 4 * Pp
                    L += mk(f"v_cvt_pk_bf16_f32 v{d+2*u}, v{a}, v{a+1}\nv_cvt_pk_bf16_f32 v{d+2*u+1}, v{a+2}, v{a+3}")
                L += mk(f"buffer_store_dwordx4 {vr(d,4)}, v{vST}, {sWS}, s101 offen offset:{1024*Pp}{STMOD}", tag='st', cost=8)
        return L
    for st in range(8): SC.place(epi(st), gi[20 * (st + 1)] + 4, gi[20 * (st + 2)] - 1, 'spread', f'epi{st}')
    print("; attn wo overflow %d" % SC.overflow(), file=sys.stderr)
    P.add(SC.emit())
    P.add(epi(8))
    stamp(P, 8)
    stamp_flush(P, 9)
    P("s_endpgm")
    return P.l

def final(G):
    globals().update({k: v for k, v in G.items() if not k.startswith('__') and k not in ('attn', 'final')})
    P = Prog()
    P("s_cmp_ge_u32 s2, 576\ns_cbranch_scc1 L_fexit")
    if OPT['stamp']: P("s_memrealtime s[40:41]\ns_load_dwordx2 s[44:45], s[0:1], 56")
    P("s_load_dwordx2 s[4:5], s[0:1], 0\ns_load_dwordx2 s[8:9], s[0:1], 48\ns_load_dwordx2 s[12:13], s[0:1], 64")
    P(f"s_mov_b32 s16, {-(-(1<<32)//36)}\ns_mul_hi_u32 s17, s2, s16\ns_mul_i32 s18, s17, 36\ns_sub_u32 s18, s2, s18")
    P(f"s_cmp_ge_u32 s18, 18\ns_cselect_b32 s19, 1, 0\ns_mul_i32 s20, s19, 18\ns_sub_u32 s20, s18, s20")
    P(f"s_mul_i32 s21, s17, {16*36*4096}\ns_lshl_b32 s22, s18, 12\ns_add_u32 s21, s21, s22")
    P("v_lshlrev_b32 v1, 4, v0")
    P("v_lshrrev_b32 v2, 7, v0\nv_lshlrev_b32 v2, 5, v2\nv_bfe_u32 v3, v0, 6, 1\nv_add_u32 v2, v2, v3\nv_and_b32 v3, 15, v0\nv_lshlrev_b32 v3, 1, v3\nv_add_u32 v2, v2, v3")
    P("s_lshl_b32 s22, s17, 7\ns_lshl_b32 s23, s19, 6\ns_add_u32 s22, s22, s23\nv_add_u32 v2, s22, v2\nv_mul_u32_u24 v2, 1152, v2")
    P("v_bfe_u32 v3, v0, 4, 2\nv_lshlrev_b32 v3, 3, v3\nv_add_u32 v2, v2, v3\ns_lshl_b32 s23, s20, 6")
    P("s_waitcnt lgkmcnt(0)")
    P(f"s_mov_b32 s6, {2048*576*2}\ns_mov_b32 s7, 0x20000\ns_mov_b32 s10, {2048*576*2}\ns_mov_b32 s11, 0x20000\ns_mov_b32 s14, {WS_BYTES}\ns_mov_b32 s15, 0x20000")
    for j in range(16):
        P(f"buffer_load_dwordx4 {vr(32+4*j,4)}, v1, s[12:15], s21 offen", tag=f"p{j}")
        if j < 15: P(f"s_add_u32 s21, s21, {36*4096}")
    P("buffer_load_dwordx2 v[4:5], v2, s[4:7], s23 offen\nbuffer_load_dwordx2 v[6:7], v2, s[4:7], s23 offen offset:32", tag="x")
    P("s_mov_b32 s24, 0x3f80\ns_mov_b32 s25, 0x3f800000\ns_mov_b32 s26, 0xffff0000")
    for i in range(8, 24): P(f"v_mov_b32 v{i}, 0")
    for j in range(16):
        P(f"WAITV p{j}")
        b = 8 if j < 12 else 16
        for d in range(4):
            P(f"v_dot2c_f32_bf16 v{b+2*d}, s24, v{32+4*j+d}\nv_dot2c_f32_bf16 v{b+2*d+1}, s25, v{32+4*j+d}")
    def rnd(b):
        for d in range(4): P(f"v_cvt_pk_bf16_f32 v{24+d}, v{b+2*d}, v{b+2*d+1}")
        for d in range(4): P(f"v_lshlrev_b32 v{b+2*d}, 16, v{24+d}\nv_and_b32 v{b+2*d+1}, s26, v{24+d}")
    for i in range(8): P(f"v_mul_f32 v{8+i}, {hx(LN2)}, v{8+i}")
    rnd(8)
    for i in range(8): P(f"v_mul_f32 v{32+i}, {hx(-LOG2E)}, v{8+i}")
    for i in range(8): P(f"v_exp_f32 v{32+i}, v{32+i}")
    for i in range(8): P(f"v_add_f32 v{32+i}, 1.0, v{32+i}")
    for i in range(8): P(f"v_rcp_f32 v{32+i}, v{32+i}")
    for i in range(8): P(f"v_mul_f32 v{8+i}, v{8+i}, v{32+i}")
    rnd(8); rnd(16)
    for i in range(8): P(f"v_mul_f32 v{8+i}, v{8+i}, v{16+i}")
    rnd(8)
    P("WAITV x")
    for d in range(4): P(f"v_lshlrev_b32 v{16+2*d}, 16, v{4+d}\nv_and_b32 v{17+2*d}, s26, v{4+d}")
    for i in range(8): P(f"v_add_f32 v{8+i}, v{8+i}, v{16+i}")
    for d in range(4): P(f"v_cvt_pk_bf16_f32 v{24+d}, v{8+2*d}, v{9+2*d}")
    P("buffer_store_dwordx2 v[24:25], v2, s[8:11], s23 offen\nbuffer_store_dwordx2 v[26:27], v2, s[8:11], s23 offen offset:32")
    if OPT['stamp'] == 2:
        P("s_cmp_lg_u32 s2, 0\ns_cbranch_scc1 L_fexit")
        P(f"s_mov_b32 s48, {WS_STAMP}\nv_mov_b32 v1, 0\nbuffer_load_dword v4, v1, s[12:15], s48 offen offset:56\ns_waitcnt vmcnt(0)\nv_readfirstlane_b32 s50, v4\ns_nop 4")
        P("L_spin:\ns_memrealtime s[42:43]\ns_waitcnt lgkmcnt(0)\ns_sub_u32 s42, s42, s50\ns_cmp_lt_u32 s42, 10000\ns_cbranch_scc1 L_spin")
    if OPT['stamp'] == 1:
        P("s_waitcnt vmcnt(0)\ns_memrealtime s[42:43]\ns_mov_b32 s46, 256\ns_mov_b32 s47, 0x20000\ns_waitcnt lgkmcnt(0)")
        P("v_lshlrev_b32 v1, 8, v0\nv_mov_b32 v3, s42\nbuffer_atomic_umax v3, v1, s[44:47], 0 offen offset:12")
        P("s_cmp_lg_u32 s2, 0\ns_cbranch_scc1 L_fexit")
        P(f"s_mov_b32 s48, {WS_STAMP}\nbuffer_load_dwordx2 v[4:5], v1, s[12:15], s48 offen offset:56\nv_mov_b32 v6, 0\nv_mov_b32 v7, s40\ns_waitcnt vmcnt(0)\nv_not_b32 v4, v4")
        P("buffer_atomic_umax v4, v6, s[44:47], 0 offen\nbuffer_atomic_umax v5, v6, s[44:47], 0 offen offset:4\nbuffer_store_dword v7, v1, s[44:47], 0 offen offset:8")
        P(f"v_lshlrev_b32 v1, 2, v0\ns_mov_b32 s48, {WS_STAMP + OPT['dbgwg']*256}\nbuffer_load_dword v4, v1, s[12:15], s48 offen\nv_add_u32 v1, 16, v1\ns_mov_b32 s46, 64\ns_waitcnt vmcnt(0)\nbuffer_store_dword v4, v1, s[44:47], 0 offen")
    P("L_fexit:\ns_endpgm")
    return P.l
```

```python
import sys
from asmlib import *

def attn(G):
    globals().update({k: v for k, v in G.items() if not k.startswith('__') and k not in ('attn', 'final')})
    P = Prog()
    ARING = 18432; ANS = 6; EX = ARING * ANS
    ACC = 40; XR = 112; AF = 192
    KO, KP, VO, VP = 0, 36, 72, 108
    vDQ = [16, 17, 18, 19, 20]; vDW = [21, 22, 23, 24, 25]
    vRX = [26, 27]; vRR = [28, 29]
    vEW, vEP, vST, vFL = 30, 31, 32, 33
    STG = [1, 1]
    sG = sSL
    TQ = 58
    TW = 67
    TS = 40
    sLB = 's3'
    sHS = 's[8:11]'
    sFS = 's[4:7]'
    P(f"s_mov_b32 {sG}, s38")
    P(f"s_mov_b32 s16, s6\ns_mov_b32 s17, s7\ns_mov_b32 s18, {576*1728*2}\ns_mov_b32 s19, 0x20000")
    P(f"s_mov_b32 s20, s8\ns_mov_b32 s21, s9\ns_mov_b32 s22, {576*576*2}\ns_mov_b32 s23, 0x20000")
    P(f"s_cmp_eq_u32 {sWV}, 3\ns_cselect_b32 s10, {WS_BYTES}, 0\ns_cselect_b32 s6, 256, 0")
    P(f"s_mov_b32 s8, s46\ns_mov_b32 s9, s47\ns_mov_b32 s11, 0x20000")
    P(f"s_mov_b32 s4, s44\ns_mov_b32 s5, s45\ns_mov_b32 s7, 0x20000")
    vFLW = 39
    if OPT['fuse']:
        P(f"s_add_u32 s96, {sG}, 12")
        flag_setup(P, vFLW, 's96', 'v2')
        hsk = handshake('s96', 'v1', 'v38')
        P.add(hsk[:-1])
    P(f"s_mul_i32 s49, {sWV}, 9\ns_lshr_b32 s49, s49, 1\ns_lshl_b32 {sLB}, s49, 10")
    P(f"s_mul_i32 s51, {sG}, 288\ns_mul_i32 s52, {sG}, {144*1152}")
    P(f"s_lshl_b32 s53, {sM}, 4\ns_add_u32 s53, s53, {sG}\ns_add_u32 s53, s53, 12\ns_lshl_b32 s53, s53, 1\ns_lshr_b32 s96, {sWV}, 1\ns_add_u32 s53, s53, s96")
    P(f"s_mul_i32 s53, s53, {18*4096}\ns_and_b32 s96, {sWV}, 1\ns_lshl_b32 s96, s96, 11\ns_add_u32 s53, s53, s96")
    for st in range(9):
        P(f"s_mul_i32 s{TQ+st}, s50, {64*3456}\ns_add_u32 s{TQ+st}, s{TQ+st}, s51")
        P(f"s_lshl_b32 s{TW+st}, s50, 7\ns_add_u32 s{TW+st}, s{TW+st}, s52")
        P(f"s_lshl_b32 s{TS+st}, s50, 13\ns_add_u32 s{TS+st}, s{TS+st}, s53")
        if st < 8: P(f"s_add_u32 s50, s50, 1\ns_cmp_eq_u32 s50, 9\ns_cselect_b32 s50, 0, s50")
    P(f"s_mov_b32 s96, {-(-(1<<32)//18)}\ns_lshl_b32 s97, s49, 6\ns_lshl_b32 s98, s49, 3")
    for n in range(5):
        imm = 1024 * n if n < 4 else 0
        P(f"v_add_u32 v2, s97, v0")
        if n: P(f"v_add_u32 v2, {64*n}, v2")
        P(f"v_mul_hi_u32 v3, v2, s96\nv_mul_u32_u24 v4, 18, v3\nv_sub_u32 v2, v2, v4\nv_lshlrev_b32 v2, 4, v2")
        P(f"v_and_b32 v4, 35, v3\nv_bfe_u32 v5, v3, 2, 2\nv_lshlrev_b32 v5, 3, v5\nv_add_u32 v4, v4, v5\nv_bfe_u32 v5, v3, 4, 1\nv_lshlrev_b32 v5, 2, v5\nv_add_u32 v4, v4, v5")
        P(f"v_mul_u32_u24 v4, 3456, v4\nv_add_u32 v{vDQ[n]}, v4, v2")
        if imm: P(f"v_subrev_u32 v{vDQ[n]}, {imm}, v{vDQ[n]}")
        P(f"v_lshrrev_b32 v2, 3, v0\nv_add_u32 v2, s98, v2")
        if n: P(f"v_add_u32 v2, {8*n}, v2")
        P(f"v_lshrrev_b32 v3, 4, v2\nv_mul_u32_u24 v4, 18, v3\nv_and_b32 v5, 1, v3\nv_lshlrev_b32 v5, 1, v5\nv_add_u32 v4, v4, v5\nv_and_b32 v5, 15, v2\nv_add_u32 v4, v4, v5")
        P(f"v_bfe_u32 v5, v2, 2, 2\nv_mul_u32_u24 v5, 36, v5\nv_and_b32 v6, 3, v2\nv_add_u32 v5, v5, v6\nv_add_u32 v5, 16, v5")
        P(f"v_cmp_eq_u32 vcc, 8, v3\nv_bfe_u32 v6, v2, 1, 2\nv_lshlrev_b32 v6, 1, v6\nv_cndmask_b32 v4, v4, v5, vcc\nv_and_b32 v5, 7, v0\nv_xor_b32 v5, v5, v6\nv_lshlrev_b32 v5, 4, v5")
        P(f"v_mul_u32_u24 v4, 1152, v4\nv_add_u32 v{vDW[n]}, v4, v5")
        if imm: P(f"v_subrev_u32 v{vDW[n]}, {imm}, v{vDW[n]}")
    PCOL = [1152, 2304, 0]
    def dma(s):
        slot = (s % ANS) * ARING
        if s < 27: srd, vD, so = sWA, vDQ, f"s_add_u32 s99, s{TQ + s % 9}, {PCOL[s // 9]}"
        else: srd, vD, so = sWB, vDW, f"s_mov_b32 s99, s{TW + s - 27}"
        t = f"d{s}"
        L = mk(f"s_add_u32 m0, {sLB}, {slot}\n{so}")
        for n in range(4): L += mk(f"buffer_load_dwordx4 v{vD[n]}, {srd}, s99 offen offset:{1024*n} lds", tag=t, cost=8)
        L += mk(f"s_add_u32 m0, {sLB}, {slot+4096}")
        L += mk(f"buffer_load_dwordx4 v{vD[4]}, {srd}, s99 offen lds", tag=t, cost=8)
        return L
    P(f"v_lshrrev_b32 v2, 2, v0\nv_mul_u32_u24 v2, 288, v2\nv_and_b32 v3, 3, v0\nv_lshlrev_b32 v4, 3, v3\nv_add_u32 v{vRX[0]}, v2, v4")
    P(f"v_mul_u32_u24 v4, 72, v3\nv_add_u32 v4, 32, v4\nv_add_u32 v{vRR[0]}, v2, v4\nv_add_u32 v{vRX[1]}, {3*ARING}, v{vRX[0]}\nv_add_u32 v{vRR[1]}, {3*ARING}, v{vRR[0]}")
    P(f"v_lshlrev_b32 v{vST}, 4, v0\ns_mul_i32 s96, {sWV}, 9216\ns_add_u32 s96, s96, {EX}\nv_add_u32 v{vEW}, s96, v{vST}")
    P(f"s_max_u32 s97, {sWV}, 1\ns_sub_u32 s97, s97, 1\ns_mul_i32 s97, s97, 9216\ns_add_u32 s97, s97, {EX}\nv_add_u32 v{vEP}, s97, v{vST}")
    P(f"v_and_b32 v2, 15, v0\nv_lshlrev_b32 v2, 7, v2\nv_add_u32 v2, s54, v2\nv_bfe_u32 v3, v0, 1, 3\nv_lshrrev_b32 v4, 4, v0\nv_xor_b32 v3, v3, v4\nv_lshlrev_b32 v3, 4, v3")
    P(f"v_add_u32 v34, v2, v3\nv_xor_b32 v35, 64, v34\nv_add_u32 v36, 98304, v34\nv_add_u32 v37, 98304, v35")
    SEL = 48
    sel_consts(P, SEL, 'v2', 'v3', 'v4')
    for r in range(8, 16): P(f"v_mov_b32 v{r}, 0")
    P("s_mov_b32 s57, 0x3f803f80")
    P.l = weave(P.l, [xdma(1, S) for S in range(3)], 30)
    stamp(P, 1)
    def dgroups(lst):
        Gs = []; cur = []
        for x in lst:
            cur.append(x)
            if x.kind == 'vmem': Gs.append(cur); cur = []
        if cur: Gs[-1] += cur
        return Gs
    for st in range(3):
        fr = []
        for f in range(12):
            ks = 6 * st + f // 2; Pp = f % 2
            fr.append((XR + 8 * ks + 4 * Pp, (34 if st < 2 else 36) + (ks & 1), (st % 2) * 49152 + ((ks % 6) // 2) * 4096 + Pp * 2048, Pp))
        sums = [[8, 9], [10, 11]]; sqs = [[12, 13], [14, 15]]
        if st == 0:
            P.add(xdma(2, 0))
            xstats(P, st, fr, sums, sqs, mk("s_barrier"), [xdma(2, 1), xdma(2, 2)])
            P.add(dma(0))
        elif st == 1:
            xstats(P, st, fr, sums, sqs, mk("s_barrier"), dgroups(dma(1)))
            P.add(dma(2)); P.add(dma(3))
            stamp(P, 2)
        else: xstats(P, st, fr, sums, sqs)
    for a in (8, 10, 12, 14): P(f"v_add_f32 v{a}, v{a}, v{a+1}")
    for sw in ('32', '16'):
        for a in (8, 10, 12, 14): P(f"v_mov_b32 v{a+1}, v{a}")
        for a in (8, 10, 12, 14): P(f"v_permlane{sw}_swap_b32 v{a}, v{a+1}")
        for a in (8, 10, 12, 14): P(f"v_add_f32 v{a}, v{a}, v{a+1}")
    A1 = Prog(); ln_stats(A1, 'v8', 'v12', 'v40', 'v2', None)
    A2 = Prog(); ln_stats(A2, 'v10', 'v14', 'v54', 'v3', None)
    for a, b in zip(A1.l, A2.l): P.add([a, b])
    P("v_mov_b32 v41, v40\nv_mov_b32 v42, v40\nv_mov_b32 v43, v40\nv_mov_b32 v55, v54\nv_mov_b32 v56, v54\nv_mov_b32 v57, v54")
    CM = [40, 54]
    D1 = [60, 68, 76]; D2 = [84, 92, 100]
    def xr(F): return XR + 4 * F
    def U1(F): d = D1[F % 3]; return mk(f"v_mfma_f32_16x16x32_bf16 {vr(d,4)}, {vr(SEL+2,4)}, {vr(xr(F),4)}, {vr(CM[F%2],4)}\nv_mfma_f32_16x16x32_bf16 {vr(d+4,4)}, {vr(SEL,4)}, {vr(xr(F),4)}, {vr(CM[F%2],4)}")
    def C1(F): d = D1[F % 3]; return mk("\n".join(f"v_cvt_pk_bf16_f32 v{xr(F)+j}, v{d+2*j}, v{d+2*j+1}" for j in range(4)))
    def U2(F): d = D2[F % 3]; return mk(f"v_mfma_f32_16x16x32_bf16 {vr(d,4)}, {vr(SEL+2,4)}, {vr(xr(F),4)}, 0\nv_mfma_f32_16x16x32_bf16 {vr(d+4,4)}, {vr(SEL,4)}, {vr(xr(F),4)}, 0")
    def M2(F): d = D2[F % 3]; return mk("\n".join(f"v_mul_f32 v{d+j}, v{2+F%2}, v{d+j}" for j in range(8)))
    def C2(F): d = D2[F % 3]; return mk("\n".join(f"v_cvt_pk_bf16_f32 v{xr(F)+j}, v{d+2*j}, v{d+2*j+1}" for j in range(4)))
    for i in range(-2, 37):
        u1 = U1(i + 2) if 0 <= i + 2 < 36 else []
        c1 = C1(i + 1) if 0 <= i + 1 < 36 else []
        u2 = U2(i) if 0 <= i < 36 else []
        m2 = M2(i - 1) + C2(i - 1) if 0 <= i - 1 < 36 else []
        P.add(u1[:1] + m2[0:4] + u1[1:] + m2[4:8] + u2[:1] + c1 + u2[1:] + m2[8:])
    uses = []
    for ps in range(3):
        for ks in range(18):
            s = 9 * ps + ks // 2; slot = s % ANS
            for j in range(9):
                n = len(uses); af = AF + 4 * (n % 16)
                off = (slot % 3) * ARING + (ks & 1) * 9216 + (36 * j + 4 * (j & 1) if j < 8 else 0)
                va = (vRX if j < 8 else vRR)[slot // 3]
                rd = mk(f"ds_read_b64_tr_b16 {ar(af,2)}, v{va} offset:{off}\nds_read_b64_tr_b16 {ar(af+2,2)}, v{va} offset:{off+4608}", tag=f"r{n}")
                mf = []
                for Pp in range(2):
                    acc = vr(ACC + 8 * j + 4 * Pp, 4); x = vr(XR + 8 * ks + 4 * Pp, 4)
                    a, b = (ar(af, 4), x) if ps != 1 else (x, ar(af, 4))
                    mf += mk(f"v_mfma_f32_16x16x32_bf16 {acc}, {a}, {b}, {'0' if ks == 0 else acc}")
                uses.append((s, rd, mf))
    NQ = len(uses); PD = 5
    extra_lw = {10: 'ew0', 19: 'ew1'}
    def barrier(s):
        if s in extra_lw: return mk(f"WAITVL d{s}, {extra_lw[s]}\ns_barrier")
        return mk(f"WAITV d{s}\ns_barrier")
    P.add(barrier(0))
    if OPT['fuse']: P.add(hsk[-1:])
    for n in range(PD): P.add(uses[n][1])
    P("WAITL r2")
    stamp(P, 3)
    SC = Sched(); gi = {}; gbar = {0: -1}
    for n in range(NQ):
        mf = uses[n][2]
        g0 = SC.gap([mf[0]], 16); g1 = SC.gap([mf[1]], 16); gi[n] = g0
        if n + PD < NQ:
            if uses[n + PD][0] != uses[n + PD - 1][0]:
                SC.mand[g0] += barrier(uses[n + PD][0]); gbar[uses[n + PD][0]] = g0
                SC.mand[g1] += uses[n + PD][1]
            else: SC.mand[g0] += uses[n + PD][1]
        if n % 3 == 2 and n + 1 < NQ: SC.tail[g1] += mk(f"WAITL r{n+3}")
    gi[NQ] = len(SC.head); gbar[27] = len(SC.head)
    stg = [4, 8, 12]
    P2 = Prog()
    HOFF = 's100'
    for ps in range(2):
        for j in range(9):
            nlast = 162 * ps + 153 + j
            d = stg[j % 3]; a = ACC + 8 * j
            L = mk("\n".join(f"v_cvt_pk_bf16_f32 v{d+q}, v{a+2*q}, v{a+2*q+1}" for q in range(4)))
            g = gi[nlast + 5]
            SC.fill[g] += L[:1]; SC.fill[g + 1] += L[1:]
            L = mk(f"ds_write_b128 v{vEW}, {vr(d,4)} offset:{1024*j}", tag=f"ew{ps}", cost=8)
            if j % 4 == 0: L += mk(f"s_add_u32 s101, {HOFF}, {(9*ps+j)*1024}")
            L += mk(f"buffer_store_dwordx4 {vr(d,4)}, v{vST}, {sHS}, s101 offen offset:{1024*(j%4)} sc1", tag=f"hs{ps}", cost=8)
            SC.fill[g + 2] += L
        own, prev = (KO, KP) if ps == 0 else (VO, VP)
        L = []
        for j in range(9):
            L += mk(f"ds_read_b128 {ar(own+4*j,4)}, v{vEW} offset:{1024*j}\nds_read_b128 {ar(prev+4*j,4)}, v{vEP} offset:{1024*j}", tag=f"er{ps}")
        sb = 10 if ps == 0 else 19
        SC.place(L, gbar[sb] + 2, gbar[sb + 2], 'spread', f'rb{ps}')
    for s in range(27): SC.place(dma(s + 4), gbar[s] + 1, gbar[s + 1], 'spread', f'dma{s+4}')
    SC.place(mk("WAITV hs1") + mk(f"buffer_atomic_add v38, v{vFL}, {sFS}, 0 offen sc1", tag='fl', cost=8), gbar[22] + 2, gbar[23], 'asap', 'flag')
    P(f"s_lshl_b32 s96, {sM}, 2\ns_add_u32 s96, s96, {sG}\ns_mul_i32 {HOFF}, s96, {18*1024}\ns_add_u32 {HOFF}, {HOFF}, {WS_HALO}")
    P(f"s_lshl_b32 s96, s96, 2\nv_lshlrev_b32 v{vFL}, 8, v0\nv_add_u32 v{vFL}, s96, v{vFL}\nv_mov_b32 v38, 0x100")
    print("; attn qkv overflow %d" % SC.overflow(), file=sys.stderr)
    P.add(SC.emit(0, gi[162])); stamp(P, 4)
    P.add(SC.emit(gi[162], gi[324])); stamp(P, 5)
    P.add(SC.emit(gi[324]))
    QX = XR
    for j in range(9):
        for q in range(4): P(f"v_cvt_pk_bf16_f32 v{QX+4*j+q}, v{ACC+8*j+2*q}, v{ACC+8*j+2*q+1}")
    stamp(P, 6)
    P(f"s_cmp_lg_u32 {sWV}, 0\ns_cbranch_scc1 L_nohalo")
    P(f"s_cmp_eq_u32 {sM}, 0\ns_cbranch_scc1 L_zerohalo", cond=True)
    P(f"s_sub_u32 s96, s96, 16\nv_mov_b32 v2, s96\ns_mov_b32 s98, 0", cond=True)
    P("L_poll:")
    P(f"buffer_load_dword v3, v2, {sDBG}, 0 offen sc1\ns_waitcnt vmcnt(0)\nv_readfirstlane_b32 s97, v3\ns_nop 3\ns_cmp_lt_u32 s97, 0x100\ns_cbranch_scc0 L_polled\ns_sleep 2\ns_add_u32 s98, s98, 1\ns_cmp_lt_u32 s98, 0x40000\ns_cbranch_scc1 L_poll", cond=True)
    P("L_polled:")
    P(f"s_sub_u32 s97, {HOFF}, {4*18*1024}", cond=True)
    for j in range(18):
        dst = (KP + 4 * j) if j < 9 else (VP + 4 * (j - 9))
        if j % 4 == 0 and j: P(f"s_add_u32 s97, s97, 4096", cond=True)
        P(f"buffer_load_dwordx4 {ar(dst,4)}, v{vST}, {sWS}, s97 offen offset:{1024*(j%4)} sc1", cond=True)
    P("s_waitcnt vmcnt(0)\ns_branch L_nohalo", cond=True)
    P("L_zerohalo:")
    for r in list(range(KP, KP + 36)) + list(range(VP, VP + 36)): P(f"v_accvgpr_write_b32 a{r}, 0", cond=True)
    P("L_nohalo:")
    P("s_nop 1")
    MO, MP, MV, NEG = 244, 246, 248, 250
    sOWN = [f"s[{58+2*r}:{59+2*r}]" for r in range(4)]
    sGRP = ["s[50:51]", "s[52:53]", "s[54:55]", "s[96:97]"]
    P(f"s_or_b32 s98, {sM}, {sWV}\ns_cmp_eq_u32 s98, 0\ns_cselect_b32 s98, 99, 9")
    P("v_and_b32 v2, 15, v0\nv_lshrrev_b32 v3, 4, v0")
    for g in range(4): P(f"v_cmp_eq_u32 {sGRP[g]}, {g}, v3")
    P("v_lshlrev_b32 v3, 2, v3\nv_sub_u32 v3, v3, v2")
    P(f"v_mov_b32 v8, 0xffff\nv_mov_b32 v9, 0xffff0000\nv_mov_b32 v{NEG}, 0xff7fff7f")
    for r in range(4):
        P(f"v_add_u32 v4, {r}, v3")
        P(f"v_cmp_ge_i32 {sOWN[r]}, 0, v4")
        P(f"v_cmp_le_i32 vcc, -7, v4\ns_and_b64 s[66:67], vcc, {sOWN[r]}" if False else f"v_cmp_le_i32 vcc, -7, v4")
        P(f"s_and_b64 vcc, vcc, {sOWN[r]}")
        P(f"v_cndmask_b32 v5, 0, v{8+r%2}, vcc")
        P(f"v_cmp_le_i32 vcc, s98, v4")
        P(f"v_cndmask_b32 v6, 0, v{8+r%2}, vcc")
        if r % 2 == 0: P(f"v_mov_b32 v{MO+r//2}, v5\nv_mov_b32 v{MP+r//2}, v6")
        else: P(f"v_or_b32 v{MO+r//2}, v{MO+r//2}, v5\nv_or_b32 v{MP+r//2}, v{MP+r//2}, v6\nv_or_b32 v{MV+r//2}, v{MO+r//2}, v{MP+r//2}")
    P(f"s_mov_b32 s98, {hx(18 ** -0.5)}\ns_mov_b32 s99, {hx(LOG2E)}\ns_mov_b32 s49, 0xffff0000")
    SB = 40; QRM = 104; W = 148; POP = 188; OP = 204
    for Pp in range(2): P(f"v_mov_b32 v{QRM+4*Pp+1}, 0\nv_mov_b32 v{QRM+4*Pp+2}, 0")
    def sbuf(e, hh, Pp): return SB + 32 * (e % 2) + 16 * hh + 8 * Pp
    def Sm(e):
        L = []
        for hh in range(2):
            for Pp in range(2): L += mk(f"v_cndmask_b32 v{QRM+4*Pp+3*hh}, 0, v{QX+32+2*Pp+hh}, {sGRP[e]}")
        for part in range(2):
            for hh in range(2):
                h = 2 * e + hh
                for Pp in range(2):
                    for k, KB in enumerate((KO, KP)):
                        d = vr(sbuf(e, hh, Pp) + 4 * k, 4)
                        if part == 0: L += mk(f"v_mfma_f32_16x16x16_bf16 {d}, {ar(KB+4*h+2*Pp,2)}, {vr(QX+4*h+2*Pp,2)}, 0")
                        else: L += mk(f"v_mfma_f32_16x16x16_bf16 {d}, {ar(KB+32+2*Pp,2)}, {vr(QRM+4*Pp+2*hh,2)}, {d}")
        return L
    def head(e, hh):
        L = []
        w = W + 20 * hh
        T = [[w + 10 * Pp + r for r in range(4)] for Pp in range(2)]
        K = [[w + 10 * Pp + 4, w + 10 * Pp + 5] for Pp in range(2)]
        M = [w + 6, w + 16]; tmp = w + 7
        def both(f):
            a, b = mk(f(0)), mk(f(1))
            for x, y in zip(a, b): L.append(x); L.append(y)
        both(lambda p: "\n".join(f"v_cndmask_b32 v{T[p][r]}, v{sbuf(e,hh,p)+4+r}, v{sbuf(e,hh,p)+r}, {sOWN[r]}" for r in range(4)))
        cvt = lambda p: f"v_cvt_pk_bf16_f32 v{K[p][0]}, v{T[p][0]}, v{T[p][1]}\nv_cvt_pk_bf16_f32 v{K[p][1]}, v{T[p][2]}, v{T[p][3]}"
        unp = lambda p: f"v_lshlrev_b32 v{T[p][0]}, 16, v{K[p][0]}\nv_and_b32 v{T[p][1]}, s49, v{K[p][0]}\nv_lshlrev_b32 v{T[p][2]}, 16, v{K[p][1]}\nv_and_b32 v{T[p][3]}, s49, v{K[p][1]}"
        both(cvt); both(unp)
        both(lambda p: "\n".join(f"v_mul_f32 v{T[p][r]}, s98, v{T[p][r]}" for r in range(4)))
        both(cvt)
        both(lambda p: f"v_bfi_b32 v{K[p][0]}, v{MV}, v{K[p][0]}, v{NEG}\nv_bfi_b32 v{K[p][1]}, v{MV+1}, v{K[p][1]}, v{NEG}")
        both(unp)
        both(lambda p: f"v_max3_f32 v{M[p]}, v{T[p][0]}, v{T[p][1]}, v{T[p][2]}\nv_max_f32 v{M[p]}, v{M[p]}, v{T[p][3]}")
        L += mk(f"v_permlane32_swap_b32 v{M[0]}, v{M[1]}\nv_max_f32 v{M[0]}, v{M[0]}, v{M[1]}\nv_mov_b32 v{M[1]}, v{M[0]}\nv_permlane16_swap_b32 v{M[0]}, v{M[1]}\nv_max_f32 v{M[0]}, v{M[0]}, v{M[1]}")
        L += mk(f"v_mul_f32 v{M[0]}, s99, v{M[0]}\nv_mov_b32 v{M[1]}, v{M[0]}\nv_permlane32_swap_b32 v{M[0]}, v{M[1]}")
        both(lambda p: "\n".join(f"v_fma_f32 v{T[p][r]}, v{T[p][r]}, s99, -v{M[p]}" for r in range(4)))
        both(lambda p: "\n".join(f"v_exp_f32 v{T[p][r]}, v{T[p][r]}" for r in range(4)))
        both(lambda p: f"v_add_f32 v{M[p]}, v{T[p][0]}, v{T[p][1]}\nv_add_f32 v{K[p][0]}, v{T[p][2]}, v{T[p][3]}\nv_add_f32 v{M[p]}, v{M[p]}, v{K[p][0]}")
        L += mk(f"v_permlane32_swap_b32 v{M[0]}, v{M[1]}\nv_add_f32 v{M[0]}, v{M[0]}, v{M[1]}\nv_mov_b32 v{M[1]}, v{M[0]}\nv_permlane16_swap_b32 v{M[0]}, v{M[1]}\nv_add_f32 v{M[0]}, v{M[0]}, v{M[1]}")
        L += mk(f"v_rcp_f32 v{M[0]}, v{M[0]}\nv_mov_b32 v{M[1]}, v{M[0]}\nv_permlane32_swap_b32 v{M[0]}, v{M[1]}")
        both(lambda p: "\n".join(f"v_mul_f32 v{T[p][r]}, v{M[p]}, v{T[p][r]}" for r in range(4)))
        both(cvt)
        po = lambda p: POP + 8 * hh + 4 * p
        both(lambda p: f"v_and_b32 v{po(p)}, v{MO}, v{K[p][0]}\nv_and_b32 v{po(p)+1}, v{MO+1}, v{K[p][1]}\nv_and_b32 v{po(p)+2}, v{MP}, v{K[p][0]}\nv_and_b32 v{po(p)+3}, v{MP+1}, v{K[p][1]}")
        return L
    def PVm(e):
        L = []
        for part in range(2):
            for hh in range(2):
                h = 2 * e + hh
                for Pp in range(2):
                    for k, tile in enumerate((h, 8)):
                        d = vr(sbuf(e, hh, Pp) + 4 * k, 4)
                        VB = VO if part == 0 else VP
                        L += mk(f"v_mfma_f32_16x16x16_bf16 {d}, {ar(VB+4*tile+2*Pp,2)}, {vr(POP+8*hh+4*Pp+2*part,2)}, {'0' if part == 0 else d}")
        return L
    def Oc(e):
        L = []
        for hh in range(2):
            for Pp in range(2):
                d = sbuf(e, hh, Pp); o = OP + 20 * Pp + 4 * e + 2 * hh
                L += mk(f"v_cvt_pk_bf16_f32 v{o}, v{d}, v{d+1}\nv_cvt_pk_bf16_f32 v{o+1}, v{d+2}, v{d+3}")
                L += mk(f"v_cvt_pk_bf16_f32 v{d+4}, v{d+4+2*hh}, v{d+5+2*hh}")
        for hh in range(2):
            for Pp in range(2):
                d = sbuf(e, hh, Pp); o = OP + 20 * Pp + 16 + hh
                L += mk(f"v_cndmask_b32 v{o}, v{o}, v{d+4}, {sGRP[e]}")
        return L
    for Pp in range(2):
        for q in range(16, 20): P(f"v_mov_b32 v{OP+20*Pp+q}, 0")
    P.add(Sm(0))
    for e in range(4):
        a, b = head(e, 0), head(e, 1)
        merged = []
        for x, y in zip(a, b): merged += [x, y]
        pre = []
        if e >= 1: pre += Oc(e - 1)
        if e + 1 < 4: pre += Sm(e + 1)
        if e == 0: P.add(pre + merged)
        else:
            P.add(merged[:16]); P.add(weave(merged[16:], [[x] for x in pre], 3))
        P.add(PVm(e))
    stamp(P, 7)
    vRW = [164 + i for i in range(8)]; WSTG = 172
    P(f"v_lshrrev_b32 v2, 2, v0\nv_lshlrev_b32 v2, 7, v2\nv_and_b32 v3, 3, v0\nv_lshlrev_b32 v3, 3, v3\nv_add_u32 v2, v2, v3\nv_bfe_u32 v3, v0, 3, 2\nv_lshlrev_b32 v3, 5, v3\nv_add_u32 v{vRW[0]}, v2, v3")
    for ct in range(1, 4): P(f"v_xor_b32 v{vRW[ct]}, {32*ct}, v{vRW[0]}")
    for ct in range(4): P(f"v_add_u32 v{vRW[4+ct]}, {3*ARING}, v{vRW[ct]}")
    P.add(Oc(3))
    WACC = 100
    uses = []
    for st in range(9):
        s = 27 + st; slot = s % ANS
        for ct in range(4):
            for e in range(5):
                n = len(uses); af = AF + 4 * (n % 16)
                off = (slot % 3) * ARING + 32 * e * 128
                va = vRW[4 * (slot // 3) + ct]
                mf = []
                if e < 4:
                    rd = mk(f"ds_read_b64_tr_b16 {ar(af,2)}, v{va} offset:{off}\nds_read_b64_tr_b16 {ar(af+2,2)}, v{va} offset:{off+2048}", tag=f"w{n}")
                else:
                    rd = mk(f"ds_read_b64_tr_b16 {ar(af,2)}, v{va} offset:{off}", tag=f"w{n}")
                for Pp in range(2):
                    acc = vr(40 + 32 * (st % 2) + 8 * ct + 4 * Pp, 4)
                    mf += mk(f"v_mfma_f32_16x16x32_bf16 {acc}, {ar(af,4)}, {vr(OP+20*Pp+4*e,4)}, {'0' if e == 0 else acc}")
                uses.append((s, rd, mf))
    NW = len(uses)
    P.add(barrier(27))
    for n in range(PD): P.add(uses[n][1])
    P("WAITL w2")
    SC = Sched(); gi = {}; gbar = {27: -1}
    for n in range(NW):
        mf = uses[n][2]
        g0 = SC.gap([mf[0]], 16); g1 = SC.gap([mf[1]], 16); gi[n] = g0
        if n + PD < NW:
            if uses[n + PD][0] != uses[n + PD - 1][0]:
                SC.mand[g0] += barrier(uses[n + PD][0]); gbar[uses[n + PD][0]] = g0
                SC.mand[g1] += uses[n + PD][1]
            else: SC.mand[g0] += uses[n + PD][1]
        if n % 3 == 2 and n + 1 < NW: SC.tail[g1] += mk(f"WAITL w{n+3}")
    gi[NW] = len(SC.head)
    for s in range(27, 32): SC.place(dma(s + 4), gbar[s] + 1, gbar[s + 1], 'spread', f'dma{s+4}')
    def epi(st):
        L = []
        for c in range(2):
            L += mk(f"s_add_u32 s101, s{TS+st}, {4096*c}")
            for Pp in range(2):
                d = WSTG + 8 * c + 4 * Pp
                for u in range(2):
                    a = 40 + 32 * (st % 2) + 8 * (2 * c + u) + 4 * Pp
                    L += mk(f"v_cvt_pk_bf16_f32 v{d+2*u}, v{a}, v{a+1}\nv_cvt_pk_bf16_f32 v{d+2*u+1}, v{a+2}, v{a+3}")
                L += mk(f"buffer_store_dwordx4 {vr(d,4)}, v{vST}, {sWS}, s101 offen offset:{1024*Pp}{STMOD}", tag='st', cost=8)
        return L
    for st in range(8): SC.place(epi(st), gi[20 * (st + 1)] + 4, gi[20 * (st + 2)] - 1, 'spread', f'epi{st}')
    print("; attn wo overflow %d" % SC.overflow(), file=sys.stderr)
    P.add(SC.emit())
    P.add(epi(8))
    if OPT['fuse']: P(f"v_mov_b32 v2, 7\ns_waitcnt vmcnt(0)\nbuffer_store_dword v2, v{vFLW}, {sWS}, 0 offen sc1")
    stamp(P, 8)
    stamp_flush(P, 9)
    P("s_endpgm")
    return P.l

def final(G):
    globals().update({k: v for k, v in G.items() if not k.startswith('__') and k not in ('attn', 'final')})
    P = Prog()
    P("s_cmp_ge_u32 s2, 576\ns_cbranch_scc1 L_fexit")
    if OPT['stamp']: P("s_memrealtime s[40:41]\ns_load_dwordx2 s[44:45], s[0:1], 56")
    P("s_load_dwordx2 s[4:5], s[0:1], 0\ns_load_dwordx2 s[8:9], s[0:1], 48\ns_load_dwordx2 s[12:13], s[0:1], 64")
    P(f"s_mov_b32 s16, {-(-(1<<32)//36)}\ns_mul_hi_u32 s17, s2, s16\ns_mul_i32 s18, s17, 36\ns_sub_u32 s18, s2, s18")
    P(f"s_cmp_ge_u32 s18, 18\ns_cselect_b32 s19, 1, 0\ns_mul_i32 s20, s19, 18\ns_sub_u32 s20, s18, s20")
    P(f"s_mul_i32 s21, s17, {16*36*4096}\ns_lshl_b32 s22, s18, 12\ns_add_u32 s21, s21, s22")
    P("v_lshlrev_b32 v1, 4, v0")
    P("v_lshrrev_b32 v2, 7, v0\nv_lshlrev_b32 v2, 5, v2\nv_bfe_u32 v3, v0, 6, 1\nv_add_u32 v2, v2, v3\nv_and_b32 v3, 15, v0\nv_lshlrev_b32 v3, 1, v3\nv_add_u32 v2, v2, v3")
    P("s_lshl_b32 s22, s17, 7\ns_lshl_b32 s23, s19, 6\ns_add_u32 s22, s22, s23\nv_add_u32 v2, s22, v2\nv_mul_u32_u24 v2, 1152, v2")
    P("v_bfe_u32 v3, v0, 4, 2\nv_lshlrev_b32 v3, 3, v3\nv_add_u32 v2, v2, v3\ns_lshl_b32 s23, s20, 6")
    P("s_waitcnt lgkmcnt(0)")
    P(f"s_mov_b32 s6, {2048*576*2}\ns_mov_b32 s7, 0x20000\ns_mov_b32 s10, {2048*576*2}\ns_mov_b32 s11, 0x20000\ns_mov_b32 s14, {WS_BYTES}\ns_mov_b32 s15, 0x20000")
    for j in range(16):
        P(f"buffer_load_dwordx4 {vr(32+4*j,4)}, v1, s[12:15], s21 offen", tag=f"p{j}")
        if j < 15: P(f"s_add_u32 s21, s21, {36*4096}")
    P("buffer_load_dwordx2 v[4:5], v2, s[4:7], s23 offen\nbuffer_load_dwordx2 v[6:7], v2, s[4:7], s23 offen offset:32", tag="x")
    P("s_mov_b32 s24, 0x3f80\ns_mov_b32 s25, 0x3f800000\ns_mov_b32 s26, 0xffff0000")
    for i in range(8, 24): P(f"v_mov_b32 v{i}, 0")
    for j in range(16):
        P(f"WAITV p{j}")
        b = 8 if j < 12 else 16
        for d in range(4):
            P(f"v_dot2c_f32_bf16 v{b+2*d}, s24, v{32+4*j+d}\nv_dot2c_f32_bf16 v{b+2*d+1}, s25, v{32+4*j+d}")
    def rnd(b):
        for d in range(4): P(f"v_cvt_pk_bf16_f32 v{24+d}, v{b+2*d}, v{b+2*d+1}")
        for d in range(4): P(f"v_lshlrev_b32 v{b+2*d}, 16, v{24+d}\nv_and_b32 v{b+2*d+1}, s26, v{24+d}")
    for i in range(8): P(f"v_mul_f32 v{8+i}, {hx(LN2)}, v{8+i}")
    rnd(8)
    for i in range(8): P(f"v_mul_f32 v{32+i}, {hx(-LOG2E)}, v{8+i}")
    for i in range(8): P(f"v_exp_f32 v{32+i}, v{32+i}")
    for i in range(8): P(f"v_add_f32 v{32+i}, 1.0, v{32+i}")
    for i in range(8): P(f"v_rcp_f32 v{32+i}, v{32+i}")
    for i in range(8): P(f"v_mul_f32 v{8+i}, v{8+i}, v{32+i}")
    rnd(8); rnd(16)
    for i in range(8): P(f"v_mul_f32 v{8+i}, v{8+i}, v{16+i}")
    rnd(8)
    P("WAITV x")
    for d in range(4): P(f"v_lshlrev_b32 v{16+2*d}, 16, v{4+d}\nv_and_b32 v{17+2*d}, s26, v{4+d}")
    for i in range(8): P(f"v_add_f32 v{8+i}, v{8+i}, v{16+i}")
    for d in range(4): P(f"v_cvt_pk_bf16_f32 v{24+d}, v{8+2*d}, v{9+2*d}")
    P("buffer_store_dwordx2 v[24:25], v2, s[8:11], s23 offen\nbuffer_store_dwordx2 v[26:27], v2, s[8:11], s23 offen offset:32")
    if OPT['stamp'] == 2:
        P("s_cmp_lg_u32 s2, 0\ns_cbranch_scc1 L_fexit")
        P(f"s_mov_b32 s48, {WS_STAMP}\nv_mov_b32 v1, 0\nbuffer_load_dword v4, v1, s[12:15], s48 offen offset:56\ns_waitcnt vmcnt(0)\nv_readfirstlane_b32 s50, v4\ns_nop 4")
        P("L_spin:\ns_memrealtime s[42:43]\ns_waitcnt lgkmcnt(0)\ns_sub_u32 s42, s42, s50\ns_cmp_lt_u32 s42, 10000\ns_cbranch_scc1 L_spin")
    if OPT['stamp'] == 1:
        P("s_waitcnt vmcnt(0)\ns_memrealtime s[42:43]\ns_mov_b32 s46, 256\ns_mov_b32 s47, 0x20000\ns_waitcnt lgkmcnt(0)")
        P("v_lshlrev_b32 v1, 8, v0\nv_mov_b32 v3, s42\nbuffer_atomic_umax v3, v1, s[44:47], 0 offen offset:12")
        P("s_cmp_lg_u32 s2, 0\ns_cbranch_scc1 L_fexit")
        P(f"s_mov_b32 s48, {WS_STAMP}\nbuffer_load_dwordx2 v[4:5], v1, s[12:15], s48 offen offset:56\nv_mov_b32 v6, 0\nv_mov_b32 v7, s40\ns_waitcnt vmcnt(0)\nv_not_b32 v4, v4")
        P("buffer_atomic_umax v4, v6, s[44:47], 0 offen\nbuffer_atomic_umax v5, v6, s[44:47], 0 offen offset:4\nbuffer_store_dword v7, v1, s[44:47], 0 offen offset:8")
        P(f"v_lshlrev_b32 v1, 2, v0\ns_mov_b32 s48, {WS_STAMP + OPT['dbgwg']*256}\nbuffer_load_dword v4, v1, s[12:15], s48 offen\nv_add_u32 v1, 16, v1\ns_mov_b32 s46, 64\ns_waitcnt vmcnt(0)\nbuffer_store_dword v4, v1, s[44:47], 0 offen")
    P("L_fexit:\ns_endpgm")
    return P.l
```

```python
import sys, math
from asmlib import *

OPT = dict(wcost=16, fuse=1, stmod=1, dbgwg=64, nosilu=0, nodma=0, nobar=0, nost=0, pd1=7, pd2=3, stamp=0, ffn=1, attn=1, verbose=0, rot=1, pfw=1, pfcode=1)
for a in sys.argv[1:]:
    k, v = a.split('='); OPT[k] = int(v)

STMOD = ['', ' sc1', ' nt', ' sc0 sc1', ' sc1 nt'][OPT['stmod']]
NAME = "recurrent_scan__sliding_local_dilated__dense_activation_silu__prompt"
LOG2E = 1.4426950408889634
LN2 = 0.6931471805599453
import struct
def f2u(f): return struct.unpack('<I', struct.pack('<f', f))[0]
def hx(f): return "0x%08x" % f2u(f)

WS_P = 0
WS_HALO = 40 << 20
WS_FLAG = 44 << 20
WS_STAMP = 48 << 20
WS_BYTES = 64 << 20
LDS_BYTES = 155648

sX, sWA, sWB, sWS, sDBG = 's[12:15]', 's[16:19]', 's[20:23]', 's[24:27]', 's[28:31]'
sM, sSL, sWV, sROT, sMEM = 's32', 's33', 's34', 's35', 's36'

def vr(a, n): return f"v[{a}:{a+n-1}]" if n > 1 else f"v{a}"
def ar(a, n): return f"a[{a}:{a+n-1}]" if n > 1 else f"a{a}"

stamp_n = [0]
def stamp(P, idx):
    if not OPT['stamp']: return
    P(f"s_memtime s[78:79]\ns_waitcnt lgkmcnt(0)\ns_mov_b32 s{80+idx}, s78")
def stamp_flush(P, n):
    if not OPT['stamp']: return
    P(f"s_memrealtime s[78:79]\ns_waitcnt lgkmcnt(0)\ns_mov_b32 s{80+15}, s78")
    P(f"s_lshl_b32 s76, s2, 2\ns_add_u32 s76, s76, {sWV}\ns_lshl_b32 s76, s76, 6\ns_add_u32 s76, s76, {WS_STAMP}")
    P("v_mov_b32 v1, 0")
    for i in range(4):
        for j in range(4): P(f"v_mov_b32 v{4+j}, s{80+4*i+j}")
        P(f"buffer_store_dwordx4 v[4:7], v1, {sWS}, s76 offen offset:{16*i}")
        P("s_nop 1")

def round_bf16(P, dst, src):
    P(f"v_cvt_pk_bf16_f32 {dst}, {src}, {src}\nv_and_b32 {dst}, 0xffff0000, {dst}")

def ln_stats(P, vsum, vsq, vnegm, vr_, tmp):
    P(f"v_mul_f32 {vsum}, {hx(1/576)}, {vsum}")
    P(f"v_mul_f32 {vsq}, {hx(1/576)}, {vsq}")
    P(f"v_fma_f32 {vsq}, -{vsum}, {vsum}, {vsq}")
    P(f"v_max_f32 {vsq}, 0, {vsq}")
    round_bf16(P, vnegm, vsum)
    P(f"v_xor_b32 {vnegm}, 0x80000000, {vnegm}")
    round_bf16(P, vsq, vsq)
    P(f"v_add_f32 {vsq}, {hx(1e-5)}, {vsq}")
    round_bf16(P, vsq, vsq)
    P(f"v_sqrt_f32 {vsq}, {vsq}")
    round_bf16(P, vsq, vsq)
    P(f"v_rcp_f32 {vr_}, {vsq}")

def sel_consts(P, vsel, t0, t1, t2):
    P(f"v_mov_b32 v{vsel}, 0\nv_mov_b32 v{vsel+1}, 0\nv_mov_b32 v{vsel+4}, 0\nv_mov_b32 v{vsel+5}, 0")
    P(f"v_and_b32 {t0}, 1, v0\nv_lshlrev_b32 {t0}, 4, {t0}\nv_mov_b32 {t1}, 0x3f80\nv_lshlrev_b32 {t0}, {t0}, {t1}")
    P(f"v_bfe_u32 {t1}, v0, 2, 2\nv_lshrrev_b32 {t2}, 4, v0")
    P(f"v_cmp_eq_u32 vcc, {t1}, {t2}\nv_cndmask_b32 {t0}, 0, {t0}, vcc")
    P(f"v_and_b32 {t1}, 2, v0\nv_cmp_eq_u32 vcc, 0, {t1}")
    P(f"v_cndmask_b32 v{vsel+2}, 0, {t0}, vcc\nv_cndmask_b32 v{vsel+3}, {t0}, v{vsel}, vcc")

def common_prologue(P):
    P("s_cmp_ge_u32 s2, 256\ns_cbranch_scc1 L_exit")
    P("s_load_dwordx4 s[4:7], s[0:1], 0\ns_load_dwordx2 s[8:9], s[0:1], 16\ns_load_dwordx4 s[40:43], s[0:1], 32\ns_load_dwordx4 s[44:47], s[0:1], 56")
    P(f"v_lshrrev_b32 v1, 6, v0\nv_lshlrev_b32 v46, 7, v0\nv_readfirstlane_b32 {sWV}, v1\nv_and_b32 v0, 63, v0")
    if OPT['stamp']:
        for i in range(80, 96): P(f's_mov_b32 s{i}, 0')
        P("s_memrealtime s[78:79]\ns_memtime s[76:77]")
    P("s_and_b32 s37, s2, 1\ns_lshl_b32 s37, s37, 3")
    P("s_bfe_u32 s38, s2, 0x20001")
    P(f"s_lshr_b32 s39, s2, 3\ns_and_b32 {sMEM}, s39, 7\ns_add_u32 {sM}, s37, {sMEM}")
    P(f"s_lshr_b32 {sROT}, s39, 3\ns_sub_u32 {sROT}, {sROT}, 1\ns_mul_i32 s50, {sROT}, 3\ns_cmp_lt_u32 s39, 8\ns_cselect_b32 s50, {sMEM}, s50")
    if not OPT['rot']: P(f"s_mov_b32 s50, 0")
    P(f"s_lshl_b32 s53, {sM}, 7\ns_lshl_b32 s54, {sWV}, 5\ns_add_u32 s53, s53, s54\ns_mul_i32 s53, s53, 1152")
    P(f"v_lshrrev_b32 v2, 3, v0\nv_mul_u32_u24 v2, 2304, v2\nv_lshrrev_b32 v3, 4, v0\nv_and_b32 v44, 7, v0\nv_xor_b32 v3, v3, v44\nv_lshlrev_b32 v3, 4, v3")
    P(f"v_add_u32 v44, v2, v3\nv_add_u32 v44, s53, v44\nv_xor_b32 v45, 64, v44\nv_add_u32 v45, {16*1152-1024}, v45")
    P(f"s_lshl_b32 s55, s50, 7\ns_mul_i32 s54, {sWV}, 12288")
    P("s_waitcnt lgkmcnt(0)")
    if OPT['stamp']: P("s_mov_b32 s94, s78\ns_mov_b32 s80, s76")
    P(f"s_mov_b32 s12, s4\ns_mov_b32 s13, s5\ns_mov_b32 s14, {2048*576*2}\ns_mov_b32 s15, 0x20000")
    P.add(xdma(0, 0)); P.add(xdma(0, 1)); P.add(xdma(0, 2))
    if OPT['pfcode']:
        P("s_getpc_b64 s[48:49]\ns_and_b32 s58, s39, 3\ns_lshl_b32 s58, s58, 15\nv_add_u32 v46, s58, v46")
        P("v_min_u32 v46, CODE_PF_MAX, v46\nglobal_load_dword v47, v46, s[48:49]", tag='dummy')
    P(f"s_mov_b32 s24, s46\ns_mov_b32 s25, s47\ns_mov_b32 s26, {WS_BYTES}\ns_mov_b32 s27, 0x20000")
    P(f"s_mov_b32 s28, s44\ns_mov_b32 s29, s45\ns_mov_b32 s30, 256\ns_mov_b32 s31, 0x20000")
    P("s_cmp_lt_u32 s39, 8\ns_cbranch_scc1 L_attn")

def xdma(st, S):
    Q = Prog()
    Q(f"s_add_u32 m0, s54, {st*49152+S*4096}\ns_add_u32 s56, s55, 1152")
    Q(f"buffer_load_dwordx4 v44, {sX}, s55 offen lds\nbuffer_load_dwordx4 v45, {sX}, s55 offen offset:1024 lds", tag=f"x{st}")
    Q(f"s_add_u32 m0, m0, 2048\ns_add_u32 s55, s55, 128")
    Q(f"buffer_load_dwordx4 v44, {sX}, s56 offen lds\nbuffer_load_dwordx4 v45, {sX}, s56 offen offset:1024 lds", tag=f"x{st}")
    Q(f"s_cmp_eq_u32 s55, 1152\ns_cselect_b32 s55, 0, s55")
    return Q.l

def weave(main, extra, every):
    out = []; k = 0; cnt = 0
    for idx, ins in enumerate(main):
        out.append(ins); cnt += 1
        nxt = main[idx + 1] if idx + 1 < len(main) else None
        safe = nxt is None or ('scc' not in nxt.rd and 'm0' not in nxt.rd)
        if k < len(extra) and cnt >= every and safe:
            out += extra[k]; k += 1; cnt = 0
    for g in extra[k:]: out += g
    return out

def xstats(P, st, frags, sums, sqs, post_reads=None, woven=None):
    P(f"WAITV x{st}")
    for n, (d, a, o, k) in enumerate(frags): P(f"ds_read_b128 {vr(d,4)}, v{a} offset:{o}", tag=f"xr{st}_{n}")
    body = []
    for n, (d, a, o, k) in enumerate(frags):
        if n in (0, 2, 4): body += mk(f"WAITL xr{st}_{n+1}")
        if n == 6:
            body += mk(f"WAITL xr{st}_11")
            if post_reads: body += post_reads
            P.add(body); body = []
        for j in range(4):
            body += mk(f"v_dot2c_f32_bf16 v{sums[k][j%2]}, s57, v{d+j}\nv_dot2c_f32_bf16 v{sqs[k][j%2]}, v{d+j}, v{d+j}")
    if woven: body = weave(body, woven, max(1, len(body) // (len(woven) + 1)))
    P.add(body)

RING = 24576; NSLOT = 5; HX = RING * NSLOT
vA1 = [[16, 17, 18], [19, 20, 21]]; vA2 = [[22, 23, 24], [25, 26, 27]]
vD1 = [28, 29, 30, 31]; vD2 = [32, 33, 34, 35]
vHW, vHR, vST = 36, 37, 38
ACC1 = 48; XR = 112
AF = 192

def flag_setup(P, vFLW, sj, tmpv):
    P(f"s_lshl_b32 s66, {sM}, 2\ns_add_u32 s66, s66, {sWV}\ns_lshl_b32 s66, s66, 7\ns_lshl_b32 s67, {sj}, 2\ns_add_u32 s66, s66, s67\ns_add_u32 s66, s66, {WS_FLAG}")
    P(f"v_mov_b32 v{vFLW}, s66\nv_cmp_eq_u32 vcc, 0, v0\nv_mov_b32 {tmpv}, 0\nv_cndmask_b32 v{vFLW}, -16, v{vFLW}, vcc")
    P(f"buffer_store_dword {tmpv}, v{vFLW}, {sWS}, 0 offen sc1", tag='fz')
def handshake(sj, va, vb):
    Q = Prog()
    Q(f"s_lshl_b32 s66, {sM}, 2\ns_and_b32 s67, {sj}, 3\ns_add_u32 s66, s66, s67\ns_lshl_b32 s66, s66, 2\ns_lshl_b32 s67, {sWV}, 8\ns_add_u32 s66, s66, s67")
    Q(f"v_lshlrev_b32 {va}, 8, v0\nv_add_u32 {va}, s66, {va}\nv_mov_b32 {vb}, 1")
    Q(f"buffer_atomic_add {vb}, {va}, {sDBG}, 0 offen sc1", tag='hsk', cost=8)
    return Q.l

def dgroups(lst):
    G = []; cur = []
    for x in lst:
        cur.append(x)
        if x.kind == 'vmem': G.append(cur); cur = []
    if cur: G[-1] += cur
    return G

def flat(groups): return [x for g in groups for x in g]

def ffn():
    P = Prog()
    P(f"s_mov_b32 s50, {sROT}" if OPT['rot'] else "s_mov_b32 s50, 0")
    P(f"s_add_u32 s51, s50, 1\ns_cmp_ge_u32 s51, 3\ns_cselect_b32 s51, 0, s51\ns_add_u32 s52, s51, 1\ns_cmp_ge_u32 s52, 3\ns_cselect_b32 s52, 0, s52")
    P(f"s_mul_i32 {sSL}, s38, 3\ns_add_u32 {sSL}, {sSL}, {sROT}")
    P(f"s_mov_b32 s16, s40\ns_mov_b32 s17, s41\ns_mov_b32 s18, {576*4608*2}\ns_mov_b32 s19, 0x20000")
    P(f"s_mov_b32 s20, s42\ns_mov_b32 s21, s43\ns_mov_b32 s22, {576*4608*2}\ns_mov_b32 s23, 0x20000")
    P(f"s_mul_i32 s59, {sSL}, 768")
    P(f"s_mul_i32 s63, {sSL}, {384*1152}\ns_mul_i32 s64, {sWV}, 6144")
    P("s_load_dwordx2 s[72:73], s[0:1], 48")
    vFLW = 39
    if OPT['fuse']: flag_setup(P, vFLW, sSL, 'v2')
    def pf_w(which):
        Q = Prog()
        if which == 1:
            Q(f"s_mul_i32 s66, {sMEM}, {72*9216}\ns_add_u32 s66, s66, s59\ns_lshl_b32 s67, {sWV}, 6\ns_mov_b32 s68, {-(-(1<<32)//6)}")
            for i in range(2):
                Q(f"v_add_u32 v10, s67, v0")
                if i: Q(f"v_add_u32 v10, 256, v10\nv_min_u32 v10, 431, v10")
                Q(f"v_mul_hi_u32 v11, v10, s68\nv_lshlrev_b32 v10, 7, v10\nv_mul_u32_u24 v11, {9216-768}, v11\nv_add_u32 v10, v10, v11")
                Q(f"buffer_load_dword v47, v10, {sWA}, s66 offen", tag='dummy', cost=8)
        else:
            Q(f"s_mul_i32 s66, {sMEM}, {432*128}\ns_add_u32 s66, s66, s63\ns_lshl_b32 s67, {sWV}, 6")
            for i in range(2):
                Q(f"v_add_u32 v45, s67, v0")
                if i: Q(f"v_add_u32 v45, 256, v45\nv_min_u32 v45, 431, v45")
                Q(f"v_lshlrev_b32 v45, 7, v45")
                Q(f"buffer_load_dword v47, v45, {sWB}, s66 offen", tag='dummy', cost=8)
        return Q.l
    P(f"v_lshrrev_b32 v2, 3, v0\nv_and_b32 v3, 7, v0")
    P(f"s_mul_i32 s58, {sWV}, 48\nv_add_u32 v4, s58, v2")
    P(f"v_bfe_u32 v5, v0, 4, 1\nv_lshlrev_b32 v5, 2, v5\nv_xor_b32 v5, v5, v3\nv_lshlrev_b32 v5, 4, v5")
    P(f"v_mul_u32_u24 v6, 9216, v4\nv_add_u32 v{vD1[0]}, v6, v5")
    for i in range(1, 4): P(f"v_add_u32 v{vD1[i]}, {i*(8*9216-1024)}, v{vD1[0]}")
    P(f"v_bfe_u32 v5, v0, 4, 2\nv_lshlrev_b32 v5, 1, v5\nv_xor_b32 v5, v5, v3\nv_lshlrev_b32 v5, 4, v5")
    P(f"v_mul_u32_u24 v6, 1152, v4\nv_add_u32 v{vD2[0]}, v6, v5")
    for i in range(1, 4): P(f"v_add_u32 v{vD2[i]}, {i*(8*1152-1024)}, v{vD2[0]}")
    for st in range(3): P(f"s_mul_i32 s{60+st}, s{50+st}, {192*9216}\ns_add_u32 s{60+st}, s{60+st}, s59")

    PA, PS = 40, 3
    g2 = [(0,0),(1,0),(2,0),(0,1),(1,1),(2,1)] + [(p,k) for p in range(3,9) for k in range(2)]
    def dma(s):
        slot = (s % NSLOT) * RING
        if s < 18:
            p, st = s // 3, s % 3
            srd, vD, base, add, big = sWA, vD1, f"s{60+st}", p * 128, 32 * 9216
        else:
            p, k = g2[s - 18]
            srd, vD, base, add, big = sWB, vD2, f"s{PA+p}", k * 192 * 1152, 32 * 1152
        t = f"d{s}"
        G = mk(f"s_add_u32 m0, s64, {slot}\ns_add_u32 s65, {base}, {add}")
        for i in range(4): G += mk(f"buffer_load_dwordx4 v{vD[i]}, {srd}, s65 offen offset:{1024*i} lds", tag=t, cost=8)
        G += mk(f"s_add_u32 m0, s64, {slot+4096}\ns_add_u32 s65, {base}, {add+big}")
        for i in range(2): G += mk(f"buffer_load_dwordx4 v{vD[i]}, {srd}, s65 offen offset:{1024*i} lds", tag=t, cost=8)
        return G
    P(f"v_lshrrev_b32 v2, 5, v0\nv_lshlrev_b32 v2, 12, v2\nv_bfe_u32 v3, v0, 2, 2\nv_lshlrev_b32 v3, 7, v3\nv_add_u32 v2, v2, v3")
    P(f"v_bfe_u32 v3, v0, 4, 1\nv_lshlrev_b32 v3, 5, v3\nv_add_u32 v2, v2, v3\nv_and_b32 v3, 3, v0\nv_lshlrev_b32 v3, 3, v3\nv_add_u32 v2, v2, v3")
    P(f"v_bfe_u32 v3, v0, 3, 1\nv_lshlrev_b32 v3, 6, v3\nv_add_u32 v{vA1[0][0]}, v2, v3\nv_xor_b32 v{vA1[1][0]}, 64, v{vA1[0][0]}")
    P(f"v_lshrrev_b32 v2, 2, v0\nv_lshlrev_b32 v2, 7, v2\nv_and_b32 v3, 3, v0\nv_lshlrev_b32 v3, 3, v3\nv_add_u32 v2, v2, v3")
    P(f"s_and_b32 s69, {sWV}, 1\ns_lshl_b32 s69, s69, 1\nv_bfe_u32 v3, v0, 3, 2\nv_xor_b32 v3, s69, v3\nv_lshlrev_b32 v3, 5, v3")
    P(f"v_add_u32 v{vA2[0][0]}, v2, v3\nv_xor_b32 v{vA2[1][0]}, 32, v{vA2[0][0]}")
    for vA in (vA1, vA2):
        for u in range(2):
            for b in (1, 2): P(f"v_add_u32 v{vA[u][b]}, {b*2*RING}, v{vA[u][0]}")
    P(f"v_bfe_u32 v2, v0, 4, 1\nv_lshlrev_b32 v2, 10, v2\nv_lshrrev_b32 v3, 5, v0\nv_lshlrev_b32 v3, 8, v3\nv_add_u32 v2, v2, v3")
    P(f"v_and_b32 v3, 15, v0\nv_lshlrev_b32 v3, 4, v3\nv_add_u32 v2, v2, v3\ns_lshl_b32 s69, {sWV}, 11\ns_add_u32 s69, s69, {HX}\nv_add_u32 v{vHW}, s69, v2")
    if OPT['fuse']: P(f"s_and_b32 s69, {sSL}, 3\ns_lshl_b32 s69, s69, 10\nv_xor_b32 v{vHW}, s69, v{vHW}")
    P(f"v_lshlrev_b32 v{vST}, 4, v0\ns_lshr_b32 s69, {sWV}, 1\ns_lshl_b32 s69, s69, 12\ns_add_u32 s69, s69, {HX}\nv_add_u32 v{vHR}, s69, v{vST}")
    P(f"s_lshl_b32 s70, {sM}, 4\ns_add_u32 s70, s70, {sSL}\ns_lshl_b32 s70, s70, 1\ns_lshr_b32 s69, {sWV}, 1\ns_add_u32 s70, s70, s69")
    P(f"s_mul_i32 s70, s70, 18\ns_and_b32 s69, {sWV}, 1\ns_add_u32 s70, s70, s69\ns_lshl_b32 s70, s70, 12")
    P(f"s_lshr_b32 s66, {sSL}, 2\ns_mul_i32 s67, {sM}, 43\ns_lshr_b32 s67, s67, 7")
    P(f"s_mul_i32 s68, s67, 3\ns_sub_u32 s68, {sM}, s68\ns_add_u32 s68, s68, s66\ns_add_u32 s68, s68, 1")
    P(f"s_cmp_ge_u32 s68, 3\ns_cselect_b32 s69, 3, 0\ns_sub_u32 s68, s68, s69")
    P(f"s_cmp_ge_u32 s67, 3\ns_cselect_b32 s69, 3, 0\ns_sub_u32 s67, s67, s69")
    if not OPT['fuse']: P("s_mov_b32 s67, 0\ns_mov_b32 s68, 0")
    for ph in range(3):
        for k in range(3):
            p = 3 * ph + k
            P(f"s_mul_i32 s69, s68, 3\ns_add_u32 s69, s69, s67\ns_lshl_b32 s{PA+p}, s69, 7\ns_add_u32 s{PA+p}, s{PA+p}, s63\ns_lshl_b32 s{PS+p}, s69, 13\ns_add_u32 s{PS+p}, s{PS+p}, s70")
            P("s_add_u32 s67, s67, 1\ns_cmp_eq_u32 s67, 3\ns_cselect_b32 s67, 0, s67")
        if ph < 2: P("s_add_u32 s68, s68, 1\ns_cmp_eq_u32 s68, 3\ns_cselect_b32 s68, 0, s68")
    JS = 147456
    P(f"s_and_b32 s67, {sSL}, 3")
    for d in range(4): P(f"s_xor_b32 s{96+d}, s67, {d}\ns_mul_i32 s{96+d}, s{96+d}, {JS}\ns_add_u32 s{96+d}, s{96+d}, {1024*d}")
    P(f"s_mul_i32 s71, {sSL}, {JS}\ns_lshl_b32 s50, s67, 10\ns_add_u32 s50, s50, {12*JS}\ns_sub_u32 s50, s50, s71")
    P(f"s_add_u32 s68, s66, 2\ns_cmp_ge_u32 s68, 3\ns_cselect_b32 s69, 3, 0\ns_sub_u32 s68, s68, s69")
    P(f"s_mul_i32 s100, s68, {4*JS}\ns_sub_u32 s100, s100, s71\ns_lshl_b32 s68, s68, 2\ns_lshl_b32 s51, 15, s68")
    P(f"s_add_u32 s68, s66, 1\ns_cmp_ge_u32 s68, 3\ns_cselect_b32 s68, 0, s68")
    P(f"s_mul_i32 s101, s68, {4*JS}\ns_sub_u32 s101, s101, s71\ns_lshl_b32 s68, s68, 2\ns_lshl_b32 s52, 15, s68")
    P(f"s_mul_i32 s49, s66, {4*JS}\ns_sub_u32 s49, s49, s71\ns_lshl_b32 s68, s66, 2\ns_lshl_b32 s53, 15, s68\ns_lshl_b32 s68, 1, {sSL}\ns_andn2_b32 s53, s53, s68\ns_or_b32 s53, s53, 0xf000")
    P(f"v_and_b32 v2, 31, v0\nv_lshlrev_b32 v2, 7, v2\nv_add_u32 v2, s54, v2\nv_bfe_u32 v3, v0, 1, 3\nv_lshrrev_b32 v4, 5, v0\nv_lshlrev_b32 v4, 2, v4\nv_xor_b32 v3, v3, v4\nv_lshlrev_b32 v3, 4, v3")
    P(f"v_add_u32 v80, v2, v3\nv_xor_b32 v81, 16, v80\nv_xor_b32 v82, 32, v80\nv_xor_b32 v83, 48, v80")
    for j in range(4): P(f"v_add_u32 v{84+j}, 98304, v{80+j}")
    SEL = 40
    P("v_and_b32 v2, 1, v0\nv_lshlrev_b32 v2, 4, v2\nv_mov_b32 v3, 0x3f80\nv_lshlrev_b32 v2, v2, v3")
    P("v_bfe_u32 v3, v0, 2, 1\nv_lshlrev_b32 v3, 1, v3\nv_lshrrev_b32 v4, 4, v0\nv_cmp_eq_u32 vcc, v3, v4\nv_cndmask_b32 v2, 0, v2, vcc")
    P("v_bfe_u32 v3, v0, 3, 1\nv_lshlrev_b32 v3, 1, v3\nv_bfe_u32 v4, v0, 1, 1\nv_add_u32 v3, v3, v4")
    for j in range(4): P(f"v_cmp_eq_u32 vcc, {j}, v3\nv_cndmask_b32 v{SEL+j}, 0, v2, vcc")
    P("v_mov_b32 v8, 0\nv_mov_b32 v9, 0\nv_mov_b32 v12, 0\nv_mov_b32 v13, 0\ns_mov_b32 s57, 0x3f803f80")
    P(f"s_waitcnt lgkmcnt(0)\ns_mov_b32 s74, {2048*576*2}\ns_mov_b32 s75, 0x20000")
    P.l = weave(P.l, [xdma(st, S) for st in (1, 2) for S in range(3)], len(P.l) // 7)
    stamp(P, 1)
    for st in range(3):
        fr = [(XR + 4 * (12 * st + f), (80 if st < 2 else 84) + f % 4, (st % 2) * 49152 + (f // 4) * 4096, 0) for f in range(12)]
        xstats(P, st, fr, [[8, 9]], [[12, 13]], mk("s_barrier") if st < 2 else None, dgroups(dma(st)))
        if st == 1: stamp(P, 2)
    P("v_add_f32 v8, v8, v9\nv_add_f32 v12, v12, v13\nv_mov_b32 v9, v8\nv_mov_b32 v13, v12\nv_permlane32_swap_b32 v8, v9\nv_permlane32_swap_b32 v12, v13\nv_add_f32 v8, v8, v9\nv_add_f32 v12, v12, v13")
    def um(F): return mk(f"v_mfma_f32_32x32x16_bf16 {vr(ACC1+32+16*(F%2),16)}, {vr(SEL,4)}, {vr(XR+4*F,4)}, 0")
    def nv(F):
        d = ACC1 + 32 + 16 * (F % 2); x = XR + 4 * F
        o = []
        for j in range(8): o += mk(f"v_fma_f32 v{d+j}, v{d+j}, v2, v3")
        for j in range(4): o += mk(f"v_cvt_pk_bf16_f32 v{x+j}, v{d+2*j}, v{d+2*j+1}")
        return o
    P.add(um(0)); P.add(um(1))
    ln_stats(P, 'v8', 'v12', 'v4', 'v2', 'v3')
    P(f"v_mul_f32 v2, {hx(LOG2E)}, v2\nv_mul_f32 v3, v4, v2")

    uses = []
    for p in range(6):
        for st in range(3):
            s = 3 * p + st; slot = s % NSLOT
            for S in range(3):
                for ss in range(4):
                    F = st * 12 + S * 4 + ss
                    for u in range(2):
                        n = len(uses); af = AF + 4 * (n % 16)
                        off = (slot % 2) * RING + (64 * S + 8 * ss) * 128
                        va = vA1[u][slot // 2]
                        rd = mk(f"ds_read_b64_tr_b16 {ar(af,2)}, v{va} offset:{off}\nds_read_b64_tr_b16 {ar(af+2,2)}, v{va} offset:{off+512}", tag=f"r{n}")
                        acc = vr(ACC1 + 32 * (p % 2) + 16 * u, 16)
                        mf = mk(f"v_mfma_f32_32x32x16_bf16 {acc}, {ar(af,4)}, {vr(XR+4*F,4)}, {'0' if F == 0 else acc}")
                        uses.append((s, rd, mf))
    N1 = len(uses)
    ACC2 = XR; STG = XR + 128
    for si, (p, k) in enumerate(g2):
        s = 18 + si; slot = s % NSLOT
        for kk in range(6):
            ks = 6 * k + kk
            for u in range(2):
                n = len(uses); af = AF + 4 * (n % 16)
                off = (slot % 2) * RING + 32 * kk * 128
                va = vA2[u][slot // 2]
                rd = mk(f"ds_read_b64_tr_b16 {ar(af,2)}, v{va} offset:{off}\nds_read_b64_tr_b16 {ar(af+2,2)}, v{va} offset:{off+2048}", tag=f"r{n}")
                mf = []
                for j in range(4):
                    acc = vr(ACC2 + 32 * (p % 4) + 8 * j + 4 * u, 4)
                    mf += mk(f"v_mfma_f32_16x16x32_bf16 {acc}, {ar(af,4)}, {ar(16*ks+4*j,4)}, {'0' if ks == 0 else acc}")
                uses.append((s, rd, mf))
    NU = len(uses)
    PD1, PD2 = OPT['pd1'], OPT['pd2']
    rd_at = {}
    for n in range(NU):
        if n < N1: g = n - PD1
        else:
            g = n - PD2
            if g < N1: g = N1 - 1 - 2 * (N1 - 1 - g)
        rd_at.setdefault(g, []).append(n)
    bar_at = {}
    for g in sorted(rd_at):
        for n in rd_at[g]:
            s = uses[n][0]
            if s not in bar_at: bar_at[s] = g
    extra_lw = {}
    def hw_tag(ks): return f"hw{ks}"
    def rstage(ks):
        p = ks // 2
        if p <= 3: return 3 * (p + 2) + 1
        if p == 4: return 19
        return 21
    for ks in range(1, 12, 2): extra_lw[rstage(ks)] = hw_tag(ks)
    def barrier(s):
        if s in extra_lw: return mk(f"WAITVL d{s}, {extra_lw[s]}\ns_barrier")
        return mk(f"WAITV d{s}\ns_barrier")
    P.add(barrier(0))
    for g in sorted(rd_at):
        if g < 0:
            for n in rd_at[g]: P.add(uses[n][1])
    P.add(nv(0))
    P("WAITL r3")
    stamp(P, 3)
    SC = Sched()
    gi = {}
    gu = {}
    for n in range(NU):
        mf = uses[n][2]
        if n < 72 and n % 2 == 0 and n // 2 + 2 < 36:
            gu[n // 2 + 2] = SC.gap(um(n // 2 + 2), 32)
        bar = []
        for s, g in bar_at.items():
            if g == n: bar = barrier(s)
        rds = []
        for nn in rd_at.get(n, []): rds += uses[nn][1]
        if n < N1:
            g = SC.gap(mf, 32); gi[n] = g
            SC.mand[g] += bar + rds
            if n % 4 == 3 and n + 1 < N1: SC.tail[g] += mk(f"WAITL r{n+4}")
            if n == N1 - 1: SC.tail[g] += mk(f"WAITL r{n+2}")
        else:
            gs = [SC.gap([m], 16) for m in mf]; gi[n] = gs[0]
            if bar:
                SC.mand[gs[0]] += bar
                for i, t in enumerate(rds): SC.mand[gs[1 + i]].append(t)
            else:
                for i, t in enumerate(rds): SC.mand[gs[2 * i]].append(t)
            if (n - N1) % 2 == 1 and n + 1 < NU: SC.tail[gs[3]] += mk(f"WAITL r{n+2}")
    gi[NU] = len(SC.head)

    def silu(ks):
        p, u = ks // 2, ks % 2
        a = ACC1 + 32 * (p % 2) + 16 * u
        F = []
        T = [1, 2, 3, 4, 5, 6, 7, 46]
        stg = 8
        def E(q, j): return mk(f"v_exp_f32_e64 v{T[4*(q%2)+j]}, -v{a+4*q+j}")
        def Ad(q, j): return mk(f"v_add_f32 v{T[4*(q%2)+j]}, 1.0, v{T[4*(q%2)+j]}")
        def R(q, j): return mk(f"v_rcp_f32 v{T[4*(q%2)+j]}, v{T[4*(q%2)+j]}")
        def M(q, j): return mk(f"v_mul_f32 v{T[4*(q%2)+j]}, v{a+4*q+j}, v{T[4*(q%2)+j]}")
        def C(q):
            d = stg + 4 * (q % 2) + 2 * (q // 2); t = T[4*(q%2):4*(q%2)+4]
            o = mk(f"v_cvt_pk_bf16_f32 v{d}, v{t[0]}, v{t[1]}\nv_cvt_pk_bf16_f32 v{d+1}, v{t[2]}, v{t[3]}")
            if q >= 2: o += mk(f"ds_write_b128 v{vHW}, {vr(stg+4*(q%2),4)} offset:{(ks%4)*8192+512*(q%2)}", tag=hw_tag(ks), cost=OPT['wcost'])
            return o
        for q in range(4):
            F += E(q, 0) + E(q, 1)
            F += E(q, 2) + Ad(q, 0) + Ad(q, 1)
            F += E(q, 3) + Ad(q, 2)
            F += R(q, 0) + Ad(q, 3)
            F += R(q, 1) + M(q, 0)
            F += R(q, 2) + M(q, 1)
            F += R(q, 3) + M(q, 2)
            c = C(q)
            F += [c[0]] + M(q, 3) + c[1:]
        return F
    def hread(ks):
        return flat([mk(f"ds_read_b128 {ar(16*ks+4*j,4)}, v{vHR} offset:{(ks%4)*8192+1024*j}", tag=f"hr{ks}") for j in range(4)])
    def epi(p):
        a = ACC2 + 32 * (p % 4)
        F = []
        for j in range(4):
            if OPT['fuse'] and p >= 6 and j == 0: continue
            for u in range(2):
                for h in range(2): F += mk(f"v_cvt_pk_bf16_f32 v{STG+4*j+2*u+h}, v{a+8*j+4*u+2*h}, v{a+8*j+4*u+2*h+1}")
            F += mk(f"buffer_store_dwordx4 {vr(STG+4*j,4)}, v{vST}, {sWS}, s{PS+p} offen offset:{1024*j}{STMOD}", tag=f'st{p}', cost=8)
        return F

    for s in range(0, 33):
        g0 = gi[bar_at[s]] + 1 if bar_at[s] >= 0 else 0
        g1 = gi[bar_at[s + 1]]
        SC.place(dma(s + 3), g0, g1, 'spread', f'dma{s+3}')
    for ks in range(12):
        g0 = gi[bar_at[rstage(ks)]] + 1 + (ks % 2) * 8
        SC.place(hread(ks), g0, g0 + 8, 'spread', f'hr{ks}')
    if OPT['fuse']: SC.place(handshake(sSL, 'v10', 'v11'), 1, 30, 'spread', 'hsk')
    if OPT['pfw'] & 1: SC.place(pf_w(1), 30, 80, 'spread', 'pf1')
    if OPT['pfw'] & 2: SC.place(pf_w(2), gi[150], gi[290], 'spread', 'pf2')
    for F in range(1, 36):
        g0 = gu.get(F + 1, gi[2 * (F - 1)]); g1 = gi[2 * (F - 1) + 1] + 1
        SC.place(nv(F), g0, g1, 'asap', f'nv{F}')
    for p in range(5):
        b = 72 * (p + 1)
        SC.place(silu(2 * p) + silu(2 * p + 1), gi[b + 2], gi[b + 72], 'asap', f'silu{p}')
    SC.place(silu(10) + silu(11), gi[N1] + 6, gi[bar_at[21]] - 2, 'asap', 'silu5')
    last_stage = {}
    for si, (p, k) in enumerate(g2):
        if k == 1: last_stage[p] = si
    for p in range(8):
        g0 = gi[N1 + 12 * (last_stage[p] + 1)] + 5
        SC.place(epi(p), g0, g0 + 42, 'spread', f'epi{p}')
    slow = []
    def gs(si, off=0): return gi[N1 + 12 * si] + off
    if OPT['fuse']:
        S16 = 16; vFR, vFV, vXO, vC = 28, 29, 30, 31
        SQ = Prog(); sel_consts(SQ, S16, 'v40', 'v41', 'v42')
        SQ(f"s_lshl_b32 s66, {sM}, 2\ns_add_u32 s67, s66, {sWV}\ns_lshl_b32 s67, s67, 7\ns_and_b32 s68, {sWV}, 2\ns_add_u32 s66, s66, s68\ns_bfe_u32 s68, {sSL}, 0x10001\ns_add_u32 s66, s66, s68\ns_lshl_b32 s66, s66, 7")
        SQ(f"v_and_b32 v40, 15, v0\nv_mov_b32 v41, s67\nv_mov_b32 v42, s66\nv_cmp_gt_u32 vcc, 12, v40\nv_lshlrev_b32 v40, 2, v40\nv_add_u32 v40, {WS_FLAG}, v40\nv_cndmask_b32 v41, v42, v41, vcc\nv_add_u32 v{vFR}, v40, v41")
        SQ(f"s_lshl_b32 s66, {sM}, 7\ns_and_b32 s67, {sWV}, 2\ns_lshl_b32 s67, s67, 5\ns_add_u32 s66, s66, s67\ns_and_b32 s67, {sSL}, 2\ns_lshl_b32 s67, s67, 4\ns_add_u32 s66, s66, s67\ns_and_b32 s67, {sSL}, 1\ns_add_u32 s66, s66, s67")
        SQ(f"v_and_b32 v40, 15, v0\nv_lshlrev_b32 v40, 1, v40\nv_add_u32 v40, s66, v40\nv_mul_u32_u24 v40, 1152, v40\nv_lshrrev_b32 v41, 4, v0\nv_lshlrev_b32 v41, 3, v41\ns_and_b32 s67, {sWV}, 1\ns_lshl_b32 s67, s67, 6\nv_add3_u32 v{vXO}, v40, v41, s67")
        SQ(f"s_lshl_b32 s66, {sM}, 4\nv_and_b32 v43, 3, v0\nv_lshlrev_b32 v43, 2, v43\nv_add_u32 v43, s66, v43")
        SQ(f"buffer_load_dword v{vFV}, v43, {sDBG}, 0 offen sc1", tag='hc', cost=8)
        SC.place(SQ.l, gs(6, 10), gs(9), 'asap', 'tailsetup')
        def site(name, load, tag, chk, g0, g1):
            L = mk(f"WAITV {tag}") + mk(chk) + mk(f"s_cbranch_scc0 L_slow{name}\nL_back{name}:")
            head, tailp = L[:-4], L[-4:]
            pos = SC.place(head, g0, g1, 'asap', name)
            SC.fill[pos[-1] + 1] += tailp
            slow.extend(mk(f"L_slow{name}:\ns_mov_b32 s68, 0\nL_spin{name}:\n{load}\ns_waitcnt vmcnt(0)\n{chk}\ns_cbranch_scc1 L_back{name}\ns_sleep 1\ns_add_u32 s68, s68, 1\ns_cmp_lt_u32 s68, 0x80000\ns_cbranch_scc1 L_spin{name}\ns_branch L_back{name}", cond=True))
            return pos[-1] + 2
        hload = f"buffer_load_dword v{vFV}, v43, {sDBG}, 0 offen sc1"
        site('H', hload, 'hc', f"v_and_b32 v{vFV}, 0xff, v{vFV}\nv_cmp_eq_u32 vcc, 4, v{vFV}\ns_and_b32 s66, vcc_lo, 15\ns_cmp_eq_u32 s66, 15", gs(10, 6), gs(11))
        fload = f"buffer_load_dword v{vFV}, v{vFR}, {sWS}, 0 offen sc1"
        def chk(thr, mask): return f"v_cmp_le_u32 vcc, {thr}, v{vFV}\ns_and_b32 s66, vcc_lo, {mask}\ns_cmp_eq_u32 s66, {mask}"
        def flagst(val, tag): return mk(f"v_mov_b32 v{vC}, {val}") + mk(f"WAITV {tag}") + mk(f"buffer_store_dword v{vC}, v{vFLW}, {sWS}, 0 offen sc1", tag=f'fl{val}', cost=8)
        SC.place(flagst(1, 'st2'), gs(8, 20), gs(9, 20), 'asap', 'flag1')
        SC.place(flagst(2, 'st5'), gs(14, 0), gs(15), 'asap', 'flag2')
        RA = [48 + 4 * n for n in range(12)]
        RB = [96, 100, 104, 108] + [ACC2 + 32 + 4 * n for n in range(8)]
        def ploads(regs, sdelta, tag, ds, kind='v'):
            L = []; n = 0
            for k in range(3):
                L += mk(f"s_add_u32 s67, s{PS+6+k}, {sdelta}")
                for d in ds:
                    L += mk(f"s_add_u32 s69, s67, s{96+d}")
                    L += mk(f"buffer_load_dwordx4 {kind}[{regs[n]}:{regs[n]+3}], v{vST}, {sWS}, s69 offen sc1", tag=f"{tag}{k}", cost=8); n += 1
            return L
        SC.place(mk(fload, tag='pa', cost=8), gs(11, 6), gs(12), 'asap', 'pa')
        g = site('A', fload, 'pa', chk(1, 's51'), gs(12, 30), gs(13, 10))
        SC.place(ploads(RA, 's100', 'la', range(4)), g, gs(15, 30), 'spread', 'la')
        SC.place(mk(fload, tag='pb', cost=8), gs(15, 30), gs(16), 'asap', 'pb')
        g = site('B', fload, 'pb', chk(2, 's52'), gs(16, 36), gs(17, 10))
        SC.place(ploads(RB, 's101', 'lb', range(4)), g, len(SC.head), 'asap', 'lb')
    print("; overflow cycles: pass0 %d, pass1-5 %d, gemm2 %d" % (SC.overflow(0, gi[72]), SC.overflow(gi[72], gi[N1]), SC.overflow(gi[N1])), file=sys.stderr)
    marks = [gi[72], gi[144], gi[N1], gi[N1 + 72]]
    prev = 0
    for i, g in enumerate(marks):
        P.add(SC.emit(prev, g)); stamp(P, 4 + i); prev = g
    P.add(SC.emit(prev))
    P.add(epi(8))
    k0 = [i for i, x in enumerate(P.l) if x.text.startswith('WAITL r3')][0]
    def keep(x):
        if OPT['nosilu'] and x.base in ('v_exp_f32', 'v_rcp_f32', 'v_add_f32', 'v_mul_f32'): return False
        if OPT['nodma'] and x.kind == 'vmem' and 'lds' in x.mods: return False
        if OPT['nodma'] and x.op == 'WAITV': return False
        if OPT['nobar'] and x.kind == 'bar': return False
        if OPT['nost'] and (x.tag or '').startswith('st'): return False
        return True
    def fix(x):
        if OPT['nodma'] and x.op == 'WAITVL': return I('WAITL ' + x.ops[1])
        return x
    P.l = P.l[:k0] + [fix(x) for x in P.l[k0:] if keep(x)]
    stamp(P, 8)
    if OPT['fuse']:
        XV = 4
        for k in range(3):
            P(f"s_sub_u32 s{60+k}, s{PA+6+k}, s63")
            P(f"buffer_load_dwordx2 {vr(XV+4*k,2)}, v{vXO}, {sX}, s{60+k} offen\nbuffer_load_dwordx2 {vr(XV+4*k+2,2)}, v{vXO}, {sX}, s{60+k} offen offset:32", tag='xo')
        G = [ACC2 + 32 * ((6 + k) % 4) for k in range(3)]
        SS = [g + 8 for g in G]
        def accum(dst, src, first=False):
            return mk(f"v_mfma_f32_16x16x32_bf16 {vr(dst,4)}, {vr(S16+2,4)}, {src}, {'0' if first else vr(dst,4)}\nv_mfma_f32_16x16x32_bf16 {vr(dst+4,4)}, {vr(S16,4)}, {src}, {'0' if first else vr(dst+4,4)}")
        P("WAITV la2")
        for n in range(12): P.add(accum(G[n // 4], vr(RA[n], 4)))
        P("WAITV lb2")
        for n in range(12): P.add(accum(G[n // 4], vr(RB[n], 4)))
        P.add(flagst(3, 'st8'))
        stamp(P, 9)
        P(f"s_mov_b32 s68, 0\nL_spinC:")
        P(fload + "\ns_waitcnt vmcnt(0)\n" + chk(3, 's53') + "\ns_cbranch_scc1 L_doneC\ns_add_u32 s68, s68, 1\ns_cmp_lt_u32 s68, 0x80000\ns_cbranch_scc1 L_spinC\nL_doneC:")
        stamp(P, 10)
        for k in range(3):
            P(f"s_add_u32 s67, s{PS+6+k}, s49")
            for d in range(1, 4): P(f"s_add_u32 s69, s67, s{96+d}\nbuffer_load_dwordx4 {ar(28*k+4*(d-1),4)}, v{vST}, {sWS}, s69 offen sc1", tag=f"lc{k}")
            P(f"s_add_u32 s69, s{PS+6+k}, s50")
            for g in range(4):
                P(f"buffer_load_dwordx4 {ar(28*k+12+4*g,4)}, v{vST}, {sWS}, s69 offen sc1", tag=f"lc{k}")
                if g < 3: P(f"s_add_u32 s69, s69, {JS}")
        P("s_mov_b32 s66, 0xffff0000")
        for k in range(3):
            P(f"WAITV lc{k}")
            for d in range(3): P.add(accum(G[k], ar(28 * k + 4 * d, 4)))
            for g in range(4): P.add(accum(SS[k], ar(28 * k + 12 + 4 * g, 4), g == 0))
            g_, s_, t_, pk = G[k], SS[k], G[k] + 16, G[k] + 24
            def rnd(b):
                for d in range(4): P(f"v_cvt_pk_bf16_f32 v{pk+d}, v{b+2*d}, v{b+2*d+1}")
                for d in range(4): P(f"v_lshlrev_b32 v{b+2*d}, 16, v{pk+d}\nv_and_b32 v{b+2*d+1}, s66, v{pk+d}")
            for i in range(8): P(f"v_mul_f32 v{g_+i}, {hx(LN2)}, v{g_+i}")
            rnd(g_)
            for i in range(8): P(f"v_mul_f32 v{t_+i}, {hx(-LOG2E)}, v{g_+i}")
            for i in range(8): P(f"v_exp_f32 v{t_+i}, v{t_+i}")
            for i in range(8): P(f"v_add_f32 v{t_+i}, 1.0, v{t_+i}")
            for i in range(8): P(f"v_rcp_f32 v{t_+i}, v{t_+i}")
            for i in range(8): P(f"v_mul_f32 v{g_+i}, v{g_+i}, v{t_+i}")
            rnd(g_); rnd(s_)
            for i in range(8): P(f"v_mul_f32 v{g_+i}, v{g_+i}, v{s_+i}")
            rnd(g_)
            for d in range(4): P(f"v_lshlrev_b32 v{s_+2*d}, 16, v{XV+4*k+d}\nv_and_b32 v{s_+2*d+1}, s66, v{XV+4*k+d}")
            for i in range(8): P(f"v_add_f32 v{g_+i}, v{g_+i}, v{s_+i}")
            for d in range(4): P(f"v_cvt_pk_bf16_f32 v{pk+d}, v{g_+2*d}, v{g_+2*d+1}")
            P(f"buffer_store_dwordx2 {vr(pk,2)}, v{vXO}, s[72:75], s{60+k} offen\nbuffer_store_dwordx2 {vr(pk+2,2)}, v{vXO}, s[72:75], s{60+k} offen offset:32")
        stamp(P, 11)
    stamp_flush(P, 12)
    P("s_endpgm")
    P.add(slow)
    return P.l

def attn():
    P = Prog()
    P("s_endpgm")
    return P.l

def final():
    P = Prog()
    P("s_endpgm")
    return P.l

def finish(lst):
    lst = resolve_waits(lst)
    lst, nfix = fix_hazards(lst, OPT['verbose'])
    errs = check_scoreboard(lst)
    for e in errs[:20]: print("; SCOREBOARD ERR", e, file=sys.stderr)
    assert not errs
    lst, mis, sz = align_pass(lst)
    print(f"; hazard nops inserted: {nfix}, instrs: {len(lst)}, misaligned {mis}, bytes {sz}", file=sys.stderr)
    return lst

def main():
    try:
        import gen_attn
    except ImportError:
        gen_attn = None
    P0 = Prog(); common_prologue(P0)
    f = finish(P0.l + ffn())[:]
    a = finish(P0.l + (gen_attn.attn(globals()) if gen_attn and OPT['attn'] else attn()))
    a = a[[i for i, x in enumerate(a) if x.text.startswith('s_cbranch_scc1 L_attn')][0] + 1:]
    k2 = finish(gen_attn.final(globals()) if gen_attn else final())
    out = []
    MK = NAME + "_kernel" if OPT['fuse'] else "main_kernel"
    if OPT['fuse']: out.append(f"; @launch grid=(256,1,1) block=(256,1,1) lds={LDS_BYTES}")
    else:
        out.append(f"; @launch kernel=main_kernel grid=(256,1,1) block=(256,1,1) lds={LDS_BYTES}")
        out.append(f"; @launch kernel=final_kernel grid=(576,1,1) block=(256,1,1) lds=0")
    out.append('.amdgcn_target "amdgcn-amd-amdhsa--gfx950"\n.text')
    out.append(f".globl {MK}\n.p2align 8\n.type {MK},@function\n{MK}:\nL_main_start:")
    out += [x.text for x in f]
    out.append(".p2align 6\nL_attn:")
    out += [x.text for x in a]
    out.append("L_exit:\ns_endpgm\nL_main_end:")
    if not OPT['fuse']:
        out.append(".globl final_kernel\n.p2align 8\n.type final_kernel,@function\nfinal_kernel:")
        out += [x.text for x in k2]
    out.append('.section .rodata,"a"')
    for nm, nv, ao in ((MK, 512, 256), ("final_kernel", 96, 96))[:1 if OPT['fuse'] else 2]:
        out.append(f".p2align 6\n.amdhsa_kernel {nm}\n  .amdhsa_next_free_vgpr {nv}\n  .amdhsa_next_free_sgpr 102\n  .amdhsa_accum_offset {ao}\n  .amdhsa_group_segment_fixed_size 0\n  .amdhsa_kernarg_size 72\n  .amdhsa_user_sgpr_count 2\n  .amdhsa_user_sgpr_kernarg_segment_ptr 1\n  .amdhsa_system_sgpr_workgroup_id_x 1\n  .amdhsa_float_denorm_mode_32 3\n.end_amdhsa_kernel")
    txt = "\n".join(out) + "\n"
    import subprocess, re as _re, tempfile, os
    d = tempfile.mkdtemp()
    open(d + "/a.s", "w").write(txt.replace("CODE_PF_MAX", "0x12345"))
    r = subprocess.run(["clang", "-x", "assembler", "-target", "amdgcn-amd-amdhsa", "-mcpu=gfx950", "-c", d + "/a.s", "-o", d + "/a.o"], capture_output=True, text=True)
    assert r.returncode == 0, r.stderr
    sy = subprocess.run(["llvm-readelf", "-s", d + "/a.o"], capture_output=True, text=True).stdout
    def sym(n): return int([l for l in sy.splitlines() if l.strip().endswith(" " + n)][0].split()[1], 16)
    size = sym("L_main_end") - sym("L_main_start")
    print(f"; main code bytes {size}, attn at {sym('L_attn')}", file=sys.stderr)
    print(txt.replace("CODE_PF_MAX", str(size - 1024)))

if __name__ == "__main__":
    main()
```

```python
import sys
from asmlib import *

def attn(G):
    globals().update({k: v for k, v in G.items() if not k.startswith('__') and k not in ('attn', 'final')})
    P = Prog()
    ARING = 18432; ANS = 6; EX = ARING * ANS
    ACC = 40; XR = 112; AF = 192
    KO, KP, VV = 0, 36, 72
    vDQ = [16, 17, 18, 19, 20]; vDW = [21, 22, 23, 24, 25]
    vRX = [26, 27]; vRR = [28, 29]
    vEW, vEP, vST, vFL = 30, 31, 32, 33
    vFLW = 39
    sG = sSL
    TQ = 58
    TW = 67
    TS = 40
    sLB = 's3'
    sHS = 's[8:11]'
    sFS = 's[4:7]'
    HOFF = 's100'
    P(f"s_mov_b32 {sG}, s38")
    P(f"s_mov_b32 s16, s6\ns_mov_b32 s17, s7\ns_mov_b32 s18, {576*1728*2}\ns_mov_b32 s19, 0x20000")
    P(f"s_mov_b32 s20, s8\ns_mov_b32 s21, s9\ns_mov_b32 s22, {576*576*2}\ns_mov_b32 s23, 0x20000")
    P(f"s_cmp_eq_u32 {sWV}, 3\ns_cselect_b32 s10, {WS_BYTES}, 0\ns_cselect_b32 s6, 256, 0")
    P(f"s_mov_b32 s8, s46\ns_mov_b32 s9, s47\ns_mov_b32 s11, 0x20000")
    P(f"s_mov_b32 s4, s44\ns_mov_b32 s5, s45\ns_mov_b32 s7, 0x20000")
    if OPT['fuse']:
        P(f"s_add_u32 s96, {sG}, 12")
        flag_setup(P, vFLW, 's96', 'v2')
        hsk = handshake('s96', 'v1', 'v38')
        P.add(hsk[:-1])
    P(f"s_mul_i32 s49, {sWV}, 9\ns_lshr_b32 s49, s49, 1\ns_lshl_b32 {sLB}, s49, 10")
    P(f"s_mul_i32 s51, {sG}, 288")
    for st in range(9):
        P(f"s_mov_b32 s{TW+st}, s50\ns_mul_i32 s{TQ+st}, s50, {64*3456}\ns_add_u32 s{TQ+st}, s{TQ+st}, s51")
        if st < 8: P(f"s_add_u32 s50, s50, 1\ns_cmp_eq_u32 s50, 9\ns_cselect_b32 s50, 0, s50")
    P(f"s_mov_b32 s96, {-(-(1<<32)//18)}\ns_lshl_b32 s97, s49, 6\ns_mov_b32 s98, 3456")
    for n in range(5):
        imm = 1024 * n if n < 4 else 0
        P(f"v_add_u32 v2, s97, v0")
        if n < 4: P(f"s_add_u32 s97, s97, 64")
        P(f"v_mul_hi_u32 v3, v2, s96\nv_mul_u32_u24 v4, 18, v3\nv_sub_u32 v2, v2, v4\nv_lshlrev_b32 v2, 4, v2")
        P(f"v_and_b32 v4, 35, v3\nv_bfe_u32 v5, v3, 2, 2\nv_lshl_add_u32 v4, v5, 3, v4\nv_bfe_u32 v5, v3, 4, 1\nv_lshl_add_u32 v4, v5, 2, v4")
        P(f"v_mad_u32_u24 v{vDQ[n]}, v4, s98, v2")
        if imm: P(f"v_subrev_u32 v{vDQ[n]}, {imm}, v{vDQ[n]}")
    D = Prog()
    D(f"v_lshlrev_b32 v{vST}, 4, v0\ns_mul_i32 s96, {sWV}, 9216\ns_add_u32 s96, s96, {EX}\nv_add_u32 v{vEW}, s96, v{vST}")
    D(f"s_max_u32 s97, {sWV}, 1\ns_sub_u32 s97, s97, 1\ns_mul_i32 s97, s97, 9216\ns_add_u32 s97, s97, {EX}\nv_add_u32 v{vEP}, s97, v{vST}")
    D(f"s_lshl_b32 s96, {sM}, 2\ns_add_u32 s96, s96, {sG}\ns_mul_i32 {HOFF}, s96, {18*1024}\ns_add_u32 {HOFF}, {HOFF}, {WS_HALO}")
    D(f"s_lshl_b32 s96, s96, 2\nv_lshlrev_b32 v{vFL}, 8, v0\nv_add_u32 v{vFL}, s96, v{vFL}\nv_mov_b32 v38, 0x100")
    D(f"s_max_u32 s96, s96, 16\ns_sub_u32 s96, s96, 16\nv_mov_b32 v1, s96")
    D(f"s_mul_i32 s52, {sG}, {144*1152}")
    D(f"s_lshl_b32 s53, {sM}, 4\ns_add_u32 s53, s53, {sG}\ns_add_u32 s53, s53, 12\ns_lshl_b32 s53, s53, 1\ns_lshr_b32 s96, {sWV}, 1\ns_add_u32 s53, s53, s96")
    D(f"s_mul_i32 s53, s53, {18*4096}\ns_and_b32 s96, {sWV}, 1\ns_lshl_b32 s96, s96, 11\ns_add_u32 s53, s53, s96")
    for st in range(9):
        D(f"s_lshl_b32 s{TS+st}, s{TW+st}, 13\ns_add_u32 s{TS+st}, s{TS+st}, s53\ns_lshl_b32 s{TW+st}, s{TW+st}, 7\ns_add_u32 s{TW+st}, s{TW+st}, s52")
    D(f"s_lshl_b32 s98, s49, 3\ns_mov_b32 s97, 1152")
    for n in range(5):
        imm = 1024 * n if n < 4 else 0
        D(f"v_lshrrev_b32 v34, 3, v0\nv_add_u32 v34, s98, v34")
        if n < 4: D(f"s_add_u32 s98, s98, 8")
        D(f"v_lshrrev_b32 v35, 4, v34\nv_cmp_eq_u32 vcc, 8, v35\nv_and_b32 v36, 15, v34\nv_mad_u32_u24 v36, v35, 18, v36\nv_and_b32 v35, 1, v35\nv_lshl_add_u32 v36, v35, 1, v36")
        D(f"v_bfe_u32 v35, v34, 2, 2\nv_and_b32 v37, 3, v34\nv_mad_u32_u24 v35, v35, 36, v37\nv_add_u32 v35, 16, v35\nv_cndmask_b32 v36, v36, v35, vcc")
        D(f"v_and_b32 v35, 6, v34\nv_and_b32 v37, 7, v0\nv_xor_b32 v35, v35, v37\nv_lshlrev_b32 v35, 4, v35\nv_mad_u32_u24 v{vDW[n]}, v36, s97, v35")
        if imm: D(f"v_subrev_u32 v{vDW[n]}, {imm}, v{vDW[n]}")
    PCOL = [1152, 2304, 0]
    def dma(s):
        slot = (s % ANS) * ARING
        if s < 18: srd, vD, pre, so = sWA, vDQ, f"\ns_add_u32 s99, s{TQ + s % 9}, {PCOL[s // 9]}", 's99'
        elif s < 27: srd, vD, pre, so = sWA, vDQ, "", f"s{TQ + s % 9}"
        else: srd, vD, pre, so = sWB, vDW, "", f"s{TW + s - 27}"
        t = f"d{s}"
        L = mk(f"s_add_u32 m0, {sLB}, {slot}{pre}")
        for n in range(4): L += mk(f"buffer_load_dwordx4 v{vD[n]}, {srd}, {so} offen offset:{1024*n} lds", tag=t, cost=8)
        L += mk(f"s_add_u32 m0, {sLB}, {slot+4096}")
        L += mk(f"buffer_load_dwordx4 v{vD[4]}, {srd}, {so} offen lds", tag=t, cost=8)
        return L
    P(f"v_lshrrev_b32 v2, 2, v0\nv_mul_u32_u24 v2, 288, v2\nv_and_b32 v3, 3, v0\nv_lshl_add_u32 v{vRX[0]}, v3, 3, v2")
    P(f"v_mul_u32_u24 v4, 72, v3\nv_add3_u32 v{vRR[0]}, v2, v4, 32\nv_add_u32 v{vRX[1]}, {3*ARING}, v{vRX[0]}\nv_add_u32 v{vRR[1]}, {3*ARING}, v{vRR[0]}")
    P(f"v_and_b32 v2, 15, v0\nv_lshlrev_b32 v2, 7, v2\nv_add_u32 v2, s54, v2\nv_bfe_u32 v3, v0, 1, 3\nv_lshrrev_b32 v4, 4, v0\nv_xor_b32 v3, v3, v4")
    P(f"v_lshl_add_u32 v34, v3, 4, v2\nv_xor_b32 v35, 64, v34\nv_add_u32 v36, 98304, v34\nv_add_u32 v37, 98304, v35")
    SEL = 40
    sel32(P, SEL)
    for r in range(8, 16): P(f"v_mov_b32 v{r}, 0")
    P("s_mov_b32 s57, 0x3f803f80")
    P.l = weave(P.l, [xdma(st, S) for st in (1, 2) for S in range(3)], len(P.l) // 7)
    stamp(P, 1)
    for st in range(3):
        fr = []
        for f in range(12):
            ks = 6 * st + f // 2; Pp = f % 2
            fr.append((XR + 8 * ks + 4 * Pp, (34 if st < 2 else 36) + (ks & 1), (st % 2) * 49152 + ((ks % 6) // 2) * 4096 + Pp * 2048, Pp))
        sums = [[8, 9], [10, 11]]; sqs = [[12, 13], [14, 15]]
        xstats(P, st, fr, sums, sqs, mk("s_barrier") if st < 2 else None, dgroups(dma(st)))
        if st == 1: stamp(P, 2)
    DB = [48, 64, 80]
    def um(F): return mk(f"v_mfma_f32_32x32x16_bf16 {vr(DB[F%3],16)}, {vr(SEL,4)}, {vr(XR+4*F,4)}, 0")
    def nv(F):
        d = DB[F % 3]; x = XR + 4 * F
        return mk("\n".join(f"v_fma_f32 v{d+j}, v{d+j}, v{2+F%2}, v{4+F%2}" for j in range(8)) + "\n" + "\n".join(f"v_cvt_pk_bf16_f32 v{x+j}, v{d+2*j}, v{d+2*j+1}" for j in range(4)))
    for a in (8, 10, 12, 14): P(f"v_add_f32 v{a}, v{a}, v{a+1}")
    P.add(um(0)); P.add(um(1))
    for sw in ('32', '16'):
        for a in (8, 10, 12, 14): P(f"v_mov_b32 v{a+1}, v{a}")
        for a in (8, 10, 12, 14): P(f"v_permlane{sw}_swap_b32 v{a}, v{a+1}")
        for a in (8, 10, 12, 14): P(f"v_add_f32 v{a}, v{a}, v{a+1}")
    A1 = Prog(); ln_stats(A1, 'v8', 'v12', 'v4', 'v2', None)
    A2 = Prog(); ln_stats(A2, 'v10', 'v14', 'v5', 'v3', None)
    for a, b in zip(A1.l, A2.l): P.add([a, b])
    P("v_mul_f32 v4, v4, v2\nv_mul_f32 v5, v5, v3")
    LN = []
    for F in range(36):
        if F + 2 < 36: LN += um(F + 2)
        LN += nv(F)
    P.add(weave(LN, dgroups(dma(3)), 13))
    uses = []
    for ps in range(3):
        for ks in range(18):
            s = 9 * ps + ks // 2; slot = s % ANS
            for j in range(9):
                n = len(uses); af = AF + 4 * (n % 16)
                off = (slot % 3) * ARING + (ks & 1) * 9216 + (36 * j + 4 * (j & 1) if j < 8 else 0)
                va = (vRX if j < 8 else vRR)[slot // 3]
                rd = mk(f"ds_read_b64_tr_b16 {ar(af,2)}, v{va} offset:{off}\nds_read_b64_tr_b16 {ar(af+2,2)}, v{va} offset:{off+4608}", tag=f"r{n}")
                mf = []
                for Pp in range(2):
                    acc = vr(ACC + 8 * j + 4 * Pp, 4); x = vr(XR + 8 * ks + 4 * Pp, 4)
                    a, b = (ar(af, 4), x) if ps != 1 else (x, ar(af, 4))
                    mf += mk(f"v_mfma_f32_16x16x32_bf16 {acc}, {a}, {b}, {'0' if ks == 0 else acc}")
                uses.append((s, rd, mf))
    NQ = len(uses); PD = 5
    extra_lw = {10: 'ew0', 19: 'ew1'}
    def barrier(s):
        if s in extra_lw: return mk(f"WAITVL d{s}, {extra_lw[s]}\ns_barrier")
        return mk(f"WAITV d{s}\ns_barrier")
    tailLN = P.l[-36:]; P.l = P.l[:-36]
    P.add(barrier(0))
    if OPT['fuse']: P.add(hsk[-1:])
    for n in range(PD): P.add(uses[n][1])
    P.add(tailLN)
    P("WAITL r2")
    stamp(P, 3)
    SC = Sched(); gi = {}; gbar = {0: -1}
    for n in range(NQ):
        mf = uses[n][2]
        g0 = SC.gap([mf[0]], 16); g1 = SC.gap([mf[1]], 16); gi[n] = g0
        if n + PD < NQ:
            if uses[n + PD][0] != uses[n + PD - 1][0]:
                SC.mand[g0] += barrier(uses[n + PD][0]); gbar[uses[n + PD][0]] = g0
                SC.mand[g1] += uses[n + PD][1]
            else: SC.mand[g0] += uses[n + PD][1]
        if n % 3 == 2 and n + 1 < NQ: SC.tail[g1] += mk(f"WAITL r{n+3}")
    gi[NQ] = len(SC.head); gbar[27] = len(SC.head)
    stg = [4, 8, 12]
    for ps in range(2):
        for j in range(9):
            nlast = 162 * ps + 153 + j
            d = stg[j % 3]; a = ACC + 8 * j
            L = mk("\n".join(f"v_cvt_pk_bf16_f32 v{d+q}, v{a+2*q}, v{a+2*q+1}" for q in range(4)))
            g = gi[nlast + 5]
            SC.fill[g] += L[:1]; SC.fill[g + 1] += L[1:]
            L = mk(f"ds_write_b128 v{vEW}, {vr(d,4)} offset:{1024*j}", tag=f"ew{ps}", cost=8)
            if ps == 1:
                if j % 4 == 0: L += mk(f"s_add_u32 s101, {HOFF}, {(9*ps+j)*1024}")
                L += mk(f"buffer_store_dwordx4 {vr(d,4)}, v{vST}, {sHS}, s101 offen offset:{1024*(j%4)} sc1", tag=f"hs{ps}", cost=8)
            SC.fill[g + 2] += L
    for s in range(27): SC.place(dma(s + 4), gbar[s] + 1, gbar[s + 1], 'spread', f'dma{s+4}')
    L = []
    for j in range(9): L += mk(f"ds_read_b128 {ar(KO+4*j,4)}, v{vEW} offset:{1024*j}\nds_read_b128 {ar(KP+4*j,4)}, v{vEP} offset:{1024*j}", tag="er0")
    SC.place(L, gbar[10] + 2, gbar[12], 'spread', 'rb0')
    L = []
    for j in range(9):
        if j % 4 == 0: L += mk(f"s_add_u32 s101, {HOFF}, {j*1024}")
        L += mk(f"buffer_store_dwordx4 {ar(KO+4*j,4)}, v{vST}, {sHS}, s101 offen offset:{1024*(j%4)} sc1", tag="hs0", cost=8)
    SC.place(L, gbar[13] + 2, gbar[17], 'spread', 'hs0')
    L = []
    for j in range(9):
        for Pp in range(2):
            L += mk(f"ds_read_b64 {ar(VV+8*j+4*Pp,2)}, v{vEP} offset:{1024*j+8*Pp}\nds_read_b64 {ar(VV+8*j+4*Pp+2,2)}, v{vEW} offset:{1024*j+8*Pp}", tag="er1")
    SC.place(L, gbar[19] + 2, gbar[23], 'spread', 'rb1')
    SC.place(D.l, 2, gi[150], 'asap', 'deferred')
    SC.place(mk("WAITV hs1") + mk(f"buffer_atomic_add v38, v{vFL}, {sFS}, 0 offen sc1", tag='fl', cost=8), gbar[21] + 2, gbar[22], 'asap', 'flag')
    CO, CP, MO, MP = 4, 8, 12, 14
    sGRP = ["s[50:51]", "s[52:53]", "s[54:55]", "s[56:57]"]
    Mk = Prog()
    Mk(f"s_or_b32 s98, {sM}, {sWV}\ns_min_u32 s98, s98, 1\ns_mul_i32 s98, s98, -90\ns_add_u32 s98, s98, 99")
    Mk("v_and_b32 v34, 15, v0\nv_lshrrev_b32 v35, 4, v0")
    for g in range(4): Mk(f"v_cmp_eq_u32 {sGRP[g]}, {g}, v35")
    Mk("v_lshlrev_b32 v35, 2, v35\nv_sub_u32 v35, v35, v34\nv_add_u32 v35, 7, v35")
    Mk(f"v_mov_b32 v36, 0xff7f0000\nv_mov_b32 v2, 0xffff\nv_mov_b32 v3, 0xffff0000\ns_add_u32 s98, s98, 7")
    for r in range(4):
        Mk(f"v_add_u32 v34, {r}, v35")
        Mk(f"v_cmp_gt_u32 vcc, 8, v34")
        Mk(f"v_cmp_le_i32 s[96:97], s98, v34")
        Mk(f"v_cndmask_b32 v{CO+r}, v36, 0, vcc".replace("v36, 0, vcc", "v36, 0, vcc"))
        Mk(f"v_cndmask_b32 v37, 0, v{2+r%2}, vcc")
        Mk(f"v_mov_b32 v{MO+r//2}, v37" if r % 2 == 0 else f"v_or_b32 v{MO+r//2}, v{MO+r//2}, v37")
        Mk(f"v_cndmask_b32 v{CP+r}, v36, 0, s[96:97]")
        Mk(f"v_cndmask_b32 v37, 0, v{2+r%2}, s[96:97]")
        Mk(f"v_mov_b32 v{MP+r//2}, v37" if r % 2 == 0 else f"v_or_b32 v{MP+r//2}, v{MP+r//2}, v37")
    Mk(f"s_mov_b32 s99, {hx(18 ** -0.5 * LOG2E)}\nv_mov_b32 v2, 0x3f803f80\nv_mov_b32 v3, 0x3f803f80")
    SC.place(Mk.l, gbar[20] + 2, gbar[25], 'asap', 'masks')
    hload = f"buffer_load_dword v37, v1, {sDBG}, 0 offen sc1"
    SC.place(mk(hload, tag='hp', cost=8), gbar[25] + 2, gbar[25] + 12, 'asap', 'hp')
    H = mk("WAITV hp") + mk(f"s_cmp_lg_u32 {sWV}, 0\ns_cbranch_scc1 L_nohalo")
    H += mk(f"s_cmp_eq_u32 {sM}, 0\ns_cbranch_scc1 L_nohalo\nv_readfirstlane_b32 s97, v37\ns_mov_b32 s96, 0\ns_bitcmp0_b32 s97, 8\ns_cbranch_scc1 L_hslow", cond=True)
    H += mk("L_hback:")
    H += mk(f"s_sub_u32 s97, {HOFF}, {4*18*1024}", cond=True)
    for j in range(9):
        if j % 4 == 0 and j: H += mk(f"s_add_u32 s97, s97, 4096", cond=True)
        H += mk(f"buffer_load_dwordx4 {ar(KP+4*j,4)}, v{vST}, {sWS}, s97 offen offset:{1024*(j%4)} sc1", cond=True, tag='hk')
    for j in range(9):
        jj = j + 9
        if jj % 4 == 0: H += mk(f"s_add_u32 s97, s97, 4096", cond=True)
        for Pp in range(2): H += mk(f"buffer_load_dwordx2 {ar(VV+8*j+4*Pp,2)}, v{vST}, {sWS}, s97 offen offset:{1024*(jj%4)+8*Pp} sc1", cond=True, tag='hv')
    H += mk("L_nohalo:")
    SC.mand[gbar[26]] += H
    slow = mk(f"L_hslow:\n{hload}\ns_waitcnt vmcnt(0)\nv_readfirstlane_b32 s97, v37\ns_add_u32 s96, s96, 1\ns_bitcmp1_b32 s97, 8\ns_cbranch_scc1 L_hback\ns_sleep 1\ns_cmp_lt_u32 s96, 0x80000\ns_cbranch_scc1 L_hslow\ns_branch L_hback", cond=True)
    QX = XR
    qtail = []
    for j in range(9):
        L = mk("\n".join(f"v_cvt_pk_bf16_f32 v{QX+4*j+q}, v{ACC+8*j+2*q}, v{ACC+8*j+2*q+1}" for q in range(4)))
        n = 324 + 153 + j + 4
        if n < NQ: SC.fill[gi[n]] += L[:2]; SC.fill[gi[n] + 1] += L[2:]
        else: qtail += L
    print("; attn qkv overflow %d" % SC.overflow(), file=sys.stderr)
    P.add(SC.emit(0, gi[162])); stamp(P, 4)
    P.add(SC.emit(gi[162], gi[324])); stamp(P, 5)
    P.add(SC.emit(gi[324]))
    SB = 148; QRM = 104; W = 40; POP = 72; SM = 88; OP = 212
    for Pp in range(2): P(f"v_mov_b32 v{OP+20*Pp+18}, 0\nv_mov_b32 v{OP+20*Pp+19}, 0")
    P.add(qtail)
    for Pp in range(2): P(f"v_mov_b32 v{QRM+4*Pp+1}, 0\nv_mov_b32 v{QRM+4*Pp+2}, 0")
    stamp(P, 6)
    def sbuf(e, hh, Pp): return SB + 32 * (e % 2) + 16 * hh + 8 * Pp
    def Sm(e):
        L = []
        for hh in range(2):
            for Pp in range(2): L += mk(f"v_cndmask_b32 v{QRM+4*Pp+3*hh}, 0, v{QX+32+2*Pp+hh}, {sGRP[e]}")
        for k, KB in enumerate((KO, KP)):
            if e == 0 and k == 1: L += mk("s_waitcnt vmcnt(23)", cond=True)
            for part in range(2):
                for hh in range(2):
                    h = 2 * e + hh
                    for Pp in range(2):
                        d = vr(sbuf(e, hh, Pp) + 4 * k, 4)
                        if part == 0: L += mk(f"v_mfma_f32_16x16x16_bf16 {d}, {ar(KB+4*h+2*Pp,2)}, {vr(QX+4*h+2*Pp,2)}, {vr((CO,CP)[k],4)}")
                        else: L += mk(f"v_mfma_f32_16x16x16_bf16 {d}, {ar(KB+32+2*Pp,2)}, {vr(QRM+4*Pp+2*hh,2)}, {d}")
        return L
    def head(e, hh):
        L = []
        w = W + 16 * hh
        T = [[w + 8 * Pp + r for r in range(4)] for Pp in range(2)]
        K = [[w + 8 * Pp + 4, w + 8 * Pp + 5] for Pp in range(2)]
        M = [w + 6, w + 14]
        def both(f):
            a, b = mk(f(0)), mk(f(1))
            for x, y in zip(a, b): L.append(x); L.append(y)
        both(lambda p: "\n".join(f"v_max_f32 v{T[p][r]}, v{sbuf(e,hh,p)+4+r}, v{sbuf(e,hh,p)+r}" for r in range(4)))
        both(lambda p: f"v_max3_f32 v{M[p]}, v{T[p][0]}, v{T[p][1]}, v{T[p][2]}\nv_max_f32 v{M[p]}, v{M[p]}, v{T[p][3]}")
        L += mk(f"v_permlane32_swap_b32 v{M[0]}, v{M[1]}\nv_max_f32 v{M[0]}, v{M[0]}, v{M[1]}\nv_mov_b32 v{M[1]}, v{M[0]}\nv_permlane16_swap_b32 v{M[0]}, v{M[1]}\nv_max_f32 v{M[0]}, v{M[0]}, v{M[1]}")
        L += mk(f"v_mul_f32 v{M[0]}, s99, v{M[0]}\nv_mov_b32 v{M[1]}, v{M[0]}\nv_permlane32_swap_b32 v{M[0]}, v{M[1]}")
        both(lambda p: "\n".join(f"v_fma_f32 v{T[p][r]}, v{T[p][r]}, s99, -v{M[p]}" for r in range(4)))
        both(lambda p: "\n".join(f"v_exp_f32 v{T[p][r]}, v{T[p][r]}" for r in range(4)))
        both(lambda p: f"v_cvt_pk_bf16_f32 v{K[p][0]}, v{T[p][0]}, v{T[p][1]}\nv_cvt_pk_bf16_f32 v{K[p][1]}, v{T[p][2]}, v{T[p][3]}")
        po = lambda p: POP + 8 * hh + 4 * p
        both(lambda p: f"v_and_b32 v{po(p)}, v{MP}, v{K[p][0]}\nv_and_b32 v{po(p)+1}, v{MP+1}, v{K[p][1]}\nv_and_b32 v{po(p)+2}, v{MO}, v{K[p][0]}\nv_and_b32 v{po(p)+3}, v{MO+1}, v{K[p][1]}")
        return L
    def PVm(e):
        L = []
        if e == 0: L += mk("s_waitcnt vmcnt(5)")
        for hh in range(2):
            for Pp in range(2):
                L += mk(f"v_mfma_f32_16x16x16_bf16 {vr(SM+8*hh+4*Pp,4)}, v[2:3], {vr(W+16*hh+8*Pp+4,2)}, 0")
        for hh in range(2):
            h = 2 * e + hh
            for Pp in range(2):
                for k, tile in enumerate((h, 8)):
                    L += mk(f"v_mfma_f32_16x16x32_bf16 {vr(sbuf(e,hh,Pp)+4*k,4)}, {ar(VV+8*tile+4*Pp,4)}, {vr(POP+8*hh+4*Pp,4)}, 0")
        return L
    def Oc(e):
        L = []
        U = [(hh, Pp) for hh in range(2) for Pp in range(2)]
        for hh, Pp in U: L += mk(f"v_rcp_f32 v{SM+8*hh+4*Pp}, v{SM+8*hh+4*Pp}")
        for hh, Pp in U:
            d = sbuf(e, hh, Pp); rr = SM + 8 * hh + 4 * Pp
            for q in (0, 1, 2, 3, 4 + 2 * hh, 5 + 2 * hh): L += mk(f"v_mul_f32 v{d+q}, v{rr}, v{d+q}")
        for hh, Pp in U:
            d = sbuf(e, hh, Pp); o = OP + 20 * Pp + 4 * e + 2 * hh
            L += mk(f"v_cvt_pk_bf16_f32 v{o}, v{d}, v{d+1}\nv_cvt_pk_bf16_f32 v{o+1}, v{d+2}, v{d+3}")
            if e == 0: L += mk(f"v_cvt_pk_bf16_f32 v{OP+20*Pp+16+hh}, v{d+4+2*hh}, v{d+5+2*hh}")
            else: L += mk(f"v_cvt_pk_bf16_f32 v{d+4}, v{d+4+2*hh}, v{d+5+2*hh}")
        if e:
            for hh, Pp in U:
                d = sbuf(e, hh, Pp); o = OP + 20 * Pp + 16 + hh
                L += mk(f"v_cndmask_b32 v{o}, v{o}, v{d+4}, {sGRP[e]}")
        return L
    vRW = [16, 17, 18, 19, 26, 27, 28, 29]; WSTG = 112
    WA = Prog()
    WA(f"v_lshrrev_b32 v34, 2, v0\nv_lshlrev_b32 v34, 7, v34\nv_and_b32 v35, 3, v0\nv_lshl_add_u32 v34, v35, 3, v34\nv_bfe_u32 v35, v0, 3, 2\nv_lshl_add_u32 v{vRW[0]}, v35, 5, v34")
    for ct in range(1, 4): WA(f"v_xor_b32 v{vRW[ct]}, {32*ct}, v{vRW[0]}")
    for ct in range(4): WA(f"v_add_u32 v{vRW[4+ct]}, {3*ARING}, v{vRW[ct]}")
    s0 = Sm(0)
    P.add(weave(s0, [[x] for x in WA.l], 1))
    for e in range(4):
        a, b = head(e, 0), head(e, 1)
        merged = []
        for x, y in zip(a, b): merged += [x, y]
        if e == 0: P.add(weave(Sm(1)[:12], [], 1)); P.add(weave(merged, [[x] for x in Sm(1)[12:]], 3))
        else:
            pre = Oc(e - 1) + (Sm(e + 1) if e + 1 < 4 else [])
            P.add(merged[:16]); P.add(weave(merged[16:], [[x] for x in pre], 1))
        P.add(PVm(e))
    stamp(P, 7)
    uses = []
    for st in range(9):
        s = 27 + st; slot = s % ANS
        for ct in range(4):
            for e in range(5):
                n = len(uses); af = AF + 4 * (n % 16)
                off = (slot % 3) * ARING + 32 * e * 128
                va = vRW[4 * (slot // 3) + ct]
                mf = []
                if e < 4:
                    rd = mk(f"ds_read_b64_tr_b16 {ar(af,2)}, v{va} offset:{off}\nds_read_b64_tr_b16 {ar(af+2,2)}, v{va} offset:{off+2048}", tag=f"w{n}")
                else:
                    rd = mk(f"ds_read_b64_tr_b16 {ar(af,2)}, v{va} offset:{off}", tag=f"w{n}")
                for Pp in range(2):
                    acc = vr(40 + 32 * (st % 2) + 8 * ct + 4 * Pp, 4)
                    mf += mk(f"v_mfma_f32_16x16x32_bf16 {acc}, {ar(af,4)}, {vr(OP+20*Pp+4*e,4)}, {'0' if e == 0 else acc}")
                uses.append((s, rd, mf))
    NW = len(uses)
    P.add(barrier(27))
    for n in range(PD): P.add(uses[n][1])
    P.add(Oc(3))
    P("WAITL w2")
    SC = Sched(); gi = {}; gbar = {27: -1}
    for n in range(NW):
        mf = uses[n][2]
        g0 = SC.gap([mf[0]], 16); g1 = SC.gap([mf[1]], 16); gi[n] = g0
        if n + PD < NW:
            if uses[n + PD][0] != uses[n + PD - 1][0]:
                SC.mand[g0] += barrier(uses[n + PD][0]); gbar[uses[n + PD][0]] = g0
                SC.mand[g1] += uses[n + PD][1]
            else: SC.mand[g0] += uses[n + PD][1]
        if n % 3 == 2 and n + 1 < NW: SC.tail[g1] += mk(f"WAITL w{n+3}")
    gi[NW] = len(SC.head)
    for s in range(27, 32): SC.place(dma(s + 4), gbar[s] + 1, gbar[s + 1], 'spread', f'dma{s+4}')
    def epi(st, c):
        L = mk(f"s_add_u32 s101, s{TS+st}, {4096*c}")
        for Pp in range(2):
            d = WSTG + 8 * c + 4 * Pp
            for u in range(2):
                a = 40 + 32 * (st % 2) + 8 * (2 * c + u) + 4 * Pp
                L += mk(f"v_cvt_pk_bf16_f32 v{d+2*u}, v{a}, v{a+1}\nv_cvt_pk_bf16_f32 v{d+2*u+1}, v{a+2}, v{a+3}")
            L += mk(f"buffer_store_dwordx4 {vr(d,4)}, v{vST}, {sWS}, s101 offen offset:{1024*Pp}{STMOD}", tag='st', cost=8)
        return L
    for hs in range(17):
        st, c = hs // 2, hs % 2
        SC.place(epi(st, c), gi[10 * (hs + 1)] + 4, min(gi[min(NW, 10 * (hs + 2))] + 4, len(SC.head)), 'spread', f'epi{hs}')
    print("; attn wo overflow %d" % SC.overflow(), file=sys.stderr)
    P.add(SC.emit())
    P.add(epi(8, 1))
    stamp(P, 8)
    if OPT['fuse']: P(f"v_mov_b32 v2, 15\ns_waitcnt vmcnt(0)\nbuffer_store_dword v2, v{vFLW}, {sWS}, 0 offen sc1")
    stamp(P, 9)
    stamp_flush(P, 10)
    P("s_endpgm")
    P.add(slow)
    return P.l

def final(G):
    globals().update({k: v for k, v in G.items() if not k.startswith('__') and k not in ('attn', 'final')})
    P = Prog()
    P("s_cmp_ge_u32 s2, 576\ns_cbranch_scc1 L_fexit")
    if OPT['stamp']: P("s_memrealtime s[40:41]\ns_load_dwordx2 s[44:45], s[0:1], 56")
    P("s_load_dwordx2 s[4:5], s[0:1], 0\ns_load_dwordx2 s[8:9], s[0:1], 48\ns_load_dwordx2 s[12:13], s[0:1], 64")
    P(f"s_mov_b32 s16, {-(-(1<<32)//36)}\ns_mul_hi_u32 s17, s2, s16\ns_mul_i32 s18, s17, 36\ns_sub_u32 s18, s2, s18")
    P(f"s_cmp_ge_u32 s18, 18\ns_cselect_b32 s19, 1, 0\ns_mul_i32 s20, s19, 18\ns_sub_u32 s20, s18, s20")
    P(f"s_mul_i32 s21, s17, {16*36*4096}\ns_lshl_b32 s22, s18, 12\ns_add_u32 s21, s21, s22")
    P("v_lshlrev_b32 v1, 4, v0")
    P("v_lshrrev_b32 v2, 7, v0\nv_lshlrev_b32 v2, 5, v2\nv_bfe_u32 v3, v0, 6, 1\nv_add_u32 v2, v2, v3\nv_and_b32 v3, 15, v0\nv_lshlrev_b32 v3, 1, v3\nv_add_u32 v2, v2, v3")
    P("s_lshl_b32 s22, s17, 7\ns_lshl_b32 s23, s19, 6\ns_add_u32 s22, s22, s23\nv_add_u32 v2, s22, v2\nv_mul_u32_u24 v2, 1152, v2")
    P("v_bfe_u32 v3, v0, 4, 2\nv_lshlrev_b32 v3, 3, v3\nv_add_u32 v2, v2, v3\ns_lshl_b32 s23, s20, 6")
    P("s_waitcnt lgkmcnt(0)")
    P(f"s_mov_b32 s6, {2048*576*2}\ns_mov_b32 s7, 0x20000\ns_mov_b32 s10, {2048*576*2}\ns_mov_b32 s11, 0x20000\ns_mov_b32 s14, {WS_BYTES}\ns_mov_b32 s15, 0x20000")
    for j in range(16):
        P(f"buffer_load_dwordx4 {vr(32+4*j,4)}, v1, s[12:15], s21 offen", tag=f"p{j}")
        if j < 15: P(f"s_add_u32 s21, s21, {36*4096}")
    P("buffer_load_dwordx2 v[4:5], v2, s[4:7], s23 offen\nbuffer_load_dwordx2 v[6:7], v2, s[4:7], s23 offen offset:32", tag="x")
    P("s_mov_b32 s24, 0x3f80\ns_mov_b32 s25, 0x3f800000\ns_mov_b32 s26, 0xffff0000")
    for i in range(8, 24): P(f"v_mov_b32 v{i}, 0")
    for j in range(16):
        P(f"WAITV p{j}")
        b = 8 if j < 12 else 16
        for d in range(4):
            P(f"v_dot2c_f32_bf16 v{b+2*d}, s24, v{32+4*j+d}\nv_dot2c_f32_bf16 v{b+2*d+1}, s25, v{32+4*j+d}")
    def rnd(b):
        for d in range(4): P(f"v_cvt_pk_bf16_f32 v{24+d}, v{b+2*d}, v{b+2*d+1}")
        for d in range(4): P(f"v_lshlrev_b32 v{b+2*d}, 16, v{24+d}\nv_and_b32 v{b+2*d+1}, s26, v{24+d}")
    for i in range(8): P(f"v_mul_f32 v{8+i}, {hx(LN2)}, v{8+i}")
    rnd(8)
    for i in range(8): P(f"v_mul_f32 v{32+i}, {hx(-LOG2E)}, v{8+i}")
    for i in range(8): P(f"v_exp_f32 v{32+i}, v{32+i}")
    for i in range(8): P(f"v_add_f32 v{32+i}, 1.0, v{32+i}")
    for i in range(8): P(f"v_rcp_f32 v{32+i}, v{32+i}")
    for i in range(8): P(f"v_mul_f32 v{8+i}, v{8+i}, v{32+i}")
    rnd(8); rnd(16)
    for i in range(8): P(f"v_mul_f32 v{8+i}, v{8+i}, v{16+i}")
    rnd(8)
    P("WAITV x")
    for d in range(4): P(f"v_lshlrev_b32 v{16+2*d}, 16, v{4+d}\nv_and_b32 v{17+2*d}, s26, v{4+d}")
    for i in range(8): P(f"v_add_f32 v{8+i}, v{8+i}, v{16+i}")
    for d in range(4): P(f"v_cvt_pk_bf16_f32 v{24+d}, v{8+2*d}, v{9+2*d}")
    P("buffer_store_dwordx2 v[24:25], v2, s[8:11], s23 offen\nbuffer_store_dwordx2 v[26:27], v2, s[8:11], s23 offen offset:32")
    if OPT['stamp'] == 2:
        P("s_cmp_lg_u32 s2, 0\ns_cbranch_scc1 L_fexit")
        P(f"s_mov_b32 s48, {WS_STAMP}\nv_mov_b32 v1, 0\nbuffer_load_dword v4, v1, s[12:15], s48 offen offset:56\ns_waitcnt vmcnt(0)\nv_readfirstlane_b32 s50, v4\ns_nop 4")
        P("L_spin:\ns_memrealtime s[42:43]\ns_waitcnt lgkmcnt(0)\ns_sub_u32 s42, s42, s50\ns_cmp_lt_u32 s42, 10000\ns_cbranch_scc1 L_spin")
    if OPT['stamp'] == 1:
        P("s_waitcnt vmcnt(0)\ns_memrealtime s[42:43]\ns_mov_b32 s46, 256\ns_mov_b32 s47, 0x20000\ns_waitcnt lgkmcnt(0)")
        P("v_lshlrev_b32 v1, 8, v0\nv_mov_b32 v3, s42\nbuffer_atomic_umax v3, v1, s[44:47], 0 offen offset:12")
        P("s_cmp_lg_u32 s2, 0\ns_cbranch_scc1 L_fexit")
        P(f"s_mov_b32 s48, {WS_STAMP}\nbuffer_load_dwordx2 v[4:5], v1, s[12:15], s48 offen offset:56\nv_mov_b32 v6, 0\nv_mov_b32 v7, s40\ns_waitcnt vmcnt(0)\nv_not_b32 v4, v4")
        P("buffer_atomic_umax v4, v6, s[44:47], 0 offen\nbuffer_atomic_umax v5, v6, s[44:47], 0 offen offset:4\nbuffer_store_dword v7, v1, s[44:47], 0 offen offset:8")
        P(f"v_lshlrev_b32 v1, 2, v0\ns_mov_b32 s48, {WS_STAMP + OPT['dbgwg']*256}\nbuffer_load_dword v4, v1, s[12:15], s48 offen\nv_add_u32 v1, 16, v1\ns_mov_b32 s46, 64\ns_waitcnt vmcnt(0)\nbuffer_store_dword v4, v1, s[44:47], 0 offen")
    P("L_fexit:\ns_endpgm")
    return P.l
```

```python
import sys, math
from asmlib import *

OPT = dict(slp=8, rt=0, pfh=3, pchk=8, fdel=24, a3=8, a4=4, forcefb=0, marks=0, wcost=16, fuse=1, stmod=1, dbgwg=64, nosilu=0, nodma=0, nobar=0, nost=0, pd1=7, pd2=3, stamp=0, ffn=1, attn=1, verbose=0, rot=1, pfw=3, pfcode=1)
for a in sys.argv[1:]:
    k, v = a.split('='); OPT[k] = int(v)

STMOD = ['', ' sc1', ' nt', ' sc0 sc1', ' sc1 nt'][OPT['stmod']]
NAME = "recurrent_scan__sliding_local_dilated__dense_activation_silu__prompt"
LOG2E = 1.4426950408889634
LN2 = 0.6931471805599453
import struct
def f2u(f): return struct.unpack('<I', struct.pack('<f', f))[0]
def hx(f): return "0x%08x" % f2u(f)

WS_P = 0
WS_HALO = 40 << 20
WS_FLAG = 44 << 20
HFOFF = 1 << 18
WS_STAMP = 48 << 20
WS_BYTES = 64 << 20
LDS_BYTES = 155648

sX, sWA, sWB, sWS, sDBG = 's[12:15]', 's[16:19]', 's[20:23]', 's[24:27]', 's[28:31]'
sM, sSL, sWV, sROT, sMEM = 's32', 's33', 's34', 's35', 's36'

def vr(a, n): return f"v[{a}:{a+n-1}]" if n > 1 else f"v{a}"
def ar(a, n): return f"a[{a}:{a+n-1}]" if n > 1 else f"a{a}"

stamp_n = [0]
def stamp(P, idx):
    if not OPT['stamp']: return
    P(f"{'s_memrealtime' if OPT['rt'] else 's_memtime'} s[78:79]\ns_waitcnt lgkmcnt(0)\ns_mov_b32 s{80+idx}, s78")
def stamp_flush(P, n):
    if not OPT['stamp']: return
    P(f"s_memrealtime s[78:79]\ns_waitcnt lgkmcnt(0)\ns_mov_b32 s{80+15}, s78")
    P(f"s_lshl_b32 s76, s2, 2\ns_add_u32 s76, s76, {sWV}\ns_lshl_b32 s76, s76, 6\ns_add_u32 s76, s76, {WS_STAMP}")
    P("v_mov_b32 v1, 0")
    for i in range(4):
        for j in range(4): P(f"v_mov_b32 v{4+j}, s{80+4*i+j}")
        P(f"buffer_store_dwordx4 v[4:7], v1, {sWS}, s76 offen offset:{16*i}")
        P("s_nop 1")

def round_bf16(P, dst, src):
    P(f"v_cvt_pk_bf16_f32 {dst}, {src}, {src}\nv_and_b32 {dst}, 0xffff0000, {dst}")

def ln_stats(P, vsum, vsq, vnegm, vr_, tmp):
    P(f"v_mul_f32 {vsum}, {hx(1/576)}, {vsum}")
    P(f"v_mul_f32 {vsq}, {hx(1/576)}, {vsq}")
    P(f"v_fma_f32 {vsq}, -{vsum}, {vsum}, {vsq}")
    P(f"v_max_f32 {vsq}, 0, {vsq}")
    round_bf16(P, vnegm, vsum)
    P(f"v_xor_b32 {vnegm}, 0x80000000, {vnegm}")
    round_bf16(P, vsq, vsq)
    P(f"v_add_f32 {vsq}, {hx(1e-5)}, {vsq}")
    round_bf16(P, vsq, vsq)
    P(f"v_sqrt_f32 {vsq}, {vsq}")
    round_bf16(P, vsq, vsq)
    P(f"v_rcp_f32 {vr_}, {vsq}")

def sel_consts(P, vsel, t0, t1, t2):
    P(f"v_mov_b32 v{vsel}, 0\nv_mov_b32 v{vsel+1}, 0\nv_mov_b32 v{vsel+4}, 0\nv_mov_b32 v{vsel+5}, 0")
    P(f"v_and_b32 {t0}, 1, v0\nv_lshlrev_b32 {t0}, 4, {t0}\nv_mov_b32 {t1}, 0x3f80\nv_lshlrev_b32 {t0}, {t0}, {t1}")
    P(f"v_bfe_u32 {t1}, v0, 2, 2\nv_lshrrev_b32 {t2}, 4, v0")
    P(f"v_cmp_eq_u32 vcc, {t1}, {t2}\nv_cndmask_b32 {t0}, 0, {t0}, vcc")
    P(f"v_and_b32 {t1}, 2, v0\nv_cmp_eq_u32 vcc, 0, {t1}")
    P(f"v_cndmask_b32 v{vsel+2}, 0, {t0}, vcc\nv_cndmask_b32 v{vsel+3}, {t0}, v{vsel}, vcc")

def common_prologue(P):
    P("s_cmp_ge_u32 s2, 256\ns_cbranch_scc1 L_exit")
    P("s_load_dwordx4 s[4:7], s[0:1], 0\ns_load_dwordx2 s[8:9], s[0:1], 16\ns_load_dwordx4 s[40:43], s[0:1], 32\ns_load_dwordx4 s[44:47], s[0:1], 56")
    P(f"v_lshrrev_b32 v1, 6, v0\nv_lshlrev_b32 v46, 7, v0\nv_readfirstlane_b32 {sWV}, v1\nv_and_b32 v0, 63, v0")
    if OPT['stamp']:
        for i in range(80, 96): P(f's_mov_b32 s{i}, 0')
        P("s_memrealtime s[78:79]\ns_memtime s[76:77]")
    P("s_and_b32 s37, s2, 1\ns_lshl_b32 s37, s37, 3")
    P("s_bfe_u32 s38, s2, 0x20001")
    P(f"s_lshr_b32 s39, s2, 3\ns_and_b32 {sMEM}, s39, 7\ns_add_u32 {sM}, s37, {sMEM}")
    P(f"s_lshr_b32 {sROT}, s39, 3\ns_sub_u32 {sROT}, {sROT}, 1\ns_mul_i32 s50, {sROT}, 3\ns_cmp_lt_u32 s39, 8\ns_cselect_b32 s50, {sMEM}, s50")
    if not OPT['rot']: P(f"s_mov_b32 s50, 0")
    P(f"s_lshl_b32 s53, {sM}, 7\ns_lshl_b32 s54, {sWV}, 5\ns_add_u32 s53, s53, s54\ns_mul_i32 s53, s53, 1152")
    P(f"v_lshrrev_b32 v2, 3, v0\nv_mul_u32_u24 v2, 2304, v2\nv_lshrrev_b32 v3, 4, v0\nv_and_b32 v44, 7, v0\nv_xor_b32 v3, v3, v44\nv_lshlrev_b32 v3, 4, v3")
    P(f"v_add_u32 v44, v2, v3\nv_add_u32 v44, s53, v44\nv_xor_b32 v45, 64, v44\nv_add_u32 v45, {16*1152-1024}, v45")
    P(f"s_lshl_b32 s55, s50, 7\ns_mul_i32 s54, {sWV}, 12288")
    P("s_waitcnt lgkmcnt(0)")
    if OPT['stamp']: P("s_mov_b32 s94, s78\ns_mov_b32 s80, s76")
    P(f"s_mov_b32 s12, s4\ns_mov_b32 s13, s5\ns_mov_b32 s14, {2048*576*2}\ns_mov_b32 s15, 0x20000")
    P.add(xdma(0, 0)); P.add(xdma(0, 1)); P.add(xdma(0, 2))
    if OPT['pfcode']:
        P("s_getpc_b64 s[48:49]\ns_and_b32 s58, s39, 3\ns_lshl_b32 s58, s58, 15\nv_add_u32 v46, s58, v46")
        P("v_min_u32 v46, CODE_PF_MAX, v46\nglobal_load_dword v47, v46, s[48:49]", tag='dummy')
    P(f"s_mov_b32 s24, s46\ns_mov_b32 s25, s47\ns_mov_b32 s26, {WS_BYTES}\ns_mov_b32 s27, 0x20000")
    P(f"s_mov_b32 s28, s44\ns_mov_b32 s29, s45\ns_mov_b32 s30, 256\ns_mov_b32 s31, 0x20000")
    P("s_cmp_lt_u32 s39, 8\ns_cbranch_scc1 L_attn")

def xdma(st, S):
    Q = Prog()
    Q(f"s_add_u32 m0, s54, {st*49152+S*4096}\ns_add_u32 s56, s55, 1152")
    Q(f"buffer_load_dwordx4 v44, {sX}, s55 offen lds\nbuffer_load_dwordx4 v45, {sX}, s55 offen offset:1024 lds", tag=f"x{st}")
    Q(f"s_add_u32 m0, m0, 2048\ns_add_u32 s55, s55, 128")
    Q(f"buffer_load_dwordx4 v44, {sX}, s56 offen lds\nbuffer_load_dwordx4 v45, {sX}, s56 offen offset:1024 lds", tag=f"x{st}")
    Q(f"s_cmp_eq_u32 s55, 1152\ns_cselect_b32 s55, 0, s55")
    return Q.l

def weave(main, extra, every):
    out = []; k = 0; cnt = 0
    for idx, ins in enumerate(main):
        out.append(ins); cnt += 1
        nxt = main[idx + 1] if idx + 1 < len(main) else None
        safe = nxt is None or ('scc' not in nxt.rd and 'm0' not in nxt.rd)
        if k < len(extra) and cnt >= every and safe:
            out += extra[k]; k += 1; cnt = 0
    for g in extra[k:]: out += g
    return out

def xstats(P, st, frags, sums, sqs, post_reads=None, woven=None):
    P(f"WAITV x{st}")
    for n, (d, a, o, k) in enumerate(frags): P(f"ds_read_b128 {vr(d,4)}, v{a} offset:{o}", tag=f"xr{st}_{n}")
    body = []
    for n, (d, a, o, k) in enumerate(frags):
        if n in (0, 2, 4): body += mk(f"WAITL xr{st}_{n+1}")
        if n == 6:
            body += mk(f"WAITL xr{st}_11")
            if post_reads: body += post_reads
            P.add(body); body = []
        for j in range(4):
            body += mk(f"v_dot2c_f32_bf16 v{sums[k][j%2]}, s57, v{d+j}\nv_dot2c_f32_bf16 v{sqs[k][j%2]}, v{d+j}, v{d+j}")
    if woven: body = weave(body, woven, max(1, len(body) // (len(woven) + 1)))
    P.add(body)

RING = 24576; NSLOT = 5; HX = RING * NSLOT
vA1 = [[16, 17, 18], [19, 20, 21]]; vA2 = [[22, 23, 24], [25, 26, 27]]
vD1 = [28, 29, 30, 31]; vD2 = [32, 33, 34, 35]
vHW, vHR, vST = 36, 37, 38
ACC1 = 48; XR = 112
AF = 192

def flag_setup(P, vFLW, sj, tmpv, hop=False):
    P(f"s_lshl_b32 s66, {sM}, 2\ns_add_u32 s66, s66, {sWV}\ns_lshl_b32 s66, s66, 11\ns_lshl_b32 s67, {sj}, 7\ns_add_u32 s66, s66, s67\ns_add_u32 s66, s66, {WS_FLAG}")
    P(f"v_lshrrev_b32 {tmpv}, 5, v0\nv_lshlrev_b32 {tmpv}, 30, {tmpv}\nv_lshl_add_u32 {tmpv}, v0, 2, {tmpv}\nv_add_u32 v{vFLW}, s66, {tmpv}\nv_mov_b32 {tmpv}, 0")
    P(f"buffer_store_dword {tmpv}, v{vFLW}, {sWS}, 0 offen sc1", tag='fz')
    if hop: P(f"s_mov_b32 s37, {HFOFF}\nbuffer_store_dword {tmpv}, v{vFLW}, {sWS}, s37 offen sc1", tag='fz')
def handshake(sj, va, vb, xcc=False):
    Q = Prog()
    Q(f"s_lshl_b32 s66, {sM}, 2\ns_and_b32 s67, {sj}, 3\ns_add_u32 s66, s66, s67\ns_lshl_b32 s66, s66, 2\ns_lshl_b32 s67, {sWV}, 8\ns_add_u32 s66, s66, s67")
    Q(f"v_lshlrev_b32 {va}, 8, v0\nv_add_u32 {va}, s66, {va}")
    if xcc: Q(f"s_getreg_b32 s66, hwreg(HW_REG_XCC_ID)\ns_and_b32 s66, s66, 15\ns_lshl_b32 s67, {sROT}, 2\ns_add_u32 s67, s67, 12\ns_lshl_b32 s66, s66, s67\ns_add_u32 s66, s66, 1\nv_mov_b32 {vb}, s66")
    else: Q(f"v_mov_b32 {vb}, 1")
    Q(f"buffer_atomic_add {vb}, {va}, {sDBG}, 0 offen sc1", tag='hsk', cost=8)
    return Q.l

def sel32(P, SEL):
    P("v_and_b32 v2, 1, v0\nv_lshlrev_b32 v2, 4, v2\nv_mov_b32 v3, 0x3f80\nv_lshlrev_b32 v2, v2, v3")
    P("v_bfe_u32 v3, v0, 2, 1\nv_lshlrev_b32 v3, 1, v3\nv_lshrrev_b32 v4, 4, v0\nv_cmp_eq_u32 vcc, v3, v4\nv_cndmask_b32 v2, 0, v2, vcc")
    P("v_bfe_u32 v3, v0, 3, 1\nv_lshlrev_b32 v3, 1, v3\nv_bfe_u32 v4, v0, 1, 1\nv_add_u32 v3, v3, v4")
    for j in range(4): P(f"v_cmp_eq_u32 vcc, {j}, v3\nv_cndmask_b32 v{SEL+j}, 0, v2, vcc")

def dgroups(lst):
    G = []; cur = []
    for x in lst:
        cur.append(x)
        if x.kind == 'vmem': G.append(cur); cur = []
    if cur: G[-1] += cur
    return G

def flat(groups): return [x for g in groups for x in g]

def ffn():
    P = Prog()
    P(f"s_mov_b32 s50, {sROT}" if OPT['rot'] else "s_mov_b32 s50, 0")
    P(f"s_add_u32 s51, s50, 1\ns_cmp_ge_u32 s51, 3\ns_cselect_b32 s51, 0, s51\ns_add_u32 s52, s51, 1\ns_cmp_ge_u32 s52, 3\ns_cselect_b32 s52, 0, s52")
    P(f"s_mul_i32 {sSL}, s38, 3\ns_add_u32 {sSL}, {sSL}, {sROT}")
    P(f"s_mov_b32 s16, s40\ns_mov_b32 s17, s41\ns_mov_b32 s18, {576*4608*2}\ns_mov_b32 s19, 0x20000")
    P(f"s_mov_b32 s20, s42\ns_mov_b32 s21, s43\ns_mov_b32 s22, {576*4608*2}\ns_mov_b32 s23, 0x20000")
    P(f"s_mul_i32 s59, {sSL}, 768")
    P(f"s_mul_i32 s63, {sSL}, {384*1152}\ns_mul_i32 s64, {sWV}, 6144")
    if OPT['fuse']: P(f"s_lshl_b32 {sSL}, {sROT}, 2\ns_add_u32 {sSL}, {sSL}, s38")
    P("s_load_dwordx2 s[72:73], s[0:1], 48")
    vFLW = 39
    if OPT['fuse']: flag_setup(P, vFLW, sSL, 'v2', True)
    def pf_w(which):
        Q = Prog()
        if which == 1:
            Q(f"s_mul_i32 s66, {sMEM}, {72*9216}\ns_add_u32 s66, s66, s59\ns_lshl_b32 s67, {sWV}, 6\ns_mov_b32 s68, {-(-(1<<32)//6)}")
            for i in range(2):
                Q(f"v_add_u32 v10, s67, v0")
                if i: Q(f"v_add_u32 v10, 256, v10\nv_min_u32 v10, 431, v10")
                Q(f"v_mul_hi_u32 v11, v10, s68\nv_lshlrev_b32 v10, 7, v10\nv_mul_u32_u24 v11, {9216-768}, v11\nv_add_u32 v10, v10, v11")
                Q(f"buffer_load_dword v47, v10, {sWA}, s66 offen", tag='dummy', cost=8)
        else:
            Q(f"s_mul_i32 s66, {sMEM}, {432*128}\ns_add_u32 s66, s66, s63\ns_lshl_b32 s67, {sWV}, 6")
            for i in range(2):
                Q(f"v_add_u32 v45, s67, v0")
                if i: Q(f"v_add_u32 v45, 256, v45\nv_min_u32 v45, 431, v45")
                Q(f"v_lshlrev_b32 v45, 7, v45")
                Q(f"buffer_load_dword v47, v45, {sWB}, s66 offen", tag='dummy', cost=8)
        return Q.l
    P(f"v_lshrrev_b32 v2, 3, v0\nv_and_b32 v3, 7, v0")
    P(f"s_mul_i32 s58, {sWV}, 48\nv_add_u32 v4, s58, v2")
    P(f"v_bfe_u32 v5, v0, 4, 1\nv_lshlrev_b32 v5, 2, v5\nv_xor_b32 v5, v5, v3\nv_lshlrev_b32 v5, 4, v5")
    P(f"v_mul_u32_u24 v6, 9216, v4\nv_add_u32 v{vD1[0]}, v6, v5")
    for i in range(1, 4): P(f"v_add_u32 v{vD1[i]}, {i*(8*9216-1024)}, v{vD1[0]}")
    P(f"v_bfe_u32 v5, v0, 4, 2\nv_lshlrev_b32 v5, 1, v5\nv_xor_b32 v5, v5, v3\nv_lshlrev_b32 v5, 4, v5")
    P(f"v_mul_u32_u24 v6, 1152, v4\nv_add_u32 v{vD2[0]}, v6, v5")
    for i in range(1, 4): P(f"v_add_u32 v{vD2[i]}, {i*(8*1152-1024)}, v{vD2[0]}")
    for st in range(3): P(f"s_mul_i32 s{60+st}, s{50+st}, {192*9216}\ns_add_u32 s{60+st}, s{60+st}, s59")

    PA, PS = 40, 3
    g2 = [(0,0),(1,0),(2,0),(0,1),(1,1),(2,1)] + [(p,k) for p in range(3,9) for k in range(2)]
    def dma(s):
        slot = (s % NSLOT) * RING
        if s < 18:
            p, st = s // 3, s % 3
            srd, vD, base, add, big = sWA, vD1, f"s{60+st}", p * 128, 32 * 9216
        else:
            p, k = g2[s - 18]
            srd, vD, base, add, big = sWB, vD2, f"s{PA+p}", k * 192 * 1152, 32 * 1152
        t = f"d{s}"
        G = mk(f"s_add_u32 m0, s64, {slot}\ns_add_u32 s65, {base}, {add}")
        for i in range(4): G += mk(f"buffer_load_dwordx4 v{vD[i]}, {srd}, s65 offen offset:{1024*i} lds", tag=t, cost=8)
        G += mk(f"s_add_u32 m0, s64, {slot+4096}\ns_add_u32 s65, {base}, {add+big}")
        for i in range(2): G += mk(f"buffer_load_dwordx4 v{vD[i]}, {srd}, s65 offen offset:{1024*i} lds", tag=t, cost=8)
        return G
    P(f"v_lshrrev_b32 v2, 5, v0\nv_lshlrev_b32 v2, 12, v2\nv_bfe_u32 v3, v0, 2, 2\nv_lshlrev_b32 v3, 7, v3\nv_add_u32 v2, v2, v3")
    P(f"v_bfe_u32 v3, v0, 4, 1\nv_lshlrev_b32 v3, 5, v3\nv_add_u32 v2, v2, v3\nv_and_b32 v3, 3, v0\nv_lshlrev_b32 v3, 3, v3\nv_add_u32 v2, v2, v3")
    P(f"v_bfe_u32 v3, v0, 3, 1\nv_lshlrev_b32 v3, 6, v3\nv_add_u32 v{vA1[0][0]}, v2, v3\nv_xor_b32 v{vA1[1][0]}, 64, v{vA1[0][0]}")
    P(f"v_lshrrev_b32 v2, 2, v0\nv_lshlrev_b32 v2, 7, v2\nv_and_b32 v3, 3, v0\nv_lshlrev_b32 v3, 3, v3\nv_add_u32 v2, v2, v3")
    P(f"s_and_b32 s69, {sWV}, 1\ns_lshl_b32 s69, s69, 1\nv_bfe_u32 v3, v0, 3, 2\nv_xor_b32 v3, s69, v3\nv_lshlrev_b32 v3, 5, v3")
    P(f"v_add_u32 v{vA2[0][0]}, v2, v3\nv_xor_b32 v{vA2[1][0]}, 32, v{vA2[0][0]}")
    for vA in (vA1, vA2):
        for u in range(2):
            for b in (1, 2): P(f"v_add_u32 v{vA[u][b]}, {b*2*RING}, v{vA[u][0]}")
    P(f"v_bfe_u32 v2, v0, 4, 1\nv_lshlrev_b32 v2, 10, v2\nv_lshrrev_b32 v3, 5, v0\nv_lshlrev_b32 v3, 8, v3\nv_add_u32 v2, v2, v3")
    P(f"v_and_b32 v3, 15, v0\nv_lshlrev_b32 v3, 4, v3\nv_add_u32 v2, v2, v3\ns_lshl_b32 s69, {sWV}, 11\ns_add_u32 s69, s69, {HX}\nv_add_u32 v{vHW}, s69, v2")
    if OPT['fuse']: P(f"s_and_b32 s69, {sSL}, 3\ns_lshl_b32 s69, s69, 10\nv_xor_b32 v{vHW}, s69, v{vHW}")
    P(f"v_lshlrev_b32 v{vST}, 4, v0\ns_lshr_b32 s69, {sWV}, 1\ns_lshl_b32 s69, s69, 12\ns_add_u32 s69, s69, {HX}\nv_add_u32 v{vHR}, s69, v{vST}")
    P(f"s_lshl_b32 s70, {sM}, 4\ns_add_u32 s70, s70, {sSL}\ns_lshl_b32 s70, s70, 1\ns_lshr_b32 s69, {sWV}, 1\ns_add_u32 s70, s70, s69")
    P(f"s_mul_i32 s70, s70, 18\ns_and_b32 s69, {sWV}, 1\ns_add_u32 s70, s70, s69\ns_lshl_b32 s70, s70, 12")
    P(f"s_lshr_b32 s66, {sSL}, 2\ns_mul_i32 s67, {sM}, 43\ns_lshr_b32 s67, s67, 7")
    P(f"s_mul_i32 s68, s67, 3\ns_sub_u32 s68, {sM}, s68\ns_add_u32 s68, s68, s66\ns_add_u32 s68, s68, 1")
    P(f"s_cmp_ge_u32 s68, 3\ns_cselect_b32 s69, 3, 0\ns_sub_u32 s68, s68, s69")
    P(f"s_cmp_ge_u32 s67, 3\ns_cselect_b32 s69, 3, 0\ns_sub_u32 s67, s67, s69")
    if not OPT['fuse']: P("s_mov_b32 s67, 0\ns_mov_b32 s68, 0")
    for ph in range(3):
        for k in range(3):
            p = 3 * ph + k
            P(f"s_mul_i32 s69, s68, 3\ns_add_u32 s69, s69, s67\ns_lshl_b32 s{PA+p}, s69, 7\ns_add_u32 s{PA+p}, s{PA+p}, s63\ns_lshl_b32 s{PS+p}, s69, 13\ns_add_u32 s{PS+p}, s{PS+p}, s70")
            P("s_add_u32 s67, s67, 1\ns_cmp_eq_u32 s67, 3\ns_cselect_b32 s67, 0, s67")
        if ph < 2: P("s_add_u32 s68, s68, 1\ns_cmp_eq_u32 s68, 3\ns_cselect_b32 s68, 0, s68")
    JS = 147456
    P(f"s_and_b32 s67, {sSL}, 3")
    for d in range(4): P(f"s_xor_b32 s{96+d}, s67, {d}\ns_mul_i32 s{96+d}, s{96+d}, {JS}\ns_add_u32 s{96+d}, s{96+d}, {1024*d}")
    P(f"s_mul_i32 s71, {sSL}, {JS}\ns_lshl_b32 s50, s67, 10\ns_add_u32 s50, s50, {12*JS}\ns_sub_u32 s50, s50, s71")
    P(f"s_add_u32 s68, s66, 2\ns_cmp_ge_u32 s68, 3\ns_cselect_b32 s69, 3, 0\ns_sub_u32 s68, s68, s69\ns_sub_u32 s68, s68, s66\ns_mul_i32 s101, s68, {4*JS}")
    P(f"s_add_u32 s68, s66, 1\ns_cmp_ge_u32 s68, 3\ns_cselect_b32 s68, 0, s68\ns_lshl_b32 s69, s68, 2\ns_add_u32 s51, s69, s67\ns_sub_u32 s68, s68, s66\ns_mul_i32 s100, s68, {4*JS}")
    P(f"s_mul_i32 s49, s66, {4*JS}\ns_sub_u32 s49, s49, s71\ns_lshl_b32 s68, s66, 2\ns_lshl_b32 s53, 15, s68\ns_lshl_b32 s68, 1, {sSL}\ns_andn2_b32 s53, s53, s68\ns_mov_b32 s52, 0xf000")
    P(f"v_and_b32 v2, 31, v0\nv_lshlrev_b32 v2, 7, v2\nv_add_u32 v2, s54, v2\nv_bfe_u32 v3, v0, 1, 3\nv_lshrrev_b32 v4, 5, v0\nv_lshlrev_b32 v4, 2, v4\nv_xor_b32 v3, v3, v4\nv_lshlrev_b32 v3, 4, v3")
    P(f"v_add_u32 v80, v2, v3\nv_xor_b32 v81, 16, v80\nv_xor_b32 v82, 32, v80\nv_xor_b32 v83, 48, v80")
    for j in range(4): P(f"v_add_u32 v{84+j}, 98304, v{80+j}")
    SEL = 40
    sel32(P, SEL)
    P("v_mov_b32 v8, 0\nv_mov_b32 v9, 0\nv_mov_b32 v12, 0\nv_mov_b32 v13, 0\ns_mov_b32 s57, 0x3f803f80")
    P(f"s_waitcnt lgkmcnt(0)\ns_mov_b32 s74, {2048*576*2}\ns_mov_b32 s75, 0x20000")
    P.l = weave(P.l, [xdma(st, S) for st in (1, 2) for S in range(3)], len(P.l) // 7)
    stamp(P, 1)
    for st in range(3):
        fr = [(XR + 4 * (12 * st + f), (80 if st < 2 else 84) + f % 4, (st % 2) * 49152 + (f // 4) * 4096, 0) for f in range(12)]
        xstats(P, st, fr, [[8, 9]], [[12, 13]], mk("s_barrier") if st < 2 else None, dgroups(dma(st)))
        if st == 1: stamp(P, 2)
    P("v_add_f32 v8, v8, v9\nv_add_f32 v12, v12, v13\nv_mov_b32 v9, v8\nv_mov_b32 v13, v12\nv_permlane32_swap_b32 v8, v9\nv_permlane32_swap_b32 v12, v13\nv_add_f32 v8, v8, v9\nv_add_f32 v12, v12, v13")
    def um(F): return mk(f"v_mfma_f32_32x32x16_bf16 {vr(ACC1+32+16*(F%2),16)}, {vr(SEL,4)}, {vr(XR+4*F,4)}, 0")
    def nv(F):
        d = ACC1 + 32 + 16 * (F % 2); x = XR + 4 * F
        o = []
        for j in range(8): o += mk(f"v_fma_f32 v{d+j}, v{d+j}, v2, v3")
        for j in range(4): o += mk(f"v_cvt_pk_bf16_f32 v{x+j}, v{d+2*j}, v{d+2*j+1}")
        return o
    P.add(um(0)); P.add(um(1))
    ln_stats(P, 'v8', 'v12', 'v4', 'v2', 'v3')
    P(f"v_mul_f32 v2, {hx(LOG2E)}, v2\nv_mul_f32 v3, v4, v2")

    uses = []
    for p in range(6):
        for st in range(3):
            s = 3 * p + st; slot = s % NSLOT
            for S in range(3):
                for ss in range(4):
                    F = st * 12 + S * 4 + ss
                    for u in range(2):
                        n = len(uses); af = AF + 4 * (n % 16)
                        off = (slot % 2) * RING + (64 * S + 8 * ss) * 128
                        va = vA1[u][slot // 2]
                        rd = mk(f"ds_read_b64_tr_b16 {ar(af,2)}, v{va} offset:{off}\nds_read_b64_tr_b16 {ar(af+2,2)}, v{va} offset:{off+512}", tag=f"r{n}")
                        acc = vr(ACC1 + 32 * (p % 2) + 16 * u, 16)
                        mf = mk(f"v_mfma_f32_32x32x16_bf16 {acc}, {ar(af,4)}, {vr(XR+4*F,4)}, {'0' if F == 0 else acc}")
                        uses.append((s, rd, mf))
    N1 = len(uses)
    ACC2 = XR; STG = XR + 128
    for si, (p, k) in enumerate(g2):
        s = 18 + si; slot = s % NSLOT
        for kk in range(6):
            ks = 6 * k + kk
            for u in range(2):
                n = len(uses); af = AF + 4 * (n % 16)
                off = (slot % 2) * RING + 32 * kk * 128
                va = vA2[u][slot // 2]
                rd = mk(f"ds_read_b64_tr_b16 {ar(af,2)}, v{va} offset:{off}\nds_read_b64_tr_b16 {ar(af+2,2)}, v{va} offset:{off+2048}", tag=f"r{n}")
                mf = []
                for j in range(4):
                    acc = vr(ACC2 + 32 * (p % 4) + 8 * j + 4 * u, 4)
                    mf += mk(f"v_mfma_f32_16x16x32_bf16 {acc}, {ar(af,4)}, {ar(16*ks+4*j,4)}, {'0' if ks == 0 else acc}")
                uses.append((s, rd, mf))
    NU = len(uses)
    PD1, PD2 = OPT['pd1'], OPT['pd2']
    rd_at = {}
    for n in range(NU):
        if n < N1: g = n - PD1
        else:
            g = n - PD2
            if g < N1: g = N1 - 1 - 2 * (N1 - 1 - g)
        rd_at.setdefault(g, []).append(n)
    bar_at = {}
    for g in sorted(rd_at):
        for n in rd_at[g]:
            s = uses[n][0]
            if s not in bar_at: bar_at[s] = g
    extra_lw = {}
    def hw_tag(ks): return f"hw{ks}"
    def rstage(ks):
        p = ks // 2
        if p <= 3: return 3 * (p + 2) + 1
        if p == 4: return 19
        return 21
    for ks in range(1, 12, 2): extra_lw[rstage(ks)] = hw_tag(ks)
    def barrier(s):
        if s in extra_lw: return mk(f"WAITVL d{s}, {extra_lw[s]}\ns_barrier")
        return mk(f"WAITV d{s}\ns_barrier")
    P.add(barrier(0))
    for g in sorted(rd_at):
        if g < 0:
            for n in rd_at[g]: P.add(uses[n][1])
    P.add(nv(0))
    P("WAITL r3")
    stamp(P, 3)
    S16 = 16
    AOFF = {3: OPT['a3'], 4: OPT['a4'], 5: 1, 6: 1, 7: 1, 8: 0}
    def ustart(p): return N1 + 12 * (6 + 2 * (p - 3))
    nacc = {ustart(p) + AOFF[p] + 23: p for p in range(3, 8)} if OPT['fuse'] else {}
    gacc = {}
    def HB(p): return 48 + 16 * (p % 2)
    def accum(dst, src, first=False):
        return mk(f"v_mfma_f32_16x16x32_bf16 {vr(dst,4)}, {vr(S16+2,4)}, {src}, {'0' if first else vr(dst,4)}\nv_mfma_f32_16x16x32_bf16 {vr(dst+4,4)}, {vr(S16,4)}, {src}, {'0' if first else vr(dst+4,4)}")
    def hopacc(p):
        L = []
        for j in range(4): L += accum(ACC2 + 32 * (p % 4) + 8 * j, vr(HB(p) + 4 * j, 4))
        return L[0::2] + L[1::2]
    SC = Sched()
    gi = {}
    gu = {}
    for n in range(NU):
        mf = uses[n][2]
        if n in nacc:
            SC.tail[-1] += mk(f"WAITV hl{nacc[n]}")
            for m_ in hopacc(nacc[n]): gacc[nacc[n]] = SC.gap([m_], 16)
        if n < 72 and n % 2 == 0 and n // 2 + 2 < 36:
            gu[n // 2 + 2] = SC.gap(um(n // 2 + 2), 32)
        bar = []
        for s, g in bar_at.items():
            if g == n: bar = barrier(s)
        rds = []
        for nn in rd_at.get(n, []): rds += uses[nn][1]
        if n < N1:
            g = SC.gap(mf, 32); gi[n] = g
            SC.mand[g] += bar + rds
            if n % 4 == 3 and n + 1 < N1: SC.tail[g] += mk(f"WAITL r{n+4}")
            if n == N1 - 1: SC.tail[g] += mk(f"WAITL r{n+2}")
        else:
            gs = [SC.gap([m], 16) for m in mf]; gi[n] = gs[0]
            if bar:
                SC.mand[gs[0]] += bar
                for i, t in enumerate(rds): SC.mand[gs[1 + i]].append(t)
            else:
                for i, t in enumerate(rds): SC.mand[gs[2 * i]].append(t)
            if (n - N1) % 2 == 1 and n + 1 < NU: SC.tail[gs[3]] += mk(f"WAITL r{n+2}")
    gi[NU] = len(SC.head)

    def silu(ks):
        p, u = ks // 2, ks % 2
        a = ACC1 + 32 * (p % 2) + 16 * u
        F = []
        T = [1, 2, 3, 4, 5, 6, 7, 46]
        stg = 8
        def E(q, j): return mk(f"v_exp_f32_e64 v{T[4*(q%2)+j]}, -v{a+4*q+j}")
        def Ad(q, j): return mk(f"v_add_f32 v{T[4*(q%2)+j]}, 1.0, v{T[4*(q%2)+j]}")
        def R(q, j): return mk(f"v_rcp_f32 v{T[4*(q%2)+j]}, v{T[4*(q%2)+j]}")
        def M(q, j): return mk(f"v_mul_f32 v{T[4*(q%2)+j]}, v{a+4*q+j}, v{T[4*(q%2)+j]}")
        def C(q):
            d = stg + 4 * (q % 2) + 2 * (q // 2); t = T[4*(q%2):4*(q%2)+4]
            o = mk(f"v_cvt_pk_bf16_f32 v{d}, v{t[0]}, v{t[1]}\nv_cvt_pk_bf16_f32 v{d+1}, v{t[2]}, v{t[3]}")
            if q >= 2: o += mk(f"ds_write_b128 v{vHW}, {vr(stg+4*(q%2),4)} offset:{(ks%4)*8192+512*(q%2)}", tag=hw_tag(ks), cost=OPT['wcost'])
            return o
        for q in range(4):
            F += E(q, 0) + E(q, 1)
            F += E(q, 2) + Ad(q, 0) + Ad(q, 1)
            F += E(q, 3) + Ad(q, 2)
            F += R(q, 0) + Ad(q, 3)
            F += R(q, 1) + M(q, 0)
            F += R(q, 2) + M(q, 1)
            F += R(q, 3) + M(q, 2)
            c = C(q)
            F += [c[0]] + M(q, 3) + c[1:]
        return F
    def hread(ks):
        return flat([mk(f"ds_read_b128 {ar(16*ks+4*j,4)}, v{vHR} offset:{(ks%4)*8192+1024*j}", tag=f"hr{ks}") for j in range(4)])
    def epi(p):
        a = ACC2 + 32 * (p % 4)
        F = []
        for j in range(4):
            if OPT['fuse'] and p >= 6 and j == 0: continue
            for u in range(2):
                for h in range(2): F += mk(f"v_cvt_pk_bf16_f32 v{STG+4*j+2*u+h}, v{a+8*j+4*u+2*h}, v{a+8*j+4*u+2*h+1}")
            F += mk(f"buffer_store_dwordx4 {vr(STG+4*j,4)}, v{vST}, {sWS}, s{PS+p} offen offset:{1024*j}{STMOD if (p >= 6 or not OPT['fuse']) else ''}", tag=f'st{p}', cost=8)
        return F

    for s in range(0, 33):
        g0 = gi[bar_at[s]] + 1 if bar_at[s] >= 0 else 0
        g1 = gi[bar_at[s + 1]]
        SC.place(dma(s + 3), g0, g1, 'spread', f'dma{s+3}')
    for ks in range(12):
        g0 = gi[bar_at[rstage(ks)]] + 1 + (ks % 2) * 8
        SC.place(hread(ks), g0, g0 + 8, 'spread', f'hr{ks}')
    if OPT['fuse']: SC.place(handshake(sSL, 'v10', 'v11', True), 1, 30, 'spread', 'hsk')
    if OPT['pfw'] & 1: SC.place(pf_w(1), 30, 80, 'spread', 'pf1')
    if OPT['pfw'] & 2: SC.place(pf_w(2), gi[170], gi[330], 'spread', 'pf2')
    for F in range(1, 36):
        g0 = gu.get(F + 1, gi[2 * (F - 1)]); g1 = gi[2 * (F - 1) + 1] + 1
        SC.place(nv(F), g0, g1, 'asap', f'nv{F}')
    for p in range(5):
        b = 72 * (p + 1)
        SC.place(silu(2 * p) + silu(2 * p + 1), gi[b + 2], gi[b + 72], 'asap', f'silu{p}')
    SC.place(silu(10) + silu(11), gi[N1] + 6, gi[bar_at[21]] - 2, 'asap', 'silu5')
    last_stage = {}; gepi = {}
    for si, (p, k) in enumerate(g2):
        if k == 1: last_stage[p] = si
    for p in range(8):
        g0 = gi[N1 + 12 * (last_stage[p] + 1)] + 5
        if p in gacc: g0 = gacc[p] + 5
        gepi[p] = SC.place(epi(p), g0, g0 + (42 if not OPT['fuse'] else 30), 'spread' if not OPT['fuse'] else 'asap', f'epi{p}')[-1]
    slow = []
    def gs(si, off=0): return gi[N1 + 12 * si] + off
    if OPT['fuse']:
        vFR, vFV, vXO, vC = 28, 29, 30, 31
        def site(name, load, tag, chk, g0, g1):
            L = mk(f"WAITV {tag}") + mk(chk) + mk(f"s_cbranch_scc0 L_slow{name}\nL_back{name}:")
            head, tailp = L[:-4], L[-4:]
            pos = SC.place(head, g0, g1, 'asap', name)
            SC.fill[pos[-1] + 1] += tailp
            slow.extend(mk(f"L_slow{name}:\ns_mov_b32 s68, 0\nL_spin{name}:\n{load}\ns_waitcnt vmcnt(0)\n{chk}\ns_cbranch_scc1 L_back{name}\ns_sleep 1\ns_add_u32 s68, s68, 1\ns_cmp_lt_u32 s68, 0x80000\ns_cbranch_scc1 L_spin{name}\ns_branch L_back{name}", cond=True))
            return pos[-1] + 2
        hload = f"buffer_load_dword v41, v40, {sDBG}, 0 offen sc1"
        SC.place(mk(f"s_lshl_b32 s66, {sM}, 4\nv_and_b32 v40, 3, v0\nv_lshlrev_b32 v40, 2, v40\nv_add_u32 v40, s66, v40") + mk(hload, tag='hc', cost=8), gi[84], gi[100], 'spread', 'hc')
        g = site('H', hload, 'hc', f"v_and_b32 v42, 0xff, v41\nv_cmp_le_u32 vcc, 4, v42\ns_and_b32 s66, vcc_lo, 15\ns_cmp_eq_u32 s66, 15", gi[128], gi[140])
        MD = mk(f"v_readlane_b32 s66, v41, s38\ns_lshr_b32 s67, s66, 4\ns_xor_b32 s66, s66, s67")
        pos = SC.place(MD, g, gi[150], 'spread', 'mode')
        fb = "s_or_b32 s66, s66, 0x1000\n" if OPT['forcefb'] else ""
        SC.fill[pos[-1] + 1] += mk(f"{fb}s_and_b32 s66, s66, 0xff000\ns_cselect_b32 s58, 0, 1\ns_cselect_b32 s59, s100, 0\ns_cselect_b32 s100, 0, s100\ns_cselect_b32 s101, 0, s101")
        SC.place(mk("\n".join(f"s_add_u32 s{PS+p}, s{PS+p}, s{100 + p // 3}" for p in range(6))), pos[-1] + 2, gi[165], 'spread', 'psfix')
        SC.place(mk(f"buffer_load_dword v47, v{vFLW}, {sWS}, s37 offen sc1", tag='dummy', cost=8), gi[165], gi[175], 'asap', 'pfflag')
        if OPT['pfh'] & 2:
            L = []
            for p in range(3):
                for j in range(4): L += mk(f"buffer_store_dwordx4 {vr(XR,4)}, v{vST}, {sWS}, s{PS+p} offen offset:{1024*j} sc1", tag='pw', cost=16)
            SC.place(L, gi[168], gi[290], 'spread', 'prewrite')
        if OPT['pfh'] & 1:
            L = mk("v_and_b32 v40, 31, v0\nv_lshlrev_b32 v40, 7, v40") + (mk("WAITV pw") if OPT['pfh'] & 2 else [])
            for p in range(3): L += mk(f"buffer_load_dword v47, v40, {sWS}, s{PS+p} offen sc1", tag='dummy', cost=8)
            SC.place(L, gi[360], gi[425], 'spread', 'pfh')
        SQ = Prog()
        SQ(f"s_lshl_b32 s66, {sM}, 2\ns_add_u32 s67, s66, {sWV}\ns_lshl_b32 s67, s67, 11\ns_and_b32 s68, {sWV}, 2\ns_add_u32 s66, s66, s68\ns_bfe_u32 s68, {sSL}, 0x10001\ns_add_u32 s66, s66, s68\ns_lshl_b32 s66, s66, 11")
        SQ(f"s_lshl_b32 s51, s51, 7\ns_add_u32 s51, s51, s67\ns_add_u32 s51, s51, {WS_FLAG + HFOFF}\nv_mov_b32 v43, s51")
        SQ(f"v_and_b32 v40, 15, v0\nv_mov_b32 v41, s67\nv_mov_b32 v42, s66\nv_cmp_gt_u32 vcc, 12, v40\nv_lshlrev_b32 v40, 7, v40\nv_add_u32 v40, {WS_FLAG}, v40\nv_cndmask_b32 v41, v42, v41, vcc\nv_add_u32 v{vFR}, v40, v41")
        SQ(f"s_or_b32 vcc_lo, s52, s53\ns_mov_b32 vcc_hi, 0\nv_mov_b32 v40, 2.0\nv_cndmask_b32 v{vFR}, v40, v{vFR}, vcc")
        sel_consts(SQ, S16, 'v40', 'v41', 'v42')
        SQ(f"s_lshl_b32 s66, {sM}, 7\ns_and_b32 s67, {sWV}, 2\ns_lshl_b32 s67, s67, 5\ns_add_u32 s66, s66, s67\ns_and_b32 s67, {sSL}, 2\ns_lshl_b32 s67, s67, 4\ns_add_u32 s66, s66, s67\ns_and_b32 s67, {sSL}, 1\ns_add_u32 s66, s66, s67")
        SQ(f"v_and_b32 v40, 15, v0\nv_lshlrev_b32 v40, 1, v40\nv_add_u32 v40, s66, v40\nv_mul_u32_u24 v40, 1152, v40\nv_lshrrev_b32 v41, 4, v0\nv_lshlrev_b32 v41, 3, v41\ns_and_b32 s67, {sWV}, 1\ns_lshl_b32 s67, s67, 6\nv_add3_u32 v{vXO}, v40, v41, s67")
        SC.place(SQ.l, gs(3, 0), gs(6), 'asap', 'tailsetup')
        fload = f"buffer_load_dword v{vFV}, v{vFR}, {sWS}, 0 offen sc1"
        def chk(thr, mask): return f"v_cmp_le_u32 vcc, {thr}, v{vFV}\ns_and_b32 s66, vcc_lo, {mask}\ns_cmp_eq_u32 s66, {mask}"
        def fstore(val): return mk(f"buffer_store_dword v{vC}, v{vFLW}, {sWS}, 0 offen sc1", tag=f'fl{val}', cost=8)
        for p in range(6):
            g = gepi[p] + OPT['fdel']
            pos = SC.place(mk(f"v_mov_b32 v{vC}, {p+1}") + mk(f"WAITV st{p}"), g, g + 20, 'asap', f'flag{p}')
            hst = f"buffer_store_dword v{vC}, v{vFLW}, {sWS}, s37 offen"
            SC.fill[pos[-1] + 1] += mk(f"s_cmp_eq_u32 s58, 0\ns_cbranch_scc1 L_rel{p}") + mk(hst, tag=f'fl{p+1}', cost=8) + mk(f"L_relb{p}:")
            slow.extend(mk(f"L_rel{p}:\nbuffer_wbl2 sc1\ns_waitcnt vmcnt(0)\n{hst} sc1\ns_branch L_relb{p}", cond=True))
        pload = f"buffer_load_dword v{vFV}, v43, {sWS}, 0 offen sc1"
        for p in range(3, 9):
            u0 = ustart(p) + AOFF[p]
            SC.place(mk(pload, tag=f'pp{p}', cost=8), gi[u0], gi[u0 + 3], 'asap', f'pp{p}')
            ck = f"v_cmp_le_u32 vcc, {p-2}, v{vFV}"
            pos = SC.place(mk(f"WAITV pp{p}") + mk(ck), gi[u0 + OPT['pchk']], gi[u0 + OPT['pchk'] + 3], 'asap', f'chk{p}')
            SC.fill[pos[-1] + 2] += mk(f"s_cbranch_vccz L_slowP{p}\nL_backP{p}:")
            slow.extend(mk(f"L_slowP{p}:\n" + (f"s_add_u32 s93, s93, {1 << (4*(p-3))}\n" if OPT['stamp'] else "") + f"s_mov_b32 s68, 0\nL_spinP{p}:\n{pload}\ns_waitcnt vmcnt(0)\n{ck}\ns_add_u32 s68, s68, 1\ns_nop 4\ns_cbranch_vccnz L_backP{p}\ns_cmp_lt_u32 s68, 0x80000\ns_cbranch_scc1 L_spinP{p}\ns_branch L_backP{p}", cond=True))
            L = mk(f"s_add_u32 s69, s{PS+p}, s59")
            for j in range(4): L += mk(f"buffer_load_dwordx4 {vr(HB(p)+4*j,4)}, v{vST}, {sWS}, s69 offen offset:{1024*j} sc1", tag=f"hl{p}", cost=8)
            g = SC.place(L, pos[-1] + 3, gi[u0 + OPT['pchk'] + 8], 'asap', f'hl{p}')[-1]
        SC.place(mk(fload, tag='p1', cost=8), g + 1, len(SC.head), 'asap', 'p1')
    print("; overflow cycles: pass0 %d, pass1-5 %d, gemm2 %d" % (SC.overflow(0, gi[72]), SC.overflow(gi[72], gi[N1]), SC.overflow(gi[N1])), file=sys.stderr)
    marks = [gi[72], gi[144], gi[N1], gi[N1 + 72]]
    ids = [4, 5, 6, 7]
    if OPT['marks'] == 2:
        marks = [gs(12), gs(13), gs(14), gs(15), gs(16), gs(17), len(SC.head)]; ids = [1, 2, 3, 4, 5, 6, 7]
    if OPT['marks'] == 3:
        marks = [gs(6), gs(7), gs(8), gs(9), gs(10), gs(11), gs(12)]; ids = [1, 2, 3, 4, 5, 6, 7]
    if OPT['marks'] == 1:
        marks = [gs(0), gs(6), gs(8), gs(10), gs(12), gs(14), gs(16)]; ids = [1, 2, 3, 4, 5, 6, 7]
    prev = 0
    for i, g in zip(ids, marks):
        P.add(SC.emit(prev, g)); stamp(P, i); prev = g
    P.add(SC.emit(prev))
    if OPT['fuse']:
        P("WAITV hl8"); P.add(hopacc(8))
    P.add(epi(8))
    k0 = [i for i, x in enumerate(P.l) if x.text.startswith('WAITL r3')][0]
    def keep(x):
        if OPT['nosilu'] and x.base in ('v_exp_f32', 'v_rcp_f32', 'v_add_f32', 'v_mul_f32'): return False
        if OPT['nodma'] and x.kind == 'vmem' and 'lds' in x.mods: return False
        if OPT['nodma'] and x.op == 'WAITV': return False
        if OPT['nobar'] and x.kind == 'bar': return False
        if OPT['nost'] and (x.tag or '').startswith('st'): return False
        return True
    def fix(x):
        if OPT['nodma'] and x.op == 'WAITVL': return I('WAITL ' + x.ops[1])
        return x
    P.l = P.l[:k0] + [fix(x) for x in P.l[k0:] if keep(x)]
    stamp(P, 8)
    if OPT['fuse']:
        XV = 4
        for k in range(3):
            P(f"s_sub_u32 s{60+k}, s{PA+6+k}, s63")
            P(f"buffer_load_dwordx2 {vr(XV+4*k,2)}, v{vXO}, {sX}, s{60+k} offen\nbuffer_load_dwordx2 {vr(XV+4*k+2,2)}, v{vXO}, {sX}, s{60+k} offen offset:32", tag='xo')
        G = [ACC2 + 32 * ((6 + k) % 4) for k in range(3)]
        SS = [g + 8 for g in G]
        def sloads(cond):
            for k in range(3):
                P(f"s_add_u32 s69, s{PS+6+k}, s50", cond=cond)
                for g in range(4):
                    P(f"buffer_load_dwordx4 {ar(28*k+12+4*g,4)}, v{vST}, {sWS}, s69 offen sc1", tag="ls", cond=cond)
                    if g < 3: P(f"s_add_u32 s69, s69, {JS}", cond=cond)
        def spin(name, thr, mask):
            P(f"s_mov_b32 s68, 0\nL_spin{name}:")
            P(fload + "\ns_waitcnt vmcnt(0)\n" + chk(thr, mask) + f"\ns_cbranch_scc1 L_done{name}\ns_sleep {OPT['slp']}\ns_add_u32 s68, s68, 1\ns_cmp_lt_u32 s68, 0x80000\ns_cbranch_scc1 L_spin{name}\nL_done{name}:")
        P(f"v_mov_b32 v{vC}, 9\nWAITV p1\n" + chk(9, 's52') + "\ns_cbranch_scc0 L_noS")
        sloads(True)
        P("s_waitcnt vmcnt(18)", cond=True); P.add(mk(fstore(9)[0].text, cond=True)); stamp(P, 12); P("s_branch L_C", cond=True)
        P("L_noS:")
        P("WAITV st8"); P.add(fstore(9)); stamp(P, 12)
        spin('S', 9, 's52')
        sloads(False)
        P(chk(9, 's53') + "\ns_cbranch_scc1 L_doneC")
        P("L_C:")
        stamp(P, 9)
        spin('C', 9, 's53')
        stamp(P, 10)
        for k in range(3):
            P(f"s_add_u32 s67, s{PS+6+k}, s49")
            for d in range(1, 4): P(f"s_add_u32 s69, s67, s{96+d}\nbuffer_load_dwordx4 {ar(28*k+4*(d-1),4)}, v{vST}, {sWS}, s69 offen sc1", tag=f"lc{k}")
        P("s_waitcnt vmcnt(9)")
        for k in range(3):
            for g in range(4): P.add(accum(SS[k], ar(28 * k + 12 + 4 * g, 4), g == 0))
        P(f"s_mov_b32 s66, 0xffff0000\ns_mov_b32 s67, {hx(LN2)}")
        XU = 80
        for d in range(12): P(f"v_lshlrev_b32 v{XU+2*d}, 16, v{XV+d}\nv_and_b32 v{XU+2*d+1}, s66, v{XV+d}")
        for k in range(3):
            P(f"WAITV lc{k}")
            for d in range(3): P.add(accum(G[k], ar(28 * k + 4 * d, 4)))
            g_, s_, t_, pk = G[k], SS[k], G[k] + 16, G[k] + 24
            for i in range(8): P(f"v_exp_f32_e64 v{t_+i}, -v{g_+i}")
            for i in range(8): P(f"v_add_f32 v{t_+i}, 1.0, v{t_+i}")
            for i in range(8): P(f"v_rcp_f32 v{t_+i}, v{t_+i}")
            for i in range(8): P(f"v_mul_f32 v{g_+i}, v{g_+i}, v{s_+i}")
            for i in range(8): P(f"v_mul_f32 v{g_+i}, v{g_+i}, v{t_+i}")
            for i in range(8): P(f"v_fma_f32 v{g_+i}, v{g_+i}, s67, v{XU+8*k+i}")
            for d in range(4): P(f"v_cvt_pk_bf16_f32 v{pk+d}, v{g_+2*d}, v{g_+2*d+1}")
            P(f"buffer_store_dwordx2 {vr(pk,2)}, v{vXO}, s[72:75], s{60+k} offen\nbuffer_store_dwordx2 {vr(pk+2,2)}, v{vXO}, s[72:75], s{60+k} offen offset:32")
        stamp(P, 11)
    stamp_flush(P, 12)
    P("s_endpgm")
    P.add(slow)
    return P.l

def attn():
    P = Prog()
    P("s_endpgm")
    return P.l

def final():
    P = Prog()
    P("s_endpgm")
    return P.l

def finish(lst):
    lst = resolve_waits(lst)
    lst, nfix = fix_hazards(lst, OPT['verbose'])
    errs = check_scoreboard(lst)
    for e in errs[:20]: print("; SCOREBOARD ERR", e, file=sys.stderr)
    assert not errs
    lst, mis, sz = align_pass(lst)
    print(f"; hazard nops inserted: {nfix}, instrs: {len(lst)}, misaligned {mis}, bytes {sz}", file=sys.stderr)
    return lst

def main():
    try:
        import gen_attn
    except ImportError:
        gen_attn = None
    P0 = Prog(); common_prologue(P0)
    f = finish(P0.l + ffn())[:]
    a = finish(P0.l + (gen_attn.attn(globals()) if gen_attn and OPT['attn'] else attn()))
    a = a[[i for i, x in enumerate(a) if x.text.startswith('s_cbranch_scc1 L_attn')][0] + 1:]
    k2 = finish(gen_attn.final(globals()) if gen_attn else final())
    out = []
    MK = NAME + "_kernel" if OPT['fuse'] else "main_kernel"
    if OPT['fuse']: out.append(f"; @launch grid=(256,1,1) block=(256,1,1) lds={LDS_BYTES}")
    else:
        out.append(f"; @launch kernel=main_kernel grid=(256,1,1) block=(256,1,1) lds={LDS_BYTES}")
        out.append(f"; @launch kernel=final_kernel grid=(576,1,1) block=(256,1,1) lds=0")
    out.append('.amdgcn_target "amdgcn-amd-amdhsa--gfx950"\n.text')
    out.append(f".globl {MK}\n.p2align 8\n.type {MK},@function\n{MK}:\nL_main_start:")
    out += [x.text for x in f]
    out.append(".p2align 6\nL_attn:")
    out += [x.text for x in a]
    out.append("L_exit:\ns_endpgm\nL_main_end:")
    if not OPT['fuse']:
        out.append(".globl final_kernel\n.p2align 8\n.type final_kernel,@function\nfinal_kernel:")
        out += [x.text for x in k2]
    out.append('.section .rodata,"a"')
    for nm, nv, ao in ((MK, 512, 256), ("final_kernel", 96, 96))[:1 if OPT['fuse'] else 2]:
        out.append(f".p2align 6\n.amdhsa_kernel {nm}\n  .amdhsa_next_free_vgpr {nv}\n  .amdhsa_next_free_sgpr 102\n  .amdhsa_accum_offset {ao}\n  .amdhsa_group_segment_fixed_size 0\n  .amdhsa_kernarg_size 72\n  .amdhsa_user_sgpr_count 2\n  .amdhsa_user_sgpr_kernarg_segment_ptr 1\n  .amdhsa_system_sgpr_workgroup_id_x 1\n  .amdhsa_float_denorm_mode_32 3\n.end_amdhsa_kernel")
    txt = "\n".join(out) + "\n"
    import subprocess, re as _re, tempfile, os
    d = tempfile.mkdtemp()
    open(d + "/a.s", "w").write(txt.replace("CODE_PF_MAX", "0x12345"))
    r = subprocess.run(["clang", "-x", "assembler", "-target", "amdgcn-amd-amdhsa", "-mcpu=gfx950", "-c", d + "/a.s", "-o", d + "/a.o"], capture_output=True, text=True)
    assert r.returncode == 0, r.stderr
    sy = subprocess.run(["llvm-readelf", "-s", d + "/a.o"], capture_output=True, text=True).stdout
    def sym(n): return int([l for l in sy.splitlines() if l.strip().endswith(" " + n)][0].split()[1], 16)
    size = sym("L_main_end") - sym("L_main_start")
    print(f"; main code bytes {size}, attn at {sym('L_attn')}", file=sys.stderr)
    print(txt.replace("CODE_PF_MAX", str(size - 1024)))

if __name__ == "__main__":
    main()
```

```python
import sys
from asmlib import *

def attn(G):
    globals().update({k: v for k, v in G.items() if not k.startswith('__') and k not in ('attn', 'final')})
    P = Prog()
    ARING = 18432; ANS = 6; EX = ARING * ANS
    ACC = 40; XR = 112; AF = 192
    KO, KP, VV = 0, 36, 72
    vDQ = [16, 17, 18, 19, 20]; vDW = [21, 22, 23, 24, 25]
    vRX = [26, 27]; vRR = [28, 29]
    vEW, vEP, vST, vFL = 30, 31, 32, 33
    vFLW = 39
    sG = sSL
    TQ = 58
    TW = 67
    TS = 40
    sLB = 's3'
    sHS = 's[8:11]'
    sFS = 's[4:7]'
    HOFF = 's100'
    P(f"s_mov_b32 {sG}, s38")
    P(f"s_mov_b32 s16, s6\ns_mov_b32 s17, s7\ns_mov_b32 s18, {576*1728*2}\ns_mov_b32 s19, 0x20000")
    P(f"s_mov_b32 s20, s8\ns_mov_b32 s21, s9\ns_mov_b32 s22, {576*576*2}\ns_mov_b32 s23, 0x20000")
    P(f"s_cmp_eq_u32 {sWV}, 3\ns_cselect_b32 s10, {WS_BYTES}, 0\ns_cselect_b32 s6, 256, 0")
    P(f"s_mov_b32 s8, s46\ns_mov_b32 s9, s47\ns_mov_b32 s11, 0x20000")
    P(f"s_mov_b32 s4, s44\ns_mov_b32 s5, s45\ns_mov_b32 s7, 0x20000")
    if OPT['fuse']:
        P(f"s_add_u32 s96, {sG}, 12")
        flag_setup(P, vFLW, 's96', 'v33')
        hsk = handshake('s96', 'v1', 'v38')
        P.add(hsk[:-1])
    P(f"s_mul_i32 s49, {sWV}, 9\ns_lshr_b32 s49, s49, 1\ns_lshl_b32 {sLB}, s49, 10")
    P(f"s_mul_i32 s51, {sG}, 288")
    for st in range(9):
        P(f"s_mov_b32 s{TW+st}, s50\ns_mul_i32 s{TQ+st}, s50, {64*3456}\ns_add_u32 s{TQ+st}, s{TQ+st}, s51")
        if st < 8: P(f"s_add_u32 s50, s50, 1\ns_cmp_eq_u32 s50, 9\ns_cselect_b32 s50, 0, s50")
    P(f"s_mov_b32 s96, {-(-(1<<32)//18)}\ns_lshl_b32 s97, s49, 6\ns_mov_b32 s98, 3456")
    for n in range(5):
        imm = 1024 * n if n < 4 else 0
        P(f"v_add_u32 v2, s97, v0")
        if n < 4: P(f"s_add_u32 s97, s97, 64")
        P(f"v_mul_hi_u32 v3, v2, s96\nv_mul_u32_u24 v4, 18, v3\nv_sub_u32 v2, v2, v4\nv_lshlrev_b32 v2, 4, v2")
        P(f"v_and_b32 v4, 35, v3\nv_bfe_u32 v5, v3, 2, 2\nv_lshl_add_u32 v4, v5, 3, v4\nv_bfe_u32 v5, v3, 4, 1\nv_lshl_add_u32 v4, v5, 2, v4")
        P(f"v_mad_u32_u24 v{vDQ[n]}, v4, s98, v2")
        if imm: P(f"v_subrev_u32 v{vDQ[n]}, {imm}, v{vDQ[n]}")
    D = Prog()
    D(f"v_lshlrev_b32 v{vST}, 4, v0\ns_mul_i32 s96, {sWV}, 9216\ns_add_u32 s96, s96, {EX}\nv_add_u32 v{vEW}, s96, v{vST}")
    D(f"s_max_u32 s97, {sWV}, 1\ns_sub_u32 s97, s97, 1\ns_mul_i32 s97, s97, 9216\ns_add_u32 s97, s97, {EX}\nv_add_u32 v{vEP}, s97, v{vST}")
    D(f"s_lshl_b32 s96, {sM}, 2\ns_add_u32 s96, s96, {sG}\ns_mul_i32 {HOFF}, s96, {18*1024}\ns_add_u32 {HOFF}, {HOFF}, {WS_HALO}")
    D(f"s_lshl_b32 s96, s96, 2\nv_lshlrev_b32 v{vFL}, 8, v0\nv_add_u32 v{vFL}, s96, v{vFL}\nv_mov_b32 v38, 0x100")
    D(f"s_max_u32 s96, s96, 16\ns_sub_u32 s96, s96, 16\nv_mov_b32 v1, s96")
    D(f"s_mul_i32 s52, {sG}, {144*1152}")
    D(f"s_lshl_b32 s53, {sM}, 4\ns_add_u32 s53, s53, {sG}\ns_add_u32 s53, s53, 12\ns_lshl_b32 s53, s53, 1\ns_lshr_b32 s96, {sWV}, 1\ns_add_u32 s53, s53, s96")
    D(f"s_mul_i32 s53, s53, {18*4096}\ns_and_b32 s96, {sWV}, 1\ns_lshl_b32 s96, s96, 11\ns_add_u32 s53, s53, s96")
    for st in range(9):
        D(f"s_lshl_b32 s{TS+st}, s{TW+st}, 13\ns_add_u32 s{TS+st}, s{TS+st}, s53\ns_lshl_b32 s{TW+st}, s{TW+st}, 7\ns_add_u32 s{TW+st}, s{TW+st}, s52")
    D(f"s_lshl_b32 s98, s49, 3\ns_mov_b32 s97, 1152")
    for n in range(5):
        imm = 1024 * n if n < 4 else 0
        D(f"v_lshrrev_b32 v34, 3, v0\nv_add_u32 v34, s98, v34")
        if n < 4: D(f"s_add_u32 s98, s98, 8")
        D(f"v_lshrrev_b32 v35, 4, v34\nv_cmp_eq_u32 vcc, 8, v35\nv_and_b32 v36, 15, v34\nv_mad_u32_u24 v36, v35, 18, v36\nv_and_b32 v35, 1, v35\nv_lshl_add_u32 v36, v35, 1, v36")
        D(f"v_bfe_u32 v35, v34, 2, 2\nv_and_b32 v37, 3, v34\nv_mad_u32_u24 v35, v35, 36, v37\nv_add_u32 v35, 16, v35\nv_cndmask_b32 v36, v36, v35, vcc")
        D(f"v_and_b32 v35, 6, v34\nv_and_b32 v37, 7, v0\nv_xor_b32 v35, v35, v37\nv_lshlrev_b32 v35, 4, v35\nv_mad_u32_u24 v{vDW[n]}, v36, s97, v35")
        if imm: D(f"v_subrev_u32 v{vDW[n]}, {imm}, v{vDW[n]}")
    PCOL = [1152, 2304, 0]
    def dma(s):
        slot = (s % ANS) * ARING
        if s < 18: srd, vD, pre, so = sWA, vDQ, f"\ns_add_u32 s99, s{TQ + s % 9}, {PCOL[s // 9]}", 's99'
        elif s < 27: srd, vD, pre, so = sWA, vDQ, "", f"s{TQ + s % 9}"
        else: srd, vD, pre, so = sWB, vDW, "", f"s{TW + s - 27}"
        t = f"d{s}"
        L = mk(f"s_add_u32 m0, {sLB}, {slot}{pre}")
        for n in range(4): L += mk(f"buffer_load_dwordx4 v{vD[n]}, {srd}, {so} offen offset:{1024*n} lds", tag=t, cost=8)
        L += mk(f"s_add_u32 m0, {sLB}, {slot+4096}")
        L += mk(f"buffer_load_dwordx4 v{vD[4]}, {srd}, {so} offen lds", tag=t, cost=8)
        return L
    P(f"v_lshrrev_b32 v2, 2, v0\nv_mul_u32_u24 v2, 288, v2\nv_and_b32 v3, 3, v0\nv_lshl_add_u32 v{vRX[0]}, v3, 3, v2")
    P(f"v_mul_u32_u24 v4, 72, v3\nv_add3_u32 v{vRR[0]}, v2, v4, 32\nv_add_u32 v{vRX[1]}, {3*ARING}, v{vRX[0]}\nv_add_u32 v{vRR[1]}, {3*ARING}, v{vRR[0]}")
    P(f"v_and_b32 v2, 15, v0\nv_lshlrev_b32 v2, 7, v2\nv_add_u32 v2, s54, v2\nv_bfe_u32 v3, v0, 1, 3\nv_lshrrev_b32 v4, 4, v0\nv_xor_b32 v3, v3, v4")
    P(f"v_lshl_add_u32 v34, v3, 4, v2\nv_xor_b32 v35, 64, v34\nv_add_u32 v36, 98304, v34\nv_add_u32 v37, 98304, v35")
    SEL = 40
    sel32(P, SEL)
    for r in range(8, 16): P(f"v_mov_b32 v{r}, 0")
    P("s_mov_b32 s57, 0x3f803f80")
    setup = P.l; P.l = []
    fr = [[(XR + 8 * (2 * S + f // 2) + 4 * (f % 2), (34 if S < 6 else 36) + (f // 2), ((S // 3) % 2) * 49152 + (S % 3) * 4096 + (f % 2) * 2048, f % 2) for f in range(4)] for S in range(9)]
    xphase(P, setup, fr, [[8, 9], [10, 11]], [[12, 13], [14, 15]], {5: dma(0), 7: dma(1)})
    DB = [48, 64, 80]
    def um(F): return mk(f"v_mfma_f32_32x32x16_bf16 {vr(DB[F%3],16)}, {vr(SEL,4)}, {vr(XR+4*F,4)}, 0")
    def nv(F):
        d = DB[F % 3]; x = XR + 4 * F
        return mk("\n".join(f"v_fma_f32 v{d+j}, v{d+j}, v{2+F%2}, v{4+F%2}" for j in range(8)) + "\n" + "\n".join(f"v_cvt_pk_bf16_f32 v{x+j}, v{d+2*j}, v{d+2*j+1}" for j in range(4)))
    for a in (8, 10, 12, 14): P(f"v_add_f32 v{a}, v{a}, v{a+1}")
    P.add(um(0)); P.add(um(1))
    for sw in ('32', '16'):
        for a in (8, 10, 12, 14): P(f"v_mov_b32 v{a+1}, v{a}")
        for a in (8, 10, 12, 14): P(f"v_permlane{sw}_swap_b32 v{a}, v{a+1}")
        for a in (8, 10, 12, 14): P(f"v_add_f32 v{a}, v{a}, v{a+1}")
    A1 = Prog(); ln_stats(A1, 'v8', 'v12', 'v4', 'v2', None)
    A2 = Prog(); ln_stats(A2, 'v10', 'v14', 'v5', 'v3', None)
    for a, b in zip(A1.l, A2.l): P.add([a, b])
    P("v_mul_f32 v4, v4, v2\nv_mul_f32 v5, v5, v3")
    LN = []
    for F in range(36):
        if F + 2 < 36: LN += um(F + 2)
        LN += nv(F)
    P.add(weave(LN, dgroups(dma(2) + dma(3)), 13))
    uses = []
    for ps in range(3):
        for ks in range(18):
            s = 9 * ps + ks // 2; slot = s % ANS
            for j in range(9):
                n = len(uses); af = AF + 4 * (n % 16)
                off = (slot % 3) * ARING + (ks & 1) * 9216 + (36 * j + 4 * (j & 1) if j < 8 else 0)
                va = (vRX if j < 8 else vRR)[slot // 3]
                rd = mk(f"ds_read_b64_tr_b16 {ar(af,2)}, v{va} offset:{off}\nds_read_b64_tr_b16 {ar(af+2,2)}, v{va} offset:{off+4608}", tag=f"r{n}")
                mf = []
                for Pp in range(2):
                    acc = vr(ACC + 8 * j + 4 * Pp, 4); x = vr(XR + 8 * ks + 4 * Pp, 4)
                    a, b = (ar(af, 4), x) if ps != 1 else (x, ar(af, 4))
                    mf += mk(f"v_mfma_f32_16x16x32_bf16 {acc}, {a}, {b}, {'0' if ks == 0 else acc}")
                uses.append((s, rd, mf))
    NQ = len(uses); PD = 5
    extra_lw = {10: 'ew0', 19: 'ew1'}
    def barrier(s):
        if s in extra_lw: return mk(f"WAITVL d{s}, {extra_lw[s]}\ns_barrier")
        return mk(f"WAITV d{s}\ns_barrier")
    tailLN = P.l[-36:]; P.l = P.l[:-36]
    if OPT['fuse']: P("WAITV fz")
    P.add(barrier(0))
    if OPT['fuse']: P.add(hsk[-1:])
    for n in range(PD): P.add(uses[n][1])
    P.add(tailLN)
    P("WAITL r2")
    stamp(P, 3)
    SC = Sched(); gi = {}; gbar = {0: -1}
    for n in range(NQ):
        mf = uses[n][2]
        g0 = SC.gap([mf[0]], 16); g1 = SC.gap([mf[1]], 16); gi[n] = g0
        if n + PD < NQ:
            if uses[n + PD][0] != uses[n + PD - 1][0]:
                SC.mand[g0] += barrier(uses[n + PD][0]); gbar[uses[n + PD][0]] = g0
                SC.mand[g1] += uses[n + PD][1]
            else: SC.mand[g0] += uses[n + PD][1]
        if n % 3 == 2 and n + 1 < NQ: SC.tail[g1] += mk(f"WAITL r{n+3}")
    gi[NQ] = len(SC.head); gbar[27] = len(SC.head)
    stg = [4, 8, 12]
    for ps in range(2):
        for j in range(9):
            nlast = 162 * ps + 153 + j
            d = stg[j % 3]; a = ACC + 8 * j
            L = mk("\n".join(f"v_cvt_pk_bf16_f32 v{d+q}, v{a+2*q}, v{a+2*q+1}" for q in range(4)))
            g = gi[nlast + 5]
            SC.fill[g] += L[:1]; SC.fill[g + 1] += L[1:]
            L = mk(f"ds_write_b128 v{vEW}, {vr(d,4)} offset:{1024*j}", tag=f"ew{ps}", cost=8)
            if ps == 1:
                if j % 4 == 0: L += mk(f"s_add_u32 s101, {HOFF}, {(9*ps+j)*1024}")
                L += mk(f"buffer_store_dwordx4 {vr(d,4)}, v{vST}, {sHS}, s101 offen offset:{1024*(j%4)} sc1", tag=f"hs{ps}", cost=8)
            SC.fill[g + 2] += L
    for s in range(27): SC.place(dma(s + 4), gbar[s] + 1, gbar[s + 1], 'spread', f'dma{s+4}')
    L = []
    for j in range(9): L += mk(f"ds_read_b128 {ar(KO+4*j,4)}, v{vEW} offset:{1024*j}\nds_read_b128 {ar(KP+4*j,4)}, v{vEP} offset:{1024*j}", tag="er0")
    SC.place(L, gbar[10] + 2, gbar[12], 'spread', 'rb0')
    L = []
    for j in range(9):
        if j % 4 == 0: L += mk(f"s_add_u32 s101, {HOFF}, {j*1024}")
        L += mk(f"buffer_store_dwordx4 {ar(KO+4*j,4)}, v{vST}, {sHS}, s101 offen offset:{1024*(j%4)} sc1", tag="hs0", cost=8)
    SC.place(L, gbar[13] + 2, gbar[17], 'spread', 'hs0')
    L = []
    for j in range(9):
        for Pp in range(2):
            L += mk(f"ds_read_b64 {ar(VV+8*j+4*Pp,2)}, v{vEP} offset:{1024*j+8*Pp}\nds_read_b64 {ar(VV+8*j+4*Pp+2,2)}, v{vEW} offset:{1024*j+8*Pp}", tag="er1")
    SC.place(L, gbar[19] + 2, gbar[23], 'spread', 'rb1')
    SC.place(D.l, 2, gi[150], 'asap', 'deferred')
    SC.place(mk("WAITV hs1") + mk(f"buffer_atomic_add v38, v{vFL}, {sFS}, 0 offen sc1", tag='fl', cost=8), gbar[21] + 2, gbar[22], 'asap', 'flag')
    CO, CP, MO, MP = 4, 8, 12, 14
    sGRP = ["s[50:51]", "s[52:53]", "s[54:55]", "s[56:57]"]
    Mk = Prog()
    Mk(f"s_or_b32 s98, {sM}, {sWV}\ns_min_u32 s98, s98, 1\ns_mul_i32 s98, s98, -90\ns_add_u32 s98, s98, 99")
    Mk("v_and_b32 v34, 15, v0\nv_lshrrev_b32 v35, 4, v0")
    for g in range(4): Mk(f"v_cmp_eq_u32 {sGRP[g]}, {g}, v35")
    Mk("v_lshlrev_b32 v35, 2, v35\nv_sub_u32 v35, v35, v34\nv_add_u32 v35, 7, v35")
    Mk(f"v_mov_b32 v36, 0xff7f0000\nv_mov_b32 v2, 0xffff\nv_mov_b32 v3, 0xffff0000\ns_add_u32 s98, s98, 7")
    for r in range(4):
        Mk(f"v_add_u32 v34, {r}, v35")
        Mk(f"v_cmp_gt_u32 vcc, 8, v34")
        Mk(f"v_cmp_le_i32 s[96:97], s98, v34")
        Mk(f"v_cndmask_b32 v{CO+r}, v36, 0, vcc".replace("v36, 0, vcc", "v36, 0, vcc"))
        Mk(f"v_cndmask_b32 v37, 0, v{2+r%2}, vcc")
        Mk(f"v_mov_b32 v{MO+r//2}, v37" if r % 2 == 0 else f"v_or_b32 v{MO+r//2}, v{MO+r//2}, v37")
        Mk(f"v_cndmask_b32 v{CP+r}, v36, 0, s[96:97]")
        Mk(f"v_cndmask_b32 v37, 0, v{2+r%2}, s[96:97]")
        Mk(f"v_mov_b32 v{MP+r//2}, v37" if r % 2 == 0 else f"v_or_b32 v{MP+r//2}, v{MP+r//2}, v37")
    Mk(f"s_mov_b32 s99, {hx(18 ** -0.5 * LOG2E)}\nv_mov_b32 v2, 0x3f803f80\nv_mov_b32 v3, 0x3f803f80")
    SC.place(Mk.l, gbar[20] + 2, gbar[25], 'asap', 'masks')
    hload = f"buffer_load_dword v37, v1, {sDBG}, 0 offen sc1"
    SC.place(mk(hload, tag='hp', cost=8), gbar[25] + 2, gbar[25] + 12, 'asap', 'hp')
    H = mk("WAITV hp") + mk(f"s_cmp_lg_u32 {sWV}, 0\ns_cbranch_scc1 L_nohalo")
    H += mk(f"s_cmp_eq_u32 {sM}, 0\ns_cbranch_scc1 L_nohalo\nv_readfirstlane_b32 s97, v37\ns_mov_b32 s96, 0\ns_bitcmp0_b32 s97, 8\ns_cbranch_scc1 L_hslow", cond=True)
    H += mk("L_hback:")
    H += mk(f"s_sub_u32 s97, {HOFF}, {4*18*1024}", cond=True)
    for j in range(9):
        if j % 4 == 0 and j: H += mk(f"s_add_u32 s97, s97, 4096", cond=True)
        H += mk(f"buffer_load_dwordx4 {ar(KP+4*j,4)}, v{vST}, {sWS}, s97 offen offset:{1024*(j%4)} sc1", cond=True, tag='hk')
    for j in range(9):
        jj = j + 9
        if jj % 4 == 0: H += mk(f"s_add_u32 s97, s97, 4096", cond=True)
        for Pp in range(2): H += mk(f"buffer_load_dwordx2 {ar(VV+8*j+4*Pp,2)}, v{vST}, {sWS}, s97 offen offset:{1024*(jj%4)+8*Pp} sc1", cond=True, tag='hv')
    H += mk("L_nohalo:")
    SC.mand[gbar[26]] += H
    slow = mk(f"L_hslow:\n{hload}\ns_waitcnt vmcnt(0)\nv_readfirstlane_b32 s97, v37\ns_add_u32 s96, s96, 1\ns_bitcmp1_b32 s97, 8\ns_cbranch_scc1 L_hback\ns_sleep 1\ns_cmp_lt_u32 s96, 0x80000\ns_cbranch_scc1 L_hslow\ns_branch L_hback", cond=True)
    QX = XR
    qtail = []
    for j in range(9):
        L = mk("\n".join(f"v_cvt_pk_bf16_f32 v{QX+4*j+q}, v{ACC+8*j+2*q}, v{ACC+8*j+2*q+1}" for q in range(4)))
        n = 324 + 153 + j + 4
        if n < NQ: SC.fill[gi[n]] += L[:2]; SC.fill[gi[n] + 1] += L[2:]
        else: qtail += L
    print("; attn qkv overflow %d" % SC.overflow(), file=sys.stderr)
    P.add(SC.emit(0, gi[162])); stamp(P, 4)
    P.add(SC.emit(gi[162], gi[324])); stamp(P, 5)
    P.add(SC.emit(gi[324]))
    SB = 148; QRM = 104; W = 40; POP = 72; SM = 88; OP = 212
    for Pp in range(2): P(f"v_mov_b32 v{OP+20*Pp+18}, 0\nv_mov_b32 v{OP+20*Pp+19}, 0")
    P.add(qtail)
    for Pp in range(2): P(f"v_mov_b32 v{QRM+4*Pp+1}, 0\nv_mov_b32 v{QRM+4*Pp+2}, 0")
    stamp(P, 6)
    def sbuf(e, hh, Pp): return SB + 32 * (e % 2) + 16 * hh + 8 * Pp
    def Sm(e):
        L = []
        for hh in range(2):
            for Pp in range(2): L += mk(f"v_cndmask_b32 v{QRM+4*Pp+3*hh}, 0, v{QX+32+2*Pp+hh}, {sGRP[e]}")
        for k, KB in enumerate((KO, KP)):
            if e == 0 and k == 1: L += mk("s_waitcnt vmcnt(23)", cond=True)
            for part in range(2):
                for hh in range(2):
                    h = 2 * e + hh
                    for Pp in range(2):
                        d = vr(sbuf(e, hh, Pp) + 4 * k, 4)
                        if part == 0: L += mk(f"v_mfma_f32_16x16x16_bf16 {d}, {ar(KB+4*h+2*Pp,2)}, {vr(QX+4*h+2*Pp,2)}, {vr((CO,CP)[k],4)}")
                        else: L += mk(f"v_mfma_f32_16x16x16_bf16 {d}, {ar(KB+32+2*Pp,2)}, {vr(QRM+4*Pp+2*hh,2)}, {d}")
        return L
    def head(e, hh):
        L = []
        w = W + 16 * hh
        T = [[w + 8 * Pp + r for r in range(4)] for Pp in range(2)]
        K = [[w + 8 * Pp + 4, w + 8 * Pp + 5] for Pp in range(2)]
        M = [w + 6, w + 14]
        def both(f):
            a, b = mk(f(0)), mk(f(1))
            for x, y in zip(a, b): L.append(x); L.append(y)
        both(lambda p: "\n".join(f"v_max_f32 v{T[p][r]}, v{sbuf(e,hh,p)+4+r}, v{sbuf(e,hh,p)+r}" for r in range(4)))
        both(lambda p: f"v_max3_f32 v{M[p]}, v{T[p][0]}, v{T[p][1]}, v{T[p][2]}\nv_max_f32 v{M[p]}, v{M[p]}, v{T[p][3]}")
        L += mk(f"v_permlane32_swap_b32 v{M[0]}, v{M[1]}\nv_max_f32 v{M[0]}, v{M[0]}, v{M[1]}\nv_mov_b32 v{M[1]}, v{M[0]}\nv_permlane16_swap_b32 v{M[0]}, v{M[1]}\nv_max_f32 v{M[0]}, v{M[0]}, v{M[1]}")
        L += mk(f"v_mul_f32 v{M[0]}, s99, v{M[0]}\nv_mov_b32 v{M[1]}, v{M[0]}\nv_permlane32_swap_b32 v{M[0]}, v{M[1]}")
        both(lambda p: "\n".join(f"v_fma_f32 v{T[p][r]}, v{T[p][r]}, s99, -v{M[p]}" for r in range(4)))
        both(lambda p: "\n".join(f"v_exp_f32 v{T[p][r]}, v{T[p][r]}" for r in range(4)))
        both(lambda p: f"v_cvt_pk_bf16_f32 v{K[p][0]}, v{T[p][0]}, v{T[p][1]}\nv_cvt_pk_bf16_f32 v{K[p][1]}, v{T[p][2]}, v{T[p][3]}")
        po = lambda p: POP + 8 * hh + 4 * p
        both(lambda p: f"v_and_b32 v{po(p)}, v{MP}, v{K[p][0]}\nv_and_b32 v{po(p)+1}, v{MP+1}, v{K[p][1]}\nv_and_b32 v{po(p)+2}, v{MO}, v{K[p][0]}\nv_and_b32 v{po(p)+3}, v{MO+1}, v{K[p][1]}")
        return L
    def PVm(e):
        L = []
        if e == 0: L += mk("s_waitcnt vmcnt(5)")
        for hh in range(2):
            for Pp in range(2):
                L += mk(f"v_mfma_f32_16x16x16_bf16 {vr(SM+8*hh+4*Pp,4)}, v[2:3], {vr(W+16*hh+8*Pp+4,2)}, 0")
        for hh in range(2):
            h = 2 * e + hh
            for Pp in range(2):
                for k, tile in enumerate((h, 8)):
                    L += mk(f"v_mfma_f32_16x16x32_bf16 {vr(sbuf(e,hh,Pp)+4*k,4)}, {ar(VV+8*tile+4*Pp,4)}, {vr(POP+8*hh+4*Pp,4)}, 0")
        return L
    def Oc(e):
        L = []
        U = [(hh, Pp) for hh in range(2) for Pp in range(2)]
        for hh, Pp in U: L += mk(f"v_rcp_f32 v{SM+8*hh+4*Pp}, v{SM+8*hh+4*Pp}")
        for hh, Pp in U:
            d = sbuf(e, hh, Pp); rr = SM + 8 * hh + 4 * Pp
            for q in (0, 1, 2, 3, 4 + 2 * hh, 5 + 2 * hh): L += mk(f"v_mul_f32 v{d+q}, v{rr}, v{d+q}")
        for hh, Pp in U:
            d = sbuf(e, hh, Pp); o = OP + 20 * Pp + 4 * e + 2 * hh
            L += mk(f"v_cvt_pk_bf16_f32 v{o}, v{d}, v{d+1}\nv_cvt_pk_bf16_f32 v{o+1}, v{d+2}, v{d+3}")
            if e == 0: L += mk(f"v_cvt_pk_bf16_f32 v{OP+20*Pp+16+hh}, v{d+4+2*hh}, v{d+5+2*hh}")
            else: L += mk(f"v_cvt_pk_bf16_f32 v{d+4}, v{d+4+2*hh}, v{d+5+2*hh}")
        if e:
            for hh, Pp in U:
                d = sbuf(e, hh, Pp); o = OP + 20 * Pp + 16 + hh
                L += mk(f"v_cndmask_b32 v{o}, v{o}, v{d+4}, {sGRP[e]}")
        return L
    vRW = [16, 17, 18, 19, 26, 27, 28, 29]; WSTG = 112
    WA = Prog()
    WA(f"v_lshrrev_b32 v34, 2, v0\nv_lshlrev_b32 v34, 7, v34\nv_and_b32 v35, 3, v0\nv_lshl_add_u32 v34, v35, 3, v34\nv_bfe_u32 v35, v0, 3, 2\nv_lshl_add_u32 v{vRW[0]}, v35, 5, v34")
    for ct in range(1, 4): WA(f"v_xor_b32 v{vRW[ct]}, {32*ct}, v{vRW[0]}")
    for ct in range(4): WA(f"v_add_u32 v{vRW[4+ct]}, {3*ARING}, v{vRW[ct]}")
    s0 = Sm(0)
    P.add(weave(s0, [[x] for x in WA.l], 1))
    for e in range(4):
        a, b = head(e, 0), head(e, 1)
        merged = []
        for x, y in zip(a, b): merged += [x, y]
        if e == 0: P.add(weave(Sm(1)[:12], [], 1)); P.add(weave(merged, [[x] for x in Sm(1)[12:]], 3))
        else:
            pre = Oc(e - 1) + (Sm(e + 1) if e + 1 < 4 else [])
            P.add(merged[:16]); P.add(weave(merged[16:], [[x] for x in pre], 1))
        P.add(PVm(e))
    stamp(P, 7)
    uses = []
    for st in range(9):
        s = 27 + st; slot = s % ANS
        for ct in range(4):
            for e in range(5):
                n = len(uses); af = AF + 4 * (n % 16)
                off = (slot % 3) * ARING + 32 * e * 128
                va = vRW[4 * (slot // 3) + ct]
                mf = []
                if e < 4:
                    rd = mk(f"ds_read_b64_tr_b16 {ar(af,2)}, v{va} offset:{off}\nds_read_b64_tr_b16 {ar(af+2,2)}, v{va} offset:{off+2048}", tag=f"w{n}")
                else:
                    rd = mk(f"ds_read_b64_tr_b16 {ar(af,2)}, v{va} offset:{off}", tag=f"w{n}")
                for Pp in range(2):
                    acc = vr(40 + 32 * (st % 2) + 8 * ct + 4 * Pp, 4)
                    mf += mk(f"v_mfma_f32_16x16x32_bf16 {acc}, {ar(af,4)}, {vr(OP+20*Pp+4*e,4)}, {'0' if e == 0 else acc}")
                uses.append((s, rd, mf))
    NW = len(uses)
    P.add(barrier(27))
    for n in range(PD): P.add(uses[n][1])
    P.add(Oc(3))
    P("WAITL w2")
    SC = Sched(); gi = {}; gbar = {27: -1}
    for n in range(NW):
        mf = uses[n][2]
        g0 = SC.gap([mf[0]], 16); g1 = SC.gap([mf[1]], 16); gi[n] = g0
        if n + PD < NW:
            if uses[n + PD][0] != uses[n + PD - 1][0]:
                SC.mand[g0] += barrier(uses[n + PD][0]); gbar[uses[n + PD][0]] = g0
                SC.mand[g1] += uses[n + PD][1]
            else: SC.mand[g0] += uses[n + PD][1]
        if n % 3 == 2 and n + 1 < NW: SC.tail[g1] += mk(f"WAITL w{n+3}")
    gi[NW] = len(SC.head)
    for s in range(27, 32): SC.place(dma(s + 4), gbar[s] + 1, gbar[s + 1], 'spread', f'dma{s+4}')
    def epi(st, c):
        L = mk(f"s_add_u32 s101, s{TS+st}, {4096*c}")
        for Pp in range(2):
            d = WSTG + 8 * c + 4 * Pp
            for u in range(2):
                a = 40 + 32 * (st % 2) + 8 * (2 * c + u) + 4 * Pp
                L += mk(f"v_cvt_pk_bf16_f32 v{d+2*u}, v{a}, v{a+1}\nv_cvt_pk_bf16_f32 v{d+2*u+1}, v{a+2}, v{a+3}")
            L += mk(f"buffer_store_dwordx4 {vr(d,4)}, v{vST}, {sWS}, s101 offen offset:{1024*Pp}{STMOD}", tag='st', cost=8)
        return L
    for hs in range(17):
        st, c = hs // 2, hs % 2
        SC.place(epi(st, c), gi[10 * (hs + 1)] + 4, min(gi[min(NW, 10 * (hs + 2))] + 4, len(SC.head)), 'spread', f'epi{hs}')
    print("; attn wo overflow %d" % SC.overflow(), file=sys.stderr)
    P.add(SC.emit())
    P.add(epi(8, 1))
    stamp(P, 8)
    if OPT['fuse']: P(f"v_mov_b32 v2, 15\ns_waitcnt vmcnt(0)\nbuffer_store_dword v2, v{vFLW}, {sWS}, 0 offen sc1")
    stamp(P, 9)
    stamp_flush(P, 10)
    P("s_endpgm")
    P.add(slow)
    return P.l

def final(G):
    globals().update({k: v for k, v in G.items() if not k.startswith('__') and k not in ('attn', 'final')})
    P = Prog()
    P("s_cmp_ge_u32 s2, 576\ns_cbranch_scc1 L_fexit")
    if OPT['stamp']: P("s_memrealtime s[40:41]\ns_load_dwordx2 s[44:45], s[0:1], 56")
    P("s_load_dwordx2 s[4:5], s[0:1], 0\ns_load_dwordx2 s[8:9], s[0:1], 48\ns_load_dwordx2 s[12:13], s[0:1], 64")
    P(f"s_mov_b32 s16, {-(-(1<<32)//36)}\ns_mul_hi_u32 s17, s2, s16\ns_mul_i32 s18, s17, 36\ns_sub_u32 s18, s2, s18")
    P(f"s_cmp_ge_u32 s18, 18\ns_cselect_b32 s19, 1, 0\ns_mul_i32 s20, s19, 18\ns_sub_u32 s20, s18, s20")
    P(f"s_mul_i32 s21, s17, {16*36*4096}\ns_lshl_b32 s22, s18, 12\ns_add_u32 s21, s21, s22")
    P("v_lshlrev_b32 v1, 4, v0")
    P("v_lshrrev_b32 v2, 7, v0\nv_lshlrev_b32 v2, 5, v2\nv_bfe_u32 v3, v0, 6, 1\nv_add_u32 v2, v2, v3\nv_and_b32 v3, 15, v0\nv_lshlrev_b32 v3, 1, v3\nv_add_u32 v2, v2, v3")
    P("s_lshl_b32 s22, s17, 7\ns_lshl_b32 s23, s19, 6\ns_add_u32 s22, s22, s23\nv_add_u32 v2, s22, v2\nv_mul_u32_u24 v2, 1152, v2")
    P("v_bfe_u32 v3, v0, 4, 2\nv_lshlrev_b32 v3, 3, v3\nv_add_u32 v2, v2, v3\ns_lshl_b32 s23, s20, 6")
    P("s_waitcnt lgkmcnt(0)")
    P(f"s_mov_b32 s6, {2048*576*2}\ns_mov_b32 s7, 0x20000\ns_mov_b32 s10, {2048*576*2}\ns_mov_b32 s11, 0x20000\ns_mov_b32 s14, {WS_BYTES}\ns_mov_b32 s15, 0x20000")
    for j in range(16):
        P(f"buffer_load_dwordx4 {vr(32+4*j,4)}, v1, s[12:15], s21 offen", tag=f"p{j}")
        if j < 15: P(f"s_add_u32 s21, s21, {36*4096}")
    P("buffer_load_dwordx2 v[4:5], v2, s[4:7], s23 offen\nbuffer_load_dwordx2 v[6:7], v2, s[4:7], s23 offen offset:32", tag="x")
    P("s_mov_b32 s24, 0x3f80\ns_mov_b32 s25, 0x3f800000\ns_mov_b32 s26, 0xffff0000")
    for i in range(8, 24): P(f"v_mov_b32 v{i}, 0")
    for j in range(16):
        P(f"WAITV p{j}")
        b = 8 if j < 12 else 16
        for d in range(4):
            P(f"v_dot2c_f32_bf16 v{b+2*d}, s24, v{32+4*j+d}\nv_dot2c_f32_bf16 v{b+2*d+1}, s25, v{32+4*j+d}")
    def rnd(b):
        for d in range(4): P(f"v_cvt_pk_bf16_f32 v{24+d}, v{b+2*d}, v{b+2*d+1}")
        for d in range(4): P(f"v_lshlrev_b32 v{b+2*d}, 16, v{24+d}\nv_and_b32 v{b+2*d+1}, s26, v{24+d}")
    for i in range(8): P(f"v_mul_f32 v{8+i}, {hx(LN2)}, v{8+i}")
    rnd(8)
    for i in range(8): P(f"v_mul_f32 v{32+i}, {hx(-LOG2E)}, v{8+i}")
    for i in range(8): P(f"v_exp_f32 v{32+i}, v{32+i}")
    for i in range(8): P(f"v_add_f32 v{32+i}, 1.0, v{32+i}")
    for i in range(8): P(f"v_rcp_f32 v{32+i}, v{32+i}")
    for i in range(8): P(f"v_mul_f32 v{8+i}, v{8+i}, v{32+i}")
    rnd(8); rnd(16)
    for i in range(8): P(f"v_mul_f32 v{8+i}, v{8+i}, v{16+i}")
    rnd(8)
    P("WAITV x")
    for d in range(4): P(f"v_lshlrev_b32 v{16+2*d}, 16, v{4+d}\nv_and_b32 v{17+2*d}, s26, v{4+d}")
    for i in range(8): P(f"v_add_f32 v{8+i}, v{8+i}, v{16+i}")
    for d in range(4): P(f"v_cvt_pk_bf16_f32 v{24+d}, v{8+2*d}, v{9+2*d}")
    P("buffer_store_dwordx2 v[24:25], v2, s[8:11], s23 offen\nbuffer_store_dwordx2 v[26:27], v2, s[8:11], s23 offen offset:32")
    if OPT['stamp'] == 2:
        P("s_cmp_lg_u32 s2, 0\ns_cbranch_scc1 L_fexit")
        P(f"s_mov_b32 s48, {WS_STAMP}\nv_mov_b32 v1, 0\nbuffer_load_dword v4, v1, s[12:15], s48 offen offset:56\ns_waitcnt vmcnt(0)\nv_readfirstlane_b32 s50, v4\ns_nop 4")
        P("L_spin:\ns_memrealtime s[42:43]\ns_waitcnt lgkmcnt(0)\ns_sub_u32 s42, s42, s50\ns_cmp_lt_u32 s42, 10000\ns_cbranch_scc1 L_spin")
    if OPT['stamp'] == 1:
        P("s_waitcnt vmcnt(0)\ns_memrealtime s[42:43]\ns_mov_b32 s46, 256\ns_mov_b32 s47, 0x20000\ns_waitcnt lgkmcnt(0)")
        P("v_lshlrev_b32 v1, 8, v0\nv_mov_b32 v3, s42\nbuffer_atomic_umax v3, v1, s[44:47], 0 offen offset:12")
        P("s_cmp_lg_u32 s2, 0\ns_cbranch_scc1 L_fexit")
        P(f"s_mov_b32 s48, {WS_STAMP}\nbuffer_load_dwordx2 v[4:5], v1, s[12:15], s48 offen offset:56\nv_mov_b32 v6, 0\nv_mov_b32 v7, s40\ns_waitcnt vmcnt(0)\nv_not_b32 v4, v4")
        P("buffer_atomic_umax v4, v6, s[44:47], 0 offen\nbuffer_atomic_umax v5, v6, s[44:47], 0 offen offset:4\nbuffer_store_dword v7, v1, s[44:47], 0 offen offset:8")
        P(f"v_lshlrev_b32 v1, 2, v0\ns_mov_b32 s48, {WS_STAMP + OPT['dbgwg']*256}\nbuffer_load_dword v4, v1, s[12:15], s48 offen\nv_add_u32 v1, 16, v1\ns_mov_b32 s46, 64\ns_waitcnt vmcnt(0)\nbuffer_store_dword v4, v1, s[44:47], 0 offen")
    P("L_fexit:\ns_endpgm")
    return P.l
```

```python
import sys, math
from asmlib import *

OPT = dict(pfh0=360, nb2=2, hsplit=1, dpre=3, pst=0, xlead=3, slp=8, rt=0, pfh=1, pchk=8, fdel=24, a3=8, a4=4, forcefb=0, marks=0, wcost=16, fuse=1, stmod=1, dbgwg=64, nosilu=0, nodma=0, nobar=0, nost=0, pd1=7, pd2=3, stamp=0, ffn=1, attn=1, verbose=0, rot=1, pfw=3, pfcode=1)
for a in sys.argv[1:]:
    k, v = a.split('='); OPT[k] = int(v)

STMOD = ['', ' sc1', ' nt', ' sc0 sc1', ' sc1 nt'][OPT['stmod']]
NAME = "recurrent_scan__sliding_local_dilated__dense_activation_silu__prompt"
LOG2E = 1.4426950408889634
LN2 = 0.6931471805599453
import struct
def f2u(f): return struct.unpack('<I', struct.pack('<f', f))[0]
def hx(f): return "0x%08x" % f2u(f)

WS_P = 0
WS_HALO = 40 << 20
WS_FLAG = 44 << 20
HFOFF = 1 << 18
WS_STAMP = 48 << 20
WS_BYTES = 64 << 20
LDS_BYTES = 155648

sX, sWA, sWB, sWS, sDBG = 's[12:15]', 's[16:19]', 's[20:23]', 's[24:27]', 's[28:31]'
sM, sSL, sWV, sROT, sMEM = 's32', 's33', 's34', 's35', 's36'

def vr(a, n): return f"v[{a}:{a+n-1}]" if n > 1 else f"v{a}"
def ar(a, n): return f"a[{a}:{a+n-1}]" if n > 1 else f"a{a}"

stamp_n = [0]
def stamp(P, idx):
    if not OPT['stamp']: return
    if OPT['pst']:
        if idx < 100 and idx != 3: return
        idx = 9 if idx == 3 else idx - 100
    elif idx >= 100: return
    P(f"{'s_memrealtime' if OPT['rt'] else 's_memtime'} s[78:79]\ns_waitcnt lgkmcnt(0)\ns_mov_b32 s{80+idx}, s78")
def stamp_flush(P, n):
    if not OPT['stamp']: return
    P(f"s_memrealtime s[78:79]\ns_waitcnt lgkmcnt(0)\ns_mov_b32 s{80+15}, s78")
    P(f"s_lshl_b32 s76, s2, 2\ns_add_u32 s76, s76, {sWV}\ns_lshl_b32 s76, s76, 6\ns_add_u32 s76, s76, {WS_STAMP}")
    P("v_mov_b32 v1, 0")
    for i in range(4):
        for j in range(4): P(f"v_mov_b32 v{4+j}, s{80+4*i+j}")
        P(f"buffer_store_dwordx4 v[4:7], v1, {sWS}, s76 offen offset:{16*i}")
        P("s_nop 1")

def round_bf16(P, dst, src):
    P(f"v_cvt_pk_bf16_f32 {dst}, {src}, {src}\nv_and_b32 {dst}, 0xffff0000, {dst}")

def ln_stats(P, vsum, vsq, vnegm, vr_, tmp):
    P(f"v_mul_f32 {vsum}, {hx(1/576)}, {vsum}")
    P(f"v_mul_f32 {vsq}, {hx(1/576)}, {vsq}")
    P(f"v_fma_f32 {vsq}, -{vsum}, {vsum}, {vsq}")
    P(f"v_max_f32 {vsq}, 0, {vsq}")
    round_bf16(P, vnegm, vsum)
    P(f"v_xor_b32 {vnegm}, 0x80000000, {vnegm}")
    round_bf16(P, vsq, vsq)
    P(f"v_add_f32 {vsq}, {hx(1e-5)}, {vsq}")
    round_bf16(P, vsq, vsq)
    P(f"v_sqrt_f32 {vsq}, {vsq}")
    round_bf16(P, vsq, vsq)
    P(f"v_rcp_f32 {vr_}, {vsq}")

def sel_consts(P, vsel, t0, t1, t2):
    P(f"v_mov_b32 v{vsel}, 0\nv_mov_b32 v{vsel+1}, 0\nv_mov_b32 v{vsel+4}, 0\nv_mov_b32 v{vsel+5}, 0")
    P(f"v_and_b32 {t0}, 1, v0\nv_lshlrev_b32 {t0}, 4, {t0}\nv_mov_b32 {t1}, 0x3f80\nv_lshlrev_b32 {t0}, {t0}, {t1}")
    P(f"v_bfe_u32 {t1}, v0, 2, 2\nv_lshrrev_b32 {t2}, 4, v0")
    P(f"v_cmp_eq_u32 vcc, {t1}, {t2}\nv_cndmask_b32 {t0}, 0, {t0}, vcc")
    P(f"v_and_b32 {t1}, 2, v0\nv_cmp_eq_u32 vcc, 0, {t1}")
    P(f"v_cndmask_b32 v{vsel+2}, 0, {t0}, vcc\nv_cndmask_b32 v{vsel+3}, {t0}, v{vsel}, vcc")

def common_prologue(P):
    P("s_cmp_ge_u32 s2, 256\ns_cbranch_scc1 L_exit")
    P("s_load_dwordx4 s[4:7], s[0:1], 0\ns_load_dwordx2 s[8:9], s[0:1], 16\ns_load_dwordx4 s[40:43], s[0:1], 32\ns_load_dwordx4 s[44:47], s[0:1], 56")
    P(f"v_lshrrev_b32 v1, 6, v0\nv_lshlrev_b32 v46, 7, v0\nv_readfirstlane_b32 {sWV}, v1\nv_and_b32 v0, 63, v0")
    if OPT['stamp']: P("s_memrealtime s[78:79]\ns_memtime s[76:77]")
    if OPT['pfcode']:
        P("s_getpc_b64 s[48:49]\ns_bfe_u32 s58, s2, 0x20003\ns_lshl_b32 s58, s58, 15\nv_add_u32 v46, s58, v46")
        P("v_min_u32 v46, CODE_PF_MAX, v46\nglobal_load_dword v47, v46, s[48:49]", tag='dummy')
    if OPT['stamp']:
        for i in range(80, 96): P(f's_mov_b32 s{i}, 0')
    P("s_and_b32 s37, s2, 1\ns_lshl_b32 s37, s37, 3")
    P("s_bfe_u32 s38, s2, 0x20001")
    P(f"s_lshr_b32 s39, s2, 3\ns_and_b32 {sMEM}, s39, 7\ns_add_u32 {sM}, s37, {sMEM}")
    P(f"s_lshr_b32 {sROT}, s39, 3\ns_sub_u32 {sROT}, {sROT}, 1\ns_mul_i32 s50, {sROT}, 3\ns_cmp_lt_u32 s39, 8\ns_cselect_b32 s50, {sMEM}, s50")
    if not OPT['rot']: P(f"s_mov_b32 s50, 0")
    P(f"s_lshl_b32 s53, {sM}, 7\ns_lshl_b32 s54, {sWV}, 5\ns_add_u32 s53, s53, s54\ns_mul_i32 s53, s53, 1152")
    P(f"v_lshrrev_b32 v2, 3, v0\nv_mul_u32_u24 v2, 2304, v2\nv_lshrrev_b32 v3, 4, v0\nv_and_b32 v44, 7, v0\nv_xor_b32 v3, v3, v44\nv_lshlrev_b32 v3, 4, v3")
    P(f"v_add_u32 v44, v2, v3\nv_add_u32 v44, s53, v44\nv_xor_b32 v45, 64, v44\nv_add_u32 v45, {16*1152-1024}, v45")
    P(f"s_lshl_b32 s55, s50, 7\ns_mul_i32 s54, {sWV}, 12288")
    P("s_waitcnt lgkmcnt(0)")
    if OPT['stamp']: P("s_mov_b32 s94, s78\ns_mov_b32 s80, s76")
    P(f"s_mov_b32 s12, s4\ns_mov_b32 s13, s5\ns_mov_b32 s14, {2048*576*2}\ns_mov_b32 s15, 0x20000")
    stamp(P, 101)
    P.add(xdma(0, 0)); P.add(xdma(0, 1)); P.add(xdma(0, 2))
    stamp(P, 102)
    P(f"s_mov_b32 s24, s46\ns_mov_b32 s25, s47\ns_mov_b32 s26, {WS_BYTES}\ns_mov_b32 s27, 0x20000")
    P(f"s_mov_b32 s28, s44\ns_mov_b32 s29, s45\ns_mov_b32 s30, 256\ns_mov_b32 s31, 0x20000")
    P("s_cmp_lt_u32 s39, 8\ns_cbranch_scc1 L_attn")

def xdma(st, S):
    Q = Prog()
    Q(f"s_add_u32 m0, s54, {st*49152+S*4096}\ns_add_u32 s56, s55, 1152")
    Q(f"buffer_load_dwordx4 v44, {sX}, s55 offen lds\nbuffer_load_dwordx4 v45, {sX}, s55 offen offset:1024 lds", tag=f"x{3*st+S}")
    Q(f"s_add_u32 m0, m0, 2048\ns_add_u32 s55, s55, 128")
    Q(f"buffer_load_dwordx4 v44, {sX}, s56 offen lds\nbuffer_load_dwordx4 v45, {sX}, s56 offen offset:1024 lds", tag=f"x{3*st+S}")
    Q(f"s_cmp_eq_u32 s55, 1152\ns_cselect_b32 s55, 0, s55")
    return Q.l

def weave(main, extra, every):
    out = []; k = 0; cnt = 0
    for idx, ins in enumerate(main):
        out.append(ins); cnt += 1
        nxt = main[idx + 1] if idx + 1 < len(main) else None
        safe = nxt is None or ('scc' not in nxt.rd and 'm0' not in nxt.rd)
        if k < len(extra) and cnt >= every and safe:
            out += extra[k]; k += 1; cnt = 0
    for g in extra[k:]: out += g
    return out

def xphase(P, setup, frags, sums, sqs, dmas, nfirst=3):
    lead = OPT['xlead']
    late = [x for x in setup if x.kind == 'vmem']
    P.add([x for x in setup if x.kind != 'vmem'])
    for S in range(nfirst, lead + 1): P.add(xdma(S // 3, S % 3))
    dmas = dict(dmas); dmas[9] = dmas.get(9, []) + late
    stamp(P, 1); stamp(P, 103)
    def dots(S):
        L = []
        for (d, a, o, k) in frags[S]:
            for j in range(4): L += mk(f"v_dot2c_f32_bf16 v{sums[k][j%2]}, s57, v{d+j}\nv_dot2c_f32_bf16 v{sqs[k][j%2]}, v{d+j}, v{d+j}")
        return L
    for S in range(10):
        if S < 9:
            P(f"WAITV x{S}")
            if S in (0, 2, 5, 8): stamp(P, 104 + (0, 2, 5, 8).index(S))
            for n, (d, a, o, k) in enumerate(frags[S]): P(f"ds_read_b128 {vr(d,4)}, v{a} offset:{o}", tag=f"xr{S}")
        if S == 8: stamp(P, 2)
        if S >= 1:
            P(f"WAITL xr{S-1}")
            if S - 1 in (2, 5): P("s_barrier")
        extra = []
        if S + lead + 1 < 9: extra += dgroups(xdma((S + lead + 1) // 3, (S + lead + 1) % 3))
        if S in dmas: extra += dgroups(dmas[S])
        body = dots(S - 1) if S >= 1 else []
        P.add(weave(body, extra, max(1, len(body) // (len(extra) + 1))))
    stamp(P, 108)

RING = 24576; NSLOT = 5; HX = RING * NSLOT
vA1 = [[16, 17, 18], [19, 20, 21]]; vA2 = [[22, 23, 24], [25, 26, 27]]
vD1 = [28, 29, 30, 31]; vD2 = [32, 33, 34, 35]
vHW, vHR, vST = 36, 37, 38
ACC1 = 48; XR = 112
AF = 192

def flag_setup(P, vFLW, sj, tmpv, hop=False):
    P(f"s_lshl_b32 s66, {sM}, 2\ns_add_u32 s66, s66, {sWV}\ns_lshl_b32 s66, s66, 11\ns_lshl_b32 s67, {sj}, 7\ns_add_u32 s66, s66, s67\ns_add_u32 s66, s66, {WS_FLAG}")
    P(f"v_lshrrev_b32 {tmpv}, 5, v0\nv_lshlrev_b32 {tmpv}, 30, {tmpv}\nv_lshl_add_u32 {tmpv}, v0, 2, {tmpv}\nv_add_u32 v{vFLW}, s66, {tmpv}\nv_mov_b32 {tmpv}, 0")
    P(f"buffer_store_dword {tmpv}, v{vFLW}, {sWS}, 0 offen sc1", tag='fz')
    if hop: P(f"s_mov_b32 s37, {HFOFF}\nbuffer_store_dword {tmpv}, v{vFLW}, {sWS}, s37 offen sc1", tag='fz')
def handshake(sj, va, vb, xcc=False):
    Q = Prog()
    Q(f"s_lshl_b32 s66, {sM}, 2\ns_and_b32 s67, {sj}, 3\ns_add_u32 s66, s66, s67\ns_lshl_b32 s66, s66, 2\ns_lshl_b32 s67, {sWV}, 8\ns_add_u32 s66, s66, s67")
    Q(f"v_lshlrev_b32 {va}, 8, v0\nv_add_u32 {va}, s66, {va}")
    if xcc: Q(f"s_getreg_b32 s66, hwreg(HW_REG_XCC_ID)\ns_and_b32 s66, s66, 15\ns_lshl_b32 s67, {sROT}, 2\ns_add_u32 s67, s67, 12\ns_lshl_b32 s66, s66, s67\ns_add_u32 s66, s66, 1\nv_mov_b32 {vb}, s66")
    else: Q(f"v_mov_b32 {vb}, 1")
    Q(f"buffer_atomic_add {vb}, {va}, {sDBG}, 0 offen sc1", tag='hsk', cost=8)
    return Q.l

def sel32(P, SEL):
    P("v_and_b32 v2, 1, v0\nv_lshlrev_b32 v2, 4, v2\nv_mov_b32 v3, 0x3f80\nv_lshlrev_b32 v2, v2, v3")
    P("v_bfe_u32 v3, v0, 2, 1\nv_lshlrev_b32 v3, 1, v3\nv_lshrrev_b32 v4, 4, v0\nv_cmp_eq_u32 vcc, v3, v4\nv_cndmask_b32 v2, 0, v2, vcc")
    P("v_bfe_u32 v3, v0, 3, 1\nv_lshlrev_b32 v3, 1, v3\nv_bfe_u32 v4, v0, 1, 1\nv_add_u32 v3, v3, v4")
    for j in range(4): P(f"v_cmp_eq_u32 vcc, {j}, v3\nv_cndmask_b32 v{SEL+j}, 0, v2, vcc")

def dgroups(lst):
    G = []; cur = []
    for x in lst:
        cur.append(x)
        if x.kind == 'vmem': G.append(cur); cur = []
    if cur: G[-1] += cur
    return G

def flat(groups): return [x for g in groups for x in g]

def ffn():
    P = Prog()
    P(f"s_mov_b32 s50, {sROT}" if OPT['rot'] else "s_mov_b32 s50, 0")
    P(f"s_add_u32 s51, s50, 1\ns_cmp_ge_u32 s51, 3\ns_cselect_b32 s51, 0, s51\ns_add_u32 s52, s51, 1\ns_cmp_ge_u32 s52, 3\ns_cselect_b32 s52, 0, s52")
    P(f"s_mul_i32 {sSL}, s38, 3\ns_add_u32 {sSL}, {sSL}, {sROT}")
    P(f"s_mov_b32 s16, s40\ns_mov_b32 s17, s41\ns_mov_b32 s18, {576*4608*2}\ns_mov_b32 s19, 0x20000")
    P(f"s_mov_b32 s20, s42\ns_mov_b32 s21, s43\ns_mov_b32 s22, {576*4608*2}\ns_mov_b32 s23, 0x20000")
    P(f"s_mul_i32 s59, {sSL}, 768")
    P(f"s_mul_i32 s63, {sSL}, {384*1152}\ns_mul_i32 s64, {sWV}, 6144")
    if OPT['fuse']: P(f"s_lshl_b32 {sSL}, {sROT}, 2\ns_add_u32 {sSL}, {sSL}, s38")
    P("s_load_dwordx2 s[72:73], s[0:1], 48")
    vFLW = 39
    if OPT['fuse']: flag_setup(P, vFLW, sSL, 'v14', True)
    def pf_w(which):
        Q = Prog()
        if which == 1:
            Q(f"s_mul_i32 s66, {sMEM}, {72*9216}\ns_add_u32 s66, s66, s59\ns_lshl_b32 s67, {sWV}, 6\ns_mov_b32 s68, {-(-(1<<32)//6)}")
            for i in range(2):
                Q(f"v_add_u32 v10, s67, v0")
                if i: Q(f"v_add_u32 v10, 256, v10\nv_min_u32 v10, 431, v10")
                Q(f"v_mul_hi_u32 v11, v10, s68\nv_lshlrev_b32 v10, 7, v10\nv_mul_u32_u24 v11, {9216-768}, v11\nv_add_u32 v10, v10, v11")
                Q(f"buffer_load_dword v47, v10, {sWA}, s66 offen", tag='dummy', cost=8)
        else:
            nb = OPT['nb2']; n = 108 // nb
            Q(f"s_lshl_b32 s71, {sMEM}, 2\ns_add_u32 s71, s71, {sWV}\ns_mul_i32 s71, s71, {108*128}\ns_add_u32 s71, s71, s63")
            Q(f"v_min_u32 v44, {n-1}, v0\nv_lshlrev_b32 v44, 7, v44")
            for i in range(nb):
                Q(f"buffer_load_dword v47, v44, {sWB}, s71 offen", tag='dummy', cost=8)
                if i < nb - 1: Q(f"s_add_u32 s71, s71, {n*128}")
        return Q.l
    P(f"v_lshrrev_b32 v2, 3, v0\nv_and_b32 v3, 7, v0")
    P(f"s_mul_i32 s58, {sWV}, 48\nv_add_u32 v4, s58, v2")
    P(f"v_bfe_u32 v5, v0, 4, 1\nv_lshlrev_b32 v5, 2, v5\nv_xor_b32 v5, v5, v3\nv_lshlrev_b32 v5, 4, v5")
    P(f"v_mul_u32_u24 v6, 9216, v4\nv_add_u32 v{vD1[0]}, v6, v5")
    for i in range(1, 4): P(f"v_add_u32 v{vD1[i]}, {i*(8*9216-1024)}, v{vD1[0]}")
    P(f"v_bfe_u32 v5, v0, 4, 2\nv_lshlrev_b32 v5, 1, v5\nv_xor_b32 v5, v5, v3\nv_lshlrev_b32 v5, 4, v5")
    P(f"v_mul_u32_u24 v6, 1152, v4\nv_add_u32 v{vD2[0]}, v6, v5")
    for i in range(1, 4): P(f"v_add_u32 v{vD2[i]}, {i*(8*1152-1024)}, v{vD2[0]}")
    for st in range(3): P(f"s_mul_i32 s{60+st}, s{50+st}, {192*9216}\ns_add_u32 s{60+st}, s{60+st}, s59")

    PA, PS = 40, 3
    g2 = [(0,0),(1,0),(2,0),(0,1),(1,1),(2,1)] + [(p,k) for p in range(3,9) for k in range(2)]
    def dma(s):
        slot = (s % NSLOT) * RING
        if s < 18:
            p, st = s // 3, s % 3
            srd, vD, base, add, big = sWA, vD1, f"s{60+st}", p * 128, 32 * 9216
        else:
            p, k = g2[s - 18]
            srd, vD, base, add, big = sWB, vD2, f"s{PA+p}", k * 192 * 1152, 32 * 1152
        t = f"d{s}"
        G = mk(f"s_add_u32 m0, s64, {slot}\ns_add_u32 s65, {base}, {add}")
        for i in range(4): G += mk(f"buffer_load_dwordx4 v{vD[i]}, {srd}, s65 offen offset:{1024*i} lds", tag=t, cost=8)
        G += mk(f"s_add_u32 m0, s64, {slot+4096}\ns_add_u32 s65, {base}, {add+big}")
        for i in range(2): G += mk(f"buffer_load_dwordx4 v{vD[i]}, {srd}, s65 offen offset:{1024*i} lds", tag=t, cost=8)
        return G
    P(f"v_lshrrev_b32 v2, 5, v0\nv_lshlrev_b32 v2, 12, v2\nv_bfe_u32 v3, v0, 2, 2\nv_lshlrev_b32 v3, 7, v3\nv_add_u32 v2, v2, v3")
    P(f"v_bfe_u32 v3, v0, 4, 1\nv_lshlrev_b32 v3, 5, v3\nv_add_u32 v2, v2, v3\nv_and_b32 v3, 3, v0\nv_lshlrev_b32 v3, 3, v3\nv_add_u32 v2, v2, v3")
    P(f"v_bfe_u32 v3, v0, 3, 1\nv_lshlrev_b32 v3, 6, v3\nv_add_u32 v{vA1[0][0]}, v2, v3\nv_xor_b32 v{vA1[1][0]}, 64, v{vA1[0][0]}")
    P(f"v_lshrrev_b32 v2, 2, v0\nv_lshlrev_b32 v2, 7, v2\nv_and_b32 v3, 3, v0\nv_lshlrev_b32 v3, 3, v3\nv_add_u32 v2, v2, v3")
    P(f"s_and_b32 s69, {sWV}, 1\ns_lshl_b32 s69, s69, 1\nv_bfe_u32 v3, v0, 3, 2\nv_xor_b32 v3, s69, v3\nv_lshlrev_b32 v3, 5, v3")
    P(f"v_add_u32 v{vA2[0][0]}, v2, v3\nv_xor_b32 v{vA2[1][0]}, 32, v{vA2[0][0]}")
    for vA in (vA1, vA2):
        for u in range(2):
            for b in (1, 2): P(f"v_add_u32 v{vA[u][b]}, {b*2*RING}, v{vA[u][0]}")
    P(f"v_bfe_u32 v2, v0, 4, 1\nv_lshlrev_b32 v2, 10, v2\nv_lshrrev_b32 v3, 5, v0\nv_lshlrev_b32 v3, 8, v3\nv_add_u32 v2, v2, v3")
    P(f"v_and_b32 v3, 15, v0\nv_lshlrev_b32 v3, 4, v3\nv_add_u32 v2, v2, v3\ns_lshl_b32 s69, {sWV}, 11\ns_add_u32 s69, s69, {HX}\nv_add_u32 v{vHW}, s69, v2")
    if OPT['fuse']: P(f"s_and_b32 s69, {sSL}, 3\ns_lshl_b32 s69, s69, 10\nv_xor_b32 v{vHW}, s69, v{vHW}")
    P(f"v_lshlrev_b32 v{vST}, 4, v0\ns_lshr_b32 s69, {sWV}, 1\ns_lshl_b32 s69, s69, 12\ns_add_u32 s69, s69, {HX}\nv_add_u32 v{vHR}, s69, v{vST}")
    P(f"s_lshl_b32 s70, {sM}, 4\ns_add_u32 s70, s70, {sSL}\ns_lshl_b32 s70, s70, 1\ns_lshr_b32 s69, {sWV}, 1\ns_add_u32 s70, s70, s69")
    P(f"s_mul_i32 s70, s70, 18\ns_and_b32 s69, {sWV}, 1\ns_add_u32 s70, s70, s69\ns_lshl_b32 s70, s70, 12")
    P(f"s_lshr_b32 s66, {sSL}, 2\ns_mul_i32 s67, {sM}, 43\ns_lshr_b32 s67, s67, 7")
    P(f"s_mul_i32 s68, s67, 3\ns_sub_u32 s68, {sM}, s68\ns_add_u32 s68, s68, s66\ns_add_u32 s68, s68, 1")
    P(f"s_cmp_ge_u32 s68, 3\ns_cselect_b32 s69, 3, 0\ns_sub_u32 s68, s68, s69")
    P(f"s_cmp_ge_u32 s67, 3\ns_cselect_b32 s69, 3, 0\ns_sub_u32 s67, s67, s69")
    if not OPT['fuse']: P("s_mov_b32 s67, 0\ns_mov_b32 s68, 0")
    for ph in range(3):
        for k in range(3):
            p = 3 * ph + k
            P(f"s_mul_i32 s69, s68, 3\ns_add_u32 s69, s69, s67\ns_lshl_b32 s{PA+p}, s69, 7\ns_add_u32 s{PA+p}, s{PA+p}, s63\ns_lshl_b32 s{PS+p}, s69, 13\ns_add_u32 s{PS+p}, s{PS+p}, s70")
            P("s_add_u32 s67, s67, 1\ns_cmp_eq_u32 s67, 3\ns_cselect_b32 s67, 0, s67")
        if ph < 2: P("s_add_u32 s68, s68, 1\ns_cmp_eq_u32 s68, 3\ns_cselect_b32 s68, 0, s68")
    JS = 147456
    P(f"s_and_b32 s67, {sSL}, 3")
    for d in range(4): P(f"s_xor_b32 s{96+d}, s67, {d}\ns_mul_i32 s{96+d}, s{96+d}, {JS}\ns_add_u32 s{96+d}, s{96+d}, {1024*d}")
    P(f"s_mul_i32 s71, {sSL}, {JS}\ns_lshl_b32 s50, s67, 10\ns_add_u32 s50, s50, {12*JS}\ns_sub_u32 s50, s50, s71")
    P(f"s_add_u32 s68, s66, 2\ns_cmp_ge_u32 s68, 3\ns_cselect_b32 s69, 3, 0\ns_sub_u32 s68, s68, s69\ns_sub_u32 s68, s68, s66\ns_mul_i32 s101, s68, {4*JS}")
    P(f"s_add_u32 s68, s66, 1\ns_cmp_ge_u32 s68, 3\ns_cselect_b32 s68, 0, s68\ns_lshl_b32 s69, s68, 2\ns_add_u32 s51, s69, s67\ns_sub_u32 s68, s68, s66\ns_mul_i32 s100, s68, {4*JS}")
    P(f"s_mul_i32 s49, s66, {4*JS}\ns_sub_u32 s49, s49, s71\ns_lshl_b32 s68, s66, 2\ns_lshl_b32 s53, 15, s68\ns_lshl_b32 s68, 1, {sSL}\ns_andn2_b32 s53, s53, s68\ns_mov_b32 s52, 0xf000")
    P(f"v_and_b32 v2, 31, v0\nv_lshlrev_b32 v2, 7, v2\nv_add_u32 v2, s54, v2\nv_bfe_u32 v3, v0, 1, 3\nv_lshrrev_b32 v4, 5, v0\nv_lshlrev_b32 v4, 2, v4\nv_xor_b32 v3, v3, v4\nv_lshlrev_b32 v3, 4, v3")
    P(f"v_add_u32 v80, v2, v3\nv_xor_b32 v81, 16, v80\nv_xor_b32 v82, 32, v80\nv_xor_b32 v83, 48, v80")
    for j in range(4): P(f"v_add_u32 v{84+j}, 98304, v{80+j}")
    SEL = 40
    sel32(P, SEL)
    P("v_mov_b32 v8, 0\nv_mov_b32 v9, 0\nv_mov_b32 v12, 0\nv_mov_b32 v13, 0\ns_mov_b32 s57, 0x3f803f80")
    P(f"s_waitcnt lgkmcnt(0)\ns_mov_b32 s74, {2048*576*2}\ns_mov_b32 s75, 0x20000")
    setup = P.l; P.l = []
    fr = [[(XR + 4 * (4 * S + f), (80 if S < 6 else 84) + f, ((S // 3) % 2) * 49152 + (S % 3) * 4096, 0) for f in range(4)] for S in range(9)]
    d0, d1, d2 = dma(0), dma(1), dma(2)
    xphase(P, setup, fr, [[8, 9]], [[12, 13]], {5: d0[:6], 6: d0[6:], 7: d1[:6], 8: d1[6:] + (d2[:6] if OPT['dpre'] == 3 else []), 9: d2[6:] if OPT['dpre'] == 3 else []})
    P("v_add_f32 v8, v8, v9\nv_add_f32 v12, v12, v13\nv_mov_b32 v9, v8\nv_mov_b32 v13, v12\nv_permlane32_swap_b32 v8, v9\nv_permlane32_swap_b32 v12, v13\nv_add_f32 v8, v8, v9\nv_add_f32 v12, v12, v13")
    def um(F): return mk(f"v_mfma_f32_32x32x16_bf16 {vr(ACC1+32+16*(F%2),16)}, {vr(SEL,4)}, {vr(XR+4*F,4)}, 0")
    def nv(F):
        d = ACC1 + 32 + 16 * (F % 2); x = XR + 4 * F
        o = []
        for j in range(8): o += mk(f"v_fma_f32 v{d+j}, v{d+j}, v2, v3")
        for j in range(4): o += mk(f"v_cvt_pk_bf16_f32 v{x+j}, v{d+2*j}, v{d+2*j+1}")
        return o
    P.add(um(0)); P.add(um(1))
    ln_stats(P, 'v8', 'v12', 'v4', 'v2', 'v3')
    P(f"v_mul_f32 v2, {hx(LOG2E)}, v2\nv_mul_f32 v3, v4, v2")

    uses = []
    for p in range(6):
        for st in range(3):
            s = 3 * p + st; slot = s % NSLOT
            for S in range(3):
                for ss in range(4):
                    F = st * 12 + S * 4 + ss
                    for u in range(2):
                        n = len(uses); af = AF + 4 * (n % 16)
                        off = (slot % 2) * RING + (64 * S + 8 * ss) * 128
                        va = vA1[u][slot // 2]
                        rd = mk(f"ds_read_b64_tr_b16 {ar(af,2)}, v{va} offset:{off}\nds_read_b64_tr_b16 {ar(af+2,2)}, v{va} offset:{off+512}", tag=f"r{n}")
                        acc = vr(ACC1 + 32 * (p % 2) + 16 * u, 16)
                        mf = mk(f"v_mfma_f32_32x32x16_bf16 {acc}, {ar(af,4)}, {vr(XR+4*F,4)}, {'0' if F == 0 else acc}")
                        uses.append((s, rd, mf))
    N1 = len(uses)
    ACC2 = XR; STG = XR + 128
    for si, (p, k) in enumerate(g2):
        s = 18 + si; slot = s % NSLOT
        for kk in range(6):
            ks = 6 * k + kk
            for u in range(2):
                n = len(uses); af = AF + 4 * (n % 16)
                off = (slot % 2) * RING + 32 * kk * 128
                va = vA2[u][slot // 2]
                rd = mk(f"ds_read_b64_tr_b16 {ar(af,2)}, v{va} offset:{off}\nds_read_b64_tr_b16 {ar(af+2,2)}, v{va} offset:{off+2048}", tag=f"r{n}")
                mf = []
                for j in range(4):
                    acc = vr(ACC2 + 32 * (p % 4) + 8 * j + 4 * u, 4)
                    mf += mk(f"v_mfma_f32_16x16x32_bf16 {acc}, {ar(af,4)}, {ar(16*ks+4*j,4)}, {'0' if ks == 0 else acc}")
                uses.append((s, rd, mf))
    NU = len(uses)
    PD1, PD2 = OPT['pd1'], OPT['pd2']
    rd_at = {}
    for n in range(NU):
        if n < N1: g = n - PD1
        else:
            g = n - PD2
            if g < N1: g = N1 - 1 - 2 * (N1 - 1 - g)
        rd_at.setdefault(g, []).append(n)
    bar_at = {}
    for g in sorted(rd_at):
        for n in rd_at[g]:
            s = uses[n][0]
            if s not in bar_at: bar_at[s] = g
    extra_lw = {}
    def hw_tag(ks): return f"hw{ks}"
    def rstage(ks):
        p = ks // 2
        if p <= 3: return 3 * (p + 2) + 1
        if p == 4: return 19
        return 21
    for ks in range(1, 12, 2): extra_lw[rstage(ks)] = hw_tag(ks)
    def barrier(s):
        if s in extra_lw: return mk(f"WAITVL d{s}, {extra_lw[s]}\ns_barrier")
        return mk(f"WAITV d{s}\ns_barrier")
    P.add(barrier(0))
    for g in sorted(rd_at):
        if g < 0:
            for n in rd_at[g]: P.add(uses[n][1])
    P.add(nv(0))
    P("WAITL r3")
    stamp(P, 3)
    S16 = 16
    AOFF = {3: OPT['a3'], 4: OPT['a4'], 5: 1, 6: 1, 7: 1, 8: 0}
    def ustart(p): return N1 + 12 * (6 + 2 * (p - 3))
    nacc = {ustart(p) + AOFF[p] + 23: p for p in range(3, 8)} if OPT['fuse'] else {}
    gacc = {}
    def HB(p): return 48 + 16 * (p % 2)
    def accum(dst, src, first=False):
        return mk(f"v_mfma_f32_16x16x32_bf16 {vr(dst,4)}, {vr(S16+2,4)}, {src}, {'0' if first else vr(dst,4)}\nv_mfma_f32_16x16x32_bf16 {vr(dst+4,4)}, {vr(S16,4)}, {src}, {'0' if first else vr(dst+4,4)}")
    def hopacc(p):
        L = []
        for j in range(4): L += accum(ACC2 + 32 * (p % 4) + 8 * j, vr(HB(p) + 4 * j, 4))
        return L[0::2] + L[1::2]
    SC = Sched()
    gi = {}
    gu = {}
    for n in range(NU):
        mf = uses[n][2]
        if n in nacc:
            SC.tail[-1] += mk(f"WAITV hl{nacc[n]}")
            for m_ in hopacc(nacc[n]): gacc[nacc[n]] = SC.gap([m_], 16)
        if n < 72 and n % 2 == 0 and n // 2 + 2 < 36:
            gu[n // 2 + 2] = SC.gap(um(n // 2 + 2), 32)
        bar = []
        for s, g in bar_at.items():
            if g == n: bar = barrier(s)
        rds = []
        for nn in rd_at.get(n, []): rds += uses[nn][1]
        if n < N1:
            g = SC.gap(mf, 32); gi[n] = g
            SC.mand[g] += bar + rds
            if n % 4 == 3 and n + 1 < N1: SC.tail[g] += mk(f"WAITL r{n+4}")
            if n == N1 - 1: SC.tail[g] += mk(f"WAITL r{n+2}")
        else:
            gs = [SC.gap([m], 16) for m in mf]; gi[n] = gs[0]
            if bar:
                SC.mand[gs[0]] += bar
                for i, t in enumerate(rds): SC.mand[gs[1 + i]].append(t)
            else:
                for i, t in enumerate(rds): SC.mand[gs[2 * i]].append(t)
            if (n - N1) % 2 == 1 and n + 1 < NU: SC.tail[gs[3]] += mk(f"WAITL r{n+2}")
    gi[NU] = len(SC.head)

    def silu(ks):
        p, u = ks // 2, ks % 2
        a = ACC1 + 32 * (p % 2) + 16 * u
        F = []
        T = [1, 2, 3, 4, 5, 6, 7, 46]
        stg = 8
        def E(q, j): return mk(f"v_exp_f32_e64 v{T[4*(q%2)+j]}, -v{a+4*q+j}")
        def Ad(q, j): return mk(f"v_add_f32 v{T[4*(q%2)+j]}, 1.0, v{T[4*(q%2)+j]}")
        def R(q, j): return mk(f"v_rcp_f32 v{T[4*(q%2)+j]}, v{T[4*(q%2)+j]}")
        def M(q, j): return mk(f"v_mul_f32 v{T[4*(q%2)+j]}, v{a+4*q+j}, v{T[4*(q%2)+j]}")
        def C(q):
            d = stg + 4 * (q % 2) + 2 * (q // 2); t = T[4*(q%2):4*(q%2)+4]
            o = mk(f"v_cvt_pk_bf16_f32 v{d}, v{t[0]}, v{t[1]}\nv_cvt_pk_bf16_f32 v{d+1}, v{t[2]}, v{t[3]}")
            if q >= 2: o += mk(f"ds_write_b128 v{vHW}, {vr(stg+4*(q%2),4)} offset:{(ks%4)*8192+512*(q%2)}", tag=hw_tag(ks), cost=OPT['wcost'])
            return o
        for q in range(4):
            F += E(q, 0) + E(q, 1)
            F += E(q, 2) + Ad(q, 0) + Ad(q, 1)
            F += E(q, 3) + Ad(q, 2)
            F += R(q, 0) + Ad(q, 3)
            F += R(q, 1) + M(q, 0)
            F += R(q, 2) + M(q, 1)
            F += R(q, 3) + M(q, 2)
            c = C(q)
            F += [c[0]] + M(q, 3) + c[1:]
        return F
    def hread(ks):
        return flat([mk(f"ds_read_b128 {ar(16*ks+4*j,4)}, v{vHR} offset:{(ks%4)*8192+1024*j}", tag=f"hr{ks}") for j in range(4)])
    def epi(p):
        a = ACC2 + 32 * (p % 4)
        F = []
        for j in range(4):
            if OPT['fuse'] and p >= 6 and j == 0: continue
            for u in range(2):
                for h in range(2): F += mk(f"v_cvt_pk_bf16_f32 v{STG+4*j+2*u+h}, v{a+8*j+4*u+2*h}, v{a+8*j+4*u+2*h+1}")
            F += mk(f"buffer_store_dwordx4 {vr(STG+4*j,4)}, v{vST}, {sWS}, s{PS+p} offen offset:{1024*j}{STMOD if (p >= 6 or not OPT['fuse']) else ''}", tag=f'st{p}', cost=8)
        return F

    for s in range(0, 33):
        g0 = gi[bar_at[s]] + 1 if bar_at[s] >= 0 else 0
        g1 = gi[bar_at[s + 1]]
        SC.place((dma(2) if (s == 0 and OPT['dpre'] == 2) else []) + dma(s + 3), g0, g1, 'spread', f'dma{s+3}')
    for ks in range(12):
        g0 = gi[bar_at[rstage(ks)]] + 1 + (ks % 2) * 8
        SC.place(hread(ks), g0, g0 + 8, 'spread', f'hr{ks}')
    if OPT['fuse']: SC.place(handshake(sSL, 'v44', 'v45', True), gi[bar_at[3]] + 1, gi[bar_at[3]] + 12, 'spread', 'hsk')
    if OPT['pfw'] & 1: SC.place(pf_w(1), 20, 70, 'spread', 'pf1')
    if OPT['pfw'] & 2: SC.place(pf_w(2), gi[90], gi[400], 'spread', 'pf2')
    for F in range(1, 36):
        g0 = gu.get(F + 1, gi[2 * (F - 1)]); g1 = gi[2 * (F - 1) + 1] + 1
        SC.place(nv(F), g0, g1, 'asap', f'nv{F}')
    for p in range(5):
        b = 72 * (p + 1)
        SC.place(silu(2 * p) + silu(2 * p + 1), gi[b + 2], gi[b + 72], 'asap', f'silu{p}')
    SC.place(silu(10) + silu(11), gi[N1] + 6, gi[bar_at[21]] - 2, 'asap', 'silu5')
    last_stage = {}; gepi = {}
    for si, (p, k) in enumerate(g2):
        if k == 1: last_stage[p] = si
    for p in range(8):
        g0 = gi[N1 + 12 * (last_stage[p] + 1)] + 5
        if p in gacc: g0 = gacc[p] + 5
        gepi[p] = SC.place(epi(p), g0, g0 + (42 if not OPT['fuse'] else 30), 'spread' if not OPT['fuse'] else 'asap', f'epi{p}')[-1]
    slow = []
    def gs(si, off=0): return gi[N1 + 12 * si] + off
    if OPT['fuse']:
        vFR, vFV, vXO, vC = 28, 29, 30, 31
        def site(name, load, tag, chk, g0, g1):
            L = mk(f"WAITV {tag}") + mk(chk) + mk(f"s_cbranch_scc0 L_slow{name}\nL_back{name}:")
            head, tailp = L[:-4], L[-4:]
            pos = SC.place(head, g0, g1, 'asap', name)
            SC.fill[pos[-1] + 1] += tailp
            slow.extend(mk(f"L_slow{name}:\ns_mov_b32 s68, 0\nL_spin{name}:\n{load}\ns_waitcnt vmcnt(0)\n{chk}\ns_cbranch_scc1 L_back{name}\ns_sleep 1\ns_add_u32 s68, s68, 1\ns_cmp_lt_u32 s68, 0x80000\ns_cbranch_scc1 L_spin{name}\ns_branch L_back{name}", cond=True))
            return pos[-1] + 2
        hload = f"buffer_load_dword v41, v40, {sDBG}, 0 offen sc1"
        SC.place(mk(f"s_lshl_b32 s66, {sM}, 4\nv_and_b32 v40, 3, v0\nv_lshlrev_b32 v40, 2, v40\nv_add_u32 v40, s66, v40") + mk(hload, tag='hc', cost=8), gi[130], gi[142], 'spread', 'hc')
        g = site('H', hload, 'hc', f"v_and_b32 v42, 0xff, v41\nv_cmp_le_u32 vcc, 4, v42\ns_and_b32 s66, vcc_lo, 15\ns_cmp_eq_u32 s66, 15", gi[170], gi[180])
        MD = mk(f"v_readlane_b32 s66, v41, s38\ns_lshr_b32 s67, s66, 4\ns_xor_b32 s66, s66, s67")
        pos = SC.place(MD, g, gi[190], 'spread', 'mode')
        fb = "s_or_b32 s66, s66, 0x1000\n" if OPT['forcefb'] else ""
        SC.fill[pos[-1] + 1] += mk(f"{fb}s_and_b32 s66, s66, 0xff000\ns_cselect_b32 s58, 0, 1\ns_cselect_b32 s59, s100, 0\ns_cselect_b32 s100, 0, s100\ns_cselect_b32 s101, 0, s101")
        SC.place(mk("\n".join(f"s_add_u32 s{PS+p}, s{PS+p}, s{100 + p // 3}" for p in range(6))), pos[-1] + 2, gi[205], 'spread', 'psfix')
        SC.place(mk(f"buffer_load_dword v47, v{vFLW}, {sWS}, s37 offen sc1", tag='dummy', cost=8), gi[205], gi[215], 'asap', 'pfflag')
        if OPT['pfh'] & 2:
            L = []
            for p in range(3):
                for j in range(4): L += mk(f"buffer_store_dwordx4 {vr(XR,4)}, v{vST}, {sWS}, s{PS+p} offen offset:{1024*j} sc1", tag='pw', cost=16)
            SC.place(L, gi[208], gi[300], 'spread', 'prewrite')
        if OPT['pfh'] & 1:
            hs = OPT['hsplit']
            L = mk(f"v_and_b32 v40, {32//hs-1}, v0\nv_lshlrev_b32 v40, 7, v40") + (mk("WAITV pw") if OPT['pfh'] & 2 else [])
            for p in range(3):
                for h in range(hs): L += mk(f"buffer_load_dword v47, v40, {sWS}, s{PS+p} offen offset:{h*4096//hs} sc1", tag='dummy', cost=8)
            SC.place(L, gi[OPT['pfh0']], gi[425], 'spread', 'pfh')
        SQ = Prog()
        SQ(f"s_lshl_b32 s66, {sM}, 2\ns_add_u32 s67, s66, {sWV}\ns_lshl_b32 s67, s67, 11\ns_and_b32 s68, {sWV}, 2\ns_add_u32 s66, s66, s68\ns_bfe_u32 s68, {sSL}, 0x10001\ns_add_u32 s66, s66, s68\ns_lshl_b32 s66, s66, 11")
        SQ(f"s_lshl_b32 s51, s51, 7\ns_add_u32 s51, s51, s67\ns_add_u32 s51, s51, {WS_FLAG + HFOFF}\nv_mov_b32 v43, s51")
        SQ(f"v_and_b32 v40, 15, v0\nv_mov_b32 v41, s67\nv_mov_b32 v42, s66\nv_cmp_gt_u32 vcc, 12, v40\nv_lshlrev_b32 v40, 7, v40\nv_add_u32 v40, {WS_FLAG}, v40\nv_cndmask_b32 v41, v42, v41, vcc\nv_add_u32 v{vFR}, v40, v41")
        SQ(f"s_or_b32 vcc_lo, s52, s53\ns_mov_b32 vcc_hi, 0\nv_mov_b32 v40, 2.0\nv_cndmask_b32 v{vFR}, v40, v{vFR}, vcc")
        sel_consts(SQ, S16, 'v40', 'v41', 'v42')
        SQ(f"s_lshl_b32 s66, {sM}, 7\ns_and_b32 s67, {sWV}, 2\ns_lshl_b32 s67, s67, 5\ns_add_u32 s66, s66, s67\ns_and_b32 s67, {sSL}, 2\ns_lshl_b32 s67, s67, 4\ns_add_u32 s66, s66, s67\ns_and_b32 s67, {sSL}, 1\ns_add_u32 s66, s66, s67")
        SQ(f"v_and_b32 v40, 15, v0\nv_lshlrev_b32 v40, 1, v40\nv_add_u32 v40, s66, v40\nv_mul_u32_u24 v40, 1152, v40\nv_lshrrev_b32 v41, 4, v0\nv_lshlrev_b32 v41, 3, v41\ns_and_b32 s67, {sWV}, 1\ns_lshl_b32 s67, s67, 6\nv_add3_u32 v{vXO}, v40, v41, s67")
        SC.place(SQ.l, gs(3, 0), gs(6), 'asap', 'tailsetup')
        fload = f"buffer_load_dword v{vFV}, v{vFR}, {sWS}, 0 offen sc1"
        def chk(thr, mask): return f"v_cmp_le_u32 vcc, {thr}, v{vFV}\ns_and_b32 s66, vcc_lo, {mask}\ns_cmp_eq_u32 s66, {mask}"
        def fstore(val): return mk(f"buffer_store_dword v{vC}, v{vFLW}, {sWS}, 0 offen sc1", tag=f'fl{val}', cost=8)
        for p in range(6):
            g = gepi[p] + OPT['fdel']
            pos = SC.place(mk(f"v_mov_b32 v{vC}, {p+1}") + mk(f"WAITV st{p}"), g, g + 20, 'asap', f'flag{p}')
            hst = f"buffer_store_dword v{vC}, v{vFLW}, {sWS}, s37 offen"
            SC.fill[pos[-1] + 1] += mk(f"s_cmp_eq_u32 s58, 0\ns_cbranch_scc1 L_rel{p}") + mk(hst, tag=f'fl{p+1}', cost=8) + mk(f"L_relb{p}:")
            slow.extend(mk(f"L_rel{p}:\nbuffer_wbl2 sc1\ns_waitcnt vmcnt(0)\n{hst} sc1\ns_branch L_relb{p}", cond=True))
        pload = f"buffer_load_dword v{vFV}, v43, {sWS}, 0 offen sc1"
        for p in range(3, 9):
            u0 = ustart(p) + AOFF[p]
            SC.place(mk(pload, tag=f'pp{p}', cost=8), gi[u0], gi[u0 + 3], 'asap', f'pp{p}')
            ck = f"v_cmp_le_u32 vcc, {p-2}, v{vFV}"
            pos = SC.place(mk(f"WAITV pp{p}") + mk(ck), gi[u0 + OPT['pchk']], gi[u0 + OPT['pchk'] + 3], 'asap', f'chk{p}')
            SC.fill[pos[-1] + 2] += mk(f"s_cbranch_vccz L_slowP{p}\nL_backP{p}:")
            slow.extend(mk(f"L_slowP{p}:\n" + (f"s_add_u32 s93, s93, {1 << (4*(p-3))}\n" if OPT['stamp'] else "") + f"s_mov_b32 s68, 0\nL_spinP{p}:\n{pload}\ns_waitcnt vmcnt(0)\n{ck}\ns_add_u32 s68, s68, 1\ns_nop 4\ns_cbranch_vccnz L_backP{p}\ns_cmp_lt_u32 s68, 0x80000\ns_cbranch_scc1 L_spinP{p}\ns_branch L_backP{p}", cond=True))
            L = mk(f"s_add_u32 s69, s{PS+p}, s59")
            for j in range(4): L += mk(f"buffer_load_dwordx4 {vr(HB(p)+4*j,4)}, v{vST}, {sWS}, s69 offen offset:{1024*j} sc1", tag=f"hl{p}", cost=8)
            g = SC.place(L, pos[-1] + 3, gi[u0 + OPT['pchk'] + 8], 'asap', f'hl{p}')[-1]
        SC.place(mk(fload, tag='p1', cost=8), g + 1, len(SC.head), 'asap', 'p1')
    print("; overflow cycles: pass0 %d, pass1-5 %d, gemm2 %d" % (SC.overflow(0, gi[72]), SC.overflow(gi[72], gi[N1]), SC.overflow(gi[N1])), file=sys.stderr)
    marks = [gi[72], gi[144], gi[N1], gi[N1 + 72]]
    ids = [4, 5, 6, 7]
    if OPT['marks'] == 2:
        marks = [gs(12), gs(13), gs(14), gs(15), gs(16), gs(17), len(SC.head)]; ids = [1, 2, 3, 4, 5, 6, 7]
    if OPT['marks'] == 3:
        marks = [gs(6), gs(7), gs(8), gs(9), gs(10), gs(11), gs(12)]; ids = [1, 2, 3, 4, 5, 6, 7]
    if OPT['marks'] == 1:
        marks = [gs(0), gs(6), gs(8), gs(10), gs(12), gs(14), gs(16)]; ids = [1, 2, 3, 4, 5, 6, 7]
    prev = 0
    for i, g in zip(ids, marks):
        P.add(SC.emit(prev, g)); stamp(P, i); prev = g
    P.add(SC.emit(prev))
    if OPT['fuse']:
        P("WAITV hl8"); P.add(hopacc(8))
    P.add(epi(8))
    k0 = [i for i, x in enumerate(P.l) if x.text.startswith('WAITL r3')][0]
    def keep(x):
        if OPT['nosilu'] and x.base in ('v_exp_f32', 'v_rcp_f32', 'v_add_f32', 'v_mul_f32'): return False
        if OPT['nodma'] and x.kind == 'vmem' and 'lds' in x.mods: return False
        if OPT['nodma'] and x.op == 'WAITV': return False
        if OPT['nobar'] and x.kind == 'bar': return False
        if OPT['nost'] and (x.tag or '').startswith('st'): return False
        return True
    def fix(x):
        if OPT['nodma'] and x.op == 'WAITVL': return I('WAITL ' + x.ops[1])
        return x
    P.l = P.l[:k0] + [fix(x) for x in P.l[k0:] if keep(x)]
    stamp(P, 8)
    if OPT['fuse']:
        XV = 4
        for k in range(3):
            P(f"s_sub_u32 s{60+k}, s{PA+6+k}, s63")
            P(f"buffer_load_dwordx2 {vr(XV+4*k,2)}, v{vXO}, {sX}, s{60+k} offen\nbuffer_load_dwordx2 {vr(XV+4*k+2,2)}, v{vXO}, {sX}, s{60+k} offen offset:32", tag='xo')
        G = [ACC2 + 32 * ((6 + k) % 4) for k in range(3)]
        SS = [g + 8 for g in G]
        def sloads(cond):
            for k in range(3):
                P(f"s_add_u32 s69, s{PS+6+k}, s50", cond=cond)
                for g in range(4):
                    P(f"buffer_load_dwordx4 {ar(28*k+12+4*g,4)}, v{vST}, {sWS}, s69 offen sc1", tag="ls", cond=cond)
                    if g < 3: P(f"s_add_u32 s69, s69, {JS}", cond=cond)
        def spin(name, thr, mask):
            P(f"s_mov_b32 s68, 0\nL_spin{name}:")
            P(fload + "\ns_waitcnt vmcnt(0)\n" + chk(thr, mask) + f"\ns_cbranch_scc1 L_done{name}\ns_sleep {OPT['slp']}\ns_add_u32 s68, s68, 1\ns_cmp_lt_u32 s68, 0x80000\ns_cbranch_scc1 L_spin{name}\nL_done{name}:")
        P(f"v_mov_b32 v{vC}, 9\nWAITV p1\n" + chk(9, 's52') + "\ns_cbranch_scc0 L_noS")
        sloads(True)
        P("s_waitcnt vmcnt(18)", cond=True); P.add(mk(fstore(9)[0].text, cond=True)); stamp(P, 12); P("s_branch L_C", cond=True)
        P("L_noS:")
        P("WAITV st8"); P.add(fstore(9)); stamp(P, 12)
        spin('S', 9, 's52')
        sloads(False)
        P(chk(9, 's53') + "\ns_cbranch_scc1 L_doneC")
        P("L_C:")
        stamp(P, 9)
        spin('C', 9, 's53')
        stamp(P, 10)
        for k in range(3):
            P(f"s_add_u32 s67, s{PS+6+k}, s49")
            for d in range(1, 4): P(f"s_add_u32 s69, s67, s{96+d}\nbuffer_load_dwordx4 {ar(28*k+4*(d-1),4)}, v{vST}, {sWS}, s69 offen sc1", tag=f"lc{k}")
        P("s_waitcnt vmcnt(9)")
        for k in range(3):
            for g in range(4): P.add(accum(SS[k], ar(28 * k + 12 + 4 * g, 4), g == 0))
        P(f"s_mov_b32 s66, 0xffff0000\ns_mov_b32 s67, {hx(LN2)}")
        XU = 80
        for d in range(12): P(f"v_lshlrev_b32 v{XU+2*d}, 16, v{XV+d}\nv_and_b32 v{XU+2*d+1}, s66, v{XV+d}")
        for k in range(3):
            P(f"WAITV lc{k}")
            for d in range(3): P.add(accum(G[k], ar(28 * k + 4 * d, 4)))
            g_, s_, t_, pk = G[k], SS[k], G[k] + 16, G[k] + 24
            for i in range(8): P(f"v_exp_f32_e64 v{t_+i}, -v{g_+i}")
            for i in range(8): P(f"v_add_f32 v{t_+i}, 1.0, v{t_+i}")
            for i in range(8): P(f"v_rcp_f32 v{t_+i}, v{t_+i}")
            for i in range(8): P(f"v_mul_f32 v{g_+i}, v{g_+i}, v{s_+i}")
            for i in range(8): P(f"v_mul_f32 v{g_+i}, v{g_+i}, v{t_+i}")
            for i in range(8): P(f"v_fma_f32 v{g_+i}, v{g_+i}, s67, v{XU+8*k+i}")
            for d in range(4): P(f"v_cvt_pk_bf16_f32 v{pk+d}, v{g_+2*d}, v{g_+2*d+1}")
            P(f"buffer_store_dwordx2 {vr(pk,2)}, v{vXO}, s[72:75], s{60+k} offen\nbuffer_store_dwordx2 {vr(pk+2,2)}, v{vXO}, s[72:75], s{60+k} offen offset:32")
        stamp(P, 11)
    stamp_flush(P, 12)
    P("s_endpgm")
    P.add(slow)
    return P.l

def attn():
    P = Prog()
    P("s_endpgm")
    return P.l

def final():
    P = Prog()
    P("s_endpgm")
    return P.l

def finish(lst):
    lst = resolve_waits(lst)
    lst, nfix = fix_hazards(lst, OPT['verbose'])
    errs = check_scoreboard(lst)
    for e in errs[:20]: print("; SCOREBOARD ERR", e, file=sys.stderr)
    assert not errs
    lst, mis, sz = align_pass(lst)
    print(f"; hazard nops inserted: {nfix}, instrs: {len(lst)}, misaligned {mis}, bytes {sz}", file=sys.stderr)
    return lst

def main():
    try:
        import gen_attn
    except ImportError:
        gen_attn = None
    P0 = Prog(); common_prologue(P0)
    f = finish(P0.l + ffn())[:]
    a = finish(P0.l + (gen_attn.attn(globals()) if gen_attn and OPT['attn'] else attn()))
    a = a[[i for i, x in enumerate(a) if x.text.startswith('s_cbranch_scc1 L_attn')][0] + 1:]
    k2 = finish(gen_attn.final(globals()) if gen_attn else final())
    out = []
    MK = NAME + "_kernel" if OPT['fuse'] else "main_kernel"
    if OPT['fuse']: out.append(f"; @launch grid=(256,1,1) block=(256,1,1) lds={LDS_BYTES}")
    else:
        out.append(f"; @launch kernel=main_kernel grid=(256,1,1) block=(256,1,1) lds={LDS_BYTES}")
        out.append(f"; @launch kernel=final_kernel grid=(576,1,1) block=(256,1,1) lds=0")
    out.append('.amdgcn_target "amdgcn-amd-amdhsa--gfx950"\n.text')
    out.append(f".globl {MK}\n.p2align 8\n.type {MK},@function\n{MK}:\nL_main_start:")
    out += [x.text for x in f]
    out.append(".p2align 6\nL_attn:")
    out += [x.text for x in a]
    out.append("L_exit:\ns_endpgm\nL_main_end:")
    if not OPT['fuse']:
        out.append(".globl final_kernel\n.p2align 8\n.type final_kernel,@function\nfinal_kernel:")
        out += [x.text for x in k2]
    out.append('.section .rodata,"a"')
    for nm, nv, ao in ((MK, 512, 256), ("final_kernel", 96, 96))[:1 if OPT['fuse'] else 2]:
        out.append(f".p2align 6\n.amdhsa_kernel {nm}\n  .amdhsa_next_free_vgpr {nv}\n  .amdhsa_next_free_sgpr 102\n  .amdhsa_accum_offset {ao}\n  .amdhsa_group_segment_fixed_size 0\n  .amdhsa_kernarg_size 72\n  .amdhsa_user_sgpr_count 2\n  .amdhsa_user_sgpr_kernarg_segment_ptr 1\n  .amdhsa_system_sgpr_workgroup_id_x 1\n  .amdhsa_float_denorm_mode_32 3\n.end_amdhsa_kernel")
    txt = "\n".join(out) + "\n"
    import subprocess, re as _re, tempfile, os
    d = tempfile.mkdtemp()
    open(d + "/a.s", "w").write(txt.replace("CODE_PF_MAX", "0x12345"))
    r = subprocess.run(["clang", "-x", "assembler", "-target", "amdgcn-amd-amdhsa", "-mcpu=gfx950", "-c", d + "/a.s", "-o", d + "/a.o"], capture_output=True, text=True)
    assert r.returncode == 0, r.stderr
    sy = subprocess.run(["llvm-readelf", "-s", d + "/a.o"], capture_output=True, text=True).stdout
    def sym(n): return int([l for l in sy.splitlines() if l.strip().endswith(" " + n)][0].split()[1], 16)
    size = sym("L_main_end") - sym("L_main_start")
    print(f"; main code bytes {size}, attn at {sym('L_attn')}", file=sys.stderr)
    print(txt.replace("CODE_PF_MAX", str(size - 1024)))

if __name__ == "__main__":
    main()
```

```python
import re

def expand(tok):
    tok = tok.strip()
    neg = tok.lstrip('-')
    if neg.startswith('abs(') : neg = neg[4:-1]
    if neg.startswith('|'): neg = neg.strip('|')
    m = re.fullmatch(r'([vas])\[(\d+):(\d+)\]', neg)
    if m: return [f"{m.group(1)}{i}" for i in range(int(m.group(2)), int(m.group(3)) + 1)]
    m = re.fullmatch(r'([vas])(\d+)', neg)
    if m: return [neg]
    if neg in ('vcc', 'exec'): return [neg]
    if neg in ('vcc_lo', 'vcc_hi'): return ['vcc']
    if neg in ('exec_lo', 'exec_hi'): return ['exec']
    if neg == 'm0': return ['m0']
    return []

TRANS = ('v_exp_f32', 'v_log_f32', 'v_rcp_f32', 'v_rsq_f32', 'v_sqrt_f32', 'v_sin_f32', 'v_cos_f32')

class I:
    def __init__(self, text, tag=None, cost=None, cond=False):
        self.text = text.strip(); self.tag = tag; self.cond = cond
        t = self.text.split(';')[0].strip()
        self.label = t.endswith(':')
        parts = t.split(None, 1)
        self.op = parts[0]
        ops = []
        if len(parts) > 1:
            rest = parts[1]
            depth = 0; cur = ''
            for ch in rest:
                if ch in '[(': depth += 1
                if ch in '])': depth -= 1
                if ch == ',' and depth == 0: ops.append(cur); cur = ''
                else: cur += ch
            ops.append(cur)
            last = ops[-1].strip().split()
            self.mods = last[1:] if last else []
            ops[-1] = last[0] if last else ''
            ops = [o.strip() for o in ops]
        else:
            self.mods = []
        self.ops = ops
        op = re.sub(r'_(e32|e64|dpp|sdwa)$', '', self.op)
        self.base = op
        rd, wr = [], []
        k = None
        if self.label or op.startswith('.'): k = 'label'
        elif op in ('WAITV', 'WAITL', 'WAITVL'): k = 'wait'
        elif op == 's_waitcnt': k = 'wait'
        elif op == 's_barrier': k = 'bar'
        elif op == 's_nop': k = 'nop'
        elif op in ('s_endpgm', 's_sleep', 's_setprio'): k = 'salu'
        elif op.startswith('s_cbranch') or op == 's_branch': k = 'branch'; rd = ['scc'] if 'scc' in op else (['vcc'] if 'vcc' in op else (['exec'] if 'exec' in op else []))
        elif op.startswith('v_mfma'):
            k = 'mfma32' if '32x32' in op else 'mfma16'
            wr = expand(ops[0]); self.A = expand(ops[1]); self.B = expand(ops[2]); self.C = expand(ops[3]); rd = self.A + self.B + self.C
        elif op.startswith('ds_'):
            k = 'ds'
            if op.startswith('ds_read') or op.startswith('ds_bpermute') or op.startswith('ds_swizzle'):
                wr = expand(ops[0]); rd = sum((expand(o) for o in ops[1:]), [])
            else: rd = sum((expand(o) for o in ops), [])
        elif op.startswith('buffer_') or op.startswith('global_'):
            k = 'vmem'
            if op in ('buffer_inv', 'buffer_wbl2'): pass
            elif 'lds' in self.mods or 'load_lds' in op:
                rd = sum((expand(o) for o in ops), []) + ['m0']
            elif '_load' in op:
                wr = expand(ops[0]); rd = sum((expand(o) for o in ops[1:]), [])
            elif 'atomic' in op:
                rd = sum((expand(o) for o in ops), [])
                if 'sc0' in self.mods: wr = expand(ops[0])
            else:
                rd = sum((expand(o) for o in ops), [])
                self.data = expand(ops[0]) if op.startswith('buffer_') else expand(ops[1])
        elif op.startswith('s_load') or op in ('s_memtime', 's_memrealtime'):
            k = 'smem'; wr = expand(ops[0]); rd = sum((expand(o) for o in ops[1:]), [])
        elif op.startswith('s_cmp') or op.startswith('s_bitcmp'):
            k = 'salu'; rd = sum((expand(o) for o in ops), []); wr = ['scc']
        elif op.startswith('s_'):
            k = 'salu'; wr = expand(ops[0]) if ops else []; rd = sum((expand(o) for o in ops[1:]), [])
            if op.startswith('s_cselect') or op == 's_addc_u32': rd.append('scc')
            if 'saveexec' in op: wr.append('exec'); rd.append('exec')
            if op not in ('s_mov_b32', 's_mov_b64', 's_cselect_b32', 's_cselect_b64', 's_mul_i32', 's_mul_hi_u32', 's_getpc_b64', 's_getreg_b32', 's_movk_i32'): wr.append('scc')
        elif op.startswith('v_'):
            k = 'trans' if op in TRANS else 'valu'
            if op.startswith('v_cmp'):
                wr = expand(ops[0]); rd = sum((expand(o) for o in ops[1:]), [])
            elif op.startswith('v_permlane') :
                wr = expand(ops[0]) + expand(ops[1]); rd = list(wr)
            elif op in ('v_add_co_u32', 'v_addc_co_u32', 'v_sub_co_u32'):
                wr = expand(ops[0]) + expand(ops[1]); rd = sum((expand(o) for o in ops[2:]), [])
            else:
                wr = expand(ops[0]); rd = sum((expand(o) for o in ops[1:]), [])
                if op in ('v_fmac_f32', 'v_dot2c_f32_bf16'): rd += wr
                if op == 'v_cndmask_b32' and len(ops) == 3: rd.append('vcc')
        else:
            raise ValueError("unknown instr: " + text)
        self.kind = k; self.rd = set(rd); self.wr = set(wr)
        if cost is None:
            cost = {'mfma32': 8, 'mfma16': 8, 'trans': 8, 'label': 0}.get(k, 4)
        self.cost = cost
    def states(self):
        if self.kind == 'label': return 0
        if self.kind == 'nop': return int(self.ops[0], 0) + 1
        return 1
    def __repr__(self): return self.text

def isdot(i): return i.base.startswith('v_dot2')
def lgkm_inc(i):
    if i.kind == 'ds': return 1
    if i.kind == 'smem': return 2
    return 0

def resolve_waits(prog):
    out = []
    vm = []; lg = []
    for ins in prog:
        if ins.kind == 'wait' and ins.op in ('WAITV', 'WAITL', 'WAITVL'):
            tags = ins.ops
            parts = []
            def count(lst, tag, allowcond):
                idx = [n for n, (t, c) in enumerate(lst) if t == tag]
                assert idx, f"wait on unknown tag {tag}"
                last = idx[-1]
                return sum(1 for (t, c) in lst[last + 1:] if (not c))
            if ins.op in ('WAITV', 'WAITVL'):
                n = count(vm, tags[0], ins.cond); assert n <= 63, (tags, n)
                parts.append(f"vmcnt({n})")
            if ins.op in ('WAITL', 'WAITVL'):
                n = count(lg, tags[-1], ins.cond)
                parts.append(f"lgkmcnt({min(n,15)})")
            out.append(I("s_waitcnt " + " ".join(parts), cond=ins.cond))
            continue
        if ins.kind == 'vmem': vm.append((ins.tag, ins.cond))
        if ins.kind == 'ds': lg.append((ins.tag, ins.cond))
        if ins.kind == 'smem': lg.append((ins.tag, ins.cond)); lg.append((ins.tag, ins.cond))
        out.append(ins)
    return out

def passes(i): return 8 if i.kind == 'mfma32' else 4

def required(p, c):
    need = 0
    pv = p.kind in ('valu', 'trans'); cv = c.kind in ('valu', 'trans')
    pm = p.kind.startswith('mfma'); cm = c.kind.startswith('mfma')
    vw = {r for r in p.wr if r[0] in 'va' and r not in ('vcc',)}
    sw = {r for r in p.wr if r[0] == 's' and r != 'scc' or r == 'vcc'}
    if pv:
        if cm and vw & c.rd: need = max(need, 3 if isdot(p) else 2)
        if p.kind == 'trans' and cv and c.kind != 'trans' and vw & c.rd: need = max(need, 1)
        if cv and c.base.startswith('v_permlane') and vw & c.rd: need = max(need, 2)
        if cv and c.op.endswith('_dpp') and vw & c.rd: need = max(need, 2)
        if cv and c.base in ('v_readlane_b32', 'v_readfirstlane_b32') and vw & c.rd: need = max(need, 1)
        if cv and sw & c.rd: need = max(need, 2)
        if c.kind == 'vmem' and sw & c.rd: need = max(need, 5)
        if 'exec' in p.wr: need = max(need, 5)
        if isdot(p) and (vw & (c.rd | c.wr)) and c.kind in ('valu', 'trans', 'ds', 'vmem'):
            if c.base == p.base and isdot(c):
                srcab = set(expand(c.ops[1]) + expand(c.ops[2]))
                if vw & srcab: need = max(need, 3)
            else: need = max(need, 3)
        if p.op.endswith('_sdwa') and cv and vw & c.rd: need = max(need, 1)
    if pm:
        n = passes(p)
        if cm:
            if p.wr & set(c.A + c.B): need = max(need, {4: 8, 8: 12}[n])
            if p.wr & set(c.C):
                if set(c.C) == p.wr and passes(c) == n: pass
                else: need = max(need, {4: 6, 8: 10}[n])
            if p.wr & c.wr and not (p.wr & set(c.C)):
                need = max(need, {4: 6, 8: 10}[n])
        elif c.kind in ('valu', 'trans', 'ds', 'vmem'):
            if p.wr & (c.rd | c.wr): need = max(need, {4: 8, 8: 12}[n])
            if cv and set(p.C) & c.wr: need = max(need, {4: 3, 8: 7}[n])
    if p.kind == 'salu' and 'm0' in p.wr and c.kind == 'vmem' and 'm0' in c.rd: need = max(need, 1)
    if p.kind == 'vmem' and hasattr(p, 'data') and len(p.data) >= 3 and set(p.data) & c.wr: need = max(need, 2)
    if p.kind == 'ds' and p.base in ('ds_write_b128', 'ds_write_b96') and (p.rd & c.wr): need = max(need, 2)
    return need

def fix_hazards(prog, verbose=False):
    out = []; nfix = 0
    for ins in prog:
        if ins.kind == 'label':
            out.append(ins); continue
        dist = 0; need = 0
        for p in reversed(out):
            if dist >= 20: break
            r = required(p, ins)
            if r - dist > need: need = r - dist; why = p
            if ins.cond or not p.cond: dist += p.states()
        if need > 0:
            nfix += 1
            if verbose: print(f"; hazard: {why.text} -> {ins.text} needs +{need}")
            while need > 0:
                k = min(need, 16); out.append(I(f"s_nop {k-1}", cond=ins.cond)); need -= k
        out.append(ins)
    return out, nfix

def _sim(prog):
    vm = []; lg = []; errs = []
    for n, ins in enumerate(prog):
        if ins.op == 's_endpgm': vm = []; lg = []
        if ins.op == 's_waitcnt':
            m = re.search(r'vmcnt\((\d+)\)', ins.text)
            if m:
                k = int(m.group(1)); vm = vm[len(vm) - k:] if k and len(vm) > k else (vm if k else [])
            m = re.search(r'lgkmcnt\((\d+)\)', ins.text)
            if m:
                k = int(m.group(1))
                if any(e[1] for e in lg) and k > 0: pass
                else: lg = lg[len(lg) - k:] if k and len(lg) > k else (lg if k else [])
            continue
        touched = ins.rd | ins.wr
        for e in vm + lg:
            if e[0] & touched and not (e[2] == 'dummy' and ins.tag == 'dummy'):
                errs.append(f"#{n} {ins.text} touches pending {sorted(e[0] & touched)}")
        if ins.kind == 'vmem': vm.append((set(ins.wr), False, ins.tag))
        if ins.kind == 'ds': lg.append((set(ins.wr), False, ins.tag))
        if ins.kind == 'smem': lg.append((set(ins.wr), True, ins.tag))
    return errs

def check_scoreboard(prog):
    return _sim(prog) + _sim([x for x in prog if not x.cond])

E32OK = {'v_mov_b32','v_add_f32','v_sub_f32','v_mul_f32','v_max_f32','v_min_f32','v_and_b32','v_or_b32','v_xor_b32','v_lshlrev_b32','v_lshrrev_b32',
         'v_add_u32','v_sub_u32','v_exp_f32','v_rcp_f32','v_sqrt_f32','v_rsq_f32','v_fmac_f32','v_cndmask_b32','v_mul_u32_u24','v_min_u32','v_max_u32'}

class Prog:
    def __init__(self): self.l = []
    def __call__(self, text, tag=None, cost=None, cond=False):
        for t in text.split('\n'):
            if t.strip(): self.l.append(I(t, tag, cost, cond))
        return self
    def add(self, lst): self.l.extend(lst)

def mk(text, tag=None, cost=None, cond=False):
    return [I(t, tag, cost, cond) for t in text.split('\n') if t.strip()]

def interleave(spine, fill, gapcyc, start=0, end=None):
    n = len(spine); end = n if end is None else end
    items = []
    for f in fill:
        if isinstance(f, tuple): g, e = f
        else: g, e = f, 0
        if not isinstance(g, list): g = [g]
        items.append((g, e))
    free = [max(0, gapcyc[i] - sum(x.cost for x in spine[i])) if start <= i < end else 0 for i in range(n)]
    tot_free = sum(free); tot_fill = sum(sum(x.cost for x in g) for g, e in items)
    scale = tot_fill / tot_free if tot_free else 0
    out = []; k = 0; budget = 0.0
    for i in range(n):
        out.extend(spine[i])
        if start <= i < end:
            budget += free[i] * scale
            while k < len(items) and items[k][1] <= i:
                c = sum(x.cost for x in items[k][0])
                if budget + 1e-6 >= c * 0.5 or i == end - 1:
                    out.extend(items[k][0]); budget -= c; k += 1
                else: break
    assert k == len(items), f"unplaced fillers {len(items)-k}"
    return out

class Sched:
    def __init__(self):
        self.head = []; self.mand = []; self.fill = []; self.tail = []; self.cap = []; self.block = []
    def gap(self, head, cyc):
        self.head.append(head); self.mand.append([]); self.fill.append([]); self.tail.append([]); self.cap.append(cyc - sum(x.cost for x in head)); self.block.append(set())
        return len(self.head) - 1
    def used(self, g): return sum(x.cost for x in self.mand[g] + self.fill[g] + self.tail[g])
    def place(self, items, g0, g1, mode='asap', name=''):
        n = len(items); g1 = min(g1, len(self.head))
        tot = sum(x.cost for x in items)
        for extra_num in range(0, 400):
            W = g1 - g0
            over = [0] * W
            for e in range(extra_num):
                lvl, idx = divmod(e, W)
                over[idx] += 4
            full, part = divmod(extra_num, W)
            over = [4 * full + (4 if (i * part) // W != ((i + 1) * part) // W else 0) for i in range(W)]
            add = [0] * W; pos = []; g = g0; acc = 0; ok = True
            hasv = [any(x.kind == 'vmem' for x in self.mand[g0+i] + self.fill[g0+i]) for i in range(W)]
            hass = [any(x.kind == 'salu' for x in self.mand[g0+i] + self.fill[g0+i]) for i in range(W)]
            for it in items:
                if mode == 'spread':
                    g = max(g, g0 + int(acc / tot * W))
                    acc += it.cost
                while g < g1:
                    fits = self.used(g) + add[g - g0] + it.cost <= self.cap[g] + over[g - g0]
                    if it.kind == 'vmem' and (hasv[g - g0] or hass[g - g0]) and extra_num < W: fits = False
                    if it.kind == 'salu' and hasv[g - g0] and extra_num < W: fits = False
                    if fits: break
                    g += 1
                if g >= g1: ok = False; break
                add[g - g0] += it.cost; pos.append(g)
                if it.kind == 'vmem': hasv[g - g0] = True
                if it.kind == 'salu': hass[g - g0] = True
            if ok:
                for it, g in zip(items, pos): self.fill[g].append(it)
                return pos
        raise RuntimeError(f"cannot place stream {name} in [{g0},{g1})")
    def emit(self, g0=0, g1=None):
        out = []
        for g in range(g0, g1 if g1 is not None else len(self.head)):
            out += self.head[g] + self.mand[g] + self.fill[g] + self.tail[g]
        return out
    def overflow(self, g0=0, g1=None):
        return sum(max(0, self.used(g) - self.cap[g]) for g in range(g0, g1 if g1 is not None else len(self.head)))

def size_of(i):
    if i.kind == 'label': return 0, False
    if i.kind in ('mfma32', 'mfma16', 'ds', 'vmem', 'smem'): return 8, False
    lit = False
    for o in i.ops:
        o = o.strip()
        if re.fullmatch(r'-?(0x[0-9a-fA-F]+|\d+)', o):
            v = int(o, 0)
            if not (-16 <= v <= 64): lit = True
        elif re.fullmatch(r'[A-Z_]+', o): lit = True
    if i.kind in ('wait', 'bar', 'nop', 'branch'): return 4, False
    if i.kind == 'salu':
        if i.base in ('s_getreg_b32', 's_movk_i32', 's_endpgm', 's_sleep', 's_setprio'): return 4, False
        return (8 if lit else 4), False
    if i.op.endswith('_e64') or i.op.endswith('_dpp') or i.op.endswith('_sdwa'): return 8, False
    if i.op.endswith('_e32'): return (8 if lit else 4), False
    if i.base in E32OK or i.base.startswith('v_cmp') or i.base in ('v_readfirstlane_b32', 'v_permlane32_swap_b32', 'v_permlane16_swap_b32', 'v_dot2c_f32_bf16', 'v_accvgpr_mov_b32'):
        if lit: return 8, False
        ops = i.ops
        if any(o.startswith('-v') or o.startswith('-s') or o.startswith('abs') for o in ops): return 8, False
        if i.base.startswith('v_cmp'):
            if ops[0] != 'vcc' or not ops[2].startswith('v'): return 8, False
            return 4, True
        if i.base == 'v_cndmask_b32':
            if ops[3] != 'vcc' or not ops[2].startswith('v'): return 8, False
            return 4, True
        if len(ops) >= 3 and not ops[2].startswith('v'): return 8, False
        flex = i.base in E32OK
        return 4, flex
    return 8, False

def align_pass(prog, start=0):
    off = start; cand = None; mis = 0
    for n, i in enumerate(prog):
        s, flex = size_of(i)
        if s == 8 and off % 8 == 4:
            if cand is not None:
                c = prog[cand]
                prog[cand] = I(c.text.replace(c.op, c.op + '_e64', 1), c.tag, c.cost, c.cond)
                off += 4; cand = None
            else: mis += 1
        if s == 8 and off % 8 == 0: cand = None
        if s == 4 and flex: cand = n
        off += s
    return prog, mis, off
```

```python
import sys
from asmlib import *

def attn(G):
    globals().update({k: v for k, v in G.items() if not k.startswith('__') and k not in ('attn', 'final')})
    P = Prog()
    ARING = 18432; ANS = 6; EX = ARING * ANS
    ACC = 40; XR = 112; AF = 192
    KO, KP, VV = 0, 36, 72
    vDQ = [16, 17, 18, 19, 20]; vDW = [21, 22, 23, 24, 25]
    vRX = [26, 27]; vRR = [28, 29]
    vEW, vEP, vST, vFL = 30, 31, 32, 33
    vFLW = 39
    sG = sSL
    TQ = 58
    TW = 67
    TS = 40
    sLB = 's3'
    sHS = 's[8:11]'
    sFS = 's[4:7]'
    HOFF = 's100'
    P(f"s_and_b32 {sG}, s39, 3")
    P(f"s_mov_b32 s16, s6\ns_mov_b32 s17, s7\ns_mov_b32 s18, {576*1728*2}\ns_mov_b32 s19, 0x20000")
    P(f"s_mov_b32 s20, s8\ns_mov_b32 s21, s9\ns_mov_b32 s22, {576*576*2}\ns_mov_b32 s23, 0x20000")
    P(f"s_cmp_eq_u32 {sWV}, 3\ns_cselect_b32 s10, {WS_BYTES}, 0\ns_cselect_b32 s6, 256, 0")
    P(f"s_mov_b32 s8, s46\ns_mov_b32 s9, s47\ns_mov_b32 s11, 0x20000")
    P(f"s_mov_b32 s4, s44\ns_mov_b32 s5, s45\ns_mov_b32 s7, 0x20000")
    if OPT['fuse']:
        P(f"s_add_u32 s96, {sG}, 12")
        flag_setup(P, vFLW, 's96', 'v33', True)
        hsk = handshake('s96', 'v1', 'v38')
        P.add(hsk[:-1])
    P(f"s_mul_i32 s49, {sWV}, 9\ns_lshr_b32 s49, s49, 1\ns_lshl_b32 {sLB}, s49, 10")
    P(f"s_mul_i32 s51, {sG}, 288")
    for st in range(9):
        P(f"s_mul_i32 s{TQ+st}, s50, {64*3456}\ns_add_u32 s{TQ+st}, s{TQ+st}, s51")
        if st < 8: P(f"s_add_u32 s50, s50, 1\ns_cmp_eq_u32 s50, 9\ns_cselect_b32 s50, 0, s50")
    P(f"s_mov_b32 s96, {-(-(1<<32)//18)}\ns_lshl_b32 s97, s49, 6\ns_mov_b32 s98, 3456")
    for n in range(5):
        imm = 1024 * n if n < 4 else 0
        P(f"v_add_u32 v2, s97, v0")
        if n < 4: P(f"s_add_u32 s97, s97, 64")
        P(f"v_mul_hi_u32 v3, v2, s96\nv_mul_u32_u24 v4, 18, v3\nv_sub_u32 v2, v2, v4\nv_lshlrev_b32 v2, 4, v2")
        P(f"v_and_b32 v4, 35, v3\nv_bfe_u32 v5, v3, 2, 2\nv_lshl_add_u32 v4, v5, 3, v4\nv_bfe_u32 v5, v3, 4, 1\nv_lshl_add_u32 v4, v5, 2, v4")
        P(f"v_mad_u32_u24 v{vDQ[n]}, v4, s98, v2")
        if imm: P(f"v_subrev_u32 v{vDQ[n]}, {imm}, v{vDQ[n]}")
    D = Prog()
    D(f"v_lshlrev_b32 v{vST}, 4, v0\ns_mul_i32 s96, {sWV}, 9216\ns_add_u32 s96, s96, {EX}\nv_add_u32 v{vEW}, s96, v{vST}")
    D(f"s_max_u32 s97, {sWV}, 1\ns_sub_u32 s97, s97, 1\ns_mul_i32 s97, s97, 9216\ns_add_u32 s97, s97, {EX}\nv_add_u32 v{vEP}, s97, v{vST}")
    D(f"s_lshl_b32 s96, {sM}, 2\ns_add_u32 s96, s96, {sG}\ns_mul_i32 {HOFF}, s96, {18*1024}\ns_add_u32 {HOFF}, {HOFF}, {WS_HALO}")
    D(f"s_lshl_b32 s96, s96, 2\nv_lshlrev_b32 v{vFL}, 8, v0\nv_add_u32 v{vFL}, s96, v{vFL}\nv_mov_b32 v38, 0x100")
    D(f"s_max_u32 s96, s96, 16\ns_sub_u32 s96, s96, 16\nv_mov_b32 v1, s96")
    OO = TW + 4
    D(f"s_lshl_b32 s53, {sM}, 2")
    for d in range(4):
        D(f"s_xor_b32 s52, {sG}, {d}\ns_mul_i32 s{TW+d}, s52, {144*1152}\ns_add_u32 s{TW+d}, s{TW+d}, s51")
        D(f"s_add_u32 s52, s52, s53\ns_lshl_b32 s52, s52, 2\ns_add_u32 s52, s52, {sWV}\ns_mul_i32 s{OO+d}, s52, 9216\ns_add_u32 s{OO+d}, s{OO+d}, {WS_O}")
    D(f"s_add_u32 s40, s53, {sWV}\ns_mul_i32 s40, s40, 72\ns_mul_i32 s52, {sG}, 9\ns_add_u32 s40, s40, s52\ns_lshl_b32 s40, s40, 9\ns_add_u32 s40, s40, {WS_S}")
    def wvoff(Q, dst, last):
        Q(f"s_mov_b32 s96, {-(-(1<<32)//18)}\ns_lshl_b32 s97, s49, 6\ns_mov_b32 s98, 1152")
        for n in range(5):
            imm = (1024 * n if n < 4 else 0)
            Q(f"v_add_u32 v34, s97, v0")
            if n < 4: Q(f"s_add_u32 s97, s97, 64")
            Q(f"v_mul_hi_u32 v35, v34, s96\nv_mul_u32_u24 v36, 18, v35\nv_sub_u32 v34, v34, v36\nv_lshlrev_b32 v34, 4, v34\nv_lshrrev_b32 v36, 4, v35")
            if not last: Q(f"v_add_u32 v36, 1, v36\nv_and_b32 v36, 6, v36\nv_lshl_add_u32 v35, v36, 1, v35")
            else: Q(f"v_xor_b32 v36, {sG}, v36\nv_mul_u32_u24 v36, 144, v36\nv_bfe_u32 v37, v35, 2, 2\nv_mad_u32_u24 v36, v37, 36, v36\nv_and_b32 v35, 3, v35\nv_add3_u32 v35, v35, v36, 16")
            Q(f"v_mad_u32_u24 v{dst[n]}, v35, s98, v34")
            if imm: Q(f"v_subrev_u32 v{dst[n]}, {imm}, v{dst[n]}")
    wvoff(D, vDW, False)
    PCOL = [1152, 2304, 0]
    def slotof(s): return s % ANS if s <= 30 else {31: 6, 32: 7, 33: 1, 34: 2, 35: 3}[s]
    def dma(s):
        slot = slotof(s) * ARING
        if s < 18: srd, vD, pre, so = sWA, vDQ, f"\ns_add_u32 s99, s{TQ + s % 9}, {PCOL[s // 9]}", 's99'
        elif s < 27: srd, vD, pre, so = sWA, vDQ, "", f"s{TQ + s % 9}"
        elif s < 35 and (s - 27) % 2 == 0: srd, vD, pre, so = sWB, vDW, "", f"s{TW + (s - 27) // 2}"
        elif s < 35: srd, vD, pre, so = sWB, vDW, f"\ns_add_u32 s101, s{TW + (s - 27) // 2}, {72*1152}", 's101'
        else: srd, vD, pre, so = sWB, vDQ, "", 's41'
        t = f"d{s}"
        L = mk(f"s_add_u32 m0, {sLB}, {slot}{pre}")
        for n in range(4): L += mk(f"buffer_load_dwordx4 v{vD[n]}, {srd}, {so} offen offset:{1024*n} lds", tag=t, cost=8)
        L += mk(f"s_add_u32 m0, {sLB}, {slot+4096}")
        L += mk(f"buffer_load_dwordx4 v{vD[4]}, {srd}, {so} offen lds", tag=t, cost=8)
        return L
    P(f"v_lshrrev_b32 v2, 2, v0\nv_mul_u32_u24 v2, 288, v2\nv_and_b32 v3, 3, v0\nv_lshl_add_u32 v{vRX[0]}, v3, 3, v2")
    P(f"v_mul_u32_u24 v4, 72, v3\nv_add3_u32 v{vRR[0]}, v2, v4, 32\nv_add_u32 v{vRX[1]}, {3*ARING}, v{vRX[0]}\nv_add_u32 v{vRR[1]}, {3*ARING}, v{vRR[0]}")
    P(f"v_and_b32 v2, 15, v0\nv_lshlrev_b32 v2, 7, v2\nv_add_u32 v2, s54, v2\nv_bfe_u32 v3, v0, 1, 3\nv_lshrrev_b32 v4, 4, v0\nv_xor_b32 v3, v3, v4")
    P(f"v_lshl_add_u32 v34, v3, 4, v2\nv_xor_b32 v35, 64, v34\nv_add_u32 v36, 98304, v34\nv_add_u32 v37, 98304, v35")
    SEL = 40
    sel32(P, SEL)
    for r in range(8, 16): P(f"v_mov_b32 v{r}, 0")
    P("s_mov_b32 s57, 0x3f803f80")
    setup = P.l; P.l = []
    fr = [[(XR + 8 * (2 * S + f // 2) + 4 * (f % 2), (34 if S < 6 else 36) + (f // 2), ((S // 3) % 2) * 49152 + (S % 3) * 4096 + (f % 2) * 2048, f % 2) for f in range(4)] for S in range(9)]
    xphase(P, setup, fr, [[8, 9], [10, 11]], [[12, 13], [14, 15]], {5: dma(0), 7: dma(1)})
    DB = [48, 64, 80]
    def um(F): return mk(f"v_mfma_f32_32x32x16_bf16 {vr(DB[F%3],16)}, {vr(SEL,4)}, {vr(XR+4*F,4)}, 0")
    def nv(F):
        d = DB[F % 3]; x = XR + 4 * F
        return mk("\n".join(f"v_fma_f32 v{d+j}, v{d+j}, v{2+F%2}, v{4+F%2}" for j in range(8)) + "\n" + "\n".join(f"v_cvt_pk_bf16_f32 v{x+j}, v{d+2*j}, v{d+2*j+1}" for j in range(4)))
    for a in (8, 10, 12, 14): P(f"v_add_f32 v{a}, v{a}, v{a+1}")
    P.add(um(0)); P.add(um(1))
    for sw in ('32', '16'):
        for a in (8, 10, 12, 14): P(f"v_mov_b32 v{a+1}, v{a}")
        for a in (8, 10, 12, 14): P(f"v_permlane{sw}_swap_b32 v{a}, v{a+1}")
        for a in (8, 10, 12, 14): P(f"v_add_f32 v{a}, v{a}, v{a+1}")
    A1 = Prog(); ln_stats(A1, 'v8', 'v12', 'v4', 'v2', None)
    A2 = Prog(); ln_stats(A2, 'v10', 'v14', 'v5', 'v3', None)
    for a, b in zip(A1.l, A2.l): P.add([a, b])
    P("v_mul_f32 v4, v4, v2\nv_mul_f32 v5, v5, v3")
    LN = []
    for F in range(36):
        if F + 2 < 36: LN += um(F + 2)
        LN += nv(F)
    P.add(weave(LN, dgroups(dma(2) + dma(3)), 13))
    uses = []
    for ps in range(3):
        for ks in range(18):
            s = 9 * ps + ks // 2; slot = s % ANS
            for j in range(9):
                n = len(uses); af = AF + 4 * (n % 16)
                off = (slot % 3) * ARING + (ks & 1) * 9216 + (36 * j + 4 * (j & 1) if j < 8 else 0)
                va = (vRX if j < 8 else vRR)[slot // 3]
                rd = mk(f"ds_read_b64_tr_b16 {ar(af,2)}, v{va} offset:{off}\nds_read_b64_tr_b16 {ar(af+2,2)}, v{va} offset:{off+4608}", tag=f"r{n}")
                mf = []
                for Pp in range(2):
                    acc = vr(ACC + 8 * j + 4 * Pp, 4); x = vr(XR + 8 * ks + 4 * Pp, 4)
                    a, b = (ar(af, 4), x) if ps != 1 else (x, ar(af, 4))
                    mf += mk(f"v_mfma_f32_16x16x32_bf16 {acc}, {a}, {b}, {'0' if ks == 0 else acc}")
                uses.append((s, rd, mf))
    NQ = len(uses); PD = 5
    extra_lw = {10: 'ew0', 19: 'ew1'}
    def barrier(s):
        if s in extra_lw: return mk(f"WAITVL d{s}, {extra_lw[s]}\ns_barrier")
        return mk(f"WAITV d{s}\ns_barrier")
    tailLN = P.l[-36:]; P.l = P.l[:-36]
    if OPT['fuse']: P("WAITV fz")
    P.add(barrier(0))
    if OPT['fuse']: P.add(hsk[-1:])
    for n in range(PD): P.add(uses[n][1])
    P.add(tailLN)
    P("WAITL r2")
    stamp(P, 3)
    SC = Sched(); gi = {}; gbar = {0: -1}
    for n in range(NQ):
        mf = uses[n][2]
        g0 = SC.gap([mf[0]], 16); g1 = SC.gap([mf[1]], 16); gi[n] = g0
        if n + PD < NQ:
            if uses[n + PD][0] != uses[n + PD - 1][0]:
                SC.mand[g0] += barrier(uses[n + PD][0]); gbar[uses[n + PD][0]] = g0
                SC.mand[g1] += uses[n + PD][1]
            else: SC.mand[g0] += uses[n + PD][1]
        if n % 3 == 2 and n + 1 < NQ: SC.tail[g1] += mk(f"WAITL r{n+3}")
    gi[NQ] = len(SC.head); gbar[27] = len(SC.head)
    stg = [4, 8, 12]
    for ps in range(2):
        for j in range(9):
            nlast = 162 * ps + 153 + j
            d = stg[j % 3]; a = ACC + 8 * j
            L = mk("\n".join(f"v_cvt_pk_bf16_f32 v{d+q}, v{a+2*q}, v{a+2*q+1}" for q in range(4)))
            g = gi[nlast + 5]
            SC.fill[g] += L[:1]; SC.fill[g + 1] += L[1:]
            L = mk(f"ds_write_b128 v{vEW}, {vr(d,4)} offset:{1024*j}", tag=f"ew{ps}", cost=8)
            if ps == 1:
                if j % 4 == 0: L += mk(f"s_add_u32 s101, {HOFF}, {(9*ps+j)*1024}")
                L += mk(f"buffer_store_dwordx4 {vr(d,4)}, v{vST}, {sHS}, s101 offen offset:{1024*(j%4)} sc1", tag=f"hs{ps}", cost=8)
            SC.fill[g + 2] += L
    for s in range(27): SC.place(dma(s + 4), gbar[s] + 1, gbar[s + 1], 'spread', f'dma{s+4}')
    L = []
    for j in range(9): L += mk(f"ds_read_b128 {ar(KO+4*j,4)}, v{vEW} offset:{1024*j}\nds_read_b128 {ar(KP+4*j,4)}, v{vEP} offset:{1024*j}", tag="er0")
    SC.place(L, gbar[10] + 2, gbar[12], 'spread', 'rb0')
    L = []
    for j in range(9):
        if j % 4 == 0: L += mk(f"s_add_u32 s101, {HOFF}, {j*1024}")
        L += mk(f"buffer_store_dwordx4 {ar(KO+4*j,4)}, v{vST}, {sHS}, s101 offen offset:{1024*(j%4)} sc1", tag="hs0", cost=8)
    SC.place(L, gbar[13] + 2, gbar[17], 'spread', 'hs0')
    L = []
    for j in range(9):
        for Pp in range(2):
            L += mk(f"ds_read_b64 {ar(VV+8*j+4*Pp,2)}, v{vEP} offset:{1024*j+8*Pp}\nds_read_b64 {ar(VV+8*j+4*Pp+2,2)}, v{vEW} offset:{1024*j+8*Pp}", tag="er1")
    SC.place(L, gbar[19] + 2, gbar[23], 'spread', 'rb1')
    SC.place(D.l, 2, gi[150], 'asap', 'deferred')
    hsl = f"buffer_load_dword v35, v34, {sDBG}, 0 offen sc1"
    hck = "v_and_b32 v36, 0xff, v35\nv_cmp_le_u32 vcc, 4, v36\ns_and_b32 s96, vcc_lo, 15\ns_cmp_eq_u32 s96, 15"
    SC.place(mk(f"s_mov_b32 s41, s51\ns_lshl_b32 s96, {sM}, 4\nv_and_b32 v34, 3, v0\nv_lshlrev_b32 v34, 2, v34\nv_add_u32 v34, s96, v34") + mk(hsl, tag='hc', cost=8), gbar[12] + 2, gbar[13], 'asap', 'hc')
    L = mk("WAITV hc") + mk(hck)
    pos = SC.place(L[:-2], gbar[14] + 20, gbar[15], 'asap', 'hck')
    SC.fill[pos[-1] + 1] += L[-2:] + mk("s_cbranch_scc0 L_aslowH\nL_abackH:")
    slow = mk(f"L_aslowH:\ns_mov_b32 s97, 0\nL_aspinH:\n{hsl}\ns_waitcnt vmcnt(0)\n{hck}\ns_cbranch_scc1 L_abackH\ns_sleep 1\ns_add_u32 s97, s97, 1\ns_cmp_lt_u32 s97, 0x80000\ns_cbranch_scc1 L_aspinH\ns_branch L_abackH", cond=True)
    pos = SC.place(mk("v_lshrrev_b32 v35, 24, v35\nv_readfirstlane_b32 s96, v35\nv_cmp_ne_u32 vcc, s96, v35"), pos[-1] + 2, gbar[16], 'spread', 'mode')
    SC.fill[pos[-1] + 3] += mk(("s_or_b32 vcc_lo, vcc_lo, 1\n" if OPT['forcefb'] else "") + "s_cmp_eq_u32 vcc_lo, 0\ns_cselect_b32 s42, 1, 0")
    L = mk("v_min_u32 v34, 35, v0\nv_lshlrev_b32 v34, 7, v34")
    L += mk(f"buffer_load_dword v37, v34, {sWS}, s{OO} offen sc1", tag='dummy', cost=8) + mk(f"s_add_u32 s96, s{OO}, {36*128}") + mk(f"buffer_load_dword v37, v34, {sWS}, s96 offen sc1\nbuffer_load_dword v37, v{vFLW}, {sWS}, s37 offen sc1", tag='dummy', cost=8)
    SC.place(L, gbar[16] + 4, gbar[17], 'spread', 'pfo')
    SC.place(mk("WAITV hs1") + mk(f"buffer_atomic_add v38, v{vFL}, {sFS}, 0 offen sc1", tag='fl', cost=8), gbar[21] + 2, gbar[22], 'asap', 'flag')
    CO, CP, MO, MP = 4, 8, 12, 14
    sGRP = ["s[50:51]", "s[52:53]", "s[54:55]", "s[56:57]"]
    Mk = Prog()
    Mk(f"s_or_b32 s98, {sM}, {sWV}\ns_min_u32 s98, s98, 1\ns_mul_i32 s98, s98, -90\ns_add_u32 s98, s98, 99")
    Mk("v_and_b32 v34, 15, v0\nv_lshrrev_b32 v35, 4, v0")
    for g in range(4): Mk(f"v_cmp_eq_u32 {sGRP[g]}, {g}, v35")
    Mk("v_lshlrev_b32 v35, 2, v35\nv_sub_u32 v35, v35, v34\nv_add_u32 v35, 7, v35")
    Mk(f"v_mov_b32 v36, 0xff7f0000\nv_mov_b32 v2, 0xffff\nv_mov_b32 v3, 0xffff0000\ns_add_u32 s98, s98, 7")
    for r in range(4):
        Mk(f"v_add_u32 v34, {r}, v35")
        Mk(f"v_cmp_gt_u32 vcc, 8, v34")
        Mk(f"v_cmp_le_i32 s[96:97], s98, v34")
        Mk(f"v_cndmask_b32 v{CO+r}, v36, 0, vcc".replace("v36, 0, vcc", "v36, 0, vcc"))
        Mk(f"v_cndmask_b32 v37, 0, v{2+r%2}, vcc")
        Mk(f"v_mov_b32 v{MO+r//2}, v37" if r % 2 == 0 else f"v_or_b32 v{MO+r//2}, v{MO+r//2}, v37")
        Mk(f"v_cndmask_b32 v{CP+r}, v36, 0, s[96:97]")
        Mk(f"v_cndmask_b32 v37, 0, v{2+r%2}, s[96:97]")
        Mk(f"v_mov_b32 v{MP+r//2}, v37" if r % 2 == 0 else f"v_or_b32 v{MP+r//2}, v{MP+r//2}, v37")
    Mk(f"s_mov_b32 s99, {hx(18 ** -0.5 * LOG2E)}\nv_mov_b32 v2, 0x3f803f80\nv_mov_b32 v3, 0x3f803f80")
    SC.place(Mk.l, gbar[20] + 2, gbar[25], 'asap', 'masks')
    hload = f"buffer_load_dword v37, v1, {sDBG}, 0 offen sc1"
    SC.place(mk(hload, tag='hp', cost=8), gbar[25] + 2, gbar[25] + 12, 'asap', 'hp')
    H = mk("WAITV hp") + mk(f"s_cmp_lg_u32 {sWV}, 0\ns_cbranch_scc1 L_nohalo")
    H += mk(f"s_cmp_eq_u32 {sM}, 0\ns_cbranch_scc1 L_nohalo\nv_readfirstlane_b32 s97, v37\ns_mov_b32 s96, 0\ns_bitcmp0_b32 s97, 8\ns_cbranch_scc1 L_hslow", cond=True)
    H += mk("L_hback:")
    H += mk(f"s_sub_u32 s97, {HOFF}, {4*18*1024}", cond=True)
    for j in range(9):
        if j % 4 == 0 and j: H += mk(f"s_add_u32 s97, s97, 4096", cond=True)
        H += mk(f"buffer_load_dwordx4 {ar(KP+4*j,4)}, v{vST}, {sWS}, s97 offen offset:{1024*(j%4)} sc1", cond=True, tag='hk')
    for j in range(9):
        jj = j + 9
        if jj % 4 == 0: H += mk(f"s_add_u32 s97, s97, 4096", cond=True)
        for Pp in range(2): H += mk(f"buffer_load_dwordx2 {ar(VV+8*j+4*Pp,2)}, v{vST}, {sWS}, s97 offen offset:{1024*(jj%4)+8*Pp} sc1", cond=True, tag='hv')
    H += mk("L_nohalo:")
    SC.mand[gbar[26]] += H
    slow += mk(f"L_hslow:\n{hload}\ns_waitcnt vmcnt(0)\nv_readfirstlane_b32 s97, v37\ns_add_u32 s96, s96, 1\ns_bitcmp1_b32 s97, 8\ns_cbranch_scc1 L_hback\ns_sleep 1\ns_cmp_lt_u32 s96, 0x80000\ns_cbranch_scc1 L_hslow\ns_branch L_hback", cond=True)
    QX = XR
    qtail = []
    for j in range(9):
        L = mk("\n".join(f"v_cvt_pk_bf16_f32 v{QX+4*j+q}, v{ACC+8*j+2*q}, v{ACC+8*j+2*q+1}" for q in range(4)))
        n = 324 + 153 + j + 4
        if n < NQ: SC.fill[gi[n]] += L[:2]; SC.fill[gi[n] + 1] += L[2:]
        else: qtail += L
    print("; attn qkv overflow %d" % SC.overflow(), file=sys.stderr)
    P.add(SC.emit(0, gi[162])); stamp(P, 4)
    P.add(SC.emit(gi[162], gi[324])); stamp(P, 5)
    P.add(SC.emit(gi[324]))
    SB = 148; QRM = 104; W = 40; POP = 72; SM = 88; OP = 212
    P.add(qtail)
    for Pp in range(2): P(f"v_mov_b32 v{QRM+4*Pp+1}, 0\nv_mov_b32 v{QRM+4*Pp+2}, 0")
    P("s_barrier")
    stamp(P, 6)
    def sbuf(e, hh, Pp): return SB + 32 * (e % 2) + 16 * hh + 8 * Pp
    def Sm(e):
        L = []
        for hh in range(2):
            for Pp in range(2): L += mk(f"v_cndmask_b32 v{QRM+4*Pp+3*hh}, 0, v{QX+32+2*Pp+hh}, {sGRP[e]}")
        for k, KB in enumerate((KO, KP)):
            if e == 0 and k == 1: L += mk("s_waitcnt vmcnt(23)", cond=True)
            for part in range(2):
                for hh in range(2):
                    h = 2 * e + hh
                    for Pp in range(2):
                        d = vr(sbuf(e, hh, Pp) + 4 * k, 4)
                        if part == 0: L += mk(f"v_mfma_f32_16x16x16_bf16 {d}, {ar(KB+4*h+2*Pp,2)}, {vr(QX+4*h+2*Pp,2)}, {vr((CO,CP)[k],4)}")
                        else: L += mk(f"v_mfma_f32_16x16x16_bf16 {d}, {ar(KB+32+2*Pp,2)}, {vr(QRM+4*Pp+2*hh,2)}, {d}")
        return L
    def head(e, hh):
        L = []
        w = W + 16 * hh
        T = [[w + 8 * Pp + r for r in range(4)] for Pp in range(2)]
        K = [[w + 8 * Pp + 4, w + 8 * Pp + 5] for Pp in range(2)]
        M = [w + 6, w + 14]
        def both(f):
            a, b = mk(f(0)), mk(f(1))
            for x, y in zip(a, b): L.append(x); L.append(y)
        both(lambda p: "\n".join(f"v_max_f32 v{T[p][r]}, v{sbuf(e,hh,p)+4+r}, v{sbuf(e,hh,p)+r}" for r in range(4)))
        both(lambda p: f"v_max3_f32 v{M[p]}, v{T[p][0]}, v{T[p][1]}, v{T[p][2]}\nv_max_f32 v{M[p]}, v{M[p]}, v{T[p][3]}")
        L += mk(f"v_permlane32_swap_b32 v{M[0]}, v{M[1]}\nv_max_f32 v{M[0]}, v{M[0]}, v{M[1]}\nv_mov_b32 v{M[1]}, v{M[0]}\nv_permlane16_swap_b32 v{M[0]}, v{M[1]}\nv_max_f32 v{M[0]}, v{M[0]}, v{M[1]}")
        L += mk(f"v_mul_f32 v{M[0]}, s99, v{M[0]}\nv_mov_b32 v{M[1]}, v{M[0]}\nv_permlane32_swap_b32 v{M[0]}, v{M[1]}")
        both(lambda p: "\n".join(f"v_fma_f32 v{T[p][r]}, v{T[p][r]}, s99, -v{M[p]}" for r in range(4)))
        both(lambda p: "\n".join(f"v_exp_f32 v{T[p][r]}, v{T[p][r]}" for r in range(4)))
        both(lambda p: f"v_cvt_pk_bf16_f32 v{K[p][0]}, v{T[p][0]}, v{T[p][1]}\nv_cvt_pk_bf16_f32 v{K[p][1]}, v{T[p][2]}, v{T[p][3]}")
        po = lambda p: POP + 8 * hh + 4 * p
        both(lambda p: f"v_and_b32 v{po(p)}, v{MP}, v{K[p][0]}\nv_and_b32 v{po(p)+1}, v{MP+1}, v{K[p][1]}\nv_and_b32 v{po(p)+2}, v{MO}, v{K[p][0]}\nv_and_b32 v{po(p)+3}, v{MO+1}, v{K[p][1]}")
        return L
    def PVm(e):
        L = []
        if e == 0: L += mk("s_waitcnt vmcnt(5)")
        for hh in range(2):
            for Pp in range(2):
                L += mk(f"v_mfma_f32_16x16x16_bf16 {vr(SM+8*hh+4*Pp,4)}, v[2:3], {vr(W+16*hh+8*Pp+4,2)}, 0")
        for hh in range(2):
            h = 2 * e + hh
            for Pp in range(2):
                for k, tile in enumerate((h, 8)):
                    L += mk(f"v_mfma_f32_16x16x32_bf16 {vr(sbuf(e,hh,Pp)+4*k,4)}, {ar(VV+8*tile+4*Pp,4)}, {vr(POP+8*hh+4*Pp,4)}, 0")
        return L
    def Oc(e):
        L = []
        U = [(hh, Pp) for hh in range(2) for Pp in range(2)]
        for hh, Pp in U: L += mk(f"v_rcp_f32 v{SM+8*hh+4*Pp}, v{SM+8*hh+4*Pp}")
        for hh, Pp in U:
            d = sbuf(e, hh, Pp); rr = SM + 8 * hh + 4 * Pp
            for q in (0, 1, 2, 3, 4 + 2 * hh, 5 + 2 * hh): L += mk(f"v_mul_f32 v{d+q}, v{rr}, v{d+q}")
        for hh, Pp in U:
            d = sbuf(e, hh, Pp); o = OP + 20 * Pp + 4 * e + 2 * hh
            L += mk(f"v_cvt_pk_bf16_f32 v{o}, v{d}, v{d+1}\nv_cvt_pk_bf16_f32 v{o+1}, v{d+2}, v{d+3}")
            if e == 0: L += mk(f"v_cvt_pk_bf16_f32 v{OP+20*Pp+16+hh}, v{d+4+2*hh}, v{d+5+2*hh}")
            else: L += mk(f"v_cvt_pk_bf16_f32 v{d+4}, v{d+4+2*hh}, v{d+5+2*hh}")
        if e:
            for hh, Pp in U:
                d = sbuf(e, hh, Pp); o = OP + 20 * Pp + 16 + hh
                L += mk(f"v_cndmask_b32 v{o}, v{o}, v{d+4}, {sGRP[e]}")
        return L
    WA = Prog(); wvoff(WA, vDQ, True)
    WA(f"s_lshl_b32 s96, {sM}, 2\ns_add_u32 s96, s96, {sWV}\ns_lshl_b32 s96, s96, 11\ns_add_u32 s96, s96, {WS_FLAG + HFOFF + 12*128}\nv_and_b32 v1, 3, v0\nv_lshlrev_b32 v1, 7, v1\nv_add_u32 v1, s96, v1\nv_lshlrev_b32 v38, 3, v0\nv_add_u32 v{vRR[0]}, {6*ARING}, v{vRX[0]}")
    s0 = Sm(0)
    P.add(weave(s0, [WA.l[i:i+4] for i in range(0, len(WA.l), 4)], 1))
    for e in range(4):
        a, b = head(e, 0), head(e, 1)
        merged = []
        for x, y in zip(a, b): merged += [x, y]
        if e == 0: P.add(weave(Sm(1)[:12], [], 1)); P.add(weave(merged, [[x] for x in Sm(1)[12:]], 3))
        else:
            pre = Oc(e - 1) + (Sm(e + 1) if e + 1 < 4 else [])
            body = merged[:16] + weave(merged[16:], [[x] for x in pre], 1)
            if e in (1, 2): body = weave(body, dgroups(dma(29 + 2 * e) + dma(30 + 2 * e)), 12)
            P.add(body)
        P.add(PVm(e))
    stamp(P, 7)
    PO = 0
    def bop(step, Pp):
        if step < 4: return vr(OP + 20 * Pp + 4 * step, 4)
        if step < 16: return ar(PO + 32 * (step // 4 - 1) + 16 * Pp + 4 * (step % 4), 4)
        if step == 16: return vr(OP + 20 * Pp + 16, 4)
        return ar(96 + 4 * Pp, 4)
    uses = []
    for ks in range(18):
        s = 27 + ks // 2; slot = slotof(s)
        for j in range(9):
            n = len(uses); af = AF + 4 * (n % 16)
            off = (slot % 3) * ARING + (ks & 1) * 9216 + 32 * j
            va = (vRX + vRR)[slot // 3]
            rd = mk(f"ds_read_b64_tr_b16 {ar(af,2)}, v{va} offset:{off}\nds_read_b64_tr_b16 {ar(af+2,2)}, v{va} offset:{off+4608}", tag=f"w{n}")
            mf = []
            for Pp in range(2):
                acc = vr(ACC + 8 * j + 4 * Pp, 4)
                mf += mk(f"v_mfma_f32_16x16x32_bf16 {acc}, {ar(af,4)}, {bop(ks, Pp)}, {'0' if ks == 0 else acc}")
            uses.append((s, rd, mf))
    NW = len(uses)
    def ostore(e): return mk("\n".join(f"buffer_store_dwordx4 {vr(OP+20*Pp+4*e,4)}, v{vST}, {sWS}, s{43+Pp} offen offset:{1024*e}" for Pp in range(2)), tag='os', cost=8)
    P(f"s_mov_b32 s43, s{OO}\ns_add_u32 s44, s{OO}, 4096\ns_add_u32 s45, s{OO}, 8192")
    for e in range(3): P.add(ostore(e))
    P("WAITV d34\ns_barrier")
    for n in range(PD): P.add(uses[n][1])
    P.add(Oc(3))
    P.add(ostore(3))
    P(f"buffer_store_dwordx2 {vr(OP+16,2)}, v38, {sWS}, s45 offen\nbuffer_store_dwordx2 {vr(OP+36,2)}, v38, {sWS}, s45 offen offset:512", tag='os')
    P("v_mov_b32 v2, 1\nWAITL w2")
    SC = Sched(); gi = {}; gbar = {27: -1}
    for n in range(NW):
        mf = uses[n][2]
        g0 = SC.gap([mf[0]], 16); g1 = SC.gap([mf[1]], 16); gi[n] = g0
        if n + PD < NW:
            if uses[n + PD][0] != uses[n + PD - 1][0] and uses[n + PD][0] in (30, 35):
                SC.mand[g0] += barrier(35) if uses[n + PD][0] == 35 else mk("s_barrier"); gbar[uses[n + PD][0]] = g0
                SC.mand[g1] += uses[n + PD][1]
            else: SC.mand[g0] += uses[n + PD][1]
        if n % 3 == 2 and n + 1 < NW: SC.tail[g1] += mk(f"WAITL w{n+3}")
        if (n + 1) % 9 == 0 and 4 <= (n + 1) // 9 < 18: SC.tail[g1] += mk(f"WAITV ol{(n+1)//9}")
    gi[NW] = len(SC.head)
    fst = f"buffer_store_dword v2, v{vFLW}, {sWS}, s37 offen"
    g = gi[OPT['ofl']] + 1
    SC.fill[g] += mk("WAITV os") + mk("s_cmp_eq_u32 s42, 0\ns_cbranch_scc1 L_orel") + mk(fst, tag='ofl', cost=8) + mk("L_orelb:")
    slow += mk(f"L_orel:\nbuffer_wbl2 sc1\ns_waitcnt vmcnt(0)\n{fst} sc1\ns_branch L_orelb", cond=True)
    opl = f"buffer_load_dword v3, v1, {sWS}, 0 offen sc1"
    SC.fill[gi[OPT['opl']] + 1] += mk(opl, tag='op', cost=8)
    g = gi[OPT['opl'] + 9] + 1
    SC.fill[g] += mk("WAITV op\nv_cmp_eq_u32 vcc, 0, v3")
    SC.fill[g + 2] += mk("s_cbranch_vccnz L_oslow\nL_oback:")
    slow += mk(f"L_oslow:\ns_mov_b32 s97, 0\nL_ospin:\n{opl}\ns_waitcnt vmcnt(0)\nv_cmp_eq_u32 vcc, 0, v3\ns_add_u32 s97, s97, 1\ns_nop 4\ns_cbranch_vccz L_oback\ns_cmp_lt_u32 s97, 0x80000\ns_cbranch_scc1 L_ospin\ns_branch L_oback", cond=True)
    g += 3
    for d in range(1, 4):
        L = mk(f"s_add_u32 s44, s{OO+d}, 4096")
        for e in range(4):
            for Pp in range(2): L += mk(f"buffer_load_dwordx4 {bop(4*d+e, Pp)}, v{vST}, {sWS}, s{(OO+d) if Pp == 0 else 44} offen offset:{1024*e} sc1", tag=f"ol{4*d+e}", cost=8)
        if d == 1:
            for x in L[:5]: SC.fill[g].append(x)
            g = SC.place(L[5:], g + 1, gi[45], 'asap', f'ol{d}')[-1] + 1
        else: g = SC.place(L, g, gi[36 * d - 8], 'asap', f'ol{d}')[-1] + 1
    L = []
    for d in range(1, 4):
        L += mk(f"s_add_u32 s44, s{OO+d}, 8192")
        for Pp in range(2):
            dst = vr(OP + 20 * Pp + 18, 2) if d == 1 else ar(96 + 4 * Pp + 2 * (d - 2), 2)
            L += mk(f"buffer_load_dwordx2 {dst}, v38, {sWS}, s44 offen offset:{512*Pp} sc1", tag="ol16" if d == 1 else "ol17", cost=8)
    g = SC.place(L, g, gi[130], 'asap', 'olR')[-1]
    SC.place(dma(35), max(g, gbar[30]) + 1, gi[130], 'asap', 'dma35')
    WSTG = 112
    tailE = mk(f"s_add_u32 s41, s40, {36*512}\ns_add_u32 s43, s40, 4096\ns_add_u32 s44, s41, 4096")
    SC.place(tailE, gi[140], gi[150], 'asap', 'sb'); tailE = []
    for j in range(9):
        L = []
        for Pp in range(2):
            a_ = ACC + 8 * j + 4 * Pp; d = WSTG + 4 * j + 2 * Pp
            L += mk(f"v_cvt_pk_bf16_f32 v{d}, v{a_}, v{a_+1}\nv_cvt_pk_bf16_f32 v{d+1}, v{a_+2}, v{a_+3}")
        for Pp in range(2):
            d = WSTG + 4 * j + 2 * Pp
            L += mk(f"buffer_store_dwordx2 {vr(d,2)}, v38, {sWS}, s{(40+Pp) if j < 8 else (43+Pp)} offen offset:{512*(j%8)} sc1", tag='st', cost=8)
        n = 153 + j + 4
        if n < NW: SC.fill[gi[n]] += L[:3]; SC.fill[gi[n] + 1] += L[3:]
        else: tailE += L
    print("; attn wo overflow %d" % SC.overflow(), file=sys.stderr)
    P.add(SC.emit())
    P.add(tailE)
    stamp(P, 8)
    if OPT['fuse']: P(f"v_mov_b32 v2, 15\ns_waitcnt vmcnt(0)\nbuffer_store_dword v2, v{vFLW}, {sWS}, 0 offen sc1")
    stamp(P, 9)
    stamp_flush(P, 10)
    P("s_endpgm")
    P.add(slow)
    return P.l

def final(G):
    globals().update({k: v for k, v in G.items() if not k.startswith('__') and k not in ('attn', 'final')})
    P = Prog()
    P("s_cmp_ge_u32 s2, 576\ns_cbranch_scc1 L_fexit")
    if OPT['stamp']: P("s_memrealtime s[40:41]\ns_load_dwordx2 s[44:45], s[0:1], 56")
    P("s_load_dwordx2 s[4:5], s[0:1], 0\ns_load_dwordx2 s[8:9], s[0:1], 48\ns_load_dwordx2 s[12:13], s[0:1], 64")
    P(f"s_mov_b32 s16, {-(-(1<<32)//36)}\ns_mul_hi_u32 s17, s2, s16\ns_mul_i32 s18, s17, 36\ns_sub_u32 s18, s2, s18")
    P(f"s_cmp_ge_u32 s18, 18\ns_cselect_b32 s19, 1, 0\ns_mul_i32 s20, s19, 18\ns_sub_u32 s20, s18, s20")
    P(f"s_mul_i32 s21, s17, {16*36*4096}\ns_lshl_b32 s22, s18, 12\ns_add_u32 s21, s21, s22")
    P("v_lshlrev_b32 v1, 4, v0")
    P("v_lshrrev_b32 v2, 7, v0\nv_lshlrev_b32 v2, 5, v2\nv_bfe_u32 v3, v0, 6, 1\nv_add_u32 v2, v2, v3\nv_and_b32 v3, 15, v0\nv_lshlrev_b32 v3, 1, v3\nv_add_u32 v2, v2, v3")
    P("s_lshl_b32 s22, s17, 7\ns_lshl_b32 s23, s19, 6\ns_add_u32 s22, s22, s23\nv_add_u32 v2, s22, v2\nv_mul_u32_u24 v2, 1152, v2")
    P("v_bfe_u32 v3, v0, 4, 2\nv_lshlrev_b32 v3, 3, v3\nv_add_u32 v2, v2, v3\ns_lshl_b32 s23, s20, 6")
    P("s_waitcnt lgkmcnt(0)")
    P(f"s_mov_b32 s6, {2048*576*2}\ns_mov_b32 s7, 0x20000\ns_mov_b32 s10, {2048*576*2}\ns_mov_b32 s11, 0x20000\ns_mov_b32 s14, {WS_BYTES}\ns_mov_b32 s15, 0x20000")
    for j in range(16):
        P(f"buffer_load_dwordx4 {vr(32+4*j,4)}, v1, s[12:15], s21 offen", tag=f"p{j}")
        if j < 15: P(f"s_add_u32 s21, s21, {36*4096}")
    P("buffer_load_dwordx2 v[4:5], v2, s[4:7], s23 offen\nbuffer_load_dwordx2 v[6:7], v2, s[4:7], s23 offen offset:32", tag="x")
    P("s_mov_b32 s24, 0x3f80\ns_mov_b32 s25, 0x3f800000\ns_mov_b32 s26, 0xffff0000")
    for i in range(8, 24): P(f"v_mov_b32 v{i}, 0")
    for j in range(16):
        P(f"WAITV p{j}")
        b = 8 if j < 12 else 16
        for d in range(4):
            P(f"v_dot2c_f32_bf16 v{b+2*d}, s24, v{32+4*j+d}\nv_dot2c_f32_bf16 v{b+2*d+1}, s25, v{32+4*j+d}")
    def rnd(b):
        for d in range(4): P(f"v_cvt_pk_bf16_f32 v{24+d}, v{b+2*d}, v{b+2*d+1}")
        for d in range(4): P(f"v_lshlrev_b32 v{b+2*d}, 16, v{24+d}\nv_and_b32 v{b+2*d+1}, s26, v{24+d}")
    for i in range(8): P(f"v_mul_f32 v{8+i}, {hx(LN2)}, v{8+i}")
    rnd(8)
    for i in range(8): P(f"v_mul_f32 v{32+i}, {hx(-LOG2E)}, v{8+i}")
    for i in range(8): P(f"v_exp_f32 v{32+i}, v{32+i}")
    for i in range(8): P(f"v_add_f32 v{32+i}, 1.0, v{32+i}")
    for i in range(8): P(f"v_rcp_f32 v{32+i}, v{32+i}")
    for i in range(8): P(f"v_mul_f32 v{8+i}, v{8+i}, v{32+i}")
    rnd(8); rnd(16)
    for i in range(8): P(f"v_mul_f32 v{8+i}, v{8+i}, v{16+i}")
    rnd(8)
    P("WAITV x")
    for d in range(4): P(f"v_lshlrev_b32 v{16+2*d}, 16, v{4+d}\nv_and_b32 v{17+2*d}, s26, v{4+d}")
    for i in range(8): P(f"v_add_f32 v{8+i}, v{8+i}, v{16+i}")
    for d in range(4): P(f"v_cvt_pk_bf16_f32 v{24+d}, v{8+2*d}, v{9+2*d}")
    P("buffer_store_dwordx2 v[24:25], v2, s[8:11], s23 offen\nbuffer_store_dwordx2 v[26:27], v2, s[8:11], s23 offen offset:32")
    if OPT['stamp'] == 2:
        P("s_cmp_lg_u32 s2, 0\ns_cbranch_scc1 L_fexit")
        P(f"s_mov_b32 s48, {WS_STAMP}\nv_mov_b32 v1, 0\nbuffer_load_dword v4, v1, s[12:15], s48 offen offset:56\ns_waitcnt vmcnt(0)\nv_readfirstlane_b32 s50, v4\ns_nop 4")
        P("L_spin:\ns_memrealtime s[42:43]\ns_waitcnt lgkmcnt(0)\ns_sub_u32 s42, s42, s50\ns_cmp_lt_u32 s42, 10000\ns_cbranch_scc1 L_spin")
    if OPT['stamp'] == 1:
        P("s_waitcnt vmcnt(0)\ns_memrealtime s[42:43]\ns_mov_b32 s46, 256\ns_mov_b32 s47, 0x20000\ns_waitcnt lgkmcnt(0)")
        P("v_lshlrev_b32 v1, 8, v0\nv_mov_b32 v3, s42\nbuffer_atomic_umax v3, v1, s[44:47], 0 offen offset:12")
        P("s_cmp_lg_u32 s2, 0\ns_cbranch_scc1 L_fexit")
        P(f"s_mov_b32 s48, {WS_STAMP}\nbuffer_load_dwordx2 v[4:5], v1, s[12:15], s48 offen offset:56\nv_mov_b32 v6, 0\nv_mov_b32 v7, s40\ns_waitcnt vmcnt(0)\nv_not_b32 v4, v4")
        P("buffer_atomic_umax v4, v6, s[44:47], 0 offen\nbuffer_atomic_umax v5, v6, s[44:47], 0 offen offset:4\nbuffer_store_dword v7, v1, s[44:47], 0 offen offset:8")
        P(f"v_lshlrev_b32 v1, 2, v0\ns_mov_b32 s48, {WS_STAMP + OPT['dbgwg']*256}\nbuffer_load_dword v4, v1, s[12:15], s48 offen\nv_add_u32 v1, 16, v1\ns_mov_b32 s46, 64\ns_waitcnt vmcnt(0)\nbuffer_store_dword v4, v1, s[44:47], 0 offen")
    P("L_fexit:\ns_endpgm")
    return P.l
```

```python
import sys, math
from asmlib import *

OPT = dict(ofl=12, opl=23, pfh0=216, nb2=2, hsplit=2, dpre=3, pst=0, xlead=3, slp=8, rt=0, pfh=1, pchk=7, fdel=24, a3=6, a4=3, cin=22, sat=15*12+4,  forcefb=0, marks=0, wcost=16, fuse=1, stmod=1, dbgwg=64, nosilu=0, nodma=0, nobar=0, nost=0, pd1=7, pd2=3, stamp=0, ffn=1, attn=1, verbose=0, rot=1, pfw=0, pfcode=1)
for a in sys.argv[1:]:
    k, v = a.split('='); OPT[k] = int(v)

STMOD = ['', ' sc1', ' nt', ' sc0 sc1', ' sc1 nt'][OPT['stmod']]
NAME = "recurrent_scan__sliding_local_dilated__dense_activation_silu__prompt"
LOG2E = 1.4426950408889634
LN2 = 0.6931471805599453
import struct
def f2u(f): return struct.unpack('<I', struct.pack('<f', f))[0]
def hx(f): return "0x%08x" % f2u(f)

WS_P = 0
WS_HALO = 40 << 20
WS_FLAG = 44 << 20
HFOFF = 1 << 18
WS_O = 45 << 20
WS_S = 52 << 20
WS_STAMP = 48 << 20
WS_BYTES = 64 << 20
LDS_BYTES = 155648

sX, sWA, sWB, sWS, sDBG = 's[12:15]', 's[16:19]', 's[20:23]', 's[24:27]', 's[28:31]'
sM, sSL, sWV, sROT, sMEM = 's32', 's33', 's34', 's35', 's36'

def vr(a, n): return f"v[{a}:{a+n-1}]" if n > 1 else f"v{a}"
def ar(a, n): return f"a[{a}:{a+n-1}]" if n > 1 else f"a{a}"

stamp_n = [0]
def stamp(P, idx):
    if not OPT['stamp']: return
    if OPT['pst']:
        if idx < 100 and idx != 3: return
        idx = 9 if idx == 3 else idx - 100
    elif idx >= 100: return
    P(f"{'s_memrealtime' if OPT['rt'] else 's_memtime'} s[78:79]\ns_waitcnt lgkmcnt(0)\ns_mov_b32 s{80+idx}, s78")
def stamp_flush(P, n):
    if not OPT['stamp']: return
    P(f"s_memrealtime s[78:79]\ns_waitcnt lgkmcnt(0)\ns_mov_b32 s{80+15}, s78")
    P(f"s_lshl_b32 s76, s2, 2\ns_add_u32 s76, s76, {sWV}\ns_lshl_b32 s76, s76, 6\ns_add_u32 s76, s76, {WS_STAMP}")
    P("v_mov_b32 v1, 0")
    for i in range(4):
        for j in range(4): P(f"v_mov_b32 v{4+j}, s{80+4*i+j}")
        P(f"buffer_store_dwordx4 v[4:7], v1, {sWS}, s76 offen offset:{16*i}")
        P("s_nop 1")

def round_bf16(P, dst, src):
    P(f"v_cvt_pk_bf16_f32 {dst}, {src}, {src}\nv_and_b32 {dst}, 0xffff0000, {dst}")

def ln_stats(P, vsum, vsq, vnegm, vr_, tmp):
    P(f"v_mul_f32 {vsum}, {hx(1/576)}, {vsum}")
    P(f"v_mul_f32 {vsq}, {hx(1/576)}, {vsq}")
    P(f"v_fma_f32 {vsq}, -{vsum}, {vsum}, {vsq}")
    P(f"v_max_f32 {vsq}, 0, {vsq}")
    round_bf16(P, vnegm, vsum)
    P(f"v_xor_b32 {vnegm}, 0x80000000, {vnegm}")
    round_bf16(P, vsq, vsq)
    P(f"v_add_f32 {vsq}, {hx(1e-5)}, {vsq}")
    round_bf16(P, vsq, vsq)
    P(f"v_sqrt_f32 {vsq}, {vsq}")
    round_bf16(P, vsq, vsq)
    P(f"v_rcp_f32 {vr_}, {vsq}")

def sel_consts(P, vsel, t0, t1, t2):
    P(f"v_mov_b32 v{vsel}, 0\nv_mov_b32 v{vsel+1}, 0\nv_mov_b32 v{vsel+4}, 0\nv_mov_b32 v{vsel+5}, 0")
    P(f"v_and_b32 {t0}, 1, v0\nv_lshlrev_b32 {t0}, 4, {t0}\nv_mov_b32 {t1}, 0x3f80\nv_lshlrev_b32 {t0}, {t0}, {t1}")
    P(f"v_bfe_u32 {t1}, v0, 2, 2\nv_lshrrev_b32 {t2}, 4, v0")
    P(f"v_cmp_eq_u32 vcc, {t1}, {t2}\nv_cndmask_b32 {t0}, 0, {t0}, vcc")
    P(f"v_and_b32 {t1}, 2, v0\nv_cmp_eq_u32 vcc, 0, {t1}")
    P(f"v_cndmask_b32 v{vsel+2}, 0, {t0}, vcc\nv_cndmask_b32 v{vsel+3}, {t0}, v{vsel}, vcc")

def common_prologue(P):
    P("s_cmp_ge_u32 s2, 256\ns_cbranch_scc1 L_exit")
    P("s_load_dwordx4 s[4:7], s[0:1], 0\ns_load_dwordx2 s[8:9], s[0:1], 16\ns_load_dwordx4 s[40:43], s[0:1], 32\ns_load_dwordx4 s[44:47], s[0:1], 56")
    P(f"v_lshrrev_b32 v1, 6, v0\nv_lshlrev_b32 v46, 7, v0\nv_readfirstlane_b32 {sWV}, v1\nv_and_b32 v0, 63, v0")
    if OPT['stamp']: P("s_memrealtime s[78:79]\ns_memtime s[76:77]")
    if OPT['pfcode']:
        P("s_getpc_b64 s[48:49]\ns_bfe_u32 s58, s2, 0x20003\ns_lshl_b32 s58, s58, 15\nv_add_u32 v46, s58, v46")
        P("v_min_u32 v46, CODE_PF_MAX, v46\nglobal_load_dword v47, v46, s[48:49]", tag='dummy')
    if OPT['stamp']:
        for i in range(80, 96): P(f's_mov_b32 s{i}, 0')
    P("s_and_b32 s37, s2, 1\ns_lshl_b32 s37, s37, 3")
    P("s_bfe_u32 s38, s2, 0x20001")
    P(f"s_lshr_b32 s39, s2, 3\ns_and_b32 {sMEM}, s39, 7\ns_add_u32 {sM}, s37, {sMEM}")
    P(f"s_lshl_b32 s51, s38, 1\ns_add_u32 s51, s51, s37\ns_lshr_b32 s52, s39, 2\ns_add_u32 s51, s51, s52")
    P(f"s_lshl_b32 s52, s39, 1\ns_and_b32 s52, s52, 6\ns_add_u32 s52, s52, s51\ns_mul_i32 s53, s52, 57\ns_lshr_b32 s53, s53, 9\ns_mul_i32 s53, s53, 9\ns_sub_u32 s52, s52, s53")
    P(f"s_lshr_b32 {sROT}, s39, 3\ns_sub_u32 {sROT}, {sROT}, 1\ns_mul_i32 s50, {sROT}, 3\ns_cmp_lt_u32 s39, 8\ns_cselect_b32 s50, s52, s50\ns_cselect_b32 {sM}, s51, {sM}")
    if not OPT['rot']: P(f"s_mov_b32 s50, 0")
    P(f"s_lshl_b32 s53, {sM}, 7\ns_lshl_b32 s54, {sWV}, 5\ns_add_u32 s53, s53, s54\ns_mul_i32 s53, s53, 1152")
    P(f"v_lshrrev_b32 v2, 3, v0\nv_mul_u32_u24 v2, 2304, v2\nv_lshrrev_b32 v3, 4, v0\nv_and_b32 v44, 7, v0\nv_xor_b32 v3, v3, v44\nv_lshlrev_b32 v3, 4, v3")
    P(f"v_add_u32 v44, v2, v3\nv_add_u32 v44, s53, v44\nv_xor_b32 v45, 64, v44\nv_add_u32 v45, {16*1152-1024}, v45")
    P(f"s_lshl_b32 s55, s50, 7\ns_mul_i32 s54, {sWV}, 12288")
    P("s_waitcnt lgkmcnt(0)")
    if OPT['stamp']: P("s_mov_b32 s94, s78\ns_mov_b32 s80, s76")
    P(f"s_mov_b32 s12, s4\ns_mov_b32 s13, s5\ns_mov_b32 s14, {2048*576*2}\ns_mov_b32 s15, 0x20000")
    stamp(P, 101)
    P.add(xdma(0, 0)); P.add(xdma(0, 1)); P.add(xdma(0, 2))
    stamp(P, 102)
    P(f"s_mov_b32 s24, s46\ns_mov_b32 s25, s47\ns_mov_b32 s26, {WS_BYTES}\ns_mov_b32 s27, 0x20000")
    P(f"s_mov_b32 s28, s44\ns_mov_b32 s29, s45\ns_mov_b32 s30, 256\ns_mov_b32 s31, 0x20000")
    P("s_cmp_lt_u32 s39, 8\ns_cbranch_scc1 L_attn")

def xdma(st, S):
    Q = Prog()
    Q(f"s_add_u32 m0, s54, {st*49152+S*4096}\ns_add_u32 s56, s55, 1152")
    Q(f"buffer_load_dwordx4 v44, {sX}, s55 offen lds\nbuffer_load_dwordx4 v45, {sX}, s55 offen offset:1024 lds", tag=f"x{3*st+S}")
    Q(f"s_add_u32 m0, m0, 2048\ns_add_u32 s55, s55, 128")
    Q(f"buffer_load_dwordx4 v44, {sX}, s56 offen lds\nbuffer_load_dwordx4 v45, {sX}, s56 offen offset:1024 lds", tag=f"x{3*st+S}")
    Q(f"s_cmp_eq_u32 s55, 1152\ns_cselect_b32 s55, 0, s55")
    return Q.l

def weave(main, extra, every):
    out = []; k = 0; cnt = 0
    for idx, ins in enumerate(main):
        out.append(ins); cnt += 1
        nxt = main[idx + 1] if idx + 1 < len(main) else None
        safe = nxt is None or ('scc' not in nxt.rd and 'm0' not in nxt.rd)
        if k < len(extra) and cnt >= every and safe:
            out += extra[k]; k += 1; cnt = 0
    for g in extra[k:]: out += g
    return out

def xphase(P, setup, frags, sums, sqs, dmas, nfirst=3):
    lead = OPT['xlead']
    late = [x for x in setup if x.kind == 'vmem']
    P.add([x for x in setup if x.kind != 'vmem'])
    for S in range(nfirst, lead + 1): P.add(xdma(S // 3, S % 3))
    dmas = dict(dmas); dmas[9] = dmas.get(9, []) + late
    stamp(P, 1); stamp(P, 103)
    def dots(S):
        L = []
        for (d, a, o, k) in frags[S]:
            for j in range(4): L += mk(f"v_dot2c_f32_bf16 v{sums[k][j%2]}, s57, v{d+j}\nv_dot2c_f32_bf16 v{sqs[k][j%2]}, v{d+j}, v{d+j}")
        return L
    for S in range(10):
        if S < 9:
            P(f"WAITV x{S}")
            if S in (0, 2, 5, 8): stamp(P, 104 + (0, 2, 5, 8).index(S))
            for n, (d, a, o, k) in enumerate(frags[S]): P(f"ds_read_b128 {vr(d,4)}, v{a} offset:{o}", tag=f"xr{S}")
        if S == 8: stamp(P, 2)
        if S >= 1:
            P(f"WAITL xr{S-1}")
            if S - 1 in (2, 5): P("s_barrier")
        extra = []
        if S + lead + 1 < 9: extra += dgroups(xdma((S + lead + 1) // 3, (S + lead + 1) % 3))
        if S in dmas: extra += dgroups(dmas[S])
        body = dots(S - 1) if S >= 1 else []
        P.add(weave(body, extra, max(1, len(body) // (len(extra) + 1))))
    stamp(P, 108)

RING = 24576; NSLOT = 5; HX = RING * NSLOT
vA1 = [[16, 17, 18], [19, 20, 21]]; vA2 = [[22, 23, 24], [25, 26, 27]]
vD1 = [28, 29, 30, 31]; vD2 = [32, 33, 34, 35]
vHW, vHR, vST = 36, 37, 38
ACC1 = 48; XR = 112
AF = 192

def flag_setup(P, vFLW, sj, tmpv, hop=False):
    P(f"s_lshl_b32 s66, {sM}, 2\ns_add_u32 s66, s66, {sWV}\ns_lshl_b32 s66, s66, 11\ns_lshl_b32 s67, {sj}, 7\ns_add_u32 s66, s66, s67\ns_add_u32 s66, s66, {WS_FLAG}")
    P(f"v_lshrrev_b32 {tmpv}, 5, v0\nv_lshlrev_b32 {tmpv}, 30, {tmpv}\nv_lshl_add_u32 {tmpv}, v0, 2, {tmpv}\nv_add_u32 v{vFLW}, s66, {tmpv}\nv_mov_b32 {tmpv}, 0")
    P(f"buffer_store_dword {tmpv}, v{vFLW}, {sWS}, 0 offen sc1", tag='fz')
    if hop: P(f"s_mov_b32 s37, {HFOFF}\nbuffer_store_dword {tmpv}, v{vFLW}, {sWS}, s37 offen sc1", tag='fz')
def handshake(sj, va, vb, xcc=False):
    Q = Prog()
    Q(f"s_lshl_b32 s66, {sM}, 2\ns_and_b32 s67, {sj}, 3\ns_add_u32 s66, s66, s67\ns_lshl_b32 s66, s66, 2\ns_lshl_b32 s67, {sWV}, 8\ns_add_u32 s66, s66, s67")
    Q(f"v_lshlrev_b32 {va}, 8, v0\nv_add_u32 {va}, s66, {va}")
    Q(f"s_getreg_b32 s66, hwreg(HW_REG_XCC_ID)\ns_and_b32 s66, s66, 15\ns_and_b32 s67, {sj}, 12\ns_add_u32 s67, s67, 12\ns_lshl_b32 s66, s66, s67\ns_add_u32 s66, s66, 1\nv_mov_b32 {vb}, s66")
    Q(f"buffer_atomic_add {vb}, {va}, {sDBG}, 0 offen sc1", tag='hsk', cost=8)
    return Q.l

def sel32(P, SEL):
    P("v_and_b32 v2, 1, v0\nv_lshlrev_b32 v2, 4, v2\nv_mov_b32 v3, 0x3f80\nv_lshlrev_b32 v2, v2, v3")
    P("v_bfe_u32 v3, v0, 2, 1\nv_lshlrev_b32 v3, 1, v3\nv_lshrrev_b32 v4, 4, v0\nv_cmp_eq_u32 vcc, v3, v4\nv_cndmask_b32 v2, 0, v2, vcc")
    P("v_bfe_u32 v3, v0, 3, 1\nv_lshlrev_b32 v3, 1, v3\nv_bfe_u32 v4, v0, 1, 1\nv_add_u32 v3, v3, v4")
    for j in range(4): P(f"v_cmp_eq_u32 vcc, {j}, v3\nv_cndmask_b32 v{SEL+j}, 0, v2, vcc")

def dgroups(lst):
    G = []; cur = []
    for x in lst:
        cur.append(x)
        if x.kind == 'vmem': G.append(cur); cur = []
    if cur: G[-1] += cur
    return G

def flat(groups): return [x for g in groups for x in g]

def ffn():
    P = Prog()
    P(f"s_mov_b32 s50, {sROT}" if OPT['rot'] else "s_mov_b32 s50, 0")
    P(f"s_add_u32 s51, s50, 1\ns_cmp_ge_u32 s51, 3\ns_cselect_b32 s51, 0, s51\ns_add_u32 s52, s51, 1\ns_cmp_ge_u32 s52, 3\ns_cselect_b32 s52, 0, s52")
    P(f"s_mul_i32 {sSL}, s38, 3\ns_add_u32 {sSL}, {sSL}, {sROT}")
    P(f"s_mov_b32 s16, s40\ns_mov_b32 s17, s41\ns_mov_b32 s18, {576*4608*2}\ns_mov_b32 s19, 0x20000")
    P(f"s_mov_b32 s20, s42\ns_mov_b32 s21, s43\ns_mov_b32 s22, {576*4608*2}\ns_mov_b32 s23, 0x20000")
    P(f"s_mul_i32 s59, {sSL}, 768")
    P(f"s_mul_i32 s63, {sSL}, {384*1152}\ns_mul_i32 s64, {sWV}, 6144")
    if OPT['fuse']: P(f"s_lshl_b32 {sSL}, {sROT}, 2\ns_add_u32 {sSL}, {sSL}, s38")
    P("s_load_dwordx2 s[72:73], s[0:1], 48")
    vFLW = 39
    if OPT['fuse']: flag_setup(P, vFLW, sSL, 'v14', True)
    def pf_w(which):
        Q = Prog()
        if which == 1:
            Q(f"s_mul_i32 s66, {sMEM}, {72*9216}\ns_add_u32 s66, s66, s59\ns_lshl_b32 s67, {sWV}, 6\ns_mov_b32 s68, {-(-(1<<32)//6)}")
            for i in range(2):
                Q(f"v_add_u32 v10, s67, v0")
                if i: Q(f"v_add_u32 v10, 256, v10\nv_min_u32 v10, 431, v10")
                Q(f"v_mul_hi_u32 v11, v10, s68\nv_lshlrev_b32 v10, 7, v10\nv_mul_u32_u24 v11, {9216-768}, v11\nv_add_u32 v10, v10, v11")
                Q(f"buffer_load_dword v47, v10, {sWA}, s66 offen", tag='dummy', cost=8)
        else:
            nb = OPT['nb2']; n = 108 // nb
            Q(f"s_lshl_b32 s71, {sMEM}, 2\ns_add_u32 s71, s71, {sWV}\ns_mul_i32 s71, s71, {108*128}\ns_add_u32 s71, s71, s63")
            Q(f"v_min_u32 v44, {n-1}, v0\nv_lshlrev_b32 v44, 7, v44")
            for i in range(nb):
                Q(f"buffer_load_dword v47, v44, {sWB}, s71 offen", tag='dummy', cost=8)
                if i < nb - 1: Q(f"s_add_u32 s71, s71, {n*128}")
        return Q.l
    P(f"v_lshrrev_b32 v2, 3, v0\nv_and_b32 v3, 7, v0")
    P(f"s_mul_i32 s58, {sWV}, 48\nv_add_u32 v4, s58, v2")
    P(f"v_bfe_u32 v5, v0, 4, 1\nv_lshlrev_b32 v5, 2, v5\nv_xor_b32 v5, v5, v3\nv_lshlrev_b32 v5, 4, v5")
    P(f"v_mul_u32_u24 v6, 9216, v4\nv_add_u32 v{vD1[0]}, v6, v5")
    for i in range(1, 4): P(f"v_add_u32 v{vD1[i]}, {i*(8*9216-1024)}, v{vD1[0]}")
    P(f"v_bfe_u32 v5, v0, 4, 2\nv_lshlrev_b32 v5, 1, v5\nv_xor_b32 v5, v5, v3\nv_lshlrev_b32 v5, 4, v5")
    P(f"v_mul_u32_u24 v6, 1152, v4\nv_add_u32 v{vD2[0]}, v6, v5")
    for i in range(1, 4): P(f"v_add_u32 v{vD2[i]}, {i*(8*1152-1024)}, v{vD2[0]}")
    for st in range(3): P(f"s_mul_i32 s{60+st}, s{50+st}, {192*9216}\ns_add_u32 s{60+st}, s{60+st}, s59")

    PA, PS = 40, 3
    g2 = [(0,0),(1,0),(2,0),(0,1),(1,1),(2,1)] + [(p,k) for p in range(3,9) for k in range(2)]
    def dma(s):
        slot = (s % NSLOT) * RING
        if s < 18:
            p, st = s // 3, s % 3
            srd, vD, base, add, big = sWA, vD1, f"s{60+st}", p * 128, 32 * 9216
        else:
            p, k = g2[s - 18]
            srd, vD, base, add, big = sWB, vD2, f"s{PA+p}", k * 192 * 1152, 32 * 1152
        t = f"d{s}"
        G = mk(f"s_add_u32 m0, s64, {slot}\ns_add_u32 s65, {base}, {add}")
        for i in range(4): G += mk(f"buffer_load_dwordx4 v{vD[i]}, {srd}, s65 offen offset:{1024*i} lds", tag=t, cost=8)
        G += mk(f"s_add_u32 m0, s64, {slot+4096}\ns_add_u32 s65, {base}, {add+big}")
        for i in range(2): G += mk(f"buffer_load_dwordx4 v{vD[i]}, {srd}, s65 offen offset:{1024*i} lds", tag=t, cost=8)
        return G
    P(f"v_lshrrev_b32 v2, 5, v0\nv_lshlrev_b32 v2, 12, v2\nv_bfe_u32 v3, v0, 2, 2\nv_lshlrev_b32 v3, 7, v3\nv_add_u32 v2, v2, v3")
    P(f"v_bfe_u32 v3, v0, 4, 1\nv_lshlrev_b32 v3, 5, v3\nv_add_u32 v2, v2, v3\nv_and_b32 v3, 3, v0\nv_lshlrev_b32 v3, 3, v3\nv_add_u32 v2, v2, v3")
    P(f"v_bfe_u32 v3, v0, 3, 1\nv_lshlrev_b32 v3, 6, v3\nv_add_u32 v{vA1[0][0]}, v2, v3\nv_xor_b32 v{vA1[1][0]}, 64, v{vA1[0][0]}")
    P(f"v_lshrrev_b32 v2, 2, v0\nv_lshlrev_b32 v2, 7, v2\nv_and_b32 v3, 3, v0\nv_lshlrev_b32 v3, 3, v3\nv_add_u32 v2, v2, v3")
    P(f"s_and_b32 s69, {sWV}, 1\ns_lshl_b32 s69, s69, 1\nv_bfe_u32 v3, v0, 3, 2\nv_xor_b32 v3, s69, v3\nv_lshlrev_b32 v3, 5, v3")
    P(f"v_add_u32 v{vA2[0][0]}, v2, v3\nv_xor_b32 v{vA2[1][0]}, 32, v{vA2[0][0]}")
    for vA in (vA1, vA2):
        for u in range(2):
            for b in (1, 2): P(f"v_add_u32 v{vA[u][b]}, {b*2*RING}, v{vA[u][0]}")
    P(f"v_bfe_u32 v2, v0, 4, 1\nv_lshlrev_b32 v2, 10, v2\nv_lshrrev_b32 v3, 5, v0\nv_lshlrev_b32 v3, 8, v3\nv_add_u32 v2, v2, v3")
    P(f"v_and_b32 v3, 15, v0\nv_lshlrev_b32 v3, 4, v3\nv_add_u32 v2, v2, v3\ns_lshl_b32 s69, {sWV}, 11\ns_add_u32 s69, s69, {HX}\nv_add_u32 v{vHW}, s69, v2")
    if OPT['fuse']: P(f"s_and_b32 s69, {sSL}, 3\ns_lshl_b32 s69, s69, 10\nv_xor_b32 v{vHW}, s69, v{vHW}")
    P(f"v_lshlrev_b32 v{vST}, 4, v0\ns_lshr_b32 s69, {sWV}, 1\ns_lshl_b32 s69, s69, 12\ns_add_u32 s69, s69, {HX}\nv_add_u32 v{vHR}, s69, v{vST}")
    P(f"s_lshl_b32 s70, {sM}, 4\ns_add_u32 s70, s70, {sSL}\ns_lshl_b32 s70, s70, 1\ns_lshr_b32 s69, {sWV}, 1\ns_add_u32 s70, s70, s69")
    P(f"s_mul_i32 s70, s70, 18\ns_and_b32 s69, {sWV}, 1\ns_add_u32 s70, s70, s69\ns_lshl_b32 s70, s70, 12")
    P(f"s_lshr_b32 s66, {sSL}, 2\ns_mul_i32 s67, {sM}, 43\ns_lshr_b32 s67, s67, 7")
    P(f"s_mul_i32 s68, s67, 3\ns_sub_u32 s68, {sM}, s68\ns_add_u32 s68, s68, s66\ns_add_u32 s68, s68, 1")
    P(f"s_cmp_ge_u32 s68, 3\ns_cselect_b32 s69, 3, 0\ns_sub_u32 s68, s68, s69")
    P(f"s_cmp_ge_u32 s67, 3\ns_cselect_b32 s69, 3, 0\ns_sub_u32 s67, s67, s69")
    if not OPT['fuse']: P("s_mov_b32 s67, 0\ns_mov_b32 s68, 0")
    for ph in range(3):
        for k in range(3):
            p = 3 * ph + k
            P(f"s_mul_i32 s69, s68, 3\ns_add_u32 s69, s69, s67\ns_lshl_b32 s{PA+p}, s69, 7\ns_add_u32 s{PA+p}, s{PA+p}, s63\ns_lshl_b32 s{PS+p}, s69, 13\ns_add_u32 s{PS+p}, s{PS+p}, s70")
            P("s_add_u32 s67, s67, 1\ns_cmp_eq_u32 s67, 3\ns_cselect_b32 s67, 0, s67")
        if ph < 2: P("s_add_u32 s68, s68, 1\ns_cmp_eq_u32 s68, 3\ns_cselect_b32 s68, 0, s68")
    JS = 147456
    P(f"s_and_b32 s67, {sSL}, 3")
    for d in range(4): P(f"s_xor_b32 s{96+d}, s67, {d}\ns_mul_i32 s{96+d}, s{96+d}, {JS}\ns_add_u32 s{96+d}, s{96+d}, {1024*d}")
    P(f"s_mul_i32 s71, {sSL}, {JS}\ns_lshl_b32 s50, {sM}, 3\ns_add_u32 s50, s50, s67\ns_and_b32 s68, {sWV}, 2\ns_lshl_b32 s68, s68, 1\ns_add_u32 s50, s50, s68\ns_mul_i32 s50, s50, 18\ns_and_b32 s68, {sWV}, 1\ns_add_u32 s50, s50, s68\ns_lshl_b32 s50, s50, 10\ns_add_u32 s50, s50, {WS_S}")
    P(f"s_sub_u32 s68, 3, s66\ns_mul_i32 s101, s68, {4*JS}")
    P(f"s_add_u32 s68, s66, 1\ns_cmp_ge_u32 s68, 3\ns_cselect_b32 s68, 0, s68\ns_lshl_b32 s69, s68, 2\ns_add_u32 s51, s69, s67\ns_sub_u32 s68, s68, s66\ns_mul_i32 s100, s68, {4*JS}")
    P(f"s_mul_i32 s49, s66, {4*JS}\ns_sub_u32 s49, s49, s71\ns_lshl_b32 s68, s66, 2\ns_lshl_b32 s53, 15, s68\ns_lshl_b32 s68, 1, {sSL}\ns_andn2_b32 s53, s53, s68\ns_mov_b32 s52, 0xf000")
    P(f"v_and_b32 v2, 31, v0\nv_lshlrev_b32 v2, 7, v2\nv_add_u32 v2, s54, v2\nv_bfe_u32 v3, v0, 1, 3\nv_lshrrev_b32 v4, 5, v0\nv_lshlrev_b32 v4, 2, v4\nv_xor_b32 v3, v3, v4\nv_lshlrev_b32 v3, 4, v3")
    P(f"v_add_u32 v80, v2, v3\nv_xor_b32 v81, 16, v80\nv_xor_b32 v82, 32, v80\nv_xor_b32 v83, 48, v80")
    for j in range(4): P(f"v_add_u32 v{84+j}, 98304, v{80+j}")
    SEL = 40
    sel32(P, SEL)
    P("v_mov_b32 v8, 0\nv_mov_b32 v9, 0\nv_mov_b32 v12, 0\nv_mov_b32 v13, 0\ns_mov_b32 s57, 0x3f803f80")
    P(f"s_waitcnt lgkmcnt(0)\ns_mov_b32 s74, {2048*576*2}\ns_mov_b32 s75, 0x20000")
    setup = P.l; P.l = []
    fr = [[(XR + 4 * (4 * S + f), (80 if S < 6 else 84) + f, ((S // 3) % 2) * 49152 + (S % 3) * 4096, 0) for f in range(4)] for S in range(9)]
    d0, d1, d2 = dma(0), dma(1), dma(2)
    xphase(P, setup, fr, [[8, 9]], [[12, 13]], {5: d0[:6], 6: d0[6:], 7: d1[:6], 8: d1[6:] + (d2[:6] if OPT['dpre'] == 3 else []), 9: d2[6:] if OPT['dpre'] == 3 else []})
    P("v_add_f32 v8, v8, v9\nv_add_f32 v12, v12, v13\nv_mov_b32 v9, v8\nv_mov_b32 v13, v12\nv_permlane32_swap_b32 v8, v9\nv_permlane32_swap_b32 v12, v13\nv_add_f32 v8, v8, v9\nv_add_f32 v12, v12, v13")
    def um(F): return mk(f"v_mfma_f32_32x32x16_bf16 {vr(ACC1+32+16*(F%2),16)}, {vr(SEL,4)}, {vr(XR+4*F,4)}, 0")
    def nv(F):
        d = ACC1 + 32 + 16 * (F % 2); x = XR + 4 * F
        o = []
        for j in range(8): o += mk(f"v_fma_f32 v{d+j}, v{d+j}, v2, v3")
        for j in range(4): o += mk(f"v_cvt_pk_bf16_f32 v{x+j}, v{d+2*j}, v{d+2*j+1}")
        return o
    P.add(um(0)); P.add(um(1))
    ln_stats(P, 'v8', 'v12', 'v4', 'v2', 'v3')
    P(f"v_mul_f32 v2, {hx(LOG2E)}, v2\nv_mul_f32 v3, v4, v2")

    uses = []
    for p in range(6):
        for st in range(3):
            s = 3 * p + st; slot = s % NSLOT
            for S in range(3):
                for ss in range(4):
                    F = st * 12 + S * 4 + ss
                    for u in range(2):
                        n = len(uses); af = AF + 4 * (n % 16)
                        off = (slot % 2) * RING + (64 * S + 8 * ss) * 128
                        va = vA1[u][slot // 2]
                        rd = mk(f"ds_read_b64_tr_b16 {ar(af,2)}, v{va} offset:{off}\nds_read_b64_tr_b16 {ar(af+2,2)}, v{va} offset:{off+512}", tag=f"r{n}")
                        acc = vr(ACC1 + 32 * (p % 2) + 16 * u, 16)
                        mf = mk(f"v_mfma_f32_32x32x16_bf16 {acc}, {ar(af,4)}, {vr(XR+4*F,4)}, {'0' if F == 0 else acc}")
                        uses.append((s, rd, mf))
    N1 = len(uses)
    ACC2 = XR; STG = XR + 128
    for si, (p, k) in enumerate(g2):
        s = 18 + si; slot = s % NSLOT
        for kk in range(6):
            ks = 6 * k + kk
            for u in range(2):
                n = len(uses); af = AF + 4 * (n % 16)
                off = (slot % 2) * RING + 32 * kk * 128
                va = vA2[u][slot // 2]
                rd = mk(f"ds_read_b64_tr_b16 {ar(af,2)}, v{va} offset:{off}\nds_read_b64_tr_b16 {ar(af+2,2)}, v{va} offset:{off+2048}", tag=f"r{n}")
                mf = []
                for j in range(4):
                    acc = vr(ACC2 + 32 * (p % 4) + 8 * j + 4 * u, 4)
                    mf += mk(f"v_mfma_f32_16x16x32_bf16 {acc}, {ar(af,4)}, {ar(16*ks+4*j,4)}, {'0' if (ks == 0 and not (OPT['fuse'] and p >= 5)) else acc}")
                uses.append((s, rd, mf))
    NU = len(uses)
    PD1, PD2 = OPT['pd1'], OPT['pd2']
    rd_at = {}
    for n in range(NU):
        if n < N1: g = n - PD1
        else:
            g = n - PD2
            if g < N1: g = N1 - 1 - 2 * (N1 - 1 - g)
        rd_at.setdefault(g, []).append(n)
    bar_at = {}
    for g in sorted(rd_at):
        for n in rd_at[g]:
            s = uses[n][0]
            if s not in bar_at: bar_at[s] = g
    extra_lw = {}
    def hw_tag(ks): return f"hw{ks}"
    def rstage(ks):
        p = ks // 2
        if p <= 3: return 3 * (p + 2) + 1
        if p == 4: return 19
        return 21
    for ks in range(1, 12, 2): extra_lw[rstage(ks)] = hw_tag(ks)
    def barrier(s):
        if s in extra_lw: return mk(f"WAITVL d{s}, {extra_lw[s]}\ns_barrier")
        return mk(f"WAITV d{s}\ns_barrier")
    P.add(barrier(0))
    for g in sorted(rd_at):
        if g < 0:
            for n in rd_at[g]: P.add(uses[n][1])
    P.add(nv(0))
    P("WAITL r3")
    stamp(P, 3)
    S16 = 16
    AOFF = {3: OPT['a3'], 4: OPT['a4'], 5: -OPT['cin'], 6: -OPT['cin'], 7: -OPT['cin'], 8: -OPT['cin']}
    def ustart(p): return N1 + 12 * (6 + 2 * (p - 3))
    nacc = {ustart(p) + AOFF[p] + 23: p for p in range(3, 5)} if OPT['fuse'] else {}
    gacc = {}
    def HB(p): return 48 + 16 * (p % 2)
    def accum(dst, src, first=False):
        return mk(f"v_mfma_f32_16x16x32_bf16 {vr(dst,4)}, {vr(S16+2,4)}, {src}, {'0' if first else vr(dst,4)}\nv_mfma_f32_16x16x32_bf16 {vr(dst+4,4)}, {vr(S16,4)}, {src}, {'0' if first else vr(dst+4,4)}")
    def hopacc(p):
        L = []
        for j in range(4): L += accum(ACC2 + 32 * (p % 4) + 8 * j, vr(HB(p) + 4 * j, 4))
        return L[0::2] + L[1::2]
    SC = Sched()
    gi = {}
    gu = {}
    for n in range(NU):
        mf = uses[n][2]
        if n in nacc:
            SC.tail[-1] += mk(f"WAITV hl{nacc[n]}")
            for m_ in hopacc(nacc[n]): gacc[nacc[n]] = SC.gap([m_], 16)
        if n < 72 and n % 2 == 0 and n // 2 + 2 < 36:
            gu[n // 2 + 2] = SC.gap(um(n // 2 + 2), 32)
        bar = []
        for s, g in bar_at.items():
            if g == n: bar = barrier(s)
        rds = []
        for nn in rd_at.get(n, []): rds += uses[nn][1]
        if n < N1:
            g = SC.gap(mf, 32); gi[n] = g
            SC.mand[g] += bar + rds
            if n % 4 == 3 and n + 1 < N1: SC.tail[g] += mk(f"WAITL r{n+4}")
            if n == N1 - 1: SC.tail[g] += mk(f"WAITL r{n+2}")
        else:
            gs = [SC.gap([m], 16) for m in mf]; gi[n] = gs[0]
            if bar:
                SC.mand[gs[0]] += bar
                for i, t in enumerate(rds): SC.mand[gs[1 + i]].append(t)
            else:
                for i, t in enumerate(rds): SC.mand[gs[2 * i]].append(t)
            if (n - N1) % 2 == 1 and n + 1 < NU: SC.tail[gs[3]] += mk(f"WAITL r{n+2}")
    gi[NU] = len(SC.head)

    def silu(ks):
        p, u = ks // 2, ks % 2
        a = ACC1 + 32 * (p % 2) + 16 * u
        F = []
        T = [1, 2, 3, 4, 5, 6, 7, 46]
        stg = 8
        def E(q, j): return mk(f"v_exp_f32_e64 v{T[4*(q%2)+j]}, -v{a+4*q+j}")
        def Ad(q, j): return mk(f"v_add_f32 v{T[4*(q%2)+j]}, 1.0, v{T[4*(q%2)+j]}")
        def R(q, j): return mk(f"v_rcp_f32 v{T[4*(q%2)+j]}, v{T[4*(q%2)+j]}")
        def M(q, j): return mk(f"v_mul_f32 v{T[4*(q%2)+j]}, v{a+4*q+j}, v{T[4*(q%2)+j]}")
        def C(q):
            d = stg + 4 * (q % 2) + 2 * (q // 2); t = T[4*(q%2):4*(q%2)+4]
            o = mk(f"v_cvt_pk_bf16_f32 v{d}, v{t[0]}, v{t[1]}\nv_cvt_pk_bf16_f32 v{d+1}, v{t[2]}, v{t[3]}")
            if q >= 2: o += mk(f"ds_write_b128 v{vHW}, {vr(stg+4*(q%2),4)} offset:{(ks%4)*8192+512*(q%2)}", tag=hw_tag(ks), cost=OPT['wcost'])
            return o
        for q in range(4):
            F += E(q, 0) + E(q, 1)
            F += E(q, 2) + Ad(q, 0) + Ad(q, 1)
            F += E(q, 3) + Ad(q, 2)
            F += R(q, 0) + Ad(q, 3)
            F += R(q, 1) + M(q, 0)
            F += R(q, 2) + M(q, 1)
            F += R(q, 3) + M(q, 2)
            c = C(q)
            F += [c[0]] + M(q, 3) + c[1:]
        return F
    def hread(ks):
        return flat([mk(f"ds_read_b128 {ar(16*ks+4*j,4)}, v{vHR} offset:{(ks%4)*8192+1024*j}", tag=f"hr{ks}") for j in range(4)])
    def epi(p):
        a = ACC2 + 32 * (p % 4)
        F = []
        for j in range(4):
            if OPT['fuse'] and p >= 6 and j == 0: continue
            for u in range(2):
                for h in range(2): F += mk(f"v_cvt_pk_bf16_f32 v{STG+4*j+2*u+h}, v{a+8*j+4*u+2*h}, v{a+8*j+4*u+2*h+1}")
            F += mk(f"buffer_store_dwordx4 {vr(STG+4*j,4)}, v{vST}, {sWS}, s{PS+p} offen offset:{1024*j}{STMOD if (p >= 6 or not OPT['fuse']) else ''}", tag=f'st{p}', cost=8)
        return F

    for s in range(0, 33):
        g0 = gi[bar_at[s]] + 1 if bar_at[s] >= 0 else 0
        g1 = gi[bar_at[s + 1]]
        SC.place((dma(2) if (s == 0 and OPT['dpre'] == 2) else []) + dma(s + 3), g0, g1, 'spread', f'dma{s+3}')
    for ks in range(12):
        g0 = gi[bar_at[rstage(ks)]] + 1 + (ks % 2) * 8
        SC.place(hread(ks), g0, g0 + 8, 'spread', f'hr{ks}')
    if OPT['fuse']: SC.place(handshake(sSL, 'v44', 'v45', True), gi[bar_at[3]] + 1, gi[bar_at[3]] + 12, 'spread', 'hsk')
    if OPT['pfw'] & 1: SC.place(pf_w(1), 20, 70, 'spread', 'pf1')
    if OPT['pfw'] & 2: SC.place(pf_w(2), gi[90], gi[400], 'spread', 'pf2')
    for F in range(1, 36):
        g0 = gu.get(F + 1, gi[2 * (F - 1)]); g1 = gi[2 * (F - 1) + 1] + 1
        SC.place(nv(F), g0, g1, 'asap', f'nv{F}')
    for p in range(5):
        b = 72 * (p + 1)
        SC.place(silu(2 * p) + silu(2 * p + 1), gi[b + 2], gi[b + 72], 'asap', f'silu{p}')
    SC.place(silu(10) + silu(11), gi[N1] + 6, gi[bar_at[21]] - 2, 'asap', 'silu5')
    last_stage = {}; gepi = {}
    for si, (p, k) in enumerate(g2):
        if k == 1: last_stage[p] = si
    for p in range(8):
        g0 = gi[N1 + 12 * (last_stage[p] + 1)] + 5
        if p in gacc: g0 = gacc[p] + 5
        if OPT['fuse'] and p >= 6: continue
        gepi[p] = SC.place(epi(p), g0, g0 + (42 if not OPT['fuse'] else 30), 'spread' if not OPT['fuse'] else 'asap', f'epi{p}')[-1]
    slow = []
    def gs(si, off=0): return gi[N1 + 12 * si] + off
    if OPT['fuse']:
        vFR, vFV, vXO, vC = 28, 29, 30, 31
        def site(name, load, tag, chk, g0, g1):
            L = mk(f"WAITV {tag}") + mk(chk) + mk(f"s_cbranch_scc0 L_slow{name}\nL_back{name}:")
            head, tailp = L[:-4], L[-4:]
            pos = SC.place(head, g0, g1, 'asap', name)
            SC.fill[pos[-1] + 1] += tailp
            slow.extend(mk(f"L_slow{name}:\ns_mov_b32 s68, 0\nL_spin{name}:\n{load}\ns_waitcnt vmcnt(0)\n{chk}\ns_cbranch_scc1 L_back{name}\ns_sleep 1\ns_add_u32 s68, s68, 1\ns_cmp_lt_u32 s68, 0x80000\ns_cbranch_scc1 L_spin{name}\ns_branch L_back{name}", cond=True))
            return pos[-1] + 2
        hload = f"buffer_load_dword v41, v40, {sDBG}, 0 offen sc1"
        SC.place(mk(f"s_lshl_b32 s66, {sM}, 4\nv_and_b32 v40, 3, v0\nv_lshlrev_b32 v40, 2, v40\nv_add_u32 v40, s66, v40") + mk(hload, tag='hc', cost=8), gi[130], gi[142], 'spread', 'hc')
        g = site('H', hload, 'hc', f"v_and_b32 v42, 0xff, v41\nv_cmp_le_u32 vcc, 4, v42\ns_and_b32 s66, vcc_lo, 15\ns_cmp_eq_u32 s66, 15", gi[170], gi[180])
        MD = mk(f"v_readlane_b32 s66, v41, s38\ns_lshr_b32 s67, s66, 4\ns_xor_b32 s66, s66, s67")
        pos = SC.place(MD, g, gi[190], 'spread', 'mode')
        fb = "s_or_b32 s66, s66, 0x1000\n" if OPT['forcefb'] else ""
        SC.fill[pos[-1] + 1] += mk(f"{fb}s_and_b32 s66, s66, 0xff000\ns_cselect_b32 s58, 0, 1\ns_cselect_b32 s59, s100, 0\ns_cselect_b32 s100, s100, s101\ns_cselect_b32 s101, 0, s101")
        SC.place(mk("\n".join(f"s_add_u32 s{PS+p}, s{PS+p}, s101" for p in range(6))), pos[-1] + 2, gi[205], 'spread', 'psfix')
        SC.place(mk(f"buffer_load_dword v47, v{vFLW}, {sWS}, s37 offen sc1", tag='dummy', cost=8), gi[205], gi[215], 'asap', 'pfflag')
        if OPT['pfh'] & 2:
            L = []
            for p in range(3):
                for j in range(4): L += mk(f"buffer_store_dwordx4 {vr(XR,4)}, v{vST}, {sWS}, s{PS+p} offen offset:{1024*j} sc1", tag='pw', cost=16)
            SC.place(L, gi[208], gi[300], 'spread', 'prewrite')
        if OPT['pfh'] & 1:
            hs = OPT['hsplit']
            L = mk(f"v_and_b32 v40, {32//hs-1}, v0\nv_lshlrev_b32 v40, 7, v40") + (mk("WAITV pw") if OPT['pfh'] & 2 else [])
            for p in range(3):
                for h in range(hs): L += mk(f"buffer_load_dword v47, v40, {sWS}, s{PS+p} offen offset:{h*4096//hs} sc1", tag='dummy', cost=8)
            SC.place(L, gi[OPT['pfh0']], gi[425], 'spread', 'pfh')
        SQ = Prog()
        SQ(f"s_lshl_b32 s66, {sM}, 2\ns_add_u32 s67, s66, {sWV}\ns_lshl_b32 s67, s67, 11\ns_and_b32 s68, {sWV}, 2\ns_add_u32 s66, s66, s68\ns_bfe_u32 s68, {sSL}, 0x10001\ns_add_u32 s66, s66, s68\ns_lshl_b32 s66, s66, 11")
        SQ(f"s_lshl_b32 s51, s51, 7\ns_add_u32 s51, s51, s67\ns_add_u32 s51, s51, {WS_FLAG + HFOFF}\nv_mov_b32 v43, s51")
        SQ(f"v_and_b32 v40, 15, v0\nv_mov_b32 v41, s67\nv_mov_b32 v42, s66\nv_cmp_gt_u32 vcc, 12, v40\nv_lshlrev_b32 v40, 7, v40\nv_add_u32 v40, {WS_FLAG}, v40\nv_cndmask_b32 v41, v42, v41, vcc\nv_add_u32 v{vFR}, v40, v41")
        SQ(f"s_or_b32 vcc_lo, s52, s53\ns_mov_b32 vcc_hi, 0\nv_mov_b32 v40, 2.0\nv_cndmask_b32 v{vFR}, v40, v{vFR}, vcc")
        sel_consts(SQ, S16, 'v40', 'v41', 'v42')
        SQ('s_mov_b32 s16, s24\ns_mov_b32 s17, s25\ns_mov_b32 s57, 0xffff0000')
        SQ(f"s_lshl_b32 s66, {sM}, 7\ns_and_b32 s67, {sWV}, 2\ns_lshl_b32 s67, s67, 5\ns_add_u32 s66, s66, s67\ns_and_b32 s67, {sSL}, 2\ns_lshl_b32 s67, s67, 4\ns_add_u32 s66, s66, s67\ns_and_b32 s67, {sSL}, 1\ns_add_u32 s66, s66, s67")
        SQ(f"v_and_b32 v40, 15, v0\nv_lshlrev_b32 v40, 1, v40\nv_add_u32 v40, s66, v40\nv_mul_u32_u24 v40, 1152, v40\nv_lshrrev_b32 v41, 4, v0\nv_lshlrev_b32 v41, 3, v41\ns_and_b32 s67, {sWV}, 1\ns_lshl_b32 s67, s67, 6\nv_add3_u32 v{vXO}, v40, v41, s67\nv_lshlrev_b32 v41, 3, v0")
        SC.place(SQ.l, gs(3, 0), gs(6), 'asap', 'tailsetup')
        fload = f"buffer_load_dword v{vFV}, v{vFR}, {sWS}, 0 offen sc1"
        def chk(thr, mask): return f"v_cmp_le_u32 vcc, {thr}, v{vFV}\ns_and_b32 s66, vcc_lo, {mask}\ns_cmp_eq_u32 s66, {mask}"
        def fstore(val): return mk(f"buffer_store_dword v{vC}, v{vFLW}, {sWS}, 0 offen sc1", tag=f'fl{val}', cost=8)
        for p in range(6):
            g = gepi[p] + OPT['fdel']
            pos = SC.place(mk(f"v_mov_b32 v{vC}, {p+1}") + mk(f"WAITV st{p}"), g, g + 20, 'asap', f'flag{p}')
            hst = f"buffer_store_dword v{vC}, v{vFLW}, {sWS}, s37 offen"
            SC.fill[pos[-1] + 1] += mk(f"s_cmp_eq_u32 s58, 0\ns_cbranch_scc1 L_rel{p}") + mk(hst, tag=f'fl{p+1}', cost=8) + mk(f"L_relb{p}:")
            slow.extend(mk(f"L_rel{p}:\nbuffer_wbl2 sc1\ns_waitcnt vmcnt(0)\n{hst} sc1\ns_branch L_relb{p}", cond=True))
        pload = f"buffer_load_dword v{vFV}, v43, {sWS}, 0 offen sc1"
        def hloads(p):
            L = mk(f"s_add_u32 s69, s{PS+p}, {'s59' if p < 6 else 's100'}")
            for j in range(4): L += mk(f"buffer_load_dwordx4 {vr(HB(p)+4*j,4)}, v{vST}, {sWS}, s69 offen offset:{1024*j} sc1", tag=f"hl{p}", cost=8)
            return L
        for p in range(3, 9):
            u0 = ustart(p) + AOFF[p]
            if p != 5:
                SC.place(mk(pload, tag=f'pp{p}', cost=8), gi[u0], gi[u0 + 2], 'asap', f'pp{p}')
                ck = f"v_cmp_le_u32 vcc, {3 if p == 4 else p-2}, v{vFV}"
                pos = SC.place(mk(f"WAITV pp{p}") + mk(ck), gi[u0 + OPT['pchk']], gi[u0 + OPT['pchk'] + 1], 'asap', f'chk{p}')
                SC.fill[pos[-1] + 2] += mk(f"s_cbranch_vccz L_slowP{p}\nL_backP{p}:")
                slow.extend(mk(f"L_slowP{p}:\n" + (f"s_add_u32 s93, s93, {1 << (4*(p-3))}\n" if OPT['stamp'] else "") + f"s_mov_b32 s68, 0\nL_spinP{p}:\n{pload}\ns_waitcnt vmcnt(0)\n{ck}\ns_add_u32 s68, s68, 1\ns_nop 4\ns_cbranch_vccnz L_backP{p}\ns_cmp_lt_u32 s68, 0x80000\ns_cbranch_scc1 L_spinP{p}\ns_branch L_backP{p}", cond=True))
                if p == 4: SC.place(hloads(5) + hloads(4), pos[-1] + 3, gi[u0 + OPT['pchk'] + 9], 'asap', f'hl{p}')
                else: ghl = SC.place(hloads(p), pos[-1] + 3, gi[u0 + OPT['pchk'] + 5], 'asap', f'hl{p}')[-1]
            if p >= 5:
                L = mk(f"WAITV hl{p}")
                for d in range(16):
                    a_ = ACC2 + 32 * (p % 4) + 2 * d
                    L += mk(f"v_lshlrev_b32 v{a_}, 16, v{HB(p)+d}\nv_and_b32 v{a_+1}, s57, v{HB(p)+d}")
                SC.place(L, gi[ustart(p) - 6], gi[ustart(p)] - 1, 'asap', f'cinit{p}')
        sQ = 's[16:19]'
        RS = [80, 84, 88]
        def sloads(srd, tag, cond=False):
            L = []
            for k in range(3):
                L += mk(f"s_lshl_b32 s69, s{60+k}, 4\ns_add_u32 s69, s69, s50", cond=cond)
                for u in range(2): L += mk(f"buffer_load_dwordx2 {vr(RS[k]+2*u,2)}, v41, {srd}, s69 offen offset:{512*u} sc1", tag=tag, cond=cond, cost=8)
            return L
        e6 = epi(6)
        SC.place([x for x in e6 if x.kind != 'vmem'], gs(14, 5), ghl, 'asap', 'epi6c')
        XV = 4
        L = mk(f"buffer_load_dword v42, v{vFR}, {sWS}, 0 offen sc1", tag='p0', cost=8) + [x for x in e6 if x.kind == 'vmem']
        for k in range(3):
            L += mk(f"s_sub_u32 s{60+k}, s{PA+6+k}, s63")
            L += mk(f"buffer_load_dwordx2 {vr(XV+4*k,2)}, v{vXO}, {sX}, s{60+k} offen\nbuffer_load_dwordx2 {vr(XV+4*k+2,2)}, v{vXO}, {sX}, s{60+k} offen offset:32", tag='xo', cost=8)
        SC.place(L, ghl + 1, gs(16, 5), 'asap', 'st6xo')
        g = SC.place(epi(7), gs(16, 5), gs(16, 30), 'asap', 'epi7')[-1]
        pos = SC.place(mk("WAITV p0\nv_cmp_le_u32 s[70:71], 9, v42"), g - 4, g + 8, 'asap', 'chkS')
        SC.fill[pos[-1] + 1] += mk(f"s_and_b32 s66, s70, s52\ns_cmp_eq_u32 s66, s52\ns_cselect_b32 s18, {WS_BYTES}, 0\ns_cselect_b32 s54, 1, 0")
        g = SC.place(sloads(sQ, 'ls') + mk(fload, tag='p1', cost=8), max(g + 1, pos[-1] + 2), gs(17, 30), 'asap', 'ls')[-1]
        SC.place(mk(f"v_mov_b32 v{vC}, 8") + mk("WAITV st7") + fstore(8), max(g + 1, gs(17, 24)), len(SC.head), 'asap', 'flag8')
    print("; overflow cycles: pass0 %d, pass1-5 %d, gemm2 %d" % (SC.overflow(0, gi[72]), SC.overflow(gi[72], gi[N1]), SC.overflow(gi[N1])), file=sys.stderr)
    marks = [gi[72], gi[144], gi[N1], gi[N1 + 72]]
    ids = [4, 5, 6, 7]
    if OPT['marks'] == 2:
        marks = [gs(12), gs(13), gs(14), gs(15), gs(16), gs(17), len(SC.head)]; ids = [1, 2, 3, 4, 5, 6, 7]
    if OPT['marks'] == 3:
        marks = [gs(6), gs(7), gs(8), gs(9), gs(10), gs(11), gs(12)]; ids = [1, 2, 3, 4, 5, 6, 7]
    if OPT['marks'] == 1:
        marks = [gs(0), gs(6), gs(8), gs(10), gs(12), gs(14), gs(16)]; ids = [1, 2, 3, 4, 5, 6, 7]
    prev = 0
    for i, g in zip(ids, marks):
        P.add(SC.emit(prev, g)); stamp(P, i); prev = g
    P.add(SC.emit(prev))
    P.add(epi(8))
    k0 = [i for i, x in enumerate(P.l) if x.text.startswith('WAITL r3')][0]
    def keep(x):
        if OPT['nosilu'] and x.base in ('v_exp_f32', 'v_rcp_f32', 'v_add_f32', 'v_mul_f32'): return False
        if OPT['nodma'] and x.kind == 'vmem' and 'lds' in x.mods: return False
        if OPT['nodma'] and x.op == 'WAITV': return False
        if OPT['nobar'] and x.kind == 'bar': return False
        if OPT['nost'] and (x.tag or '').startswith('st'): return False
        return True
    def fix(x):
        if OPT['nodma'] and x.op == 'WAITVL': return I('WAITL ' + x.ops[1])
        return x
    P.l = P.l[:k0] + [fix(x) for x in P.l[k0:] if keep(x)]
    stamp(P, 8)
    if OPT['fuse']:
        G = [ACC2 + 32 * ((6 + k) % 4) for k in range(3)]
        SS = [g + 8 for g in G]
        XU = 48
        def cloads(ks, srd, tag, cond=False):
            for k in ks:
                P(f"s_add_u32 s67, s{PS+6+k}, s49", cond=cond)
                for d in range(1, 4): P(f"s_add_u32 s69, s67, s{96+d}\nbuffer_load_dwordx4 {ar(12*k+4*(d-1),4)}, v{vST}, {srd}, s69 offen sc1", tag=tag, cond=cond)
        def spin(name, thr, mask):
            P(f"s_mov_b32 s68, 0\nL_spin{name}:", cond=True)
            P(fload + "\ns_waitcnt vmcnt(0)\n" + chk(thr, mask) + f"\ns_cbranch_scc1 L_done{name}\ns_sleep {OPT['slp']}\ns_add_u32 s68, s68, 1\ns_cmp_lt_u32 s68, 0x80000\ns_cbranch_scc1 L_spin{name}\nL_done{name}:", cond=True)
        def unit(k):
            for d in range(3): P.add(accum(G[k], ar(12 * k + 4 * d, 4)))
            g_, s_, t_, pk = G[k], SS[k], G[k] + 16, G[k] + 24
            for i in range(8): P(f"v_exp_f32_e64 v{t_+i}, -v{g_+i}")
            for i in range(8): P(f"v_add_f32 v{t_+i}, 1.0, v{t_+i}")
            for i in range(8): P(f"v_rcp_f32 v{t_+i}, v{t_+i}")
            for i in range(8): P(f"v_mul_f32 v{g_+i}, v{g_+i}, v{s_+i}")
            for i in range(8): P(f"v_fma_f32 v{g_+i}, v{g_+i}, v{t_+i}, v{XU+8*k+i}")
            for d in range(4): P(f"v_cvt_pk_bf16_f32 v{pk+d}, v{g_+2*d}, v{g_+2*d+1}")
            P(f"buffer_store_dwordx2 {vr(pk,2)}, v{vXO}, s[72:75], s{60+k} offen\nbuffer_store_dwordx2 {vr(pk+2,2)}, v{vXO}, s[72:75], s{60+k} offen offset:32", tag='os')
        P("WAITV p1\n" + chk(8, 's53') + f"\ns_cselect_b32 s18, {WS_BYTES}, 0\ns_cselect_b32 s55, 1, 0")
        cloads([0, 1], sQ, 'lc0')
        P(chk(9, 's53') + f"\ns_cselect_b32 s18, {WS_BYTES}, 0\ns_cselect_b32 s56, 1, 0")
        cloads([2], sQ, 'lc2')
        P(f"v_mov_b32 v{vC}, 9")
        for d in range(12): P(f"v_lshlrev_b32 v{XU+2*d}, 16, v{XV+d}\nv_and_b32 v{XU+2*d+1}, s57, v{XV+d}")
        P("WAITV st8"); P.add(fstore(9)); stamp(P, 12)
        P("s_cmp_eq_u32 s54, 1\ns_cbranch_scc1 L_haveS")
        spin('S', 9, 's52')
        P.add(sloads(sWS, 'ls2', True)); P("s_waitcnt vmcnt(0)", cond=True)
        P("L_haveS:")
        for k in range(3):
            for d in range(4): P(f"v_lshlrev_b32 v{SS[k]+2*d}, 16, v{RS[k]+d}\nv_and_b32 v{SS[k]+2*d+1}, s57, v{RS[k]+d}")
        P("s_cmp_eq_u32 s55, 1\ns_cbranch_scc1 L_have8")
        spin('8', 8, 's53')
        cloads([0, 1], sWS, 'lc0b', True); P("s_waitcnt vmcnt(0)", cond=True)
        P("L_have8:")
        stamp(P, 9)
        for k in range(3):
            for i in range(8): P(f"v_mul_f32 v{SS[k]+i}, {hx(LN2)}, v{SS[k]+i}")
        P("WAITV lc2")
        P(fload, tag='p2')
        unit(0); unit(1)
        P("s_cmp_eq_u32 s56, 1\ns_cbranch_scc1 L_have9")
        P("s_waitcnt vmcnt(4)\n" + chk(9, 's53') + "\ns_cbranch_scc1 L_done9", cond=True)
        spin('9', 9, 's53')
        stamp(P, 10)
        cloads([2], sWS, 'lc2b', True); P("s_waitcnt vmcnt(0)", cond=True)
        P("L_have9:")
        unit(2)
        stamp(P, 11)
    stamp_flush(P, 12)
    P("s_endpgm")
    P.add(slow)
    return P.l

def attn():
    P = Prog()
    P("s_endpgm")
    return P.l

def final():
    P = Prog()
    P("s_endpgm")
    return P.l

def finish(lst):
    lst = resolve_waits(lst)
    lst, nfix = fix_hazards(lst, OPT['verbose'])
    errs = check_scoreboard(lst)
    for e in errs[:20]: print("; SCOREBOARD ERR", e, file=sys.stderr)
    assert not errs
    lst, mis, sz = align_pass(lst)
    print(f"; hazard nops inserted: {nfix}, instrs: {len(lst)}, misaligned {mis}, bytes {sz}", file=sys.stderr)
    return lst

def main():
    try:
        import gen_attn
    except ImportError:
        gen_attn = None
    P0 = Prog(); common_prologue(P0)
    f = finish(P0.l + ffn())[:]
    a = finish(P0.l + (gen_attn.attn(globals()) if gen_attn and OPT['attn'] else attn()))
    a = a[[i for i, x in enumerate(a) if x.text.startswith('s_cbranch_scc1 L_attn')][0] + 1:]
    k2 = finish(gen_attn.final(globals()) if gen_attn else final())
    out = []
    MK = NAME + "_kernel" if OPT['fuse'] else "main_kernel"
    if OPT['fuse']: out.append(f"; @launch grid=(256,1,1) block=(256,1,1) lds={LDS_BYTES}")
    else:
        out.append(f"; @launch kernel=main_kernel grid=(256,1,1) block=(256,1,1) lds={LDS_BYTES}")
        out.append(f"; @launch kernel=final_kernel grid=(576,1,1) block=(256,1,1) lds=0")
    out.append('.amdgcn_target "amdgcn-amd-amdhsa--gfx950"\n.text')
    out.append(f".globl {MK}\n.p2align 8\n.type {MK},@function\n{MK}:\nL_main_start:")
    out += [x.text for x in f]
    out.append(".p2align 6\nL_attn:")
    out += [x.text for x in a]
    out.append("L_exit:\ns_endpgm\nL_main_end:")
    if not OPT['fuse']:
        out.append(".globl final_kernel\n.p2align 8\n.type final_kernel,@function\nfinal_kernel:")
        out += [x.text for x in k2]
    out.append('.section .rodata,"a"')
    for nm, nv, ao in ((MK, 512, 256), ("final_kernel", 96, 96))[:1 if OPT['fuse'] else 2]:
        out.append(f".p2align 6\n.amdhsa_kernel {nm}\n  .amdhsa_next_free_vgpr {nv}\n  .amdhsa_next_free_sgpr 102\n  .amdhsa_accum_offset {ao}\n  .amdhsa_group_segment_fixed_size 0\n  .amdhsa_kernarg_size 72\n  .amdhsa_user_sgpr_count 2\n  .amdhsa_user_sgpr_kernarg_segment_ptr 1\n  .amdhsa_system_sgpr_workgroup_id_x 1\n  .amdhsa_float_denorm_mode_32 3\n.end_amdhsa_kernel")
    txt = "\n".join(out) + "\n"
    import subprocess, re as _re, tempfile, os
    d = tempfile.mkdtemp()
    open(d + "/a.s", "w").write(txt.replace("CODE_PF_MAX", "0x12345"))
    r = subprocess.run(["clang", "-x", "assembler", "-target", "amdgcn-amd-amdhsa", "-mcpu=gfx950", "-c", d + "/a.s", "-o", d + "/a.o"], capture_output=True, text=True)
    assert r.returncode == 0, r.stderr
    sy = subprocess.run(["llvm-readelf", "-s", d + "/a.o"], capture_output=True, text=True).stdout
    def sym(n): return int([l for l in sy.splitlines() if l.strip().endswith(" " + n)][0].split()[1], 16)
    size = sym("L_main_end") - sym("L_main_start")
    print(f"; main code bytes {size}, attn at {sym('L_attn')}", file=sys.stderr)
    print(txt.replace("CODE_PF_MAX", str(size - 1024)))

if __name__ == "__main__":
    main()
```

```python
import sys
from asmlib import *

def attn(G):
    globals().update({k: v for k, v in G.items() if not k.startswith('__') and k not in ('attn', 'final')})
    P = Prog()
    ARING = 18432; ANS = 6; EX = ARING * ANS
    ACC = 40; XR = 112; AF = 192
    KO, KP, VV = 0, 36, 72
    vDQ = [16, 17, 18, 19, 20]; vDW = [21, 22, 23, 24, 25]
    vRX = [26, 27]; vRR = [28, 29]
    vEW, vEP, vST, vFL = 30, 31, 32, 33
    vFLW = 39
    sG = sSL
    TQ = 58
    TW = 67
    TS = 40
    sLB = 's3'
    sHS = 's[8:11]'
    sFS = 's[4:7]'
    HOFF = 's100'
    P(f"s_and_b32 {sG}, s39, 3")
    P(f"s_mov_b32 s16, s6\ns_mov_b32 s17, s7\ns_mov_b32 s18, {576*1728*2}\ns_mov_b32 s19, 0x20000")
    P(f"s_mov_b32 s20, s8\ns_mov_b32 s21, s9\ns_mov_b32 s22, {576*576*2}\ns_mov_b32 s23, 0x20000")
    P(f"s_cmp_eq_u32 {sWV}, 3\ns_cselect_b32 s10, {WS_BYTES}, 0\ns_cselect_b32 s6, 256, 0")
    P(f"s_mov_b32 s8, s46\ns_mov_b32 s9, s47\ns_mov_b32 s11, 0x20000")
    P(f"s_mov_b32 s4, s44\ns_mov_b32 s5, s45\ns_mov_b32 s7, 0x20000")
    if OPT['fuse']:
        P(f"s_add_u32 s96, {sG}, 12")
        flag_setup(P, vFLW, 's96', 'v33', True)
        hsk = handshake('s96', 'v1', 'v38')
        P.add(hsk[:-1])
    P(f"s_mul_i32 s49, {sWV}, 9\ns_lshr_b32 s49, s49, 1\ns_lshl_b32 {sLB}, s49, 10")
    P(f"s_mul_i32 s51, {sG}, 288")
    for st in range(9):
        P(f"s_mul_i32 s{TQ+st}, s50, {64*3456}\ns_add_u32 s{TQ+st}, s{TQ+st}, s51")
        if st < 8: P(f"s_add_u32 s50, s50, 1\ns_cmp_eq_u32 s50, 9\ns_cselect_b32 s50, 0, s50")
    P(f"s_mov_b32 s96, {-(-(1<<32)//18)}\ns_lshl_b32 s97, s49, 6\ns_mov_b32 s98, 3456")
    for n in range(5):
        imm = 1024 * n if n < 4 else 0
        P(f"v_add_u32 v2, s97, v0")
        if n < 4: P(f"s_add_u32 s97, s97, 64")
        P(f"v_mul_hi_u32 v3, v2, s96\nv_mul_u32_u24 v4, 18, v3\nv_sub_u32 v2, v2, v4\nv_lshlrev_b32 v2, 4, v2")
        P(f"v_and_b32 v4, 35, v3\nv_bfe_u32 v5, v3, 2, 2\nv_lshl_add_u32 v4, v5, 3, v4\nv_bfe_u32 v5, v3, 4, 1\nv_lshl_add_u32 v4, v5, 2, v4")
        P(f"v_mad_u32_u24 v{vDQ[n]}, v4, s98, v2")
        if imm: P(f"v_subrev_u32 v{vDQ[n]}, {imm}, v{vDQ[n]}")
    D = Prog()
    D(f"v_lshlrev_b32 v{vST}, 4, v0\ns_mul_i32 s96, {sWV}, 9216\ns_add_u32 s96, s96, {EX}\nv_add_u32 v{vEW}, s96, v{vST}")
    D(f"s_max_u32 s97, {sWV}, 1\ns_sub_u32 s97, s97, 1\ns_mul_i32 s97, s97, 9216\ns_add_u32 s97, s97, {EX}\nv_add_u32 v{vEP}, s97, v{vST}")
    D(f"s_lshl_b32 s96, {sM}, 2\ns_add_u32 s96, s96, {sG}\ns_mul_i32 {HOFF}, s96, {18*1024}\ns_add_u32 {HOFF}, {HOFF}, {WS_HALO}")
    D(f"s_lshl_b32 s96, s96, 2\nv_lshlrev_b32 v{vFL}, 8, v0\nv_add_u32 v{vFL}, s96, v{vFL}\nv_mov_b32 v38, 0x100")
    D(f"s_max_u32 s96, s96, 16\ns_sub_u32 s96, s96, 16\nv_mov_b32 v1, s96")
    OO = TW + 4
    D(f"s_lshl_b32 s53, {sM}, 2")
    for d in range(4):
        D(f"s_xor_b32 s52, {sG}, {d}\ns_mul_i32 s{TW+d}, s52, {144*1152}\ns_add_u32 s{TW+d}, s{TW+d}, s51")
        D(f"s_add_u32 s52, s52, s53\ns_lshl_b32 s52, s52, 2\ns_add_u32 s52, s52, {sWV}\ns_mul_i32 s{OO+d}, s52, 9216\ns_add_u32 s{OO+d}, s{OO+d}, {WS_O}")
    D(f"s_add_u32 s40, s53, {sWV}\ns_mul_i32 s40, s40, 72\ns_mul_i32 s52, {sG}, 9\ns_add_u32 s40, s40, s52\ns_lshl_b32 s40, s40, 9\ns_add_u32 s40, s40, {WS_S}")
    def wvoff(Q, dst, last):
        Q(f"s_mov_b32 s96, {-(-(1<<32)//18)}\ns_lshl_b32 s97, s49, 6\ns_mov_b32 s98, 1152")
        for n in range(5):
            imm = (1024 * n if n < 4 else 0)
            Q(f"v_add_u32 v34, s97, v0")
            if n < 4: Q(f"s_add_u32 s97, s97, 64")
            Q(f"v_mul_hi_u32 v35, v34, s96\nv_mul_u32_u24 v36, 18, v35\nv_sub_u32 v34, v34, v36\nv_lshlrev_b32 v34, 4, v34\nv_lshrrev_b32 v36, 4, v35")
            if not last: Q(f"v_add_u32 v36, 1, v36\nv_and_b32 v36, 6, v36\nv_lshl_add_u32 v35, v36, 1, v35")
            else: Q(f"v_xor_b32 v36, {sG}, v36\nv_mul_u32_u24 v36, 144, v36\nv_bfe_u32 v37, v35, 2, 2\nv_mad_u32_u24 v36, v37, 36, v36\nv_and_b32 v35, 3, v35\nv_add3_u32 v35, v35, v36, 16")
            Q(f"v_mad_u32_u24 v{dst[n]}, v35, s98, v34")
            if imm: Q(f"v_subrev_u32 v{dst[n]}, {imm}, v{dst[n]}")
    wvoff(D, vDW, False)
    if OPT['pfwo']:
        D(f"s_add_u32 s96, s53, {sG}\ns_mul_i32 s96, s96, 81\ns_mul_i32 s97, {sWV}, 20\ns_add_u32 s96, s96, s97\ns_lshl_b32 s96, s96, 7\nv_min_u32 v34, 20, v0\nv_lshlrev_b32 v34, 7, v34")
        D(f"buffer_load_dword v37, v34, {sWB}, s96 offen", tag='dummy', cost=8)
    PCOL = [1152, 2304, 0]
    def slotof(s): return s % ANS if s <= 30 else {31: 6, 32: 7, 33: 1, 34: 2, 35: 3}[s]
    def dma(s):
        slot = slotof(s) * ARING
        if s < 18: srd, vD, pre, so = sWA, vDQ, f"\ns_add_u32 s99, s{TQ + s % 9}, {PCOL[s // 9]}", 's99'
        elif s < 27: srd, vD, pre, so = sWA, vDQ, "", f"s{TQ + s % 9}"
        elif s < 35 and (s - 27) % 2 == 0: srd, vD, pre, so = sWB, vDW, "", f"s{TW + (s - 27) // 2}"
        elif s < 35: srd, vD, pre, so = sWB, vDW, f"\ns_add_u32 s101, s{TW + (s - 27) // 2}, {72*1152}", 's101'
        else: srd, vD, pre, so = sWB, vDQ, "", 's41'
        t = f"d{s}"
        L = mk(f"s_add_u32 m0, {sLB}, {slot}{pre}")
        for n in range(4): L += mk(f"buffer_load_dwordx4 v{vD[n]}, {srd}, {so} offen offset:{1024*n} lds", tag=t, cost=8)
        L += mk(f"s_add_u32 m0, {sLB}, {slot+4096}")
        L += mk(f"buffer_load_dwordx4 v{vD[4]}, {srd}, {so} offen lds", tag=t, cost=8)
        return L
    P(f"v_lshrrev_b32 v2, 2, v0\nv_mul_u32_u24 v2, 288, v2\nv_and_b32 v3, 3, v0\nv_lshl_add_u32 v{vRX[0]}, v3, 3, v2")
    P(f"v_mul_u32_u24 v4, 72, v3\nv_add3_u32 v{vRR[0]}, v2, v4, 32\nv_add_u32 v{vRX[1]}, {3*ARING}, v{vRX[0]}\nv_add_u32 v{vRR[1]}, {3*ARING}, v{vRR[0]}")
    P(f"v_and_b32 v2, 15, v0\nv_lshlrev_b32 v2, 7, v2\nv_add_u32 v2, s54, v2\nv_bfe_u32 v3, v0, 1, 3\nv_lshrrev_b32 v4, 4, v0\nv_xor_b32 v3, v3, v4")
    P(f"v_lshl_add_u32 v34, v3, 4, v2\nv_xor_b32 v35, 64, v34\nv_add_u32 v36, 98304, v34\nv_add_u32 v37, 98304, v35")
    SEL = 40
    sel32(P, SEL)
    for r in range(8, 16): P(f"v_mov_b32 v{r}, 0")
    P("s_mov_b32 s57, 0x3f803f80")
    setup = P.l; P.l = []
    fr = [[(XR + 8 * (2 * S + f // 2) + 4 * (f % 2), (34 if S < 6 else 36) + (f // 2), ((S // 3) % 2) * 49152 + (S % 3) * 4096 + (f % 2) * 2048, f % 2) for f in range(4)] for S in range(9)]
    xphase(P, setup, fr, [[8, 9], [10, 11]], [[12, 13], [14, 15]], {5: dma(0), 7: dma(1)})
    DB = [48, 64, 80]
    def um(F): return mk(f"v_mfma_f32_32x32x16_bf16 {vr(DB[F%3],16)}, {vr(SEL,4)}, {vr(XR+4*F,4)}, 0")
    def nv(F):
        d = DB[F % 3]; x = XR + 4 * F
        return mk("\n".join(f"v_fma_f32 v{d+j}, v{d+j}, v{2+F%2}, v{4+F%2}" for j in range(8)) + "\n" + "\n".join(f"v_cvt_pk_bf16_f32 v{x+j}, v{d+2*j}, v{d+2*j+1}" for j in range(4)))
    for a in (8, 10, 12, 14): P(f"v_add_f32 v{a}, v{a}, v{a+1}")
    P.add(um(0)); P.add(um(1))
    for sw in ('32', '16'):
        for a in (8, 10, 12, 14): P(f"v_mov_b32 v{a+1}, v{a}")
        for a in (8, 10, 12, 14): P(f"v_permlane{sw}_swap_b32 v{a}, v{a+1}")
        for a in (8, 10, 12, 14): P(f"v_add_f32 v{a}, v{a}, v{a+1}")
    A1 = Prog(); ln_stats(A1, 'v8', 'v12', 'v4', 'v2', None)
    A2 = Prog(); ln_stats(A2, 'v10', 'v14', 'v5', 'v3', None)
    for a, b in zip(A1.l, A2.l): P.add([a, b])
    P("v_mul_f32 v4, v4, v2\nv_mul_f32 v5, v5, v3")
    LN = []
    for F in range(36):
        if F + 2 < 36: LN += um(F + 2)
        LN += nv(F)
    P.add(weave(LN, dgroups(dma(2) + dma(3)), 13))
    uses = []
    for ps in range(3):
        for ks in range(18):
            s = 9 * ps + ks // 2; slot = s % ANS
            for j in range(9):
                n = len(uses); af = AF + 4 * (n % 16)
                off = (slot % 3) * ARING + (ks & 1) * 9216 + (36 * j + 4 * (j & 1) if j < 8 else 0)
                va = (vRX if j < 8 else vRR)[slot // 3]
                rd = mk(f"ds_read_b64_tr_b16 {ar(af,2)}, v{va} offset:{off}\nds_read_b64_tr_b16 {ar(af+2,2)}, v{va} offset:{off+4608}", tag=f"r{n}")
                mf = []
                for Pp in range(2):
                    acc = vr(ACC + 8 * j + 4 * Pp, 4); x = vr(XR + 8 * ks + 4 * Pp, 4)
                    a, b = (ar(af, 4), x) if ps != 1 else (x, ar(af, 4))
                    mf += mk(f"v_mfma_f32_16x16x32_bf16 {acc}, {a}, {b}, {'0' if ks == 0 else acc}")
                uses.append((s, rd, mf))
    NQ = len(uses); PD = 5
    extra_lw = {10: 'ew0', 19: 'ew1'}
    def barrier(s):
        if s in extra_lw: return mk(f"WAITVL d{s}, {extra_lw[s]}\ns_barrier")
        return mk(f"WAITV d{s}\ns_barrier")
    tailLN = P.l[-36:]; P.l = P.l[:-36]
    if OPT['fuse']: P("WAITV fz")
    P.add(barrier(0))
    if OPT['fuse']: P.add(hsk[-1:])
    for n in range(PD): P.add(uses[n][1])
    P.add(tailLN)
    P("WAITL r2")
    stamp(P, 3)
    SC = Sched(); gi = {}; gbar = {0: -1}
    for n in range(NQ):
        mf = uses[n][2]
        g0 = SC.gap([mf[0]], 16); g1 = SC.gap([mf[1]], 16); gi[n] = g0
        if n + PD < NQ:
            if uses[n + PD][0] != uses[n + PD - 1][0]:
                SC.mand[g0] += barrier(uses[n + PD][0]); gbar[uses[n + PD][0]] = g0
                SC.mand[g1] += uses[n + PD][1]
            else: SC.mand[g0] += uses[n + PD][1]
        if n % 3 == 2 and n + 1 < NQ: SC.tail[g1] += mk(f"WAITL r{n+3}")
    gi[NQ] = len(SC.head); gbar[27] = len(SC.head)
    stg = [4, 8, 12]
    for ps in range(2):
        for j in range(9):
            nlast = 162 * ps + 153 + j
            d = stg[j % 3]; a = ACC + 8 * j
            L = mk("\n".join(f"v_cvt_pk_bf16_f32 v{d+q}, v{a+2*q}, v{a+2*q+1}" for q in range(4)))
            g = gi[nlast + 5]
            SC.fill[g] += L[:1]; SC.fill[g + 1] += L[1:]
            L = mk(f"ds_write_b128 v{vEW}, {vr(d,4)} offset:{1024*j}", tag=f"ew{ps}", cost=8)
            if ps == 1:
                if j % 4 == 0: L += mk(f"s_add_u32 s101, {HOFF}, {(9*ps+j)*1024}")
                L += mk(f"buffer_store_dwordx4 {vr(d,4)}, v{vST}, {sHS}, s101 offen offset:{1024*(j%4)} sc1", tag=f"hs{ps}", cost=8)
            SC.fill[g + 2] += L
    for s in range(27): SC.place(dma(s + 4), gbar[s] + 1, gbar[s + 1], 'spread', f'dma{s+4}')
    L = []
    for j in range(9): L += mk(f"ds_read_b128 {ar(KO+4*j,4)}, v{vEW} offset:{1024*j}\nds_read_b128 {ar(KP+4*j,4)}, v{vEP} offset:{1024*j}", tag="er0")
    SC.place(L, gbar[10] + 2, gbar[12], 'spread', 'rb0')
    L = []
    for j in range(9):
        if j % 4 == 0: L += mk(f"s_add_u32 s101, {HOFF}, {j*1024}")
        L += mk(f"buffer_store_dwordx4 {ar(KO+4*j,4)}, v{vST}, {sHS}, s101 offen offset:{1024*(j%4)} sc1", tag="hs0", cost=8)
    SC.place(L, gbar[13] + 2, gbar[17], 'spread', 'hs0')
    L = []
    for j in range(9):
        for Pp in range(2):
            L += mk(f"ds_read_b64 {ar(VV+8*j+4*Pp,2)}, v{vEP} offset:{1024*j+8*Pp}\nds_read_b64 {ar(VV+8*j+4*Pp+2,2)}, v{vEW} offset:{1024*j+8*Pp}", tag="er1")
    SC.place(L, gbar[19] + 2, gbar[23], 'spread', 'rb1')
    SC.place(D.l, 2, gi[150], 'asap', 'deferred')
    hsl = f"buffer_load_dword v35, v34, {sDBG}, 0 offen sc1"
    hck = "v_and_b32 v36, 0xff, v35\nv_cmp_le_u32 vcc, 4, v36\ns_and_b32 s96, vcc_lo, 15\ns_cmp_eq_u32 s96, 15"
    SC.place(mk(f"s_mov_b32 s41, s51\ns_lshl_b32 s96, {sM}, 4\nv_and_b32 v34, 3, v0\nv_lshlrev_b32 v34, 2, v34\nv_add_u32 v34, s96, v34") + mk(hsl, tag='hc', cost=8), gbar[10] + 2, gbar[11], 'asap', 'hc')
    L = mk("WAITV hc") + mk(hck)
    pos = SC.place(L[:-2], gbar[15] + 2, gbar[15] + 20, 'asap', 'hck')
    SC.fill[pos[-1] + 1] += L[-2:] + mk("s_cbranch_scc0 L_aslowH\nL_abackH:")
    slow = mk(f"L_aslowH:\ns_mov_b32 s97, 0\nL_aspinH:\n{hsl}\ns_waitcnt vmcnt(0)\n{hck}\ns_cbranch_scc1 L_abackH\ns_sleep 1\ns_add_u32 s97, s97, 1\ns_cmp_lt_u32 s97, 0x80000\ns_cbranch_scc1 L_aspinH\ns_branch L_abackH", cond=True)
    pos = SC.place(mk("v_lshrrev_b32 v35, 24, v35\nv_readfirstlane_b32 s96, v35\nv_cmp_ne_u32 vcc, s96, v35"), pos[-1] + 2, gbar[16], 'spread', 'mode')
    SC.fill[pos[-1] + 3] += mk(("s_or_b32 vcc_lo, vcc_lo, 1\n" if OPT['forcefb'] else "") + "s_cmp_eq_u32 vcc_lo, 0\ns_cselect_b32 s42, 1, 0")
    L = mk("v_min_u32 v34, 35, v0\nv_lshlrev_b32 v34, 7, v34")
    L += mk(f"buffer_load_dword v37, v34, {sWS}, s{OO} offen sc1", tag='dummy', cost=8) + mk(f"s_add_u32 s96, s{OO}, {36*128}") + mk(f"buffer_load_dword v37, v34, {sWS}, s96 offen sc1\nbuffer_load_dword v37, v{vFLW}, {sWS}, s37 offen sc1", tag='dummy', cost=8)
    SC.place(L, gbar[16] + 4, gbar[17], 'spread', 'pfo')
    SC.place(mk("WAITV hs1") + mk(f"buffer_atomic_add v38, v{vFL}, {sFS}, 0 offen sc1", tag='fl', cost=8), gbar[21] + 2, gbar[22], 'asap', 'flag')
    CO, CP, MO, MP = 4, 8, 12, 14
    sGRP = ["s[50:51]", "s[52:53]", "s[54:55]", "s[56:57]"]
    Mk = Prog()
    Mk(f"s_or_b32 s98, {sM}, {sWV}\ns_min_u32 s98, s98, 1\ns_mul_i32 s98, s98, -90\ns_add_u32 s98, s98, 99")
    Mk("v_and_b32 v34, 15, v0\nv_lshrrev_b32 v35, 4, v0")
    for g in range(4): Mk(f"v_cmp_eq_u32 {sGRP[g]}, {g}, v35")
    Mk("v_lshlrev_b32 v35, 2, v35\nv_sub_u32 v35, v35, v34\nv_add_u32 v35, 7, v35")
    Mk(f"v_mov_b32 v36, 0xff7f0000\nv_mov_b32 v2, 0xffff\nv_mov_b32 v3, 0xffff0000\ns_add_u32 s98, s98, 7")
    for r in range(4):
        Mk(f"v_add_u32 v34, {r}, v35")
        Mk(f"v_cmp_gt_u32 vcc, 8, v34")
        Mk(f"v_cmp_le_i32 s[96:97], s98, v34")
        Mk(f"v_cndmask_b32 v{CO+r}, v36, 0, vcc".replace("v36, 0, vcc", "v36, 0, vcc"))
        Mk(f"v_cndmask_b32 v37, 0, v{2+r%2}, vcc")
        Mk(f"v_mov_b32 v{MO+r//2}, v37" if r % 2 == 0 else f"v_or_b32 v{MO+r//2}, v{MO+r//2}, v37")
        Mk(f"v_cndmask_b32 v{CP+r}, v36, 0, s[96:97]")
        Mk(f"v_cndmask_b32 v37, 0, v{2+r%2}, s[96:97]")
        Mk(f"v_mov_b32 v{MP+r//2}, v37" if r % 2 == 0 else f"v_or_b32 v{MP+r//2}, v{MP+r//2}, v37")
    Mk(f"s_mov_b32 s99, {hx(18 ** -0.5 * LOG2E)}\nv_mov_b32 v2, 0x3f803f80\nv_mov_b32 v3, 0x3f803f80")
    SC.place(Mk.l, gbar[20] + 2, gbar[25], 'asap', 'masks')
    hload = f"buffer_load_dword v37, v1, {sDBG}, 0 offen sc1"
    SC.place(mk(hload, tag='hp', cost=8), gbar[25] + 2, gbar[25] + 12, 'asap', 'hp')
    H = mk("WAITV hp") + mk(f"s_cmp_lg_u32 {sWV}, 0\ns_cbranch_scc1 L_nohalo")
    H += mk(f"s_cmp_eq_u32 {sM}, 0\ns_cbranch_scc1 L_nohalo\nv_readfirstlane_b32 s97, v37\ns_mov_b32 s96, 0\ns_bitcmp0_b32 s97, 8\ns_cbranch_scc1 L_hslow", cond=True)
    H += mk("L_hback:")
    H += mk(f"s_sub_u32 s97, {HOFF}, {4*18*1024}", cond=True)
    for j in range(9):
        if j % 4 == 0 and j: H += mk(f"s_add_u32 s97, s97, 4096", cond=True)
        H += mk(f"buffer_load_dwordx4 {ar(KP+4*j,4)}, v{vST}, {sWS}, s97 offen offset:{1024*(j%4)} sc1", cond=True, tag='hk')
    for j in range(9):
        jj = j + 9
        if jj % 4 == 0: H += mk(f"s_add_u32 s97, s97, 4096", cond=True)
        for Pp in range(2): H += mk(f"buffer_load_dwordx2 {ar(VV+8*j+4*Pp,2)}, v{vST}, {sWS}, s97 offen offset:{1024*(jj%4)+8*Pp} sc1", cond=True, tag='hv')
    H += mk("L_nohalo:")
    SC.mand[gbar[26]] += H
    slow += mk(f"L_hslow:\n{hload}\ns_waitcnt vmcnt(0)\nv_readfirstlane_b32 s97, v37\ns_add_u32 s96, s96, 1\ns_bitcmp1_b32 s97, 8\ns_cbranch_scc1 L_hback\ns_sleep 1\ns_cmp_lt_u32 s96, 0x80000\ns_cbranch_scc1 L_hslow\ns_branch L_hback", cond=True)
    QX = XR
    qtail = []
    for j in range(9):
        L = mk("\n".join(f"v_cvt_pk_bf16_f32 v{QX+4*j+q}, v{ACC+8*j+2*q}, v{ACC+8*j+2*q+1}" for q in range(4)))
        n = 324 + 153 + j + 4
        if n < NQ: SC.fill[gi[n]] += L[:2]; SC.fill[gi[n] + 1] += L[2:]
        else: qtail += L
    print("; attn qkv overflow %d" % SC.overflow(), file=sys.stderr)
    P.add(SC.emit(0, gi[162])); stamp(P, 4)
    P.add(SC.emit(gi[162], gi[324])); stamp(P, 5)
    P.add(SC.emit(gi[324]))
    SB = 148; QRM = 104; W = 40; POP = 72; SM = 88; OP = 212
    P.add(qtail)
    for Pp in range(2): P(f"v_mov_b32 v{QRM+4*Pp+1}, 0\nv_mov_b32 v{QRM+4*Pp+2}, 0")
    P("s_barrier")
    stamp(P, 6)
    def sbuf(e, hh, Pp): return SB + 32 * (e % 2) + 16 * hh + 8 * Pp
    def Sm(e):
        L = []
        for hh in range(2):
            for Pp in range(2): L += mk(f"v_cndmask_b32 v{QRM+4*Pp+3*hh}, 0, v{QX+32+2*Pp+hh}, {sGRP[e]}")
        for k, KB in enumerate((KO, KP)):
            if e == 0 and k == 1: L += mk("s_waitcnt vmcnt(23)", cond=True)
            for part in range(2):
                for hh in range(2):
                    h = 2 * e + hh
                    for Pp in range(2):
                        d = vr(sbuf(e, hh, Pp) + 4 * k, 4)
                        if part == 0: L += mk(f"v_mfma_f32_16x16x16_bf16 {d}, {ar(KB+4*h+2*Pp,2)}, {vr(QX+4*h+2*Pp,2)}, {vr((CO,CP)[k],4)}")
                        else: L += mk(f"v_mfma_f32_16x16x16_bf16 {d}, {ar(KB+32+2*Pp,2)}, {vr(QRM+4*Pp+2*hh,2)}, {d}")
        return L
    def head(e, hh):
        L = []
        w = W + 16 * hh
        T = [[w + 8 * Pp + r for r in range(4)] for Pp in range(2)]
        K = [[w + 8 * Pp + 4, w + 8 * Pp + 5] for Pp in range(2)]
        M = [w + 6, w + 14]
        def both(f):
            a, b = mk(f(0)), mk(f(1))
            for x, y in zip(a, b): L.append(x); L.append(y)
        both(lambda p: "\n".join(f"v_max_f32 v{T[p][r]}, v{sbuf(e,hh,p)+4+r}, v{sbuf(e,hh,p)+r}" for r in range(4)))
        both(lambda p: f"v_max3_f32 v{M[p]}, v{T[p][0]}, v{T[p][1]}, v{T[p][2]}\nv_max_f32 v{M[p]}, v{M[p]}, v{T[p][3]}")
        L += mk(f"v_permlane32_swap_b32 v{M[0]}, v{M[1]}\nv_max_f32 v{M[0]}, v{M[0]}, v{M[1]}\nv_mov_b32 v{M[1]}, v{M[0]}\nv_permlane16_swap_b32 v{M[0]}, v{M[1]}\nv_max_f32 v{M[0]}, v{M[0]}, v{M[1]}")
        L += mk(f"v_mul_f32 v{M[0]}, s99, v{M[0]}\nv_mov_b32 v{M[1]}, v{M[0]}\nv_permlane32_swap_b32 v{M[0]}, v{M[1]}")
        both(lambda p: "\n".join(f"v_fma_f32 v{T[p][r]}, v{T[p][r]}, s99, -v{M[p]}" for r in range(4)))
        both(lambda p: "\n".join(f"v_exp_f32 v{T[p][r]}, v{T[p][r]}" for r in range(4)))
        both(lambda p: f"v_cvt_pk_bf16_f32 v{K[p][0]}, v{T[p][0]}, v{T[p][1]}\nv_cvt_pk_bf16_f32 v{K[p][1]}, v{T[p][2]}, v{T[p][3]}")
        po = lambda p: POP + 8 * hh + 4 * p
        both(lambda p: f"v_and_b32 v{po(p)}, v{MP}, v{K[p][0]}\nv_and_b32 v{po(p)+1}, v{MP+1}, v{K[p][1]}\nv_and_b32 v{po(p)+2}, v{MO}, v{K[p][0]}\nv_and_b32 v{po(p)+3}, v{MO+1}, v{K[p][1]}")
        return L
    def PVm(e):
        L = []
        if e == 0: L += mk("s_waitcnt vmcnt(5)")
        for hh in range(2):
            for Pp in range(2):
                L += mk(f"v_mfma_f32_16x16x16_bf16 {vr(SM+8*hh+4*Pp,4)}, v[2:3], {vr(W+16*hh+8*Pp+4,2)}, 0")
        for hh in range(2):
            h = 2 * e + hh
            for Pp in range(2):
                for k, tile in enumerate((h, 8)):
                    L += mk(f"v_mfma_f32_16x16x32_bf16 {vr(sbuf(e,hh,Pp)+4*k,4)}, {ar(VV+8*tile+4*Pp,4)}, {vr(POP+8*hh+4*Pp,4)}, 0")
        return L
    def Oc(e):
        L = []
        U = [(hh, Pp) for hh in range(2) for Pp in range(2)]
        for hh, Pp in U: L += mk(f"v_rcp_f32 v{SM+8*hh+4*Pp}, v{SM+8*hh+4*Pp}")
        for hh, Pp in U:
            d = sbuf(e, hh, Pp); rr = SM + 8 * hh + 4 * Pp
            for q in (0, 1, 2, 3, 4 + 2 * hh, 5 + 2 * hh): L += mk(f"v_mul_f32 v{d+q}, v{rr}, v{d+q}")
        for hh, Pp in U:
            d = sbuf(e, hh, Pp); o = OP + 20 * Pp + 4 * e + 2 * hh
            L += mk(f"v_cvt_pk_bf16_f32 v{o}, v{d}, v{d+1}\nv_cvt_pk_bf16_f32 v{o+1}, v{d+2}, v{d+3}")
            if e == 0: L += mk(f"v_cvt_pk_bf16_f32 v{OP+20*Pp+16+hh}, v{d+4+2*hh}, v{d+5+2*hh}")
            else: L += mk(f"v_cvt_pk_bf16_f32 v{d+4}, v{d+4+2*hh}, v{d+5+2*hh}")
        if e:
            for hh, Pp in U:
                d = sbuf(e, hh, Pp); o = OP + 20 * Pp + 16 + hh
                L += mk(f"v_cndmask_b32 v{o}, v{o}, v{d+4}, {sGRP[e]}")
        return L
    WA = Prog(); wvoff(WA, vDQ, True)
    WA(f"s_lshl_b32 s96, {sM}, 2\ns_add_u32 s96, s96, {sWV}\ns_lshl_b32 s96, s96, 11\ns_add_u32 s96, s96, {WS_FLAG + HFOFF + 12*128}\nv_and_b32 v1, 3, v0\nv_lshlrev_b32 v1, 7, v1\nv_add_u32 v1, s96, v1\nv_lshlrev_b32 v38, 3, v0\nv_add_u32 v{vRR[0]}, {6*ARING}, v{vRX[0]}")
    s0 = Sm(0)
    P.add(weave(s0, [WA.l[i:i+4] for i in range(0, len(WA.l), 4)], 1))
    for e in range(4):
        a, b = head(e, 0), head(e, 1)
        merged = []
        for x, y in zip(a, b): merged += [x, y]
        if e == 0: P.add(weave(Sm(1)[:12], [], 1)); P.add(weave(merged, [[x] for x in Sm(1)[12:]], 3))
        else:
            pre = Oc(e - 1) + (Sm(e + 1) if e + 1 < 4 else [])
            body = merged[:16] + weave(merged[16:], [[x] for x in pre], 1)
            if e in (1, 2): body = weave(body, dgroups(dma(29 + 2 * e) + dma(30 + 2 * e)), 12)
            P.add(body)
        P.add(PVm(e))
    stamp(P, 7)
    PO = 0
    def bop(step, Pp):
        if step < 4: return vr(OP + 20 * Pp + 4 * step, 4)
        if step < 16: return ar(PO + 32 * (step // 4 - 1) + 16 * Pp + 4 * (step % 4), 4)
        if step == 16: return vr(OP + 20 * Pp + 16, 4)
        return ar(96 + 4 * Pp, 4)
    uses = []
    for ks in range(18):
        s = 27 + ks // 2; slot = slotof(s)
        for j in range(9):
            n = len(uses); af = AF + 4 * (n % 16)
            off = (slot % 3) * ARING + (ks & 1) * 9216 + 32 * j
            va = (vRX + vRR)[slot // 3]
            rd = mk(f"ds_read_b64_tr_b16 {ar(af,2)}, v{va} offset:{off}\nds_read_b64_tr_b16 {ar(af+2,2)}, v{va} offset:{off+4608}", tag=f"w{n}")
            mf = []
            for Pp in range(2):
                acc = vr(ACC + 8 * j + 4 * Pp, 4)
                mf += mk(f"v_mfma_f32_16x16x32_bf16 {acc}, {ar(af,4)}, {bop(ks, Pp)}, {'0' if ks == 0 else acc}")
            uses.append((s, rd, mf))
    NW = len(uses)
    def ostore(e): return mk("\n".join(f"buffer_store_dwordx4 {vr(OP+20*Pp+4*e,4)}, v{vST}, {sWS}, s{43+Pp} offen offset:{1024*e}" for Pp in range(2)), tag='os', cost=8)
    P(f"s_mov_b32 s43, s{OO}\ns_add_u32 s44, s{OO}, 4096\ns_add_u32 s45, s{OO}, 8192")
    for e in range(3): P.add(ostore(e))
    P("WAITV d34\ns_barrier")
    for n in range(PD): P.add(uses[n][1])
    P.add(Oc(3))
    P.add(ostore(3))
    P(f"buffer_store_dwordx2 {vr(OP+16,2)}, v38, {sWS}, s45 offen\nbuffer_store_dwordx2 {vr(OP+36,2)}, v38, {sWS}, s45 offen offset:512", tag='os')
    P("v_mov_b32 v2, 1\nWAITL w2")
    SC = Sched(); gi = {}; gbar = {27: -1}
    for n in range(NW):
        mf = uses[n][2]
        g0 = SC.gap([mf[0]], 16); g1 = SC.gap([mf[1]], 16); gi[n] = g0
        if n + PD < NW:
            if uses[n + PD][0] != uses[n + PD - 1][0] and uses[n + PD][0] in (30, 35):
                SC.mand[g0] += barrier(35) if uses[n + PD][0] == 35 else mk("s_barrier"); gbar[uses[n + PD][0]] = g0
                SC.mand[g1] += uses[n + PD][1]
            else: SC.mand[g0] += uses[n + PD][1]
        if n % 3 == 2 and n + 1 < NW: SC.tail[g1] += mk(f"WAITL w{n+3}")
        if (n + 1) % 9 == 0 and 4 <= (n + 1) // 9 < 18: SC.tail[g1] += mk(f"WAITV ol{(n+1)//9}")
    gi[NW] = len(SC.head)
    fst = f"buffer_store_dword v2, v{vFLW}, {sWS}, s37 offen"
    g = gi[OPT['ofl']] + 1
    SC.fill[g] += mk("WAITV os") + mk("s_cmp_eq_u32 s42, 0\ns_cbranch_scc1 L_orel") + mk(fst, tag='ofl', cost=8) + mk("L_orelb:")
    slow += mk(f"L_orel:\nbuffer_wbl2 sc1\ns_waitcnt vmcnt(0)\n{fst} sc1\ns_branch L_orelb", cond=True)
    opl = f"buffer_load_dword v3, v1, {sWS}, 0 offen sc1"
    SC.fill[gi[OPT['opl']] + 1] += mk(opl, tag='op', cost=8)
    g = gi[OPT['opl'] + 9] + 1
    SC.fill[g] += mk("WAITV op\nv_cmp_eq_u32 vcc, 0, v3")
    SC.fill[g + 2] += mk("s_cbranch_vccnz L_oslow\nL_oback:")
    slow += mk(f"L_oslow:\ns_mov_b32 s97, 0\nL_ospin:\n{opl}\ns_waitcnt vmcnt(0)\nv_cmp_eq_u32 vcc, 0, v3\ns_add_u32 s97, s97, 1\ns_nop 4\ns_cbranch_vccz L_oback\ns_cmp_lt_u32 s97, 0x80000\ns_cbranch_scc1 L_ospin\ns_branch L_oback", cond=True)
    g += 3
    for d in range(1, 4):
        L = mk(f"s_add_u32 s44, s{OO+d}, 4096")
        for e in range(4):
            for Pp in range(2): L += mk(f"buffer_load_dwordx4 {bop(4*d+e, Pp)}, v{vST}, {sWS}, s{(OO+d) if Pp == 0 else 44} offen offset:{1024*e} sc1", tag=f"ol{4*d+e}", cost=8)
        if d == 1:
            for x in L[:5]: SC.fill[g].append(x)
            g = SC.place(L[5:], g + 1, gi[45], 'asap', f'ol{d}')[-1] + 1
        else: g = SC.place(L, g, gi[36 * d - 8], 'asap', f'ol{d}')[-1] + 1
    L = []
    for d in range(1, 4):
        L += mk(f"s_add_u32 s44, s{OO+d}, 8192")
        for Pp in range(2):
            dst = vr(OP + 20 * Pp + 18, 2) if d == 1 else ar(96 + 4 * Pp + 2 * (d - 2), 2)
            L += mk(f"buffer_load_dwordx2 {dst}, v38, {sWS}, s44 offen offset:{512*Pp} sc1", tag="ol16" if d == 1 else "ol17", cost=8)
    g = SC.place(L, g, gi[130], 'asap', 'olR')[-1]
    SC.place(dma(35), max(g, gbar[30]) + 1, gi[130], 'asap', 'dma35')
    WSTG = 112
    tailE = mk(f"s_add_u32 s41, s40, {36*512}\ns_add_u32 s43, s40, 4096\ns_add_u32 s44, s41, 4096")
    SC.place(tailE, gi[140], gi[150], 'asap', 'sb'); tailE = []
    for j in range(9):
        L = []
        for Pp in range(2):
            a_ = ACC + 8 * j + 4 * Pp; d = WSTG + 4 * j + 2 * Pp
            L += mk(f"v_cvt_pk_bf16_f32 v{d}, v{a_}, v{a_+1}\nv_cvt_pk_bf16_f32 v{d+1}, v{a_+2}, v{a_+3}")
        for Pp in range(2):
            d = WSTG + 4 * j + 2 * Pp
            L += mk(f"buffer_store_dwordx2 {vr(d,2)}, v38, {sWS}, s{(40+Pp) if j < 8 else (43+Pp)} offen offset:{512*(j%8)} sc1", tag='st', cost=8)
        n = 153 + j + 4
        if n < NW: SC.fill[gi[n]] += L[:3]; SC.fill[gi[n] + 1] += L[3:]
        else: tailE += L
    print("; attn wo overflow %d" % SC.overflow(), file=sys.stderr)
    if OPT['marks'] == 4:
        mk_ = [0, gi[30], gi[37], gi[73], gi[135], gi[145], len(SC.head)]
        for i in range(6): stamp(P, 1 + i); P.add(SC.emit(mk_[i], mk_[i + 1]))
    else: P.add(SC.emit())
    P.add(tailE)
    stamp(P, 8)
    if OPT['fuse']: P(f"v_mov_b32 v2, 15\ns_waitcnt vmcnt(0)\nbuffer_store_dword v2, v{vFLW}, {sWS}, 0 offen sc1")
    stamp(P, 9)
    stamp_flush(P, 10)
    P("s_endpgm")
    P.add(slow)
    return P.l

def final(G):
    globals().update({k: v for k, v in G.items() if not k.startswith('__') and k not in ('attn', 'final')})
    P = Prog()
    P("s_cmp_ge_u32 s2, 576\ns_cbranch_scc1 L_fexit")
    if OPT['stamp']: P("s_memrealtime s[40:41]\ns_load_dwordx2 s[44:45], s[0:1], 56")
    P("s_load_dwordx2 s[4:5], s[0:1], 0\ns_load_dwordx2 s[8:9], s[0:1], 48\ns_load_dwordx2 s[12:13], s[0:1], 64")
    P(f"s_mov_b32 s16, {-(-(1<<32)//36)}\ns_mul_hi_u32 s17, s2, s16\ns_mul_i32 s18, s17, 36\ns_sub_u32 s18, s2, s18")
    P(f"s_cmp_ge_u32 s18, 18\ns_cselect_b32 s19, 1, 0\ns_mul_i32 s20, s19, 18\ns_sub_u32 s20, s18, s20")
    P(f"s_mul_i32 s21, s17, {16*36*4096}\ns_lshl_b32 s22, s18, 12\ns_add_u32 s21, s21, s22")
    P("v_lshlrev_b32 v1, 4, v0")
    P("v_lshrrev_b32 v2, 7, v0\nv_lshlrev_b32 v2, 5, v2\nv_bfe_u32 v3, v0, 6, 1\nv_add_u32 v2, v2, v3\nv_and_b32 v3, 15, v0\nv_lshlrev_b32 v3, 1, v3\nv_add_u32 v2, v2, v3")
    P("s_lshl_b32 s22, s17, 7\ns_lshl_b32 s23, s19, 6\ns_add_u32 s22, s22, s23\nv_add_u32 v2, s22, v2\nv_mul_u32_u24 v2, 1152, v2")
    P("v_bfe_u32 v3, v0, 4, 2\nv_lshlrev_b32 v3, 3, v3\nv_add_u32 v2, v2, v3\ns_lshl_b32 s23, s20, 6")
    P("s_waitcnt lgkmcnt(0)")
    P(f"s_mov_b32 s6, {2048*576*2}\ns_mov_b32 s7, 0x20000\ns_mov_b32 s10, {2048*576*2}\ns_mov_b32 s11, 0x20000\ns_mov_b32 s14, {WS_BYTES}\ns_mov_b32 s15, 0x20000")
    for j in range(16):
        P(f"buffer_load_dwordx4 {vr(32+4*j,4)}, v1, s[12:15], s21 offen", tag=f"p{j}")
        if j < 15: P(f"s_add_u32 s21, s21, {36*4096}")
    P("buffer_load_dwordx2 v[4:5], v2, s[4:7], s23 offen\nbuffer_load_dwordx2 v[6:7], v2, s[4:7], s23 offen offset:32", tag="x")
    P("s_mov_b32 s24, 0x3f80\ns_mov_b32 s25, 0x3f800000\ns_mov_b32 s26, 0xffff0000")
    for i in range(8, 24): P(f"v_mov_b32 v{i}, 0")
    for j in range(16):
        P(f"WAITV p{j}")
        b = 8 if j < 12 else 16
        for d in range(4):
            P(f"v_dot2c_f32_bf16 v{b+2*d}, s24, v{32+4*j+d}\nv_dot2c_f32_bf16 v{b+2*d+1}, s25, v{32+4*j+d}")
    def rnd(b):
        for d in range(4): P(f"v_cvt_pk_bf16_f32 v{24+d}, v{b+2*d}, v{b+2*d+1}")
        for d in range(4): P(f"v_lshlrev_b32 v{b+2*d}, 16, v{24+d}\nv_and_b32 v{b+2*d+1}, s26, v{24+d}")
    for i in range(8): P(f"v_mul_f32 v{8+i}, {hx(LN2)}, v{8+i}")
    rnd(8)
    for i in range(8): P(f"v_mul_f32 v{32+i}, {hx(-LOG2E)}, v{8+i}")
    for i in range(8): P(f"v_exp_f32 v{32+i}, v{32+i}")
    for i in range(8): P(f"v_add_f32 v{32+i}, 1.0, v{32+i}")
    for i in range(8): P(f"v_rcp_f32 v{32+i}, v{32+i}")
    for i in range(8): P(f"v_mul_f32 v{8+i}, v{8+i}, v{32+i}")
    rnd(8); rnd(16)
    for i in range(8): P(f"v_mul_f32 v{8+i}, v{8+i}, v{16+i}")
    rnd(8)
    P("WAITV x")
    for d in range(4): P(f"v_lshlrev_b32 v{16+2*d}, 16, v{4+d}\nv_and_b32 v{17+2*d}, s26, v{4+d}")
    for i in range(8): P(f"v_add_f32 v{8+i}, v{8+i}, v{16+i}")
    for d in range(4): P(f"v_cvt_pk_bf16_f32 v{24+d}, v{8+2*d}, v{9+2*d}")
    P("buffer_store_dwordx2 v[24:25], v2, s[8:11], s23 offen\nbuffer_store_dwordx2 v[26:27], v2, s[8:11], s23 offen offset:32")
    if OPT['stamp'] == 2:
        P("s_cmp_lg_u32 s2, 0\ns_cbranch_scc1 L_fexit")
        P(f"s_mov_b32 s48, {WS_STAMP}\nv_mov_b32 v1, 0\nbuffer_load_dword v4, v1, s[12:15], s48 offen offset:56\ns_waitcnt vmcnt(0)\nv_readfirstlane_b32 s50, v4\ns_nop 4")
        P("L_spin:\ns_memrealtime s[42:43]\ns_waitcnt lgkmcnt(0)\ns_sub_u32 s42, s42, s50\ns_cmp_lt_u32 s42, 10000\ns_cbranch_scc1 L_spin")
    if OPT['stamp'] == 1:
        P("s_waitcnt vmcnt(0)\ns_memrealtime s[42:43]\ns_mov_b32 s46, 256\ns_mov_b32 s47, 0x20000\ns_waitcnt lgkmcnt(0)")
        P("v_lshlrev_b32 v1, 8, v0\nv_mov_b32 v3, s42\nbuffer_atomic_umax v3, v1, s[44:47], 0 offen offset:12")
        P("s_cmp_lg_u32 s2, 0\ns_cbranch_scc1 L_fexit")
        P(f"s_mov_b32 s48, {WS_STAMP}\nbuffer_load_dwordx2 v[4:5], v1, s[12:15], s48 offen offset:56\nv_mov_b32 v6, 0\nv_mov_b32 v7, s40\ns_waitcnt vmcnt(0)\nv_not_b32 v4, v4")
        P("buffer_atomic_umax v4, v6, s[44:47], 0 offen\nbuffer_atomic_umax v5, v6, s[44:47], 0 offen offset:4\nbuffer_store_dword v7, v1, s[44:47], 0 offen offset:8")
        P(f"v_lshlrev_b32 v1, 2, v0\ns_mov_b32 s48, {WS_STAMP + OPT['dbgwg']*256}\nbuffer_load_dword v4, v1, s[12:15], s48 offen\nv_add_u32 v1, 16, v1\ns_mov_b32 s46, 64\ns_waitcnt vmcnt(0)\nbuffer_store_dword v4, v1, s[44:47], 0 offen")
    P("L_fexit:\ns_endpgm")
    return P.l
```

```python
import sys, math
from asmlib import *

OPT = dict(pfwo=1, ofl=12, opl=23, pfh0=216, nb2=2, hsplit=2, dpre=3, pst=0, xlead=3, slp=4, rt=0, pfh=1, pchk=7, fdel=24, a3=6, a4=3, cin=22, sat=15*12+4,  forcefb=0, marks=0, wcost=16, fuse=1, stmod=1, dbgwg=64, nosilu=0, nodma=0, nobar=0, nost=0, pd1=7, pd2=3, stamp=0, ffn=1, attn=1, verbose=0, rot=1, pfw=0, pfcode=1)
for a in sys.argv[1:]:
    k, v = a.split('='); OPT[k] = int(v)

STMOD = ['', ' sc1', ' nt', ' sc0 sc1', ' sc1 nt'][OPT['stmod']]
NAME = "recurrent_scan__sliding_local_dilated__dense_activation_silu__prompt"
LOG2E = 1.4426950408889634
LN2 = 0.6931471805599453
import struct
def f2u(f): return struct.unpack('<I', struct.pack('<f', f))[0]
def hx(f): return "0x%08x" % f2u(f)

WS_P = 0
WS_HALO = 40 << 20
WS_FLAG = 44 << 20
HFOFF = 1 << 18
WS_O = 45 << 20
WS_S = 52 << 20
WS_STAMP = 48 << 20
WS_BYTES = 64 << 20
LDS_BYTES = 155648

sX, sWA, sWB, sWS, sDBG = 's[12:15]', 's[16:19]', 's[20:23]', 's[24:27]', 's[28:31]'
sM, sSL, sWV, sROT, sMEM = 's32', 's33', 's34', 's35', 's36'

def vr(a, n): return f"v[{a}:{a+n-1}]" if n > 1 else f"v{a}"
def ar(a, n): return f"a[{a}:{a+n-1}]" if n > 1 else f"a{a}"

stamp_n = [0]
def stamp(P, idx):
    if not OPT['stamp']: return
    if OPT['pst']:
        if idx < 100 and idx != 3: return
        idx = 9 if idx == 3 else idx - 100
    elif idx >= 100: return
    P(f"{'s_memrealtime' if OPT['rt'] else 's_memtime'} s[78:79]\ns_waitcnt lgkmcnt(0)\ns_mov_b32 s{80+idx}, s78")
def stamp_flush(P, n):
    if not OPT['stamp']: return
    P(f"s_memrealtime s[78:79]\ns_waitcnt lgkmcnt(0)\ns_mov_b32 s{80+15}, s78")
    P(f"s_lshl_b32 s76, s2, 2\ns_add_u32 s76, s76, {sWV}\ns_lshl_b32 s76, s76, 6\ns_add_u32 s76, s76, {WS_STAMP}")
    P("v_mov_b32 v1, 0")
    for i in range(4):
        for j in range(4): P(f"v_mov_b32 v{4+j}, s{80+4*i+j}")
        P(f"buffer_store_dwordx4 v[4:7], v1, {sWS}, s76 offen offset:{16*i}")
        P("s_nop 1")

def round_bf16(P, dst, src):
    P(f"v_cvt_pk_bf16_f32 {dst}, {src}, {src}\nv_and_b32 {dst}, 0xffff0000, {dst}")

def ln_stats(P, vsum, vsq, vnegm, vr_, tmp):
    P(f"v_mul_f32 {vsum}, {hx(1/576)}, {vsum}")
    P(f"v_mul_f32 {vsq}, {hx(1/576)}, {vsq}")
    P(f"v_fma_f32 {vsq}, -{vsum}, {vsum}, {vsq}")
    P(f"v_max_f32 {vsq}, 0, {vsq}")
    round_bf16(P, vnegm, vsum)
    P(f"v_xor_b32 {vnegm}, 0x80000000, {vnegm}")
    round_bf16(P, vsq, vsq)
    P(f"v_add_f32 {vsq}, {hx(1e-5)}, {vsq}")
    round_bf16(P, vsq, vsq)
    P(f"v_sqrt_f32 {vsq}, {vsq}")
    round_bf16(P, vsq, vsq)
    P(f"v_rcp_f32 {vr_}, {vsq}")

def sel_consts(P, vsel, t0, t1, t2):
    P(f"v_mov_b32 v{vsel}, 0\nv_mov_b32 v{vsel+1}, 0\nv_mov_b32 v{vsel+4}, 0\nv_mov_b32 v{vsel+5}, 0")
    P(f"v_and_b32 {t0}, 1, v0\nv_lshlrev_b32 {t0}, 4, {t0}\nv_mov_b32 {t1}, 0x3f80\nv_lshlrev_b32 {t0}, {t0}, {t1}")
    P(f"v_bfe_u32 {t1}, v0, 2, 2\nv_lshrrev_b32 {t2}, 4, v0")
    P(f"v_cmp_eq_u32 vcc, {t1}, {t2}\nv_cndmask_b32 {t0}, 0, {t0}, vcc")
    P(f"v_and_b32 {t1}, 2, v0\nv_cmp_eq_u32 vcc, 0, {t1}")
    P(f"v_cndmask_b32 v{vsel+2}, 0, {t0}, vcc\nv_cndmask_b32 v{vsel+3}, {t0}, v{vsel}, vcc")

def common_prologue(P):
    P("s_cmp_ge_u32 s2, 256\ns_cbranch_scc1 L_exit")
    P("s_load_dwordx4 s[4:7], s[0:1], 0\ns_load_dwordx2 s[8:9], s[0:1], 16\ns_load_dwordx4 s[40:43], s[0:1], 32\ns_load_dwordx4 s[44:47], s[0:1], 56")
    P(f"v_lshrrev_b32 v1, 6, v0\nv_lshlrev_b32 v46, 7, v0\nv_readfirstlane_b32 {sWV}, v1\nv_and_b32 v0, 63, v0")
    if OPT['stamp']: P("s_memrealtime s[78:79]\ns_memtime s[76:77]")
    if OPT['pfcode']:
        P("s_getpc_b64 s[48:49]\ns_bfe_u32 s58, s2, 0x20003\ns_lshl_b32 s58, s58, 15\nv_add_u32 v46, s58, v46")
        P("v_min_u32 v46, CODE_PF_MAX, v46\nglobal_load_dword v47, v46, s[48:49]", tag='dummy')
    if OPT['stamp']:
        for i in range(80, 96): P(f's_mov_b32 s{i}, 0')
    P("s_and_b32 s37, s2, 1\ns_lshl_b32 s37, s37, 3")
    P("s_bfe_u32 s38, s2, 0x20001")
    P(f"s_lshr_b32 s39, s2, 3\ns_and_b32 {sMEM}, s39, 7\ns_add_u32 {sM}, s37, {sMEM}")
    P(f"s_lshl_b32 s51, s38, 1\ns_add_u32 s51, s51, s37\ns_lshr_b32 s52, s39, 2\ns_add_u32 s51, s51, s52")
    P(f"s_lshl_b32 s52, s39, 1\ns_and_b32 s52, s52, 6\ns_add_u32 s52, s52, s51\ns_mul_i32 s53, s52, 57\ns_lshr_b32 s53, s53, 9\ns_mul_i32 s53, s53, 9\ns_sub_u32 s52, s52, s53")
    P(f"s_lshr_b32 {sROT}, s39, 3\ns_sub_u32 {sROT}, {sROT}, 1\ns_mul_i32 s50, {sROT}, 3\ns_cmp_lt_u32 s39, 8\ns_cselect_b32 s50, s52, s50\ns_cselect_b32 {sM}, s51, {sM}")
    if not OPT['rot']: P(f"s_mov_b32 s50, 0")
    P(f"s_lshl_b32 s53, {sM}, 7\ns_lshl_b32 s54, {sWV}, 5\ns_add_u32 s53, s53, s54\ns_mul_i32 s53, s53, 1152")
    P(f"v_lshrrev_b32 v2, 3, v0\nv_mul_u32_u24 v2, 2304, v2\nv_lshrrev_b32 v3, 4, v0\nv_and_b32 v44, 7, v0\nv_xor_b32 v3, v3, v44\nv_lshlrev_b32 v3, 4, v3")
    P(f"v_add_u32 v44, v2, v3\nv_add_u32 v44, s53, v44\nv_xor_b32 v45, 64, v44\nv_add_u32 v45, {16*1152-1024}, v45")
    P(f"s_lshl_b32 s55, s50, 7\ns_mul_i32 s54, {sWV}, 12288")
    P("s_waitcnt lgkmcnt(0)")
    if OPT['stamp']: P("s_mov_b32 s94, s78\ns_mov_b32 s80, s76")
    P(f"s_mov_b32 s12, s4\ns_mov_b32 s13, s5\ns_mov_b32 s14, {2048*576*2}\ns_mov_b32 s15, 0x20000")
    stamp(P, 101)
    P.add(xdma(0, 0)); P.add(xdma(0, 1)); P.add(xdma(0, 2))
    stamp(P, 102)
    P(f"s_mov_b32 s24, s46\ns_mov_b32 s25, s47\ns_mov_b32 s26, {WS_BYTES}\ns_mov_b32 s27, 0x20000")
    P(f"s_mov_b32 s28, s44\ns_mov_b32 s29, s45\ns_mov_b32 s30, 256\ns_mov_b32 s31, 0x20000")
    P("s_cmp_lt_u32 s39, 8\ns_cbranch_scc1 L_attn")

def xdma(st, S):
    Q = Prog()
    Q(f"s_add_u32 m0, s54, {st*49152+S*4096}\ns_add_u32 s56, s55, 1152")
    Q(f"buffer_load_dwordx4 v44, {sX}, s55 offen lds\nbuffer_load_dwordx4 v45, {sX}, s55 offen offset:1024 lds", tag=f"x{3*st+S}")
    Q(f"s_add_u32 m0, m0, 2048\ns_add_u32 s55, s55, 128")
    Q(f"buffer_load_dwordx4 v44, {sX}, s56 offen lds\nbuffer_load_dwordx4 v45, {sX}, s56 offen offset:1024 lds", tag=f"x{3*st+S}")
    Q(f"s_cmp_eq_u32 s55, 1152\ns_cselect_b32 s55, 0, s55")
    return Q.l

def weave(main, extra, every):
    out = []; k = 0; cnt = 0
    for idx, ins in enumerate(main):
        out.append(ins); cnt += 1
        nxt = main[idx + 1] if idx + 1 < len(main) else None
        safe = nxt is None or ('scc' not in nxt.rd and 'm0' not in nxt.rd)
        if k < len(extra) and cnt >= every and safe:
            out += extra[k]; k += 1; cnt = 0
    for g in extra[k:]: out += g
    return out

def xphase(P, setup, frags, sums, sqs, dmas, nfirst=3):
    lead = OPT['xlead']
    late = [x for x in setup if x.kind == 'vmem']
    P.add([x for x in setup if x.kind != 'vmem'])
    for S in range(nfirst, lead + 1): P.add(xdma(S // 3, S % 3))
    dmas = dict(dmas); dmas[9] = dmas.get(9, []) + late
    stamp(P, 1); stamp(P, 103)
    def dots(S):
        L = []
        for (d, a, o, k) in frags[S]:
            for j in range(4): L += mk(f"v_dot2c_f32_bf16 v{sums[k][j%2]}, s57, v{d+j}\nv_dot2c_f32_bf16 v{sqs[k][j%2]}, v{d+j}, v{d+j}")
        return L
    for S in range(10):
        if S < 9:
            P(f"WAITV x{S}")
            if S in (0, 2, 5, 8): stamp(P, 104 + (0, 2, 5, 8).index(S))
            for n, (d, a, o, k) in enumerate(frags[S]): P(f"ds_read_b128 {vr(d,4)}, v{a} offset:{o}", tag=f"xr{S}")
        if S == 8: stamp(P, 2)
        if S >= 1:
            P(f"WAITL xr{S-1}")
            if S - 1 in (2, 5): P("s_barrier")
        extra = []
        if S + lead + 1 < 9: extra += dgroups(xdma((S + lead + 1) // 3, (S + lead + 1) % 3))
        if S in dmas: extra += dgroups(dmas[S])
        body = dots(S - 1) if S >= 1 else []
        P.add(weave(body, extra, max(1, len(body) // (len(extra) + 1))))
    stamp(P, 108)

RING = 24576; NSLOT = 5; HX = RING * NSLOT
vA1 = [[16, 17, 18], [19, 20, 21]]; vA2 = [[22, 23, 24], [25, 26, 27]]
vD1 = [28, 29, 30, 31]; vD2 = [32, 33, 34, 35]
vHW, vHR, vST = 36, 37, 38
ACC1 = 48; XR = 112
AF = 192

def flag_setup(P, vFLW, sj, tmpv, hop=False):
    P(f"s_lshl_b32 s66, {sM}, 2\ns_add_u32 s66, s66, {sWV}\ns_lshl_b32 s66, s66, 11\ns_lshl_b32 s67, {sj}, 7\ns_add_u32 s66, s66, s67\ns_add_u32 s66, s66, {WS_FLAG}")
    P(f"v_lshrrev_b32 {tmpv}, 5, v0\nv_lshlrev_b32 {tmpv}, 30, {tmpv}\nv_lshl_add_u32 {tmpv}, v0, 2, {tmpv}\nv_add_u32 v{vFLW}, s66, {tmpv}\nv_mov_b32 {tmpv}, 0")
    P(f"buffer_store_dword {tmpv}, v{vFLW}, {sWS}, 0 offen sc1", tag='fz')
    if hop: P(f"s_mov_b32 s37, {HFOFF}\nbuffer_store_dword {tmpv}, v{vFLW}, {sWS}, s37 offen sc1", tag='fz')
def handshake(sj, va, vb, xcc=False):
    Q = Prog()
    Q(f"s_lshl_b32 s66, {sM}, 2\ns_and_b32 s67, {sj}, 3\ns_add_u32 s66, s66, s67\ns_lshl_b32 s66, s66, 2\ns_lshl_b32 s67, {sWV}, 8\ns_add_u32 s66, s66, s67")
    Q(f"v_lshlrev_b32 {va}, 8, v0\nv_add_u32 {va}, s66, {va}")
    Q(f"s_getreg_b32 s66, hwreg(HW_REG_XCC_ID)\ns_and_b32 s66, s66, 15\ns_and_b32 s67, {sj}, 12\ns_add_u32 s67, s67, 12\ns_lshl_b32 s66, s66, s67\ns_add_u32 s66, s66, 1\nv_mov_b32 {vb}, s66")
    Q(f"buffer_atomic_add {vb}, {va}, {sDBG}, 0 offen sc1", tag='hsk', cost=8)
    return Q.l

def sel32(P, SEL):
    P("v_and_b32 v2, 1, v0\nv_lshlrev_b32 v2, 4, v2\nv_mov_b32 v3, 0x3f80\nv_lshlrev_b32 v2, v2, v3")
    P("v_bfe_u32 v3, v0, 2, 1\nv_lshlrev_b32 v3, 1, v3\nv_lshrrev_b32 v4, 4, v0\nv_cmp_eq_u32 vcc, v3, v4\nv_cndmask_b32 v2, 0, v2, vcc")
    P("v_bfe_u32 v3, v0, 3, 1\nv_lshlrev_b32 v3, 1, v3\nv_bfe_u32 v4, v0, 1, 1\nv_add_u32 v3, v3, v4")
    for j in range(4): P(f"v_cmp_eq_u32 vcc, {j}, v3\nv_cndmask_b32 v{SEL+j}, 0, v2, vcc")

def dgroups(lst):
    G = []; cur = []
    for x in lst:
        cur.append(x)
        if x.kind == 'vmem': G.append(cur); cur = []
    if cur: G[-1] += cur
    return G

def flat(groups): return [x for g in groups for x in g]

def ffn():
    P = Prog()
    P(f"s_mov_b32 s50, {sROT}" if OPT['rot'] else "s_mov_b32 s50, 0")
    P(f"s_add_u32 s51, s50, 1\ns_cmp_ge_u32 s51, 3\ns_cselect_b32 s51, 0, s51\ns_add_u32 s52, s51, 1\ns_cmp_ge_u32 s52, 3\ns_cselect_b32 s52, 0, s52")
    P(f"s_mul_i32 {sSL}, s38, 3\ns_add_u32 {sSL}, {sSL}, {sROT}")
    P(f"s_mov_b32 s16, s40\ns_mov_b32 s17, s41\ns_mov_b32 s18, {576*4608*2}\ns_mov_b32 s19, 0x20000")
    P(f"s_mov_b32 s20, s42\ns_mov_b32 s21, s43\ns_mov_b32 s22, {576*4608*2}\ns_mov_b32 s23, 0x20000")
    P(f"s_mul_i32 s59, {sSL}, 768")
    P(f"s_mul_i32 s63, {sSL}, {384*1152}\ns_mul_i32 s64, {sWV}, 6144")
    if OPT['fuse']: P(f"s_lshl_b32 {sSL}, {sROT}, 2\ns_add_u32 {sSL}, {sSL}, s38")
    P("s_load_dwordx2 s[72:73], s[0:1], 48")
    vFLW = 39
    if OPT['fuse']: flag_setup(P, vFLW, sSL, 'v14', True)
    def pf_w(which):
        Q = Prog()
        if which == 1:
            Q(f"s_mul_i32 s66, {sMEM}, {72*9216}\ns_add_u32 s66, s66, s59\ns_lshl_b32 s67, {sWV}, 6\ns_mov_b32 s68, {-(-(1<<32)//6)}")
            for i in range(2):
                Q(f"v_add_u32 v10, s67, v0")
                if i: Q(f"v_add_u32 v10, 256, v10\nv_min_u32 v10, 431, v10")
                Q(f"v_mul_hi_u32 v11, v10, s68\nv_lshlrev_b32 v10, 7, v10\nv_mul_u32_u24 v11, {9216-768}, v11\nv_add_u32 v10, v10, v11")
                Q(f"buffer_load_dword v47, v10, {sWA}, s66 offen", tag='dummy', cost=8)
        else:
            nb = OPT['nb2']; n = 108 // nb
            Q(f"s_lshl_b32 s71, {sMEM}, 2\ns_add_u32 s71, s71, {sWV}\ns_mul_i32 s71, s71, {108*128}\ns_add_u32 s71, s71, s63")
            Q(f"v_min_u32 v44, {n-1}, v0\nv_lshlrev_b32 v44, 7, v44")
            for i in range(nb):
                Q(f"buffer_load_dword v47, v44, {sWB}, s71 offen", tag='dummy', cost=8)
                if i < nb - 1: Q(f"s_add_u32 s71, s71, {n*128}")
        return Q.l
    P(f"v_lshrrev_b32 v2, 3, v0\nv_and_b32 v3, 7, v0")
    P(f"s_mul_i32 s58, {sWV}, 48\nv_add_u32 v4, s58, v2")
    P(f"v_bfe_u32 v5, v0, 4, 1\nv_lshlrev_b32 v5, 2, v5\nv_xor_b32 v5, v5, v3\nv_lshlrev_b32 v5, 4, v5")
    P(f"v_mul_u32_u24 v6, 9216, v4\nv_add_u32 v{vD1[0]}, v6, v5")
    for i in range(1, 4): P(f"v_add_u32 v{vD1[i]}, {i*(8*9216-1024)}, v{vD1[0]}")
    P(f"v_bfe_u32 v5, v0, 4, 2\nv_lshlrev_b32 v5, 1, v5\nv_xor_b32 v5, v5, v3\nv_lshlrev_b32 v5, 4, v5")
    P(f"v_mul_u32_u24 v6, 1152, v4\nv_add_u32 v{vD2[0]}, v6, v5")
    for i in range(1, 4): P(f"v_add_u32 v{vD2[i]}, {i*(8*1152-1024)}, v{vD2[0]}")
    for st in range(3): P(f"s_mul_i32 s{60+st}, s{50+st}, {192*9216}\ns_add_u32 s{60+st}, s{60+st}, s59")

    PA, PS = 40, 3
    g2 = [(0,0),(1,0),(2,0),(0,1),(1,1),(2,1)] + [(p,k) for p in range(3,9) for k in range(2)]
    def dma(s):
        slot = (s % NSLOT) * RING
        if s < 18:
            p, st = s // 3, s % 3
            srd, vD, base, add, big = sWA, vD1, f"s{60+st}", p * 128, 32 * 9216
        else:
            p, k = g2[s - 18]
            srd, vD, base, add, big = sWB, vD2, f"s{PA+p}", k * 192 * 1152, 32 * 1152
        t = f"d{s}"
        G = mk(f"s_add_u32 m0, s64, {slot}\ns_add_u32 s65, {base}, {add}")
        for i in range(4): G += mk(f"buffer_load_dwordx4 v{vD[i]}, {srd}, s65 offen offset:{1024*i} lds", tag=t, cost=8)
        G += mk(f"s_add_u32 m0, s64, {slot+4096}\ns_add_u32 s65, {base}, {add+big}")
        for i in range(2): G += mk(f"buffer_load_dwordx4 v{vD[i]}, {srd}, s65 offen offset:{1024*i} lds", tag=t, cost=8)
        return G
    P(f"v_lshrrev_b32 v2, 5, v0\nv_lshlrev_b32 v2, 12, v2\nv_bfe_u32 v3, v0, 2, 2\nv_lshlrev_b32 v3, 7, v3\nv_add_u32 v2, v2, v3")
    P(f"v_bfe_u32 v3, v0, 4, 1\nv_lshlrev_b32 v3, 5, v3\nv_add_u32 v2, v2, v3\nv_and_b32 v3, 3, v0\nv_lshlrev_b32 v3, 3, v3\nv_add_u32 v2, v2, v3")
    P(f"v_bfe_u32 v3, v0, 3, 1\nv_lshlrev_b32 v3, 6, v3\nv_add_u32 v{vA1[0][0]}, v2, v3\nv_xor_b32 v{vA1[1][0]}, 64, v{vA1[0][0]}")
    P(f"v_lshrrev_b32 v2, 2, v0\nv_lshlrev_b32 v2, 7, v2\nv_and_b32 v3, 3, v0\nv_lshlrev_b32 v3, 3, v3\nv_add_u32 v2, v2, v3")
    P(f"s_and_b32 s69, {sWV}, 1\ns_lshl_b32 s69, s69, 1\nv_bfe_u32 v3, v0, 3, 2\nv_xor_b32 v3, s69, v3\nv_lshlrev_b32 v3, 5, v3")
    P(f"v_add_u32 v{vA2[0][0]}, v2, v3\nv_xor_b32 v{vA2[1][0]}, 32, v{vA2[0][0]}")
    for vA in (vA1, vA2):
        for u in range(2):
            for b in (1, 2): P(f"v_add_u32 v{vA[u][b]}, {b*2*RING}, v{vA[u][0]}")
    P(f"v_bfe_u32 v2, v0, 4, 1\nv_lshlrev_b32 v2, 10, v2\nv_lshrrev_b32 v3, 5, v0\nv_lshlrev_b32 v3, 8, v3\nv_add_u32 v2, v2, v3")
    P(f"v_and_b32 v3, 15, v0\nv_lshlrev_b32 v3, 4, v3\nv_add_u32 v2, v2, v3\ns_lshl_b32 s69, {sWV}, 11\ns_add_u32 s69, s69, {HX}\nv_add_u32 v{vHW}, s69, v2")
    if OPT['fuse']: P(f"s_and_b32 s69, {sSL}, 3\ns_lshl_b32 s69, s69, 10\nv_xor_b32 v{vHW}, s69, v{vHW}")
    P(f"v_lshlrev_b32 v{vST}, 4, v0\ns_lshr_b32 s69, {sWV}, 1\ns_lshl_b32 s69, s69, 12\ns_add_u32 s69, s69, {HX}\nv_add_u32 v{vHR}, s69, v{vST}")
    P(f"s_lshl_b32 s70, {sM}, 4\ns_add_u32 s70, s70, {sSL}\ns_lshl_b32 s70, s70, 1\ns_lshr_b32 s69, {sWV}, 1\ns_add_u32 s70, s70, s69")
    P(f"s_mul_i32 s70, s70, 18\ns_and_b32 s69, {sWV}, 1\ns_add_u32 s70, s70, s69\ns_lshl_b32 s70, s70, 12")
    P(f"s_lshr_b32 s66, {sSL}, 2\ns_mul_i32 s67, {sM}, 43\ns_lshr_b32 s67, s67, 7")
    P(f"s_mul_i32 s68, s67, 3\ns_sub_u32 s68, {sM}, s68\ns_add_u32 s68, s68, s66\ns_add_u32 s68, s68, 1")
    P(f"s_cmp_ge_u32 s68, 3\ns_cselect_b32 s69, 3, 0\ns_sub_u32 s68, s68, s69")
    P(f"s_cmp_ge_u32 s67, 3\ns_cselect_b32 s69, 3, 0\ns_sub_u32 s67, s67, s69")
    if not OPT['fuse']: P("s_mov_b32 s67, 0\ns_mov_b32 s68, 0")
    for ph in range(3):
        for k in range(3):
            p = 3 * ph + k
            P(f"s_mul_i32 s69, s68, 3\ns_add_u32 s69, s69, s67\ns_lshl_b32 s{PA+p}, s69, 7\ns_add_u32 s{PA+p}, s{PA+p}, s63\ns_lshl_b32 s{PS+p}, s69, 13\ns_add_u32 s{PS+p}, s{PS+p}, s70")
            P("s_add_u32 s67, s67, 1\ns_cmp_eq_u32 s67, 3\ns_cselect_b32 s67, 0, s67")
        if ph < 2: P("s_add_u32 s68, s68, 1\ns_cmp_eq_u32 s68, 3\ns_cselect_b32 s68, 0, s68")
    JS = 147456
    P(f"s_and_b32 s67, {sSL}, 3")
    for d in range(4): P(f"s_xor_b32 s{96+d}, s67, {d}\ns_mul_i32 s{96+d}, s{96+d}, {JS}\ns_add_u32 s{96+d}, s{96+d}, {1024*d}")
    P(f"s_mul_i32 s71, {sSL}, {JS}\ns_lshl_b32 s50, {sM}, 3\ns_add_u32 s50, s50, s67\ns_and_b32 s68, {sWV}, 2\ns_lshl_b32 s68, s68, 1\ns_add_u32 s50, s50, s68\ns_mul_i32 s50, s50, 18\ns_and_b32 s68, {sWV}, 1\ns_add_u32 s50, s50, s68\ns_lshl_b32 s50, s50, 10\ns_add_u32 s50, s50, {WS_S}")
    P(f"s_sub_u32 s68, 3, s66\ns_mul_i32 s101, s68, {4*JS}")
    P(f"s_add_u32 s68, s66, 1\ns_cmp_ge_u32 s68, 3\ns_cselect_b32 s68, 0, s68\ns_lshl_b32 s69, s68, 2\ns_add_u32 s51, s69, s67\ns_sub_u32 s68, s68, s66\ns_mul_i32 s100, s68, {4*JS}")
    P(f"s_mul_i32 s49, s66, {4*JS}\ns_sub_u32 s49, s49, s71\ns_lshl_b32 s68, s66, 2\ns_lshl_b32 s53, 15, s68\ns_lshl_b32 s68, 1, {sSL}\ns_andn2_b32 s53, s53, s68\ns_mov_b32 s52, 0xf000")
    P(f"v_and_b32 v2, 31, v0\nv_lshlrev_b32 v2, 7, v2\nv_add_u32 v2, s54, v2\nv_bfe_u32 v3, v0, 1, 3\nv_lshrrev_b32 v4, 5, v0\nv_lshlrev_b32 v4, 2, v4\nv_xor_b32 v3, v3, v4\nv_lshlrev_b32 v3, 4, v3")
    P(f"v_add_u32 v80, v2, v3\nv_xor_b32 v81, 16, v80\nv_xor_b32 v82, 32, v80\nv_xor_b32 v83, 48, v80")
    for j in range(4): P(f"v_add_u32 v{84+j}, 98304, v{80+j}")
    SEL = 40
    sel32(P, SEL)
    P("v_mov_b32 v8, 0\nv_mov_b32 v9, 0\nv_mov_b32 v12, 0\nv_mov_b32 v13, 0\ns_mov_b32 s57, 0x3f803f80")
    P(f"s_waitcnt lgkmcnt(0)\ns_mov_b32 s74, {2048*576*2}\ns_mov_b32 s75, 0x20000")
    setup = P.l; P.l = []
    fr = [[(XR + 4 * (4 * S + f), (80 if S < 6 else 84) + f, ((S // 3) % 2) * 49152 + (S % 3) * 4096, 0) for f in range(4)] for S in range(9)]
    d0, d1, d2 = dma(0), dma(1), dma(2)
    xphase(P, setup, fr, [[8, 9]], [[12, 13]], {5: d0[:6], 6: d0[6:], 7: d1[:6], 8: d1[6:] + (d2[:6] if OPT['dpre'] == 3 else []), 9: d2[6:] if OPT['dpre'] == 3 else []})
    P("v_add_f32 v8, v8, v9\nv_add_f32 v12, v12, v13\nv_mov_b32 v9, v8\nv_mov_b32 v13, v12\nv_permlane32_swap_b32 v8, v9\nv_permlane32_swap_b32 v12, v13\nv_add_f32 v8, v8, v9\nv_add_f32 v12, v12, v13")
    def um(F): return mk(f"v_mfma_f32_32x32x16_bf16 {vr(ACC1+32+16*(F%2),16)}, {vr(SEL,4)}, {vr(XR+4*F,4)}, 0")
    def nv(F):
        d = ACC1 + 32 + 16 * (F % 2); x = XR + 4 * F
        o = []
        for j in range(8): o += mk(f"v_fma_f32 v{d+j}, v{d+j}, v2, v3")
        for j in range(4): o += mk(f"v_cvt_pk_bf16_f32 v{x+j}, v{d+2*j}, v{d+2*j+1}")
        return o
    P.add(um(0)); P.add(um(1))
    ln_stats(P, 'v8', 'v12', 'v4', 'v2', 'v3')
    P(f"v_mul_f32 v2, {hx(LOG2E)}, v2\nv_mul_f32 v3, v4, v2")

    uses = []
    for p in range(6):
        for st in range(3):
            s = 3 * p + st; slot = s % NSLOT
            for S in range(3):
                for ss in range(4):
                    F = st * 12 + S * 4 + ss
                    for u in range(2):
                        n = len(uses); af = AF + 4 * (n % 16)
                        off = (slot % 2) * RING + (64 * S + 8 * ss) * 128
                        va = vA1[u][slot // 2]
                        rd = mk(f"ds_read_b64_tr_b16 {ar(af,2)}, v{va} offset:{off}\nds_read_b64_tr_b16 {ar(af+2,2)}, v{va} offset:{off+512}", tag=f"r{n}")
                        acc = vr(ACC1 + 32 * (p % 2) + 16 * u, 16)
                        mf = mk(f"v_mfma_f32_32x32x16_bf16 {acc}, {ar(af,4)}, {vr(XR+4*F,4)}, {'0' if F == 0 else acc}")
                        uses.append((s, rd, mf))
    N1 = len(uses)
    ACC2 = XR; STG = XR + 128
    for si, (p, k) in enumerate(g2):
        s = 18 + si; slot = s % NSLOT
        for kk in range(6):
            ks = 6 * k + kk
            for u in range(2):
                n = len(uses); af = AF + 4 * (n % 16)
                off = (slot % 2) * RING + 32 * kk * 128
                va = vA2[u][slot // 2]
                rd = mk(f"ds_read_b64_tr_b16 {ar(af,2)}, v{va} offset:{off}\nds_read_b64_tr_b16 {ar(af+2,2)}, v{va} offset:{off+2048}", tag=f"r{n}")
                mf = []
                for j in range(4):
                    acc = vr(ACC2 + 32 * (p % 4) + 8 * j + 4 * u, 4)
                    mf += mk(f"v_mfma_f32_16x16x32_bf16 {acc}, {ar(af,4)}, {ar(16*ks+4*j,4)}, {'0' if (ks == 0 and not (OPT['fuse'] and p >= 5)) else acc}")
                uses.append((s, rd, mf))
    NU = len(uses)
    PD1, PD2 = OPT['pd1'], OPT['pd2']
    rd_at = {}
    for n in range(NU):
        if n < N1: g = n - PD1
        else:
            g = n - PD2
            if g < N1: g = N1 - 1 - 2 * (N1 - 1 - g)
        rd_at.setdefault(g, []).append(n)
    bar_at = {}
    for g in sorted(rd_at):
        for n in rd_at[g]:
            s = uses[n][0]
            if s not in bar_at: bar_at[s] = g
    extra_lw = {}
    def hw_tag(ks): return f"hw{ks}"
    def rstage(ks):
        p = ks // 2
        if p <= 3: return 3 * (p + 2) + 1
        if p == 4: return 19
        return 21
    for ks in range(1, 12, 2): extra_lw[rstage(ks)] = hw_tag(ks)
    def barrier(s):
        if s in extra_lw: return mk(f"WAITVL d{s}, {extra_lw[s]}\ns_barrier")
        return mk(f"WAITV d{s}\ns_barrier")
    P.add(barrier(0))
    for g in sorted(rd_at):
        if g < 0:
            for n in rd_at[g]: P.add(uses[n][1])
    P.add(nv(0))
    P("WAITL r3")
    stamp(P, 3)
    S16 = 16
    AOFF = {3: OPT['a3'], 4: OPT['a4'], 5: -OPT['cin'], 6: -OPT['cin'], 7: -OPT['cin'], 8: -OPT['cin']}
    def ustart(p): return N1 + 12 * (6 + 2 * (p - 3))
    nacc = {ustart(p) + AOFF[p] + 23: p for p in range(3, 5)} if OPT['fuse'] else {}
    gacc = {}
    def HB(p): return 48 + 16 * (p % 2)
    def accum(dst, src, first=False):
        return mk(f"v_mfma_f32_16x16x32_bf16 {vr(dst,4)}, {vr(S16+2,4)}, {src}, {'0' if first else vr(dst,4)}\nv_mfma_f32_16x16x32_bf16 {vr(dst+4,4)}, {vr(S16,4)}, {src}, {'0' if first else vr(dst+4,4)}")
    def hopacc(p):
        L = []
        for j in range(4): L += accum(ACC2 + 32 * (p % 4) + 8 * j, vr(HB(p) + 4 * j, 4))
        return L[0::2] + L[1::2]
    SC = Sched()
    gi = {}
    gu = {}
    for n in range(NU):
        mf = uses[n][2]
        if n in nacc:
            SC.tail[-1] += mk(f"WAITV hl{nacc[n]}")
            for m_ in hopacc(nacc[n]): gacc[nacc[n]] = SC.gap([m_], 16)
        if n < 72 and n % 2 == 0 and n // 2 + 2 < 36:
            gu[n // 2 + 2] = SC.gap(um(n // 2 + 2), 32)
        bar = []
        for s, g in bar_at.items():
            if g == n: bar = barrier(s)
        rds = []
        for nn in rd_at.get(n, []): rds += uses[nn][1]
        if n < N1:
            g = SC.gap(mf, 32); gi[n] = g
            SC.mand[g] += bar + rds
            if n % 4 == 3 and n + 1 < N1: SC.tail[g] += mk(f"WAITL r{n+4}")
            if n == N1 - 1: SC.tail[g] += mk(f"WAITL r{n+2}")
        else:
            gs = [SC.gap([m], 16) for m in mf]; gi[n] = gs[0]
            if bar:
                SC.mand[gs[0]] += bar
                for i, t in enumerate(rds): SC.mand[gs[1 + i]].append(t)
            else:
                for i, t in enumerate(rds): SC.mand[gs[2 * i]].append(t)
            if (n - N1) % 2 == 1 and n + 1 < NU: SC.tail[gs[3]] += mk(f"WAITL r{n+2}")
    gi[NU] = len(SC.head)

    def silu(ks):
        p, u = ks // 2, ks % 2
        a = ACC1 + 32 * (p % 2) + 16 * u
        F = []
        T = [1, 2, 3, 4, 5, 6, 7, 46]
        stg = 8
        def E(q, j): return mk(f"v_exp_f32_e64 v{T[4*(q%2)+j]}, -v{a+4*q+j}")
        def Ad(q, j): return mk(f"v_add_f32 v{T[4*(q%2)+j]}, 1.0, v{T[4*(q%2)+j]}")
        def R(q, j): return mk(f"v_rcp_f32 v{T[4*(q%2)+j]}, v{T[4*(q%2)+j]}")
        def M(q, j): return mk(f"v_mul_f32 v{T[4*(q%2)+j]}, v{a+4*q+j}, v{T[4*(q%2)+j]}")
        def C(q):
            d = stg + 4 * (q % 2) + 2 * (q // 2); t = T[4*(q%2):4*(q%2)+4]
            o = mk(f"v_cvt_pk_bf16_f32 v{d}, v{t[0]}, v{t[1]}\nv_cvt_pk_bf16_f32 v{d+1}, v{t[2]}, v{t[3]}")
            if q >= 2: o += mk(f"ds_write_b128 v{vHW}, {vr(stg+4*(q%2),4)} offset:{(ks%4)*8192+512*(q%2)}", tag=hw_tag(ks), cost=OPT['wcost'])
            return o
        for q in range(4):
            F += E(q, 0) + E(q, 1)
            F += E(q, 2) + Ad(q, 0) + Ad(q, 1)
            F += E(q, 3) + Ad(q, 2)
            F += R(q, 0) + Ad(q, 3)
            F += R(q, 1) + M(q, 0)
            F += R(q, 2) + M(q, 1)
            F += R(q, 3) + M(q, 2)
            c = C(q)
            F += [c[0]] + M(q, 3) + c[1:]
        return F
    def hread(ks):
        return flat([mk(f"ds_read_b128 {ar(16*ks+4*j,4)}, v{vHR} offset:{(ks%4)*8192+1024*j}", tag=f"hr{ks}") for j in range(4)])
    def epi(p):
        a = ACC2 + 32 * (p % 4)
        F = []
        for j in range(4):
            if OPT['fuse'] and p >= 6 and j == 0: continue
            for u in range(2):
                for h in range(2): F += mk(f"v_cvt_pk_bf16_f32 v{STG+4*j+2*u+h}, v{a+8*j+4*u+2*h}, v{a+8*j+4*u+2*h+1}")
            F += mk(f"buffer_store_dwordx4 {vr(STG+4*j,4)}, v{vST}, {sWS}, s{PS+p} offen offset:{1024*j}{STMOD if (p >= 6 or not OPT['fuse']) else ''}", tag=f'st{p}', cost=8)
        return F

    for s in range(0, 33):
        g0 = gi[bar_at[s]] + 1 if bar_at[s] >= 0 else 0
        g1 = gi[bar_at[s + 1]]
        SC.place((dma(2) if (s == 0 and OPT['dpre'] == 2) else []) + dma(s + 3), g0, g1, 'spread', f'dma{s+3}')
    for ks in range(12):
        g0 = gi[bar_at[rstage(ks)]] + 1 + (ks % 2) * 8
        SC.place(hread(ks), g0, g0 + 8, 'spread', f'hr{ks}')
    if OPT['fuse']: SC.place(handshake(sSL, 'v44', 'v45', True), gi[bar_at[3]] + 1, gi[bar_at[3]] + 12, 'spread', 'hsk')
    if OPT['pfw'] & 1: SC.place(pf_w(1), 20, 70, 'spread', 'pf1')
    if OPT['pfw'] & 2: SC.place(pf_w(2), gi[90], gi[400], 'spread', 'pf2')
    for F in range(1, 36):
        g0 = gu.get(F + 1, gi[2 * (F - 1)]); g1 = gi[2 * (F - 1) + 1] + 1
        SC.place(nv(F), g0, g1, 'asap', f'nv{F}')
    for p in range(5):
        b = 72 * (p + 1)
        SC.place(silu(2 * p) + silu(2 * p + 1), gi[b + 2], gi[b + 72], 'asap', f'silu{p}')
    SC.place(silu(10) + silu(11), gi[N1] + 6, gi[bar_at[21]] - 2, 'asap', 'silu5')
    last_stage = {}; gepi = {}
    for si, (p, k) in enumerate(g2):
        if k == 1: last_stage[p] = si
    for p in range(8):
        g0 = gi[N1 + 12 * (last_stage[p] + 1)] + 5
        if p in gacc: g0 = gacc[p] + 5
        if OPT['fuse'] and p >= 6: continue
        gepi[p] = SC.place(epi(p), g0, g0 + (42 if not OPT['fuse'] else 30), 'spread' if not OPT['fuse'] else 'asap', f'epi{p}')[-1]
    slow = []
    def gs(si, off=0): return gi[N1 + 12 * si] + off
    if OPT['fuse']:
        vFR, vFV, vXO, vC = 28, 29, 30, 31
        def site(name, load, tag, chk, g0, g1):
            L = mk(f"WAITV {tag}") + mk(chk) + mk(f"s_cbranch_scc0 L_slow{name}\nL_back{name}:")
            head, tailp = L[:-4], L[-4:]
            pos = SC.place(head, g0, g1, 'asap', name)
            SC.fill[pos[-1] + 1] += tailp
            slow.extend(mk(f"L_slow{name}:\ns_mov_b32 s68, 0\nL_spin{name}:\n{load}\ns_waitcnt vmcnt(0)\n{chk}\ns_cbranch_scc1 L_back{name}\ns_sleep 1\ns_add_u32 s68, s68, 1\ns_cmp_lt_u32 s68, 0x80000\ns_cbranch_scc1 L_spin{name}\ns_branch L_back{name}", cond=True))
            return pos[-1] + 2
        hload = f"buffer_load_dword v41, v40, {sDBG}, 0 offen sc1"
        SC.place(mk(f"s_lshl_b32 s66, {sM}, 4\nv_and_b32 v40, 3, v0\nv_lshlrev_b32 v40, 2, v40\nv_add_u32 v40, s66, v40") + mk(hload, tag='hc', cost=8), gi[130], gi[142], 'spread', 'hc')
        g = site('H', hload, 'hc', f"v_and_b32 v42, 0xff, v41\nv_cmp_le_u32 vcc, 4, v42\ns_and_b32 s66, vcc_lo, 15\ns_cmp_eq_u32 s66, 15", gi[170], gi[180])
        MD = mk(f"v_readlane_b32 s66, v41, s38\ns_lshr_b32 s67, s66, 4\ns_xor_b32 s66, s66, s67")
        pos = SC.place(MD, g, gi[190], 'spread', 'mode')
        fb = "s_or_b32 s66, s66, 0x1000\n" if OPT['forcefb'] else ""
        SC.fill[pos[-1] + 1] += mk(f"{fb}s_and_b32 s66, s66, 0xff000\ns_cselect_b32 s58, 0, 1\ns_cselect_b32 s59, s100, 0\ns_cselect_b32 s100, s100, s101\ns_cselect_b32 s101, 0, s101")
        SC.place(mk("\n".join(f"s_add_u32 s{PS+p}, s{PS+p}, s101" for p in range(6))), pos[-1] + 2, gi[205], 'spread', 'psfix')
        SC.place(mk(f"buffer_load_dword v47, v{vFLW}, {sWS}, s37 offen sc1", tag='dummy', cost=8), gi[205], gi[215], 'asap', 'pfflag')
        if OPT['pfh'] & 2:
            L = []
            for p in range(3):
                for j in range(4): L += mk(f"buffer_store_dwordx4 {vr(XR,4)}, v{vST}, {sWS}, s{PS+p} offen offset:{1024*j} sc1", tag='pw', cost=16)
            SC.place(L, gi[208], gi[300], 'spread', 'prewrite')
        if OPT['pfh'] & 1:
            hs = OPT['hsplit']
            L = mk(f"v_and_b32 v40, {32//hs-1}, v0\nv_lshlrev_b32 v40, 7, v40") + (mk("WAITV pw") if OPT['pfh'] & 2 else [])
            for p in range(3):
                for h in range(hs): L += mk(f"buffer_load_dword v47, v40, {sWS}, s{PS+p} offen offset:{h*4096//hs} sc1", tag='dummy', cost=8)
            SC.place(L, gi[OPT['pfh0']], gi[425], 'spread', 'pfh')
        SQ = Prog()
        SQ(f"s_lshl_b32 s66, {sM}, 2\ns_add_u32 s67, s66, {sWV}\ns_lshl_b32 s67, s67, 11\ns_and_b32 s68, {sWV}, 2\ns_add_u32 s66, s66, s68\ns_bfe_u32 s68, {sSL}, 0x10001\ns_add_u32 s66, s66, s68\ns_lshl_b32 s66, s66, 11")
        SQ(f"s_lshl_b32 s51, s51, 7\ns_add_u32 s51, s51, s67\ns_add_u32 s51, s51, {WS_FLAG + HFOFF}\nv_mov_b32 v43, s51")
        SQ(f"v_and_b32 v40, 15, v0\nv_mov_b32 v41, s67\nv_mov_b32 v42, s66\nv_cmp_gt_u32 vcc, 12, v40\nv_lshlrev_b32 v40, 7, v40\nv_add_u32 v40, {WS_FLAG}, v40\nv_cndmask_b32 v41, v42, v41, vcc\nv_add_u32 v{vFR}, v40, v41")
        SQ(f"s_or_b32 vcc_lo, s52, s53\ns_mov_b32 vcc_hi, 0\nv_mov_b32 v40, 2.0\nv_cndmask_b32 v{vFR}, v40, v{vFR}, vcc")
        sel_consts(SQ, S16, 'v40', 'v41', 'v42')
        SQ('s_mov_b32 s16, s24\ns_mov_b32 s17, s25\ns_mov_b32 s57, 0xffff0000')
        SQ(f"s_lshl_b32 s66, {sM}, 7\ns_and_b32 s67, {sWV}, 2\ns_lshl_b32 s67, s67, 5\ns_add_u32 s66, s66, s67\ns_and_b32 s67, {sSL}, 2\ns_lshl_b32 s67, s67, 4\ns_add_u32 s66, s66, s67\ns_and_b32 s67, {sSL}, 1\ns_add_u32 s66, s66, s67")
        SQ(f"v_and_b32 v40, 15, v0\nv_lshlrev_b32 v40, 1, v40\nv_add_u32 v40, s66, v40\nv_mul_u32_u24 v40, 1152, v40\nv_lshrrev_b32 v41, 4, v0\nv_lshlrev_b32 v41, 3, v41\ns_and_b32 s67, {sWV}, 1\ns_lshl_b32 s67, s67, 6\nv_add3_u32 v{vXO}, v40, v41, s67\nv_lshlrev_b32 v41, 3, v0")
        SC.place(SQ.l, gs(3, 0), gs(6), 'asap', 'tailsetup')
        fload = f"buffer_load_dword v{vFV}, v{vFR}, {sWS}, 0 offen sc1"
        def chk(thr, mask): return f"v_cmp_le_u32 vcc, {thr}, v{vFV}\ns_and_b32 s66, vcc_lo, {mask}\ns_cmp_eq_u32 s66, {mask}"
        def fstore(val): return mk(f"buffer_store_dword v{vC}, v{vFLW}, {sWS}, 0 offen sc1", tag=f'fl{val}', cost=8)
        for p in range(6):
            g = gepi[p] + OPT['fdel']
            pos = SC.place(mk(f"v_mov_b32 v{vC}, {p+1}") + mk(f"WAITV st{p}"), g, g + 20, 'asap', f'flag{p}')
            hst = f"buffer_store_dword v{vC}, v{vFLW}, {sWS}, s37 offen"
            SC.fill[pos[-1] + 1] += mk(f"s_cmp_eq_u32 s58, 0\ns_cbranch_scc1 L_rel{p}") + mk(hst, tag=f'fl{p+1}', cost=8) + mk(f"L_relb{p}:")
            slow.extend(mk(f"L_rel{p}:\nbuffer_wbl2 sc1\ns_waitcnt vmcnt(0)\n{hst} sc1\ns_branch L_relb{p}", cond=True))
        pload = f"buffer_load_dword v{vFV}, v43, {sWS}, 0 offen sc1"
        def hloads(p):
            L = mk(f"s_add_u32 s69, s{PS+p}, {'s59' if p < 6 else 's100'}")
            for j in range(4): L += mk(f"buffer_load_dwordx4 {vr(HB(p)+4*j,4)}, v{vST}, {sWS}, s69 offen offset:{1024*j} sc1", tag=f"hl{p}", cost=8)
            return L
        for p in range(3, 9):
            u0 = ustart(p) + AOFF[p]
            if p != 5:
                SC.place(mk(pload, tag=f'pp{p}', cost=8), gi[u0], gi[u0 + 2], 'asap', f'pp{p}')
                ck = f"v_cmp_le_u32 vcc, {3 if p == 4 else p-2}, v{vFV}"
                pos = SC.place(mk(f"WAITV pp{p}") + mk(ck), gi[u0 + OPT['pchk']], gi[u0 + OPT['pchk'] + 1], 'asap', f'chk{p}')
                SC.fill[pos[-1] + 2] += mk(f"s_cbranch_vccz L_slowP{p}\nL_backP{p}:")
                slow.extend(mk(f"L_slowP{p}:\n" + (f"s_add_u32 s93, s93, {1 << (4*(p-3))}\n" if OPT['stamp'] else "") + f"s_mov_b32 s68, 0\nL_spinP{p}:\n{pload}\ns_waitcnt vmcnt(0)\n{ck}\ns_add_u32 s68, s68, 1\ns_nop 4\ns_cbranch_vccnz L_backP{p}\ns_cmp_lt_u32 s68, 0x80000\ns_cbranch_scc1 L_spinP{p}\ns_branch L_backP{p}", cond=True))
                if p == 4: SC.place(hloads(5) + hloads(4), pos[-1] + 3, gi[u0 + OPT['pchk'] + 9], 'asap', f'hl{p}')
                else: ghl = SC.place(hloads(p), pos[-1] + 3, gi[u0 + OPT['pchk'] + 5], 'asap', f'hl{p}')[-1]
            if p >= 5:
                L = mk(f"WAITV hl{p}")
                for d in range(16):
                    a_ = ACC2 + 32 * (p % 4) + 2 * d
                    L += mk(f"v_lshlrev_b32 v{a_}, 16, v{HB(p)+d}\nv_and_b32 v{a_+1}, s57, v{HB(p)+d}")
                SC.place(L, gi[ustart(p) - 6], gi[ustart(p)] - 1, 'asap', f'cinit{p}')
        sQ = 's[16:19]'
        RS = [80, 84, 88]
        def sloads(srd, tag, cond=False):
            L = []
            for k in range(3):
                L += mk(f"s_lshl_b32 s69, s{60+k}, 4\ns_add_u32 s69, s69, s50", cond=cond)
                for u in range(2): L += mk(f"buffer_load_dwordx2 {vr(RS[k]+2*u,2)}, v41, {srd}, s69 offen offset:{512*u} sc1", tag=tag, cond=cond, cost=8)
            return L
        e6 = epi(6)
        SC.place([x for x in e6 if x.kind != 'vmem'], gs(14, 5), ghl, 'asap', 'epi6c')
        XV = 4
        L = mk(f"buffer_load_dword v42, v{vFR}, {sWS}, 0 offen sc1", tag='p0', cost=8) + [x for x in e6 if x.kind == 'vmem']
        for k in range(3):
            L += mk(f"s_sub_u32 s{60+k}, s{PA+6+k}, s63")
            L += mk(f"buffer_load_dwordx2 {vr(XV+4*k,2)}, v{vXO}, {sX}, s{60+k} offen\nbuffer_load_dwordx2 {vr(XV+4*k+2,2)}, v{vXO}, {sX}, s{60+k} offen offset:32", tag='xo', cost=8)
        SC.place(L, ghl + 1, gs(16, 5), 'asap', 'st6xo')
        g = SC.place(epi(7), gs(16, 5), gs(16, 30), 'asap', 'epi7')[-1]
        pos = SC.place(mk("WAITV p0\nv_cmp_le_u32 s[70:71], 9, v42"), g - 4, g + 8, 'asap', 'chkS')
        SC.fill[pos[-1] + 1] += mk(f"s_and_b32 s66, s70, s52\ns_cmp_eq_u32 s66, s52\ns_cselect_b32 s18, {WS_BYTES}, 0\ns_cselect_b32 s54, 1, 0")
        g = SC.place(sloads(sQ, 'ls') + mk(fload, tag='p1', cost=8), max(g + 1, pos[-1] + 2), gs(17, 30), 'asap', 'ls')[-1]
        SC.place(mk(f"v_mov_b32 v{vC}, 8") + mk("WAITV st7") + fstore(8), max(g + 1, gs(17, 24)), len(SC.head), 'asap', 'flag8')
    print("; overflow cycles: pass0 %d, pass1-5 %d, gemm2 %d" % (SC.overflow(0, gi[72]), SC.overflow(gi[72], gi[N1]), SC.overflow(gi[N1])), file=sys.stderr)
    marks = [gi[72], gi[144], gi[N1], gi[N1 + 72]]
    ids = [4, 5, 6, 7]
    if OPT['marks'] == 2:
        marks = [gs(12), gs(13), gs(14), gs(15), gs(16), gs(17), len(SC.head)]; ids = [1, 2, 3, 4, 5, 6, 7]
    if OPT['marks'] == 3:
        marks = [gs(6), gs(7), gs(8), gs(9), gs(10), gs(11), gs(12)]; ids = [1, 2, 3, 4, 5, 6, 7]
    if OPT['marks'] == 1:
        marks = [gs(0), gs(6), gs(8), gs(10), gs(12), gs(14), gs(16)]; ids = [1, 2, 3, 4, 5, 6, 7]
    prev = 0
    for i, g in zip(ids, marks):
        P.add(SC.emit(prev, g)); stamp(P, i); prev = g
    P.add(SC.emit(prev))
    P.add(epi(8))
    k0 = [i for i, x in enumerate(P.l) if x.text.startswith('WAITL r3')][0]
    def keep(x):
        if OPT['nosilu'] and x.base in ('v_exp_f32', 'v_rcp_f32', 'v_add_f32', 'v_mul_f32'): return False
        if OPT['nodma'] and x.kind == 'vmem' and 'lds' in x.mods: return False
        if OPT['nodma'] and x.op == 'WAITV': return False
        if OPT['nobar'] and x.kind == 'bar': return False
        if OPT['nost'] and (x.tag or '').startswith('st'): return False
        return True
    def fix(x):
        if OPT['nodma'] and x.op == 'WAITVL': return I('WAITL ' + x.ops[1])
        return x
    P.l = P.l[:k0] + [fix(x) for x in P.l[k0:] if keep(x)]
    stamp(P, 8)
    if OPT['fuse']:
        G = [ACC2 + 32 * ((6 + k) % 4) for k in range(3)]
        SS = [g + 8 for g in G]
        XU = 48
        def cloads(ks, srd, tag, cond=False):
            for k in ks:
                P(f"s_add_u32 s67, s{PS+6+k}, s49", cond=cond)
                for d in range(1, 4): P(f"s_add_u32 s69, s67, s{96+d}\nbuffer_load_dwordx4 {ar(12*k+4*(d-1),4)}, v{vST}, {srd}, s69 offen sc1", tag=tag, cond=cond)
        def spin(name, thr, mask):
            P(f"s_mov_b32 s68, 0\nL_spin{name}:", cond=True)
            P(fload + "\ns_waitcnt vmcnt(0)\n" + chk(thr, mask) + f"\ns_cbranch_scc1 L_done{name}\ns_sleep {OPT['slp']}\ns_add_u32 s68, s68, 1\ns_cmp_lt_u32 s68, 0x80000\ns_cbranch_scc1 L_spin{name}\nL_done{name}:", cond=True)
        def unitT(ks):
            for k in ks:
                for d in range(3): P.add(accum(G[k], ar(12 * k + 4 * d, 4)))
            for k in ks:
                g_, t_ = G[k], G[k] + 16
                for i in range(8): P(f"v_exp_f32_e64 v{t_+i}, -v{g_+i}")
                for i in range(8): P(f"v_fma_f32 v{t_+i}, v{t_+i}, s71, s71")
                for i in range(8): P(f"v_rcp_f32 v{t_+i}, v{t_+i}")
                for i in range(8): P(f"v_mul_f32 v{g_+i}, v{g_+i}, v{t_+i}")
        P("WAITV p1\n" + chk(8, 's53') + f"\ns_cselect_b32 s18, {WS_BYTES}, 0\ns_cselect_b32 s55, 1, 0")
        cloads([0, 1], sQ, 'lc0')
        P(chk(9, 's53') + f"\ns_cselect_b32 s18, {WS_BYTES}, 0\ns_cselect_b32 s56, 1, 0")
        cloads([2], sQ, 'lc2')
        P(f"v_mov_b32 v{vC}, 9\ns_mov_b32 s71, {hx(LOG2E)}")
        for d in range(12): P(f"v_lshlrev_b32 v{XU+2*d}, 16, v{XV+d}\nv_and_b32 v{XU+2*d+1}, s57, v{XV+d}")
        P("WAITV st8"); P.add(fstore(9)); stamp(P, 12)
        P("s_cmp_eq_u32 s55, 1\ns_cbranch_scc1 L_have8")
        spin('8', 8, 's53')
        cloads([0, 1], sWS, 'lc0b', True); P("s_waitcnt vmcnt(0)", cond=True)
        P("L_have8:")
        P(fload, tag='p2')
        P("WAITV lc0")
        stamp(P, 9)
        unitT([0, 1])
        P("s_waitcnt vmcnt(0)")
        P("s_cmp_eq_u32 s54, 1\ns_cbranch_scc1 L_chk9")
        P(chk(9, 's52') + "\ns_cbranch_scc0 L_chk9\ns_mov_b32 s54, 1", cond=True)
        P.add(sloads(sWS, 'ls2', True))
        P("L_chk9:")
        P("s_cmp_eq_u32 s56, 1\ns_cbranch_scc1 L_have9")
        P(chk(9, 's53') + "\ns_cbranch_scc1 L_done9", cond=True)
        spin('9', 9, 's53')
        cloads([2], sWS, 'lc2b', True)
        P("L_have9:")
        P("s_waitcnt vmcnt(0)")
        stamp(P, 10)
        unitT([2])
        P("s_cmp_eq_u32 s54, 1\ns_cbranch_scc1 L_haveS")
        spin('S', 9, 's52')
        P.add(sloads(sWS, 'ls3', True)); P("s_waitcnt vmcnt(0)", cond=True)
        P("L_haveS:")
        for k in range(3):
            g_, s_, pk = G[k], SS[k], G[k] + 24
            for d in range(4): P(f"v_lshlrev_b32 v{s_+2*d}, 16, v{RS[k]+d}\nv_and_b32 v{s_+2*d+1}, s57, v{RS[k]+d}")
            for i in range(8): P(f"v_fma_f32 v{g_+i}, v{g_+i}, v{s_+i}, v{XU+8*k+i}")
            for d in range(4): P(f"v_cvt_pk_bf16_f32 v{pk+d}, v{g_+2*d}, v{g_+2*d+1}")
            P(f"buffer_store_dwordx2 {vr(pk,2)}, v{vXO}, s[72:75], s{60+k} offen\nbuffer_store_dwordx2 {vr(pk+2,2)}, v{vXO}, s[72:75], s{60+k} offen offset:32", tag='os')
        stamp(P, 11)
    stamp_flush(P, 12)
    P("s_endpgm")
    P.add(slow)
    return P.l

def attn():
    P = Prog()
    P("s_endpgm")
    return P.l

def final():
    P = Prog()
    P("s_endpgm")
    return P.l

def finish(lst):
    lst = resolve_waits(lst)
    lst, nfix = fix_hazards(lst, OPT['verbose'])
    errs = check_scoreboard(lst)
    for e in errs[:20]: print("; SCOREBOARD ERR", e, file=sys.stderr)
    assert not errs
    lst, mis, sz = align_pass(lst)
    print(f"; hazard nops inserted: {nfix}, instrs: {len(lst)}, misaligned {mis}, bytes {sz}", file=sys.stderr)
    return lst

def main():
    try:
        import gen_attn
    except ImportError:
        gen_attn = None
    P0 = Prog(); common_prologue(P0)
    f = finish(P0.l + ffn())[:]
    a = finish(P0.l + (gen_attn.attn(globals()) if gen_attn and OPT['attn'] else attn()))
    a = a[[i for i, x in enumerate(a) if x.text.startswith('s_cbranch_scc1 L_attn')][0] + 1:]
    k2 = finish(gen_attn.final(globals()) if gen_attn else final())
    out = []
    MK = NAME + "_kernel" if OPT['fuse'] else "main_kernel"
    if OPT['fuse']: out.append(f"; @launch grid=(256,1,1) block=(256,1,1) lds={LDS_BYTES}")
    else:
        out.append(f"; @launch kernel=main_kernel grid=(256,1,1) block=(256,1,1) lds={LDS_BYTES}")
        out.append(f"; @launch kernel=final_kernel grid=(576,1,1) block=(256,1,1) lds=0")
    out.append('.amdgcn_target "amdgcn-amd-amdhsa--gfx950"\n.text')
    out.append(f".globl {MK}\n.p2align 8\n.type {MK},@function\n{MK}:\nL_main_start:")
    out += [x.text for x in f]
    out.append(".p2align 6\nL_attn:")
    out += [x.text for x in a]
    out.append("L_exit:\ns_endpgm\nL_main_end:")
    if not OPT['fuse']:
        out.append(".globl final_kernel\n.p2align 8\n.type final_kernel,@function\nfinal_kernel:")
        out += [x.text for x in k2]
    out.append('.section .rodata,"a"')
    for nm, nv, ao in ((MK, 512, 256), ("final_kernel", 96, 96))[:1 if OPT['fuse'] else 2]:
        out.append(f".p2align 6\n.amdhsa_kernel {nm}\n  .amdhsa_next_free_vgpr {nv}\n  .amdhsa_next_free_sgpr 102\n  .amdhsa_accum_offset {ao}\n  .amdhsa_group_segment_fixed_size 0\n  .amdhsa_kernarg_size 72\n  .amdhsa_user_sgpr_count 2\n  .amdhsa_user_sgpr_kernarg_segment_ptr 1\n  .amdhsa_system_sgpr_workgroup_id_x 1\n  .amdhsa_float_denorm_mode_32 3\n.end_amdhsa_kernel")
    txt = "\n".join(out) + "\n"
    import subprocess, re as _re, tempfile, os
    d = tempfile.mkdtemp()
    open(d + "/a.s", "w").write(txt.replace("CODE_PF_MAX", "0x12345"))
    r = subprocess.run(["clang", "-x", "assembler", "-target", "amdgcn-amd-amdhsa", "-mcpu=gfx950", "-c", d + "/a.s", "-o", d + "/a.o"], capture_output=True, text=True)
    assert r.returncode == 0, r.stderr
    sy = subprocess.run(["llvm-readelf", "-s", d + "/a.o"], capture_output=True, text=True).stdout
    def sym(n): return int([l for l in sy.splitlines() if l.strip().endswith(" " + n)][0].split()[1], 16)
    size = sym("L_main_end") - sym("L_main_start")
    print(f"; main code bytes {size}, attn at {sym('L_attn')}", file=sys.stderr)
    print(txt.replace("CODE_PF_MAX", str(size - 1024)))

if __name__ == "__main__":
    main()
```

```python
import sys, math
from asmlib import *

OPT = dict(hop0=1, fdel0=44, pfwo=1, ofl=12, opl=23, pfh0=216, nb2=2, hsplit=2, dpre=3, pst=0, xlead=3, slp=4, rt=0, pfh=0, pchk=9, fdel=32, a3=8, a4=3, cin=22, sat=15*12+4,  forcefb=0, marks=0, wcost=16, fuse=1, stmod=1, dbgwg=64, nosilu=0, nodma=0, nobar=0, nost=0, pd1=7, pd2=3, stamp=0, ffn=1, attn=1, verbose=0, rot=1, pfw=0, pfcode=1)
for a in sys.argv[1:]:
    k, v = a.split('='); OPT[k] = int(v)

STMOD = ['', ' sc1', ' nt', ' sc0 sc1', ' sc1 nt'][OPT['stmod']]
NAME = "recurrent_scan__sliding_local_dilated__dense_activation_silu__prompt"
LOG2E = 1.4426950408889634
LN2 = 0.6931471805599453
import struct
def f2u(f): return struct.unpack('<I', struct.pack('<f', f))[0]
def hx(f): return "0x%08x" % f2u(f)

WS_P = 0
WS_HALO = 40 << 20
WS_FLAG = 44 << 20
HFOFF = 1 << 18
WS_O = 45 << 20
WS_S = 52 << 20
WS_STAMP = 48 << 20
WS_BYTES = 64 << 20
LDS_BYTES = 155648

sX, sWA, sWB, sWS, sDBG = 's[12:15]', 's[16:19]', 's[20:23]', 's[24:27]', 's[28:31]'
sM, sSL, sWV, sROT, sMEM = 's32', 's33', 's34', 's35', 's36'

def vr(a, n): return f"v[{a}:{a+n-1}]" if n > 1 else f"v{a}"
def ar(a, n): return f"a[{a}:{a+n-1}]" if n > 1 else f"a{a}"

stamp_n = [0]
def stamp(P, idx):
    if not OPT['stamp']: return
    if OPT['pst']:
        if idx < 100 and idx != 3: return
        idx = 9 if idx == 3 else idx - 100
    elif idx >= 100: return
    P(f"{'s_memrealtime' if OPT['rt'] else 's_memtime'} s[78:79]\ns_waitcnt lgkmcnt(0)\ns_mov_b32 s{80+idx}, s78")
def stamp_flush(P, n):
    if not OPT['stamp']: return
    P(f"s_memrealtime s[78:79]\ns_waitcnt lgkmcnt(0)\ns_mov_b32 s{80+15}, s78")
    P(f"s_lshl_b32 s76, s2, 2\ns_add_u32 s76, s76, {sWV}\ns_lshl_b32 s76, s76, 6\ns_add_u32 s76, s76, {WS_STAMP}")
    P("v_mov_b32 v1, 0")
    for i in range(4):
        for j in range(4): P(f"v_mov_b32 v{4+j}, s{80+4*i+j}")
        P(f"buffer_store_dwordx4 v[4:7], v1, {sWS}, s76 offen offset:{16*i}")
        P("s_nop 1")

def round_bf16(P, dst, src):
    P(f"v_cvt_pk_bf16_f32 {dst}, {src}, {src}\nv_and_b32 {dst}, 0xffff0000, {dst}")

def ln_stats(P, vsum, vsq, vnegm, vr_, tmp):
    P(f"v_mul_f32 {vsum}, {hx(1/576)}, {vsum}")
    P(f"v_mul_f32 {vsq}, {hx(1/576)}, {vsq}")
    P(f"v_fma_f32 {vsq}, -{vsum}, {vsum}, {vsq}")
    P(f"v_max_f32 {vsq}, 0, {vsq}")
    round_bf16(P, vnegm, vsum)
    P(f"v_xor_b32 {vnegm}, 0x80000000, {vnegm}")
    round_bf16(P, vsq, vsq)
    P(f"v_add_f32 {vsq}, {hx(1e-5)}, {vsq}")
    round_bf16(P, vsq, vsq)
    P(f"v_sqrt_f32 {vsq}, {vsq}")
    round_bf16(P, vsq, vsq)
    P(f"v_rcp_f32 {vr_}, {vsq}")

def sel_consts(P, vsel, t0, t1, t2):
    P(f"v_mov_b32 v{vsel}, 0\nv_mov_b32 v{vsel+1}, 0\nv_mov_b32 v{vsel+4}, 0\nv_mov_b32 v{vsel+5}, 0")
    P(f"v_and_b32 {t0}, 1, v0\nv_lshlrev_b32 {t0}, 4, {t0}\nv_mov_b32 {t1}, 0x3f80\nv_lshlrev_b32 {t0}, {t0}, {t1}")
    P(f"v_bfe_u32 {t1}, v0, 2, 2\nv_lshrrev_b32 {t2}, 4, v0")
    P(f"v_cmp_eq_u32 vcc, {t1}, {t2}\nv_cndmask_b32 {t0}, 0, {t0}, vcc")
    P(f"v_and_b32 {t1}, 2, v0\nv_cmp_eq_u32 vcc, 0, {t1}")
    P(f"v_cndmask_b32 v{vsel+2}, 0, {t0}, vcc\nv_cndmask_b32 v{vsel+3}, {t0}, v{vsel}, vcc")

def common_prologue(P):
    P("s_cmp_ge_u32 s2, 256\ns_cbranch_scc1 L_exit")
    P("s_load_dwordx4 s[4:7], s[0:1], 0\ns_load_dwordx2 s[8:9], s[0:1], 16\ns_load_dwordx4 s[40:43], s[0:1], 32\ns_load_dwordx4 s[44:47], s[0:1], 56")
    P(f"v_lshrrev_b32 v1, 6, v0\nv_lshlrev_b32 v46, 7, v0\nv_readfirstlane_b32 {sWV}, v1\nv_and_b32 v0, 63, v0")
    if OPT['stamp']: P("s_memrealtime s[78:79]\ns_memtime s[76:77]")
    if OPT['pfcode']:
        P("s_getpc_b64 s[48:49]\ns_bfe_u32 s58, s2, 0x20003\ns_lshl_b32 s58, s58, 15\nv_add_u32 v46, s58, v46")
        P("v_min_u32 v46, CODE_PF_MAX, v46\nglobal_load_dword v47, v46, s[48:49]", tag='dummy')
    if OPT['stamp']:
        for i in range(80, 96): P(f's_mov_b32 s{i}, 0')
    P("s_and_b32 s37, s2, 1\ns_lshl_b32 s37, s37, 3")
    P("s_bfe_u32 s38, s2, 0x20001")
    P(f"s_lshr_b32 s39, s2, 3\ns_and_b32 {sMEM}, s39, 7\ns_add_u32 {sM}, s37, {sMEM}")
    P(f"s_lshl_b32 s51, s38, 1\ns_add_u32 s51, s51, s37\ns_lshr_b32 s52, s39, 2\ns_add_u32 s51, s51, s52")
    P(f"s_lshl_b32 s52, s39, 1\ns_and_b32 s52, s52, 6\ns_add_u32 s52, s52, s51\ns_mul_i32 s53, s52, 57\ns_lshr_b32 s53, s53, 9\ns_mul_i32 s53, s53, 9\ns_sub_u32 s52, s52, s53")
    P(f"s_lshr_b32 {sROT}, s39, 3\ns_sub_u32 {sROT}, {sROT}, 1\ns_mul_i32 s50, {sROT}, 3\ns_cmp_lt_u32 s39, 8\ns_cselect_b32 s50, s52, s50\ns_cselect_b32 {sM}, s51, {sM}")
    if not OPT['rot']: P(f"s_mov_b32 s50, 0")
    P(f"s_lshl_b32 s53, {sM}, 7\ns_lshl_b32 s54, {sWV}, 5\ns_add_u32 s53, s53, s54\ns_mul_i32 s53, s53, 1152")
    P(f"v_lshrrev_b32 v2, 3, v0\nv_mul_u32_u24 v2, 2304, v2\nv_lshrrev_b32 v3, 4, v0\nv_and_b32 v44, 7, v0\nv_xor_b32 v3, v3, v44\nv_lshlrev_b32 v3, 4, v3")
    P(f"v_add_u32 v44, v2, v3\nv_add_u32 v44, s53, v44\nv_xor_b32 v45, 64, v44\nv_add_u32 v45, {16*1152-1024}, v45")
    P(f"s_lshl_b32 s55, s50, 7\ns_mul_i32 s54, {sWV}, 12288")
    P("s_waitcnt lgkmcnt(0)")
    if OPT['stamp']: P("s_mov_b32 s94, s78\ns_mov_b32 s80, s76")
    P(f"s_mov_b32 s12, s4\ns_mov_b32 s13, s5\ns_mov_b32 s14, {2048*576*2}\ns_mov_b32 s15, 0x20000")
    stamp(P, 101)
    P.add(xdma(0, 0)); P.add(xdma(0, 1)); P.add(xdma(0, 2))
    stamp(P, 102)
    P(f"s_mov_b32 s24, s46\ns_mov_b32 s25, s47\ns_mov_b32 s26, {WS_BYTES}\ns_mov_b32 s27, 0x20000")
    P(f"s_mov_b32 s28, s44\ns_mov_b32 s29, s45\ns_mov_b32 s30, 256\ns_mov_b32 s31, 0x20000")
    P("s_cmp_lt_u32 s39, 8\ns_cbranch_scc1 L_attn")

def xdma(st, S):
    Q = Prog()
    Q(f"s_add_u32 m0, s54, {st*49152+S*4096}\ns_add_u32 s56, s55, 1152")
    Q(f"buffer_load_dwordx4 v44, {sX}, s55 offen lds\nbuffer_load_dwordx4 v45, {sX}, s55 offen offset:1024 lds", tag=f"x{3*st+S}")
    Q(f"s_add_u32 m0, m0, 2048\ns_add_u32 s55, s55, 128")
    Q(f"buffer_load_dwordx4 v44, {sX}, s56 offen lds\nbuffer_load_dwordx4 v45, {sX}, s56 offen offset:1024 lds", tag=f"x{3*st+S}")
    Q(f"s_cmp_eq_u32 s55, 1152\ns_cselect_b32 s55, 0, s55")
    return Q.l

def weave(main, extra, every):
    out = []; k = 0; cnt = 0
    for idx, ins in enumerate(main):
        out.append(ins); cnt += 1
        nxt = main[idx + 1] if idx + 1 < len(main) else None
        safe = nxt is None or ('scc' not in nxt.rd and 'm0' not in nxt.rd)
        if k < len(extra) and cnt >= every and safe:
            out += extra[k]; k += 1; cnt = 0
    for g in extra[k:]: out += g
    return out

def xphase(P, setup, frags, sums, sqs, dmas, nfirst=3):
    lead = OPT['xlead']
    late = [x for x in setup if x.kind == 'vmem']
    P.add([x for x in setup if x.kind != 'vmem'])
    for S in range(nfirst, lead + 1): P.add(xdma(S // 3, S % 3))
    dmas = dict(dmas); dmas[9] = dmas.get(9, []) + late
    stamp(P, 1); stamp(P, 103)
    def dots(S):
        L = []
        for (d, a, o, k) in frags[S]:
            for j in range(4): L += mk(f"v_dot2c_f32_bf16 v{sums[k][j%2]}, s57, v{d+j}\nv_dot2c_f32_bf16 v{sqs[k][j%2]}, v{d+j}, v{d+j}")
        return L
    for S in range(10):
        if S < 9:
            P(f"WAITV x{S}")
            if S in (0, 2, 5, 8): stamp(P, 104 + (0, 2, 5, 8).index(S))
            for n, (d, a, o, k) in enumerate(frags[S]): P(f"ds_read_b128 {vr(d,4)}, v{a} offset:{o}", tag=f"xr{S}")
        if S == 8: stamp(P, 2)
        if S >= 1:
            P(f"WAITL xr{S-1}")
            if S - 1 in (2, 5): P("s_barrier")
        extra = []
        if S + lead + 1 < 9: extra += dgroups(xdma((S + lead + 1) // 3, (S + lead + 1) % 3))
        if S in dmas: extra += dgroups(dmas[S])
        body = dots(S - 1) if S >= 1 else []
        P.add(weave(body, extra, max(1, len(body) // (len(extra) + 1))))
    stamp(P, 108)

RING = 24576; NSLOT = 5; HX = RING * NSLOT
vA1 = [[16, 17, 18], [19, 20, 21]]; vA2 = [[22, 23, 24], [25, 26, 27]]
vD1 = [28, 29, 30, 31]; vD2 = [32, 33, 34, 35]
vHW, vHR, vST = 36, 37, 38
ACC1 = 48; XR = 112
AF = 192

def flag_setup(P, vFLW, sj, tmpv, hop=False):
    P(f"s_lshl_b32 s66, {sM}, 2\ns_add_u32 s66, s66, {sWV}\ns_lshl_b32 s66, s66, 11\ns_lshl_b32 s67, {sj}, 7\ns_add_u32 s66, s66, s67\ns_add_u32 s66, s66, {WS_FLAG}")
    P(f"v_lshrrev_b32 {tmpv}, 5, v0\nv_lshlrev_b32 {tmpv}, 30, {tmpv}\nv_lshl_add_u32 {tmpv}, v0, 2, {tmpv}\nv_add_u32 v{vFLW}, s66, {tmpv}\nv_mov_b32 {tmpv}, 0")
    P(f"buffer_store_dword {tmpv}, v{vFLW}, {sWS}, 0 offen sc1", tag='fz')
    if hop: P(f"s_mov_b32 s37, {HFOFF}\nbuffer_store_dword {tmpv}, v{vFLW}, {sWS}, s37 offen sc1", tag='fz')
def handshake(sj, va, vb, xcc=False):
    Q = Prog()
    Q(f"s_lshl_b32 s66, {sM}, 2\ns_and_b32 s67, {sj}, 3\ns_add_u32 s66, s66, s67\ns_lshl_b32 s66, s66, 2\ns_lshl_b32 s67, {sWV}, 8\ns_add_u32 s66, s66, s67")
    Q(f"v_lshlrev_b32 {va}, 8, v0\nv_add_u32 {va}, s66, {va}")
    Q(f"s_getreg_b32 s66, hwreg(HW_REG_XCC_ID)\ns_and_b32 s66, s66, 15\ns_and_b32 s67, {sj}, 12\ns_add_u32 s67, s67, 12\ns_lshl_b32 s66, s66, s67\ns_add_u32 s66, s66, 1\nv_mov_b32 {vb}, s66")
    Q(f"buffer_atomic_add {vb}, {va}, {sDBG}, 0 offen sc1", tag='hsk', cost=8)
    return Q.l

def sel32(P, SEL):
    P("v_and_b32 v2, 1, v0\nv_lshlrev_b32 v2, 4, v2\nv_mov_b32 v3, 0x3f80\nv_lshlrev_b32 v2, v2, v3")
    P("v_bfe_u32 v3, v0, 2, 1\nv_lshlrev_b32 v3, 1, v3\nv_lshrrev_b32 v4, 4, v0\nv_cmp_eq_u32 vcc, v3, v4\nv_cndmask_b32 v2, 0, v2, vcc")
    P("v_bfe_u32 v3, v0, 3, 1\nv_lshlrev_b32 v3, 1, v3\nv_bfe_u32 v4, v0, 1, 1\nv_add_u32 v3, v3, v4")
    for j in range(4): P(f"v_cmp_eq_u32 vcc, {j}, v3\nv_cndmask_b32 v{SEL+j}, 0, v2, vcc")

def dgroups(lst):
    G = []; cur = []
    for x in lst:
        cur.append(x)
        if x.kind == 'vmem': G.append(cur); cur = []
    if cur: G[-1] += cur
    return G

def flat(groups): return [x for g in groups for x in g]

def ffn():
    P = Prog()
    P(f"s_mov_b32 s50, {sROT}" if OPT['rot'] else "s_mov_b32 s50, 0")
    P(f"s_add_u32 s51, s50, 1\ns_cmp_ge_u32 s51, 3\ns_cselect_b32 s51, 0, s51\ns_add_u32 s52, s51, 1\ns_cmp_ge_u32 s52, 3\ns_cselect_b32 s52, 0, s52")
    P(f"s_mul_i32 {sSL}, s38, 3\ns_add_u32 {sSL}, {sSL}, {sROT}")
    P(f"s_mov_b32 s16, s40\ns_mov_b32 s17, s41\ns_mov_b32 s18, {576*4608*2}\ns_mov_b32 s19, 0x20000")
    P(f"s_mov_b32 s20, s42\ns_mov_b32 s21, s43\ns_mov_b32 s22, {576*4608*2}\ns_mov_b32 s23, 0x20000")
    P(f"s_mul_i32 s59, {sSL}, 768")
    P(f"s_mul_i32 s63, {sSL}, {384*1152}\ns_mul_i32 s64, {sWV}, 6144")
    if OPT['fuse']: P(f"s_lshl_b32 {sSL}, {sROT}, 2\ns_add_u32 {sSL}, {sSL}, s38")
    P("s_load_dwordx2 s[72:73], s[0:1], 48")
    vFLW = 39
    if OPT['fuse']: flag_setup(P, vFLW, sSL, 'v14', True)
    def pf_w(which):
        Q = Prog()
        if which == 1:
            Q(f"s_mul_i32 s66, {sMEM}, {72*9216}\ns_add_u32 s66, s66, s59\ns_lshl_b32 s67, {sWV}, 6\ns_mov_b32 s68, {-(-(1<<32)//6)}")
            for i in range(2):
                Q(f"v_add_u32 v10, s67, v0")
                if i: Q(f"v_add_u32 v10, 256, v10\nv_min_u32 v10, 431, v10")
                Q(f"v_mul_hi_u32 v11, v10, s68\nv_lshlrev_b32 v10, 7, v10\nv_mul_u32_u24 v11, {9216-768}, v11\nv_add_u32 v10, v10, v11")
                Q(f"buffer_load_dword v47, v10, {sWA}, s66 offen", tag='dummy', cost=8)
        else:
            nb = OPT['nb2']; n = 108 // nb
            Q(f"s_lshl_b32 s71, {sMEM}, 2\ns_add_u32 s71, s71, {sWV}\ns_mul_i32 s71, s71, {108*128}\ns_add_u32 s71, s71, s63")
            Q(f"v_min_u32 v44, {n-1}, v0\nv_lshlrev_b32 v44, 7, v44")
            for i in range(nb):
                Q(f"buffer_load_dword v47, v44, {sWB}, s71 offen", tag='dummy', cost=8)
                if i < nb - 1: Q(f"s_add_u32 s71, s71, {n*128}")
        return Q.l
    P(f"v_lshrrev_b32 v2, 3, v0\nv_and_b32 v3, 7, v0")
    P(f"s_mul_i32 s58, {sWV}, 48\nv_add_u32 v4, s58, v2")
    P(f"v_bfe_u32 v5, v0, 4, 1\nv_lshlrev_b32 v5, 2, v5\nv_xor_b32 v5, v5, v3\nv_lshlrev_b32 v5, 4, v5")
    P(f"v_mul_u32_u24 v6, 9216, v4\nv_add_u32 v{vD1[0]}, v6, v5")
    for i in range(1, 4): P(f"v_add_u32 v{vD1[i]}, {i*(8*9216-1024)}, v{vD1[0]}")
    P(f"v_bfe_u32 v5, v0, 4, 2\nv_lshlrev_b32 v5, 1, v5\nv_xor_b32 v5, v5, v3\nv_lshlrev_b32 v5, 4, v5")
    P(f"v_mul_u32_u24 v6, 1152, v4\nv_add_u32 v{vD2[0]}, v6, v5")
    for i in range(1, 4): P(f"v_add_u32 v{vD2[i]}, {i*(8*1152-1024)}, v{vD2[0]}")
    for st in range(3): P(f"s_mul_i32 s{60+st}, s{50+st}, {192*9216}\ns_add_u32 s{60+st}, s{60+st}, s59")

    PA, PS = 40, 3
    g2 = [(0,0),(1,0),(2,0),(0,1),(1,1),(2,1)] + [(p,k) for p in range(3,9) for k in range(2)]
    def dma(s):
        slot = (s % NSLOT) * RING
        if s < 18:
            p, st = s // 3, s % 3
            srd, vD, base, add, big = sWA, vD1, f"s{60+st}", p * 128, 32 * 9216
        else:
            p, k = g2[s - 18]
            srd, vD, base, add, big = sWB, vD2, f"s{PA+p}", k * 192 * 1152, 32 * 1152
        t = f"d{s}"
        G = mk(f"s_add_u32 m0, s64, {slot}\ns_add_u32 s65, {base}, {add}")
        for i in range(4): G += mk(f"buffer_load_dwordx4 v{vD[i]}, {srd}, s65 offen offset:{1024*i} lds", tag=t, cost=8)
        G += mk(f"s_add_u32 m0, s64, {slot+4096}\ns_add_u32 s65, {base}, {add+big}")
        for i in range(2): G += mk(f"buffer_load_dwordx4 v{vD[i]}, {srd}, s65 offen offset:{1024*i} lds", tag=t, cost=8)
        return G
    P(f"v_lshrrev_b32 v2, 5, v0\nv_lshlrev_b32 v2, 12, v2\nv_bfe_u32 v3, v0, 2, 2\nv_lshlrev_b32 v3, 7, v3\nv_add_u32 v2, v2, v3")
    P(f"v_bfe_u32 v3, v0, 4, 1\nv_lshlrev_b32 v3, 5, v3\nv_add_u32 v2, v2, v3\nv_and_b32 v3, 3, v0\nv_lshlrev_b32 v3, 3, v3\nv_add_u32 v2, v2, v3")
    P(f"v_bfe_u32 v3, v0, 3, 1\nv_lshlrev_b32 v3, 6, v3\nv_add_u32 v{vA1[0][0]}, v2, v3\nv_xor_b32 v{vA1[1][0]}, 64, v{vA1[0][0]}")
    P(f"v_lshrrev_b32 v2, 2, v0\nv_lshlrev_b32 v2, 7, v2\nv_and_b32 v3, 3, v0\nv_lshlrev_b32 v3, 3, v3\nv_add_u32 v2, v2, v3")
    P(f"s_and_b32 s69, {sWV}, 1\ns_lshl_b32 s69, s69, 1\nv_bfe_u32 v3, v0, 3, 2\nv_xor_b32 v3, s69, v3\nv_lshlrev_b32 v3, 5, v3")
    P(f"v_add_u32 v{vA2[0][0]}, v2, v3\nv_xor_b32 v{vA2[1][0]}, 32, v{vA2[0][0]}")
    for vA in (vA1, vA2):
        for u in range(2):
            for b in (1, 2): P(f"v_add_u32 v{vA[u][b]}, {b*2*RING}, v{vA[u][0]}")
    P(f"v_bfe_u32 v2, v0, 4, 1\nv_lshlrev_b32 v2, 10, v2\nv_lshrrev_b32 v3, 5, v0\nv_lshlrev_b32 v3, 8, v3\nv_add_u32 v2, v2, v3")
    P(f"v_and_b32 v3, 15, v0\nv_lshlrev_b32 v3, 4, v3\nv_add_u32 v2, v2, v3\ns_lshl_b32 s69, {sWV}, 11\ns_add_u32 s69, s69, {HX}\nv_add_u32 v{vHW}, s69, v2")
    if OPT['fuse']: P(f"s_and_b32 s69, {sSL}, 3\ns_lshl_b32 s69, s69, 10\nv_xor_b32 v{vHW}, s69, v{vHW}")
    P(f"v_lshlrev_b32 v{vST}, 4, v0\ns_lshr_b32 s69, {sWV}, 1\ns_lshl_b32 s69, s69, 12\ns_add_u32 s69, s69, {HX}\nv_add_u32 v{vHR}, s69, v{vST}")
    P(f"s_lshl_b32 s70, {sM}, 4\ns_add_u32 s70, s70, {sSL}\ns_lshl_b32 s70, s70, 1\ns_lshr_b32 s69, {sWV}, 1\ns_add_u32 s70, s70, s69")
    P(f"s_mul_i32 s70, s70, 18\ns_and_b32 s69, {sWV}, 1\ns_add_u32 s70, s70, s69\ns_lshl_b32 s70, s70, 12")
    P(f"s_lshr_b32 s66, {sSL}, 2\ns_mul_i32 s67, {sM}, 43\ns_lshr_b32 s67, s67, 7")
    P(f"s_mul_i32 s68, s67, 3\ns_sub_u32 s68, {sM}, s68\ns_add_u32 s68, s68, s66\ns_add_u32 s68, s68, 1")
    P(f"s_cmp_ge_u32 s68, 3\ns_cselect_b32 s69, 3, 0\ns_sub_u32 s68, s68, s69")
    P(f"s_cmp_ge_u32 s67, 3\ns_cselect_b32 s69, 3, 0\ns_sub_u32 s67, s67, s69")
    if not OPT['fuse']: P("s_mov_b32 s67, 0\ns_mov_b32 s68, 0")
    for ph in range(3):
        for k in range(3):
            p = 3 * ph + k
            P(f"s_mul_i32 s69, s68, 3\ns_add_u32 s69, s69, s67\ns_lshl_b32 s{PA+p}, s69, 7\ns_add_u32 s{PA+p}, s{PA+p}, s63\ns_lshl_b32 s{PS+p}, s69, 13\ns_add_u32 s{PS+p}, s{PS+p}, s70")
            P("s_add_u32 s67, s67, 1\ns_cmp_eq_u32 s67, 3\ns_cselect_b32 s67, 0, s67")
        if ph < 2: P("s_add_u32 s68, s68, 1\ns_cmp_eq_u32 s68, 3\ns_cselect_b32 s68, 0, s68")
    JS = 147456
    P(f"s_and_b32 s67, {sSL}, 3")
    for d in range(4): P(f"s_xor_b32 s{96+d}, s67, {d}\ns_mul_i32 s{96+d}, s{96+d}, {JS}\ns_add_u32 s{96+d}, s{96+d}, {1024*d}")
    P(f"s_mul_i32 s71, {sSL}, {JS}\ns_lshl_b32 s50, {sM}, 3\ns_add_u32 s50, s50, s67\ns_and_b32 s68, {sWV}, 2\ns_lshl_b32 s68, s68, 1\ns_add_u32 s50, s50, s68\ns_mul_i32 s50, s50, 18\ns_and_b32 s68, {sWV}, 1\ns_add_u32 s50, s50, s68\ns_lshl_b32 s50, s50, 10\ns_add_u32 s50, s50, {WS_S}")
    P(f"s_sub_u32 s68, 3, s66\ns_mul_i32 s101, s68, {4*JS}")
    P(f"s_add_u32 s68, s66, 1\ns_cmp_ge_u32 s68, 3\ns_cselect_b32 s68, 0, s68\ns_lshl_b32 s69, s68, 2\ns_add_u32 s51, s69, s67\ns_sub_u32 s68, s68, s66\ns_mul_i32 s100, s68, {4*JS}")
    P(f"s_mul_i32 s49, s66, {4*JS}\ns_sub_u32 s49, s49, s71\ns_lshl_b32 s68, s66, 2\ns_lshl_b32 s53, 15, s68\ns_lshl_b32 s68, 1, {sSL}\ns_andn2_b32 s53, s53, s68\ns_mov_b32 s52, 0xf000")
    P(f"v_and_b32 v2, 31, v0\nv_lshlrev_b32 v2, 7, v2\nv_add_u32 v2, s54, v2\nv_bfe_u32 v3, v0, 1, 3\nv_lshrrev_b32 v4, 5, v0\nv_lshlrev_b32 v4, 2, v4\nv_xor_b32 v3, v3, v4\nv_lshlrev_b32 v3, 4, v3")
    P(f"v_add_u32 v80, v2, v3\nv_xor_b32 v81, 16, v80\nv_xor_b32 v82, 32, v80\nv_xor_b32 v83, 48, v80")
    for j in range(4): P(f"v_add_u32 v{84+j}, 98304, v{80+j}")
    SEL = 40
    sel32(P, SEL)
    P("v_mov_b32 v8, 0\nv_mov_b32 v9, 0\nv_mov_b32 v12, 0\nv_mov_b32 v13, 0\ns_mov_b32 s57, 0x3f803f80")
    P(f"s_waitcnt lgkmcnt(0)\ns_mov_b32 s74, {2048*576*2}\ns_mov_b32 s75, 0x20000")
    setup = P.l; P.l = []
    fr = [[(XR + 4 * (4 * S + f), (80 if S < 6 else 84) + f, ((S // 3) % 2) * 49152 + (S % 3) * 4096, 0) for f in range(4)] for S in range(9)]
    d0, d1, d2 = dma(0), dma(1), dma(2)
    xphase(P, setup, fr, [[8, 9]], [[12, 13]], {5: d0[:6], 6: d0[6:], 7: d1[:6], 8: d1[6:] + (d2[:6] if OPT['dpre'] == 3 else []), 9: d2[6:] if OPT['dpre'] == 3 else []})
    P("v_add_f32 v8, v8, v9\nv_add_f32 v12, v12, v13\nv_mov_b32 v9, v8\nv_mov_b32 v13, v12\nv_permlane32_swap_b32 v8, v9\nv_permlane32_swap_b32 v12, v13\nv_add_f32 v8, v8, v9\nv_add_f32 v12, v12, v13")
    def um(F): return mk(f"v_mfma_f32_32x32x16_bf16 {vr(ACC1+32+16*(F%2),16)}, {vr(SEL,4)}, {vr(XR+4*F,4)}, 0")
    def nv(F):
        d = ACC1 + 32 + 16 * (F % 2); x = XR + 4 * F
        o = []
        for j in range(8): o += mk(f"v_fma_f32 v{d+j}, v{d+j}, v2, v3")
        for j in range(4): o += mk(f"v_cvt_pk_bf16_f32 v{x+j}, v{d+2*j}, v{d+2*j+1}")
        return o
    P.add(um(0)); P.add(um(1))
    ln_stats(P, 'v8', 'v12', 'v4', 'v2', 'v3')
    P(f"v_mul_f32 v2, {hx(LOG2E)}, v2\nv_mul_f32 v3, v4, v2")

    uses = []
    for p in range(6):
        for st in range(3):
            s = 3 * p + st; slot = s % NSLOT
            for S in range(3):
                for ss in range(4):
                    F = st * 12 + S * 4 + ss
                    for u in range(2):
                        n = len(uses); af = AF + 4 * (n % 16)
                        off = (slot % 2) * RING + (64 * S + 8 * ss) * 128
                        va = vA1[u][slot // 2]
                        rd = mk(f"ds_read_b64_tr_b16 {ar(af,2)}, v{va} offset:{off}\nds_read_b64_tr_b16 {ar(af+2,2)}, v{va} offset:{off+512}", tag=f"r{n}")
                        acc = vr(ACC1 + 32 * (p % 2) + 16 * u, 16)
                        mf = mk(f"v_mfma_f32_32x32x16_bf16 {acc}, {ar(af,4)}, {vr(XR+4*F,4)}, {'0' if F == 0 else acc}")
                        uses.append((s, rd, mf))
    N1 = len(uses)
    ACC2 = XR; STG = XR + 128
    for si, (p, k) in enumerate(g2):
        s = 18 + si; slot = s % NSLOT
        for kk in range(6):
            ks = 6 * k + kk
            for u in range(2):
                n = len(uses); af = AF + 4 * (n % 16)
                off = (slot % 2) * RING + 32 * kk * 128
                va = vA2[u][slot // 2]
                rd = mk(f"ds_read_b64_tr_b16 {ar(af,2)}, v{va} offset:{off}\nds_read_b64_tr_b16 {ar(af+2,2)}, v{va} offset:{off+2048}", tag=f"r{n}")
                mf = []
                for j in range(4):
                    acc = vr(ACC2 + 32 * (p % 4) + 8 * j + 4 * u, 4)
                    mf += mk(f"v_mfma_f32_16x16x32_bf16 {acc}, {ar(af,4)}, {ar(16*ks+4*j,4)}, {'0' if ks == 0 else acc}")
                uses.append((s, rd, mf))
    NU = len(uses)
    PD1, PD2 = OPT['pd1'], OPT['pd2']
    rd_at = {}
    for n in range(NU):
        if n < N1: g = n - PD1
        else:
            g = n - PD2
            if g < N1: g = N1 - 1 - 2 * (N1 - 1 - g)
        rd_at.setdefault(g, []).append(n)
    bar_at = {}
    for g in sorted(rd_at):
        for n in rd_at[g]:
            s = uses[n][0]
            if s not in bar_at: bar_at[s] = g
    extra_lw = {}
    def hw_tag(ks): return f"hw{ks}"
    def rstage(ks):
        p = ks // 2
        if p <= 3: return 3 * (p + 2) + 1
        if p == 4: return 19
        return 21
    for ks in range(1, 12, 2): extra_lw[rstage(ks)] = hw_tag(ks)
    def barrier(s):
        if s in extra_lw: return mk(f"WAITVL d{s}, {extra_lw[s]}\ns_barrier")
        return mk(f"WAITV d{s}\ns_barrier")
    P.add(barrier(0))
    for g in sorted(rd_at):
        if g < 0:
            for n in rd_at[g]: P.add(uses[n][1])
    P.add(nv(0))
    P("WAITL r3")
    stamp(P, 3)
    S16 = 16
    AOFF = {3: OPT['a3'], 4: OPT['a4'], 5: 1, 6: 1, 7: 1, 8: 0}
    def ustart(p): return N1 + 12 * (6 + 2 * (p - 3))
    nacc = {ustart(p) + AOFF[p] + 23: p for p in range(3, 8)} if OPT['fuse'] else {}
    gacc = {}
    def HB(p): return 48 + 16 * (p % 2)
    def accum(dst, src, first=False):
        return mk(f"v_mfma_f32_16x16x32_bf16 {vr(dst,4)}, {vr(S16+2,4)}, {src}, {'0' if first else vr(dst,4)}\nv_mfma_f32_16x16x32_bf16 {vr(dst+4,4)}, {vr(S16,4)}, {src}, {'0' if first else vr(dst+4,4)}")
    def hopacc(p):
        L = []
        for j in range(4): L += accum(ACC2 + 32 * (p % 4) + 8 * j, vr(HB(p) + 4 * j, 4))
        return L[0::2] + L[1::2]
    SC = Sched()
    gi = {}
    gu = {}
    for n in range(NU):
        mf = uses[n][2]
        if n in nacc:
            SC.tail[-1] += mk(f"WAITV hl{nacc[n]}")
            for m_ in hopacc(nacc[n]): gacc[nacc[n]] = SC.gap([m_], 16)
        if n < 72 and n % 2 == 0 and n // 2 + 2 < 36:
            gu[n // 2 + 2] = SC.gap(um(n // 2 + 2), 32)
        bar = []
        for s, g in bar_at.items():
            if g == n: bar = barrier(s)
        rds = []
        for nn in rd_at.get(n, []): rds += uses[nn][1]
        if n < N1:
            g = SC.gap(mf, 32); gi[n] = g
            SC.mand[g] += bar + rds
            if n % 4 == 3 and n + 1 < N1: SC.tail[g] += mk(f"WAITL r{n+4}")
            if n == N1 - 1: SC.tail[g] += mk(f"WAITL r{n+2}")
        else:
            gs = [SC.gap([m], 16) for m in mf]; gi[n] = gs[0]
            if bar:
                SC.mand[gs[0]] += bar
                for i, t in enumerate(rds): SC.mand[gs[1 + i]].append(t)
            else:
                for i, t in enumerate(rds): SC.mand[gs[2 * i]].append(t)
            if (n - N1) % 2 == 1 and n + 1 < NU: SC.tail[gs[3]] += mk(f"WAITL r{n+2}")
    gi[NU] = len(SC.head)

    def silu(ks):
        p, u = ks // 2, ks % 2
        a = ACC1 + 32 * (p % 2) + 16 * u
        F = []
        T = [1, 2, 3, 4, 5, 6, 7, 46]
        stg = 8
        def E(q, j): return mk(f"v_exp_f32_e64 v{T[4*(q%2)+j]}, -v{a+4*q+j}")
        def Ad(q, j): return mk(f"v_add_f32 v{T[4*(q%2)+j]}, 1.0, v{T[4*(q%2)+j]}")
        def R(q, j): return mk(f"v_rcp_f32 v{T[4*(q%2)+j]}, v{T[4*(q%2)+j]}")
        def M(q, j): return mk(f"v_mul_f32 v{T[4*(q%2)+j]}, v{a+4*q+j}, v{T[4*(q%2)+j]}")
        def C(q):
            d = stg + 4 * (q % 2) + 2 * (q // 2); t = T[4*(q%2):4*(q%2)+4]
            o = mk(f"v_cvt_pk_bf16_f32 v{d}, v{t[0]}, v{t[1]}\nv_cvt_pk_bf16_f32 v{d+1}, v{t[2]}, v{t[3]}")
            if q >= 2: o += mk(f"ds_write_b128 v{vHW}, {vr(stg+4*(q%2),4)} offset:{(ks%4)*8192+512*(q%2)}", tag=hw_tag(ks), cost=OPT['wcost'])
            return o
        for q in range(4):
            F += E(q, 0) + E(q, 1)
            F += E(q, 2) + Ad(q, 0) + Ad(q, 1)
            F += E(q, 3) + Ad(q, 2)
            F += R(q, 0) + Ad(q, 3)
            F += R(q, 1) + M(q, 0)
            F += R(q, 2) + M(q, 1)
            F += R(q, 3) + M(q, 2)
            c = C(q)
            F += [c[0]] + M(q, 3) + c[1:]
        return F
    def hread(ks):
        return flat([mk(f"ds_read_b128 {ar(16*ks+4*j,4)}, v{vHR} offset:{(ks%4)*8192+1024*j}", tag=f"hr{ks}") for j in range(4)])
    def epi(p):
        a = ACC2 + 32 * (p % 4)
        F = []
        for j in range(4):
            if OPT['fuse'] and p >= 6 and j == 0: continue
            for u in range(2):
                for h in range(2): F += mk(f"v_cvt_pk_bf16_f32 v{STG+4*j+2*u+h}, v{a+8*j+4*u+2*h}, v{a+8*j+4*u+2*h+1}")
            F += mk(f"buffer_store_dwordx4 {vr(STG+4*j,4)}, v{vST}, {sWS}, s{PS+p} offen offset:{1024*j}{STMOD if (p >= 6 or (p < 3 and OPT['hop0']) or not OPT['fuse']) else ''}", tag=f'st{p}', cost=8)
        return F

    for s in range(0, 33):
        g0 = gi[bar_at[s]] + 1 if bar_at[s] >= 0 else 0
        g1 = gi[bar_at[s + 1]]
        SC.place((dma(2) if (s == 0 and OPT['dpre'] == 2) else []) + dma(s + 3), g0, g1, 'spread', f'dma{s+3}')
    for ks in range(12):
        g0 = gi[bar_at[rstage(ks)]] + 1 + (ks % 2) * 8
        SC.place(hread(ks), g0, g0 + 8, 'spread', f'hr{ks}')
    if OPT['fuse']: SC.place(handshake(sSL, 'v44', 'v45', True), gi[bar_at[3]] + 1, gi[bar_at[3]] + 12, 'spread', 'hsk')
    if OPT['pfw'] & 1: SC.place(pf_w(1), 20, 70, 'spread', 'pf1')
    if OPT['pfw'] & 2: SC.place(pf_w(2), gi[90], gi[400], 'spread', 'pf2')
    for F in range(1, 36):
        g0 = gu.get(F + 1, gi[2 * (F - 1)]); g1 = gi[2 * (F - 1) + 1] + 1
        SC.place(nv(F), g0, g1, 'asap', f'nv{F}')
    for p in range(5):
        b = 72 * (p + 1)
        SC.place(silu(2 * p) + silu(2 * p + 1), gi[b + 2], gi[b + 72], 'asap', f'silu{p}')
    SC.place(silu(10) + silu(11), gi[N1] + 6, gi[bar_at[21]] - 2, 'asap', 'silu5')
    last_stage = {}; gepi = {}
    for si, (p, k) in enumerate(g2):
        if k == 1: last_stage[p] = si
    for p in range(8):
        g0 = gi[N1 + 12 * (last_stage[p] + 1)] + 5
        if p in gacc: g0 = gacc[p] + 5
        gepi[p] = SC.place(epi(p), g0, g0 + (42 if not OPT['fuse'] else 30), 'spread' if not OPT['fuse'] else 'asap', f'epi{p}')[-1]
    slow = []
    def gs(si, off=0): return gi[N1 + 12 * si] + off
    if OPT['fuse']:
        vFR, vFV, vXO, vC = 28, 29, 30, 31
        def site(name, load, tag, chk, g0, g1):
            L = mk(f"WAITV {tag}") + mk(chk) + mk(f"s_cbranch_scc0 L_slow{name}\nL_back{name}:")
            head, tailp = L[:-4], L[-4:]
            pos = SC.place(head, g0, g1, 'asap', name)
            SC.fill[pos[-1] + 1] += tailp
            slow.extend(mk(f"L_slow{name}:\ns_mov_b32 s68, 0\nL_spin{name}:\n{load}\ns_waitcnt vmcnt(0)\n{chk}\ns_cbranch_scc1 L_back{name}\ns_sleep 1\ns_add_u32 s68, s68, 1\ns_cmp_lt_u32 s68, 0x80000\ns_cbranch_scc1 L_spin{name}\ns_branch L_back{name}", cond=True))
            return pos[-1] + 2
        hload = f"buffer_load_dword v41, v40, {sDBG}, 0 offen sc1"
        SC.place(mk(f"s_lshl_b32 s66, {sM}, 4\nv_and_b32 v40, 3, v0\nv_lshlrev_b32 v40, 2, v40\nv_add_u32 v40, s66, v40") + mk(hload, tag='hc', cost=8), gi[130], gi[142], 'spread', 'hc')
        g = site('H', hload, 'hc', f"v_and_b32 v42, 0xff, v41\nv_cmp_le_u32 vcc, 4, v42\ns_and_b32 s66, vcc_lo, 15\ns_cmp_eq_u32 s66, 15", gi[170], gi[180])
        MD = mk(f"v_readlane_b32 s66, v41, s38\ns_lshr_b32 s67, s66, 4\ns_xor_b32 s66, s66, s67")
        pos = SC.place(MD, g, gi[190], 'spread', 'mode')
        fb = "s_or_b32 s66, s66, 0x1000\n" if OPT['forcefb'] else ""
        SC.fill[pos[-1] + 1] += mk(f"{fb}s_and_b32 s66, s66, 0xff000\ns_cselect_b32 s58, 0, 1\ns_cselect_b32 s59, s100, 0\ns_cselect_b32 s100, s100, s101\ns_cselect_b32 s101, 0, s101")
        SC.place(mk("\n".join(f"s_add_u32 s{PS+p}, s{PS+p}, s101" for p in range(6))), pos[-1] + 2, gi[205], 'spread', 'psfix')
        SC.place(mk(f"buffer_load_dword v47, v{vFLW}, {sWS}, s37 offen sc1", tag='dummy', cost=8), gi[205], gi[215], 'asap', 'pfflag')
        if OPT['pfh'] & 2:
            L = []
            for p in range(3):
                for j in range(4): L += mk(f"buffer_store_dwordx4 {vr(XR,4)}, v{vST}, {sWS}, s{PS+p} offen offset:{1024*j} sc1", tag='pw', cost=16)
            SC.place(L, gi[208], gi[300], 'spread', 'prewrite')
        if OPT['pfh'] & 1:
            hs = OPT['hsplit']
            L = mk(f"v_and_b32 v40, {32//hs-1}, v0\nv_lshlrev_b32 v40, 7, v40") + (mk("WAITV pw") if OPT['pfh'] & 2 else [])
            for p in range(3):
                for h in range(hs): L += mk(f"buffer_load_dword v47, v40, {sWS}, s{PS+p} offen offset:{h*4096//hs} sc1", tag='dummy', cost=8)
            SC.place(L, gi[OPT['pfh0']], gi[425], 'spread', 'pfh')
        SQ = Prog()
        SQ(f"s_lshl_b32 s66, {sM}, 2\ns_add_u32 s67, s66, {sWV}\ns_lshl_b32 s67, s67, 11\ns_and_b32 s68, {sWV}, 2\ns_add_u32 s66, s66, s68\ns_bfe_u32 s68, {sSL}, 0x10001\ns_add_u32 s66, s66, s68\ns_lshl_b32 s66, s66, 11")
        SQ(f"s_lshl_b32 s51, s51, 7\ns_add_u32 s51, s51, s67\ns_add_u32 s51, s51, {WS_FLAG + HFOFF}\nv_mov_b32 v43, s51")
        SQ(f"v_and_b32 v40, 15, v0\nv_mov_b32 v41, s67\nv_mov_b32 v42, s66\nv_cmp_gt_u32 vcc, 12, v40\nv_lshlrev_b32 v40, 7, v40\nv_add_u32 v40, {WS_FLAG}, v40\nv_cndmask_b32 v41, v42, v41, vcc\nv_add_u32 v{vFR}, v40, v41")
        SQ(f"s_or_b32 vcc_lo, s52, s53\ns_mov_b32 vcc_hi, 0\nv_mov_b32 v40, 2.0\nv_cndmask_b32 v{vFR}, v40, v{vFR}, vcc")
        sel_consts(SQ, S16, 'v40', 'v41', 'v42')
        SQ('s_mov_b32 s16, s24\ns_mov_b32 s17, s25\ns_mov_b32 s57, 0xffff0000')
        SQ(f"s_lshl_b32 s66, {sM}, 7\ns_and_b32 s67, {sWV}, 2\ns_lshl_b32 s67, s67, 5\ns_add_u32 s66, s66, s67\ns_and_b32 s67, {sSL}, 2\ns_lshl_b32 s67, s67, 4\ns_add_u32 s66, s66, s67\ns_and_b32 s67, {sSL}, 1\ns_add_u32 s66, s66, s67")
        SQ(f"v_and_b32 v40, 15, v0\nv_lshlrev_b32 v40, 1, v40\nv_add_u32 v40, s66, v40\nv_mul_u32_u24 v40, 1152, v40\nv_lshrrev_b32 v41, 4, v0\nv_lshlrev_b32 v41, 3, v41\ns_and_b32 s67, {sWV}, 1\ns_lshl_b32 s67, s67, 6\nv_add3_u32 v{vXO}, v40, v41, s67\nv_lshlrev_b32 v41, 3, v0")
        SC.place(SQ.l, gs(3, 0), gs(6), 'asap', 'tailsetup')
        fload = f"buffer_load_dword v{vFV}, v{vFR}, {sWS}, 0 offen sc1"
        def chk(thr, mask): return f"v_cmp_le_u32 vcc, {thr}, v{vFV}\ns_and_b32 s66, vcc_lo, {mask}\ns_cmp_eq_u32 s66, {mask}"
        def fstore(val): return mk(f"buffer_store_dword v{vC}, v{vFLW}, {sWS}, 0 offen sc1", tag=f'fl{val}', cost=8)
        for p in range(6):
            g = gepi[p] + (OPT['fdel0'] if (p < 3 and OPT['hop0']) else OPT['fdel'])
            pos = SC.place(mk(f"v_mov_b32 v{vC}, {p+1}") + mk(f"WAITV st{p}"), g, g + 20, 'asap', f'flag{p}')
            hst = f"buffer_store_dword v{vC}, v{vFLW}, {sWS}, s37 offen"
            SC.fill[pos[-1] + 1] += mk(f"s_cmp_eq_u32 s58, 0\ns_cbranch_scc1 L_rel{p}") + mk(hst, tag=f'fl{p+1}', cost=8) + mk(f"L_relb{p}:")
            slow.extend(mk(f"L_rel{p}:\nbuffer_wbl2 sc1\ns_waitcnt vmcnt(0)\n{hst} sc1\ns_branch L_relb{p}", cond=True))
        pload = f"buffer_load_dword v{vFV}, v43, {sWS}, 0 offen sc1"
        def hloads(p):
            L = mk(f"s_add_u32 s69, s{PS+p}, {'s59' if p < 6 else 's100'}")
            for j in range(4): L += mk(f"buffer_load_dwordx4 {vr(HB(p)+4*j,4)}, v{vST}, {sWS}, s69 offen offset:{1024*j} sc1", tag=f"hl{p}", cost=8)
            return L
        ghl = {}
        for p in range(3, 9):
            u0 = ustart(p) + AOFF[p]
            SC.place(mk(pload, tag=f'pp{p}', cost=8), gi[u0 - 1], gi[u0 + 1], 'asap', f'pp{p}')
            ck = f"v_cmp_le_u32 vcc, {p-2}, v{vFV}"
            pos = SC.place(mk(f"WAITV pp{p}") + mk(ck), gi[u0 + OPT['pchk']], gi[u0 + OPT['pchk'] + 1], 'asap', f'chk{p}')
            SC.fill[pos[-1] + 2] += mk(f"s_cbranch_vccz L_slowP{p}\nL_backP{p}:")
            slow.extend(mk(f"L_slowP{p}:\n" + (f"s_add_u32 s93, s93, {1 << (4*(p-3))}\n" if OPT['stamp'] else "") + f"s_mov_b32 s68, 0\nL_spinP{p}:\n{pload}\ns_waitcnt vmcnt(0)\n{ck}\ns_add_u32 s68, s68, 1\ns_nop 4\ns_cbranch_vccnz L_backP{p}\ns_cmp_lt_u32 s68, 0x80000\ns_cbranch_scc1 L_spinP{p}\ns_branch L_backP{p}", cond=True))
            ghl[p] = SC.place(hloads(p), pos[-1] + 3, gi[u0 + OPT['pchk'] + 5], 'asap', f'hl{p}')[-1]
        sQ = 's[16:19]'
        RS = [80, 84, 88]
        def sloads(srd, tag, cond=False):
            L = []
            for k in range(3):
                L += mk(f"s_lshl_b32 s69, s{60+k}, 4\ns_add_u32 s69, s69, s50", cond=cond)
                for u in range(2): L += mk(f"buffer_load_dwordx2 {vr(RS[k]+2*u,2)}, v41, {srd}, s69 offen offset:{512*u} sc1", tag=tag, cond=cond, cost=8)
            return L
        XV = 4
        L = []
        for k in range(3):
            L += mk(f"s_sub_u32 s{60+k}, s{PA+6+k}, s63")
            L += mk(f"buffer_load_dwordx2 {vr(XV+4*k,2)}, v{vXO}, {sX}, s{60+k} offen\nbuffer_load_dwordx2 {vr(XV+4*k+2,2)}, v{vXO}, {sX}, s{60+k} offen offset:32", tag='xo', cost=8)
        L += mk(f"buffer_load_dword v42, v{vFR}, {sWS}, 0 offen sc1", tag='p0', cost=8)
        SC.place(L, ghl[7] + 1, gs(15, 40), 'asap', 'xo')
        pos = SC.place(mk("WAITV p0\nv_cmp_le_u32 s[70:71], 9, v42"), ghl[8] - 6, ghl[8] + 8, 'asap', 'chkS')
        SC.fill[pos[-1] + 1] += mk(f"s_and_b32 s66, s70, s52\ns_cmp_eq_u32 s66, s52\ns_cselect_b32 s18, {WS_BYTES}, 0\ns_cselect_b32 s54, 1, 0")
        g = SC.place(sloads(sQ, 'ls') + mk(fload, tag='p1', cost=8), max(ghl[8] + 1, pos[-1] + 2), gs(17, 40), 'asap', 'ls')[-1]
        SC.place(mk(f"v_mov_b32 v{vC}, 8") + mk("WAITV st7") + fstore(8), max(g + 1, gs(17, 32)), len(SC.head), 'asap', 'flag8')
    print("; gemm2 per-stage planned cycles:", [sum(16 + max(0, SC.used(g) - SC.cap[g]) for g in range(gs(i), gs(i + 1) if i < 17 else len(SC.head))) for i in range(18)], file=sys.stderr)
    print("; overflow cycles: pass0 %d, pass1-5 %d, gemm2 %d" % (SC.overflow(0, gi[72]), SC.overflow(gi[72], gi[N1]), SC.overflow(gi[N1])), file=sys.stderr)
    marks = [gi[72], gi[144], gi[N1], gi[N1 + 72]]
    ids = [4, 5, 6, 7]
    if OPT['marks'] == 2:
        marks = [gs(12), gs(13), gs(14), gs(15), gs(16), gs(17), len(SC.head)]; ids = [1, 2, 3, 4, 5, 6, 7]
    if OPT['marks'] == 3:
        marks = [gs(6), gs(7), gs(8), gs(9), gs(10), gs(11), gs(12)]; ids = [1, 2, 3, 4, 5, 6, 7]
    if OPT['marks'] == 5:
        marks = [gs(0), gs(1), gs(2), gs(3), gs(4), gs(5), gs(6)]; ids = [1, 2, 3, 4, 5, 6, 7]
    if OPT['marks'] == 6:
        marks = [gi[72], gi[144], gi[216], gi[288], gi[360], gi[N1]]; ids = [2, 3, 4, 5, 6, 7]
    if OPT['marks'] == 1:
        marks = [gs(0), gs(6), gs(8), gs(10), gs(12), gs(14), gs(16)]; ids = [1, 2, 3, 4, 5, 6, 7]
    prev = 0
    for i, g in zip(ids, marks):
        P.add(SC.emit(prev, g)); stamp(P, i); prev = g
    P.add(SC.emit(prev))
    if OPT['fuse']:
        P("WAITV hl8"); P.add(hopacc(8))
    P.add(epi(8))
    k0 = [i for i, x in enumerate(P.l) if x.text.startswith('WAITL r3')][0]
    def keep(x):
        if OPT['nosilu'] and x.base in ('v_exp_f32', 'v_rcp_f32', 'v_add_f32', 'v_mul_f32'): return False
        if OPT['nodma'] and x.kind == 'vmem' and 'lds' in x.mods: return False
        if OPT['nodma'] and x.op == 'WAITV': return False
        if OPT['nobar'] and x.kind == 'bar': return False
        if OPT['nost'] and (x.tag or '').startswith('st'): return False
        return True
    def fix(x):
        if OPT['nodma'] and x.op == 'WAITVL': return I('WAITL ' + x.ops[1])
        return x
    P.l = P.l[:k0] + [fix(x) for x in P.l[k0:] if keep(x)]
    stamp(P, 8)
    if OPT['fuse']:
        G = [ACC2 + 32 * ((6 + k) % 4) for k in range(3)]
        SS = [g + 8 for g in G]
        XU = 144
        def cloads(ks, srd, tag, cond=False):
            for k in ks:
                P(f"s_add_u32 s67, s{PS+6+k}, s49", cond=cond)
                for d in range(1, 4): P(f"s_add_u32 s69, s67, s{96+d}\nbuffer_load_dwordx4 {ar(12*k+4*(d-1),4)}, v{vST}, {srd}, s69 offen sc1", tag=tag, cond=cond)
        def spin(name, thr, mask):
            P(f"s_mov_b32 s68, 0\nL_spin{name}:", cond=True)
            P(fload + "\ns_waitcnt vmcnt(0)\n" + chk(thr, mask) + f"\ns_cbranch_scc1 L_done{name}\ns_sleep {OPT['slp']}\ns_add_u32 s68, s68, 1\ns_cmp_lt_u32 s68, 0x80000\ns_cbranch_scc1 L_spin{name}\nL_done{name}:", cond=True)
        def unitT(ks):
            for k in ks:
                for d in range(3): P.add(accum(G[k], ar(12 * k + 4 * d, 4)))
            for k in ks:
                g_, t_ = G[k], G[k] + 16
                for i in range(8): P(f"v_exp_f32_e64 v{t_+i}, -v{g_+i}")
                for i in range(8): P(f"v_fma_f32 v{t_+i}, v{t_+i}, s71, s71")
                for i in range(8): P(f"v_rcp_f32 v{t_+i}, v{t_+i}")
                for i in range(8): P(f"v_mul_f32 v{g_+i}, v{g_+i}, v{t_+i}")
        P("WAITV p1\n" + chk(8, 's53') + f"\ns_cselect_b32 s18, {WS_BYTES}, 0\ns_cselect_b32 s55, 1, 0")
        cloads([0, 1], sQ, 'lc0')
        P(chk(9, 's53') + f"\ns_cselect_b32 s18, {WS_BYTES}, 0\ns_cselect_b32 s56, 1, 0")
        cloads([2], sQ, 'lc2')
        P(f"v_mov_b32 v{vC}, 9\ns_mov_b32 s71, {hx(LOG2E)}")
        for d in range(12): P(f"v_lshlrev_b32 v{XU+2*d}, 16, v{XV+d}\nv_and_b32 v{XU+2*d+1}, s57, v{XV+d}")
        P("WAITV st8"); P.add(fstore(9)); stamp(P, 12)
        P("s_cmp_eq_u32 s55, 1\ns_cbranch_scc1 L_have8")
        spin('8', 8, 's53')
        cloads([0, 1], sWS, 'lc0b', True); P("s_waitcnt vmcnt(0)", cond=True)
        P("L_have8:")
        P(fload, tag='p2')
        P("WAITV lc0")
        stamp(P, 9)
        unitT([0, 1])
        P("s_waitcnt vmcnt(0)")
        P("s_cmp_eq_u32 s54, 1\ns_cbranch_scc1 L_chk9")
        P(chk(9, 's52') + "\ns_cbranch_scc0 L_chk9\ns_mov_b32 s54, 1", cond=True)
        P.add(sloads(sWS, 'ls2', True))
        P("L_chk9:")
        P("s_cmp_eq_u32 s56, 1\ns_cbranch_scc1 L_have9")
        P(chk(9, 's53') + "\ns_cbranch_scc1 L_done9", cond=True)
        spin('9', 9, 's53')
        cloads([2], sWS, 'lc2b', True)
        P("L_have9:")
        P("s_waitcnt vmcnt(0)")
        stamp(P, 10)
        unitT([2])
        P("s_cmp_eq_u32 s54, 1\ns_cbranch_scc1 L_haveS")
        spin('S', 9, 's52')
        P.add(sloads(sWS, 'ls3', True)); P("s_waitcnt vmcnt(0)", cond=True)
        P("L_haveS:")
        for k in range(3):
            g_, s_, pk = G[k], SS[k], G[k] + 24
            for d in range(4): P(f"v_lshlrev_b32 v{s_+2*d}, 16, v{RS[k]+d}\nv_and_b32 v{s_+2*d+1}, s57, v{RS[k]+d}")
            for i in range(8): P(f"v_fma_f32 v{g_+i}, v{g_+i}, v{s_+i}, v{XU+8*k+i}")
            for d in range(4): P(f"v_cvt_pk_bf16_f32 v{pk+d}, v{g_+2*d}, v{g_+2*d+1}")
            P(f"buffer_store_dwordx2 {vr(pk,2)}, v{vXO}, s[72:75], s{60+k} offen\nbuffer_store_dwordx2 {vr(pk+2,2)}, v{vXO}, s[72:75], s{60+k} offen offset:32", tag='os')
        stamp(P, 11)
    stamp_flush(P, 12)
    P("s_endpgm")
    P.add(slow)
    return P.l

def attn():
    P = Prog()
    P("s_endpgm")
    return P.l

def final():
    P = Prog()
    P("s_endpgm")
    return P.l

def finish(lst):
    lst = resolve_waits(lst)
    lst, nfix = fix_hazards(lst, OPT['verbose'])
    errs = check_scoreboard(lst)
    for e in errs[:20]: print("; SCOREBOARD ERR", e, file=sys.stderr)
    assert not errs
    lst, mis, sz = align_pass(lst)
    print(f"; hazard nops inserted: {nfix}, instrs: {len(lst)}, misaligned {mis}, bytes {sz}", file=sys.stderr)
    return lst

def main():
    try:
        import gen_attn
    except ImportError:
        gen_attn = None
    P0 = Prog(); common_prologue(P0)
    f = finish(P0.l + ffn())[:]
    a = finish(P0.l + (gen_attn.attn(globals()) if gen_attn and OPT['attn'] else attn()))
    a = a[[i for i, x in enumerate(a) if x.text.startswith('s_cbranch_scc1 L_attn')][0] + 1:]
    k2 = finish(gen_attn.final(globals()) if gen_attn else final())
    out = []
    MK = NAME + "_kernel" if OPT['fuse'] else "main_kernel"
    if OPT['fuse']: out.append(f"; @launch grid=(256,1,1) block=(256,1,1) lds={LDS_BYTES}")
    else:
        out.append(f"; @launch kernel=main_kernel grid=(256,1,1) block=(256,1,1) lds={LDS_BYTES}")
        out.append(f"; @launch kernel=final_kernel grid=(576,1,1) block=(256,1,1) lds=0")
    out.append('.amdgcn_target "amdgcn-amd-amdhsa--gfx950"\n.text')
    out.append(f".globl {MK}\n.p2align 8\n.type {MK},@function\n{MK}:\nL_main_start:")
    out += [x.text for x in f]
    out.append(".p2align 6\nL_attn:")
    out += [x.text for x in a]
    out.append("L_exit:\ns_endpgm\nL_main_end:")
    if not OPT['fuse']:
        out.append(".globl final_kernel\n.p2align 8\n.type final_kernel,@function\nfinal_kernel:")
        out += [x.text for x in k2]
    out.append('.section .rodata,"a"')
    for nm, nv, ao in ((MK, 512, 256), ("final_kernel", 96, 96))[:1 if OPT['fuse'] else 2]:
        out.append(f".p2align 6\n.amdhsa_kernel {nm}\n  .amdhsa_next_free_vgpr {nv}\n  .amdhsa_next_free_sgpr 102\n  .amdhsa_accum_offset {ao}\n  .amdhsa_group_segment_fixed_size 0\n  .amdhsa_kernarg_size 72\n  .amdhsa_user_sgpr_count 2\n  .amdhsa_user_sgpr_kernarg_segment_ptr 1\n  .amdhsa_system_sgpr_workgroup_id_x 1\n  .amdhsa_float_denorm_mode_32 3\n.end_amdhsa_kernel")
    txt = "\n".join(out) + "\n"
    import subprocess, re as _re, tempfile, os
    d = tempfile.mkdtemp()
    open(d + "/a.s", "w").write(txt.replace("CODE_PF_MAX", "0x12345"))
    r = subprocess.run(["clang", "-x", "assembler", "-target", "amdgcn-amd-amdhsa", "-mcpu=gfx950", "-c", d + "/a.s", "-o", d + "/a.o"], capture_output=True, text=True)
    assert r.returncode == 0, r.stderr
    sy = subprocess.run(["llvm-readelf", "-s", d + "/a.o"], capture_output=True, text=True).stdout
    def sym(n): return int([l for l in sy.splitlines() if l.strip().endswith(" " + n)][0].split()[1], 16)
    size = sym("L_main_end") - sym("L_main_start")
    print(f"; main code bytes {size}, attn at {sym('L_attn')}", file=sys.stderr)
    print(txt.replace("CODE_PF_MAX", str(size - 1024)))

if __name__ == "__main__":
    main()
```

```python
import sys, math
from asmlib import *

OPT = dict(q3=80, q4=94, q5=118, lat0=26, lat1=22, e1=62, e2=81, fd0=17, fd1=9, hop1=0, hop0=1, fdel0=44, pfwo=1, ofl=12, opl=23, pfh0=216, nb2=2, hsplit=2, dpre=3, pst=0, xlead=3, slp=4, rt=0, pfh=0, pchk=9, fdel=32, a3=8, a4=3, cin=22, sat=15*12+4,  forcefb=0, marks=0, wcost=16, fuse=1, stmod=1, dbgwg=64, nosilu=0, nodma=0, nobar=0, nost=0, pd1=7, pd2=3, stamp=0, ffn=1, attn=1, verbose=0, rot=1, pfw=0, pfcode=1)
for a in sys.argv[1:]:
    k, v = a.split('='); OPT[k] = int(v)

STMOD = ['', ' sc1', ' nt', ' sc0 sc1', ' sc1 nt'][OPT['stmod']]
NAME = "recurrent_scan__sliding_local_dilated__dense_activation_silu__prompt"
LOG2E = 1.4426950408889634
LN2 = 0.6931471805599453
import struct
def f2u(f): return struct.unpack('<I', struct.pack('<f', f))[0]
def hx(f): return "0x%08x" % f2u(f)

WS_P = 0
WS_HALO = 40 << 20
WS_FLAG = 44 << 20
HFOFF = 1 << 18
WS_O = 45 << 20
WS_S = 52 << 20
WS_STAMP = 48 << 20
WS_BYTES = 64 << 20
LDS_BYTES = 155648

sX, sWA, sWB, sWS, sDBG = 's[12:15]', 's[16:19]', 's[20:23]', 's[24:27]', 's[28:31]'
sM, sSL, sWV, sROT, sMEM = 's32', 's33', 's34', 's35', 's36'

def vr(a, n): return f"v[{a}:{a+n-1}]" if n > 1 else f"v{a}"
def ar(a, n): return f"a[{a}:{a+n-1}]" if n > 1 else f"a{a}"

stamp_n = [0]
def stamp(P, idx):
    if not OPT['stamp']: return
    if OPT['pst']:
        if idx < 100 and idx != 3: return
        idx = 9 if idx == 3 else idx - 100
    elif idx >= 100: return
    P(f"{'s_memrealtime' if OPT['rt'] else 's_memtime'} s[78:79]\ns_waitcnt lgkmcnt(0)\ns_mov_b32 s{80+idx}, s78")
def stamp_flush(P, n):
    if not OPT['stamp']: return
    P(f"s_memrealtime s[78:79]\ns_waitcnt lgkmcnt(0)\ns_mov_b32 s{80+15}, s78")
    P(f"s_lshl_b32 s76, s2, 2\ns_add_u32 s76, s76, {sWV}\ns_lshl_b32 s76, s76, 6\ns_add_u32 s76, s76, {WS_STAMP}")
    P("v_mov_b32 v1, 0")
    for i in range(4):
        for j in range(4): P(f"v_mov_b32 v{4+j}, s{80+4*i+j}")
        P(f"buffer_store_dwordx4 v[4:7], v1, {sWS}, s76 offen offset:{16*i}")
        P("s_nop 1")

def round_bf16(P, dst, src):
    P(f"v_cvt_pk_bf16_f32 {dst}, {src}, {src}\nv_and_b32 {dst}, 0xffff0000, {dst}")

def ln_stats(P, vsum, vsq, vnegm, vr_, tmp):
    P(f"v_mul_f32 {vsum}, {hx(1/576)}, {vsum}")
    P(f"v_mul_f32 {vsq}, {hx(1/576)}, {vsq}")
    P(f"v_fma_f32 {vsq}, -{vsum}, {vsum}, {vsq}")
    P(f"v_max_f32 {vsq}, 0, {vsq}")
    round_bf16(P, vnegm, vsum)
    P(f"v_xor_b32 {vnegm}, 0x80000000, {vnegm}")
    round_bf16(P, vsq, vsq)
    P(f"v_add_f32 {vsq}, {hx(1e-5)}, {vsq}")
    round_bf16(P, vsq, vsq)
    P(f"v_sqrt_f32 {vsq}, {vsq}")
    round_bf16(P, vsq, vsq)
    P(f"v_rcp_f32 {vr_}, {vsq}")

def sel_consts(P, vsel, t0, t1, t2):
    P(f"v_mov_b32 v{vsel}, 0\nv_mov_b32 v{vsel+1}, 0\nv_mov_b32 v{vsel+4}, 0\nv_mov_b32 v{vsel+5}, 0")
    P(f"v_and_b32 {t0}, 1, v0\nv_lshlrev_b32 {t0}, 4, {t0}\nv_mov_b32 {t1}, 0x3f80\nv_lshlrev_b32 {t0}, {t0}, {t1}")
    P(f"v_bfe_u32 {t1}, v0, 2, 2\nv_lshrrev_b32 {t2}, 4, v0")
    P(f"v_cmp_eq_u32 vcc, {t1}, {t2}\nv_cndmask_b32 {t0}, 0, {t0}, vcc")
    P(f"v_and_b32 {t1}, 2, v0\nv_cmp_eq_u32 vcc, 0, {t1}")
    P(f"v_cndmask_b32 v{vsel+2}, 0, {t0}, vcc\nv_cndmask_b32 v{vsel+3}, {t0}, v{vsel}, vcc")

def common_prologue(P):
    P("s_cmp_ge_u32 s2, 256\ns_cbranch_scc1 L_exit")
    P("s_load_dwordx4 s[4:7], s[0:1], 0\ns_load_dwordx2 s[8:9], s[0:1], 16\ns_load_dwordx4 s[40:43], s[0:1], 32\ns_load_dwordx4 s[44:47], s[0:1], 56")
    P(f"v_lshrrev_b32 v1, 6, v0\nv_lshlrev_b32 v46, 7, v0\nv_readfirstlane_b32 {sWV}, v1\nv_and_b32 v0, 63, v0")
    if OPT['stamp']: P("s_memrealtime s[78:79]\ns_memtime s[76:77]")
    if OPT['pfcode']:
        P("s_getpc_b64 s[48:49]\ns_bfe_u32 s58, s2, 0x20003\ns_lshl_b32 s58, s58, 15\nv_add_u32 v46, s58, v46")
        P("v_min_u32 v46, CODE_PF_MAX, v46\nglobal_load_dword v47, v46, s[48:49]", tag='dummy')
    if OPT['stamp']:
        for i in range(80, 96): P(f's_mov_b32 s{i}, 0')
    P("s_and_b32 s37, s2, 1\ns_lshl_b32 s37, s37, 3")
    P("s_bfe_u32 s38, s2, 0x20001")
    P(f"s_lshr_b32 s39, s2, 3\ns_and_b32 {sMEM}, s39, 7\ns_add_u32 {sM}, s37, {sMEM}")
    P(f"s_lshl_b32 s51, s38, 1\ns_add_u32 s51, s51, s37\ns_lshr_b32 s52, s39, 2\ns_add_u32 s51, s51, s52")
    P(f"s_lshl_b32 s52, s39, 1\ns_and_b32 s52, s52, 6\ns_add_u32 s52, s52, s51\ns_mul_i32 s53, s52, 57\ns_lshr_b32 s53, s53, 9\ns_mul_i32 s53, s53, 9\ns_sub_u32 s52, s52, s53")
    P(f"s_lshr_b32 {sROT}, s39, 3\ns_sub_u32 {sROT}, {sROT}, 1\ns_mul_i32 s50, {sROT}, 3\ns_cmp_lt_u32 s39, 8\ns_cselect_b32 s50, s52, s50\ns_cselect_b32 {sM}, s51, {sM}")
    if not OPT['rot']: P(f"s_mov_b32 s50, 0")
    P(f"s_lshl_b32 s53, {sM}, 7\ns_lshl_b32 s54, {sWV}, 5\ns_add_u32 s53, s53, s54\ns_mul_i32 s53, s53, 1152")
    P(f"v_lshrrev_b32 v2, 3, v0\nv_mul_u32_u24 v2, 2304, v2\nv_lshrrev_b32 v3, 4, v0\nv_and_b32 v44, 7, v0\nv_xor_b32 v3, v3, v44\nv_lshlrev_b32 v3, 4, v3")
    P(f"v_add_u32 v44, v2, v3\nv_add_u32 v44, s53, v44\nv_xor_b32 v45, 64, v44\nv_add_u32 v45, {16*1152-1024}, v45")
    P(f"s_lshl_b32 s55, s50, 7\ns_mul_i32 s54, {sWV}, 12288")
    P("s_waitcnt lgkmcnt(0)")
    if OPT['stamp']: P("s_mov_b32 s94, s78\ns_mov_b32 s80, s76")
    P(f"s_mov_b32 s12, s4\ns_mov_b32 s13, s5\ns_mov_b32 s14, {2048*576*2}\ns_mov_b32 s15, 0x20000")
    stamp(P, 101)
    P.add(xdma(0, 0)); P.add(xdma(0, 1)); P.add(xdma(0, 2))
    stamp(P, 102)
    P(f"s_mov_b32 s24, s46\ns_mov_b32 s25, s47\ns_mov_b32 s26, {WS_BYTES}\ns_mov_b32 s27, 0x20000")
    P(f"s_mov_b32 s28, s44\ns_mov_b32 s29, s45\ns_mov_b32 s30, 256\ns_mov_b32 s31, 0x20000")
    P("s_cmp_lt_u32 s39, 8\ns_cbranch_scc1 L_attn")

def xdma(st, S):
    Q = Prog()
    Q(f"s_add_u32 m0, s54, {st*49152+S*4096}\ns_add_u32 s56, s55, 1152")
    Q(f"buffer_load_dwordx4 v44, {sX}, s55 offen lds\nbuffer_load_dwordx4 v45, {sX}, s55 offen offset:1024 lds", tag=f"x{3*st+S}")
    Q(f"s_add_u32 m0, m0, 2048\ns_add_u32 s55, s55, 128")
    Q(f"buffer_load_dwordx4 v44, {sX}, s56 offen lds\nbuffer_load_dwordx4 v45, {sX}, s56 offen offset:1024 lds", tag=f"x{3*st+S}")
    Q(f"s_cmp_eq_u32 s55, 1152\ns_cselect_b32 s55, 0, s55")
    return Q.l

def weave(main, extra, every):
    out = []; k = 0; cnt = 0
    for idx, ins in enumerate(main):
        out.append(ins); cnt += 1
        nxt = main[idx + 1] if idx + 1 < len(main) else None
        safe = nxt is None or ('scc' not in nxt.rd and 'm0' not in nxt.rd)
        if k < len(extra) and cnt >= every and safe:
            out += extra[k]; k += 1; cnt = 0
    for g in extra[k:]: out += g
    return out

def xphase(P, setup, frags, sums, sqs, dmas, nfirst=3):
    lead = OPT['xlead']
    late = [x for x in setup if x.kind == 'vmem']
    P.add([x for x in setup if x.kind != 'vmem'])
    for S in range(nfirst, lead + 1): P.add(xdma(S // 3, S % 3))
    dmas = dict(dmas); dmas[9] = dmas.get(9, []) + late
    stamp(P, 1); stamp(P, 103)
    def dots(S):
        L = []
        for (d, a, o, k) in frags[S]:
            for j in range(4): L += mk(f"v_dot2c_f32_bf16 v{sums[k][j%2]}, s57, v{d+j}\nv_dot2c_f32_bf16 v{sqs[k][j%2]}, v{d+j}, v{d+j}")
        return L
    for S in range(10):
        if S < 9:
            P(f"WAITV x{S}")
            if S in (0, 2, 5, 8): stamp(P, 104 + (0, 2, 5, 8).index(S))
            for n, (d, a, o, k) in enumerate(frags[S]): P(f"ds_read_b128 {vr(d,4)}, v{a} offset:{o}", tag=f"xr{S}")
        if S == 8: stamp(P, 2)
        if S >= 1:
            P(f"WAITL xr{S-1}")
            if S - 1 in (2, 5): P("s_barrier")
        extra = []
        if S + lead + 1 < 9: extra += dgroups(xdma((S + lead + 1) // 3, (S + lead + 1) % 3))
        if S in dmas: extra += dgroups(dmas[S])
        body = dots(S - 1) if S >= 1 else []
        P.add(weave(body, extra, max(1, len(body) // (len(extra) + 1))))
    stamp(P, 108)

RING = 24576; NSLOT = 5; HX = RING * NSLOT
vA1 = [[16, 17, 18], [19, 20, 21]]; vA2 = [[22, 23, 24], [25, 26, 27]]
vD1 = [28, 29, 30, 31]; vD2 = [32, 33, 34, 35]
vHW, vHR, vST = 36, 37, 38
ACC1 = 48; XR = 112
AF = 192

def flag_setup(P, vFLW, sj, tmpv, hop=False):
    P(f"s_lshl_b32 s66, {sM}, 2\ns_add_u32 s66, s66, {sWV}\ns_lshl_b32 s66, s66, 11\ns_lshl_b32 s67, {sj}, 7\ns_add_u32 s66, s66, s67\ns_add_u32 s66, s66, {WS_FLAG}")
    P(f"v_lshrrev_b32 {tmpv}, 5, v0\nv_lshlrev_b32 {tmpv}, 30, {tmpv}\nv_lshl_add_u32 {tmpv}, v0, 2, {tmpv}\nv_add_u32 v{vFLW}, s66, {tmpv}\nv_mov_b32 {tmpv}, 0")
    P(f"buffer_store_dword {tmpv}, v{vFLW}, {sWS}, 0 offen sc1", tag='fz')
    if hop: P(f"s_mov_b32 s37, {HFOFF}\nbuffer_store_dword {tmpv}, v{vFLW}, {sWS}, s37 offen sc1", tag='fz')
def handshake(sj, va, vb, xcc=False):
    Q = Prog()
    Q(f"s_lshl_b32 s66, {sM}, 2\ns_and_b32 s67, {sj}, 3\ns_add_u32 s66, s66, s67\ns_lshl_b32 s66, s66, 2\ns_lshl_b32 s67, {sWV}, 8\ns_add_u32 s66, s66, s67")
    Q(f"v_lshlrev_b32 {va}, 8, v0\nv_add_u32 {va}, s66, {va}")
    Q(f"s_getreg_b32 s66, hwreg(HW_REG_XCC_ID)\ns_and_b32 s66, s66, 15\ns_and_b32 s67, {sj}, 12\ns_add_u32 s67, s67, 12\ns_lshl_b32 s66, s66, s67\ns_add_u32 s66, s66, 1\nv_mov_b32 {vb}, s66")
    Q(f"buffer_atomic_add {vb}, {va}, {sDBG}, 0 offen sc1", tag='hsk', cost=8)
    return Q.l

def sel32(P, SEL):
    P("v_and_b32 v2, 1, v0\nv_lshlrev_b32 v2, 4, v2\nv_mov_b32 v3, 0x3f80\nv_lshlrev_b32 v2, v2, v3")
    P("v_bfe_u32 v3, v0, 2, 1\nv_lshlrev_b32 v3, 1, v3\nv_lshrrev_b32 v4, 4, v0\nv_cmp_eq_u32 vcc, v3, v4\nv_cndmask_b32 v2, 0, v2, vcc")
    P("v_bfe_u32 v3, v0, 3, 1\nv_lshlrev_b32 v3, 1, v3\nv_bfe_u32 v4, v0, 1, 1\nv_add_u32 v3, v3, v4")
    for j in range(4): P(f"v_cmp_eq_u32 vcc, {j}, v3\nv_cndmask_b32 v{SEL+j}, 0, v2, vcc")

def dgroups(lst):
    G = []; cur = []
    for x in lst:
        cur.append(x)
        if x.kind == 'vmem': G.append(cur); cur = []
    if cur: G[-1] += cur
    return G

def flat(groups): return [x for g in groups for x in g]

def ffn():
    P = Prog()
    P(f"s_mov_b32 s50, {sROT}" if OPT['rot'] else "s_mov_b32 s50, 0")
    P(f"s_add_u32 s51, s50, 1\ns_cmp_ge_u32 s51, 3\ns_cselect_b32 s51, 0, s51\ns_add_u32 s52, s51, 1\ns_cmp_ge_u32 s52, 3\ns_cselect_b32 s52, 0, s52")
    P(f"s_mul_i32 {sSL}, s38, 3\ns_add_u32 {sSL}, {sSL}, {sROT}")
    P(f"s_mov_b32 s16, s40\ns_mov_b32 s17, s41\ns_mov_b32 s18, {576*4608*2}\ns_mov_b32 s19, 0x20000")
    P(f"s_mov_b32 s20, s42\ns_mov_b32 s21, s43\ns_mov_b32 s22, {576*4608*2}\ns_mov_b32 s23, 0x20000")
    P(f"s_mul_i32 s59, {sSL}, 768")
    P(f"s_mul_i32 s63, {sSL}, {384*1152}\ns_mul_i32 s64, {sWV}, 6144")
    if OPT['fuse']: P(f"s_lshl_b32 {sSL}, {sROT}, 2\ns_add_u32 {sSL}, {sSL}, s38")
    P("s_load_dwordx2 s[72:73], s[0:1], 48")
    vFLW = 39
    if OPT['fuse']: flag_setup(P, vFLW, sSL, 'v14', True)
    def pf_w(which):
        Q = Prog()
        if which == 1:
            Q(f"s_mul_i32 s66, {sMEM}, {72*9216}\ns_add_u32 s66, s66, s59\ns_lshl_b32 s67, {sWV}, 6\ns_mov_b32 s68, {-(-(1<<32)//6)}")
            for i in range(2):
                Q(f"v_add_u32 v10, s67, v0")
                if i: Q(f"v_add_u32 v10, 256, v10\nv_min_u32 v10, 431, v10")
                Q(f"v_mul_hi_u32 v11, v10, s68\nv_lshlrev_b32 v10, 7, v10\nv_mul_u32_u24 v11, {9216-768}, v11\nv_add_u32 v10, v10, v11")
                Q(f"buffer_load_dword v47, v10, {sWA}, s66 offen", tag='dummy', cost=8)
        else:
            nb = OPT['nb2']; n = 108 // nb
            Q(f"s_lshl_b32 s71, {sMEM}, 2\ns_add_u32 s71, s71, {sWV}\ns_mul_i32 s71, s71, {108*128}\ns_add_u32 s71, s71, s63")
            Q(f"v_min_u32 v44, {n-1}, v0\nv_lshlrev_b32 v44, 7, v44")
            for i in range(nb):
                Q(f"buffer_load_dword v47, v44, {sWB}, s71 offen", tag='dummy', cost=8)
                if i < nb - 1: Q(f"s_add_u32 s71, s71, {n*128}")
        return Q.l
    P(f"v_lshrrev_b32 v2, 3, v0\nv_and_b32 v3, 7, v0")
    P(f"s_mul_i32 s58, {sWV}, 48\nv_add_u32 v4, s58, v2")
    P(f"v_bfe_u32 v5, v0, 4, 1\nv_lshlrev_b32 v5, 2, v5\nv_xor_b32 v5, v5, v3\nv_lshlrev_b32 v5, 4, v5")
    P(f"v_mul_u32_u24 v6, 9216, v4\nv_add_u32 v{vD1[0]}, v6, v5")
    for i in range(1, 4): P(f"v_add_u32 v{vD1[i]}, {i*(8*9216-1024)}, v{vD1[0]}")
    P(f"v_bfe_u32 v5, v0, 4, 2\nv_lshlrev_b32 v5, 1, v5\nv_xor_b32 v5, v5, v3\nv_lshlrev_b32 v5, 4, v5")
    P(f"v_mul_u32_u24 v6, 1152, v4\nv_add_u32 v{vD2[0]}, v6, v5")
    for i in range(1, 4): P(f"v_add_u32 v{vD2[i]}, {i*(8*1152-1024)}, v{vD2[0]}")
    for st in range(3): P(f"s_mul_i32 s{60+st}, s{50+st}, {192*9216}\ns_add_u32 s{60+st}, s{60+st}, s59")

    PA, PS = 40, 3
    g2 = [(0,0),(1,0),(2,0),(0,1),(1,1),(2,1)] + [(p,k) for p in range(3,9) for k in range(2)]
    def dma(s):
        slot = (s % NSLOT) * RING
        if s < 18:
            p, st = s // 3, s % 3
            srd, vD, base, add, big = sWA, vD1, f"s{60+st}", p * 128, 32 * 9216
        else:
            p, k = g2[s - 18]
            srd, vD, base, add, big = sWB, vD2, f"s{PA+p}", k * 192 * 1152, 32 * 1152
        t = f"d{s}"
        G = mk(f"s_add_u32 m0, s64, {slot}\ns_add_u32 s65, {base}, {add}")
        for i in range(4): G += mk(f"buffer_load_dwordx4 v{vD[i]}, {srd}, s65 offen offset:{1024*i} lds", tag=t, cost=8)
        G += mk(f"s_add_u32 m0, s64, {slot+4096}\ns_add_u32 s65, {base}, {add+big}")
        for i in range(2): G += mk(f"buffer_load_dwordx4 v{vD[i]}, {srd}, s65 offen offset:{1024*i} lds", tag=t, cost=8)
        return G
    P(f"v_lshrrev_b32 v2, 5, v0\nv_lshlrev_b32 v2, 12, v2\nv_bfe_u32 v3, v0, 2, 2\nv_lshlrev_b32 v3, 7, v3\nv_add_u32 v2, v2, v3")
    P(f"v_bfe_u32 v3, v0, 4, 1\nv_lshlrev_b32 v3, 5, v3\nv_add_u32 v2, v2, v3\nv_and_b32 v3, 3, v0\nv_lshlrev_b32 v3, 3, v3\nv_add_u32 v2, v2, v3")
    P(f"v_bfe_u32 v3, v0, 3, 1\nv_lshlrev_b32 v3, 6, v3\nv_add_u32 v{vA1[0][0]}, v2, v3\nv_xor_b32 v{vA1[1][0]}, 64, v{vA1[0][0]}")
    P(f"v_lshrrev_b32 v2, 2, v0\nv_lshlrev_b32 v2, 7, v2\nv_and_b32 v3, 3, v0\nv_lshlrev_b32 v3, 3, v3\nv_add_u32 v2, v2, v3")
    P(f"s_and_b32 s69, {sWV}, 1\ns_lshl_b32 s69, s69, 1\nv_bfe_u32 v3, v0, 3, 2\nv_xor_b32 v3, s69, v3\nv_lshlrev_b32 v3, 5, v3")
    P(f"v_add_u32 v{vA2[0][0]}, v2, v3\nv_xor_b32 v{vA2[1][0]}, 32, v{vA2[0][0]}")
    for vA in (vA1, vA2):
        for u in range(2):
            for b in (1, 2): P(f"v_add_u32 v{vA[u][b]}, {b*2*RING}, v{vA[u][0]}")
    P(f"v_bfe_u32 v2, v0, 4, 1\nv_lshlrev_b32 v2, 10, v2\nv_lshrrev_b32 v3, 5, v0\nv_lshlrev_b32 v3, 8, v3\nv_add_u32 v2, v2, v3")
    P(f"v_and_b32 v3, 15, v0\nv_lshlrev_b32 v3, 4, v3\nv_add_u32 v2, v2, v3\ns_lshl_b32 s69, {sWV}, 11\ns_add_u32 s69, s69, {HX}\nv_add_u32 v{vHW}, s69, v2")
    if OPT['fuse']: P(f"s_and_b32 s69, {sSL}, 3\ns_lshl_b32 s69, s69, 10\nv_xor_b32 v{vHW}, s69, v{vHW}")
    P(f"v_lshlrev_b32 v{vST}, 4, v0\ns_lshr_b32 s69, {sWV}, 1\ns_lshl_b32 s69, s69, 12\ns_add_u32 s69, s69, {HX}\nv_add_u32 v{vHR}, s69, v{vST}")
    P(f"s_lshl_b32 s70, {sM}, 4\ns_add_u32 s70, s70, {sSL}\ns_lshl_b32 s70, s70, 1\ns_lshr_b32 s69, {sWV}, 1\ns_add_u32 s70, s70, s69")
    P(f"s_mul_i32 s70, s70, 18\ns_and_b32 s69, {sWV}, 1\ns_add_u32 s70, s70, s69\ns_lshl_b32 s70, s70, 12")
    P(f"s_lshr_b32 s66, {sSL}, 2\ns_mul_i32 s67, {sM}, 43\ns_lshr_b32 s67, s67, 7")
    P(f"s_mul_i32 s68, s67, 3\ns_sub_u32 s68, {sM}, s68\ns_add_u32 s68, s68, s66\ns_add_u32 s68, s68, 1")
    P(f"s_cmp_ge_u32 s68, 3\ns_cselect_b32 s69, 3, 0\ns_sub_u32 s68, s68, s69")
    P(f"s_cmp_ge_u32 s67, 3\ns_cselect_b32 s69, 3, 0\ns_sub_u32 s67, s67, s69")
    if not OPT['fuse']: P("s_mov_b32 s67, 0\ns_mov_b32 s68, 0")
    for ph in range(3):
        for k in range(3):
            p = 3 * ph + k
            P(f"s_mul_i32 s69, s68, 3\ns_add_u32 s69, s69, s67\ns_lshl_b32 s{PA+p}, s69, 7\ns_add_u32 s{PA+p}, s{PA+p}, s63\ns_lshl_b32 s{PS+p}, s69, 13\ns_add_u32 s{PS+p}, s{PS+p}, s70")
            P("s_add_u32 s67, s67, 1\ns_cmp_eq_u32 s67, 3\ns_cselect_b32 s67, 0, s67")
        if ph < 2: P("s_add_u32 s68, s68, 1\ns_cmp_eq_u32 s68, 3\ns_cselect_b32 s68, 0, s68")
    JS = 147456
    P(f"s_and_b32 s67, {sSL}, 3")
    for d in range(4): P(f"s_xor_b32 s{96+d}, s67, {d}\ns_mul_i32 s{96+d}, s{96+d}, {JS}\ns_add_u32 s{96+d}, s{96+d}, {1024*d}")
    P(f"s_mul_i32 s71, {sSL}, {JS}\ns_lshl_b32 s50, {sM}, 3\ns_add_u32 s50, s50, s67\ns_and_b32 s68, {sWV}, 2\ns_lshl_b32 s68, s68, 1\ns_add_u32 s50, s50, s68\ns_mul_i32 s50, s50, 18\ns_and_b32 s68, {sWV}, 1\ns_add_u32 s50, s50, s68\ns_lshl_b32 s50, s50, 10\ns_add_u32 s50, s50, {WS_S}")
    P(f"s_sub_u32 s68, 3, s66\ns_mul_i32 s101, s68, {4*JS}")
    P(f"s_add_u32 s68, s66, 1\ns_cmp_ge_u32 s68, 3\ns_cselect_b32 s68, 0, s68\ns_lshl_b32 s69, s68, 2\ns_add_u32 s51, s69, s67\ns_sub_u32 s68, s68, s66\ns_mul_i32 s100, s68, {4*JS}")
    P(f"s_mul_i32 s49, s66, {4*JS}\ns_sub_u32 s49, s49, s71\ns_lshl_b32 s68, s66, 2\ns_lshl_b32 s53, 15, s68\ns_lshl_b32 s68, 1, {sSL}\ns_andn2_b32 s53, s53, s68\ns_mov_b32 s52, 0xf000")
    P(f"v_and_b32 v2, 31, v0\nv_lshlrev_b32 v2, 7, v2\nv_add_u32 v2, s54, v2\nv_bfe_u32 v3, v0, 1, 3\nv_lshrrev_b32 v4, 5, v0\nv_lshlrev_b32 v4, 2, v4\nv_xor_b32 v3, v3, v4\nv_lshlrev_b32 v3, 4, v3")
    P(f"v_add_u32 v80, v2, v3\nv_xor_b32 v81, 16, v80\nv_xor_b32 v82, 32, v80\nv_xor_b32 v83, 48, v80")
    for j in range(4): P(f"v_add_u32 v{84+j}, 98304, v{80+j}")
    SEL = 40
    sel32(P, SEL)
    P("v_mov_b32 v8, 0\nv_mov_b32 v9, 0\nv_mov_b32 v12, 0\nv_mov_b32 v13, 0\ns_mov_b32 s57, 0x3f803f80")
    P(f"s_waitcnt lgkmcnt(0)\ns_mov_b32 s74, {2048*576*2}\ns_mov_b32 s75, 0x20000")
    setup = P.l; P.l = []
    fr = [[(XR + 4 * (4 * S + f), (80 if S < 6 else 84) + f, ((S // 3) % 2) * 49152 + (S % 3) * 4096, 0) for f in range(4)] for S in range(9)]
    d0, d1, d2 = dma(0), dma(1), dma(2)
    xphase(P, setup, fr, [[8, 9]], [[12, 13]], {5: d0[:6], 6: d0[6:], 7: d1[:6], 8: d1[6:] + (d2[:6] if OPT['dpre'] == 3 else []), 9: d2[6:] if OPT['dpre'] == 3 else []})
    P("v_add_f32 v8, v8, v9\nv_add_f32 v12, v12, v13\nv_mov_b32 v9, v8\nv_mov_b32 v13, v12\nv_permlane32_swap_b32 v8, v9\nv_permlane32_swap_b32 v12, v13\nv_add_f32 v8, v8, v9\nv_add_f32 v12, v12, v13")
    def um(F): return mk(f"v_mfma_f32_32x32x16_bf16 {vr(ACC1+32+16*(F%2),16)}, {vr(SEL,4)}, {vr(XR+4*F,4)}, 0")
    def nv(F):
        d = ACC1 + 32 + 16 * (F % 2); x = XR + 4 * F
        o = []
        for j in range(8): o += mk(f"v_fma_f32 v{d+j}, v{d+j}, v2, v3")
        for j in range(4): o += mk(f"v_cvt_pk_bf16_f32 v{x+j}, v{d+2*j}, v{d+2*j+1}")
        return o
    P.add(um(0)); P.add(um(1))
    ln_stats(P, 'v8', 'v12', 'v4', 'v2', 'v3')
    P(f"v_mul_f32 v2, {hx(LOG2E)}, v2\nv_mul_f32 v3, v4, v2")

    uses = []
    for p in range(6):
        for st in range(3):
            s = 3 * p + st; slot = s % NSLOT
            for S in range(3):
                for ss in range(4):
                    F = st * 12 + S * 4 + ss
                    for u in range(2):
                        n = len(uses); af = AF + 4 * (n % 16)
                        off = (slot % 2) * RING + (64 * S + 8 * ss) * 128
                        va = vA1[u][slot // 2]
                        rd = mk(f"ds_read_b64_tr_b16 {ar(af,2)}, v{va} offset:{off}\nds_read_b64_tr_b16 {ar(af+2,2)}, v{va} offset:{off+512}", tag=f"r{n}")
                        acc = vr(ACC1 + 32 * (p % 2) + 16 * u, 16)
                        mf = mk(f"v_mfma_f32_32x32x16_bf16 {acc}, {ar(af,4)}, {vr(XR+4*F,4)}, {'0' if F == 0 else acc}")
                        uses.append((s, rd, mf))
    N1 = len(uses)
    ACC2 = XR; STG = XR + 128
    for si, (p, k) in enumerate(g2):
        s = 18 + si; slot = s % NSLOT
        for kk in range(6):
            ks = 6 * k + kk
            for u in range(2):
                n = len(uses); af = AF + 4 * (n % 16)
                off = (slot % 2) * RING + 32 * kk * 128
                va = vA2[u][slot // 2]
                rd = mk(f"ds_read_b64_tr_b16 {ar(af,2)}, v{va} offset:{off}\nds_read_b64_tr_b16 {ar(af+2,2)}, v{va} offset:{off+2048}", tag=f"r{n}")
                mf = []
                for j in range(4):
                    acc = vr(ACC2 + 32 * (p % 4) + 8 * j + 4 * u, 4)
                    mf += mk(f"v_mfma_f32_16x16x32_bf16 {acc}, {ar(af,4)}, {ar(16*ks+4*j,4)}, {'0' if ks == 0 else acc}")
                uses.append((s, rd, mf))
    NU = len(uses)
    PD1, PD2 = OPT['pd1'], OPT['pd2']
    rd_at = {}
    for n in range(NU):
        if n < N1: g = n - PD1
        else:
            g = n - PD2
            if g < N1: g = N1 - 1 - 2 * (N1 - 1 - g)
        rd_at.setdefault(g, []).append(n)
    bar_at = {}
    for g in sorted(rd_at):
        for n in rd_at[g]:
            s = uses[n][0]
            if s not in bar_at: bar_at[s] = g
    extra_lw = {}
    def hw_tag(ks): return f"hw{ks}"
    def rstage(ks):
        p = ks // 2
        if p <= 3: return 3 * (p + 2) + 1
        if p == 4: return 19
        return 21
    for ks in range(1, 12, 2): extra_lw[rstage(ks)] = hw_tag(ks)
    def barrier(s):
        if s in extra_lw: return mk(f"WAITVL d{s}, {extra_lw[s]}\ns_barrier")
        return mk(f"WAITV d{s}\ns_barrier")
    P.add(barrier(0))
    for g in sorted(rd_at):
        if g < 0:
            for n in rd_at[g]: P.add(uses[n][1])
    P.add(nv(0))
    P("WAITL r3")
    stamp(P, 3)
    S16 = 16
    def ustart(p): return N1 + 12 * (6 + 2 * (p - 3))
    QP = {3: OPT['q3'], 4: OPT['q4'], 5: OPT['q5'], 6: 168 - OPT['lat1'], 7: 192 - OPT['lat1'], 8: 216 - OPT['lat1']}
    AP = {p: max(12 * (8 + 2 * (p - 3)), QP[p] + (OPT['lat0'] if p < 6 else OPT['lat1'])) for p in range(3, 9)}
    nacc = {N1 + AP[p]: p for p in range(3, 8)} if OPT['fuse'] else {}
    gacc = {}
    def HB(p): return 48 + 16 * (p % 2)
    def accum(dst, src, first=False):
        return mk(f"v_mfma_f32_16x16x32_bf16 {vr(dst,4)}, {vr(S16+2,4)}, {src}, {'0' if first else vr(dst,4)}\nv_mfma_f32_16x16x32_bf16 {vr(dst+4,4)}, {vr(S16,4)}, {src}, {'0' if first else vr(dst+4,4)}")
    def hopacc(p):
        L = []
        for j in range(4): L += accum(ACC2 + 32 * (p % 4) + 8 * j, vr(HB(p) + 4 * j, 4))
        return L[0::2] + L[1::2]
    SC = Sched()
    gi = {}
    gu = {}
    for n in range(NU):
        mf = uses[n][2]
        if n in nacc:
            SC.tail[-1] += mk(f"WAITV hl{nacc[n]}")
            for m_ in hopacc(nacc[n]): gacc[nacc[n]] = SC.gap([m_], 16)
        if n < 72 and n % 2 == 0 and n // 2 + 2 < 36:
            gu[n // 2 + 2] = SC.gap(um(n // 2 + 2), 32)
        bar = []
        for s, g in bar_at.items():
            if g == n: bar = barrier(s)
        rds = []
        for nn in rd_at.get(n, []): rds += uses[nn][1]
        if n < N1:
            g = SC.gap(mf, 32); gi[n] = g
            SC.mand[g] += bar + rds
            if n % 4 == 3 and n + 1 < N1: SC.tail[g] += mk(f"WAITL r{n+4}")
            if n == N1 - 1: SC.tail[g] += mk(f"WAITL r{n+2}")
        else:
            gs = [SC.gap([m], 16) for m in mf]; gi[n] = gs[0]
            if bar:
                SC.mand[gs[0]] += bar
                for i, t in enumerate(rds): SC.mand[gs[1 + i]].append(t)
            else:
                for i, t in enumerate(rds): SC.mand[gs[2 * i]].append(t)
            if (n - N1) % 2 == 1 and n + 1 < NU: SC.tail[gs[3]] += mk(f"WAITL r{n+2}")
    gi[NU] = len(SC.head)

    def silu(ks):
        p, u = ks // 2, ks % 2
        a = ACC1 + 32 * (p % 2) + 16 * u
        F = []
        T = [1, 2, 3, 4, 5, 6, 7, 46]
        stg = 8
        def E(q, j): return mk(f"v_exp_f32_e64 v{T[4*(q%2)+j]}, -v{a+4*q+j}")
        def Ad(q, j): return mk(f"v_add_f32 v{T[4*(q%2)+j]}, 1.0, v{T[4*(q%2)+j]}")
        def R(q, j): return mk(f"v_rcp_f32 v{T[4*(q%2)+j]}, v{T[4*(q%2)+j]}")
        def M(q, j): return mk(f"v_mul_f32 v{T[4*(q%2)+j]}, v{a+4*q+j}, v{T[4*(q%2)+j]}")
        def C(q):
            d = stg + 4 * (q % 2) + 2 * (q // 2); t = T[4*(q%2):4*(q%2)+4]
            o = mk(f"v_cvt_pk_bf16_f32 v{d}, v{t[0]}, v{t[1]}\nv_cvt_pk_bf16_f32 v{d+1}, v{t[2]}, v{t[3]}")
            if q >= 2: o += mk(f"ds_write_b128 v{vHW}, {vr(stg+4*(q%2),4)} offset:{(ks%4)*8192+512*(q%2)}", tag=hw_tag(ks), cost=OPT['wcost'])
            return o
        for q in range(4):
            F += E(q, 0) + E(q, 1)
            F += E(q, 2) + Ad(q, 0) + Ad(q, 1)
            F += E(q, 3) + Ad(q, 2)
            F += R(q, 0) + Ad(q, 3)
            F += R(q, 1) + M(q, 0)
            F += R(q, 2) + M(q, 1)
            F += R(q, 3) + M(q, 2)
            c = C(q)
            F += [c[0]] + M(q, 3) + c[1:]
        return F
    def hread(ks):
        return flat([mk(f"ds_read_b128 {ar(16*ks+4*j,4)}, v{vHR} offset:{(ks%4)*8192+1024*j}", tag=f"hr{ks}") for j in range(4)])
    def epi(p):
        a = ACC2 + 32 * (p % 4)
        F = []
        for j in range(4):
            if OPT['fuse'] and p >= 6 and j == 0: continue
            for u in range(2):
                for h in range(2): F += mk(f"v_cvt_pk_bf16_f32 v{STG+4*j+2*u+h}, v{a+8*j+4*u+2*h}, v{a+8*j+4*u+2*h+1}")
            F += mk(f"buffer_store_dwordx4 {vr(STG+4*j,4)}, v{vST}, {sWS}, s{PS+p} offen offset:{1024*j}{STMOD if (p >= 6 or (p < 3 and OPT['hop0']) or OPT['hop1'] or not OPT['fuse']) else ''}", tag=f'st{p}', cost=8)
        return F

    for s in range(0, 33):
        g0 = gi[bar_at[s]] + 1 if bar_at[s] >= 0 else 0
        g1 = gi[bar_at[s + 1]]
        SC.place((dma(2) if (s == 0 and OPT['dpre'] == 2) else []) + dma(s + 3), g0, g1, 'spread', f'dma{s+3}')
    for ks in range(12):
        g0 = gi[bar_at[rstage(ks)]] + 1 + (ks % 2) * 8
        SC.place(hread(ks), g0, g0 + 8, 'spread', f'hr{ks}')
    if OPT['fuse']: SC.place(handshake(sSL, 'v44', 'v45', True), gi[bar_at[3]] + 1, gi[bar_at[3]] + 12, 'spread', 'hsk')
    if OPT['pfw'] & 1: SC.place(pf_w(1), 20, 70, 'spread', 'pf1')
    if OPT['pfw'] & 2: SC.place(pf_w(2), gi[90], gi[400], 'spread', 'pf2')
    for F in range(1, 36):
        g0 = gu.get(F + 1, gi[2 * (F - 1)]); g1 = gi[2 * (F - 1) + 1] + 1
        SC.place(nv(F), g0, g1, 'asap', f'nv{F}')
    for p in range(5):
        b = 72 * (p + 1)
        SC.place(silu(2 * p) + silu(2 * p + 1), gi[b + 2], gi[b + 72], 'asap', f'silu{p}')
    SC.place(silu(10) + silu(11), gi[N1] + 6, gi[bar_at[21]] - 2, 'asap', 'silu5')
    last_stage = {}; gepi = {}
    for si, (p, k) in enumerate(g2):
        if k == 1: last_stage[p] = si
    for p in range(8):
        g0 = gi[N1 + 12 * (last_stage[p] + 1)] + 5
        if p in gacc: g0 = gacc[p] + 5
        if OPT['fuse'] and p in (1, 2): g0 = gi[N1 + OPT['e%d' % p]]
        gepi[p] = SC.place(epi(p), g0, g0 + (42 if not OPT['fuse'] else 30), 'spread' if not OPT['fuse'] else 'asap', f'epi{p}')[-1]
    slow = []
    def gs(si, off=0): return gi[N1 + 12 * si] + off
    if OPT['fuse']:
        vFR, vFV, vXO, vC = 28, 29, 30, 31
        def site(name, load, tag, chk, g0, g1):
            L = mk(f"WAITV {tag}") + mk(chk) + mk(f"s_cbranch_scc0 L_slow{name}\nL_back{name}:")
            head, tailp = L[:-4], L[-4:]
            pos = SC.place(head, g0, g1, 'asap', name)
            SC.fill[pos[-1] + 1] += tailp
            slow.extend(mk(f"L_slow{name}:\ns_mov_b32 s68, 0\nL_spin{name}:\n{load}\ns_waitcnt vmcnt(0)\n{chk}\ns_cbranch_scc1 L_back{name}\ns_sleep 1\ns_add_u32 s68, s68, 1\ns_cmp_lt_u32 s68, 0x80000\ns_cbranch_scc1 L_spin{name}\ns_branch L_back{name}", cond=True))
            return pos[-1] + 2
        hload = f"buffer_load_dword v41, v40, {sDBG}, 0 offen sc1"
        SC.place(mk(f"s_lshl_b32 s66, {sM}, 4\nv_and_b32 v40, 3, v0\nv_lshlrev_b32 v40, 2, v40\nv_add_u32 v40, s66, v40") + mk(hload, tag='hc', cost=8), gi[130], gi[142], 'spread', 'hc')
        g = site('H', hload, 'hc', f"v_and_b32 v42, 0xff, v41\nv_cmp_le_u32 vcc, 4, v42\ns_and_b32 s66, vcc_lo, 15\ns_cmp_eq_u32 s66, 15", gi[170], gi[180])
        MD = mk(f"v_readlane_b32 s66, v41, s38\ns_lshr_b32 s67, s66, 4\ns_xor_b32 s66, s66, s67")
        pos = SC.place(MD, g, gi[190], 'spread', 'mode')
        fb = "s_or_b32 s66, s66, 0x1000\n" if OPT['forcefb'] else ""
        SC.fill[pos[-1] + 1] += mk(f"{fb}s_and_b32 s66, s66, 0xff000\ns_cselect_b32 s58, 0, 1\n{'s_cmp_eq_u32 0, 0' if OPT['hop1'] else ''}\ns_cselect_b32 s59, s100, 0\ns_cselect_b32 s100, s100, s101\ns_cselect_b32 s101, 0, s101")
        SC.place(mk("\n".join(f"s_add_u32 s{PS+p}, s{PS+p}, s101" for p in range(6))), pos[-1] + 2, gi[205], 'spread', 'psfix')
        SC.place(mk(f"buffer_load_dword v47, v{vFLW}, {sWS}, s37 offen sc1", tag='dummy', cost=8), gi[205], gi[215], 'asap', 'pfflag')
        if OPT['pfh'] & 2:
            L = []
            for p in range(3):
                for j in range(4): L += mk(f"buffer_store_dwordx4 {vr(XR,4)}, v{vST}, {sWS}, s{PS+p} offen offset:{1024*j} sc1", tag='pw', cost=16)
            SC.place(L, gi[208], gi[300], 'spread', 'prewrite')
        if OPT['pfh'] & 1:
            hs = OPT['hsplit']
            L = mk(f"v_and_b32 v40, {32//hs-1}, v0\nv_lshlrev_b32 v40, 7, v40") + (mk("WAITV pw") if OPT['pfh'] & 2 else [])
            for p in range(3):
                for h in range(hs): L += mk(f"buffer_load_dword v47, v40, {sWS}, s{PS+p} offen offset:{h*4096//hs} sc1", tag='dummy', cost=8)
            SC.place(L, gi[OPT['pfh0']], gi[425], 'spread', 'pfh')
        SQ = Prog()
        SQ(f"s_lshl_b32 s66, {sM}, 7\ns_and_b32 s67, {sWV}, 2\ns_lshl_b32 s67, s67, 5\ns_add_u32 s66, s66, s67\ns_and_b32 s67, {sSL}, 2\ns_lshl_b32 s67, s67, 4\ns_add_u32 s66, s66, s67\ns_and_b32 s67, {sSL}, 1\ns_add_u32 s66, s66, s67")
        SQ(f"v_lshrrev_b32 v40, 2, v0\nv_lshlrev_b32 v40, 1, v40\nv_add_u32 v40, s66, v40\nv_mul_u32_u24 v40, 1152, v40\nv_and_b32 v41, 3, v0\nv_lshlrev_b32 v41, 4, v41\ns_and_b32 s67, {sWV}, 1\ns_lshl_b32 s67, s67, 6\nv_add3_u32 v{vXO}, v40, v41, s67")
        XV = 92; vL1, vL2, vL3 = 1, 2, 3
        SQ(f"s_lshl_b32 s36, {sWV}, 13\ns_add_u32 s36, s36, {HX}")
        SQ(f"v_and_b32 v40, 15, v0\nv_lshrrev_b32 v41, 4, v0\nv_lshlrev_b32 v41, 3, v41\nv_add_u32 v41, s36, v41\nv_lshl_add_u32 v{vL1}, v40, 6, v41\nv_mul_u32_u24 v40, 80, v40\nv_add_u32 v{vL2}, v40, v41")
        SQ(f"v_lshrrev_b32 v40, 2, v0\nv_mul_u32_u24 v40, 80, v40\nv_and_b32 v41, 3, v0\nv_lshlrev_b32 v41, 4, v41\nv_add3_u32 v{vL3}, v40, v41, s36")
        for k in range(3): SQ(f"s_sub_u32 s{60+k}, s{PA+6+k}, s63")
        SQ(f"s_lshl_b32 s66, {sM}, 2\ns_add_u32 s67, s66, {sWV}\ns_lshl_b32 s67, s67, 11\ns_and_b32 s68, {sWV}, 2\ns_add_u32 s66, s66, s68\ns_bfe_u32 s68, {sSL}, 0x10001\ns_add_u32 s66, s66, s68\ns_lshl_b32 s66, s66, 11")
        SQ(f"s_lshl_b32 s51, s51, 7\ns_add_u32 s51, s51, s67\ns_add_u32 s51, s51, {WS_FLAG + HFOFF}\nv_mov_b32 v43, s51")
        SQ(f"v_and_b32 v40, 15, v0\nv_mov_b32 v41, s67\nv_mov_b32 v42, s66\nv_cmp_gt_u32 vcc, 12, v40\nv_lshlrev_b32 v40, 7, v40\nv_add_u32 v40, {WS_FLAG}, v40\nv_cndmask_b32 v41, v42, v41, vcc\nv_add_u32 v{vFR}, v40, v41")
        SQ(f"s_or_b32 vcc_lo, s52, s53\ns_mov_b32 vcc_hi, 0\nv_mov_b32 v40, 2.0\nv_cndmask_b32 v{vFR}, v40, v{vFR}, vcc")
        sel_consts(SQ, S16, 'v40', 'v41', 'v42')
        SQ('s_mov_b32 s16, s24\ns_mov_b32 s17, s25\ns_mov_b32 s57, 0xffff0000')
        SQ('v_lshlrev_b32 v41, 3, v0')
        SC.place(SQ.l, gi[bar_at[21]], gs(6), 'asap', 'tailsetup')
        fload = f"buffer_load_dword v{vFV}, v{vFR}, {sWS}, 0 offen sc1"
        def chk(thr, mask): return f"v_cmp_le_u32 vcc, {thr}, v{vFV}\ns_and_b32 s66, vcc_lo, {mask}\ns_cmp_eq_u32 s66, {mask}"
        def fstore(val): return mk(f"buffer_store_dword v{vC}, v{vFLW}, {sWS}, 0 offen sc1", tag=f'fl{val}', cost=8)
        for p in range(6):
            g = gepi[p] + 4 * (OPT['fd0'] if ((p < 3 and OPT['hop0']) or OPT['hop1']) else OPT['fd1'])
            pos = SC.place(mk(f"v_mov_b32 v{vC}, {p+1}") + mk(f"WAITV st{p}"), g, g + 20, 'asap', f'flag{p}')
            hst = f"buffer_store_dword v{vC}, v{vFLW}, {sWS}, s37 offen"
            SC.fill[pos[-1] + 1] += mk(f"s_cmp_eq_u32 s58, 0\ns_cbranch_scc1 L_rel{p}") + mk(hst, tag=f'fl{p+1}', cost=8) + mk(f"L_relb{p}:")
            slow.extend(mk(f"L_rel{p}:\nbuffer_wbl2 sc1\ns_waitcnt vmcnt(0)\n{hst} sc1\ns_branch L_relb{p}", cond=True))
        pload = f"buffer_load_dword v{vFV}, v43, {sWS}, 0 offen sc1"
        def hloads(p):
            L = mk(f"s_add_u32 s69, s{PS+p}, {'s59' if p < 6 else 's100'}")
            for j in range(4): L += mk(f"buffer_load_dwordx4 {vr(HB(p)+4*j,4)}, v{vST}, {sWS}, s69 offen offset:{1024*j} sc1", tag=f"hl{p}", cost=8)
            return L
        ghl = {}
        for p in range(3, 9):
            u0 = N1 + QP[p]
            SC.place(mk(pload, tag=f'pp{p}', cost=8), gi[u0 - 1], gi[u0 + 1], 'asap', f'pp{p}')
            ck = f"v_cmp_le_u32 vcc, {p-2}, v{vFV}"
            pos = SC.place(mk(f"WAITV pp{p}") + mk(ck), gi[u0 + OPT['pchk']], gi[u0 + OPT['pchk'] + 1], 'asap', f'chk{p}')
            SC.fill[pos[-1] + 2] += mk(f"s_cbranch_vccz L_slowP{p}\nL_backP{p}:")
            slow.extend(mk(f"L_slowP{p}:\n" + (f"s_add_u32 s93, s93, {1 << (4*(p-3))}\n" if OPT['stamp'] else "") + f"s_mov_b32 s68, 0\nL_spinP{p}:\n{pload}\ns_waitcnt vmcnt(0)\n{ck}\ns_add_u32 s68, s68, 1\ns_nop 4\ns_cbranch_vccnz L_backP{p}\ns_cmp_lt_u32 s68, 0x80000\ns_cbranch_scc1 L_spinP{p}\ns_branch L_backP{p}", cond=True))
            ghl[p] = SC.place(hloads(p), pos[-1] + 3, gi[u0 + OPT['pchk'] + 5], 'asap', f'hl{p}')[-1]
        sQ = 's[16:19]'
        RS = [80, 84, 88]
        def sloads(srd, tag, cond=False):
            L = []
            for k in range(3):
                L += mk(f"s_lshl_b32 s69, s{60+k}, 4\ns_add_u32 s69, s69, s50", cond=cond)
                for u in range(2): L += mk(f"buffer_load_dwordx2 {vr(RS[k]+2*u,2)}, v41, {srd}, s69 offen offset:{512*u} sc1", tag=tag, cond=cond, cost=8)
            return L
        L = []
        for k in range(3): L += mk(f"s_add_u32 m0, s36, {1024*k}") + mk(f"buffer_load_dwordx4 v{vXO}, {sX}, s{60+k} offen lds", tag='xo', cost=8)
        L += mk(f"buffer_load_dword v42, v{vFR}, {sWS}, 0 offen sc1", tag='p0', cost=8)
        SC.place(L, max(ghl[7], gi[bar_at[33]]) + 1, ghl[7] + 30, 'asap', 'p0')
        pos = SC.place(mk("WAITV p0\nv_cmp_le_u32 s[70:71], 9, v42"), ghl[8] - 6, ghl[8] + 8, 'asap', 'chkS')
        SC.fill[pos[-1] + 1] += mk(f"s_and_b32 s66, s70, s52\ns_cmp_eq_u32 s66, s52\ns_cselect_b32 s18, {WS_BYTES}, 0\ns_cselect_b32 s54, 1, 0")
        L = []
        for k in range(3):
            for u in range(2): L += mk(f"ds_read_b64 {vr(XV+4*k+2*u,2)}, v{vL1} offset:{1024*k+32*u}", tag='xr')
        SC.place(L, pos[-1] + 2, gs(17, 30), 'asap', 'xr')
        g = SC.place(sloads(sQ, 'ls') + mk(fload, tag='p1', cost=8), max(ghl[8] + 1, pos[-1] + 2), gs(17, 40), 'asap', 'ls')[-1]
        SC.place(mk(f"v_mov_b32 v{vC}, 8") + mk("WAITV st7") + fstore(8), max(g + 1, gs(17, 32)), len(SC.head), 'asap', 'flag8')
    print("; gemm2 per-stage planned cycles:", [sum(16 + max(0, SC.used(g) - SC.cap[g]) for g in range(gs(i), gs(i + 1) if i < 17 else len(SC.head))) for i in range(18)], file=sys.stderr)
    print("; overflow cycles: pass0 %d, pass1-5 %d, gemm2 %d" % (SC.overflow(0, gi[72]), SC.overflow(gi[72], gi[N1]), SC.overflow(gi[N1])), file=sys.stderr)
    marks = [gi[72], gi[144], gi[N1], gi[N1 + 72]]
    ids = [4, 5, 6, 7]
    if OPT['marks'] == 2:
        marks = [gs(12), gs(13), gs(14), gs(15), gs(16), gs(17), len(SC.head)]; ids = [1, 2, 3, 4, 5, 6, 7]
    if OPT['marks'] == 3:
        marks = [gs(6), gs(7), gs(8), gs(9), gs(10), gs(11), gs(12)]; ids = [1, 2, 3, 4, 5, 6, 7]
    if OPT['marks'] == 5:
        marks = [gs(0), gs(1), gs(2), gs(3), gs(4), gs(5), gs(6)]; ids = [1, 2, 3, 4, 5, 6, 7]
    if OPT['marks'] == 6:
        marks = [gi[72], gi[144], gi[216], gi[288], gi[360], gi[N1]]; ids = [2, 3, 4, 5, 6, 7]
    if OPT['marks'] == 1:
        marks = [gs(0), gs(6), gs(8), gs(10), gs(12), gs(14), gs(16)]; ids = [1, 2, 3, 4, 5, 6, 7]
    prev = 0
    for i, g in zip(ids, marks):
        P.add(SC.emit(prev, g)); stamp(P, i); prev = g
    P.add(SC.emit(prev))
    if OPT['fuse']:
        P("WAITV hl8"); P.add(hopacc(8))
    P.add(epi(8))
    k0 = [i for i, x in enumerate(P.l) if x.text.startswith('WAITL r3')][0]
    def keep(x):
        if OPT['nosilu'] and x.base in ('v_exp_f32', 'v_rcp_f32', 'v_add_f32', 'v_mul_f32'): return False
        if OPT['nodma'] and x.kind == 'vmem' and 'lds' in x.mods: return False
        if OPT['nodma'] and x.op == 'WAITV': return False
        if OPT['nobar'] and x.kind == 'bar': return False
        if OPT['nost'] and (x.tag or '').startswith('st'): return False
        return True
    def fix(x):
        if OPT['nodma'] and x.op == 'WAITVL': return I('WAITL ' + x.ops[1])
        return x
    P.l = P.l[:k0] + [fix(x) for x in P.l[k0:] if keep(x)]
    stamp(P, 8)
    if OPT['fuse']:
        G = [ACC2 + 32 * ((6 + k) % 4) for k in range(3)]
        SS = [g + 8 for g in G]
        XU = 144
        def cloads(ks, srd, tag, cond=False):
            for k in ks:
                P(f"s_add_u32 s67, s{PS+6+k}, s49", cond=cond)
                for d in range(1, 4): P(f"s_add_u32 s69, s67, s{96+d}\nbuffer_load_dwordx4 {ar(12*k+4*(d-1),4)}, v{vST}, {srd}, s69 offen sc1", tag=tag, cond=cond)
        def spin(name, thr, mask):
            P(f"s_mov_b32 s68, 0\nL_spin{name}:", cond=True)
            P(fload + "\ns_waitcnt vmcnt(0)\n" + chk(thr, mask) + f"\ns_cbranch_scc1 L_done{name}\ns_sleep {OPT['slp']}\ns_add_u32 s68, s68, 1\ns_cmp_lt_u32 s68, 0x80000\ns_cbranch_scc1 L_spin{name}\nL_done{name}:", cond=True)
        def unitT(ks):
            for k in ks:
                for d in range(3): P.add(accum(G[k], ar(12 * k + 4 * d, 4)))
            for k in ks:
                g_, t_ = G[k], G[k] + 16
                for i in range(8): P(f"v_exp_f32_e64 v{t_+i}, -v{g_+i}")
                for i in range(8): P(f"v_fma_f32 v{t_+i}, v{t_+i}, s71, s71")
                for i in range(8): P(f"v_rcp_f32 v{t_+i}, v{t_+i}")
                for i in range(8): P(f"v_mul_f32 v{g_+i}, v{g_+i}, v{t_+i}")
        P("WAITV p1\n" + chk(8, 's53') + f"\ns_cselect_b32 s18, {WS_BYTES}, 0\ns_cselect_b32 s55, 1, 0")
        cloads([0, 1], sQ, 'lc0')
        P(chk(9, 's53') + f"\ns_cselect_b32 s18, {WS_BYTES}, 0\ns_cselect_b32 s56, 1, 0")
        cloads([2], sQ, 'lc2')
        P(f"v_mov_b32 v{vC}, 9\ns_mov_b32 s71, {hx(LOG2E)}")
        for d in range(12): P(f"v_lshlrev_b32 v{XU+2*d}, 16, v{XV+d}\nv_and_b32 v{XU+2*d+1}, s57, v{XV+d}")
        P("WAITV st8"); P.add(fstore(9)); stamp(P, 12)
        P("s_cmp_eq_u32 s55, 1\ns_cbranch_scc1 L_have8")
        spin('8', 8, 's53')
        cloads([0, 1], sWS, 'lc0b', True); P("s_waitcnt vmcnt(0)", cond=True)
        P("L_have8:")
        P(fload, tag='p2')
        P("WAITV lc0")
        stamp(P, 9)
        unitT([0, 1])
        P("s_waitcnt vmcnt(0)")
        P("s_cmp_eq_u32 s54, 1\ns_cbranch_scc1 L_chk9")
        P(chk(9, 's52') + "\ns_cbranch_scc0 L_chk9\ns_mov_b32 s54, 1", cond=True)
        P.add(sloads(sWS, 'ls2', True))
        P("L_chk9:")
        P("s_cmp_eq_u32 s56, 1\ns_cbranch_scc1 L_have9")
        P(chk(9, 's53') + "\ns_cbranch_scc1 L_done9", cond=True)
        spin('9', 9, 's53')
        cloads([2], sWS, 'lc2b', True)
        P("L_have9:")
        P("s_waitcnt vmcnt(0)")
        stamp(P, 10)
        unitT([2])
        P("s_cmp_eq_u32 s54, 1\ns_cbranch_scc1 L_haveS")
        spin('S', 9, 's52')
        P.add(sloads(sWS, 'ls3', True)); P("s_waitcnt vmcnt(0)", cond=True)
        P("L_haveS:")
        for k in range(3):
            g_, s_, pk = G[k], SS[k], G[k] + 24
            for d in range(4): P(f"v_lshlrev_b32 v{s_+2*d}, 16, v{RS[k]+d}\nv_and_b32 v{s_+2*d+1}, s57, v{RS[k]+d}")
            for i in range(8): P(f"v_fma_f32 v{g_+i}, v{g_+i}, v{s_+i}, v{XU+8*k+i}")
            for d in range(4): P(f"v_cvt_pk_bf16_f32 v{pk+d}, v{g_+2*d}, v{g_+2*d+1}")
            P(f"ds_write_b64 v{vL2}, {vr(pk,2)} offset:{4096+1280*k}\nds_write_b64 v{vL2}, {vr(pk+2,2)} offset:{4096+1280*k+32}", tag=f'ow{k}')
            P(f"ds_read_b128 {vr(pk+4,4)}, v{vL3} offset:{4096+1280*k}", tag=f'or{k}')
            if k: P(f"WAITL or{k-1}\nbuffer_store_dwordx4 {vr(G[k-1]+28,4)}, v{vXO}, s[72:75], s{60+k-1} offen")
        P(f"WAITL or2\nbuffer_store_dwordx4 {vr(G[2]+28,4)}, v{vXO}, s[72:75], s62 offen")
        stamp(P, 11)
    stamp_flush(P, 12)
    P("s_endpgm")
    P.add(slow)
    return P.l

def attn():
    P = Prog()
    P("s_endpgm")
    return P.l

def final():
    P = Prog()
    P("s_endpgm")
    return P.l

def finish(lst):
    lst = resolve_waits(lst)
    lst, nfix = fix_hazards(lst, OPT['verbose'])
    errs = check_scoreboard(lst)
    for e in errs[:20]: print("; SCOREBOARD ERR", e, file=sys.stderr)
    assert not errs
    lst, mis, sz = align_pass(lst)
    print(f"; hazard nops inserted: {nfix}, instrs: {len(lst)}, misaligned {mis}, bytes {sz}", file=sys.stderr)
    return lst

def main():
    try:
        import gen_attn
    except ImportError:
        gen_attn = None
    P0 = Prog(); common_prologue(P0)
    f = finish(P0.l + ffn())[:]
    a = finish(P0.l + (gen_attn.attn(globals()) if gen_attn and OPT['attn'] else attn()))
    a = a[[i for i, x in enumerate(a) if x.text.startswith('s_cbranch_scc1 L_attn')][0] + 1:]
    k2 = finish(gen_attn.final(globals()) if gen_attn else final())
    out = []
    MK = NAME + "_kernel" if OPT['fuse'] else "main_kernel"
    if OPT['fuse']: out.append(f"; @launch grid=(256,1,1) block=(256,1,1) lds={LDS_BYTES}")
    else:
        out.append(f"; @launch kernel=main_kernel grid=(256,1,1) block=(256,1,1) lds={LDS_BYTES}")
        out.append(f"; @launch kernel=final_kernel grid=(576,1,1) block=(256,1,1) lds=0")
    out.append('.amdgcn_target "amdgcn-amd-amdhsa--gfx950"\n.text')
    out.append(f".globl {MK}\n.p2align 8\n.type {MK},@function\n{MK}:\nL_main_start:")
    out += [x.text for x in f]
    out.append(".p2align 6\nL_attn:")
    out += [x.text for x in a]
    out.append("L_exit:\ns_endpgm\nL_main_end:")
    if not OPT['fuse']:
        out.append(".globl final_kernel\n.p2align 8\n.type final_kernel,@function\nfinal_kernel:")
        out += [x.text for x in k2]
    out.append('.section .rodata,"a"')
    for nm, nv, ao in ((MK, 512, 256), ("final_kernel", 96, 96))[:1 if OPT['fuse'] else 2]:
        out.append(f".p2align 6\n.amdhsa_kernel {nm}\n  .amdhsa_next_free_vgpr {nv}\n  .amdhsa_next_free_sgpr 102\n  .amdhsa_accum_offset {ao}\n  .amdhsa_group_segment_fixed_size 0\n  .amdhsa_kernarg_size 72\n  .amdhsa_user_sgpr_count 2\n  .amdhsa_user_sgpr_kernarg_segment_ptr 1\n  .amdhsa_system_sgpr_workgroup_id_x 1\n  .amdhsa_float_denorm_mode_32 3\n.end_amdhsa_kernel")
    txt = "\n".join(out) + "\n"
    import subprocess, re as _re, tempfile, os
    d = tempfile.mkdtemp()
    open(d + "/a.s", "w").write(txt.replace("CODE_PF_MAX", "0x12345"))
    r = subprocess.run(["clang", "-x", "assembler", "-target", "amdgcn-amd-amdhsa", "-mcpu=gfx950", "-c", d + "/a.s", "-o", d + "/a.o"], capture_output=True, text=True)
    assert r.returncode == 0, r.stderr
    sy = subprocess.run(["llvm-readelf", "-s", d + "/a.o"], capture_output=True, text=True).stdout
    def sym(n): return int([l for l in sy.splitlines() if l.strip().endswith(" " + n)][0].split()[1], 16)
    size = sym("L_main_end") - sym("L_main_start")
    print(f"; main code bytes {size}, attn at {sym('L_attn')}", file=sys.stderr)
    print(txt.replace("CODE_PF_MAX", str(size - 1024)))

if __name__ == "__main__":
    main()
```

```python
import sys
from asmlib import *

def attn(G):
    globals().update({k: v for k, v in G.items() if not k.startswith('__') and k not in ('attn', 'final')})
    P = Prog()
    ARING = 18432; ANS = 8
    ACC = 40; XR = 112; AF = 192
    KO, KP, VV = 0, 36, 72
    vDQ = [16, 17, 18, 19, 20]; vDW = [21, 22, 23, 24, 25]
    vRX = [26, 27, 28]; vRR = [29, 30, 31]
    vST, vFL = 32, 33
    vFLW = 39
    sG = sSL
    TQ = 58
    TW = 67
    TS = 40
    sLB = 's3'
    sHS = 's[8:11]'
    sFS = 's[4:7]'
    HOFF = 's100'
    P(f"s_and_b32 {sG}, s39, 3")
    P(f"s_mov_b32 s16, s6\ns_mov_b32 s17, s7\ns_mov_b32 s18, {576*1728*2}\ns_mov_b32 s19, 0x20000")
    P(f"s_mov_b32 s20, s8\ns_mov_b32 s21, s9\ns_mov_b32 s22, {576*576*2}\ns_mov_b32 s23, 0x20000")
    if OPT['fuse']:
        P(f"s_add_u32 s96, {sG}, 12")
        flag_setup(P, vFLW, 's96', 'v21', True)
        hsk = handshake('s96', 'v1', 'v38')
        P.add(hsk[:-1])
    P(f"s_mul_i32 s49, {sWV}, 9\ns_lshr_b32 s49, s49, 1\ns_lshl_b32 {sLB}, s49, 10")
    P(f"s_mul_i32 s51, {sG}, 288")
    for st in range(9):
        P(f"s_mul_i32 s{TQ+st}, s50, {64*3456}\ns_add_u32 s{TQ+st}, s{TQ+st}, s51")
        if st < 8: P(f"s_add_u32 s50, s50, 1\ns_cmp_eq_u32 s50, 9\ns_cselect_b32 s50, 0, s50")
    P(f"s_mov_b32 s96, {-(-(1<<32)//18)}\ns_lshl_b32 s97, s49, 6\ns_mov_b32 s98, 3456")
    for n in range(5):
        imm = 1024 * n if n < 4 else 0
        P(f"v_add_u32 v2, s97, v0")
        if n < 4: P(f"s_add_u32 s97, s97, 64")
        P(f"v_mul_hi_u32 v3, v2, s96\nv_mul_u32_u24 v4, 18, v3\nv_sub_u32 v2, v2, v4\nv_lshlrev_b32 v2, 4, v2")
        P(f"v_and_b32 v4, 35, v3\nv_bfe_u32 v5, v3, 2, 2\nv_lshl_add_u32 v4, v5, 3, v4\nv_bfe_u32 v5, v3, 4, 1\nv_lshl_add_u32 v4, v5, 2, v4")
        P(f"v_mad_u32_u24 v{vDQ[n]}, v4, s98, v2")
        if imm: P(f"v_subrev_u32 v{vDQ[n]}, {imm}, v{vDQ[n]}")
    D = Prog()
    D(f"v_lshlrev_b32 v{vST}, 4, v0\ns_lshl_b32 s96, {sG}, 2\ns_add_u32 s96, s96, {sWV}\ns_mul_i32 {HOFF}, s96, {18*1024}\ns_add_u32 {HOFF}, {HOFF}, {WS_KV}")
    D(f"s_min_u32 s97, {sWV}, 1\ns_min_u32 s96, {sM}, 1\ns_andn2_b32 s96, s96, s97")
    D(f"s_mul_i32 s97, s97, {18*1024}\ns_sub_u32 s8, {HOFF}, s97\ns_mul_i32 s97, s96, {BB - 3*18*1024}\ns_sub_u32 s8, s8, s97\ns_xor_b32 s96, s96, 1\ns_lshl_b32 s9, s96, 30")
    D(f"s_lshl_b32 s96, {sG}, 7\ns_add_u32 s96, s96, {WS_FLAG - BB + 3*2048 + 12*128}\ns_add_u32 s96, s96, s9\nv_mov_b32 v1, s96\nv_mov_b32 v38, 1")
    nD0 = len(D.l)
    OO = TW + 4
    D(f"s_lshl_b32 s53, {sM}, 2")
    for d in range(4):
        D(f"s_xor_b32 s52, {sG}, {d}\ns_mul_i32 s{TW+d}, s52, {144*1152}\ns_add_u32 s{TW+d}, s{TW+d}, s51")
        D(f"s_lshl_b32 s52, s52, 2\ns_add_u32 s52, s52, {sWV}\ns_mul_i32 s{OO+d}, s52, 9216\ns_add_u32 s{OO+d}, s{OO+d}, {WS_O}")
    D(f"s_mul_i32 s40, {sWV}, 72\ns_mul_i32 s52, {sG}, 9\ns_add_u32 s40, s40, s52\ns_lshl_b32 s40, s40, 9\ns_add_u32 s40, s40, {WS_S}")
    def wvoff(Q, dst, last):
        Q(f"s_mov_b32 s96, {-(-(1<<32)//18)}\ns_lshl_b32 s97, s49, 6\ns_mov_b32 s98, 1152")
        for n in range(5):
            imm = (1024 * n if n < 4 else 0)
            Q(f"v_add_u32 v34, s97, v0")
            if n < 4: Q(f"s_add_u32 s97, s97, 64")
            Q(f"v_mul_hi_u32 v35, v34, s96\nv_mul_u32_u24 v36, 18, v35\nv_sub_u32 v34, v34, v36\nv_lshlrev_b32 v34, 4, v34\nv_lshrrev_b32 v36, 4, v35")
            if not last: Q(f"v_add_u32 v36, 1, v36\nv_and_b32 v36, 6, v36\nv_lshl_add_u32 v35, v36, 1, v35")
            else: Q(f"v_xor_b32 v36, {sG}, v36\nv_mul_u32_u24 v36, 144, v36\nv_bfe_u32 v37, v35, 2, 2\nv_mad_u32_u24 v36, v37, 36, v36\nv_and_b32 v35, 3, v35\nv_add3_u32 v35, v35, v36, 16")
            Q(f"v_mad_u32_u24 v{dst[n]}, v35, s98, v34")
            if imm: Q(f"v_subrev_u32 v{dst[n]}, {imm}, v{dst[n]}")
    wvoff(D, vDW, False)
    if OPT['pfwo']:
        D(f"s_add_u32 s96, s53, {sG}\ns_mul_i32 s96, s96, 81\ns_mul_i32 s97, {sWV}, 20\ns_add_u32 s96, s96, s97\ns_lshl_b32 s96, s96, 7\nv_min_u32 v34, 20, v0\nv_lshlrev_b32 v34, 7, v34")
        D(f"buffer_load_dword a191, v34, {sWB}, s96 offen", tag='dummy', cost=8)
    PCOL = [1152, 2304, 0]
    def slotof(s): return s % ANS
    WORD = [(0, 0), (0, 1), (1, 0), (2, 0), (3, 0), (1, 1), (2, 1), (3, 1)]
    def dma(s):
        slot = slotof(s) * ARING
        if s < 18: srd, vD, pre, so = sWA, vDQ, f"\ns_add_u32 s99, s{TQ + s % 9}, {PCOL[s // 9]}", 's99'
        elif s < 27: srd, vD, pre, so = sWA, vDQ, "", f"s{TQ + s % 9}"
        elif s < 35 and WORD[s - 27][1] == 0: srd, vD, pre, so = sWB, vDW, "", f"s{TW + WORD[s - 27][0]}"
        elif s < 35: srd, vD, pre, so = sWB, vDW, f"\ns_add_u32 s10, s{TW + WORD[s - 27][0]}, {72*1152}", 's10'
        else: srd, vD, pre, so = sWB, vDQ, "", 's41'
        t = f"d{s}"
        L = mk(f"s_add_u32 m0, {sLB}, {slot}{pre}")
        for n in range(4): L += mk(f"buffer_load_dwordx4 v{vD[n]}, {srd}, {so} offen offset:{1024*n} lds", tag=t, cost=8)
        L += mk(f"s_add_u32 m0, {sLB}, {slot+4096}")
        L += mk(f"buffer_load_dwordx4 v{vD[4]}, {srd}, {so} offen lds", tag=t, cost=8)
        return L
    P(f"v_lshrrev_b32 v2, 2, v0\nv_mul_u32_u24 v2, 288, v2\nv_and_b32 v3, 3, v0\nv_lshl_add_u32 v{vRX[0]}, v3, 3, v2")
    P(f"v_mul_u32_u24 v4, 72, v3\nv_add3_u32 v{vRR[0]}, v2, v4, 32")
    for b_ in (1, 2): P(f"v_add_u32 v{vRX[b_]}, {3*b_*ARING}, v{vRX[0]}\nv_add_u32 v{vRR[b_]}, {3*b_*ARING}, v{vRR[0]}")
    P(f"v_and_b32 v2, 15, v0\nv_lshlrev_b32 v2, 7, v2\nv_add_u32 v2, s54, v2\nv_bfe_u32 v3, v0, 1, 3\nv_lshrrev_b32 v4, 4, v0\nv_xor_b32 v3, v3, v4")
    P(f"v_lshl_add_u32 v34, v3, 4, v2\nv_xor_b32 v35, 64, v34\nv_add_u32 v36, 98304, v34\nv_add_u32 v37, 98304, v35")
    SEL = 40
    sel_consts(P, 48, 'v2', 'v3', 'v4')
    for r in range(6): P(f'v_accvgpr_write_b32 a{144+r}, v{48+r}')
    for r in range(8, 16): P(f"v_mov_b32 v{r}, 0")
    P("s_mov_b32 s57, 0x3f803f80")
    setup = P.l; P.l = []
    fr = [[(XR + 8 * (2 * S + f // 2) + 4 * (f % 2), (34 if S < 6 else 36) + (f // 2), ((S // 3) % 2) * 49152 + (S % 3) * 4096 + (f % 2) * 2048, f % 2) for f in range(4)] for S in range(9)]
    xphase(P, setup, fr, [[8, 9], [10, 11]], [[12, 13], [14, 15]], {5: dma(0), 7: dma(1), 9: dma(2)})
    DB = [[8, 12], [22, 32]]
    def um(F, db=None):
        d = db or DB[F % 2]
        return mk(f"v_mfma_f32_16x16x32_bf16 {vr(d[0],4)}, a[146:149], {vr(XR+4*F,4)}, 0\nv_mfma_f32_16x16x32_bf16 {vr(d[1],4)}, a[144:147], {vr(XR+4*F,4)}, 0")
    def nv(F, db=None):
        d = db or DB[F % 2]; x = XR + 4 * F; r = [d[0] + j for j in range(4)] + [d[1] + j for j in range(4)]
        return mk("\n".join(f"v_fma_f32 v{q}, v{q}, v{2+F%2}, v{4+F%2}" for q in r) + "\n" + "\n".join(f"v_cvt_pk_bf16_f32 v{x+j}, v{r[2*j]}, v{r[2*j+1]}" for j in range(4)))
    for a in (8, 10, 12, 14): P(f"v_add_f32 v{a}, v{a}, v{a+1}")
    P.add(um(0, [48, 52])); P.add(um(1, [56, 60])); P.add(um(2, [64, 68]))
    for sw in ('32', '16'):
        for a in (8, 10, 12, 14): P(f"v_mov_b32 v{a+1}, v{a}")
        for a in (8, 10, 12, 14): P(f"v_permlane{sw}_swap_b32 v{a}, v{a+1}")
        for a in (8, 10, 12, 14): P(f"v_add_f32 v{a}, v{a}, v{a+1}")
    A1 = Prog(); ln_stats(A1, 'v8', 'v12', 'v4', 'v2', None)
    A2 = Prog(); ln_stats(A2, 'v10', 'v14', 'v5', 'v3', None)
    for a, b in zip(A1.l, A2.l): P.add([a, b])
    P("v_mul_f32 v4, v4, v2\nv_mul_f32 v5, v5, v3")
    uses = []
    for ps in range(3):
        for ks in range(18):
            s = 9 * ps + ks // 2; slot = s % ANS
            for j in range(9):
                n = len(uses); af = AF + 4 * (n % 16)
                off = (slot % 3) * ARING + (ks & 1) * 9216 + (36 * j + 4 * (j & 1) if j < 8 else 0)
                va = (vRX if j < 8 else vRR)[slot // 3]
                rd = mk(f"ds_read_b64_tr_b16 {ar(af,2)}, v{va} offset:{off}\nds_read_b64_tr_b16 {ar(af+2,2)}, v{va} offset:{off+4608}", tag=f"r{n}")
                mf = []
                for Pp in range(2):
                    acc = vr(ACC + 8 * j + 4 * Pp, 4); x = vr(XR + 8 * ks + 4 * Pp, 4)
                    a, b = (ar(af, 4), x) if ps != 1 else (x, ar(af, 4))
                    mf += mk(f"v_mfma_f32_16x16x32_bf16 {acc}, {a}, {b}, {'0' if ks == 0 else acc}")
                uses.append((s, rd, mf))
    NQ = len(uses); PD = 5
    BARS = [0, 1] + list(range(2, 27, 2))
    extra_w = {2: 'fz', 16: 'hs0', 22: 'hs1'}
    def barrier(s):
        L = mk(f"WAITV d{s if (s < 2 or s >= 26) else s + 1}")
        if s in extra_w: L += mk(f"WAITV {extra_w[s]}")
        return L + mk("s_barrier")
    P.add(barrier(0))
    for n in range(PD): P.add(uses[n][1])
    P.add(nv(0, [48, 52])); P.add(nv(1, [56, 60])); P.add(nv(2, [64, 68]))
    P("WAITL r2")
    stamp(P, 3)
    SC = Sched(); gi = {}; gbar = {0: -1}; gst = {}; gu = {}
    for n in range(NQ):
        mf = uses[n][2]
        if n % 9 in (0, 5):
            F = 2 * (n // 9) + (n % 9) // 5 + 3
            if F < 36:
                for m_ in um(F): gu[F] = SC.gap([m_], 16)
        g0 = SC.gap([mf[0]], 16); g1 = SC.gap([mf[1]], 16); gi[n] = g0
        if n + PD < NQ:
            s_ = uses[n + PD][0]
            if s_ != uses[n + PD - 1][0]: gst[s_] = g0
            if s_ != uses[n + PD - 1][0] and s_ in BARS:
                SC.mand[g0] += barrier(s_); gbar[s_] = g0
                SC.mand[g1] += uses[n + PD][1]
            else: SC.mand[g0] += uses[n + PD][1]
        if n % 3 == 2 and n + 1 < NQ: SC.tail[g1] += mk(f"WAITL r{n+3}")
    gi[NQ] = len(SC.head); gbar[28] = gst[27] = len(SC.head)
    stg = [8, 12]
    for ps in range(2):
        for j in range(9):
            nlast = 162 * ps + 153 + j
            d = stg[j % 2]; a = ACC + 8 * j
            L = mk("\n".join(f"v_cvt_pk_bf16_f32 v{d+q}, v{a+2*q}, v{a+2*q+1}" for q in range(4)))
            g = gi[nlast + 5]
            SC.fill[g] += L[:1]; SC.fill[g + 1] += L[1:]
            dst = [KO + 4 * j + q for q in range(4)] if ps == 0 else [VV + 8 * j + q for q in (0, 1, 6, 7)]
            L = mk("\n".join(f"v_accvgpr_write_b32 a{dst[q]}, v{d+q}" for q in range(4)))
            if ps == 1:
                if j % 4 == 0: L += mk(f"s_add_u32 s101, {HOFF}, {(9*ps+j)*1024}")
                L += mk(f"buffer_store_dwordx4 {vr(d,4)}, v{vST}, {sWS}, s101 offen offset:{1024*(j%4)} sc1", tag=f"hs{ps}", cost=8)
            SC.fill[g + 2] += L[:2]; SC.fill[g + 3] += L[2:]
    SC.place(dma(3) + dma(4), 0, gbar[1], 'spread', 'dma3')
    SC.place(dma(5) + dma(6), gbar[1] + 1, gbar[2], 'spread', 'dma5')
    for s in range(2, 27, 2): SC.place(dma(s + 5) + dma(s + 6), gbar[s] + 1, gbar[s + 2], 'spread', f'dma{s+5}')
    for F in range(3, 36):
        SC.place(nv(F), gu[F] + 3, (gu[F + 1] + 3) if F < 35 else gu[F] + 15, 'asap', f'nv{F}')
    SC.place(hsk[-1:], gbar[2] + 1, gbar[2] + 12, 'asap', 'hsk')
    g = SC.place(D.l[:nD0], gst[10], gst[12], 'asap', 'deferred0')[-1]
    L = []
    for j in range(9):
        if j % 4 == 0: L += mk(f"s_add_u32 s101, {HOFF}, {j*1024}")
        L += mk(f"buffer_store_dwordx4 {ar(KO+4*j,4)}, v{vST}, {sWS}, s101 offen offset:{1024*(j%4)} sc1", tag="hs0", cost=8)
    SC.place(L, g + 1, gst[13], 'spread', 'hs0')
    hsl = f"buffer_load_dword v7, v6, {sDBG}, 0 offen sc1"
    D2 = D.l[nD0:]
    k_ = len(D2) // 2
    D2 = D2[:k_] + mk(f"s_mov_b32 s41, s51\ns_max_u32 s42, {sM}, 1\ns_lshl_b32 s42, s42, 4\ns_sub_u32 s42, s42, 16\ns_min_u32 s4, {sM}, 1\ns_lshl_b32 s4, s4, 2\ns_or_b32 s4, s4, 3\nv_xor_b32 v6, 4, v0\nv_and_b32 v6, s4, v6\nv_lshlrev_b32 v6, 2, v6\nv_add_u32 v6, s42, v6") + mk(hsl, tag='hc', cost=8) + D2[k_:] + mk(f"buffer_load_dword a191, v{vFLW}, {sWS}, s37 offen sc1", tag='dummy', cost=8)
    SC.place(D2, g + 1, gst[17], 'asap', 'deferred1')
    fl = f"buffer_store_dword v38, v{vFLW}, {sWS}, 0 offen sc1"
    SC.place(mk(fl, tag='fl', cost=8) + mk("v_mov_b32 v38, 2"), gbar[16] + 1, gst[17], 'asap', 'flagK')
    SC.place(mk(fl, tag='fl', cost=8), gbar[22] + 1, gbar[22] + 12, 'asap', 'flagV')
    hck = "v_and_b32 v5, 0xff, v7\nv_cmp_le_u32 vcc, 4, v5\ns_and_b32 s96, vcc_lo, 0xff\ns_cmp_eq_u32 s96, 0xff"
    L = mk("WAITV hc") + mk(hck)
    pos = SC.place(L[:-2], gst[19] + 2, gst[19] + 14, 'asap', 'hck')
    SC.fill[pos[-1] + 1] += L[-2:] + mk("s_cbranch_scc0 L_aslowH\nL_abackH:")
    slow = mk(f"L_aslowH:\ns_mov_b32 s97, 0\nL_aspinH:\n{hsl}\ns_waitcnt vmcnt(0)\n{hck}\ns_cbranch_scc1 L_abackH\ns_sleep 1\ns_add_u32 s97, s97, 1\ns_cmp_lt_u32 s97, 0x80000\ns_cbranch_scc1 L_aspinH\ns_branch L_abackH", cond=True)
    pos = SC.place(mk("v_lshrrev_b32 v7, 24, v7\nv_readfirstlane_b32 s96, v7\nv_cmp_ne_u32 vcc, s96, v7"), pos[-1] + 2, gst[20] - 4, 'spread', 'mode')
    SC.fill[pos[-1] + 3] += mk(("s_or_b32 vcc_lo, vcc_lo, 1\n" if OPT['forcefb'] else "") + "s_and_b32 s96, vcc_lo, 15\ns_cselect_b32 s46, 0, 1")
    CO, CP, MO, MP = 4, 8, 12, 14
    sGRP = ["s[50:51]", "s[52:53]", "s[54:55]", "s[56:57]"]
    Mk = Prog()
    Mk(f"s_or_b32 s98, {sM}, {sWV}\ns_min_u32 s98, s98, 1\ns_mul_i32 s98, s98, -90\ns_add_u32 s98, s98, 99")
    Mk("v_and_b32 v34, 15, v0\nv_lshrrev_b32 v35, 4, v0")
    for g in range(4): Mk(f"v_cmp_eq_u32 {sGRP[g]}, {g}, v35")
    Mk("v_lshlrev_b32 v35, 2, v35\nv_sub_u32 v35, v35, v34\nv_add_u32 v35, 7, v35")
    Mk(f"v_mov_b32 v36, 0xff7f0000\nv_mov_b32 v2, 0xffff\nv_mov_b32 v3, 0xffff0000\ns_add_u32 s98, s98, 7")
    for r in range(4):
        Mk(f"v_add_u32 v34, {r}, v35")
        Mk(f"v_cmp_gt_u32 vcc, 8, v34")
        Mk(f"v_cmp_le_i32 s[96:97], s98, v34")
        Mk(f"v_cndmask_b32 v{CO+r}, v36, 0, vcc".replace("v36, 0, vcc", "v36, 0, vcc"))
        Mk(f"v_cndmask_b32 v37, 0, v{2+r%2}, vcc")
        Mk(f"v_mov_b32 v{MO+r//2}, v37" if r % 2 == 0 else f"v_or_b32 v{MO+r//2}, v{MO+r//2}, v37")
        Mk(f"v_cndmask_b32 v{CP+r}, v36, 0, s[96:97]")
        Mk(f"v_cndmask_b32 v37, 0, v{2+r%2}, s[96:97]")
        Mk(f"v_mov_b32 v{MP+r//2}, v37" if r % 2 == 0 else f"v_or_b32 v{MP+r//2}, v{MP+r//2}, v37")
    Mk(f"s_mov_b32 s99, {hx(18 ** -0.5 * LOG2E)}\nv_mov_b32 v2, 0x3f803f80\nv_mov_b32 v3, 0x3f803f80")
    SC.place(Mk.l, gst[20] + 2, gst[25], 'asap', 'masks')
    def halo(name, bit, gp, gc, g1, loads, dst):
        hload = f"buffer_load_dword v{dst}, v1, {sWS}, 0 offen sc1"
        SC.place(mk(hload, tag=f'hp{name}', cost=8), gp, gp + 12, 'asap', 'hp' + name)
        pos = SC.place(mk(f"WAITV hp{name}\nv_readfirstlane_b32 s11, v{dst}"), gc, gc + 12, 'asap', 'hc' + name)
        SC.fill[pos[-1] + 1] += mk(f"s_or_b32 s11, s11, s9\ns_cmp_lt_u32 s11, {bit}\ns_cbranch_scc1 L_hslow{name}\nL_hback{name}:")
        slow.extend(mk(f"L_hslow{name}:\ns_mov_b32 s42, 0\nL_hspin{name}:\n{hload}\ns_waitcnt vmcnt(0)\nv_readfirstlane_b32 s11, v{dst}\ns_add_u32 s42, s42, 1\ns_cmp_ge_u32 s11, {bit}\ns_cbranch_scc1 L_hback{name}\ns_sleep 1\ns_cmp_lt_u32 s42, 0x80000\ns_cbranch_scc1 L_hspin{name}\ns_branch L_hback{name}", cond=True))
        SC.place(loads, pos[-1] + 2, g1, 'asap', 'hl' + name)
    L = []
    for j in range(9):
        if j % 4 == 0: L += mk(f"s_add_u32 s101, s8, {j*1024}")
        L += mk(f"buffer_load_dwordx4 {ar(KP+4*j,4)}, v{vST}, {sWS}, s101 offen offset:{1024*(j%4)} sc1", tag='hk', cost=8)
    halo('K', 1, gst[20] + 2, gst[23], gst[25], L, 33)
    L = []
    for j in range(9):
        if j % 4 == 0: L += mk(f"s_add_u32 s101, s8, {(9+j)*1024}")
        L += mk(f"buffer_load_dwordx4 {ar(VV+8*j+2,4)}, v{vST}, {sWS}, s101 offen offset:{1024*(j%4)} sc1", tag='hv', cost=8)
    hvL = L
    hloadV = f"buffer_load_dword v33, v1, {sWS}, 0 offen sc1"
    SC.place(mk(hloadV, tag='hpV', cost=8), gbar[26] + 1, gbar[26] + 12, 'asap', 'hpV')
    hvC = mk("WAITV hpV\nv_readfirstlane_b32 s11, v33\ns_or_b32 s11, s11, s9\ns_cmp_lt_u32 s11, 2\ns_cbranch_scc1 L_hslowV\nL_hbackV:")
    slow.extend(mk(f"L_hslowV:\ns_mov_b32 s42, 0\nL_hspinV:\n{hloadV}\ns_waitcnt vmcnt(0)\nv_readfirstlane_b32 s11, v33\ns_add_u32 s42, s42, 1\ns_cmp_ge_u32 s11, 2\ns_cbranch_scc1 L_hbackV\ns_sleep 1\ns_cmp_lt_u32 s42, 0x80000\ns_cbranch_scc1 L_hspinV\ns_branch L_hbackV", cond=True))
    QX = XR
    qtail = []
    for j in range(9):
        L = mk("\n".join(f"v_cvt_pk_bf16_f32 v{QX+4*j+q}, v{ACC+8*j+2*q}, v{ACC+8*j+2*q+1}" for q in range(4)))
        n = 324 + 153 + j + 4
        if n < NQ: SC.fill[gi[n]] += L[:2]; SC.fill[gi[n] + 1] += L[2:]
        else: qtail += L
    print("; attn qkv overflow %d" % SC.overflow(), file=sys.stderr)
    P.add(SC.emit(0, gi[162])); stamp(P, 4)
    P.add(SC.emit(gi[162], gi[324])); stamp(P, 5)
    P.add(SC.emit(gi[324]))
    SB = 148; QRM = 104; W = 40; POP = 72; SM = 88; OP = 212
    P.add(qtail)
    for Pp in range(2): P(f"v_mov_b32 v{QRM+4*Pp+1}, 0\nv_mov_b32 v{QRM+4*Pp+2}, 0")
    P("s_barrier")
    stamp(P, 6)
    def sbuf(e, hh, Pp): return SB + 32 * (e % 2) + 16 * hh + 8 * Pp
    def Sm(e):
        L = []
        for hh in range(2):
            for Pp in range(2): L += mk(f"v_cndmask_b32 v{QRM+4*Pp+3*hh}, 0, v{QX+32+2*Pp+hh}, {sGRP[e]}")
        for k, KB in enumerate((KO, KP)):
            if e == 0 and k == 1: L += mk("WAITV hk")
            for part in range(2):
                for hh in range(2):
                    h = 2 * e + hh
                    for Pp in range(2):
                        d = vr(sbuf(e, hh, Pp) + 4 * k, 4)
                        if part == 0: L += mk(f"v_mfma_f32_16x16x16_bf16 {d}, {ar(KB+4*h+2*Pp,2)}, {vr(QX+4*h+2*Pp,2)}, {vr((CO,CP)[k],4)}")
                        else: L += mk(f"v_mfma_f32_16x16x16_bf16 {d}, {ar(KB+32+2*Pp,2)}, {vr(QRM+4*Pp+2*hh,2)}, {d}")
        return L
    def head(e, hh):
        L = []
        w = W + 16 * hh
        T = [[w + 8 * Pp + r for r in range(4)] for Pp in range(2)]
        K = [[w + 8 * Pp + 4, w + 8 * Pp + 5] for Pp in range(2)]
        M = [w + 6, w + 14]
        def both(f):
            a, b = mk(f(0)), mk(f(1))
            for x, y in zip(a, b): L.append(x); L.append(y)
        both(lambda p: "\n".join(f"v_max_f32 v{T[p][r]}, v{sbuf(e,hh,p)+4+r}, v{sbuf(e,hh,p)+r}" for r in range(4)))
        both(lambda p: f"v_max3_f32 v{M[p]}, v{T[p][0]}, v{T[p][1]}, v{T[p][2]}\nv_max_f32 v{M[p]}, v{M[p]}, v{T[p][3]}")
        L += mk(f"v_permlane32_swap_b32 v{M[0]}, v{M[1]}\nv_max_f32 v{M[0]}, v{M[0]}, v{M[1]}\nv_mov_b32 v{M[1]}, v{M[0]}\nv_permlane16_swap_b32 v{M[0]}, v{M[1]}\nv_max_f32 v{M[0]}, v{M[0]}, v{M[1]}")
        L += mk(f"v_mul_f32 v{M[0]}, s99, v{M[0]}\nv_mov_b32 v{M[1]}, v{M[0]}\nv_permlane32_swap_b32 v{M[0]}, v{M[1]}")
        both(lambda p: "\n".join(f"v_fma_f32 v{T[p][r]}, v{T[p][r]}, s99, -v{M[p]}" for r in range(4)))
        both(lambda p: "\n".join(f"v_exp_f32 v{T[p][r]}, v{T[p][r]}" for r in range(4)))
        both(lambda p: f"v_cvt_pk_bf16_f32 v{K[p][0]}, v{T[p][0]}, v{T[p][1]}\nv_cvt_pk_bf16_f32 v{K[p][1]}, v{T[p][2]}, v{T[p][3]}")
        po = lambda p: POP + 8 * hh + 4 * p
        both(lambda p: f"v_and_b32 v{po(p)+2-2*p}, v{MP}, v{K[p][0]}\nv_and_b32 v{po(p)+3-2*p}, v{MP+1}, v{K[p][1]}\nv_and_b32 v{po(p)+2*p}, v{MO}, v{K[p][0]}\nv_and_b32 v{po(p)+1+2*p}, v{MO+1}, v{K[p][1]}")
        return L
    def PVm(e):
        L = []
        if e == 0: L += mk("WAITV hv")
        for hh in range(2):
            for Pp in range(2):
                L += mk(f"v_mfma_f32_16x16x16_bf16 {vr(SM+8*hh+4*Pp,4)}, v[2:3], {vr(W+16*hh+8*Pp+4,2)}, 0")
        for hh in range(2):
            h = 2 * e + hh
            for Pp in range(2):
                for k, tile in enumerate((h, 8)):
                    L += mk(f"v_mfma_f32_16x16x32_bf16 {vr(sbuf(e,hh,Pp)+4*k,4)}, {ar(VV+8*tile+4*Pp,4)}, {vr(POP+8*hh+4*Pp,4)}, 0")
        return L
    def Oc(e):
        L = []
        U = [(hh, Pp) for hh in range(2) for Pp in range(2)]
        for hh, Pp in U: L += mk(f"v_rcp_f32 v{SM+8*hh+4*Pp}, v{SM+8*hh+4*Pp}")
        for hh, Pp in U:
            d = sbuf(e, hh, Pp); rr = SM + 8 * hh + 4 * Pp
            for q in (0, 1, 2, 3, 4 + 2 * hh, 5 + 2 * hh): L += mk(f"v_mul_f32 v{d+q}, v{rr}, v{d+q}")
        for hh, Pp in U:
            d = sbuf(e, hh, Pp); o = OP + 20 * Pp + 4 * e + 2 * hh
            L += mk(f"v_cvt_pk_bf16_f32 v{o}, v{d}, v{d+1}\nv_cvt_pk_bf16_f32 v{o+1}, v{d+2}, v{d+3}")
            if e == 0: L += mk(f"v_cvt_pk_bf16_f32 v{OP+20*Pp+16+hh}, v{d+4+2*hh}, v{d+5+2*hh}")
            else: L += mk(f"v_cvt_pk_bf16_f32 v{d+4}, v{d+4+2*hh}, v{d+5+2*hh}")
        if e:
            for hh, Pp in U:
                d = sbuf(e, hh, Pp); o = OP + 20 * Pp + 16 + hh
                L += mk(f"v_cndmask_b32 v{o}, v{o}, v{d+4}, {sGRP[e]}")
        return L
    WA = Prog(); wvoff(WA, vDQ, True)
    WA(f"s_lshl_b32 s96, {sWV}, 11\ns_add_u32 s96, s96, {WS_FLAG + HFOFF + 12*128}\nv_and_b32 v1, 3, v0\nv_lshlrev_b32 v1, 7, v1\nv_add_u32 v1, s96, v1\nv_lshlrev_b32 v38, 3, v0")
    WA(f"s_mov_b32 s43, s{OO}\ns_add_u32 s44, s{OO}, 4096\ns_add_u32 s45, s{OO}, 8192")
    def ostore(e): return mk("\n".join(f"buffer_store_dwordx4 {vr(OP+20*Pp+4*e,4)}, v{vST}, {sWS}, s{43+Pp} offen offset:{1024*e} sc1" for Pp in range(2)), tag=f'os{e//2}', cost=8)
    fst = f"buffer_store_dword v33, v{vFLW}, {sWS}, s37 offen"
    def oflag(h):
        slow.extend(mk(f"L_orel{h}:\n{fst} sc1\ns_branch L_orelb{h}", cond=True))
        return mk(f"v_mov_b32 v33, {h+1}\nWAITV os{h}") + mk(f"s_cmp_eq_u32 s46, 0\ns_cbranch_scc1 L_orel{h}") + mk(fst, tag='ofl', cost=8) + mk(f"L_orelb{h}:")
    opl = f"buffer_load_dword v34, v1, {sWS}, 0 offen sc1"
    def ochk(h):
        ck = f"v_cmp_ge_u32 vcc, {h}, v34"
        slow.extend(mk(f"L_oslow{h}:\ns_mov_b32 s97, 0\nL_ospin{h}:\n{opl}\ns_waitcnt vmcnt(0)\n{ck}\ns_add_u32 s97, s97, 1\ns_nop 4\ns_cbranch_vccz L_oback{h}\ns_cmp_lt_u32 s97, 0x80000\ns_cbranch_scc1 L_ospin{h}\ns_branch L_oback{h}", cond=True))
        return mk(f"WAITV op{h}\n{ck}"), mk(f"s_cbranch_vccnz L_oslow{h}\nL_oback{h}:")
    s0 = Sm(0)
    P.add(hvC)
    P.add(weave(weave(s0, [WA.l[i:i+4] for i in range(0, len(WA.l), 4)], 1), dgroups(hvL), 8))
    for e in range(4):
        a, b = head(e, 0), head(e, 1)
        merged = []
        for x, y in zip(a, b): merged += [x, y]
        if e == 0: P.add(weave(Sm(1)[:12], [], 1)); P.add(weave(weave(merged, [[x] for x in Sm(1)[12:]], 3), dgroups(dma(33) + dma(34)), 9))
        else:
            pre = Oc(e - 1) + (ostore(e - 1) if e < 3 else []) + (Sm(e + 1) if e + 1 < 4 else [])
            body = merged[:16] + weave(merged[16:], [[x] for x in pre], 1)
            if e == 3:
                k_ = len(body) * OPT['ofl1'] // 100
                body = body[:k_] + oflag(0) + body[k_:] + mk(opl, tag='op0')
            P.add(body)
        P.add(PVm(e))
    stamp(P, 7)
    def breg(d, e, Pp): return ar((144 if e < 2 else 0) + 16 * (d - 1) + 8 * (e % 2) + 4 * Pp, 4)
    def bop(step, Pp):
        if step < 4: return vr(OP + 20 * Pp + 4 * step, 4)
        if step < 16: d, h = WORD[step // 2]; return breg(d, 2 * h + step % 2, Pp)
        if step == 16: return vr(OP + 20 * Pp + 16, 4)
        return ar(96 + 4 * Pp, 4)
    def oloads(h):
        L = []
        for d in range(1, 4):
            L += mk(f"s_add_u32 s47, s{OO+d}, 4096")
            for e in (2 * h, 2 * h + 1):
                for Pp in range(2): L += mk(f"buffer_load_dwordx4 {breg(d, e, Pp)}, v{vST}, {sWS}, s{(OO+d) if Pp == 0 else 47} offen offset:{1024*e} sc1", tag=f"ol{2*WORD.index((d, h)) + e % 2}", cost=8)
        return L
    uses = []
    for ks in range(18):
        s = 27 + ks // 2; slot = slotof(s)
        for j in range(9):
            n = len(uses); af = AF + 4 * (n % 16)
            off = (slot % 3) * ARING + (ks & 1) * 9216 + 32 * j
            va = vRX[slot // 3]
            rd = mk(f"ds_read_b64_tr_b16 {ar(af,2)}, v{va} offset:{off}\nds_read_b64_tr_b16 {ar(af+2,2)}, v{va} offset:{off+4608}", tag=f"w{n}")
            mf = []
            for Pp in range(2):
                acc = vr(ACC + 8 * j + 4 * Pp, 4)
                mf += mk(f"v_mfma_f32_16x16x32_bf16 {acc}, {ar(af,4)}, {bop(ks, Pp)}, {'0' if ks == 0 else acc}")
            uses.append((s, rd, mf))
    NW = len(uses)
    P("WAITV d34\ns_barrier")
    for n in range(PD): P.add(uses[n][1])
    oc = Oc(3); c0, c1 = ochk(0)
    P.add(oc[:30] + c0 + oc[30:] + c1)
    ol0 = oloads(0)
    P.add(ol0[:5])
    P("WAITL w2")
    SC = Sched(); gi = {}; gbar = {27: -1}
    for n in range(NW):
        mf = uses[n][2]
        g0 = SC.gap([mf[0]], 16); g1 = SC.gap([mf[1]], 16); gi[n] = g0
        if n + PD < NW:
            if uses[n + PD][0] != uses[n + PD - 1][0] and uses[n + PD][0] in (30, 35):
                SC.mand[g0] += barrier(35) if uses[n + PD][0] == 35 else mk("s_barrier"); gbar[uses[n + PD][0]] = g0
                SC.mand[g1] += uses[n + PD][1]
            else: SC.mand[g0] += uses[n + PD][1]
        if n % 3 == 2 and n + 1 < NW: SC.tail[g1] += mk(f"WAITL w{n+3}")
        if (n + 1) % 9 == 0 and 4 <= (n + 1) // 9 < 18: SC.tail[g1] += mk(f"WAITV ol{(n+1)//9}")
    gi[NW] = len(SC.head)
    L = ostore(2) + ostore(3) + mk(f"buffer_store_dwordx2 {vr(OP+16,2)}, v38, {sWS}, s45 offen sc1\nbuffer_store_dwordx2 {vr(OP+36,2)}, v38, {sWS}, s45 offen offset:512 sc1", tag='os1', cost=8) + ol0[5:]
    SC.place(L, 0, gi[28], 'asap', 'os1')
    SC.fill[gi[OPT['ofl']] + 1] += oflag(1)
    SC.fill[gi[OPT['opl']] + 1] += mk(opl, tag='op1', cost=8)
    g = gi[OPT['opl'] + 10] + 1
    c0, c1 = ochk(1)
    SC.fill[g] += c0; SC.fill[g + 2] += c1
    g = SC.place(oloads(1), g + 3, gi[88], 'asap', 'ol1')[-1] + 1
    L = []
    for d in range(1, 4):
        L += mk(f"s_add_u32 s44, s{OO+d}, 8192")
        for Pp in range(2):
            dst = vr(OP + 20 * Pp + 18, 2) if d == 1 else ar(96 + 4 * Pp + 2 * (d - 2), 2)
            L += mk(f"buffer_load_dwordx2 {dst}, v38, {sWS}, s44 offen offset:{512*Pp} sc1", tag="ol16" if d == 1 else "ol17", cost=8)
    g = SC.place(L, g, gi[130], 'asap', 'olR')[-1]
    SC.place(dma(35), max(g, gbar[30]) + 1, gi[130], 'asap', 'dma35')
    WSTG = 112
    tailE = mk(f"s_add_u32 s41, s40, {36*512}\ns_add_u32 s43, s40, 4096\ns_add_u32 s44, s41, 4096")
    SC.place(tailE, gi[140], gi[150], 'asap', 'sb'); tailE = []
    for j in range(9):
        L = []
        for Pp in range(2):
            a_ = ACC + 8 * j + 4 * Pp; d = WSTG + 4 * j + 2 * Pp
            L += mk(f"v_cvt_pk_bf16_f32 v{d}, v{a_}, v{a_+1}\nv_cvt_pk_bf16_f32 v{d+1}, v{a_+2}, v{a_+3}")
        for Pp in range(2):
            d = WSTG + 4 * j + 2 * Pp
            L += mk(f"buffer_store_dwordx2 {vr(d,2)}, v38, {sWS}, s{(40+Pp) if j < 8 else (43+Pp)} offen offset:{512*(j%8)} sc1", tag='st', cost=8)
        n = 153 + j + 4
        if n < NW: SC.fill[gi[n]] += L[:3]; SC.fill[gi[n] + 1] += L[3:]
        else: tailE += L
    print("; attn wo overflow %d" % SC.overflow(), file=sys.stderr)
    if OPT['marks'] == 4:
        mk_ = [0, gi[30], gi[37], gi[73], gi[135], gi[145], len(SC.head)]
        for i in range(6): stamp(P, 1 + i); P.add(SC.emit(mk_[i], mk_[i + 1]))
    else: P.add(SC.emit())
    P.add(tailE)
    stamp(P, 8)
    if OPT['fuse']: P(f"v_mov_b32 v2, 15\ns_waitcnt vmcnt(0)\nbuffer_store_dword v2, v{vFLW}, {sWS}, 0 offen sc1")
    stamp(P, 9)
    stamp_flush(P, 10)
    P("s_endpgm")
    P.add(slow)
    return P.l

def final(G):
    globals().update({k: v for k, v in G.items() if not k.startswith('__') and k not in ('attn', 'final')})
    P = Prog()
    P("s_cmp_ge_u32 s2, 576\ns_cbranch_scc1 L_fexit")
    if OPT['stamp']: P("s_memrealtime s[40:41]\ns_load_dwordx2 s[44:45], s[0:1], 56")
    P("s_load_dwordx2 s[4:5], s[0:1], 0\ns_load_dwordx2 s[8:9], s[0:1], 48\ns_load_dwordx2 s[12:13], s[0:1], 64")
    P(f"s_mov_b32 s16, {-(-(1<<32)//36)}\ns_mul_hi_u32 s17, s2, s16\ns_mul_i32 s18, s17, 36\ns_sub_u32 s18, s2, s18")
    P(f"s_cmp_ge_u32 s18, 18\ns_cselect_b32 s19, 1, 0\ns_mul_i32 s20, s19, 18\ns_sub_u32 s20, s18, s20")
    P(f"s_mul_i32 s21, s17, {16*36*4096}\ns_lshl_b32 s22, s18, 12\ns_add_u32 s21, s21, s22")
    P("v_lshlrev_b32 v1, 4, v0")
    P("v_lshrrev_b32 v2, 7, v0\nv_lshlrev_b32 v2, 5, v2\nv_bfe_u32 v3, v0, 6, 1\nv_add_u32 v2, v2, v3\nv_and_b32 v3, 15, v0\nv_lshlrev_b32 v3, 1, v3\nv_add_u32 v2, v2, v3")
    P("s_lshl_b32 s22, s17, 7\ns_lshl_b32 s23, s19, 6\ns_add_u32 s22, s22, s23\nv_add_u32 v2, s22, v2\nv_mul_u32_u24 v2, 1152, v2")
    P("v_bfe_u32 v3, v0, 4, 2\nv_lshlrev_b32 v3, 3, v3\nv_add_u32 v2, v2, v3\ns_lshl_b32 s23, s20, 6")
    P("s_waitcnt lgkmcnt(0)")
    P(f"s_mov_b32 s6, {2048*576*2}\ns_mov_b32 s7, 0x20000\ns_mov_b32 s10, {2048*576*2}\ns_mov_b32 s11, 0x20000\ns_mov_b32 s14, {WS_BYTES}\ns_mov_b32 s15, 0x20000")
    for j in range(16):
        P(f"buffer_load_dwordx4 {vr(32+4*j,4)}, v1, s[12:15], s21 offen", tag=f"p{j}")
        if j < 15: P(f"s_add_u32 s21, s21, {36*4096}")
    P("buffer_load_dwordx2 v[4:5], v2, s[4:7], s23 offen\nbuffer_load_dwordx2 v[6:7], v2, s[4:7], s23 offen offset:32", tag="x")
    P("s_mov_b32 s24, 0x3f80\ns_mov_b32 s25, 0x3f800000\ns_mov_b32 s26, 0xffff0000")
    for i in range(8, 24): P(f"v_mov_b32 v{i}, 0")
    for j in range(16):
        P(f"WAITV p{j}")
        b = 8 if j < 12 else 16
        for d in range(4):
            P(f"v_dot2c_f32_bf16 v{b+2*d}, s24, v{32+4*j+d}\nv_dot2c_f32_bf16 v{b+2*d+1}, s25, v{32+4*j+d}")
    def rnd(b):
        for d in range(4): P(f"v_cvt_pk_bf16_f32 v{24+d}, v{b+2*d}, v{b+2*d+1}")
        for d in range(4): P(f"v_lshlrev_b32 v{b+2*d}, 16, v{24+d}\nv_and_b32 v{b+2*d+1}, s26, v{24+d}")
    for i in range(8): P(f"v_mul_f32 v{8+i}, {hx(LN2)}, v{8+i}")
    rnd(8)
    for i in range(8): P(f"v_mul_f32 v{32+i}, {hx(-LOG2E)}, v{8+i}")
    for i in range(8): P(f"v_exp_f32 v{32+i}, v{32+i}")
    for i in range(8): P(f"v_add_f32 v{32+i}, 1.0, v{32+i}")
    for i in range(8): P(f"v_rcp_f32 v{32+i}, v{32+i}")
    for i in range(8): P(f"v_mul_f32 v{8+i}, v{8+i}, v{32+i}")
    rnd(8); rnd(16)
    for i in range(8): P(f"v_mul_f32 v{8+i}, v{8+i}, v{16+i}")
    rnd(8)
    P("WAITV x")
    for d in range(4): P(f"v_lshlrev_b32 v{16+2*d}, 16, v{4+d}\nv_and_b32 v{17+2*d}, s26, v{4+d}")
    for i in range(8): P(f"v_add_f32 v{8+i}, v{8+i}, v{16+i}")
    for d in range(4): P(f"v_cvt_pk_bf16_f32 v{24+d}, v{8+2*d}, v{9+2*d}")
    P("buffer_store_dwordx2 v[24:25], v2, s[8:11], s23 offen\nbuffer_store_dwordx2 v[26:27], v2, s[8:11], s23 offen offset:32")
    if OPT['stamp'] == 2:
        P("s_cmp_lg_u32 s2, 0\ns_cbranch_scc1 L_fexit")
        P(f"s_mov_b32 s48, {WS_STAMP}\nv_mov_b32 v1, 0\nbuffer_load_dword v4, v1, s[12:15], s48 offen offset:56\ns_waitcnt vmcnt(0)\nv_readfirstlane_b32 s50, v4\ns_nop 4")
        P("L_spin:\ns_memrealtime s[42:43]\ns_waitcnt lgkmcnt(0)\ns_sub_u32 s42, s42, s50\ns_cmp_lt_u32 s42, 10000\ns_cbranch_scc1 L_spin")
    if OPT['stamp'] == 1:
        P("s_waitcnt vmcnt(0)\ns_memrealtime s[42:43]\ns_mov_b32 s46, 256\ns_mov_b32 s47, 0x20000\ns_waitcnt lgkmcnt(0)")
        P("v_lshlrev_b32 v1, 8, v0\nv_mov_b32 v3, s42\nbuffer_atomic_umax v3, v1, s[44:47], 0 offen offset:12")
        P("s_cmp_lg_u32 s2, 0\ns_cbranch_scc1 L_fexit")
        P(f"s_mov_b32 s48, {WS_STAMP}\nbuffer_load_dwordx2 v[4:5], v1, s[12:15], s48 offen offset:56\nv_mov_b32 v6, 0\nv_mov_b32 v7, s40\ns_waitcnt vmcnt(0)\nv_not_b32 v4, v4")
        P("buffer_atomic_umax v4, v6, s[44:47], 0 offen\nbuffer_atomic_umax v5, v6, s[44:47], 0 offen offset:4\nbuffer_store_dword v7, v1, s[44:47], 0 offen offset:8")
        P(f"v_lshlrev_b32 v1, 2, v0\ns_mov_b32 s48, {WS_STAMP + OPT['dbgwg']*256}\nbuffer_load_dword v4, v1, s[12:15], s48 offen\nv_add_u32 v1, 16, v1\ns_mov_b32 s46, 64\ns_waitcnt vmcnt(0)\nbuffer_store_dword v4, v1, s[44:47], 0 offen")
    P("L_fexit:\ns_endpgm")
    return P.l
```

```python
import sys, math
from asmlib import *

OPT = dict(bbx=1024, omod=0, q3=80, q4=94, q5=118, lat0=26, lat1=22, e1=62, e2=81, fd0=17, fd1=9, hop1=0, hop0=1, fdel0=44, pfwo=1, ofl=36, opl=50, ofl1=55, pfh0=216, nb2=2, hsplit=2, dpre=3, pst=0, xlead=3, slp=4, rt=0, pfh=0, pchk=9, fdel=32, a3=8, a4=3, cin=22, sat=15*12+4,  forcefb=0, marks=0, wcost=16, fuse=1, stmod=1, dbgwg=64, nosilu=0, nodma=0, nobar=0, nost=0, pd1=7, pd2=3, stamp=0, ffn=1, attn=1, verbose=0, rot=1, pfw=0, pfcode=1)
for a in sys.argv[1:]:
    k, v = a.split('='); OPT[k] = int(v)

STMOD = ['', ' sc1', ' nt', ' sc0 sc1', ' sc1 nt'][OPT['stmod']]
NAME = "recurrent_scan__sliding_local_dilated__dense_activation_silu__prompt"
LOG2E = 1.4426950408889634
LN2 = 0.6931471805599453
import struct
def f2u(f): return struct.unpack('<I', struct.pack('<f', f))[0]
def hx(f): return "0x%08x" % f2u(f)

JS = 147456
BB = 13 * JS + OPT['bbx']
WS_FIN = BB
WS_HOP = BB + 4 * JS
WS_S = BB + 8 * JS
WS_O = BB + 9 * JS
WS_KV = BB + 10 * JS
WS_FLAG = BB + 12 * JS
HFOFF = 8192
WS_FB = 34 << 20
WS_STAMP = 80 << 20
WS_BYTES = 96 << 20
LDS_BYTES = 155648

sX, sWA, sWB, sWS, sDBG = 's[12:15]', 's[16:19]', 's[20:23]', 's[24:27]', 's[28:31]'
sM, sSL, sWV, sROT, sMEM = 's32', 's33', 's34', 's35', 's36'

def vr(a, n): return f"v[{a}:{a+n-1}]" if n > 1 else f"v{a}"
def ar(a, n): return f"a[{a}:{a+n-1}]" if n > 1 else f"a{a}"

stamp_n = [0]
def stamp(P, idx):
    if not OPT['stamp']: return
    if OPT['pst']:
        if idx < 100 and idx != 3: return
        idx = 9 if idx == 3 else idx - 100
    elif idx >= 100: return
    P(f"{'s_memrealtime' if OPT['rt'] else 's_memtime'} s[78:79]\ns_waitcnt lgkmcnt(0)\ns_mov_b32 s{80+idx}, s78")
def stamp_flush(P, n):
    if not OPT['stamp']: return
    P(f"s_memrealtime s[78:79]\ns_waitcnt lgkmcnt(0)\ns_mov_b32 s{80+15}, s78")
    P(f"s_lshl_b32 s76, s2, 2\ns_add_u32 s76, s76, {sWV}\ns_lshl_b32 s76, s76, 6\ns_add_u32 s76, s76, {WS_STAMP}\ns_mul_i32 s77, {sM}, {BB}\ns_sub_u32 s76, s76, s77")
    P("v_mov_b32 v1, 0")
    for i in range(4):
        for j in range(4): P(f"v_mov_b32 v{4+j}, s{80+4*i+j}")
        P(f"buffer_store_dwordx4 v[4:7], v1, {sWS}, s76 offen offset:{16*i}")
        P("s_nop 1")

def round_bf16(P, dst, src):
    P(f"v_cvt_pk_bf16_f32 {dst}, {src}, {src}\nv_and_b32 {dst}, 0xffff0000, {dst}")

def ln_stats(P, vsum, vsq, vnegm, vr_, tmp):
    P(f"v_mul_f32 {vsum}, {hx(1/576)}, {vsum}")
    P(f"v_mul_f32 {vsq}, {hx(1/576)}, {vsq}")
    P(f"v_fma_f32 {vsq}, -{vsum}, {vsum}, {vsq}")
    P(f"v_max_f32 {vsq}, 0, {vsq}")
    round_bf16(P, vnegm, vsum)
    P(f"v_xor_b32 {vnegm}, 0x80000000, {vnegm}")
    round_bf16(P, vsq, vsq)
    P(f"v_add_f32 {vsq}, {hx(1e-5)}, {vsq}")
    round_bf16(P, vsq, vsq)
    P(f"v_sqrt_f32 {vsq}, {vsq}")
    round_bf16(P, vsq, vsq)
    P(f"v_rcp_f32 {vr_}, {vsq}")

def sel_consts(P, vsel, t0, t1, t2):
    P(f"v_mov_b32 v{vsel}, 0\nv_mov_b32 v{vsel+1}, 0\nv_mov_b32 v{vsel+4}, 0\nv_mov_b32 v{vsel+5}, 0")
    P(f"v_and_b32 {t0}, 1, v0\nv_lshlrev_b32 {t0}, 4, {t0}\nv_mov_b32 {t1}, 0x3f80\nv_lshlrev_b32 {t0}, {t0}, {t1}")
    P(f"v_bfe_u32 {t1}, v0, 2, 2\nv_lshrrev_b32 {t2}, 4, v0")
    P(f"v_cmp_eq_u32 vcc, {t1}, {t2}\nv_cndmask_b32 {t0}, 0, {t0}, vcc")
    P(f"v_and_b32 {t1}, 2, v0\nv_cmp_eq_u32 vcc, 0, {t1}")
    P(f"v_cndmask_b32 v{vsel+2}, 0, {t0}, vcc\nv_cndmask_b32 v{vsel+3}, {t0}, v{vsel}, vcc")

def common_prologue(P):
    P("s_cmp_ge_u32 s2, 256\ns_cbranch_scc1 L_exit")
    P("s_load_dwordx4 s[4:7], s[0:1], 0\ns_load_dwordx2 s[8:9], s[0:1], 16\ns_load_dwordx4 s[40:43], s[0:1], 32\ns_load_dwordx4 s[44:47], s[0:1], 56")
    P(f"v_lshrrev_b32 v1, 6, v0\nv_lshlrev_b32 v46, 7, v0\nv_readfirstlane_b32 {sWV}, v1\nv_and_b32 v0, 63, v0")
    if OPT['stamp']: P("s_memrealtime s[78:79]\ns_memtime s[76:77]")
    if OPT['pfcode']:
        P("s_getpc_b64 s[48:49]\ns_bfe_u32 s58, s2, 0x20003\ns_lshl_b32 s58, s58, 15\nv_add_u32 v46, s58, v46")
        P("v_min_u32 v46, CODE_PF_MAX, v46\nglobal_load_dword v47, v46, s[48:49]", tag='dummy')
    if OPT['stamp']:
        for i in range(80, 96): P(f's_mov_b32 s{i}, 0')
    P("s_and_b32 s37, s2, 1\ns_lshl_b32 s37, s37, 3")
    P("s_bfe_u32 s38, s2, 0x20001")
    P(f"s_lshr_b32 s39, s2, 3\ns_and_b32 {sMEM}, s39, 7\ns_add_u32 {sM}, s37, {sMEM}")
    P(f"s_lshl_b32 s51, s38, 1\ns_add_u32 s51, s51, s37\ns_lshr_b32 s52, s39, 2\ns_add_u32 s51, s51, s52")
    P(f"s_lshl_b32 s52, s39, 1\ns_and_b32 s52, s52, 6\ns_add_u32 s52, s52, s51\ns_mul_i32 s53, s52, 57\ns_lshr_b32 s53, s53, 9\ns_mul_i32 s53, s53, 9\ns_sub_u32 s52, s52, s53")
    P(f"s_lshr_b32 {sROT}, s39, 3\ns_sub_u32 {sROT}, {sROT}, 1\ns_mul_i32 s50, {sROT}, 3\ns_cmp_lt_u32 s39, 8\ns_cselect_b32 s50, s52, s50\ns_cselect_b32 {sM}, s51, {sM}")
    if not OPT['rot']: P(f"s_mov_b32 s50, 0")
    P(f"s_lshl_b32 s53, {sM}, 7\ns_lshl_b32 s54, {sWV}, 5\ns_add_u32 s53, s53, s54\ns_mul_i32 s53, s53, 1152")
    P(f"v_lshrrev_b32 v2, 3, v0\nv_mul_u32_u24 v2, 2304, v2\nv_lshrrev_b32 v3, 4, v0\nv_and_b32 v44, 7, v0\nv_xor_b32 v3, v3, v44\nv_lshlrev_b32 v3, 4, v3")
    P(f"v_add_u32 v44, v2, v3\nv_add_u32 v44, s53, v44\nv_xor_b32 v45, 64, v44\nv_add_u32 v45, {16*1152-1024}, v45")
    P(f"s_lshl_b32 s55, s50, 7\ns_mul_i32 s54, {sWV}, 12288")
    P("s_waitcnt lgkmcnt(0)")
    if OPT['stamp']: P("s_mov_b32 s94, s78\ns_mov_b32 s80, s76")
    P(f"s_mov_b32 s12, s4\ns_mov_b32 s13, s5\ns_mov_b32 s14, {2048*576*2}\ns_mov_b32 s15, 0x20000")
    stamp(P, 101)
    P.add(xdma(0, 0)); P.add(xdma(0, 1)); P.add(xdma(0, 2))
    stamp(P, 102)
    P(f"s_mul_i32 s24, {sM}, {BB}\ns_add_u32 s24, s24, s46\ns_addc_u32 s25, s47, 0\ns_mov_b32 s26, {WS_BYTES}\ns_mov_b32 s27, 0x20000")
    P(f"s_mov_b32 s28, s44\ns_mov_b32 s29, s45\ns_mov_b32 s30, 256\ns_mov_b32 s31, 0x20000")
    P("s_cmp_lt_u32 s39, 8\ns_cbranch_scc1 L_attn")

def xdma(st, S):
    Q = Prog()
    Q(f"s_add_u32 m0, s54, {st*49152+S*4096}\ns_add_u32 s56, s55, 1152")
    Q(f"buffer_load_dwordx4 v44, {sX}, s55 offen lds\nbuffer_load_dwordx4 v45, {sX}, s55 offen offset:1024 lds", tag=f"x{3*st+S}")
    Q(f"s_add_u32 m0, m0, 2048\ns_add_u32 s55, s55, 128")
    Q(f"buffer_load_dwordx4 v44, {sX}, s56 offen lds\nbuffer_load_dwordx4 v45, {sX}, s56 offen offset:1024 lds", tag=f"x{3*st+S}")
    Q(f"s_cmp_eq_u32 s55, 1152\ns_cselect_b32 s55, 0, s55")
    return Q.l

def weave(main, extra, every):
    out = []; k = 0; cnt = 0
    for idx, ins in enumerate(main):
        out.append(ins); cnt += 1
        nxt = main[idx + 1] if idx + 1 < len(main) else None
        safe = nxt is None or ('scc' not in nxt.rd and 'm0' not in nxt.rd)
        if k < len(extra) and cnt >= every and safe:
            out += extra[k]; k += 1; cnt = 0
    for g in extra[k:]: out += g
    return out

def xphase(P, setup, frags, sums, sqs, dmas, nfirst=3):
    lead = OPT['xlead']
    late = [x for x in setup if x.kind == 'vmem']
    P.add([x for x in setup if x.kind != 'vmem'])
    for S in range(nfirst, lead + 1): P.add(xdma(S // 3, S % 3))
    dmas = dict(dmas); dmas[9] = dmas.get(9, []) + late
    stamp(P, 1); stamp(P, 103)
    def dots(S):
        L = []
        for (d, a, o, k) in frags[S]:
            for j in range(4): L += mk(f"v_dot2c_f32_bf16 v{sums[k][j%2]}, s57, v{d+j}\nv_dot2c_f32_bf16 v{sqs[k][j%2]}, v{d+j}, v{d+j}")
        return L
    for S in range(10):
        if S < 9:
            P(f"WAITV x{S}")
            if S in (0, 2, 5, 8): stamp(P, 104 + (0, 2, 5, 8).index(S))
            for n, (d, a, o, k) in enumerate(frags[S]): P(f"ds_read_b128 {vr(d,4)}, v{a} offset:{o}", tag=f"xr{S}")
        if S == 8: stamp(P, 2)
        if S >= 1:
            P(f"WAITL xr{S-1}")
            if S - 1 in (2, 5): P("s_barrier")
        extra = []
        if S + lead + 1 < 9: extra += dgroups(xdma((S + lead + 1) // 3, (S + lead + 1) % 3))
        if S in dmas: extra += dgroups(dmas[S])
        body = dots(S - 1) if S >= 1 else []
        P.add(weave(body, extra, max(1, len(body) // (len(extra) + 1))))
    stamp(P, 108)

RING = 24576; NSLOT = 5; HX = RING * NSLOT
vA1 = [[16, 17, 18], [19, 20, 21]]; vA2 = [[22, 23, 24], [25, 26, 27]]
vD1 = [28, 29, 30, 31]; vD2 = [32, 33, 34, 35]
vHW, vHR, vST = 36, 37, 38
ACC1 = 48; XR = 112
AF = 192

def flag_setup(P, vFLW, sj, tmpv, hop=False):
    P(f"s_lshl_b32 s66, {sWV}, 11\ns_lshl_b32 s67, {sj}, 7\ns_add_u32 s66, s66, s67\ns_add_u32 s66, s66, {WS_FLAG}")
    P(f"v_lshrrev_b32 {tmpv}, 5, v0\nv_lshlrev_b32 {tmpv}, 30, {tmpv}\nv_lshl_add_u32 {tmpv}, v0, 2, {tmpv}\nv_add_u32 v{vFLW}, s66, {tmpv}\nv_mov_b32 {tmpv}, 0")
    P(f"buffer_store_dword {tmpv}, v{vFLW}, {sWS}, 0 offen sc1", tag='fz')
    if hop: P(f"s_mov_b32 s37, {HFOFF}\nbuffer_store_dword {tmpv}, v{vFLW}, {sWS}, s37 offen sc1", tag='fz')
def handshake(sj, va, vb, xcc=False):
    Q = Prog()
    Q(f"s_lshl_b32 s66, {sM}, 2\ns_and_b32 s67, {sj}, 3\ns_add_u32 s66, s66, s67\ns_lshl_b32 s66, s66, 2\ns_lshl_b32 s67, {sWV}, 8\ns_add_u32 s66, s66, s67")
    Q(f"v_lshlrev_b32 {va}, 8, v0\nv_add_u32 {va}, s66, {va}")
    Q(f"s_getreg_b32 s66, hwreg(HW_REG_XCC_ID)\ns_and_b32 s66, s66, 15\ns_and_b32 s67, {sj}, 12\ns_add_u32 s67, s67, 12\ns_lshl_b32 s66, s66, s67\ns_add_u32 s66, s66, 1\nv_mov_b32 {vb}, s66")
    Q(f"buffer_atomic_add {vb}, {va}, {sDBG}, 0 offen sc1", tag='hsk', cost=8)
    return Q.l

def sel32(P, SEL):
    P("v_and_b32 v2, 1, v0\nv_lshlrev_b32 v2, 4, v2\nv_mov_b32 v3, 0x3f80\nv_lshlrev_b32 v2, v2, v3")
    P("v_bfe_u32 v3, v0, 2, 1\nv_lshlrev_b32 v3, 1, v3\nv_lshrrev_b32 v4, 4, v0\nv_cmp_eq_u32 vcc, v3, v4\nv_cndmask_b32 v2, 0, v2, vcc")
    P("v_bfe_u32 v3, v0, 3, 1\nv_lshlrev_b32 v3, 1, v3\nv_bfe_u32 v4, v0, 1, 1\nv_add_u32 v3, v3, v4")
    for j in range(4): P(f"v_cmp_eq_u32 vcc, {j}, v3\nv_cndmask_b32 v{SEL+j}, 0, v2, vcc")

def dgroups(lst):
    G = []; cur = []
    for x in lst:
        cur.append(x)
        if x.kind == 'vmem': G.append(cur); cur = []
    if cur: G[-1] += cur
    return G

def flat(groups): return [x for g in groups for x in g]

def ffn():
    P = Prog()
    P(f"s_mov_b32 s50, {sROT}" if OPT['rot'] else "s_mov_b32 s50, 0")
    P(f"s_add_u32 s51, s50, 1\ns_cmp_ge_u32 s51, 3\ns_cselect_b32 s51, 0, s51\ns_add_u32 s52, s51, 1\ns_cmp_ge_u32 s52, 3\ns_cselect_b32 s52, 0, s52")
    P(f"s_mul_i32 {sSL}, s38, 3\ns_add_u32 {sSL}, {sSL}, {sROT}")
    P(f"s_mov_b32 s16, s40\ns_mov_b32 s17, s41\ns_mov_b32 s18, {576*4608*2}\ns_mov_b32 s19, 0x20000")
    P(f"s_mov_b32 s20, s42\ns_mov_b32 s21, s43\ns_mov_b32 s22, {576*4608*2}\ns_mov_b32 s23, 0x20000")
    P(f"s_mul_i32 s59, {sSL}, 768")
    P(f"s_mul_i32 s63, {sSL}, {384*1152}\ns_mul_i32 s64, {sWV}, 6144")
    if OPT['fuse']: P(f"s_lshl_b32 {sSL}, {sROT}, 2\ns_add_u32 {sSL}, {sSL}, s38")
    P("s_load_dwordx2 s[72:73], s[0:1], 48")
    vFLW = 39
    if OPT['fuse']: flag_setup(P, vFLW, sSL, 'v14', True)
    def pf_w(which):
        Q = Prog()
        if which == 1:
            Q(f"s_mul_i32 s66, {sMEM}, {72*9216}\ns_add_u32 s66, s66, s59\ns_lshl_b32 s67, {sWV}, 6\ns_mov_b32 s68, {-(-(1<<32)//6)}")
            for i in range(2):
                Q(f"v_add_u32 v10, s67, v0")
                if i: Q(f"v_add_u32 v10, 256, v10\nv_min_u32 v10, 431, v10")
                Q(f"v_mul_hi_u32 v11, v10, s68\nv_lshlrev_b32 v10, 7, v10\nv_mul_u32_u24 v11, {9216-768}, v11\nv_add_u32 v10, v10, v11")
                Q(f"buffer_load_dword v47, v10, {sWA}, s66 offen", tag='dummy', cost=8)
        else:
            nb = OPT['nb2']; n = 108 // nb
            Q(f"s_lshl_b32 s71, {sMEM}, 2\ns_add_u32 s71, s71, {sWV}\ns_mul_i32 s71, s71, {108*128}\ns_add_u32 s71, s71, s63")
            Q(f"v_min_u32 v44, {n-1}, v0\nv_lshlrev_b32 v44, 7, v44")
            for i in range(nb):
                Q(f"buffer_load_dword v47, v44, {sWB}, s71 offen", tag='dummy', cost=8)
                if i < nb - 1: Q(f"s_add_u32 s71, s71, {n*128}")
        return Q.l
    P(f"v_lshrrev_b32 v2, 3, v0\nv_and_b32 v3, 7, v0")
    P(f"s_mul_i32 s58, {sWV}, 48\nv_add_u32 v4, s58, v2")
    P(f"v_bfe_u32 v5, v0, 4, 1\nv_lshlrev_b32 v5, 2, v5\nv_xor_b32 v5, v5, v3\nv_lshlrev_b32 v5, 4, v5")
    P(f"v_mul_u32_u24 v6, 9216, v4\nv_add_u32 v{vD1[0]}, v6, v5")
    for i in range(1, 4): P(f"v_add_u32 v{vD1[i]}, {i*(8*9216-1024)}, v{vD1[0]}")
    P(f"v_bfe_u32 v5, v0, 4, 2\nv_lshlrev_b32 v5, 1, v5\nv_xor_b32 v5, v5, v3\nv_lshlrev_b32 v5, 4, v5")
    P(f"v_mul_u32_u24 v6, 1152, v4\nv_add_u32 v{vD2[0]}, v6, v5")
    for i in range(1, 4): P(f"v_add_u32 v{vD2[i]}, {i*(8*1152-1024)}, v{vD2[0]}")
    for st in range(3): P(f"s_mul_i32 s{60+st}, s{50+st}, {192*9216}\ns_add_u32 s{60+st}, s{60+st}, s59")

    PA, PS = 40, 3
    g2 = [(0,0),(1,0),(2,0),(0,1),(1,1),(2,1)] + [(p,k) for p in range(3,9) for k in range(2)]
    def dma(s):
        slot = (s % NSLOT) * RING
        if s < 18:
            p, st = s // 3, s % 3
            srd, vD, base, add, big = sWA, vD1, f"s{60+st}", p * 128, 32 * 9216
        else:
            p, k = g2[s - 18]
            srd, vD, base, add, big = sWB, vD2, f"s{PA+p}", k * 192 * 1152, 32 * 1152
        t = f"d{s}"
        G = mk(f"s_add_u32 m0, s64, {slot}\ns_add_u32 s65, {base}, {add}")
        for i in range(4): G += mk(f"buffer_load_dwordx4 v{vD[i]}, {srd}, s65 offen offset:{1024*i} lds", tag=t, cost=8)
        G += mk(f"s_add_u32 m0, s64, {slot+4096}\ns_add_u32 s65, {base}, {add+big}")
        for i in range(2): G += mk(f"buffer_load_dwordx4 v{vD[i]}, {srd}, s65 offen offset:{1024*i} lds", tag=t, cost=8)
        return G
    P(f"v_lshrrev_b32 v2, 5, v0\nv_lshlrev_b32 v2, 12, v2\nv_bfe_u32 v3, v0, 2, 2\nv_lshlrev_b32 v3, 7, v3\nv_add_u32 v2, v2, v3")
    P(f"v_bfe_u32 v3, v0, 4, 1\nv_lshlrev_b32 v3, 5, v3\nv_add_u32 v2, v2, v3\nv_and_b32 v3, 3, v0\nv_lshlrev_b32 v3, 3, v3\nv_add_u32 v2, v2, v3")
    P(f"v_bfe_u32 v3, v0, 3, 1\nv_lshlrev_b32 v3, 6, v3\nv_add_u32 v{vA1[0][0]}, v2, v3\nv_xor_b32 v{vA1[1][0]}, 64, v{vA1[0][0]}")
    P(f"v_lshrrev_b32 v2, 2, v0\nv_lshlrev_b32 v2, 7, v2\nv_and_b32 v3, 3, v0\nv_lshlrev_b32 v3, 3, v3\nv_add_u32 v2, v2, v3")
    P(f"s_and_b32 s69, {sWV}, 1\ns_lshl_b32 s69, s69, 1\nv_bfe_u32 v3, v0, 3, 2\nv_xor_b32 v3, s69, v3\nv_lshlrev_b32 v3, 5, v3")
    P(f"v_add_u32 v{vA2[0][0]}, v2, v3\nv_xor_b32 v{vA2[1][0]}, 32, v{vA2[0][0]}")
    for vA in (vA1, vA2):
        for u in range(2):
            for b in (1, 2): P(f"v_add_u32 v{vA[u][b]}, {b*2*RING}, v{vA[u][0]}")
    P(f"v_bfe_u32 v2, v0, 4, 1\nv_lshlrev_b32 v2, 10, v2\nv_lshrrev_b32 v3, 5, v0\nv_lshlrev_b32 v3, 8, v3\nv_add_u32 v2, v2, v3")
    P(f"v_and_b32 v3, 15, v0\nv_lshlrev_b32 v3, 4, v3\nv_add_u32 v2, v2, v3\ns_lshl_b32 s69, {sWV}, 11\ns_add_u32 s69, s69, {HX}\nv_add_u32 v{vHW}, s69, v2")
    if OPT['fuse']: P(f"s_and_b32 s69, {sSL}, 3\ns_lshl_b32 s69, s69, 10\nv_xor_b32 v{vHW}, s69, v{vHW}")
    P(f"v_lshlrev_b32 v{vST}, 4, v0\ns_lshr_b32 s69, {sWV}, 1\ns_lshl_b32 s69, s69, 12\ns_add_u32 s69, s69, {HX}\nv_add_u32 v{vHR}, s69, v{vST}")
    P(f"s_lshl_b32 s70, s38, 1\ns_lshr_b32 s69, {sWV}, 1\ns_add_u32 s70, s70, s69")
    P(f"s_mul_i32 s70, s70, 18\ns_and_b32 s69, {sWV}, 1\ns_add_u32 s70, s70, s69\ns_lshl_b32 s70, s70, 12\ns_add_u32 s70, s70, {WS_FIN}")
    P(f"s_lshr_b32 s66, {sSL}, 2\ns_mul_i32 s67, {sM}, 43\ns_lshr_b32 s67, s67, 7")
    P(f"s_mul_i32 s68, s67, 3\ns_sub_u32 s68, {sM}, s68\ns_add_u32 s68, s68, s66\ns_add_u32 s68, s68, 1")
    P(f"s_cmp_ge_u32 s68, 3\ns_cselect_b32 s69, 3, 0\ns_sub_u32 s68, s68, s69")
    P(f"s_cmp_ge_u32 s67, 3\ns_cselect_b32 s69, 3, 0\ns_sub_u32 s67, s67, s69")
    if not OPT['fuse']: P("s_mov_b32 s67, 0\ns_mov_b32 s68, 0")
    for ph in range(3):
        for k in range(3):
            p = 3 * ph + k
            P(f"s_mul_i32 s69, s68, 3\ns_add_u32 s69, s69, s67\ns_lshl_b32 s{PA+p}, s69, 7\ns_add_u32 s{PA+p}, s{PA+p}, s63\ns_lshl_b32 s{PS+p}, s69, 13\ns_add_u32 s{PS+p}, s{PS+p}, s70")
            P("s_add_u32 s67, s67, 1\ns_cmp_eq_u32 s67, 3\ns_cselect_b32 s67, 0, s67")
        if ph < 2: P("s_add_u32 s68, s68, 1\ns_cmp_eq_u32 s68, 3\ns_cselect_b32 s68, 0, s68")
    P(f"s_and_b32 s67, {sSL}, 3")
    for d in range(4): P(f"s_xor_b32 s{96+d}, s67, {d}\ns_mul_i32 s{96+d}, s{96+d}, {JS}\ns_add_u32 s{96+d}, s{96+d}, {1024*d}")
    P(f"s_and_b32 s68, {sWV}, 2\ns_lshl_b32 s68, s68, 1\ns_add_u32 s50, s67, s68\ns_mul_i32 s50, s50, 18\ns_and_b32 s68, {sWV}, 1\ns_add_u32 s50, s50, s68\ns_lshl_b32 s50, s50, 10\ns_add_u32 s50, s50, {WS_S}")
    P(f"s_mul_i32 s101, s66, {4*JS}\ns_add_u32 s101, s101, {WS_FB - WS_FIN}")
    P(f"s_add_u32 s68, s66, 1\ns_cmp_ge_u32 s68, 3\ns_cselect_b32 s68, 0, s68\ns_lshl_b32 s69, s68, 2\ns_add_u32 s51, s69, s67\ns_mul_i32 s100, s68, {4*JS}\ns_add_u32 s100, s100, {WS_FB - WS_FIN}")
    P(f"s_mul_i32 s49, s67, {-JS}\ns_lshl_b32 s68, s66, 2\ns_lshl_b32 s53, 15, s68\ns_lshl_b32 s68, 1, {sSL}\ns_andn2_b32 s53, s53, s68\ns_mov_b32 s52, 0xf000")
    P(f"v_and_b32 v2, 31, v0\nv_lshlrev_b32 v2, 7, v2\nv_add_u32 v2, s54, v2\nv_bfe_u32 v3, v0, 1, 3\nv_lshrrev_b32 v4, 5, v0\nv_lshlrev_b32 v4, 2, v4\nv_xor_b32 v3, v3, v4\nv_lshlrev_b32 v3, 4, v3")
    P(f"v_add_u32 v80, v2, v3\nv_xor_b32 v81, 16, v80\nv_xor_b32 v82, 32, v80\nv_xor_b32 v83, 48, v80")
    for j in range(4): P(f"v_add_u32 v{84+j}, 98304, v{80+j}")
    SEL = 40
    sel32(P, SEL)
    P("v_mov_b32 v8, 0\nv_mov_b32 v9, 0\nv_mov_b32 v12, 0\nv_mov_b32 v13, 0\ns_mov_b32 s57, 0x3f803f80")
    P(f"s_waitcnt lgkmcnt(0)\ns_mov_b32 s74, {2048*576*2}\ns_mov_b32 s75, 0x20000")
    setup = P.l; P.l = []
    fr = [[(XR + 4 * (4 * S + f), (80 if S < 6 else 84) + f, ((S // 3) % 2) * 49152 + (S % 3) * 4096, 0) for f in range(4)] for S in range(9)]
    d0, d1, d2 = dma(0), dma(1), dma(2)
    xphase(P, setup, fr, [[8, 9]], [[12, 13]], {5: d0[:6], 6: d0[6:], 7: d1[:6], 8: d1[6:] + (d2[:6] if OPT['dpre'] == 3 else []), 9: d2[6:] if OPT['dpre'] == 3 else []})
    P("v_add_f32 v8, v8, v9\nv_add_f32 v12, v12, v13\nv_mov_b32 v9, v8\nv_mov_b32 v13, v12\nv_permlane32_swap_b32 v8, v9\nv_permlane32_swap_b32 v12, v13\nv_add_f32 v8, v8, v9\nv_add_f32 v12, v12, v13")
    def um(F): return mk(f"v_mfma_f32_32x32x16_bf16 {vr(ACC1+32+16*(F%2),16)}, {vr(SEL,4)}, {vr(XR+4*F,4)}, 0")
    def nv(F):
        d = ACC1 + 32 + 16 * (F % 2); x = XR + 4 * F
        o = []
        for j in range(8): o += mk(f"v_fma_f32 v{d+j}, v{d+j}, v2, v3")
        for j in range(4): o += mk(f"v_cvt_pk_bf16_f32 v{x+j}, v{d+2*j}, v{d+2*j+1}")
        return o
    P.add(um(0)); P.add(um(1))
    ln_stats(P, 'v8', 'v12', 'v4', 'v2', 'v3')
    P(f"v_mul_f32 v2, {hx(LOG2E)}, v2\nv_mul_f32 v3, v4, v2")

    uses = []
    for p in range(6):
        for st in range(3):
            s = 3 * p + st; slot = s % NSLOT
            for S in range(3):
                for ss in range(4):
                    F = st * 12 + S * 4 + ss
                    for u in range(2):
                        n = len(uses); af = AF + 4 * (n % 16)
                        off = (slot % 2) * RING + (64 * S + 8 * ss) * 128
                        va = vA1[u][slot // 2]
                        rd = mk(f"ds_read_b64_tr_b16 {ar(af,2)}, v{va} offset:{off}\nds_read_b64_tr_b16 {ar(af+2,2)}, v{va} offset:{off+512}", tag=f"r{n}")
                        acc = vr(ACC1 + 32 * (p % 2) + 16 * u, 16)
                        mf = mk(f"v_mfma_f32_32x32x16_bf16 {acc}, {ar(af,4)}, {vr(XR+4*F,4)}, {'0' if F == 0 else acc}")
                        uses.append((s, rd, mf))
    N1 = len(uses)
    ACC2 = XR; STG = XR + 128
    for si, (p, k) in enumerate(g2):
        s = 18 + si; slot = s % NSLOT
        for kk in range(6):
            ks = 6 * k + kk
            for u in range(2):
                n = len(uses); af = AF + 4 * (n % 16)
                off = (slot % 2) * RING + 32 * kk * 128
                va = vA2[u][slot // 2]
                rd = mk(f"ds_read_b64_tr_b16 {ar(af,2)}, v{va} offset:{off}\nds_read_b64_tr_b16 {ar(af+2,2)}, v{va} offset:{off+2048}", tag=f"r{n}")
                mf = []
                for j in range(4):
                    acc = vr(ACC2 + 32 * (p % 4) + 8 * j + 4 * u, 4)
                    mf += mk(f"v_mfma_f32_16x16x32_bf16 {acc}, {ar(af,4)}, {ar(16*ks+4*j,4)}, {'0' if ks == 0 else acc}")
                uses.append((s, rd, mf))
    NU = len(uses)
    PD1, PD2 = OPT['pd1'], OPT['pd2']
    rd_at = {}
    for n in range(NU):
        if n < N1: g = n - PD1
        else:
            g = n - PD2
            if g < N1: g = N1 - 1 - 2 * (N1 - 1 - g)
        rd_at.setdefault(g, []).append(n)
    bar_at = {}
    for g in sorted(rd_at):
        for n in rd_at[g]:
            s = uses[n][0]
            if s not in bar_at: bar_at[s] = g
    extra_lw = {}
    def hw_tag(ks): return f"hw{ks}"
    def rstage(ks):
        p = ks // 2
        if p <= 3: return 3 * (p + 2) + 1
        if p == 4: return 19
        return 21
    for ks in range(1, 12, 2): extra_lw[rstage(ks)] = hw_tag(ks)
    def barrier(s):
        if s in extra_lw: return mk(f"WAITVL d{s}, {extra_lw[s]}\ns_barrier")
        return mk(f"WAITV d{s}\ns_barrier")
    P.add(barrier(0))
    for g in sorted(rd_at):
        if g < 0:
            for n in rd_at[g]: P.add(uses[n][1])
    P.add(nv(0))
    P("WAITL r3")
    stamp(P, 3)
    S16 = 16
    def ustart(p): return N1 + 12 * (6 + 2 * (p - 3))
    QP = {3: OPT['q3'], 4: OPT['q4'], 5: OPT['q5'], 6: 168 - OPT['lat1'], 7: 192 - OPT['lat1'], 8: 216 - OPT['lat1']}
    AP = {p: max(12 * (8 + 2 * (p - 3)), QP[p] + (OPT['lat0'] if p < 6 else OPT['lat1'])) for p in range(3, 9)}
    nacc = {N1 + AP[p]: p for p in range(3, 8)} if OPT['fuse'] else {}
    gacc = {}
    def HB(p): return 48 + 16 * (p % 2)
    def accum(dst, src, first=False):
        return mk(f"v_mfma_f32_16x16x32_bf16 {vr(dst,4)}, {vr(S16+2,4)}, {src}, {'0' if first else vr(dst,4)}\nv_mfma_f32_16x16x32_bf16 {vr(dst+4,4)}, {vr(S16,4)}, {src}, {'0' if first else vr(dst+4,4)}")
    def hopacc(p):
        L = []
        for j in range(4): L += accum(ACC2 + 32 * (p % 4) + 8 * j, vr(HB(p) + 4 * j, 4))
        return L[0::2] + L[1::2]
    SC = Sched()
    gi = {}
    gu = {}
    for n in range(NU):
        mf = uses[n][2]
        if n in nacc:
            SC.tail[-1] += mk(f"WAITV hl{nacc[n]}")
            for m_ in hopacc(nacc[n]): gacc[nacc[n]] = SC.gap([m_], 16)
        if n < 72 and n % 2 == 0 and n // 2 + 2 < 36:
            gu[n // 2 + 2] = SC.gap(um(n // 2 + 2), 32)
        bar = []
        for s, g in bar_at.items():
            if g == n: bar = barrier(s)
        rds = []
        for nn in rd_at.get(n, []): rds += uses[nn][1]
        if n < N1:
            g = SC.gap(mf, 32); gi[n] = g
            SC.mand[g] += bar + rds
            if n % 4 == 3 and n + 1 < N1: SC.tail[g] += mk(f"WAITL r{n+4}")
            if n == N1 - 1: SC.tail[g] += mk(f"WAITL r{n+2}")
        else:
            gs = [SC.gap([m], 16) for m in mf]; gi[n] = gs[0]
            if bar:
                SC.mand[gs[0]] += bar
                for i, t in enumerate(rds): SC.mand[gs[1 + i]].append(t)
            else:
                for i, t in enumerate(rds): SC.mand[gs[2 * i]].append(t)
            if (n - N1) % 2 == 1 and n + 1 < NU: SC.tail[gs[3]] += mk(f"WAITL r{n+2}")
    gi[NU] = len(SC.head)

    def silu(ks):
        p, u = ks // 2, ks % 2
        a = ACC1 + 32 * (p % 2) + 16 * u
        F = []
        T = [1, 2, 3, 4, 5, 6, 7, 46]
        stg = 8
        def E(q, j): return mk(f"v_exp_f32_e64 v{T[4*(q%2)+j]}, -v{a+4*q+j}")
        def Ad(q, j): return mk(f"v_add_f32 v{T[4*(q%2)+j]}, 1.0, v{T[4*(q%2)+j]}")
        def R(q, j): return mk(f"v_rcp_f32 v{T[4*(q%2)+j]}, v{T[4*(q%2)+j]}")
        def M(q, j): return mk(f"v_mul_f32 v{T[4*(q%2)+j]}, v{a+4*q+j}, v{T[4*(q%2)+j]}")
        def C(q):
            d = stg + 4 * (q % 2) + 2 * (q // 2); t = T[4*(q%2):4*(q%2)+4]
            o = mk(f"v_cvt_pk_bf16_f32 v{d}, v{t[0]}, v{t[1]}\nv_cvt_pk_bf16_f32 v{d+1}, v{t[2]}, v{t[3]}")
            if q >= 2: o += mk(f"ds_write_b128 v{vHW}, {vr(stg+4*(q%2),4)} offset:{(ks%4)*8192+512*(q%2)}", tag=hw_tag(ks), cost=OPT['wcost'])
            return o
        for q in range(4):
            F += E(q, 0) + E(q, 1)
            F += E(q, 2) + Ad(q, 0) + Ad(q, 1)
            F += E(q, 3) + Ad(q, 2)
            F += R(q, 0) + Ad(q, 3)
            F += R(q, 1) + M(q, 0)
            F += R(q, 2) + M(q, 1)
            F += R(q, 3) + M(q, 2)
            c = C(q)
            F += [c[0]] + M(q, 3) + c[1:]
        return F
    def hread(ks):
        return flat([mk(f"ds_read_b128 {ar(16*ks+4*j,4)}, v{vHR} offset:{(ks%4)*8192+1024*j}", tag=f"hr{ks}") for j in range(4)])
    def epi(p):
        a = ACC2 + 32 * (p % 4)
        F = []
        for j in range(4):
            if OPT['fuse'] and p >= 6 and j == 0: continue
            for u in range(2):
                for h in range(2): F += mk(f"v_cvt_pk_bf16_f32 v{STG+4*j+2*u+h}, v{a+8*j+4*u+2*h}, v{a+8*j+4*u+2*h+1}")
            F += mk(f"buffer_store_dwordx4 {vr(STG+4*j,4)}, v{vST}, {sWS}, s{PS+p} offen offset:{1024*j}{STMOD if (p >= 6 or (p < 3 and OPT['hop0']) or OPT['hop1'] or not OPT['fuse']) else ''}", tag=f'st{p}', cost=8)
        return F

    for s in range(0, 33):
        g0 = gi[bar_at[s]] + 1 if bar_at[s] >= 0 else 0
        g1 = gi[bar_at[s + 1]]
        SC.place((dma(2) if (s == 0 and OPT['dpre'] == 2) else []) + dma(s + 3), g0, g1, 'spread', f'dma{s+3}')
    for ks in range(12):
        g0 = gi[bar_at[rstage(ks)]] + 1 + (ks % 2) * 8
        SC.place(hread(ks), g0, g0 + 8, 'spread', f'hr{ks}')
    if OPT['fuse']: SC.place(handshake(sSL, 'v44', 'v45', True), gi[bar_at[3]] + 1, gi[bar_at[3]] + 12, 'spread', 'hsk')
    if OPT['pfw'] & 1: SC.place(pf_w(1), 20, 70, 'spread', 'pf1')
    if OPT['pfw'] & 2: SC.place(pf_w(2), gi[90], gi[400], 'spread', 'pf2')
    for F in range(1, 36):
        g0 = gu.get(F + 1, gi[2 * (F - 1)]); g1 = gi[2 * (F - 1) + 1] + 1
        SC.place(nv(F), g0, g1, 'asap', f'nv{F}')
    for p in range(5):
        b = 72 * (p + 1)
        SC.place(silu(2 * p) + silu(2 * p + 1), gi[b + 2], gi[b + 72], 'asap', f'silu{p}')
    SC.place(silu(10) + silu(11), gi[N1] + 6, gi[bar_at[21]] - 2, 'asap', 'silu5')
    last_stage = {}; gepi = {}
    for si, (p, k) in enumerate(g2):
        if k == 1: last_stage[p] = si
    for p in range(8):
        g0 = gi[N1 + 12 * (last_stage[p] + 1)] + 5
        if p in gacc: g0 = gacc[p] + 5
        if OPT['fuse'] and p in (1, 2): g0 = gi[N1 + OPT['e%d' % p]]
        gepi[p] = SC.place(epi(p), g0, g0 + (42 if not OPT['fuse'] else 30), 'spread' if not OPT['fuse'] else 'asap', f'epi{p}')[-1]
    slow = []
    def gs(si, off=0): return gi[N1 + 12 * si] + off
    if OPT['fuse']:
        vFR, vFV, vXO, vC = 28, 29, 30, 31
        def site(name, load, tag, chk, g0, g1):
            L = mk(f"WAITV {tag}") + mk(chk) + mk(f"s_cbranch_scc0 L_slow{name}\nL_back{name}:")
            head, tailp = L[:-4], L[-4:]
            pos = SC.place(head, g0, g1, 'asap', name)
            SC.fill[pos[-1] + 1] += tailp
            slow.extend(mk(f"L_slow{name}:\ns_mov_b32 s68, 0\nL_spin{name}:\n{load}\ns_waitcnt vmcnt(0)\n{chk}\ns_cbranch_scc1 L_back{name}\ns_sleep 1\ns_add_u32 s68, s68, 1\ns_cmp_lt_u32 s68, 0x80000\ns_cbranch_scc1 L_spin{name}\ns_branch L_back{name}", cond=True))
            return pos[-1] + 2
        hload = f"buffer_load_dword v41, v40, {sDBG}, 0 offen sc1"
        SC.place(mk(f"s_lshl_b32 s66, {sM}, 4\nv_and_b32 v40, 3, v0\nv_lshlrev_b32 v40, 2, v40\nv_add_u32 v40, s66, v40") + mk(hload, tag='hc', cost=8), gi[290], gi[302], 'spread', 'hc')
        g = site('H', hload, 'hc', f"v_and_b32 v42, 0xff, v41\nv_cmp_le_u32 vcc, 4, v42\ns_and_b32 s66, vcc_lo, 15\ns_cmp_eq_u32 s66, 15", gi[350], gi[360])
        MD = mk(f"v_readlane_b32 s66, v41, s38\ns_lshr_b32 s67, s66, 4\ns_xor_b32 s66, s66, s67")
        pos = SC.place(MD, g, gi[375], 'spread', 'mode')
        fb = "s_or_b32 s66, s66, 0x1000\n" if OPT['forcefb'] else ""
        SC.fill[pos[-1] + 1] += mk(f"{fb}s_and_b32 s66, s66, 0xff000\ns_cselect_b32 s58, 0, 1\n{'s_cmp_eq_u32 0, 0' if OPT['hop1'] else ''}\ns_cselect_b32 s100, s100, {4*JS}\ns_cselect_b32 s101, s101, {4*JS}\ns_sub_u32 s59, s100, s101")
        SC.place(mk("\n".join(f"s_add_u32 s{PS+p}, s{PS+p}, s101" for p in range(6))), pos[-1] + 2, gi[400], 'spread', 'psfix')
        SC.place(mk(f"buffer_load_dword v47, v{vFLW}, {sWS}, s37 offen sc1", tag='dummy', cost=8), gi[205], gi[215], 'asap', 'pfflag')
        if OPT['pfh'] & 2:
            L = []
            for p in range(3):
                for j in range(4): L += mk(f"buffer_store_dwordx4 {vr(XR,4)}, v{vST}, {sWS}, s{PS+p} offen offset:{1024*j} sc1", tag='pw', cost=16)
            SC.place(L, gi[208], gi[300], 'spread', 'prewrite')
        if OPT['pfh'] & 1:
            hs = OPT['hsplit']
            L = mk(f"v_and_b32 v40, {32//hs-1}, v0\nv_lshlrev_b32 v40, 7, v40") + (mk("WAITV pw") if OPT['pfh'] & 2 else [])
            for p in range(3):
                for h in range(hs): L += mk(f"buffer_load_dword v47, v40, {sWS}, s{PS+p} offen offset:{h*4096//hs} sc1", tag='dummy', cost=8)
            SC.place(L, gi[OPT['pfh0']], gi[425], 'spread', 'pfh')
        SQ = Prog()
        SQ(f"s_lshl_b32 s66, {sM}, 7\ns_and_b32 s67, {sWV}, 2\ns_lshl_b32 s67, s67, 5\ns_add_u32 s66, s66, s67\ns_and_b32 s67, {sSL}, 2\ns_lshl_b32 s67, s67, 4\ns_add_u32 s66, s66, s67\ns_and_b32 s67, {sSL}, 1\ns_add_u32 s66, s66, s67")
        SQ(f"v_lshrrev_b32 v40, 2, v0\nv_lshlrev_b32 v40, 1, v40\nv_add_u32 v40, s66, v40\nv_mul_u32_u24 v40, 1152, v40\nv_and_b32 v41, 3, v0\nv_lshlrev_b32 v41, 4, v41\ns_and_b32 s67, {sWV}, 1\ns_lshl_b32 s67, s67, 6\nv_add3_u32 v{vXO}, v40, v41, s67")
        XV = 92; vL1, vL2, vL3 = 1, 2, 3
        SQ(f"s_lshl_b32 s36, {sWV}, 13\ns_add_u32 s36, s36, {HX}")
        SQ(f"v_and_b32 v40, 15, v0\nv_lshrrev_b32 v41, 4, v0\nv_lshlrev_b32 v41, 3, v41\nv_add_u32 v41, s36, v41\nv_lshl_add_u32 v{vL1}, v40, 6, v41\nv_mul_u32_u24 v40, 80, v40\nv_add_u32 v{vL2}, v40, v41")
        SQ(f"v_lshrrev_b32 v40, 2, v0\nv_mul_u32_u24 v40, 80, v40\nv_and_b32 v41, 3, v0\nv_lshlrev_b32 v41, 4, v41\nv_add3_u32 v{vL3}, v40, v41, s36")
        for k in range(3): SQ(f"s_sub_u32 s{60+k}, s{PA+6+k}, s63")
        SQ(f"s_lshl_b32 s67, {sWV}, 11\ns_and_b32 s66, {sWV}, 2\ns_bfe_u32 s68, {sSL}, 0x10001\ns_add_u32 s66, s66, s68\ns_lshl_b32 s66, s66, 11")
        SQ(f"s_lshl_b32 s51, s51, 7\ns_add_u32 s51, s51, s67\ns_add_u32 s51, s51, {WS_FLAG + HFOFF}\nv_mov_b32 v43, s51")
        SQ(f"v_and_b32 v40, 15, v0\nv_mov_b32 v41, s67\nv_mov_b32 v42, s66\nv_cmp_gt_u32 vcc, 12, v40\nv_lshlrev_b32 v40, 7, v40\nv_add_u32 v40, {WS_FLAG}, v40\nv_cndmask_b32 v41, v42, v41, vcc\nv_add_u32 v{vFR}, v40, v41")
        SQ(f"s_or_b32 vcc_lo, s52, s53\ns_mov_b32 vcc_hi, 0\nv_mov_b32 v40, 2.0\nv_cndmask_b32 v{vFR}, v40, v{vFR}, vcc")
        sel_consts(SQ, S16, 'v40', 'v41', 'v42')
        SQ('s_mov_b32 s16, s24\ns_mov_b32 s17, s25\ns_mov_b32 s57, 0xffff0000')
        SQ('v_lshlrev_b32 v41, 3, v0')
        SC.place(SQ.l, gi[bar_at[21]], gs(6), 'asap', 'tailsetup')
        fload = f"buffer_load_dword v{vFV}, v{vFR}, {sWS}, 0 offen sc1"
        def chk(thr, mask): return f"v_cmp_le_u32 vcc, {thr}, v{vFV}\ns_and_b32 s66, vcc_lo, {mask}\ns_cmp_eq_u32 s66, {mask}"
        def fstore(val): return mk(f"buffer_store_dword v{vC}, v{vFLW}, {sWS}, 0 offen sc1", tag=f'fl{val}', cost=8)
        for p in range(6):
            g = gepi[p] + 4 * (OPT['fd0'] if ((p < 3 and OPT['hop0']) or OPT['hop1']) else OPT['fd1'])
            pos = SC.place(mk(f"v_mov_b32 v{vC}, {p+1}") + mk(f"WAITV st{p}"), g, g + 20, 'asap', f'flag{p}')
            hst = f"buffer_store_dword v{vC}, v{vFLW}, {sWS}, s37 offen"
            SC.fill[pos[-1] + 1] += mk(f"s_cmp_eq_u32 s58, 0\ns_cbranch_scc1 L_rel{p}") + mk(hst, tag=f'fl{p+1}', cost=8) + mk(f"L_relb{p}:")
            slow.extend(mk(f"L_rel{p}:\nbuffer_wbl2 sc1\ns_waitcnt vmcnt(0)\n{hst} sc1\ns_branch L_relb{p}", cond=True))
        pload = f"buffer_load_dword v{vFV}, v43, {sWS}, 0 offen sc1"
        def hloads(p):
            L = mk(f"s_add_u32 s69, s{PS+p}, {'s59' if p < 6 else 's100'}")
            for j in range(4): L += mk(f"buffer_load_dwordx4 {vr(HB(p)+4*j,4)}, v{vST}, {sWS}, s69 offen offset:{1024*j} sc1", tag=f"hl{p}", cost=8)
            return L
        ghl = {}
        for p in range(3, 9):
            u0 = N1 + QP[p]
            SC.place(mk(pload, tag=f'pp{p}', cost=8), gi[u0 - 1], gi[u0 + 1], 'asap', f'pp{p}')
            ck = f"v_cmp_le_u32 vcc, {p-2}, v{vFV}"
            pos = SC.place(mk(f"WAITV pp{p}") + mk(ck), gi[u0 + OPT['pchk']], gi[u0 + OPT['pchk'] + 1], 'asap', f'chk{p}')
            SC.fill[pos[-1] + 2] += mk(f"s_cbranch_vccz L_slowP{p}\nL_backP{p}:")
            slow.extend(mk(f"L_slowP{p}:\n" + (f"s_add_u32 s93, s93, {1 << (4*(p-3))}\n" if OPT['stamp'] else "") + f"s_mov_b32 s68, 0\nL_spinP{p}:\n{pload}\ns_waitcnt vmcnt(0)\n{ck}\ns_add_u32 s68, s68, 1\ns_nop 4\ns_cbranch_vccnz L_backP{p}\ns_cmp_lt_u32 s68, 0x80000\ns_cbranch_scc1 L_spinP{p}\ns_branch L_backP{p}", cond=True))
            ghl[p] = SC.place(hloads(p), pos[-1] + 3, gi[u0 + OPT['pchk'] + 5], 'asap', f'hl{p}')[-1]
        sQ = 's[16:19]'
        RS = [80, 84, 88]
        def sloads(srd, tag, cond=False):
            L = []
            for k in range(3):
                L += mk(f"s_lshl_b32 s69, s{60+k}, 4\ns_add_u32 s69, s69, s50", cond=cond)
                for u in range(2): L += mk(f"buffer_load_dwordx2 {vr(RS[k]+2*u,2)}, v41, {srd}, s69 offen offset:{512*u} sc1", tag=tag, cond=cond, cost=8)
            return L
        L = []
        for k in range(3): L += mk(f"s_add_u32 m0, s36, {1024*k}") + mk(f"buffer_load_dwordx4 v{vXO}, {sX}, s{60+k} offen lds", tag='xo', cost=8)
        L += mk(f"buffer_load_dword v42, v{vFR}, {sWS}, 0 offen sc1", tag='p0', cost=8)
        SC.place(L, max(ghl[7], gi[bar_at[33]]) + 1, ghl[7] + 30, 'asap', 'p0')
        pos = SC.place(mk("WAITV p0\nv_cmp_le_u32 s[70:71], 9, v42"), ghl[8] - 6, ghl[8] + 8, 'asap', 'chkS')
        SC.fill[pos[-1] + 1] += mk(f"s_and_b32 s66, s70, s52\ns_cmp_eq_u32 s66, s52\ns_cselect_b32 s18, {WS_BYTES}, 0\ns_cselect_b32 s54, 1, 0")
        L = []
        for k in range(3):
            for u in range(2): L += mk(f"ds_read_b64 {vr(XV+4*k+2*u,2)}, v{vL1} offset:{1024*k+32*u}", tag='xr')
        SC.place(L, pos[-1] + 2, gs(17, 30), 'asap', 'xr')
        g = SC.place(sloads(sQ, 'ls') + mk(fload, tag='p1', cost=8), max(ghl[8] + 1, pos[-1] + 2), gs(17, 40), 'asap', 'ls')[-1]
        SC.place(mk(f"v_mov_b32 v{vC}, 8") + mk("WAITV st7") + fstore(8), max(g + 1, gs(17, 32)), len(SC.head), 'asap', 'flag8')
    print("; gemm2 per-stage planned cycles:", [sum(16 + max(0, SC.used(g) - SC.cap[g]) for g in range(gs(i), gs(i + 1) if i < 17 else len(SC.head))) for i in range(18)], file=sys.stderr)
    print("; overflow cycles: pass0 %d, pass1-5 %d, gemm2 %d" % (SC.overflow(0, gi[72]), SC.overflow(gi[72], gi[N1]), SC.overflow(gi[N1])), file=sys.stderr)
    marks = [gi[72], gi[144], gi[N1], gi[N1 + 72]]
    ids = [4, 5, 6, 7]
    if OPT['marks'] == 2:
        marks = [gs(12), gs(13), gs(14), gs(15), gs(16), gs(17), len(SC.head)]; ids = [1, 2, 3, 4, 5, 6, 7]
    if OPT['marks'] == 3:
        marks = [gs(6), gs(7), gs(8), gs(9), gs(10), gs(11), gs(12)]; ids = [1, 2, 3, 4, 5, 6, 7]
    if OPT['marks'] == 5:
        marks = [gs(0), gs(1), gs(2), gs(3), gs(4), gs(5), gs(6)]; ids = [1, 2, 3, 4, 5, 6, 7]
    if OPT['marks'] == 6:
        marks = [gi[72], gi[144], gi[216], gi[288], gi[360], gi[N1]]; ids = [2, 3, 4, 5, 6, 7]
    if OPT['marks'] == 1:
        marks = [gs(0), gs(6), gs(8), gs(10), gs(12), gs(14), gs(16)]; ids = [1, 2, 3, 4, 5, 6, 7]
    prev = 0
    for i, g in zip(ids, marks):
        P.add(SC.emit(prev, g)); stamp(P, i); prev = g
    P.add(SC.emit(prev))
    if OPT['fuse']:
        P("WAITV hl8"); P.add(hopacc(8))
    P.add(epi(8))
    k0 = [i for i, x in enumerate(P.l) if x.text.startswith('WAITL r3')][0]
    def keep(x):
        if OPT['nosilu'] and x.base in ('v_exp_f32', 'v_rcp_f32', 'v_add_f32', 'v_mul_f32'): return False
        if OPT['nodma'] and x.kind == 'vmem' and 'lds' in x.mods: return False
        if OPT['nodma'] and x.op == 'WAITV': return False
        if OPT['nobar'] and x.kind == 'bar': return False
        if OPT['nost'] and (x.tag or '').startswith('st'): return False
        return True
    def fix(x):
        if OPT['nodma'] and x.op == 'WAITVL': return I('WAITL ' + x.ops[1])
        return x
    P.l = P.l[:k0] + [fix(x) for x in P.l[k0:] if keep(x)]
    stamp(P, 8)
    if OPT['fuse']:
        G = [ACC2 + 32 * ((6 + k) % 4) for k in range(3)]
        SS = [g + 8 for g in G]
        XU = 144
        def cloads(ks, srd, tag, cond=False):
            for k in ks:
                P(f"s_add_u32 s67, s{PS+6+k}, s49", cond=cond)
                for d in range(1, 4): P(f"s_add_u32 s69, s67, s{96+d}\nbuffer_load_dwordx4 {ar(12*k+4*(d-1),4)}, v{vST}, {srd}, s69 offen sc1", tag=tag, cond=cond)
        def spin(name, thr, mask):
            P(f"s_mov_b32 s68, 0\nL_spin{name}:", cond=True)
            P(fload + "\ns_waitcnt vmcnt(0)\n" + chk(thr, mask) + f"\ns_cbranch_scc1 L_done{name}\ns_sleep {OPT['slp']}\ns_add_u32 s68, s68, 1\ns_cmp_lt_u32 s68, 0x80000\ns_cbranch_scc1 L_spin{name}\nL_done{name}:", cond=True)
        def unitT(ks, acc=True):
            for k in (ks if acc else []):
                for d in range(3): P.add(accum(G[k], ar(12 * k + 4 * d, 4)))
            for k in ks:
                g_, t_ = G[k], G[k] + 16
                for i in range(8): P(f"v_exp_f32_e64 v{t_+i}, -v{g_+i}")
                for i in range(8): P(f"v_fma_f32 v{t_+i}, v{t_+i}, s71, s71")
                for i in range(8): P(f"v_rcp_f32 v{t_+i}, v{t_+i}")
                for i in range(8): P(f"v_mul_f32 v{g_+i}, v{g_+i}, v{t_+i}")
        P("WAITV p1\n" + chk(8, 's53') + f"\ns_cselect_b32 s18, {WS_BYTES}, 0\ns_cselect_b32 s55, 1, 0")
        cloads([0, 1], sQ, 'lc0')
        P(chk(9, 's53') + f"\ns_cselect_b32 s18, {WS_BYTES}, 0\ns_cselect_b32 s56, 1, 0")
        cloads([2], sQ, 'lc2')
        P(f"v_mov_b32 v{vC}, 9\ns_mov_b32 s71, {hx(LOG2E)}")
        for d in range(12): P(f"v_lshlrev_b32 v{XU+2*d}, 16, v{XV+d}\nv_and_b32 v{XU+2*d+1}, s57, v{XV+d}")
        P("WAITV st8"); P.add(fstore(9)); stamp(P, 12)
        P("s_cmp_eq_u32 s54, 1\ns_cbranch_scc1 L_chk8")
        P(chk(9, 's52') + "\ns_cbranch_scc0 L_chk8\ns_mov_b32 s54, 1", cond=True)
        P.add(sloads(sWS, 'ls1', True))
        P("L_chk8:")
        P("s_cmp_eq_u32 s55, 1\ns_cbranch_scc1 L_have8")
        spin('8', 8, 's53')
        cloads([0, 1], sWS, 'lc0b', True)
        P(chk(9, 's53') + f"\ns_cselect_b32 s18, {WS_BYTES}, 0\ns_cselect_b32 s56, 1, 0", cond=True)
        cloads([2], sQ, 'lc2c', True); P("s_waitcnt vmcnt(3)", cond=True)
        P("L_have8:")
        P(fload, tag='p2')
        P("WAITV lc0")
        stamp(P, 9)
        unitT([0, 1])
        P("s_waitcnt vmcnt(0)")
        P("s_cmp_eq_u32 s54, 1\ns_cbranch_scc1 L_chk9")
        P(chk(9, 's52') + "\ns_cbranch_scc0 L_chk9\ns_mov_b32 s54, 1", cond=True)
        P.add(sloads(sWS, 'ls2', True))
        P("L_chk9:")
        P("s_cmp_eq_u32 s56, 1\ns_cbranch_scc0 L_no9\ns_waitcnt vmcnt(0)\ns_branch L_have9\nL_no9:")
        P(chk(9, 's53') + "\ns_cbranch_scc1 L_done9", cond=True)
        spin('9', 9, 's53')
        cloads([2], sWS, 'lc2b', True); P("s_waitcnt vmcnt(3)", cond=True)
        P("L_have9:")
        stamp(P, 10)
        P("s_cmp_eq_u32 s54, 1\ns_cbranch_scc1 L_haveS")
        spin('S', 9, 's52')
        P.add(sloads(sWS, 'ls3', True)); P("s_waitcnt vmcnt(0)", cond=True)
        P("L_haveS:")
        def fin(k):
            g_, s_, pk = G[k], SS[k], G[k] + 24
            for i in range(8): P(f"v_fma_f32 v{g_+i}, v{g_+i}, v{s_+i}, v{XU+8*k+i}")
            for d in range(4): P(f"v_cvt_pk_bf16_f32 v{pk+d}, v{g_+2*d}, v{g_+2*d+1}")
            P(f"ds_write_b64 v{vL2}, {vr(pk,2)} offset:{4096+1280*k}\nds_write_b64 v{vL2}, {vr(pk+2,2)} offset:{4096+1280*k+32}", tag=f'ow{k}')
            P(f"ds_read_b128 {vr(pk+4,4)}, v{vL3} offset:{4096+1280*k}", tag=f'or{k}')
        def ost(k): P(f"WAITL or{k}\nbuffer_store_dwordx4 {vr(G[k]+28,4)}, v{vXO}, s[72:75], s{60+k} offen{['', ' sc1', ' nt'][OPT['omod']]}")
        for k in range(3):
            for d in range(4): P(f"v_lshlrev_b32 v{SS[k]+2*d}, 16, v{RS[k]+d}\nv_and_b32 v{SS[k]+2*d+1}, s57, v{RS[k]+d}")
        fin(0); fin(1)
        P("s_waitcnt vmcnt(0)")
        for d in range(3): P.add(accum(G[2], ar(24 + 4 * d, 4)))
        ost(0); ost(1)
        unitT([2], False)
        fin(2); ost(2)
        stamp(P, 11)
    stamp_flush(P, 12)
    P("s_endpgm")
    P.add(slow)
    return P.l

def attn():
    P = Prog()
    P("s_endpgm")
    return P.l

def final():
    P = Prog()
    P("s_endpgm")
    return P.l

def finish(lst):
    lst = resolve_waits(lst)
    lst, nfix = fix_hazards(lst, OPT['verbose'])
    errs = check_scoreboard(lst)
    for e in errs[:20]: print("; SCOREBOARD ERR", e, file=sys.stderr)
    assert not errs
    lst, mis, sz = align_pass(lst)
    print(f"; hazard nops inserted: {nfix}, instrs: {len(lst)}, misaligned {mis}, bytes {sz}", file=sys.stderr)
    return lst

def main():
    try:
        import gen_attn
    except ImportError:
        gen_attn = None
    P0 = Prog(); common_prologue(P0)
    f = finish(P0.l + ffn())[:]
    a = finish(P0.l + (gen_attn.attn(globals()) if gen_attn and OPT['attn'] else attn()))
    a = a[[i for i, x in enumerate(a) if x.text.startswith('s_cbranch_scc1 L_attn')][0] + 1:]
    k2 = finish(gen_attn.final(globals()) if gen_attn else final())
    out = []
    MK = NAME + "_kernel" if OPT['fuse'] else "main_kernel"
    if OPT['fuse']: out.append(f"; @launch grid=(256,1,1) block=(256,1,1) lds={LDS_BYTES}")
    else:
        out.append(f"; @launch kernel=main_kernel grid=(256,1,1) block=(256,1,1) lds={LDS_BYTES}")
        out.append(f"; @launch kernel=final_kernel grid=(576,1,1) block=(256,1,1) lds=0")
    out.append('.amdgcn_target "amdgcn-amd-amdhsa--gfx950"\n.text')
    out.append(f".globl {MK}\n.p2align 8\n.type {MK},@function\n{MK}:\nL_main_start:")
    out += [x.text for x in f]
    out.append(".p2align 6\nL_attn:")
    out += [x.text for x in a]
    out.append("L_exit:\ns_endpgm\nL_main_end:")
    if not OPT['fuse']:
        out.append(".globl final_kernel\n.p2align 8\n.type final_kernel,@function\nfinal_kernel:")
        out += [x.text for x in k2]
    out.append('.section .rodata,"a"')
    for nm, nv, ao in ((MK, 512, 256), ("final_kernel", 96, 96))[:1 if OPT['fuse'] else 2]:
        out.append(f".p2align 6\n.amdhsa_kernel {nm}\n  .amdhsa_next_free_vgpr {nv}\n  .amdhsa_next_free_sgpr 102\n  .amdhsa_accum_offset {ao}\n  .amdhsa_group_segment_fixed_size 0\n  .amdhsa_kernarg_size 72\n  .amdhsa_user_sgpr_count 2\n  .amdhsa_user_sgpr_kernarg_segment_ptr 1\n  .amdhsa_system_sgpr_workgroup_id_x 1\n  .amdhsa_float_denorm_mode_32 3\n.end_amdhsa_kernel")
    txt = "\n".join(out) + "\n"
    import subprocess, re as _re, tempfile, os
    d = tempfile.mkdtemp()
    open(d + "/a.s", "w").write(txt.replace("CODE_PF_MAX", "0x12345"))
    r = subprocess.run(["clang", "-x", "assembler", "-target", "amdgcn-amd-amdhsa", "-mcpu=gfx950", "-c", d + "/a.s", "-o", d + "/a.o"], capture_output=True, text=True)
    assert r.returncode == 0, r.stderr
    sy = subprocess.run(["llvm-readelf", "-s", d + "/a.o"], capture_output=True, text=True).stdout
    def sym(n): return int([l for l in sy.splitlines() if l.strip().endswith(" " + n)][0].split()[1], 16)
    size = sym("L_main_end") - sym("L_main_start")
    print(f"; main code bytes {size}, attn at {sym('L_attn')}", file=sys.stderr)
    print(txt.replace("CODE_PF_MAX", str(size - 1024)))

if __name__ == "__main__":
    main()
```

```python
import re

def expand(tok):
    tok = tok.strip()
    neg = tok.lstrip('-')
    if neg.startswith('abs(') : neg = neg[4:-1]
    if neg.startswith('|'): neg = neg.strip('|')
    m = re.fullmatch(r'([vas])\[(\d+):(\d+)\]', neg)
    if m: return [f"{m.group(1)}{i}" for i in range(int(m.group(2)), int(m.group(3)) + 1)]
    m = re.fullmatch(r'([vas])(\d+)', neg)
    if m: return [neg]
    if neg in ('vcc', 'exec'): return [neg]
    if neg in ('vcc_lo', 'vcc_hi'): return ['vcc']
    if neg in ('exec_lo', 'exec_hi'): return ['exec']
    if neg == 'm0': return ['m0']
    return []

TRANS = ('v_exp_f32', 'v_log_f32', 'v_rcp_f32', 'v_rsq_f32', 'v_sqrt_f32', 'v_sin_f32', 'v_cos_f32')

class I:
    def __init__(self, text, tag=None, cost=None, cond=False):
        self.text = text.strip(); self.tag = tag; self.cond = cond
        t = self.text.split(';')[0].strip()
        self.label = t.endswith(':')
        parts = t.split(None, 1)
        self.op = parts[0]
        ops = []
        if len(parts) > 1:
            rest = parts[1]
            depth = 0; cur = ''
            for ch in rest:
                if ch in '[(': depth += 1
                if ch in '])': depth -= 1
                if ch == ',' and depth == 0: ops.append(cur); cur = ''
                else: cur += ch
            ops.append(cur)
            last = ops[-1].strip().split()
            self.mods = last[1:] if last else []
            ops[-1] = last[0] if last else ''
            ops = [o.strip() for o in ops]
        else:
            self.mods = []
        self.ops = ops
        op = re.sub(r'_(e32|e64|dpp|sdwa)$', '', self.op)
        self.base = op
        rd, wr = [], []
        k = None
        if self.label or op.startswith('.'): k = 'label'
        elif op in ('WAITV', 'WAITL', 'WAITVL'): k = 'wait'
        elif op == 's_waitcnt': k = 'wait'
        elif op == 's_barrier': k = 'bar'
        elif op == 's_nop': k = 'nop'
        elif op in ('s_endpgm', 's_sleep', 's_setprio'): k = 'salu'
        elif op.startswith('s_cbranch') or op == 's_branch': k = 'branch'; rd = ['scc'] if 'scc' in op else (['vcc'] if 'vcc' in op else (['exec'] if 'exec' in op else []))
        elif op.startswith('v_mfma'):
            k = 'mfma32' if '32x32' in op else 'mfma16'
            wr = expand(ops[0]); self.A = expand(ops[1]); self.B = expand(ops[2]); self.C = expand(ops[3]); rd = self.A + self.B + self.C
        elif op.startswith('ds_'):
            k = 'ds'
            if op.startswith('ds_read') or op.startswith('ds_bpermute') or op.startswith('ds_swizzle'):
                wr = expand(ops[0]); rd = sum((expand(o) for o in ops[1:]), [])
            else: rd = sum((expand(o) for o in ops), [])
        elif op.startswith('buffer_') or op.startswith('global_'):
            k = 'vmem'
            if op in ('buffer_inv', 'buffer_wbl2'): pass
            elif 'lds' in self.mods or 'load_lds' in op:
                rd = sum((expand(o) for o in ops), []) + ['m0']
            elif '_load' in op:
                wr = expand(ops[0]); rd = sum((expand(o) for o in ops[1:]), [])
            elif 'atomic' in op:
                rd = sum((expand(o) for o in ops), [])
                if 'sc0' in self.mods: wr = expand(ops[0])
            else:
                rd = sum((expand(o) for o in ops), [])
                self.data = expand(ops[0]) if op.startswith('buffer_') else expand(ops[1])
        elif op.startswith('s_load') or op in ('s_memtime', 's_memrealtime'):
            k = 'smem'; wr = expand(ops[0]); rd = sum((expand(o) for o in ops[1:]), [])
        elif op.startswith('s_cmp') or op.startswith('s_bitcmp'):
            k = 'salu'; rd = sum((expand(o) for o in ops), []); wr = ['scc']
        elif op.startswith('s_'):
            k = 'salu'; wr = expand(ops[0]) if ops else []; rd = sum((expand(o) for o in ops[1:]), [])
            if op.startswith('s_cselect') or op == 's_addc_u32': rd.append('scc')
            if 'saveexec' in op: wr.append('exec'); rd.append('exec')
            if op not in ('s_mov_b32', 's_mov_b64', 's_cselect_b32', 's_cselect_b64', 's_mul_i32', 's_mul_hi_u32', 's_getpc_b64', 's_getreg_b32', 's_movk_i32'): wr.append('scc')
        elif op.startswith('v_'):
            k = 'trans' if op in TRANS else 'valu'
            if op.startswith('v_cmp'):
                wr = expand(ops[0]); rd = sum((expand(o) for o in ops[1:]), [])
            elif op.startswith('v_permlane') :
                wr = expand(ops[0]) + expand(ops[1]); rd = list(wr)
            elif op in ('v_add_co_u32', 'v_addc_co_u32', 'v_sub_co_u32'):
                wr = expand(ops[0]) + expand(ops[1]); rd = sum((expand(o) for o in ops[2:]), [])
            else:
                wr = expand(ops[0]); rd = sum((expand(o) for o in ops[1:]), [])
                if op in ('v_fmac_f32', 'v_dot2c_f32_bf16'): rd += wr
                if op == 'v_cndmask_b32' and len(ops) == 3: rd.append('vcc')
        else:
            raise ValueError("unknown instr: " + text)
        self.kind = k; self.rd = set(rd); self.wr = set(wr)
        if cost is None:
            cost = {'mfma32': 8, 'mfma16': 8, 'trans': 8, 'label': 0}.get(k, 4)
        self.cost = cost
    def states(self):
        if self.kind == 'label': return 0
        if self.kind == 'nop': return int(self.ops[0], 0) + 1
        return 1
    def __repr__(self): return self.text

def isdot(i): return i.base.startswith('v_dot2')
def lgkm_inc(i):
    if i.kind == 'ds': return 1
    if i.kind == 'smem': return 2
    return 0

def resolve_waits(prog):
    out = []
    vm = []; lg = []
    for ins in prog:
        if ins.kind == 'wait' and ins.op in ('WAITV', 'WAITL', 'WAITVL'):
            tags = ins.ops
            parts = []
            def count(lst, tag, allowcond):
                idx = [n for n, (t, c) in enumerate(lst) if t == tag]
                assert idx, f"wait on unknown tag {tag}"
                last = idx[-1]
                return sum(1 for (t, c) in lst[last + 1:] if (not c))
            if ins.op in ('WAITV', 'WAITVL'):
                n = count(vm, tags[0], ins.cond); assert n <= 63, (tags, n)
                parts.append(f"vmcnt({n})")
            if ins.op in ('WAITL', 'WAITVL'):
                n = count(lg, tags[-1], ins.cond)
                parts.append(f"lgkmcnt({min(n,15)})")
            out.append(I("s_waitcnt " + " ".join(parts), cond=ins.cond))
            continue
        if ins.kind == 'vmem': vm.append((ins.tag, ins.cond))
        if ins.kind == 'ds': lg.append((ins.tag, ins.cond))
        if ins.kind == 'smem': lg.append((ins.tag, ins.cond)); lg.append((ins.tag, ins.cond))
        out.append(ins)
    return out

def passes(i): return 8 if i.kind == 'mfma32' else 4

def required(p, c):
    need = 0
    pv = p.kind in ('valu', 'trans'); cv = c.kind in ('valu', 'trans')
    pm = p.kind.startswith('mfma'); cm = c.kind.startswith('mfma')
    vw = {r for r in p.wr if r[0] in 'va' and r not in ('vcc',)}
    sw = {r for r in p.wr if r[0] == 's' and r != 'scc' or r == 'vcc'}
    if pv:
        if cm and vw & c.rd: need = max(need, 3 if isdot(p) else 2)
        if p.kind == 'trans' and cv and c.kind != 'trans' and vw & c.rd: need = max(need, 1)
        if cv and c.base.startswith('v_permlane') and vw & c.rd: need = max(need, 2)
        if cv and c.op.endswith('_dpp') and vw & c.rd: need = max(need, 2)
        if cv and c.base in ('v_readlane_b32', 'v_readfirstlane_b32') and vw & c.rd: need = max(need, 1)
        if cv and sw & c.rd: need = max(need, 2)
        if c.kind == 'vmem' and sw & c.rd: need = max(need, 5)
        if 'exec' in p.wr: need = max(need, 5)
        if isdot(p) and (vw & (c.rd | c.wr)) and c.kind in ('valu', 'trans', 'ds', 'vmem'):
            if c.base == p.base and isdot(c):
                srcab = set(expand(c.ops[1]) + expand(c.ops[2]))
                if vw & srcab: need = max(need, 3)
            else: need = max(need, 3)
        if p.op.endswith('_sdwa') and cv and vw & c.rd: need = max(need, 1)
    if pm:
        n = passes(p)
        if cm:
            if p.wr & set(c.A + c.B): need = max(need, {4: 8, 8: 12}[n])
            if p.wr & set(c.C):
                if set(c.C) == p.wr and passes(c) == n: pass
                else: need = max(need, {4: 6, 8: 10}[n])
            if p.wr & c.wr and not (p.wr & set(c.C)):
                need = max(need, {4: 6, 8: 10}[n])
        elif c.kind in ('valu', 'trans', 'ds', 'vmem'):
            if p.wr & (c.rd | c.wr): need = max(need, {4: 8, 8: 12}[n])
            if cv and set(p.C) & c.wr: need = max(need, {4: 3, 8: 7}[n])
    if p.kind == 'salu' and 'm0' in p.wr and c.kind == 'vmem' and 'm0' in c.rd: need = max(need, 1)
    if p.kind == 'vmem' and hasattr(p, 'data') and len(p.data) >= 3 and set(p.data) & c.wr: need = max(need, 2)
    if p.kind == 'ds' and p.base in ('ds_write_b128', 'ds_write_b96') and (p.rd & c.wr): need = max(need, 2)
    return need

def fix_hazards(prog, verbose=False):
    out = []; nfix = 0
    for ins in prog:
        if ins.kind == 'label':
            out.append(ins); continue
        dist = 0; need = 0
        for p in reversed(out):
            if dist >= 20: break
            r = required(p, ins)
            if r - dist > need: need = r - dist; why = p
            if ins.cond or not p.cond: dist += p.states()
        if need > 0:
            nfix += 1
            if verbose: print(f"; hazard: {why.text} -> {ins.text} needs +{need}")
            while need > 0:
                k = min(need, 16); out.append(I(f"s_nop {k-1}", cond=ins.cond)); need -= k
        out.append(ins)
    return out, nfix

def _sim(prog):
    vm = []; lg = []; errs = []
    for n, ins in enumerate(prog):
        if ins.op == 's_endpgm': vm = []; lg = []
        if ins.op == 's_waitcnt':
            m = re.search(r'vmcnt\((\d+)\)', ins.text)
            if m:
                k = int(m.group(1)); vm = vm[len(vm) - k:] if k and len(vm) > k else (vm if k else [])
            m = re.search(r'lgkmcnt\((\d+)\)', ins.text)
            if m:
                k = int(m.group(1))
                if any(e[1] for e in lg) and k > 0: pass
                else: lg = lg[len(lg) - k:] if k and len(lg) > k else (lg if k else [])
            continue
        touched = ins.rd | ins.wr
        for e in vm + lg:
            if e[0] & touched and not (e[2] == 'dummy' and ins.tag == 'dummy'):
                errs.append(f"#{n} {ins.text} touches pending {sorted(e[0] & touched)}")
        if ins.kind == 'vmem': vm.append((set(ins.wr), False, ins.tag))
        if ins.kind == 'ds': lg.append((set(ins.wr), False, ins.tag))
        if ins.kind == 'smem': lg.append((set(ins.wr), True, ins.tag))
    return errs

def check_scoreboard(prog):
    return _sim(prog) + _sim([x for x in prog if not x.cond])

E32OK = {'v_mov_b32','v_add_f32','v_sub_f32','v_mul_f32','v_max_f32','v_min_f32','v_and_b32','v_or_b32','v_xor_b32','v_lshlrev_b32','v_lshrrev_b32',
         'v_add_u32','v_sub_u32','v_exp_f32','v_rcp_f32','v_sqrt_f32','v_rsq_f32','v_fmac_f32','v_cndmask_b32','v_mul_u32_u24','v_min_u32','v_max_u32'}

class Grp:
    def __init__(self, l): self.l = l; self.cost = sum(x.cost for x in l); self.kind = l[0].kind; self.rd = set(); self.wr = set(); self.base = 'grp'; self.tag = None; self.text = 'grp'; self.op = 'grp'; self.mods = []
def ungroup(lst):
    out = []
    for x in lst:
        if isinstance(x, Grp): out += x.l
        else: out.append(x)
    return out

class Prog:
    def __init__(self): self.l = []
    def __call__(self, text, tag=None, cost=None, cond=False):
        for t in text.split('\n'):
            if t.strip(): self.l.append(I(t, tag, cost, cond))
        return self
    def add(self, lst): self.l.extend(lst)

def mk(text, tag=None, cost=None, cond=False):
    return [I(t, tag, cost, cond) for t in text.split('\n') if t.strip()]

def interleave(spine, fill, gapcyc, start=0, end=None):
    n = len(spine); end = n if end is None else end
    items = []
    for f in fill:
        if isinstance(f, tuple): g, e = f
        else: g, e = f, 0
        if not isinstance(g, list): g = [g]
        items.append((g, e))
    free = [max(0, gapcyc[i] - sum(x.cost for x in spine[i])) if start <= i < end else 0 for i in range(n)]
    tot_free = sum(free); tot_fill = sum(sum(x.cost for x in g) for g, e in items)
    scale = tot_fill / tot_free if tot_free else 0
    out = []; k = 0; budget = 0.0
    for i in range(n):
        out.extend(spine[i])
        if start <= i < end:
            budget += free[i] * scale
            while k < len(items) and items[k][1] <= i:
                c = sum(x.cost for x in items[k][0])
                if budget + 1e-6 >= c * 0.5 or i == end - 1:
                    out.extend(items[k][0]); budget -= c; k += 1
                else: break
    assert k == len(items), f"unplaced fillers {len(items)-k}"
    return out

class Sched:
    def __init__(self):
        self.head = []; self.mand = []; self.fill = []; self.tail = []; self.cap = []; self.block = []
    def gap(self, head, cyc):
        self.head.append(head); self.mand.append([]); self.fill.append([]); self.tail.append([]); self.cap.append(cyc - sum(x.cost for x in head)); self.block.append(set())
        return len(self.head) - 1
    def used(self, g): return sum(x.cost for x in self.mand[g] + self.fill[g] + self.tail[g])
    def place(self, items, g0, g1, mode='asap', name=''):
        n = len(items); g1 = min(g1, len(self.head))
        tot = sum(x.cost for x in items)
        for extra_num in range(0, 400):
            W = g1 - g0
            over = [0] * W
            for e in range(extra_num):
                lvl, idx = divmod(e, W)
                over[idx] += 4
            full, part = divmod(extra_num, W)
            over = [4 * full + (4 if (i * part) // W != ((i + 1) * part) // W else 0) for i in range(W)]
            add = [0] * W; pos = []; g = g0; acc = 0; ok = True
            hasv = [any(x.kind == 'vmem' for x in self.mand[g0+i] + self.fill[g0+i]) for i in range(W)]
            hass = [any(x.kind == 'salu' for x in self.mand[g0+i] + self.fill[g0+i]) for i in range(W)]
            for it in items:
                if mode == 'spread':
                    g = max(g, g0 + int(acc / tot * W))
                    acc += it.cost
                while g < g1:
                    fits = self.used(g) + add[g - g0] + it.cost <= self.cap[g] + over[g - g0]
                    if it.kind == 'vmem' and (hasv[g - g0] or hass[g - g0]) and extra_num < W: fits = False
                    if it.kind == 'salu' and hasv[g - g0] and extra_num < W: fits = False
                    if fits: break
                    g += 1
                if g >= g1: ok = False; break
                add[g - g0] += it.cost; pos.append(g)
                if it.kind == 'vmem': hasv[g - g0] = True
                if it.kind == 'salu': hass[g - g0] = True
            if ok:
                for it, g in zip(items, pos): self.fill[g].append(it)
                return pos
        raise RuntimeError(f"cannot place stream {name} in [{g0},{g1})")
    def emit(self, g0=0, g1=None):
        out = []
        for g in range(g0, g1 if g1 is not None else len(self.head)):
            out += self.head[g] + self.mand[g] + self.fill[g] + self.tail[g]
        return out
    def overflow(self, g0=0, g1=None):
        return sum(max(0, self.used(g) - self.cap[g]) for g in range(g0, g1 if g1 is not None else len(self.head)))

def size_of(i):
    if i.kind == 'label': return 0, False
    if i.kind in ('mfma32', 'mfma16', 'ds', 'vmem', 'smem'): return 8, False
    lit = False
    for o in i.ops:
        o = o.strip()
        if re.fullmatch(r'-?(0x[0-9a-fA-F]+|\d+)', o):
            v = int(o, 0)
            if not (-16 <= v <= 64): lit = True
        elif re.fullmatch(r'[A-Z_]+', o): lit = True
    if i.kind in ('wait', 'bar', 'nop', 'branch'): return 4, False
    if i.kind == 'salu':
        if i.base in ('s_getreg_b32', 's_movk_i32', 's_endpgm', 's_sleep', 's_setprio'): return 4, False
        return (8 if lit else 4), False
    if i.op.endswith('_e64') or i.op.endswith('_dpp') or i.op.endswith('_sdwa'): return 8, False
    if i.op.endswith('_e32'): return (8 if lit else 4), False
    if i.base in E32OK or i.base.startswith('v_cmp') or i.base in ('v_readfirstlane_b32', 'v_permlane32_swap_b32', 'v_permlane16_swap_b32', 'v_dot2c_f32_bf16', 'v_accvgpr_mov_b32'):
        if lit: return 8, False
        ops = i.ops
        if any(o.startswith('-v') or o.startswith('-s') or o.startswith('abs') for o in ops): return 8, False
        if i.base.startswith('v_cmp'):
            if ops[0] != 'vcc' or not ops[2].startswith('v'): return 8, False
            return 4, True
        if i.base == 'v_cndmask_b32':
            if ops[3] != 'vcc' or not ops[2].startswith('v'): return 8, False
            return 4, True
        if len(ops) >= 3 and not ops[2].startswith('v'): return 8, False
        flex = i.base in E32OK
        return 4, flex
    return 8, False

def align_pass(prog, start=0):
    off = start; cand = None; mis = 0
    for n, i in enumerate(prog):
        s, flex = size_of(i)
        if s == 8 and off % 8 == 4:
            if cand is not None:
                c = prog[cand]
                prog[cand] = I(c.text.replace(c.op, c.op + '_e64', 1), c.tag, c.cost, c.cond)
                off += 4; cand = None
            else: mis += 1
        if s == 8 and off % 8 == 0: cand = None
        if s == 4 and flex: cand = n
        off += s
    return prog, mis, off
```

```python
import sys, math
from asmlib import *

OPT = dict(prot=6, snake=1, bbx=1024, omod=0, q3=80, q4=94, q5=118, lat0=26, lat1=22, e1=62, e2=81, fd0=17, fd1=9, hop1=0, hop0=1, fdel0=44, pfwo=1, ofl=36, opl=50, ofl1=55, pfh0=216, nb2=2, hsplit=2, dpre=3, pst=0, xlead=3, slp=4, rt=0, pfh=0, pchk=9, fdel=32, a3=8, a4=3, cin=22, sat=15*12+4,  forcefb=0, marks=0, wcost=16, fuse=1, stmod=1, dbgwg=64, nosilu=0, nodma=0, nobar=0, nost=0, pd1=7, pd2=3, stamp=0, ffn=1, attn=1, verbose=0, rot=1, pfw=0, pfcode=1)
for a in sys.argv[1:]:
    k, v = a.split('='); OPT[k] = int(v)

STMOD = ['', ' sc1', ' nt', ' sc0 sc1', ' sc1 nt'][OPT['stmod']]
NAME = "recurrent_scan__sliding_local_dilated__dense_activation_silu__prompt"
LOG2E = 1.4426950408889634
LN2 = 0.6931471805599453
import struct
def f2u(f): return struct.unpack('<I', struct.pack('<f', f))[0]
def hx(f): return "0x%08x" % f2u(f)

JS = 147456
BB = 13 * JS + OPT['bbx']
WS_FIN = BB
WS_HOP = BB + 4 * JS
WS_S = BB + 8 * JS
WS_O = BB + 9 * JS
WS_KV = BB + 10 * JS
WS_FLAG = BB + 12 * JS
HFOFF = 8192
WS_FB = 34 << 20
WS_STAMP = 80 << 20
WS_BYTES = 96 << 20
LDS_BYTES = 155648

sX, sWA, sWB, sWS, sDBG = 's[12:15]', 's[16:19]', 's[20:23]', 's[24:27]', 's[28:31]'
sM, sSL, sWV, sROT, sMEM = 's32', 's33', 's34', 's35', 's36'

def vr(a, n): return f"v[{a}:{a+n-1}]" if n > 1 else f"v{a}"
def ar(a, n): return f"a[{a}:{a+n-1}]" if n > 1 else f"a{a}"

stamp_n = [0]
def stamp(P, idx):
    if not OPT['stamp']: return
    if OPT['pst']:
        if idx < 100 and idx != 3: return
        idx = 9 if idx == 3 else idx - 100
    elif idx >= 100: return
    P(f"{'s_memrealtime' if OPT['rt'] else 's_memtime'} s[78:79]\ns_waitcnt lgkmcnt(0)\ns_mov_b32 s{80+idx}, s78")
def stamp_flush(P, n):
    if not OPT['stamp']: return
    P(f"s_memrealtime s[78:79]\ns_waitcnt lgkmcnt(0)\ns_mov_b32 s{80+15}, s78")
    P(f"s_lshl_b32 s76, s2, 2\ns_add_u32 s76, s76, {sWV}\ns_lshl_b32 s76, s76, 6\ns_add_u32 s76, s76, {WS_STAMP}\ns_mul_i32 s77, {sM}, {BB}\ns_sub_u32 s76, s76, s77")
    P("v_mov_b32 v1, 0")
    for i in range(4):
        for j in range(4): P(f"v_mov_b32 v{4+j}, s{80+4*i+j}")
        P(f"buffer_store_dwordx4 v[4:7], v1, {sWS}, s76 offen offset:{16*i}")
        P("s_nop 1")

def round_bf16(P, dst, src):
    P(f"v_cvt_pk_bf16_f32 {dst}, {src}, {src}\nv_and_b32 {dst}, 0xffff0000, {dst}")

def ln_stats(P, vsum, vsq, vnegm, vr_, tmp):
    P(f"v_mul_f32 {vsum}, {hx(1/576)}, {vsum}")
    P(f"v_mul_f32 {vsq}, {hx(1/576)}, {vsq}")
    P(f"v_fma_f32 {vsq}, -{vsum}, {vsum}, {vsq}")
    P(f"v_max_f32 {vsq}, 0, {vsq}")
    round_bf16(P, vnegm, vsum)
    P(f"v_xor_b32 {vnegm}, 0x80000000, {vnegm}")
    round_bf16(P, vsq, vsq)
    P(f"v_add_f32 {vsq}, {hx(1e-5)}, {vsq}")
    round_bf16(P, vsq, vsq)
    P(f"v_sqrt_f32 {vsq}, {vsq}")
    round_bf16(P, vsq, vsq)
    P(f"v_rcp_f32 {vr_}, {vsq}")

def sel_consts(P, vsel, t0, t1, t2):
    P(f"v_mov_b32 v{vsel}, 0\nv_mov_b32 v{vsel+1}, 0\nv_mov_b32 v{vsel+4}, 0\nv_mov_b32 v{vsel+5}, 0")
    P(f"v_and_b32 {t0}, 1, v0\nv_lshlrev_b32 {t0}, 4, {t0}\nv_mov_b32 {t1}, 0x3f80\nv_lshlrev_b32 {t0}, {t0}, {t1}")
    P(f"v_bfe_u32 {t1}, v0, 2, 2\nv_lshrrev_b32 {t2}, 4, v0")
    P(f"v_cmp_eq_u32 vcc, {t1}, {t2}\nv_cndmask_b32 {t0}, 0, {t0}, vcc")
    P(f"v_and_b32 {t1}, 2, v0\nv_cmp_eq_u32 vcc, 0, {t1}")
    P(f"v_cndmask_b32 v{vsel+2}, 0, {t0}, vcc\nv_cndmask_b32 v{vsel+3}, {t0}, v{vsel}, vcc")

def common_prologue(P):
    P("s_cmp_ge_u32 s2, 256\ns_cbranch_scc1 L_exit")
    P("s_load_dwordx4 s[4:7], s[0:1], 0\ns_load_dwordx2 s[8:9], s[0:1], 16\ns_load_dwordx4 s[40:43], s[0:1], 32\ns_load_dwordx4 s[44:47], s[0:1], 56")
    P(f"v_lshrrev_b32 v1, 6, v0\nv_lshlrev_b32 v46, 7, v0\nv_readfirstlane_b32 {sWV}, v1\nv_and_b32 v0, 63, v0")
    if OPT['stamp']: P("s_memrealtime s[78:79]\ns_memtime s[76:77]")
    if OPT['pfcode']:
        P("s_getpc_b64 s[48:49]\ns_bfe_u32 s58, s2, 0x20003\ns_lshl_b32 s58, s58, 15\nv_add_u32 v46, s58, v46")
        P("v_min_u32 v46, CODE_PF_MAX, v46\nglobal_load_dword v47, v46, s[48:49]", tag='dummy')
    if OPT['stamp']:
        for i in range(80, 96): P(f's_mov_b32 s{i}, 0')
    P("s_and_b32 s37, s2, 1\ns_lshl_b32 s37, s37, 3")
    P("s_bfe_u32 s38, s2, 0x20001")
    P(f"s_lshr_b32 s39, s2, 3\ns_and_b32 {sMEM}, s39, 7\ns_add_u32 {sM}, s37, {sMEM}")
    P(f"s_lshl_b32 s51, s38, 1\ns_add_u32 s51, s51, s37\ns_lshr_b32 s52, s39, 2\ns_add_u32 s51, s51, s52")
    P(f"s_lshl_b32 s52, s39, 1\ns_and_b32 s52, s52, 6\ns_add_u32 s52, s52, s51\ns_mul_i32 s53, s52, 57\ns_lshr_b32 s53, s53, 9\ns_mul_i32 s53, s53, 9\ns_sub_u32 s52, s52, s53")
    P(f"s_lshr_b32 {sROT}, s39, 3\ns_sub_u32 {sROT}, {sROT}, 1\ns_mul_i32 s50, {sROT}, 3\ns_cmp_lt_u32 s39, 8\ns_cselect_b32 s50, s52, s50\ns_cselect_b32 {sM}, s51, {sM}")
    if not OPT['rot']: P(f"s_mov_b32 s50, 0")
    P(f"s_lshl_b32 s53, {sM}, 7\ns_lshl_b32 s54, {sWV}, 5\ns_add_u32 s53, s53, s54\ns_mul_i32 s53, s53, 1152")
    P(f"v_lshrrev_b32 v2, 3, v0\nv_mul_u32_u24 v2, 2304, v2\nv_lshrrev_b32 v3, 4, v0\nv_and_b32 v44, 7, v0\nv_xor_b32 v3, v3, v44\nv_lshlrev_b32 v3, 4, v3")
    P(f"v_add_u32 v44, v2, v3\nv_add_u32 v44, s53, v44\nv_xor_b32 v45, 64, v44\nv_add_u32 v45, {16*1152-1024}, v45")
    P(f"s_lshl_b32 s55, s50, 7\ns_mul_i32 s54, {sWV}, 12288")
    P("s_waitcnt lgkmcnt(0)")
    if OPT['stamp']: P("s_mov_b32 s94, s78\ns_mov_b32 s80, s76")
    P(f"s_mov_b32 s12, s4\ns_mov_b32 s13, s5\ns_mov_b32 s14, {2048*576*2}\ns_mov_b32 s15, 0x20000")
    stamp(P, 101)
    P.add(xdma(0, 0)); P.add(xdma(0, 1)); P.add(xdma(0, 2))
    stamp(P, 102)
    P(f"s_mul_i32 s24, {sM}, {BB}\ns_add_u32 s24, s24, s46\ns_addc_u32 s25, s47, 0\ns_mov_b32 s26, {WS_BYTES}\ns_mov_b32 s27, 0x20000")
    P(f"s_mov_b32 s28, s44\ns_mov_b32 s29, s45\ns_mov_b32 s30, 256\ns_mov_b32 s31, 0x20000")
    P("s_cmp_lt_u32 s39, 8\ns_cbranch_scc1 L_attn")

def xdma(st, S):
    Q = Prog()
    Q(f"s_add_u32 m0, s54, {st*49152+S*4096}\ns_add_u32 s56, s55, 1152")
    Q(f"buffer_load_dwordx4 v44, {sX}, s55 offen lds\nbuffer_load_dwordx4 v45, {sX}, s55 offen offset:1024 lds", tag=f"x{3*st+S}")
    Q(f"s_add_u32 m0, m0, 2048\ns_add_u32 s55, s55, 128")
    Q(f"buffer_load_dwordx4 v44, {sX}, s56 offen lds\nbuffer_load_dwordx4 v45, {sX}, s56 offen offset:1024 lds", tag=f"x{3*st+S}")
    Q(f"s_cmp_eq_u32 s55, 1152\ns_cselect_b32 s55, 0, s55")
    return Q.l

def weave(main, extra, every):
    out = []; k = 0; cnt = 0
    for idx, ins in enumerate(main):
        out.append(ins); cnt += 1
        nxt = main[idx + 1] if idx + 1 < len(main) else None
        safe = nxt is None or ('scc' not in nxt.rd and 'm0' not in nxt.rd)
        if k < len(extra) and cnt >= every and safe:
            out += extra[k]; k += 1; cnt = 0
    for g in extra[k:]: out += g
    return out

def xphase(P, setup, frags, sums, sqs, dmas, nfirst=3):
    lead = OPT['xlead']
    late = [x for x in setup if x.kind == 'vmem']
    P.add([x for x in setup if x.kind != 'vmem'])
    for S in range(nfirst, lead + 1): P.add(xdma(S // 3, S % 3))
    dmas = dict(dmas); dmas[9] = dmas.get(9, []) + late
    stamp(P, 1); stamp(P, 103)
    def dots(S):
        L = []
        for (d, a, o, k) in frags[S]:
            for j in range(4): L += mk(f"v_dot2c_f32_bf16 v{sums[k][j%2]}, s57, v{d+j}\nv_dot2c_f32_bf16 v{sqs[k][j%2]}, v{d+j}, v{d+j}")
        return L
    for S in range(10):
        if S < 9:
            P(f"WAITV x{S}")
            if S in (0, 2, 5, 8): stamp(P, 104 + (0, 2, 5, 8).index(S))
            for n, (d, a, o, k) in enumerate(frags[S]): P(f"ds_read_b128 {vr(d,4)}, v{a} offset:{o}", tag=f"xr{S}")
        if S == 8: stamp(P, 2)
        if S >= 1:
            P(f"WAITL xr{S-1}")
            if S - 1 in (2, 5): P("s_barrier")
        extra = []
        if S + lead + 1 < 9: extra += dgroups(xdma((S + lead + 1) // 3, (S + lead + 1) % 3))
        if S in dmas: extra += dgroups(dmas[S])
        body = dots(S - 1) if S >= 1 else []
        P.add(weave(body, extra, max(1, len(body) // (len(extra) + 1))))
    stamp(P, 108)

RING = 24576; NSLOT = 5; HX = RING * NSLOT
vA1 = [[16, 17, 18], [19, 20, 21]]; vA2 = [[22, 23, 24], [25, 26, 27]]
vD1 = [28, 29, 30, 31]; vD2 = [32, 33, 34, 35]
vHW, vHR, vST = 36, 37, 38
ACC1 = 48; XR = 112
AF = 192

def flag_setup(P, vFLW, sj, tmpv, hop=False):
    P(f"s_lshl_b32 s66, {sWV}, 11\ns_lshl_b32 s67, {sj}, 7\ns_add_u32 s66, s66, s67\ns_add_u32 s66, s66, {WS_FLAG}")
    P(f"v_lshrrev_b32 {tmpv}, 5, v0\nv_lshlrev_b32 {tmpv}, 30, {tmpv}\nv_lshl_add_u32 {tmpv}, v0, 2, {tmpv}\nv_add_u32 v{vFLW}, s66, {tmpv}\nv_mov_b32 {tmpv}, 0")
    P(f"buffer_store_dword {tmpv}, v{vFLW}, {sWS}, 0 offen sc1", tag='fz')
    if hop: P(f"s_mov_b32 s37, {HFOFF}\nbuffer_store_dword {tmpv}, v{vFLW}, {sWS}, s37 offen sc1", tag='fz')
def handshake(sj, va, vb, xcc=False):
    Q = Prog()
    Q(f"s_lshl_b32 s66, {sM}, 2\ns_and_b32 s67, {sj}, 3\ns_add_u32 s66, s66, s67\ns_lshl_b32 s66, s66, 2\ns_lshl_b32 s67, {sWV}, 8\ns_add_u32 s66, s66, s67")
    Q(f"v_lshlrev_b32 {va}, 8, v0\nv_add_u32 {va}, s66, {va}")
    Q(f"s_getreg_b32 s66, hwreg(HW_REG_XCC_ID)\ns_and_b32 s66, s66, 15\ns_and_b32 s67, {sj}, 12\ns_add_u32 s67, s67, 12\ns_lshl_b32 s66, s66, s67\ns_add_u32 s66, s66, 1\nv_mov_b32 {vb}, s66")
    Q(f"buffer_atomic_add {vb}, {va}, {sDBG}, 0 offen sc1", tag='hsk', cost=8)
    return Q.l

def sel32(P, SEL):
    P("v_and_b32 v2, 1, v0\nv_lshlrev_b32 v2, 4, v2\nv_mov_b32 v3, 0x3f80\nv_lshlrev_b32 v2, v2, v3")
    P("v_bfe_u32 v3, v0, 2, 1\nv_lshlrev_b32 v3, 1, v3\nv_lshrrev_b32 v4, 4, v0\nv_cmp_eq_u32 vcc, v3, v4\nv_cndmask_b32 v2, 0, v2, vcc")
    P("v_bfe_u32 v3, v0, 3, 1\nv_lshlrev_b32 v3, 1, v3\nv_bfe_u32 v4, v0, 1, 1\nv_add_u32 v3, v3, v4")
    for j in range(4): P(f"v_cmp_eq_u32 vcc, {j}, v3\nv_cndmask_b32 v{SEL+j}, 0, v2, vcc")

def dgroups(lst):
    G = []; cur = []
    for x in lst:
        cur.append(x)
        if x.kind == 'vmem': G.append(cur); cur = []
    if cur: G[-1] += cur
    return G

def flat(groups): return [x for g in groups for x in g]

def ffn():
    P = Prog()
    P(f"s_mov_b32 s50, {sROT}" if OPT['rot'] else "s_mov_b32 s50, 0")
    P(f"s_add_u32 s51, s50, 1\ns_cmp_ge_u32 s51, 3\ns_cselect_b32 s51, 0, s51\ns_add_u32 s52, s51, 1\ns_cmp_ge_u32 s52, 3\ns_cselect_b32 s52, 0, s52")
    P(f"s_mul_i32 {sSL}, s38, 3\ns_add_u32 {sSL}, {sSL}, {sROT}")
    P(f"s_mov_b32 s16, s40\ns_mov_b32 s17, s41\ns_mov_b32 s18, {576*4608*2}\ns_mov_b32 s19, 0x20000")
    P(f"s_mov_b32 s20, s42\ns_mov_b32 s21, s43\ns_mov_b32 s22, {576*4608*2}\ns_mov_b32 s23, 0x20000")
    P(f"s_mul_i32 s59, {sSL}, 768")
    P(f"s_mul_i32 s63, {sSL}, {384*1152}\ns_mul_i32 s64, {sWV}, 6144")
    if OPT['fuse']: P(f"s_lshl_b32 {sSL}, {sROT}, 2\ns_add_u32 {sSL}, {sSL}, s38")
    P("s_load_dwordx2 s[72:73], s[0:1], 48")
    vFLW = 39
    if OPT['fuse']: flag_setup(P, vFLW, sSL, 'v14', True)
    def pf_w(which):
        Q = Prog()
        if which == 1:
            Q(f"s_mul_i32 s66, {sMEM}, {72*9216}\ns_add_u32 s66, s66, s59\ns_lshl_b32 s67, {sWV}, 6\ns_mov_b32 s68, {-(-(1<<32)//6)}")
            for i in range(2):
                Q(f"v_add_u32 v10, s67, v0")
                if i: Q(f"v_add_u32 v10, 256, v10\nv_min_u32 v10, 431, v10")
                Q(f"v_mul_hi_u32 v11, v10, s68\nv_lshlrev_b32 v10, 7, v10\nv_mul_u32_u24 v11, {9216-768}, v11\nv_add_u32 v10, v10, v11")
                Q(f"buffer_load_dword v47, v10, {sWA}, s66 offen", tag='dummy', cost=8)
        else:
            nb = OPT['nb2']; n = 108 // nb
            Q(f"s_lshl_b32 s71, {sMEM}, 2\ns_add_u32 s71, s71, {sWV}\ns_mul_i32 s71, s71, {108*128}\ns_add_u32 s71, s71, s63")
            Q(f"v_min_u32 v44, {n-1}, v0\nv_lshlrev_b32 v44, 7, v44")
            for i in range(nb):
                Q(f"buffer_load_dword v47, v44, {sWB}, s71 offen", tag='dummy', cost=8)
                if i < nb - 1: Q(f"s_add_u32 s71, s71, {n*128}")
        return Q.l
    P(f"v_lshrrev_b32 v2, 3, v0\nv_and_b32 v3, 7, v0")
    P(f"s_mul_i32 s58, {sWV}, 48\nv_add_u32 v4, s58, v2")
    P(f"v_bfe_u32 v5, v0, 4, 1\nv_lshlrev_b32 v5, 2, v5\nv_xor_b32 v5, v5, v3\nv_lshlrev_b32 v5, 4, v5")
    P(f"v_mul_u32_u24 v6, 9216, v4\nv_add_u32 v{vD1[0]}, v6, v5")
    for i in range(1, 4): P(f"v_add_u32 v{vD1[i]}, {i*(8*9216-1024)}, v{vD1[0]}")
    P(f"v_bfe_u32 v5, v0, 4, 2\nv_lshlrev_b32 v5, 1, v5\nv_xor_b32 v5, v5, v3\nv_lshlrev_b32 v5, 4, v5")
    P(f"s_lshl_b32 s58, {sWV}, 4\nv_add_u32 v4, s58, v2\nv_mul_u32_u24 v6, 1152, v4\nv_add_u32 v{vD2[0]}, v6, v5\nv_add_u32 v{vD2[1]}, {8*1152-1024}, v{vD2[0]}")
    if OPT['prot'] == 6: P(f"s_cmp_ge_u32 {sMEM}, 6\ns_cselect_b32 s39, 6, 0\ns_sub_u32 s39, {sMEM}, s39\ns_lshl_b32 s39, s39, 7")
    elif OPT['prot'] == 3: P(f"s_mul_i32 s39, {sMEM}, 43\ns_lshr_b32 s39, s39, 7\ns_mul_i32 s39, s39, 3\ns_sub_u32 s39, {sMEM}, s39\ns_lshl_b32 s39, s39, 8")
    elif OPT['prot'] == 2: P(f"s_and_b32 s39, {sMEM}, 1\ns_mul_i32 s39, s39, 384")
    else: P("s_mov_b32 s39, 0")
    P(f"s_lshl_b32 s35, {sWV}, 11")
    for st in range(3): P(f"s_mul_i32 s{60+st}, s{50+st}, {192*9216}\ns_add_u32 s{60+st}, s{60+st}, s59")

    PA, PS = 40, 3
    g2 = [(0,0),(1,0),(2,0),(0,1),(1,1),(2,1)] + [(p,k) for p in range(3,9) for k in range(2)]
    BLK = [0, 1, 28, 29, 30, 31]
    def dma(s):
        slot = (s % NSLOT) * RING
        t = f"d{s}"
        if s < 18:
            p, st = s // 3, s % 3
            G = mk(f"s_add_u32 m0, s64, {slot}\ns_add_u32 s65, s{60+st}, s39")
            for i in range(4): G += mk(f"buffer_load_dwordx4 v{vD1[i]}, {sWA}, s65 offen offset:{1024*i} lds", tag=t, cost=8)
            G += mk(f"s_add_u32 m0, s64, {slot+4096}\ns_add_u32 s65, s65, {32*9216}")
            for i in range(2): G += mk(f"buffer_load_dwordx4 v{vD1[i]}, {sWA}, s65 offen offset:{1024*i} lds", tag=t, cost=8)
            if st == 2: G += [Grp(mk("s_add_u32 s39, s39, 128\ns_cmp_eq_u32 s39, 768\ns_cselect_b32 s39, 0, s39"))]
        else:
            p, k = g2[s - 18]
            G = []
            for b_ in range(3):
                G += mk(f"s_add_u32 m0, s35, {slot+8192*b_}\ns_add_u32 s65, s{PA+p}, s{BLK[3*k+b_]}")
                for i in range(2): G += mk(f"buffer_load_dwordx4 v{vD2[i]}, {sWB}, s65 offen offset:{1024*i} lds", tag=t, cost=8)
        return G
    P(f"v_lshrrev_b32 v2, 5, v0\nv_lshlrev_b32 v2, 12, v2\nv_bfe_u32 v3, v0, 2, 2\nv_lshlrev_b32 v3, 7, v3\nv_add_u32 v2, v2, v3")
    P(f"v_bfe_u32 v3, v0, 4, 1\nv_lshlrev_b32 v3, 5, v3\nv_add_u32 v2, v2, v3\nv_and_b32 v3, 3, v0\nv_lshlrev_b32 v3, 3, v3\nv_add_u32 v2, v2, v3")
    P(f"v_bfe_u32 v3, v0, 3, 1\nv_lshlrev_b32 v3, 6, v3\nv_add_u32 v{vA1[0][0]}, v2, v3\nv_xor_b32 v{vA1[1][0]}, 64, v{vA1[0][0]}")
    P(f"v_lshrrev_b32 v2, 2, v0\nv_lshlrev_b32 v2, 7, v2\nv_and_b32 v3, 3, v0\nv_lshlrev_b32 v3, 3, v3\nv_add_u32 v2, v2, v3")
    P(f"s_and_b32 s69, {sWV}, 1\ns_lshl_b32 s69, s69, 1\nv_bfe_u32 v3, v0, 3, 2\nv_xor_b32 v3, s69, v3\nv_lshlrev_b32 v3, 5, v3")
    P(f"v_add_u32 v{vA2[0][0]}, v2, v3\nv_xor_b32 v{vA2[1][0]}, 32, v{vA2[0][0]}")
    for vA in (vA1, vA2):
        for u in range(2):
            for b in (1, 2): P(f"v_add_u32 v{vA[u][b]}, {b*2*RING}, v{vA[u][0]}")
    P(f"v_bfe_u32 v2, v0, 4, 1\nv_lshlrev_b32 v2, 10, v2\nv_lshrrev_b32 v3, 5, v0\nv_lshlrev_b32 v3, 8, v3\nv_add_u32 v2, v2, v3")
    P(f"v_and_b32 v3, 15, v0\nv_lshlrev_b32 v3, 4, v3\nv_add_u32 v2, v2, v3\ns_lshl_b32 s69, {sWV}, 11\ns_add_u32 s69, s69, {HX}\nv_add_u32 v{vHW}, s69, v2")
    if OPT['fuse']: P(f"s_and_b32 s69, {sSL}, 3\ns_lshl_b32 s69, s69, 10\nv_xor_b32 v{vHW}, s69, v{vHW}")
    P(f"v_lshlrev_b32 v{vST}, 4, v0\ns_lshr_b32 s69, {sWV}, 1\ns_lshl_b32 s69, s69, 12\ns_add_u32 s69, s69, {HX}\nv_add_u32 v{vHR}, s69, v{vST}")
    P(f"s_lshl_b32 s70, s38, 1\ns_lshr_b32 s69, {sWV}, 1\ns_add_u32 s70, s70, s69")
    P(f"s_mul_i32 s70, s70, 18\ns_and_b32 s69, {sWV}, 1\ns_add_u32 s70, s70, s69\ns_lshl_b32 s70, s70, 12\ns_add_u32 s70, s70, {WS_FIN}")
    P(f"s_lshr_b32 s66, {sSL}, 2\ns_mul_i32 s67, {sM}, 43\ns_lshr_b32 s67, s67, 7")
    P(f"s_mul_i32 s68, s67, 3\ns_sub_u32 s68, {sM}, s68\ns_add_u32 s68, s68, s66\ns_add_u32 s68, s68, 1")
    P(f"s_cmp_ge_u32 s68, 3\ns_cselect_b32 s69, 3, 0\ns_sub_u32 s68, s68, s69")
    P(f"s_cmp_ge_u32 s67, 3\ns_cselect_b32 s69, 3, 0\ns_sub_u32 s67, s67, s69")
    if not OPT['fuse']: P("s_mov_b32 s67, 0\ns_mov_b32 s68, 0")
    for ph in range(3):
        for k in range(3):
            p = 3 * ph + k
            P(f"s_mul_i32 s69, s68, 3\ns_add_u32 s69, s69, s67\ns_lshl_b32 s{PA+p}, s69, 7\ns_add_u32 s{PA+p}, s{PA+p}, s63\ns_lshl_b32 s{PS+p}, s69, 13\ns_add_u32 s{PS+p}, s{PS+p}, s70")
            P("s_add_u32 s67, s67, 1\ns_cmp_eq_u32 s67, 3\ns_cselect_b32 s67, 0, s67")
        if ph < 2: P("s_add_u32 s68, s68, 1\ns_cmp_eq_u32 s68, 3\ns_cselect_b32 s68, 0, s68")
    P(f"s_and_b32 s67, {sSL}, 3")
    for d in range(4): P(f"s_xor_b32 s{96+d}, s67, {d}\ns_mul_i32 s{96+d}, s{96+d}, {JS}\ns_add_u32 s{96+d}, s{96+d}, {1024*d}")
    P(f"s_and_b32 s68, {sWV}, 2\ns_lshl_b32 s68, s68, 1\ns_add_u32 s50, s67, s68\ns_mul_i32 s50, s50, 18\ns_and_b32 s68, {sWV}, 1\ns_add_u32 s50, s50, s68\ns_lshl_b32 s50, s50, 10\ns_add_u32 s50, s50, {WS_S}")
    P(f"s_mul_i32 s101, s66, {4*JS}\ns_add_u32 s101, s101, {WS_FB - WS_FIN}")
    P(f"s_add_u32 s68, s66, 1\ns_cmp_ge_u32 s68, 3\ns_cselect_b32 s68, 0, s68\ns_lshl_b32 s69, s68, 2\ns_add_u32 s51, s69, s67\ns_mul_i32 s100, s68, {4*JS}\ns_add_u32 s100, s100, {WS_FB - WS_FIN}")
    P(f"s_mul_i32 s49, s67, {-JS}\ns_lshl_b32 s68, s66, 2\ns_lshl_b32 s53, 15, s68\ns_lshl_b32 s68, 1, {sSL}\ns_andn2_b32 s53, s53, s68\ns_mov_b32 s52, 0xf000")
    P(f"v_and_b32 v2, 31, v0\nv_lshlrev_b32 v2, 7, v2\nv_add_u32 v2, s54, v2\nv_bfe_u32 v3, v0, 1, 3\nv_lshrrev_b32 v4, 5, v0\nv_lshlrev_b32 v4, 2, v4\nv_xor_b32 v3, v3, v4\nv_lshlrev_b32 v3, 4, v3")
    P(f"v_add_u32 v80, v2, v3\nv_xor_b32 v81, 16, v80\nv_xor_b32 v82, 32, v80\nv_xor_b32 v83, 48, v80")
    for j in range(4): P(f"v_add_u32 v{84+j}, 98304, v{80+j}")
    SEL = 40
    sel32(P, SEL)
    P("v_mov_b32 v8, 0\nv_mov_b32 v9, 0\nv_mov_b32 v12, 0\nv_mov_b32 v13, 0\ns_mov_b32 s57, 0x3f803f80")
    P(f"s_waitcnt lgkmcnt(0)\ns_mul_i32 s0, s39, {64*1152//128}\ns_mov_b32 s74, {2048*576*2}\ns_mov_b32 s75, 0x20000")
    setup = P.l; P.l = []
    fr = [[(XR + 4 * (4 * S + f), (80 if S < 6 else 84) + f, ((S // 3) % 2) * 49152 + (S % 3) * 4096, 0) for f in range(4)] for S in range(9)]
    d0, d1, d2 = dma(0), dma(1), dma(2)
    xphase(P, setup, fr, [[8, 9]], [[12, 13]], {5: d0[:6], 6: d0[6:], 7: d1[:6], 8: d1[6:] + (d2[:6] if OPT['dpre'] == 3 else []), 9: d2[6:] if OPT['dpre'] == 3 else []})
    P("v_add_f32 v8, v8, v9\nv_add_f32 v12, v12, v13\nv_mov_b32 v9, v8\nv_mov_b32 v13, v12\nv_permlane32_swap_b32 v8, v9\nv_permlane32_swap_b32 v12, v13\nv_add_f32 v8, v8, v9\nv_add_f32 v12, v12, v13")
    def um(F): return mk(f"v_mfma_f32_32x32x16_bf16 {vr(ACC1+32+16*(F%2),16)}, {vr(SEL,4)}, {vr(XR+4*F,4)}, 0")
    def nv(F):
        d = ACC1 + 32 + 16 * (F % 2); x = XR + 4 * F
        o = []
        for j in range(8): o += mk(f"v_fma_f32 v{d+j}, v{d+j}, v2, v3")
        for j in range(4): o += mk(f"v_cvt_pk_bf16_f32 v{x+j}, v{d+2*j}, v{d+2*j+1}")
        return o
    P.add(um(0)); P.add(um(1))
    ln_stats(P, 'v8', 'v12', 'v4', 'v2', 'v3')
    P(f"v_mul_f32 v2, {hx(LOG2E)}, v2\nv_mul_f32 v3, v4, v2")

    uses = []
    for p in range(6):
        for st in range(3):
            s = 3 * p + st; slot = s % NSLOT
            for S in range(3):
                for ss in range(4):
                    F = st * 12 + S * 4 + ss
                    for u in range(2):
                        n = len(uses); af = AF + 4 * (n % 16)
                        off = (slot % 2) * RING + (64 * S + 8 * ss) * 128
                        va = vA1[u][slot // 2]
                        rd = mk(f"ds_read_b64_tr_b16 {ar(af,2)}, v{va} offset:{off}\nds_read_b64_tr_b16 {ar(af+2,2)}, v{va} offset:{off+512}", tag=f"r{n}")
                        acc = vr(ACC1 + 32 * (p % 2) + 16 * u, 16)
                        mf = mk(f"v_mfma_f32_32x32x16_bf16 {acc}, {ar(af,4)}, {vr(XR+4*F,4)}, {'0' if F == 0 else acc}")
                        uses.append((s, rd, mf))
    N1 = len(uses)
    ACC2 = XR; STG = XR + 128
    for si, (p, k) in enumerate(g2):
        s = 18 + si; slot = s % NSLOT
        for kk in range(6):
            ks = 6 * k + kk
            for u in range(2):
                n = len(uses); af = AF + 4 * (n % 16)
                off = (slot % 2) * RING + 32 * kk * 128
                va = vA2[u][slot // 2]
                rd = mk(f"ds_read_b64_tr_b16 {ar(af,2)}, v{va} offset:{off}\nds_read_b64_tr_b16 {ar(af+2,2)}, v{va} offset:{off+2048}", tag=f"r{n}")
                mf = []
                for j in (range(4) if not (OPT['snake'] and u) else range(3, -1, -1)):
                    acc = vr(ACC2 + 32 * (p % 4) + 8 * j + 4 * u, 4)
                    mf += mk(f"v_mfma_f32_16x16x32_bf16 {acc}, {ar(af,4)}, {ar(16*ks+4*j,4)}, {'0' if ks == 0 else acc}")
                uses.append((s, rd, mf))
    NU = len(uses)
    PD1, PD2 = OPT['pd1'], OPT['pd2']
    rd_at = {}
    for n in range(NU):
        if n < N1: g = n - PD1
        else:
            g = n - PD2
            if g < N1: g = N1 - 1 - 2 * (N1 - 1 - g)
        rd_at.setdefault(g, []).append(n)
    bar_at = {}
    for g in sorted(rd_at):
        for n in rd_at[g]:
            s = uses[n][0]
            if s not in bar_at: bar_at[s] = g
    extra_lw = {}
    def hw_tag(ks): return f"hw{ks}"
    def rstage(ks):
        p = ks // 2
        if p <= 3: return 3 * (p + 2) + 1
        if p == 4: return 19
        return 21
    for ks in range(1, 12, 2): extra_lw[rstage(ks)] = hw_tag(ks)
    def barrier(s):
        if s in extra_lw: return mk(f"WAITVL d{s}, {extra_lw[s]}\ns_barrier")
        return mk(f"WAITV d{s}\ns_barrier")
    P.add(barrier(0))
    for g in sorted(rd_at):
        if g < 0:
            for n in rd_at[g]: P.add(uses[n][1])
    P.add(nv(0))
    P("WAITL r3")
    stamp(P, 3)
    S16 = 16
    def ustart(p): return N1 + 12 * (6 + 2 * (p - 3))
    QP = {3: OPT['q3'], 4: OPT['q4'], 5: OPT['q5'], 6: 168 - OPT['lat1'], 7: 192 - OPT['lat1'], 8: 216 - OPT['lat1']}
    AP = {p: max(12 * (8 + 2 * (p - 3)), QP[p] + (OPT['lat0'] if p < 6 else OPT['lat1'])) for p in range(3, 9)}
    nacc = {N1 + AP[p]: p for p in range(3, 8)} if OPT['fuse'] else {}
    gacc = {}
    def HB(p): return 48 + 16 * (p % 2)
    def accum(dst, src, first=False):
        return mk(f"v_mfma_f32_16x16x32_bf16 {vr(dst,4)}, {vr(S16+2,4)}, {src}, {'0' if first else vr(dst,4)}\nv_mfma_f32_16x16x32_bf16 {vr(dst+4,4)}, {vr(S16,4)}, {src}, {'0' if first else vr(dst+4,4)}")
    def hopacc(p):
        L = []
        for j in range(4): L += accum(ACC2 + 32 * (p % 4) + 8 * j, vr(HB(p) + 4 * j, 4))
        return L[0::2] + L[1::2]
    SC = Sched()
    gi = {}
    gu = {}
    for n in range(NU):
        mf = uses[n][2]
        if n in nacc:
            SC.tail[-1] += mk(f"WAITV hl{nacc[n]}")
            for m_ in hopacc(nacc[n]): gacc[nacc[n]] = SC.gap([m_], 16)
        if n < 72 and n % 2 == 0 and n // 2 + 2 < 36:
            gu[n // 2 + 2] = SC.gap(um(n // 2 + 2), 32)
        bar = []
        for s, g in bar_at.items():
            if g == n: bar = barrier(s)
        rds = []
        for nn in rd_at.get(n, []): rds += uses[nn][1]
        if n < N1:
            g = SC.gap(mf, 32); gi[n] = g
            SC.mand[g] += bar + rds
            if n % 4 == 3 and n + 1 < N1: SC.tail[g] += mk(f"WAITL r{n+4}")
            if n == N1 - 1: SC.tail[g] += mk(f"WAITL r{n+2}")
        else:
            gs = [SC.gap([m], 16) for m in mf]; gi[n] = gs[0]
            if bar:
                SC.mand[gs[0]] += bar
                for i, t in enumerate(rds): SC.mand[gs[1 + i]].append(t)
            else:
                for i, t in enumerate(rds): SC.mand[gs[2 * i]].append(t)
            if (n - N1) % 2 == 1 and n + 1 < NU: SC.tail[gs[3]] += mk(f"WAITL r{n+2}")
    gi[NU] = len(SC.head)

    def silu(ks):
        p, u = ks // 2, ks % 2
        a = ACC1 + 32 * (p % 2) + 16 * u
        F = []
        T = [1, 2, 3, 4, 5, 6, 7, 46]
        stg = 8
        def E(q, j): return mk(f"v_exp_f32_e64 v{T[4*(q%2)+j]}, -v{a+4*q+j}")
        def Ad(q, j): return mk(f"v_add_f32 v{T[4*(q%2)+j]}, 1.0, v{T[4*(q%2)+j]}")
        def R(q, j): return mk(f"v_rcp_f32 v{T[4*(q%2)+j]}, v{T[4*(q%2)+j]}")
        def M(q, j): return mk(f"v_mul_f32 v{T[4*(q%2)+j]}, v{a+4*q+j}, v{T[4*(q%2)+j]}")
        def C(q):
            d = stg + 4 * (q % 2) + 2 * (q // 2); t = T[4*(q%2):4*(q%2)+4]
            o = mk(f"v_cvt_pk_bf16_f32 v{d}, v{t[0]}, v{t[1]}\nv_cvt_pk_bf16_f32 v{d+1}, v{t[2]}, v{t[3]}")
            if q >= 2: o += mk(f"ds_write_b128 v{vHW}, {vr(stg+4*(q%2),4)} offset:{(ks%4)*8192+512*(q%2)}", tag=hw_tag(ks), cost=OPT['wcost'])
            return o
        for q in range(4):
            F += E(q, 0) + E(q, 1)
            F += E(q, 2) + Ad(q, 0) + Ad(q, 1)
            F += E(q, 3) + Ad(q, 2)
            F += R(q, 0) + Ad(q, 3)
            F += R(q, 1) + M(q, 0)
            F += R(q, 2) + M(q, 1)
            F += R(q, 3) + M(q, 2)
            c = C(q)
            F += [c[0]] + M(q, 3) + c[1:]
        return F
    def hread(ks):
        return flat([mk(f"ds_read_b128 {ar(16*ks+4*j,4)}, v{vHR} offset:{(ks%4)*8192+1024*j}", tag=f"hr{ks}") for j in range(4)])
    def epi(p):
        a = ACC2 + 32 * (p % 4)
        F = []
        for j in range(4):
            if OPT['fuse'] and p >= 6 and j == 0: continue
            for u in range(2):
                for h in range(2): F += mk(f"v_cvt_pk_bf16_f32 v{STG+4*j+2*u+h}, v{a+8*j+4*u+2*h}, v{a+8*j+4*u+2*h+1}")
            F += mk(f"buffer_store_dwordx4 {vr(STG+4*j,4)}, v{vST}, {sWS}, s{PS+p} offen offset:{1024*j}{STMOD if (p >= 6 or (p < 3 and OPT['hop0']) or OPT['hop1'] or not OPT['fuse']) else ''}", tag=f'st{p}', cost=8)
        return F

    for s in range(0, 33):
        g0 = gi[bar_at[s]] + 1 if bar_at[s] >= 0 else 0
        g1 = gi[bar_at[s + 1]]
        SC.place((dma(2) if (s == 0 and OPT['dpre'] == 2) else []) + dma(s + 3), g0, g1, 'spread', f'dma{s+3}')
    for ks in range(12):
        g0 = gi[bar_at[rstage(ks)]] + 1 + (ks % 2) * 8
        SC.place(hread(ks), g0, g0 + 8, 'spread', f'hr{ks}')
    if OPT['fuse']: SC.place(handshake(sSL, 'v44', 'v45', True), gi[bar_at[3]] + 1, gi[bar_at[3]] + 12, 'spread', 'hsk')
    if OPT['pfw'] & 1: SC.place(pf_w(1), 20, 70, 'spread', 'pf1')
    if OPT['pfw'] & 2: SC.place(pf_w(2), gi[90], gi[400], 'spread', 'pf2')
    for F in range(1, 36):
        g0 = gu.get(F + 1, gi[2 * (F - 1)]); g1 = gi[2 * (F - 1) + 1] + 1
        SC.place(nv(F), g0, g1, 'asap', f'nv{F}')
    for p in range(5):
        b = 72 * (p + 1)
        SC.place(silu(2 * p) + silu(2 * p + 1), gi[b + 2], gi[b + 72], 'asap', f'silu{p}')
    SC.place(silu(10) + silu(11), gi[N1] + 6, gi[bar_at[21]] - 2, 'asap', 'silu5')
    last_stage = {}; gepi = {}
    for si, (p, k) in enumerate(g2):
        if k == 1: last_stage[p] = si
    for p in range(8):
        g0 = gi[N1 + 12 * (last_stage[p] + 1)] + 5
        if p in gacc: g0 = gacc[p] + 5
        if OPT['fuse'] and p in (1, 2): g0 = gi[N1 + OPT['e%d' % p]]
        gepi[p] = SC.place(epi(p), g0, g0 + (42 if not OPT['fuse'] else 30), 'spread' if not OPT['fuse'] else 'asap', f'epi{p}')[-1]
    slow = []
    def gs(si, off=0): return gi[N1 + 12 * si] + off
    if OPT['fuse']:
        vFR, vFV, vXO, vC = 28, 29, 30, 31
        def site(name, load, tag, chk, g0, g1):
            L = mk(f"WAITV {tag}") + mk(chk) + mk(f"s_cbranch_scc0 L_slow{name}\nL_back{name}:")
            head, tailp = L[:-4], L[-4:]
            pos = SC.place(head, g0, g1, 'asap', name)
            SC.fill[pos[-1] + 1] += tailp
            slow.extend(mk(f"L_slow{name}:\ns_mov_b32 s68, 0\nL_spin{name}:\n{load}\ns_waitcnt vmcnt(0)\n{chk}\ns_cbranch_scc1 L_back{name}\ns_sleep 1\ns_add_u32 s68, s68, 1\ns_cmp_lt_u32 s68, 0x80000\ns_cbranch_scc1 L_spin{name}\ns_branch L_back{name}", cond=True))
            return pos[-1] + 2
        hload = f"buffer_load_dword v41, v40, {sDBG}, 0 offen sc1"
        SC.place(mk(f"s_lshl_b32 s66, {sM}, 4\nv_and_b32 v40, 3, v0\nv_lshlrev_b32 v40, 2, v40\nv_add_u32 v40, s66, v40") + mk(hload, tag='hc', cost=8), gi[200], gi[212], 'spread', 'hc')
        g = site('H', hload, 'hc', f"v_and_b32 v42, 0xff, v41\nv_cmp_le_u32 vcc, 4, v42\ns_and_b32 s66, vcc_lo, 15\ns_cmp_eq_u32 s66, 15", gi[260], gi[270])
        MD = mk(f"v_readlane_b32 s66, v41, s38\ns_lshr_b32 s67, s66, 4\ns_xor_b32 s66, s66, s67")
        pos = SC.place(MD, g, gi[285], 'spread', 'mode')
        fb = "s_or_b32 s66, s66, 0x1000\n" if OPT['forcefb'] else ""
        SC.fill[pos[-1] + 1] += mk(f"{fb}s_and_b32 s66, s66, 0xff000\ns_cselect_b32 s58, 0, 1\n{'s_cmp_eq_u32 0, 0' if OPT['hop1'] else ''}\ns_cselect_b32 s100, s100, {4*JS}\ns_cselect_b32 s101, s101, {4*JS}\ns_sub_u32 s59, s100, s101")
        SC.place(mk("\n".join(f"s_add_u32 s{PS+p}, s{PS+p}, s101" for p in range(6))), pos[-1] + 2, gi[300], 'spread', 'psfix')
        L = []
        for x in range(1, 6): L += [Grp(mk(f"s_add_u32 s{BLK[x]}, s{BLK[x-1]}, {64*1152}\ns_cmp_eq_u32 s{BLK[x]}, {384*1152}\ns_cselect_b32 s{BLK[x]}, 0, s{BLK[x]}"))]
        SC.place(L, gi[300], gi[345], 'spread', 'blk')
        SC.place(mk(f"buffer_load_dword v47, v{vFLW}, {sWS}, s37 offen sc1", tag='dummy', cost=8), gi[205], gi[215], 'asap', 'pfflag')
        if OPT['pfh'] & 2:
            L = []
            for p in range(3):
                for j in range(4): L += mk(f"buffer_store_dwordx4 {vr(XR,4)}, v{vST}, {sWS}, s{PS+p} offen offset:{1024*j} sc1", tag='pw', cost=16)
            SC.place(L, gi[208], gi[300], 'spread', 'prewrite')
        if OPT['pfh'] & 1:
            hs = OPT['hsplit']
            L = mk(f"v_and_b32 v40, {32//hs-1}, v0\nv_lshlrev_b32 v40, 7, v40") + (mk("WAITV pw") if OPT['pfh'] & 2 else [])
            for p in range(3):
                for h in range(hs): L += mk(f"buffer_load_dword v47, v40, {sWS}, s{PS+p} offen offset:{h*4096//hs} sc1", tag='dummy', cost=8)
            SC.place(L, gi[OPT['pfh0']], gi[425], 'spread', 'pfh')
        SQ = Prog()
        SQ(f"s_lshl_b32 s66, {sM}, 7\ns_and_b32 s67, {sWV}, 2\ns_lshl_b32 s67, s67, 5\ns_add_u32 s66, s66, s67\ns_and_b32 s67, {sSL}, 2\ns_lshl_b32 s67, s67, 4\ns_add_u32 s66, s66, s67\ns_and_b32 s67, {sSL}, 1\ns_add_u32 s66, s66, s67")
        SQ(f"v_lshrrev_b32 v40, 2, v0\nv_lshlrev_b32 v40, 1, v40\nv_add_u32 v40, s66, v40\nv_mul_u32_u24 v40, 1152, v40\nv_and_b32 v41, 3, v0\nv_lshlrev_b32 v41, 4, v41\ns_and_b32 s67, {sWV}, 1\ns_lshl_b32 s67, s67, 6\nv_add3_u32 v{vXO}, v40, v41, s67")
        XV = 92; vL1, vL2, vL3 = 1, 2, 3
        SQ(f"s_lshl_b32 s36, {sWV}, 13\ns_add_u32 s36, s36, {HX}")
        SQ(f"v_and_b32 v40, 15, v0\nv_lshrrev_b32 v41, 4, v0\nv_lshlrev_b32 v41, 3, v41\nv_add_u32 v41, s36, v41\nv_lshl_add_u32 v{vL1}, v40, 6, v41\nv_mul_u32_u24 v40, 80, v40\nv_add_u32 v{vL2}, v40, v41")
        SQ(f"v_lshrrev_b32 v40, 2, v0\nv_mul_u32_u24 v40, 80, v40\nv_and_b32 v41, 3, v0\nv_lshlrev_b32 v41, 4, v41\nv_add3_u32 v{vL3}, v40, v41, s36")
        for k in range(3): SQ(f"s_sub_u32 s{60+k}, s{PA+6+k}, s63")
        SQ(f"s_lshl_b32 s67, {sWV}, 11\ns_and_b32 s66, {sWV}, 2\ns_bfe_u32 s68, {sSL}, 0x10001\ns_add_u32 s66, s66, s68\ns_lshl_b32 s66, s66, 11")
        SQ(f"s_lshl_b32 s51, s51, 7\ns_add_u32 s51, s51, s67\ns_add_u32 s51, s51, {WS_FLAG + HFOFF}\nv_mov_b32 v43, s51")
        SQ(f"v_and_b32 v40, 15, v0\nv_mov_b32 v41, s67\nv_mov_b32 v42, s66\nv_cmp_gt_u32 vcc, 12, v40\nv_lshlrev_b32 v40, 7, v40\nv_add_u32 v40, {WS_FLAG}, v40\nv_cndmask_b32 v41, v42, v41, vcc\nv_add_u32 v{vFR}, v40, v41")
        SQ(f"s_or_b32 vcc_lo, s52, s53\ns_mov_b32 vcc_hi, 0\nv_mov_b32 v40, 2.0\nv_cndmask_b32 v{vFR}, v40, v{vFR}, vcc")
        sel_consts(SQ, S16, 'v40', 'v41', 'v42')
        SQ('s_mov_b32 s16, s24\ns_mov_b32 s17, s25\ns_mov_b32 s57, 0xffff0000')
        SQ('v_lshlrev_b32 v41, 3, v0')
        SC.place(SQ.l, gi[bar_at[21]], gs(6), 'asap', 'tailsetup')
        fload = f"buffer_load_dword v{vFV}, v{vFR}, {sWS}, 0 offen sc1"
        def chk(thr, mask): return f"v_cmp_le_u32 vcc, {thr}, v{vFV}\ns_and_b32 s66, vcc_lo, {mask}\ns_cmp_eq_u32 s66, {mask}"
        def fstore(val): return mk(f"buffer_store_dword v{vC}, v{vFLW}, {sWS}, 0 offen sc1", tag=f'fl{val}', cost=8)
        for p in range(6):
            g = gepi[p] + 4 * (OPT['fd0'] if ((p < 3 and OPT['hop0']) or OPT['hop1']) else OPT['fd1'])
            pos = SC.place(mk(f"v_mov_b32 v{vC}, {p+1}") + mk(f"WAITV st{p}"), g, g + 20, 'asap', f'flag{p}')
            hst = f"buffer_store_dword v{vC}, v{vFLW}, {sWS}, s37 offen"
            SC.fill[pos[-1] + 1] += mk(f"s_cmp_eq_u32 s58, 0\ns_cbranch_scc1 L_rel{p}") + mk(hst, tag=f'fl{p+1}', cost=8) + mk(f"L_relb{p}:")
            slow.extend(mk(f"L_rel{p}:\nbuffer_wbl2 sc1\ns_waitcnt vmcnt(0)\n{hst} sc1\ns_branch L_relb{p}", cond=True))
        pload = f"buffer_load_dword v{vFV}, v43, {sWS}, 0 offen sc1"
        def hloads(p):
            L = mk(f"s_add_u32 s69, s{PS+p}, {'s59' if p < 6 else 's100'}")
            for j in range(4): L += mk(f"buffer_load_dwordx4 {vr(HB(p)+4*j,4)}, v{vST}, {sWS}, s69 offen offset:{1024*j} sc1", tag=f"hl{p}", cost=8)
            return L
        ghl = {}
        for p in range(3, 9):
            u0 = N1 + QP[p]
            SC.place(mk(pload, tag=f'pp{p}', cost=8), gi[u0 - 1], gi[u0 + 1], 'asap', f'pp{p}')
            ck = f"v_cmp_le_u32 vcc, {p-2}, v{vFV}"
            pos = SC.place(mk(f"WAITV pp{p}") + mk(ck), gi[u0 + OPT['pchk']], gi[u0 + OPT['pchk'] + 1], 'asap', f'chk{p}')
            SC.fill[pos[-1] + 2] += mk(f"s_cbranch_vccz L_slowP{p}\nL_backP{p}:")
            slow.extend(mk(f"L_slowP{p}:\n" + (f"s_add_u32 s93, s93, {1 << (4*(p-3))}\n" if OPT['stamp'] else "") + f"s_mov_b32 s68, 0\nL_spinP{p}:\n{pload}\ns_waitcnt vmcnt(0)\n{ck}\ns_add_u32 s68, s68, 1\ns_nop 4\ns_cbranch_vccnz L_backP{p}\ns_cmp_lt_u32 s68, 0x80000\ns_cbranch_scc1 L_spinP{p}\ns_branch L_backP{p}", cond=True))
            ghl[p] = SC.place(hloads(p), pos[-1] + 3, gi[u0 + OPT['pchk'] + 5], 'asap', f'hl{p}')[-1]
        sQ = 's[16:19]'
        RS = [80, 84, 88]
        def sloads(srd, tag, cond=False):
            L = []
            for k in range(3):
                L += mk(f"s_lshl_b32 s69, s{60+k}, 4\ns_add_u32 s69, s69, s50", cond=cond)
                for u in range(2): L += mk(f"buffer_load_dwordx2 {vr(RS[k]+2*u,2)}, v41, {srd}, s69 offen offset:{512*u} sc1", tag=tag, cond=cond, cost=8)
            return L
        L = []
        for k in range(3): L += mk(f"s_add_u32 m0, s36, {1024*k}") + mk(f"buffer_load_dwordx4 v{vXO}, {sX}, s{60+k} offen lds", tag='xo', cost=8)
        L += mk(f"buffer_load_dword v42, v{vFR}, {sWS}, 0 offen sc1", tag='p0', cost=8)
        SC.place(L, max(ghl[7], gi[bar_at[33]]) + 1, ghl[7] + 30, 'asap', 'p0')
        pos = SC.place(mk("WAITV p0\nv_cmp_le_u32 s[70:71], 9, v42"), ghl[8] - 6, ghl[8] + 8, 'asap', 'chkS')
        SC.fill[pos[-1] + 1] += mk(f"s_and_b32 s66, s70, s52\ns_cmp_eq_u32 s66, s52\ns_cselect_b32 s18, {WS_BYTES}, 0\ns_cselect_b32 s54, 1, 0")
        L = []
        for k in range(3):
            for u in range(2): L += mk(f"ds_read_b64 {vr(XV+4*k+2*u,2)}, v{vL1} offset:{1024*k+32*u}", tag='xr')
        SC.place(L, pos[-1] + 2, gs(17, 30), 'asap', 'xr')
        g = SC.place(sloads(sQ, 'ls') + mk(fload, tag='p1', cost=8), max(ghl[8] + 1, pos[-1] + 2), gs(17, 40), 'asap', 'ls')[-1]
        SC.place(mk(f"v_mov_b32 v{vC}, 8") + mk("WAITV st7") + fstore(8), max(g + 1, gs(17, 32)), len(SC.head), 'asap', 'flag8')
    print("; gemm2 per-stage planned cycles:", [sum(16 + max(0, SC.used(g) - SC.cap[g]) for g in range(gs(i), gs(i + 1) if i < 17 else len(SC.head))) for i in range(18)], file=sys.stderr)
    print("; overflow cycles: pass0 %d, pass1-5 %d, gemm2 %d" % (SC.overflow(0, gi[72]), SC.overflow(gi[72], gi[N1]), SC.overflow(gi[N1])), file=sys.stderr)
    marks = [gi[72], gi[144], gi[N1], gi[N1 + 72]]
    ids = [4, 5, 6, 7]
    if OPT['marks'] == 2:
        marks = [gs(12), gs(13), gs(14), gs(15), gs(16), gs(17), len(SC.head)]; ids = [1, 2, 3, 4, 5, 6, 7]
    if OPT['marks'] == 3:
        marks = [gs(6), gs(7), gs(8), gs(9), gs(10), gs(11), gs(12)]; ids = [1, 2, 3, 4, 5, 6, 7]
    if OPT['marks'] == 5:
        marks = [gs(0), gs(1), gs(2), gs(3), gs(4), gs(5), gs(6)]; ids = [1, 2, 3, 4, 5, 6, 7]
    if OPT['marks'] == 6:
        marks = [gi[72], gi[144], gi[216], gi[288], gi[360], gi[N1]]; ids = [2, 3, 4, 5, 6, 7]
    if OPT['marks'] == 1:
        marks = [gs(0), gs(6), gs(8), gs(10), gs(12), gs(14), gs(16)]; ids = [1, 2, 3, 4, 5, 6, 7]
    prev = 0
    for i, g in zip(ids, marks):
        P.add(SC.emit(prev, g)); stamp(P, i); prev = g
    P.add(SC.emit(prev))
    if OPT['fuse']:
        P("WAITV hl8"); P.add(hopacc(8))
    P.add(epi(8))
    k0 = [i for i, x in enumerate(P.l) if x.text.startswith('WAITL r3')][0]
    def keep(x):
        if OPT['nosilu'] and x.base in ('v_exp_f32', 'v_rcp_f32', 'v_add_f32', 'v_mul_f32'): return False
        if OPT['nodma'] and x.kind == 'vmem' and 'lds' in x.mods: return False
        if OPT['nodma'] and x.op == 'WAITV': return False
        if OPT['nobar'] and x.kind == 'bar': return False
        if OPT['nost'] and (x.tag or '').startswith('st'): return False
        return True
    def fix(x):
        if OPT['nodma'] and x.op == 'WAITVL': return I('WAITL ' + x.ops[1])
        return x
    P.l = P.l[:k0] + [fix(x) for x in P.l[k0:] if keep(x)]
    stamp(P, 8)
    if OPT['fuse']:
        G = [ACC2 + 32 * ((6 + k) % 4) for k in range(3)]
        SS = [g + 8 for g in G]
        XU = 144
        def cloads(ks, srd, tag, cond=False):
            for k in ks:
                P(f"s_add_u32 s67, s{PS+6+k}, s49", cond=cond)
                for d in range(1, 4): P(f"s_add_u32 s69, s67, s{96+d}\nbuffer_load_dwordx4 {ar(12*k+4*(d-1),4)}, v{vST}, {srd}, s69 offen sc1", tag=tag, cond=cond)
        def spin(name, thr, mask):
            P(f"s_mov_b32 s68, 0\nL_spin{name}:", cond=True)
            P(fload + "\ns_waitcnt vmcnt(0)\n" + chk(thr, mask) + f"\ns_cbranch_scc1 L_done{name}\ns_sleep {OPT['slp']}\ns_add_u32 s68, s68, 1\ns_cmp_lt_u32 s68, 0x80000\ns_cbranch_scc1 L_spin{name}\nL_done{name}:", cond=True)
        def unitT(ks, acc=True):
            for k in (ks if acc else []):
                for d in range(3): P.add(accum(G[k], ar(12 * k + 4 * d, 4)))
            for k in ks:
                g_, t_ = G[k], G[k] + 16
                for i in range(8): P(f"v_exp_f32_e64 v{t_+i}, -v{g_+i}")
                for i in range(8): P(f"v_fma_f32 v{t_+i}, v{t_+i}, s71, s71")
                for i in range(8): P(f"v_rcp_f32 v{t_+i}, v{t_+i}")
                for i in range(8): P(f"v_mul_f32 v{g_+i}, v{g_+i}, v{t_+i}")
        P("WAITV p1\n" + chk(8, 's53') + f"\ns_cselect_b32 s18, {WS_BYTES}, 0\ns_cselect_b32 s55, 1, 0")
        cloads([0, 1], sQ, 'lc0')
        P(chk(9, 's53') + f"\ns_cselect_b32 s18, {WS_BYTES}, 0\ns_cselect_b32 s56, 1, 0")
        cloads([2], sQ, 'lc2')
        P(f"v_mov_b32 v{vC}, 9\ns_mov_b32 s71, {hx(LOG2E)}")
        for d in range(12): P(f"v_lshlrev_b32 v{XU+2*d}, 16, v{XV+d}\nv_and_b32 v{XU+2*d+1}, s57, v{XV+d}")
        P("WAITV st8"); P.add(fstore(9)); stamp(P, 12)
        P("s_cmp_eq_u32 s54, 1\ns_cbranch_scc1 L_chk8")
        P(chk(9, 's52') + "\ns_cbranch_scc0 L_chk8\ns_mov_b32 s54, 1", cond=True)
        P.add(sloads(sWS, 'ls1', True))
        P("L_chk8:")
        P("s_cmp_eq_u32 s55, 1\ns_cbranch_scc1 L_have8")
        spin('8', 8, 's53')
        cloads([0, 1], sWS, 'lc0b', True)
        P(chk(9, 's53') + f"\ns_cselect_b32 s18, {WS_BYTES}, 0\ns_cselect_b32 s56, 1, 0", cond=True)
        cloads([2], sQ, 'lc2c', True); P("s_waitcnt vmcnt(3)", cond=True)
        P("L_have8:")
        P(fload, tag='p2')
        P("WAITV lc0")
        stamp(P, 9)
        unitT([0, 1])
        P("s_waitcnt vmcnt(0)")
        P("s_cmp_eq_u32 s54, 1\ns_cbranch_scc1 L_chk9")
        P(chk(9, 's52') + "\ns_cbranch_scc0 L_chk9\ns_mov_b32 s54, 1", cond=True)
        P.add(sloads(sWS, 'ls2', True))
        P("L_chk9:")
        P("s_cmp_eq_u32 s56, 1\ns_cbranch_scc0 L_no9\ns_waitcnt vmcnt(0)\ns_branch L_have9\nL_no9:")
        P(chk(9, 's53') + "\ns_cbranch_scc1 L_done9", cond=True)
        spin('9', 9, 's53')
        cloads([2], sWS, 'lc2b', True); P("s_waitcnt vmcnt(3)", cond=True)
        P("L_have9:")
        stamp(P, 10)
        P("s_cmp_eq_u32 s54, 1\ns_cbranch_scc1 L_haveS")
        spin('S', 9, 's52')
        P.add(sloads(sWS, 'ls3', True)); P("s_waitcnt vmcnt(0)", cond=True)
        P("L_haveS:")
        def fin(k):
            g_, s_, pk = G[k], SS[k], G[k] + 24
            for i in range(8): P(f"v_fma_f32 v{g_+i}, v{g_+i}, v{s_+i}, v{XU+8*k+i}")
            for d in range(4): P(f"v_cvt_pk_bf16_f32 v{pk+d}, v{g_+2*d}, v{g_+2*d+1}")
            P(f"ds_write_b64 v{vL2}, {vr(pk,2)} offset:{4096+1280*k}\nds_write_b64 v{vL2}, {vr(pk+2,2)} offset:{4096+1280*k+32}", tag=f'ow{k}')
            P(f"ds_read_b128 {vr(pk+4,4)}, v{vL3} offset:{4096+1280*k}", tag=f'or{k}')
        def ost(k): P(f"WAITL or{k}\nbuffer_store_dwordx4 {vr(G[k]+28,4)}, v{vXO}, s[72:75], s{60+k} offen{['', ' sc1', ' nt'][OPT['omod']]}")
        for k in range(3):
            for d in range(4): P(f"v_lshlrev_b32 v{SS[k]+2*d}, 16, v{RS[k]+d}\nv_and_b32 v{SS[k]+2*d+1}, s57, v{RS[k]+d}")
        fin(0); fin(1)
        P("s_waitcnt vmcnt(0)")
        for d in range(3): P.add(accum(G[2], ar(24 + 4 * d, 4)))
        ost(0); ost(1)
        unitT([2], False)
        fin(2); ost(2)
        stamp(P, 11)
    stamp_flush(P, 12)
    P("s_endpgm")
    P.add(slow)
    return P.l

def attn():
    P = Prog()
    P("s_endpgm")
    return P.l

def final():
    P = Prog()
    P("s_endpgm")
    return P.l

def finish(lst):
    lst = resolve_waits(ungroup(lst))
    lst, nfix = fix_hazards(lst, OPT['verbose'])
    errs = check_scoreboard(lst)
    for e in errs[:20]: print("; SCOREBOARD ERR", e, file=sys.stderr)
    assert not errs
    lst, mis, sz = align_pass(lst)
    print(f"; hazard nops inserted: {nfix}, instrs: {len(lst)}, misaligned {mis}, bytes {sz}", file=sys.stderr)
    return lst

def main():
    try:
        import gen_attn
    except ImportError:
        gen_attn = None
    P0 = Prog(); common_prologue(P0)
    f = finish(P0.l + ffn())[:]
    a = finish(P0.l + (gen_attn.attn(globals()) if gen_attn and OPT['attn'] else attn()))
    a = a[[i for i, x in enumerate(a) if x.text.startswith('s_cbranch_scc1 L_attn')][0] + 1:]
    k2 = finish(gen_attn.final(globals()) if gen_attn else final())
    out = []
    MK = NAME + "_kernel" if OPT['fuse'] else "main_kernel"
    if OPT['fuse']: out.append(f"; @launch grid=(256,1,1) block=(256,1,1) lds={LDS_BYTES}")
    else:
        out.append(f"; @launch kernel=main_kernel grid=(256,1,1) block=(256,1,1) lds={LDS_BYTES}")
        out.append(f"; @launch kernel=final_kernel grid=(576,1,1) block=(256,1,1) lds=0")
    out.append('.amdgcn_target "amdgcn-amd-amdhsa--gfx950"\n.text')
    out.append(f".globl {MK}\n.p2align 8\n.type {MK},@function\n{MK}:\nL_main_start:")
    out += [x.text for x in f]
    out.append(".p2align 6\nL_attn:")
    out += [x.text for x in a]
    out.append("L_exit:\ns_endpgm\nL_main_end:")
    if not OPT['fuse']:
        out.append(".globl final_kernel\n.p2align 8\n.type final_kernel,@function\nfinal_kernel:")
        out += [x.text for x in k2]
    out.append('.section .rodata,"a"')
    for nm, nv, ao in ((MK, 512, 256), ("final_kernel", 96, 96))[:1 if OPT['fuse'] else 2]:
        out.append(f".p2align 6\n.amdhsa_kernel {nm}\n  .amdhsa_next_free_vgpr {nv}\n  .amdhsa_next_free_sgpr 102\n  .amdhsa_accum_offset {ao}\n  .amdhsa_group_segment_fixed_size 0\n  .amdhsa_kernarg_size 72\n  .amdhsa_user_sgpr_count 2\n  .amdhsa_user_sgpr_kernarg_segment_ptr 1\n  .amdhsa_system_sgpr_workgroup_id_x 1\n  .amdhsa_float_denorm_mode_32 3\n.end_amdhsa_kernel")
    txt = "\n".join(out) + "\n"
    import subprocess, re as _re, tempfile, os
    d = tempfile.mkdtemp()
    open(d + "/a.s", "w").write(txt.replace("CODE_PF_MAX", "0x12345"))
    r = subprocess.run(["clang", "-x", "assembler", "-target", "amdgcn-amd-amdhsa", "-mcpu=gfx950", "-c", d + "/a.s", "-o", d + "/a.o"], capture_output=True, text=True)
    assert r.returncode == 0, r.stderr
    sy = subprocess.run(["llvm-readelf", "-s", d + "/a.o"], capture_output=True, text=True).stdout
    def sym(n): return int([l for l in sy.splitlines() if l.strip().endswith(" " + n)][0].split()[1], 16)
    size = sym("L_main_end") - sym("L_main_start")
    print(f"; main code bytes {size}, attn at {sym('L_attn')}", file=sys.stderr)
    print(txt.replace("CODE_PF_MAX", str(size - 1024)))

if __name__ == "__main__":
    main()
```

```python
import sys, math
from asmlib import *

OPT = dict(prot=2, snake=1, w64=0, d6=1, bbx=1024, omod=0, q3=80, q4=94, q5=118, lat0=26, lat1=22, e1=62, e2=81, fd0=17, fd1=9, hop1=0, hop0=1, fdel0=44, pfwo=1, ofl=36, opl=50, ofl1=55, pfh0=216, nb2=2, hsplit=2, dpre=3, pst=0, xlead=3, slp=4, rt=0, pfh=0, pchk=9, fdel=32, a3=8, a4=3, cin=22, sat=15*12+4,  forcefb=0, marks=0, wcost=16, fuse=1, stmod=1, dbgwg=64, nosilu=0, nodma=0, nobar=0, nost=0, pd1=7, pd2=3, stamp=0, ffn=1, attn=1, verbose=0, rot=1, pfw=0, pfcode=1)
for a in sys.argv[1:]:
    k, v = a.split('='); OPT[k] = int(v)

STMOD = ['', ' sc1', ' nt', ' sc0 sc1', ' sc1 nt'][OPT['stmod']]
NAME = "recurrent_scan__sliding_local_dilated__dense_activation_silu__prompt"
LOG2E = 1.4426950408889634
LN2 = 0.6931471805599453
import struct
def f2u(f): return struct.unpack('<I', struct.pack('<f', f))[0]
def hx(f): return "0x%08x" % f2u(f)

JS = 147456
BB = 13 * JS + OPT['bbx']
WS_FIN = BB
WS_HOP = BB + 4 * JS
WS_S = BB + 8 * JS
WS_O = BB + 9 * JS
WS_KV = BB + 10 * JS
WS_FLAG = BB + 12 * JS
HFOFF = 8192
WS_FB = 34 << 20
WS_STAMP = 80 << 20
WS_BYTES = 96 << 20
LDS_BYTES = 155648

sX, sWA, sWB, sWS, sDBG = 's[12:15]', 's[16:19]', 's[20:23]', 's[24:27]', 's[28:31]'
sM, sSL, sWV, sROT, sMEM = 's32', 's33', 's34', 's35', 's36'

def vr(a, n): return f"v[{a}:{a+n-1}]" if n > 1 else f"v{a}"
def ar(a, n): return f"a[{a}:{a+n-1}]" if n > 1 else f"a{a}"

stamp_n = [0]
def stamp(P, idx):
    if not OPT['stamp']: return
    if OPT['pst']:
        if idx < 100 and idx != 3: return
        idx = 9 if idx == 3 else idx - 100
    elif idx >= 100: return
    P(f"{'s_memrealtime' if OPT['rt'] else 's_memtime'} s[78:79]\ns_waitcnt lgkmcnt(0)\ns_mov_b32 s{80+idx}, s78")
def stamp_flush(P, n):
    if not OPT['stamp']: return
    P(f"s_memrealtime s[78:79]\ns_waitcnt lgkmcnt(0)\ns_mov_b32 s{80+15}, s78")
    P(f"s_lshl_b32 s76, s2, 2\ns_add_u32 s76, s76, {sWV}\ns_lshl_b32 s76, s76, 6\ns_add_u32 s76, s76, {WS_STAMP}\ns_mul_i32 s77, {sM}, {BB}\ns_sub_u32 s76, s76, s77")
    P("v_mov_b32 v1, 0")
    for i in range(4):
        for j in range(4): P(f"v_mov_b32 v{4+j}, s{80+4*i+j}")
        P(f"buffer_store_dwordx4 v[4:7], v1, {sWS}, s76 offen offset:{16*i}")
        P("s_nop 1")

def round_bf16(P, dst, src):
    P(f"v_cvt_pk_bf16_f32 {dst}, {src}, {src}\nv_and_b32 {dst}, 0xffff0000, {dst}")

def ln_stats(P, vsum, vsq, vnegm, vr_, tmp):
    P(f"v_mul_f32 {vsum}, {hx(1/576)}, {vsum}")
    P(f"v_mul_f32 {vsq}, {hx(1/576)}, {vsq}")
    P(f"v_fma_f32 {vsq}, -{vsum}, {vsum}, {vsq}")
    P(f"v_max_f32 {vsq}, 0, {vsq}")
    round_bf16(P, vnegm, vsum)
    P(f"v_xor_b32 {vnegm}, 0x80000000, {vnegm}")
    round_bf16(P, vsq, vsq)
    P(f"v_add_f32 {vsq}, {hx(1e-5)}, {vsq}")
    round_bf16(P, vsq, vsq)
    P(f"v_sqrt_f32 {vsq}, {vsq}")
    round_bf16(P, vsq, vsq)
    P(f"v_rcp_f32 {vr_}, {vsq}")

def sel_consts(P, vsel, t0, t1, t2):
    P(f"v_mov_b32 v{vsel}, 0\nv_mov_b32 v{vsel+1}, 0\nv_mov_b32 v{vsel+4}, 0\nv_mov_b32 v{vsel+5}, 0")
    P(f"v_and_b32 {t0}, 1, v0\nv_lshlrev_b32 {t0}, 4, {t0}\nv_mov_b32 {t1}, 0x3f80\nv_lshlrev_b32 {t0}, {t0}, {t1}")
    P(f"v_bfe_u32 {t1}, v0, 2, 2\nv_lshrrev_b32 {t2}, 4, v0")
    P(f"v_cmp_eq_u32 vcc, {t1}, {t2}\nv_cndmask_b32 {t0}, 0, {t0}, vcc")
    P(f"v_and_b32 {t1}, 2, v0\nv_cmp_eq_u32 vcc, 0, {t1}")
    P(f"v_cndmask_b32 v{vsel+2}, 0, {t0}, vcc\nv_cndmask_b32 v{vsel+3}, {t0}, v{vsel}, vcc")

def common_prologue(P):
    P("s_cmp_ge_u32 s2, 256\ns_cbranch_scc1 L_exit")
    P("s_load_dwordx4 s[4:7], s[0:1], 0\ns_load_dwordx2 s[8:9], s[0:1], 16\ns_load_dwordx4 s[40:43], s[0:1], 32\ns_load_dwordx4 s[44:47], s[0:1], 56")
    P(f"v_lshrrev_b32 v1, 6, v0\nv_lshlrev_b32 v46, 7, v0\nv_readfirstlane_b32 {sWV}, v1\nv_and_b32 v0, 63, v0")
    if OPT['stamp']: P("s_memrealtime s[78:79]\ns_memtime s[76:77]")
    if OPT['pfcode']:
        P("s_getpc_b64 s[48:49]\ns_bfe_u32 s58, s2, 0x20003\ns_lshl_b32 s58, s58, 15\nv_add_u32 v46, s58, v46")
        P("v_min_u32 v46, CODE_PF_MAX, v46\nglobal_load_dword v47, v46, s[48:49]", tag='dummy')
    if OPT['stamp']:
        for i in range(80, 96): P(f's_mov_b32 s{i}, 0')
    P("s_and_b32 s37, s2, 1\ns_lshl_b32 s37, s37, 3")
    P("s_bfe_u32 s38, s2, 0x20001")
    P(f"s_lshr_b32 s39, s2, 3\ns_and_b32 {sMEM}, s39, 7\ns_add_u32 {sM}, s37, {sMEM}")
    P(f"s_lshl_b32 s51, s38, 1\ns_add_u32 s51, s51, s37\ns_lshr_b32 s52, s39, 2\ns_add_u32 s51, s51, s52")
    P(f"s_lshl_b32 s52, s39, 1\ns_and_b32 s52, s52, 6\ns_add_u32 s52, s52, s51\ns_mul_i32 s53, s52, 57\ns_lshr_b32 s53, s53, 9\ns_mul_i32 s53, s53, 9\ns_sub_u32 s52, s52, s53")
    P(f"s_lshr_b32 {sROT}, s39, 3\ns_sub_u32 {sROT}, {sROT}, 1\ns_mul_i32 s50, {sROT}, 3\ns_cmp_lt_u32 s39, 8\ns_cselect_b32 s50, s52, s50\ns_cselect_b32 {sM}, s51, {sM}")
    if not OPT['rot']: P(f"s_mov_b32 s50, 0")
    P(f"s_lshl_b32 s53, {sM}, 7\ns_lshl_b32 s54, {sWV}, 5\ns_add_u32 s53, s53, s54\ns_mul_i32 s53, s53, 1152")
    P(f"v_lshrrev_b32 v2, 3, v0\nv_mul_u32_u24 v2, 2304, v2\nv_lshrrev_b32 v3, 4, v0\nv_and_b32 v44, 7, v0\nv_xor_b32 v3, v3, v44\nv_lshlrev_b32 v3, 4, v3")
    P(f"v_add_u32 v44, v2, v3\nv_add_u32 v44, s53, v44\nv_xor_b32 v45, 64, v44\nv_add_u32 v45, {16*1152-1024}, v45")
    P(f"s_lshl_b32 s55, s50, 7\ns_mul_i32 s54, {sWV}, 12288")
    P("s_waitcnt lgkmcnt(0)")
    if OPT['stamp']: P("s_mov_b32 s94, s78\ns_mov_b32 s80, s76")
    P(f"s_mov_b32 s12, s4\ns_mov_b32 s13, s5\ns_mov_b32 s14, {2048*576*2}\ns_mov_b32 s15, 0x20000")
    stamp(P, 101)
    P.add(xdma(0, 0)); P.add(xdma(0, 1)); P.add(xdma(0, 2))
    stamp(P, 102)
    P(f"s_mul_i32 s24, {sM}, {BB}\ns_add_u32 s24, s24, s46\ns_addc_u32 s25, s47, 0\ns_mov_b32 s26, {WS_BYTES}\ns_mov_b32 s27, 0x20000")
    P(f"s_mov_b32 s28, s44\ns_mov_b32 s29, s45\ns_mov_b32 s30, 256\ns_mov_b32 s31, 0x20000")
    P("s_cmp_lt_u32 s39, 8\ns_cbranch_scc1 L_attn")

def xdma(st, S):
    Q = Prog()
    Q(f"s_add_u32 m0, s54, {st*49152+S*4096}\ns_add_u32 s56, s55, 1152")
    Q(f"buffer_load_dwordx4 v44, {sX}, s55 offen lds\nbuffer_load_dwordx4 v45, {sX}, s55 offen offset:1024 lds", tag=f"x{3*st+S}")
    Q(f"s_add_u32 m0, m0, 2048\ns_add_u32 s55, s55, 128")
    Q(f"buffer_load_dwordx4 v44, {sX}, s56 offen lds\nbuffer_load_dwordx4 v45, {sX}, s56 offen offset:1024 lds", tag=f"x{3*st+S}")
    Q(f"s_cmp_eq_u32 s55, 1152\ns_cselect_b32 s55, 0, s55")
    return Q.l

def weave(main, extra, every):
    out = []; k = 0; cnt = 0
    for idx, ins in enumerate(main):
        out.append(ins); cnt += 1
        nxt = main[idx + 1] if idx + 1 < len(main) else None
        safe = nxt is None or ('scc' not in nxt.rd and 'm0' not in nxt.rd)
        if k < len(extra) and cnt >= every and safe:
            out += extra[k]; k += 1; cnt = 0
    for g in extra[k:]: out += g
    return out

def xphase(P, setup, frags, sums, sqs, dmas, nfirst=3):
    lead = OPT['xlead']
    late = [x for x in setup if x.kind == 'vmem']
    P.add([x for x in setup if x.kind != 'vmem'])
    for S in range(nfirst, lead + 1): P.add(xdma(S // 3, S % 3))
    dmas = dict(dmas); dmas[9] = dmas.get(9, []) + late
    stamp(P, 1); stamp(P, 103)
    def dots(S):
        L = []
        for (d, a, o, k) in frags[S]:
            for j in range(4): L += mk(f"v_dot2c_f32_bf16 v{sums[k][j%2]}, s57, v{d+j}\nv_dot2c_f32_bf16 v{sqs[k][j%2]}, v{d+j}, v{d+j}")
        return L
    for S in range(10):
        if S < 9:
            P(f"WAITV x{S}")
            if S in (0, 2, 5, 8): stamp(P, 104 + (0, 2, 5, 8).index(S))
            for n, (d, a, o, k) in enumerate(frags[S]): P(f"ds_read_b128 {vr(d,4)}, v{a} offset:{o}", tag=f"xr{S}")
        if S == 8: stamp(P, 2)
        if S >= 1:
            P(f"WAITL xr{S-1}")
            if S - 1 in (2, 5): P("s_barrier")
        extra = []
        if S + lead + 1 < 9: extra += dgroups(xdma((S + lead + 1) // 3, (S + lead + 1) % 3))
        if S in dmas: extra += dgroups(dmas[S])
        body = dots(S - 1) if S >= 1 else []
        P.add(weave(body, extra, max(1, len(body) // (len(extra) + 1))))
    stamp(P, 108)

RING = 24576; NSLOT = 5; HX = RING * NSLOT
vA1 = [[16, 17, 18], [19, 20, 21]]; vA2 = [[22, 23, 24], [25, 26, 27]]
vD1 = [28, 29, 30, 31]; vD2 = [32, 33, 34, 35]
vHW, vHR, vST = 36, 37, 38
ACC1 = 48; XR = 112
AF = 192

def flag_setup(P, vFLW, sj, tmpv, hop=False):
    P(f"s_lshl_b32 s66, {sWV}, 11\ns_lshl_b32 s67, {sj}, 7\ns_add_u32 s66, s66, s67\ns_add_u32 s66, s66, {WS_FLAG}")
    P(f"v_lshrrev_b32 {tmpv}, 5, v0\nv_lshlrev_b32 {tmpv}, 30, {tmpv}\nv_lshl_add_u32 {tmpv}, v0, 2, {tmpv}\nv_add_u32 v{vFLW}, s66, {tmpv}\nv_mov_b32 {tmpv}, 0")
    P(f"buffer_store_dword {tmpv}, v{vFLW}, {sWS}, 0 offen sc1", tag='fz')
    if hop: P(f"s_mov_b32 s37, {HFOFF}\nbuffer_store_dword {tmpv}, v{vFLW}, {sWS}, s37 offen sc1", tag='fz')
def handshake(sj, va, vb, xcc=False):
    Q = Prog()
    Q(f"s_lshl_b32 s66, {sM}, 2\ns_and_b32 s67, {sj}, 3\ns_add_u32 s66, s66, s67\ns_lshl_b32 s66, s66, 2\ns_lshl_b32 s67, {sWV}, 8\ns_add_u32 s66, s66, s67")
    Q(f"v_lshlrev_b32 {va}, 8, v0\nv_add_u32 {va}, s66, {va}")
    Q(f"s_getreg_b32 s66, hwreg(HW_REG_XCC_ID)\ns_and_b32 s66, s66, 15\ns_and_b32 s67, {sj}, 12\ns_add_u32 s67, s67, 12\ns_lshl_b32 s66, s66, s67\ns_add_u32 s66, s66, 1\nv_mov_b32 {vb}, s66")
    Q(f"buffer_atomic_add {vb}, {va}, {sDBG}, 0 offen sc1", tag='hsk', cost=8)
    return Q.l

def sel32(P, SEL):
    P("v_and_b32 v2, 1, v0\nv_lshlrev_b32 v2, 4, v2\nv_mov_b32 v3, 0x3f80\nv_lshlrev_b32 v2, v2, v3")
    P("v_bfe_u32 v3, v0, 2, 1\nv_lshlrev_b32 v3, 1, v3\nv_lshrrev_b32 v4, 4, v0\nv_cmp_eq_u32 vcc, v3, v4\nv_cndmask_b32 v2, 0, v2, vcc")
    P("v_bfe_u32 v3, v0, 3, 1\nv_lshlrev_b32 v3, 1, v3\nv_bfe_u32 v4, v0, 1, 1\nv_add_u32 v3, v3, v4")
    for j in range(4): P(f"v_cmp_eq_u32 vcc, {j}, v3\nv_cndmask_b32 v{SEL+j}, 0, v2, vcc")

def dgroups(lst):
    G = []; cur = []
    for x in lst:
        cur.append(x)
        if x.kind == 'vmem': G.append(cur); cur = []
    if cur: G[-1] += cur
    return G

def flat(groups): return [x for g in groups for x in g]

def ffn():
    P = Prog()
    P(f"s_mov_b32 s50, {sROT}" if OPT['rot'] else "s_mov_b32 s50, 0")
    P(f"s_add_u32 s51, s50, 1\ns_cmp_ge_u32 s51, 3\ns_cselect_b32 s51, 0, s51\ns_add_u32 s52, s51, 1\ns_cmp_ge_u32 s52, 3\ns_cselect_b32 s52, 0, s52")
    P(f"s_mul_i32 {sSL}, s38, 3\ns_add_u32 {sSL}, {sSL}, {sROT}")
    P(f"s_mov_b32 s16, s40\ns_mov_b32 s17, s41\ns_mov_b32 s18, {576*4608*2}\ns_mov_b32 s19, 0x20000")
    P(f"s_mov_b32 s20, s42\ns_mov_b32 s21, s43\ns_mov_b32 s22, {576*4608*2}\ns_mov_b32 s23, 0x20000")
    P(f"s_mul_i32 s59, {sSL}, 768")
    P(f"s_mul_i32 s63, {sSL}, {384*1152}\ns_mul_i32 s64, {sWV}, 6144")
    if OPT['fuse']: P(f"s_lshl_b32 {sSL}, {sROT}, 2\ns_add_u32 {sSL}, {sSL}, s38")
    P("s_load_dwordx2 s[72:73], s[0:1], 48")
    vFLW = 39
    if OPT['fuse']:
        flag_setup(P, vFLW, sSL, 'v14', True)
        hsk = handshake(sSL, 'v10', 'v11', True); P.add(hsk[:-1])
    def pf_w(which):
        Q = Prog()
        if which == 1:
            Q(f"s_mul_i32 s66, {sMEM}, {72*9216}\ns_add_u32 s66, s66, s59\ns_lshl_b32 s67, {sWV}, 6\ns_mov_b32 s68, {-(-(1<<32)//6)}")
            for i in range(2):
                Q(f"v_add_u32 v10, s67, v0")
                if i: Q(f"v_add_u32 v10, 256, v10\nv_min_u32 v10, 431, v10")
                Q(f"v_mul_hi_u32 v11, v10, s68\nv_lshlrev_b32 v10, 7, v10\nv_mul_u32_u24 v11, {9216-768}, v11\nv_add_u32 v10, v10, v11")
                Q(f"buffer_load_dword v47, v10, {sWA}, s66 offen", tag='dummy', cost=8)
        else:
            nb = OPT['nb2']; n = 108 // nb
            Q(f"s_lshl_b32 s71, {sMEM}, 2\ns_add_u32 s71, s71, {sWV}\ns_mul_i32 s71, s71, {108*128}\ns_add_u32 s71, s71, s63")
            Q(f"v_min_u32 v44, {n-1}, v0\nv_lshlrev_b32 v44, 7, v44")
            for i in range(nb):
                Q(f"buffer_load_dword v47, v44, {sWB}, s71 offen", tag='dummy', cost=8)
                if i < nb - 1: Q(f"s_add_u32 s71, s71, {n*128}")
        return Q.l
    P(f"v_lshrrev_b32 v2, 3, v0\nv_and_b32 v3, 7, v0")
    P(f"s_mul_i32 s58, {sWV}, 48\nv_add_u32 v4, s58, v2")
    P(f"v_bfe_u32 v5, v0, 4, 1\nv_lshlrev_b32 v5, 2, v5\nv_xor_b32 v5, v5, v3\nv_lshlrev_b32 v5, 4, v5")
    P(f"v_mul_u32_u24 v6, 9216, v4\nv_add_u32 v{vD1[0]}, v6, v5")
    for i in range(1, 4): P(f"v_add_u32 v{vD1[i]}, {i*(8*9216-1024)}, v{vD1[0]}")
    P(f"v_bfe_u32 v5, v0, 4, 2\nv_lshlrev_b32 v5, 1, v5\nv_xor_b32 v5, v5, v3\nv_lshlrev_b32 v5, 4, v5")
    P(f"v_mul_u32_u24 v6, 1152, v4\nv_add_u32 v{vD2[0]}, v6, v5")
    for i in range(1, 4): P(f"v_add_u32 v{vD2[i]}, {i*(8*1152-1024)}, v{vD2[0]}")
    P(f"s_and_b32 s35, {sMEM}, {1 if OPT['prot'] else 0}\ns_mul_i32 s39, s35, 384\ns_add_u32 s59, s59, s39\ns_lshl_b32 s39, s39, 1")
    for st in range(3): P(f"s_mul_i32 s{60+st}, s{50+st}, {192*9216}\ns_add_u32 s{60+st}, s{60+st}, s59")

    PA, PS = 40, 3
    g2 = [(0,0),(1,0),(2,0),(0,1),(1,1),(2,1)] + [(p,k) for p in range(3,9) for k in range(2)]
    def dma(s):
        slot = (s % NSLOT) * RING
        G = []
        if s < 18:
            p, st = s // 3, s % 3
            if p == 3: G += mk(f"s_sub_u32 s{60+st}, s{60+st}, s39")
            srd, vD, first, big = sWA, vD1, f"s_add_u32 s65, s{60+st}, {p*128}", 32 * 9216
        else:
            p, k = g2[s - 18]
            srd, vD, first, big = sWB, vD2, f"s_add_u32 s65, s{PA+p}, s{k}", 32 * 1152
        t = f"d{s}"
        G += mk(f"s_add_u32 m0, s64, {slot}\n{first}")
        for i in range(4): G += mk(f"buffer_load_dwordx4 v{vD[i]}, {srd}, s65 offen offset:{1024*i} lds", tag=t, cost=8)
        if OPT['d6'] and 6 <= s < 18:
            G += mk(f"s_add_u32 m0, s64, {slot+4096}")
            for i in range(2): G += mk(f"buffer_load_dwordx4 v{42+i}, {srd}, s65 offen offset:{1024*i} lds", tag=t, cost=8)
        else:
            G += mk(f"s_add_u32 m0, s64, {slot+4096}\ns_add_u32 s65, s65, {big}")
            for i in range(2): G += mk(f"buffer_load_dwordx4 v{vD[i]}, {srd}, s65 offen offset:{1024*i} lds", tag=t, cost=8)
        return G
    P(f"v_lshrrev_b32 v2, 5, v0\nv_lshlrev_b32 v2, 12, v2\nv_bfe_u32 v3, v0, 2, 2\nv_lshlrev_b32 v3, 7, v3\nv_add_u32 v2, v2, v3")
    P(f"v_bfe_u32 v3, v0, 4, 1\nv_lshlrev_b32 v3, 5, v3\nv_add_u32 v2, v2, v3\nv_and_b32 v3, 3, v0\nv_lshlrev_b32 v3, 3, v3\nv_add_u32 v2, v2, v3")
    P(f"v_bfe_u32 v3, v0, 3, 1\nv_lshlrev_b32 v3, 6, v3\nv_add_u32 v{vA1[0][0]}, v2, v3\nv_xor_b32 v{vA1[1][0]}, 64, v{vA1[0][0]}")
    P(f"v_lshrrev_b32 v2, 2, v0\nv_lshlrev_b32 v2, 7, v2\nv_and_b32 v3, 3, v0\nv_lshlrev_b32 v3, 3, v3\nv_add_u32 v2, v2, v3")
    P(f"s_and_b32 s69, {sWV}, 1\ns_lshl_b32 s69, s69, 1\nv_bfe_u32 v3, v0, 3, 2\nv_xor_b32 v3, s69, v3\nv_lshlrev_b32 v3, 5, v3")
    P(f"v_add_u32 v{vA2[0][0]}, v2, v3\nv_xor_b32 v{vA2[1][0]}, 32, v{vA2[0][0]}")
    for vA in (vA1, vA2):
        for u in range(2):
            for b in (1, 2): P(f"v_add_u32 v{vA[u][b]}, {b*2*RING}, v{vA[u][0]}")
    P(f"v_bfe_u32 v2, v0, 4, 1\nv_lshlrev_b32 v2, 10, v2\nv_lshrrev_b32 v3, 5, v0\nv_lshlrev_b32 v3, 8, v3\nv_add_u32 v2, v2, v3")
    P(f"v_and_b32 v3, 15, v0\nv_lshlrev_b32 v3, 4, v3\nv_add_u32 v2, v2, v3\ns_lshl_b32 s69, {sWV}, 11\ns_add_u32 s69, s69, {HX}\nv_add_u32 v{vHW}, s69, v2")
    if OPT['fuse']: P(f"s_and_b32 s69, {sSL}, 3\ns_lshl_b32 s69, s69, 10\nv_xor_b32 v{vHW}, s69, v{vHW}")
    P(f"v_lshlrev_b32 v{vST}, 4, v0\ns_lshr_b32 s69, {sWV}, 1\ns_lshl_b32 s69, s69, 12\ns_add_u32 s69, s69, {HX}\nv_add_u32 v{vHR}, s69, v{vST}")
    P(f"s_lshl_b32 s70, s38, 1\ns_lshr_b32 s69, {sWV}, 1\ns_add_u32 s70, s70, s69")
    P(f"s_mul_i32 s70, s70, 18\ns_and_b32 s69, {sWV}, 1\ns_add_u32 s70, s70, s69\ns_lshl_b32 s70, s70, 12\ns_add_u32 s70, s70, {WS_FIN}")
    P(f"s_lshr_b32 s66, {sSL}, 2\ns_mul_i32 s67, {sM}, 43\ns_lshr_b32 s67, s67, 7")
    P(f"s_mul_i32 s68, s67, 3\ns_sub_u32 s68, {sM}, s68\ns_add_u32 s68, s68, s66\ns_add_u32 s68, s68, 1")
    P(f"s_cmp_ge_u32 s68, 3\ns_cselect_b32 s69, 3, 0\ns_sub_u32 s68, s68, s69")
    P(f"s_cmp_ge_u32 s67, 3\ns_cselect_b32 s69, 3, 0\ns_sub_u32 s67, s67, s69")
    if not OPT['fuse']: P("s_mov_b32 s67, 0\ns_mov_b32 s68, 0")
    for ph in range(3):
        for k in range(3):
            p = 3 * ph + k
            P(f"s_mul_i32 s69, s68, 3\ns_add_u32 s69, s69, s67\ns_lshl_b32 s{PA+p}, s69, 7\ns_add_u32 s{PA+p}, s{PA+p}, s63\ns_lshl_b32 s{PS+p}, s69, 13\ns_add_u32 s{PS+p}, s{PS+p}, s70")
            P("s_add_u32 s67, s67, 1\ns_cmp_eq_u32 s67, 3\ns_cselect_b32 s67, 0, s67")
        if ph < 2: P("s_add_u32 s68, s68, 1\ns_cmp_eq_u32 s68, 3\ns_cselect_b32 s68, 0, s68")
    P(f"s_and_b32 s67, {sSL}, 3")
    for d in range(4): P(f"s_xor_b32 s{96+d}, s67, {d}\ns_mul_i32 s{96+d}, s{96+d}, {JS}\ns_add_u32 s{96+d}, s{96+d}, {1024*d}")
    P(f"s_and_b32 s68, {sWV}, 2\ns_lshl_b32 s68, s68, 1\ns_add_u32 s50, s67, s68\ns_mul_i32 s50, s50, 18\ns_and_b32 s68, {sWV}, 1\ns_add_u32 s50, s50, s68\ns_lshl_b32 s50, s50, 10\ns_add_u32 s50, s50, {WS_S}")
    P(f"s_mul_i32 s101, s66, {4*JS}\ns_add_u32 s101, s101, {WS_FB - WS_FIN}")
    P(f"s_add_u32 s68, s66, 1\ns_cmp_ge_u32 s68, 3\ns_cselect_b32 s68, 0, s68\ns_lshl_b32 s69, s68, 2\ns_add_u32 s51, s69, s67\ns_mul_i32 s100, s68, {4*JS}\ns_add_u32 s100, s100, {WS_FB - WS_FIN}")
    P(f"s_mul_i32 s49, s67, {-JS}\ns_lshl_b32 s68, s66, 2\ns_lshl_b32 s53, 15, s68\ns_lshl_b32 s68, 1, {sSL}\ns_andn2_b32 s53, s53, s68\ns_mov_b32 s52, 0xf000")
    P(f"v_and_b32 v2, 31, v0\nv_lshlrev_b32 v2, 7, v2\nv_add_u32 v2, s54, v2\nv_bfe_u32 v3, v0, 1, 3\nv_lshrrev_b32 v4, 5, v0\nv_lshlrev_b32 v4, 2, v4\nv_xor_b32 v3, v3, v4\nv_lshlrev_b32 v3, 4, v3")
    P(f"v_add_u32 v80, v2, v3\nv_xor_b32 v81, 16, v80\nv_xor_b32 v82, 32, v80\nv_xor_b32 v83, 48, v80")
    for j in range(4): P(f"v_add_u32 v{84+j}, 98304, v{80+j}")
    SEL = 40
    sel32(P, SEL)
    P("v_mov_b32 v8, 0\nv_mov_b32 v9, 0\nv_mov_b32 v12, 0\nv_mov_b32 v13, 0\ns_mov_b32 s57, 0x3f803f80")
    P(f"s_waitcnt lgkmcnt(0)\ns_mul_i32 s0, s35, {192*1152}\ns_sub_u32 s1, {192*1152}, s0\ns_mov_b32 s74, {2048*576*2}\ns_mov_b32 s75, 0x20000")
    setup = P.l; P.l = []
    fr = [[(XR + 4 * (4 * S + f), (80 if S < 6 else 84) + f, ((S // 3) % 2) * 49152 + (S % 3) * 4096, 0) for f in range(4)] for S in range(9)]
    d0, d1, d2 = dma(0), dma(1), dma(2)
    xphase(P, setup, fr, [[8, 9]], [[12, 13]], {5: d0[:6], 6: d0[6:], 7: d1[:6], 8: d1[6:] + (d2[:6] if OPT['dpre'] == 3 else []), 9: d2[6:] if OPT['dpre'] == 3 else []})
    P("v_add_f32 v8, v8, v9\nv_add_f32 v12, v12, v13\nv_mov_b32 v9, v8\nv_mov_b32 v13, v12\nv_permlane32_swap_b32 v8, v9\nv_permlane32_swap_b32 v12, v13\nv_add_f32 v8, v8, v9\nv_add_f32 v12, v12, v13")
    def um(F): return mk(f"v_mfma_f32_32x32x16_bf16 {vr(ACC1+32+16*(F%2),16)}, {vr(SEL,4)}, {vr(XR+4*F,4)}, 0")
    def nv(F):
        d = ACC1 + 32 + 16 * (F % 2); x = XR + 4 * F
        o = []
        for j in range(8): o += mk(f"v_fma_f32 v{d+j}, v{d+j}, v2, v3")
        for j in range(4): o += mk(f"v_cvt_pk_bf16_f32 v{x+j}, v{d+2*j}, v{d+2*j+1}")
        return o
    P.add(um(0)); P.add(um(1))
    ln_stats(P, 'v8', 'v12', 'v4', 'v2', 'v3')
    P(f"v_mul_f32 v2, {hx(LOG2E)}, v2\nv_mul_f32 v3, v4, v2")

    uses = []
    for p in range(6):
        for st in range(3):
            s = 3 * p + st; slot = s % NSLOT
            for S in range(3):
                for ss in range(4):
                    F = st * 12 + S * 4 + ss
                    for u in range(2):
                        n = len(uses); af = AF + 4 * (n % 16)
                        off = (slot % 2) * RING + (64 * S + 8 * ss) * 128
                        va = vA1[u][slot // 2]
                        rd = mk(f"ds_read_b64_tr_b16 {ar(af,2)}, v{va} offset:{off}\nds_read_b64_tr_b16 {ar(af+2,2)}, v{va} offset:{off+512}", tag=f"r{n}")
                        acc = vr(ACC1 + 32 * (p % 2) + 16 * u, 16)
                        mf = mk(f"v_mfma_f32_32x32x16_bf16 {acc}, {ar(af,4)}, {vr(XR+4*F,4)}, {'0' if F == 0 else acc}")
                        uses.append((s, rd, mf))
    N1 = len(uses)
    ACC2 = XR; STG = XR + 128
    for si, (p, k) in enumerate(g2):
        s = 18 + si; slot = s % NSLOT
        for kk in range(6):
            ks = 6 * k + kk
            for u in range(2):
                n = len(uses); af = AF + 4 * (n % 16)
                off = (slot % 2) * RING + 32 * kk * 128
                va = vA2[u][slot // 2]
                rd = mk(f"ds_read_b64_tr_b16 {ar(af,2)}, v{va} offset:{off}\nds_read_b64_tr_b16 {ar(af+2,2)}, v{va} offset:{off+2048}", tag=f"r{n}")
                mf = []
                for j in (range(4) if not (OPT['snake'] and u) else range(3, -1, -1)):
                    acc = vr(ACC2 + 32 * (p % 4) + 8 * j + 4 * u, 4)
                    mf += mk(f"v_mfma_f32_16x16x32_bf16 {acc}, {ar(af,4)}, {ar(16*ks+4*j,4)}, {'0' if ks == 0 else acc}")
                uses.append((s, rd, mf))
    NU = len(uses)
    PD1, PD2 = OPT['pd1'], OPT['pd2']
    rd_at = {}
    for n in range(NU):
        if n < N1: g = n - PD1
        else:
            g = n - PD2
            if g < N1: g = N1 - 1 - 2 * (N1 - 1 - g)
        rd_at.setdefault(g, []).append(n)
    bar_at = {}
    for g in sorted(rd_at):
        for n in rd_at[g]:
            s = uses[n][0]
            if s not in bar_at: bar_at[s] = g
    extra_lw = {}
    def hw_tag(ks): return f"hw{ks}"
    def rstage(ks):
        p = ks // 2
        if p <= 3: return 3 * (p + 2) + 1
        if p == 4: return 19
        return 21
    for ks in range(1, 12, 2): extra_lw[rstage(ks)] = hw_tag(ks)
    def barrier(s):
        if s in extra_lw: return mk(f"WAITVL d{s}, {extra_lw[s]}\ns_barrier")
        return mk(f"WAITV d{s}\ns_barrier")
    P.add(barrier(0))
    for g in sorted(rd_at):
        if g < 0:
            for n in rd_at[g]: P.add(uses[n][1])
    P.add(nv(0))
    P("WAITL r3")
    stamp(P, 3)
    S16 = 16
    def ustart(p): return N1 + 12 * (6 + 2 * (p - 3))
    QP = {3: OPT['q3'], 4: OPT['q4'], 5: OPT['q5'], 6: 168 - OPT['lat1'], 7: 192 - OPT['lat1'], 8: 216 - OPT['lat1']}
    AP = {p: max(12 * (8 + 2 * (p - 3)), QP[p] + (OPT['lat0'] if p < 6 else OPT['lat1'])) for p in range(3, 9)}
    nacc = {N1 + AP[p]: p for p in range(3, 8)} if OPT['fuse'] else {}
    gacc = {}
    def HB(p): return 48 + 16 * (p % 2)
    def accum(dst, src, first=False):
        return mk(f"v_mfma_f32_16x16x32_bf16 {vr(dst,4)}, {vr(S16+2,4)}, {src}, {'0' if first else vr(dst,4)}\nv_mfma_f32_16x16x32_bf16 {vr(dst+4,4)}, {vr(S16,4)}, {src}, {'0' if first else vr(dst+4,4)}")
    def hopacc(p):
        L = []
        for j in range(4): L += accum(ACC2 + 32 * (p % 4) + 8 * j, vr(HB(p) + 4 * j, 4))
        return L[0::2] + L[1::2]
    SC = Sched()
    gi = {}
    gu = {}
    for n in range(NU):
        mf = uses[n][2]
        if n in nacc:
            SC.tail[-1] += mk(f"WAITV hl{nacc[n]}")
            for m_ in hopacc(nacc[n]): gacc[nacc[n]] = SC.gap([m_], 16)
        if n < 72 and n % 2 == 0 and n // 2 + 2 < 36:
            gu[n // 2 + 2] = SC.gap(um(n // 2 + 2), 32)
        bar = []
        for s, g in bar_at.items():
            if g == n: bar = barrier(s)
        rds = []
        for nn in rd_at.get(n, []): rds += uses[nn][1]
        if n < N1:
            g = SC.gap(mf, 32); gi[n] = g
            SC.mand[g] += bar + rds
            if n % 4 == 3 and n + 1 < N1: SC.tail[g] += mk(f"WAITL r{n+4}")
            if n == N1 - 1: SC.tail[g] += mk(f"WAITL r{n+2}")
        else:
            gs = [SC.gap([m], 16) for m in mf]; gi[n] = gs[0]
            if bar:
                SC.mand[gs[0]] += bar
                for i, t in enumerate(rds): SC.mand[gs[1 + i]].append(t)
            else:
                for i, t in enumerate(rds): SC.mand[gs[2 * i]].append(t)
            if (n - N1) % 2 == 1 and n + 1 < NU: SC.tail[gs[3]] += mk(f"WAITL r{n+2}")
    gi[NU] = len(SC.head)

    def silu(ks):
        p, u = ks // 2, ks % 2
        a = ACC1 + 32 * (p % 2) + 16 * u
        F = []
        T = [1, 2, 3, 4, 5, 6, 7, 46]
        stg = 8
        def E(q, j): return mk(f"v_exp_f32_e64 v{T[4*(q%2)+j]}, -v{a+4*q+j}")
        def Ad(q, j): return mk(f"v_add_f32 v{T[4*(q%2)+j]}, 1.0, v{T[4*(q%2)+j]}")
        def R(q, j): return mk(f"v_rcp_f32 v{T[4*(q%2)+j]}, v{T[4*(q%2)+j]}")
        def M(q, j): return mk(f"v_mul_f32 v{T[4*(q%2)+j]}, v{a+4*q+j}, v{T[4*(q%2)+j]}")
        def C(q):
            d = stg + 4 * (q % 2) + 2 * (q // 2); t = T[4*(q%2):4*(q%2)+4]
            o = mk(f"v_cvt_pk_bf16_f32 v{d}, v{t[0]}, v{t[1]}\nv_cvt_pk_bf16_f32 v{d+1}, v{t[2]}, v{t[3]}")
            if OPT['w64']: o += mk(f"ds_write_b64 v{vHW}, {vr(d,2)} offset:{(ks%4)*8192+512*(q%2)+8*(q//2)}", tag=hw_tag(ks), cost=OPT['w64'])
            elif q >= 2: o += mk(f"ds_write_b128 v{vHW}, {vr(stg+4*(q%2),4)} offset:{(ks%4)*8192+512*(q%2)}", tag=hw_tag(ks), cost=OPT['wcost'])
            return o
        for q in range(4):
            F += E(q, 0) + E(q, 1)
            F += E(q, 2) + Ad(q, 0) + Ad(q, 1)
            F += E(q, 3) + Ad(q, 2)
            F += R(q, 0) + Ad(q, 3)
            F += R(q, 1) + M(q, 0)
            F += R(q, 2) + M(q, 1)
            F += R(q, 3) + M(q, 2)
            c = C(q)
            F += [c[0]] + M(q, 3) + c[1:]
        return F
    def hread(ks):
        return flat([mk(f"ds_read_b128 {ar(16*ks+4*j,4)}, v{vHR} offset:{(ks%4)*8192+1024*j}", tag=f"hr{ks}") for j in range(4)])
    def epi(p):
        a = ACC2 + 32 * (p % 4)
        F = []
        for j in range(4):
            if OPT['fuse'] and p >= 6 and j == 0: continue
            for u in range(2):
                for h in range(2): F += mk(f"v_cvt_pk_bf16_f32 v{STG+4*j+2*u+h}, v{a+8*j+4*u+2*h}, v{a+8*j+4*u+2*h+1}")
            F += mk(f"buffer_store_dwordx4 {vr(STG+4*j,4)}, v{vST}, {sWS}, s{PS+p} offen offset:{1024*j}{STMOD if (p >= 6 or (p < 3 and OPT['hop0']) or OPT['hop1'] or not OPT['fuse']) else ''}", tag=f'st{p}', cost=8)
        return F

    for s in range(0, 33):
        g0 = gi[bar_at[s]] + 1 if bar_at[s] >= 0 else 0
        g1 = gi[bar_at[s + 1]]
        SC.place((dma(2) if (s == 0 and OPT['dpre'] == 2) else []) + dma(s + 3), g0, g1, 'spread', f'dma{s+3}')
    for ks in range(12):
        g0 = gi[bar_at[rstage(ks)]] + 1 + (ks % 2) * 8
        SC.place(hread(ks), g0, g0 + 8, 'spread', f'hr{ks}')
    if OPT['fuse']:
        SC.place(hsk[-1:] + mk(f"v_add_u32 v42, {32*9216}, v{vD1[0]}\nv_add_u32 v43, {32*9216}, v{vD1[1]}"), gi[68], gi[74], 'asap', 'hsk')
        SC.place(mk(f"buffer_load_dword v47, v{vFLW}, {sWS}, s37 offen sc1", tag='dummy', cost=8), gi[205], gi[215], 'asap', 'pfflag')
        SC.place(mk(f"s_lshl_b32 s66, {sM}, 4\nv_and_b32 v40, 3, v0\nv_lshl_add_u32 v40, v40, 2, s66") + mk(f"buffer_load_dword v41, v40, {sDBG}, 0 offen sc1", tag='hc', cost=8), gi[426], gi[N1], 'asap', 'hc')
    if OPT['pfw'] & 1: SC.place(pf_w(1), 20, 70, 'spread', 'pf1')
    if OPT['pfw'] & 2: SC.place(pf_w(2), gi[90], gi[400], 'spread', 'pf2')
    for F in range(1, 36):
        g0 = gu.get(F + 1, gi[2 * (F - 1)]); g1 = gi[2 * (F - 1) + 1] + 1
        SC.place(nv(F), g0, g1, 'asap', f'nv{F}')
    for p in range(5):
        b = 72 * (p + 1)
        SC.place(silu(2 * p) + silu(2 * p + 1), gi[b + 2], gi[b + 72], 'asap', f'silu{p}')
    SC.place(silu(10) + silu(11), gi[N1] + 6, gi[bar_at[21]] - 2, 'asap', 'silu5')
    last_stage = {}; gepi = {}
    for si, (p, k) in enumerate(g2):
        if k == 1: last_stage[p] = si
    for p in range(8):
        g0 = gi[N1 + 12 * (last_stage[p] + 1)] + 5
        if p in gacc: g0 = gacc[p] + 5
        if OPT['fuse'] and p in (1, 2): g0 = gi[N1 + OPT['e%d' % p]]
        gepi[p] = SC.place(epi(p), g0, g0 + (42 if not OPT['fuse'] else 30), 'spread' if not OPT['fuse'] else 'asap', f'epi{p}')[-1]
    slow = []
    def gs(si, off=0): return gi[N1 + 12 * si] + off
    if OPT['fuse']:
        vFR, vFV, vXO, vC = 28, 29, 30, 31
        def site(name, load, tag, chk, g0, g1):
            L = mk(f"WAITV {tag}") + mk(chk) + mk(f"s_cbranch_scc0 L_slow{name}\nL_back{name}:")
            head, tailp = L[:-4], L[-4:]
            pos = SC.place(head, g0, g1, 'asap', name)
            SC.fill[pos[-1] + 1] += tailp
            slow.extend(mk(f"L_slow{name}:\ns_mov_b32 s68, 0\nL_spin{name}:\n{load}\ns_waitcnt vmcnt(0)\n{chk}\ns_cbranch_scc1 L_back{name}\ns_sleep 1\ns_add_u32 s68, s68, 1\ns_cmp_lt_u32 s68, 0x80000\ns_cbranch_scc1 L_spin{name}\ns_branch L_back{name}", cond=True))
            return pos[-1] + 2
        hload = f"buffer_load_dword v41, v40, {sDBG}, 0 offen sc1"
        g = site('H', hload, 'hc', f"v_and_b32 v42, 0xff, v41\nv_cmp_le_u32 vcc, 4, v42\ns_and_b32 s66, vcc_lo, 15\ns_cmp_eq_u32 s66, 15", gi[bar_at[21]], gi[bar_at[21]] + 16)
        MD = mk(f"v_readlane_b32 s66, v41, s38\ns_lshr_b32 s67, s66, 4\ns_xor_b32 s66, s66, s67")
        pos = SC.place(MD, g, g + 12, 'asap', 'mode')
        fb = "s_or_b32 s66, s66, 0x1000\n" if OPT['forcefb'] else ""
        SC.fill[pos[-1] + 1] += mk(f"{fb}s_and_b32 s66, s66, 0xff000\ns_cselect_b32 s58, 0, 1\n{'s_cmp_eq_u32 0, 0' if OPT['hop1'] else ''}\ns_cselect_b32 s100, s100, {4*JS}\ns_cselect_b32 s101, s101, {4*JS}\ns_sub_u32 s59, s100, s101")
        gfix = SC.place(mk("\n".join(f"s_add_u32 s{PS+p}, s{PS+p}, s101" for p in range(6))), pos[-1] + 2, gs(4), 'asap', 'psfix')[-1]
        SQ = Prog()
        SQ(f"s_lshl_b32 s66, {sM}, 7\ns_and_b32 s67, {sWV}, 2\ns_lshl_b32 s67, s67, 5\ns_add_u32 s66, s66, s67\ns_and_b32 s67, {sSL}, 2\ns_lshl_b32 s67, s67, 4\ns_add_u32 s66, s66, s67\ns_and_b32 s67, {sSL}, 1\ns_add_u32 s66, s66, s67")
        SQ(f"v_lshrrev_b32 v40, 2, v0\nv_lshlrev_b32 v40, 1, v40\nv_add_u32 v40, s66, v40\nv_mul_u32_u24 v40, 1152, v40\nv_and_b32 v41, 3, v0\nv_lshlrev_b32 v41, 4, v41\ns_and_b32 s67, {sWV}, 1\ns_lshl_b32 s67, s67, 6\nv_add3_u32 v{vXO}, v40, v41, s67")
        XV = 92; vL1, vL2, vL3 = 1, 2, 3
        SQ(f"s_lshl_b32 s36, {sWV}, 13\ns_add_u32 s36, s36, {HX}")
        SQ(f"v_and_b32 v40, 15, v0\nv_lshrrev_b32 v41, 4, v0\nv_lshlrev_b32 v41, 3, v41\nv_add_u32 v41, s36, v41\nv_lshl_add_u32 v{vL1}, v40, 6, v41\nv_mul_u32_u24 v40, 80, v40\nv_add_u32 v{vL2}, v40, v41")
        SQ(f"v_lshrrev_b32 v40, 2, v0\nv_mul_u32_u24 v40, 80, v40\nv_and_b32 v41, 3, v0\nv_lshlrev_b32 v41, 4, v41\nv_add3_u32 v{vL3}, v40, v41, s36")
        for k in range(3): SQ(f"s_sub_u32 s{60+k}, s{PA+6+k}, s63")
        SQ(f"s_lshl_b32 s67, {sWV}, 11\ns_and_b32 s66, {sWV}, 2\ns_bfe_u32 s68, {sSL}, 0x10001\ns_add_u32 s66, s66, s68\ns_lshl_b32 s66, s66, 11")
        SQ(f"s_lshl_b32 s51, s51, 7\ns_add_u32 s51, s51, s67\ns_add_u32 s51, s51, {WS_FLAG + HFOFF}\nv_mov_b32 v43, s51")
        SQ(f"v_and_b32 v40, 15, v0\nv_mov_b32 v41, s67\nv_mov_b32 v42, s66\nv_cmp_gt_u32 vcc, 12, v40\nv_lshlrev_b32 v40, 7, v40\nv_add_u32 v40, {WS_FLAG}, v40\nv_cndmask_b32 v41, v42, v41, vcc\nv_add_u32 v{vFR}, v40, v41")
        SQ(f"s_or_b32 vcc_lo, s52, s53\ns_mov_b32 vcc_hi, 0\nv_mov_b32 v40, 2.0\nv_cndmask_b32 v{vFR}, v40, v{vFR}, vcc")
        sel_consts(SQ, S16, 'v40', 'v41', 'v42')
        SQ('s_mov_b32 s16, s24\ns_mov_b32 s17, s25\ns_mov_b32 s57, 0xffff0000')
        SQ('v_lshlrev_b32 v41, 3, v0')
        SC.place(SQ.l, gfix + 1, gs(6, 20), 'asap', 'tailsetup')
        fload = f"buffer_load_dword v{vFV}, v{vFR}, {sWS}, 0 offen sc1"
        def chk(thr, mask): return f"v_cmp_le_u32 vcc, {thr}, v{vFV}\ns_and_b32 s66, vcc_lo, {mask}\ns_cmp_eq_u32 s66, {mask}"
        def fstore(val): return mk(f"buffer_store_dword v{vC}, v{vFLW}, {sWS}, 0 offen sc1", tag=f'fl{val}', cost=8)
        for p in range(6):
            g = gepi[p] + 4 * (OPT['fd0'] if ((p < 3 and OPT['hop0']) or OPT['hop1']) else OPT['fd1'])
            pos = SC.place(mk(f"v_mov_b32 v{vC}, {p+1}") + mk(f"WAITV st{p}"), g, g + 20, 'asap', f'flag{p}')
            hst = f"buffer_store_dword v{vC}, v{vFLW}, {sWS}, s37 offen"
            SC.fill[pos[-1] + 1] += mk(f"s_cmp_eq_u32 s58, 0\ns_cbranch_scc1 L_rel{p}") + mk(hst, tag=f'fl{p+1}', cost=8) + mk(f"L_relb{p}:")
            slow.extend(mk(f"L_rel{p}:\nbuffer_wbl2 sc1\ns_waitcnt vmcnt(0)\n{hst} sc1\ns_branch L_relb{p}", cond=True))
        pload = f"buffer_load_dword v{vFV}, v43, {sWS}, 0 offen sc1"
        def hloads(p):
            L = mk(f"s_add_u32 s69, s{PS+p}, {'s59' if p < 6 else 's100'}")
            for j in range(4): L += mk(f"buffer_load_dwordx4 {vr(HB(p)+4*j,4)}, v{vST}, {sWS}, s69 offen offset:{1024*j} sc1", tag=f"hl{p}", cost=8)
            return L
        ghl = {}
        for p in range(3, 9):
            u0 = N1 + QP[p]
            SC.place(mk(pload, tag=f'pp{p}', cost=8), gi[u0 - 1], gi[u0 + 1], 'asap', f'pp{p}')
            ck = f"v_cmp_le_u32 vcc, {p-2}, v{vFV}"
            pos = SC.place(mk(f"WAITV pp{p}") + mk(ck), gi[u0 + OPT['pchk']], gi[u0 + OPT['pchk'] + 1], 'asap', f'chk{p}')
            SC.fill[pos[-1] + 2] += mk(f"s_cbranch_vccz L_slowP{p}\nL_backP{p}:")
            slow.extend(mk(f"L_slowP{p}:\n" + (f"s_add_u32 s93, s93, {1 << (4*(p-3))}\n" if OPT['stamp'] else "") + f"s_mov_b32 s68, 0\nL_spinP{p}:\n{pload}\ns_waitcnt vmcnt(0)\n{ck}\ns_add_u32 s68, s68, 1\ns_nop 4\ns_cbranch_vccnz L_backP{p}\ns_cmp_lt_u32 s68, 0x80000\ns_cbranch_scc1 L_spinP{p}\ns_branch L_backP{p}", cond=True))
            ghl[p] = SC.place(hloads(p), pos[-1] + 3, gi[u0 + OPT['pchk'] + 5], 'asap', f'hl{p}')[-1]
        sQ = 's[16:19]'
        RS = [80, 84, 88]
        def sloads(srd, tag, cond=False):
            L = []
            for k in range(3):
                L += mk(f"s_lshl_b32 s69, s{60+k}, 4\ns_add_u32 s69, s69, s50", cond=cond)
                for u in range(2): L += mk(f"buffer_load_dwordx2 {vr(RS[k]+2*u,2)}, v41, {srd}, s69 offen offset:{512*u} sc1", tag=tag, cond=cond, cost=8)
            return L
        L = []
        for k in range(3): L += mk(f"s_add_u32 m0, s36, {1024*k}") + mk(f"buffer_load_dwordx4 v{vXO}, {sX}, s{60+k} offen lds", tag='xo', cost=8)
        L += mk(f"buffer_load_dword v42, v{vFR}, {sWS}, 0 offen sc1", tag='p0', cost=8)
        SC.place(L, max(ghl[7], gi[bar_at[33]]) + 1, ghl[7] + 30, 'asap', 'p0')
        pos = SC.place(mk("WAITV p0\nv_cmp_le_u32 s[70:71], 9, v42"), ghl[8] - 6, ghl[8] + 8, 'asap', 'chkS')
        SC.fill[pos[-1] + 1] += mk(f"s_and_b32 s66, s70, s52\ns_cmp_eq_u32 s66, s52\ns_cselect_b32 s18, {WS_BYTES}, 0\ns_cselect_b32 s54, 1, 0")
        L = []
        for k in range(3):
            for u in range(2): L += mk(f"ds_read_b64 {vr(XV+4*k+2*u,2)}, v{vL1} offset:{1024*k+32*u}", tag='xr')
        SC.place(L, pos[-1] + 2, gs(17, 30), 'asap', 'xr')
        g = SC.place(sloads(sQ, 'ls') + mk(fload, tag='p1', cost=8), max(ghl[8] + 1, pos[-1] + 2), gs(17, 40), 'asap', 'ls')[-1]
        SC.place(mk(f"v_mov_b32 v{vC}, 8") + mk("WAITV st7") + fstore(8), max(g + 1, gs(17, 32)), len(SC.head), 'asap', 'flag8')
    print("; gemm2 per-stage planned cycles:", [sum(16 + max(0, SC.used(g) - SC.cap[g]) for g in range(gs(i), gs(i + 1) if i < 17 else len(SC.head))) for i in range(18)], file=sys.stderr)
    print("; overflow cycles: pass0 %d, pass1-5 %d, gemm2 %d" % (SC.overflow(0, gi[72]), SC.overflow(gi[72], gi[N1]), SC.overflow(gi[N1])), file=sys.stderr)
    marks = [gi[72], gi[144], gi[N1], gi[N1 + 72]]
    ids = [4, 5, 6, 7]
    if OPT['marks'] == 2:
        marks = [gs(12), gs(13), gs(14), gs(15), gs(16), gs(17), len(SC.head)]; ids = [1, 2, 3, 4, 5, 6, 7]
    if OPT['marks'] == 3:
        marks = [gs(6), gs(7), gs(8), gs(9), gs(10), gs(11), gs(12)]; ids = [1, 2, 3, 4, 5, 6, 7]
    if OPT['marks'] == 5:
        marks = [gs(0), gs(1), gs(2), gs(3), gs(4), gs(5), gs(6)]; ids = [1, 2, 3, 4, 5, 6, 7]
    if OPT['marks'] == 6:
        marks = [gi[72], gi[144], gi[216], gi[288], gi[360], gi[N1]]; ids = [2, 3, 4, 5, 6, 7]
    if OPT['marks'] == 1:
        marks = [gs(0), gs(6), gs(8), gs(10), gs(12), gs(14), gs(16)]; ids = [1, 2, 3, 4, 5, 6, 7]
    prev = 0
    for i, g in zip(ids, marks):
        P.add(SC.emit(prev, g)); stamp(P, i); prev = g
    P.add(SC.emit(prev))
    if OPT['fuse']:
        P("WAITV hl8"); P.add(hopacc(8))
    P.add(epi(8))
    k0 = [i for i, x in enumerate(P.l) if x.text.startswith('WAITL r3')][0]
    def keep(x):
        if OPT['nosilu'] and x.base in ('v_exp_f32', 'v_rcp_f32', 'v_add_f32', 'v_mul_f32'): return False
        if OPT['nodma'] and x.kind == 'vmem' and 'lds' in x.mods: return False
        if OPT['nodma'] and x.op == 'WAITV': return False
        if OPT['nobar'] and x.kind == 'bar': return False
        if OPT['nost'] and (x.tag or '').startswith('st'): return False
        return True
    def fix(x):
        if OPT['nodma'] and x.op == 'WAITVL': return I('WAITL ' + x.ops[1])
        return x
    P.l = P.l[:k0] + [fix(x) for x in P.l[k0:] if keep(x)]
    stamp(P, 8)
    if OPT['fuse']:
        G = [ACC2 + 32 * ((6 + k) % 4) for k in range(3)]
        SS = [g + 8 for g in G]
        XU = 144
        def cloads(ks, srd, tag, cond=False):
            for k in ks:
                P(f"s_add_u32 s67, s{PS+6+k}, s49", cond=cond)
                for d in range(1, 4): P(f"s_add_u32 s69, s67, s{96+d}\nbuffer_load_dwordx4 {ar(12*k+4*(d-1),4)}, v{vST}, {srd}, s69 offen sc1", tag=tag, cond=cond)
        def spin(name, thr, mask):
            P(f"s_mov_b32 s68, 0\nL_spin{name}:", cond=True)
            P(fload + "\ns_waitcnt vmcnt(0)\n" + chk(thr, mask) + f"\ns_cbranch_scc1 L_done{name}\ns_sleep {OPT['slp']}\ns_add_u32 s68, s68, 1\ns_cmp_lt_u32 s68, 0x80000\ns_cbranch_scc1 L_spin{name}\nL_done{name}:", cond=True)
        def unitT(ks, acc=True):
            for k in (ks if acc else []):
                for d in range(3): P.add(accum(G[k], ar(12 * k + 4 * d, 4)))
            for k in ks:
                g_, t_ = G[k], G[k] + 16
                for i in range(8): P(f"v_exp_f32_e64 v{t_+i}, -v{g_+i}")
                for i in range(8): P(f"v_fma_f32 v{t_+i}, v{t_+i}, s71, s71")
                for i in range(8): P(f"v_rcp_f32 v{t_+i}, v{t_+i}")
                for i in range(8): P(f"v_mul_f32 v{g_+i}, v{g_+i}, v{t_+i}")
        P("WAITV p1\n" + chk(8, 's53') + f"\ns_cselect_b32 s18, {WS_BYTES}, 0\ns_cselect_b32 s55, 1, 0")
        cloads([0, 1], sQ, 'lc0')
        P(chk(9, 's53') + f"\ns_cselect_b32 s18, {WS_BYTES}, 0\ns_cselect_b32 s56, 1, 0")
        cloads([2], sQ, 'lc2')
        P(f"v_mov_b32 v{vC}, 9\ns_mov_b32 s71, {hx(LOG2E)}")
        for d in range(12): P(f"v_lshlrev_b32 v{XU+2*d}, 16, v{XV+d}\nv_and_b32 v{XU+2*d+1}, s57, v{XV+d}")
        P("WAITV st8"); P.add(fstore(9)); stamp(P, 12)
        P("s_cmp_eq_u32 s54, 1\ns_cbranch_scc1 L_chk8")
        P(chk(9, 's52') + "\ns_cbranch_scc0 L_chk8\ns_mov_b32 s54, 1", cond=True)
        P.add(sloads(sWS, 'ls1', True))
        P("L_chk8:")
        P("s_cmp_eq_u32 s55, 1\ns_cbranch_scc1 L_have8")
        spin('8', 8, 's53')
        cloads([0, 1], sWS, 'lc0b', True)
        P(chk(9, 's53') + f"\ns_cselect_b32 s18, {WS_BYTES}, 0\ns_cselect_b32 s56, 1, 0", cond=True)
        cloads([2], sQ, 'lc2c', True); P("s_waitcnt vmcnt(3)", cond=True)
        P("L_have8:")
        P(fload, tag='p2')
        P("WAITV lc0")
        stamp(P, 9)
        unitT([0, 1])
        P("s_waitcnt vmcnt(0)")
        P("s_cmp_eq_u32 s54, 1\ns_cbranch_scc1 L_chk9")
        P(chk(9, 's52') + "\ns_cbranch_scc0 L_chk9\ns_mov_b32 s54, 1", cond=True)
        P.add(sloads(sWS, 'ls2', True))
        P("L_chk9:")
        P("s_cmp_eq_u32 s56, 1\ns_cbranch_scc0 L_no9\ns_waitcnt vmcnt(0)\ns_branch L_have9\nL_no9:")
        P(chk(9, 's53') + "\ns_cbranch_scc1 L_done9", cond=True)
        spin('9', 9, 's53')
        cloads([2], sWS, 'lc2b', True); P("s_waitcnt vmcnt(3)", cond=True)
        P("L_have9:")
        stamp(P, 10)
        P("s_cmp_eq_u32 s54, 1\ns_cbranch_scc1 L_haveS")
        spin('S', 9, 's52')
        P.add(sloads(sWS, 'ls3', True)); P("s_waitcnt vmcnt(0)", cond=True)
        P("L_haveS:")
        def fin(k):
            g_, s_, pk = G[k], SS[k], G[k] + 24
            for i in range(8): P(f"v_fma_f32 v{g_+i}, v{g_+i}, v{s_+i}, v{XU+8*k+i}")
            for d in range(4): P(f"v_cvt_pk_bf16_f32 v{pk+d}, v{g_+2*d}, v{g_+2*d+1}")
            P(f"ds_write_b64 v{vL2}, {vr(pk,2)} offset:{4096+1280*k}\nds_write_b64 v{vL2}, {vr(pk+2,2)} offset:{4096+1280*k+32}", tag=f'ow{k}')
            P(f"ds_read_b128 {vr(pk+4,4)}, v{vL3} offset:{4096+1280*k}", tag=f'or{k}')
        def ost(k): P(f"WAITL or{k}\nbuffer_store_dwordx4 {vr(G[k]+28,4)}, v{vXO}, s[72:75], s{60+k} offen{['', ' sc1', ' nt'][OPT['omod']]}")
        for k in range(3):
            for d in range(4): P(f"v_lshlrev_b32 v{SS[k]+2*d}, 16, v{RS[k]+d}\nv_and_b32 v{SS[k]+2*d+1}, s57, v{RS[k]+d}")
        fin(0); fin(1)
        P("s_waitcnt vmcnt(0)")
        for d in range(3): P.add(accum(G[2], ar(24 + 4 * d, 4)))
        ost(0); ost(1)
        unitT([2], False)
        fin(2); ost(2)
        stamp(P, 11)
    stamp_flush(P, 12)
    P("s_endpgm")
    P.add(slow)
    return P.l

def attn():
    P = Prog()
    P("s_endpgm")
    return P.l

def final():
    P = Prog()
    P("s_endpgm")
    return P.l

def finish(lst):
    lst = resolve_waits(ungroup(lst))
    lst, nfix = fix_hazards(lst, OPT['verbose'])
    errs = check_scoreboard(lst)
    for e in errs[:20]: print("; SCOREBOARD ERR", e, file=sys.stderr)
    assert not errs
    lst, mis, sz = align_pass(lst)
    print(f"; hazard nops inserted: {nfix}, instrs: {len(lst)}, misaligned {mis}, bytes {sz}", file=sys.stderr)
    return lst

def main():
    try:
        import gen_attn
    except ImportError:
        gen_attn = None
    P0 = Prog(); common_prologue(P0)
    f = finish(P0.l + ffn())[:]
    a = finish(P0.l + (gen_attn.attn(globals()) if gen_attn and OPT['attn'] else attn()))
    a = a[[i for i, x in enumerate(a) if x.text.startswith('s_cbranch_scc1 L_attn')][0] + 1:]
    k2 = finish(gen_attn.final(globals()) if gen_attn else final())
    out = []
    MK = NAME + "_kernel" if OPT['fuse'] else "main_kernel"
    if OPT['fuse']: out.append(f"; @launch grid=(256,1,1) block=(256,1,1) lds={LDS_BYTES}")
    else:
        out.append(f"; @launch kernel=main_kernel grid=(256,1,1) block=(256,1,1) lds={LDS_BYTES}")
        out.append(f"; @launch kernel=final_kernel grid=(576,1,1) block=(256,1,1) lds=0")
    out.append('.amdgcn_target "amdgcn-amd-amdhsa--gfx950"\n.text')
    out.append(f".globl {MK}\n.p2align 8\n.type {MK},@function\n{MK}:\nL_main_start:")
    out += [x.text for x in f]
    out.append(".p2align 6\nL_attn:")
    out += [x.text for x in a]
    out.append("L_exit:\ns_endpgm\nL_main_end:")
    if not OPT['fuse']:
        out.append(".globl final_kernel\n.p2align 8\n.type final_kernel,@function\nfinal_kernel:")
        out += [x.text for x in k2]
    out.append('.section .rodata,"a"')
    for nm, nv, ao in ((MK, 512, 256), ("final_kernel", 96, 96))[:1 if OPT['fuse'] else 2]:
        out.append(f".p2align 6\n.amdhsa_kernel {nm}\n  .amdhsa_next_free_vgpr {nv}\n  .amdhsa_next_free_sgpr 102\n  .amdhsa_accum_offset {ao}\n  .amdhsa_group_segment_fixed_size 0\n  .amdhsa_kernarg_size 72\n  .amdhsa_user_sgpr_count 2\n  .amdhsa_user_sgpr_kernarg_segment_ptr 1\n  .amdhsa_system_sgpr_workgroup_id_x 1\n  .amdhsa_float_denorm_mode_32 3\n.end_amdhsa_kernel")
    txt = "\n".join(out) + "\n"
    import subprocess, re as _re, tempfile, os
    d = tempfile.mkdtemp()
    open(d + "/a.s", "w").write(txt.replace("CODE_PF_MAX", "0x12345"))
    r = subprocess.run(["clang", "-x", "assembler", "-target", "amdgcn-amd-amdhsa", "-mcpu=gfx950", "-c", d + "/a.s", "-o", d + "/a.o"], capture_output=True, text=True)
    assert r.returncode == 0, r.stderr
    sy = subprocess.run(["llvm-readelf", "-s", d + "/a.o"], capture_output=True, text=True).stdout
    def sym(n): return int([l for l in sy.splitlines() if l.strip().endswith(" " + n)][0].split()[1], 16)
    size = sym("L_main_end") - sym("L_main_start")
    print(f"; main code bytes {size}, attn at {sym('L_attn')}", file=sys.stderr)
    print(txt.replace("CODE_PF_MAX", str(size - 1024)))

if __name__ == "__main__":
    main()
```

```python
import sys, math
from asmlib import *

OPT = dict(pf0=1, pf0n=36, prot=2, snake=1, w64=0, d6=1, bbx=1024, omod=0, q3=80, q4=94, q5=118, lat0=26, lat1=22, e1=62, e2=81, fd0=17, fd1=9, hop1=0, hop0=1, fdel0=44, pfwo=1, ofl=36, opl=50, ofl1=55, pfh0=216, nb2=2, hsplit=2, dpre=3, pst=0, xlead=3, slp=4, rt=0, pfh=0, pchk=9, fdel=32, a3=8, a4=3, cin=22, sat=15*12+4,  forcefb=0, marks=0, wcost=16, fuse=1, stmod=1, dbgwg=64, nosilu=0, nodma=0, nobar=0, nost=0, pd1=7, pd2=3, stamp=0, ffn=1, attn=1, verbose=0, rot=1, pfw=0, pfcode=1)
for a in sys.argv[1:]:
    k, v = a.split('='); OPT[k] = int(v)

STMOD = ['', ' sc1', ' nt', ' sc0 sc1', ' sc1 nt'][OPT['stmod']]
NAME = "recurrent_scan__sliding_local_dilated__dense_activation_silu__prompt"
LOG2E = 1.4426950408889634
LN2 = 0.6931471805599453
import struct
def f2u(f): return struct.unpack('<I', struct.pack('<f', f))[0]
def hx(f): return "0x%08x" % f2u(f)

JS = 147456
BB = 13 * JS + OPT['bbx']
WS_FIN = BB
WS_HOP = BB + 4 * JS
WS_S = BB + 8 * JS
WS_O = BB + 9 * JS
WS_KV = BB + 10 * JS
WS_FLAG = BB + 12 * JS
HFOFF = 8192
WS_FB = 34 << 20
WS_STAMP = 80 << 20
WS_BYTES = 96 << 20
LDS_BYTES = 155648

sX, sWA, sWB, sWS, sDBG = 's[12:15]', 's[16:19]', 's[20:23]', 's[24:27]', 's[28:31]'
sM, sSL, sWV, sROT, sMEM = 's32', 's33', 's34', 's35', 's36'

def vr(a, n): return f"v[{a}:{a+n-1}]" if n > 1 else f"v{a}"
def ar(a, n): return f"a[{a}:{a+n-1}]" if n > 1 else f"a{a}"

stamp_n = [0]
def stamp(P, idx):
    if not OPT['stamp']: return
    if OPT['pst']:
        if idx < 100 and idx != 3: return
        idx = 9 if idx == 3 else idx - 100
    elif idx >= 100: return
    P(f"{'s_memrealtime' if OPT['rt'] else 's_memtime'} s[78:79]\ns_waitcnt lgkmcnt(0)\ns_mov_b32 s{80+idx}, s78")
def stamp_flush(P, n):
    if not OPT['stamp']: return
    P(f"s_memrealtime s[78:79]\ns_waitcnt lgkmcnt(0)\ns_mov_b32 s{80+15}, s78")
    P(f"s_lshl_b32 s76, s2, 2\ns_add_u32 s76, s76, {sWV}\ns_lshl_b32 s76, s76, 6\ns_add_u32 s76, s76, {WS_STAMP}\ns_mul_i32 s77, {sM}, {BB}\ns_sub_u32 s76, s76, s77")
    P("v_mov_b32 v1, 0")
    for i in range(4):
        for j in range(4): P(f"v_mov_b32 v{4+j}, s{80+4*i+j}")
        P(f"buffer_store_dwordx4 v[4:7], v1, {sWS}, s76 offen offset:{16*i}")
        P("s_nop 1")

def round_bf16(P, dst, src):
    P(f"v_cvt_pk_bf16_f32 {dst}, {src}, {src}\nv_and_b32 {dst}, 0xffff0000, {dst}")

def ln_stats(P, vsum, vsq, vnegm, vr_, tmp):
    P(f"v_mul_f32 {vsum}, {hx(1/576)}, {vsum}")
    P(f"v_mul_f32 {vsq}, {hx(1/576)}, {vsq}")
    P(f"v_fma_f32 {vsq}, -{vsum}, {vsum}, {vsq}")
    P(f"v_max_f32 {vsq}, 0, {vsq}")
    round_bf16(P, vnegm, vsum)
    P(f"v_xor_b32 {vnegm}, 0x80000000, {vnegm}")
    round_bf16(P, vsq, vsq)
    P(f"v_add_f32 {vsq}, {hx(1e-5)}, {vsq}")
    round_bf16(P, vsq, vsq)
    P(f"v_sqrt_f32 {vsq}, {vsq}")
    round_bf16(P, vsq, vsq)
    P(f"v_rcp_f32 {vr_}, {vsq}")

def sel_consts(P, vsel, t0, t1, t2):
    P(f"v_mov_b32 v{vsel}, 0\nv_mov_b32 v{vsel+1}, 0\nv_mov_b32 v{vsel+4}, 0\nv_mov_b32 v{vsel+5}, 0")
    P(f"v_and_b32 {t0}, 1, v0\nv_lshlrev_b32 {t0}, 4, {t0}\nv_mov_b32 {t1}, 0x3f80\nv_lshlrev_b32 {t0}, {t0}, {t1}")
    P(f"v_bfe_u32 {t1}, v0, 2, 2\nv_lshrrev_b32 {t2}, 4, v0")
    P(f"v_cmp_eq_u32 vcc, {t1}, {t2}\nv_cndmask_b32 {t0}, 0, {t0}, vcc")
    P(f"v_and_b32 {t1}, 2, v0\nv_cmp_eq_u32 vcc, 0, {t1}")
    P(f"v_cndmask_b32 v{vsel+2}, 0, {t0}, vcc\nv_cndmask_b32 v{vsel+3}, {t0}, v{vsel}, vcc")

def common_prologue(P):
    P("s_cmp_ge_u32 s2, 256\ns_cbranch_scc1 L_exit")
    P("s_load_dwordx4 s[4:7], s[0:1], 0\ns_load_dwordx2 s[8:9], s[0:1], 16\ns_load_dwordx4 s[40:43], s[0:1], 32\ns_load_dwordx4 s[44:47], s[0:1], 56")
    P(f"v_lshrrev_b32 v1, 6, v0\nv_lshlrev_b32 v46, 7, v0\nv_readfirstlane_b32 {sWV}, v1\nv_and_b32 v0, 63, v0")
    if OPT['stamp']: P("s_memrealtime s[78:79]\ns_memtime s[76:77]")
    if OPT['pfcode']:
        P("s_getpc_b64 s[48:49]\ns_bfe_u32 s58, s2, 0x20003\ns_lshl_b32 s58, s58, 15\nv_add_u32 v46, s58, v46")
        P("v_min_u32 v46, CODE_PF_MAX, v46\nglobal_load_dword v47, v46, s[48:49]", tag='dummy')
    if OPT['stamp']:
        for i in range(80, 96): P(f's_mov_b32 s{i}, 0')
    P("s_and_b32 s37, s2, 1\ns_lshl_b32 s37, s37, 3")
    P("s_bfe_u32 s38, s2, 0x20001")
    P(f"s_lshr_b32 s39, s2, 3\ns_and_b32 {sMEM}, s39, 7\ns_add_u32 {sM}, s37, {sMEM}")
    P(f"s_lshl_b32 s51, s38, 1\ns_add_u32 s51, s51, s37\ns_lshr_b32 s52, s39, 2\ns_add_u32 s51, s51, s52")
    P(f"s_lshl_b32 s52, s39, 1\ns_and_b32 s52, s52, 6\ns_add_u32 s52, s52, s51\ns_mul_i32 s53, s52, 57\ns_lshr_b32 s53, s53, 9\ns_mul_i32 s53, s53, 9\ns_sub_u32 s52, s52, s53")
    P(f"s_lshr_b32 {sROT}, s39, 3\ns_sub_u32 {sROT}, {sROT}, 1\ns_mul_i32 s50, {sROT}, 3\ns_cmp_lt_u32 s39, 8\ns_cselect_b32 s50, s52, s50\ns_cselect_b32 {sM}, s51, {sM}")
    if not OPT['rot']: P(f"s_mov_b32 s50, 0")
    P(f"s_lshl_b32 s53, {sM}, 7\ns_lshl_b32 s54, {sWV}, 5\ns_add_u32 s53, s53, s54\ns_mul_i32 s53, s53, 1152")
    P(f"v_lshrrev_b32 v2, 3, v0\nv_mul_u32_u24 v2, 2304, v2\nv_lshrrev_b32 v3, 4, v0\nv_and_b32 v44, 7, v0\nv_xor_b32 v3, v3, v44\nv_lshlrev_b32 v3, 4, v3")
    P(f"v_add_u32 v44, v2, v3\nv_add_u32 v44, s53, v44\nv_xor_b32 v45, 64, v44\nv_add_u32 v45, {16*1152-1024}, v45")
    P(f"s_lshl_b32 s55, s50, 7\ns_mul_i32 s54, {sWV}, 12288")
    if OPT['pf0']:
        n = OPT['pf0n']
        P(f"s_lshr_b32 s58, {sMEM}, 1\ns_lshl_b32 s58, s58, 2\ns_add_u32 s58, s58, {sWV}\ns_mul_i32 s58, s58, {n}\ns_lshl_b32 s59, s50, 6\ns_add_u32 s58, s58, s59")
        P(f"s_mul_i32 s59, s38, 3\ns_add_u32 s59, s59, {sROT}\ns_lshl_b32 s59, s59, 1\ns_and_b32 s60, {sMEM}, {1 if OPT['prot'] else 0}\ns_add_u32 s59, s59, s60\ns_mul_i32 s59, s59, 384")
        P(f"v_min_u32 v2, {n-1}, v0\nv_add_u32 v2, s58, v2\nv_subrev_u32 v3, 576, v2\nv_min_u32 v2, v2, v3\nv_mul_u32_u24 v2, 9216, v2")
        P(f"s_lshl_b32 s60, s50, 2\ns_add_u32 s60, s60, {sWV}\ns_mul_i32 s60, s60, {16*3456}\ns_and_b32 s61, s39, 3\ns_mul_i32 s61, s61, 288\ns_add_u32 s60, s60, s61\ns_add_u32 s60, s60, 1152")
        P(f"v_lshrrev_b32 v3, 2, v0\nv_mul_u32_u24 v3, 3456, v3\nv_and_b32 v4, 3, v0\nv_mul_u32_u24 v4, 92, v4\nv_add_u32 v3, v3, v4")
        P(f"s_cmp_lt_u32 s39, 8\ns_cselect_b64 vcc, -1, 0\ns_cselect_b32 s59, s60, s59\ns_cselect_b32 s18, {576*1728*2}, {576*4608*2}" if False else f"s_mov_b32 s18, {576*4608*2}\ns_cmp_lt_u32 s39, 8\ns_cselect_b64 vcc, -1, 0\ns_cselect_b32 s59, s60, s59\ns_cselect_b32 s18, {576*1728*2}, s18\ns_mov_b32 s19, 0x20000\nv_cndmask_b32 v2, v2, v3, vcc")
    P("s_waitcnt lgkmcnt(0)")
    if OPT['pf0']: P("s_cselect_b32 s16, s6, s40\ns_cselect_b32 s17, s7, s41")
    if OPT['stamp']: P("s_mov_b32 s94, s78\ns_mov_b32 s80, s76")
    P(f"s_mov_b32 s12, s4\ns_mov_b32 s13, s5\ns_mov_b32 s14, {2048*576*2}\ns_mov_b32 s15, 0x20000")
    stamp(P, 101)
    pf = mk(f"buffer_load_dword v47, v2, {sWA}, s59 offen", tag='dummy')
    if OPT['pf0'] == 1: P.add(pf)
    P.add(xdma(0, 0))
    if OPT['pf0'] == 2: P.add(pf)
    P.add(xdma(0, 1)); P.add(xdma(0, 2))
    if OPT['pf0'] == 3: P.add(pf)
    stamp(P, 102)
    P(f"s_mul_i32 s24, {sM}, {BB}\ns_add_u32 s24, s24, s46\ns_addc_u32 s25, s47, 0\ns_mov_b32 s26, {WS_BYTES}\ns_mov_b32 s27, 0x20000")
    P(f"s_mov_b32 s28, s44\ns_mov_b32 s29, s45\ns_mov_b32 s30, 256\ns_mov_b32 s31, 0x20000")
    P("s_cmp_lt_u32 s39, 8\ns_cbranch_scc1 L_attn")

def xdma(st, S):
    Q = Prog()
    Q(f"s_add_u32 m0, s54, {st*49152+S*4096}\ns_add_u32 s56, s55, 1152")
    Q(f"buffer_load_dwordx4 v44, {sX}, s55 offen lds\nbuffer_load_dwordx4 v45, {sX}, s55 offen offset:1024 lds", tag=f"x{3*st+S}")
    Q(f"s_add_u32 m0, m0, 2048\ns_add_u32 s55, s55, 128")
    Q(f"buffer_load_dwordx4 v44, {sX}, s56 offen lds\nbuffer_load_dwordx4 v45, {sX}, s56 offen offset:1024 lds", tag=f"x{3*st+S}")
    Q(f"s_cmp_eq_u32 s55, 1152\ns_cselect_b32 s55, 0, s55")
    return Q.l

def weave(main, extra, every):
    out = []; k = 0; cnt = 0
    for idx, ins in enumerate(main):
        out.append(ins); cnt += 1
        nxt = main[idx + 1] if idx + 1 < len(main) else None
        safe = nxt is None or ('scc' not in nxt.rd and 'm0' not in nxt.rd)
        if k < len(extra) and cnt >= every and safe:
            out += extra[k]; k += 1; cnt = 0
    for g in extra[k:]: out += g
    return out

def xphase(P, setup, frags, sums, sqs, dmas, nfirst=3):
    lead = OPT['xlead']
    late = [x for x in setup if x.kind == 'vmem']
    P.add([x for x in setup if x.kind != 'vmem'])
    for S in range(nfirst, lead + 1): P.add(xdma(S // 3, S % 3))
    dmas = dict(dmas); dmas[9] = dmas.get(9, []) + late
    stamp(P, 1); stamp(P, 103)
    def dots(S):
        L = []
        for (d, a, o, k) in frags[S]:
            for j in range(4): L += mk(f"v_dot2c_f32_bf16 v{sums[k][j%2]}, s57, v{d+j}\nv_dot2c_f32_bf16 v{sqs[k][j%2]}, v{d+j}, v{d+j}")
        return L
    for S in range(10):
        if S < 9:
            P(f"WAITV x{S}")
            if S in (0, 2, 5, 8): stamp(P, 104 + (0, 2, 5, 8).index(S))
            for n, (d, a, o, k) in enumerate(frags[S]): P(f"ds_read_b128 {vr(d,4)}, v{a} offset:{o}", tag=f"xr{S}")
        if S == 8: stamp(P, 2)
        if S >= 1:
            P(f"WAITL xr{S-1}")
            if S - 1 in (2, 5): P("s_barrier")
        extra = []
        if S + lead + 1 < 9: extra += dgroups(xdma((S + lead + 1) // 3, (S + lead + 1) % 3))
        if S in dmas: extra += dgroups(dmas[S])
        body = dots(S - 1) if S >= 1 else []
        P.add(weave(body, extra, max(1, len(body) // (len(extra) + 1))))
    stamp(P, 108)

RING = 24576; NSLOT = 5; HX = RING * NSLOT
vA1 = [[16, 17, 18], [19, 20, 21]]; vA2 = [[22, 23, 24], [25, 26, 27]]
vD1 = [28, 29, 30, 31]; vD2 = [32, 33, 34, 35]
vHW, vHR, vST = 36, 37, 38
ACC1 = 48; XR = 112
AF = 192

def flag_setup(P, vFLW, sj, tmpv, hop=False):
    P(f"s_lshl_b32 s66, {sWV}, 11\ns_lshl_b32 s67, {sj}, 7\ns_add_u32 s66, s66, s67\ns_add_u32 s66, s66, {WS_FLAG}")
    P(f"v_lshrrev_b32 {tmpv}, 5, v0\nv_lshlrev_b32 {tmpv}, 30, {tmpv}\nv_lshl_add_u32 {tmpv}, v0, 2, {tmpv}\nv_add_u32 v{vFLW}, s66, {tmpv}\nv_mov_b32 {tmpv}, 0")
    P(f"buffer_store_dword {tmpv}, v{vFLW}, {sWS}, 0 offen sc1", tag='fz')
    if hop: P(f"s_mov_b32 s37, {HFOFF}\nbuffer_store_dword {tmpv}, v{vFLW}, {sWS}, s37 offen sc1", tag='fz')
def handshake(sj, va, vb, xcc=False):
    Q = Prog()
    Q(f"s_lshl_b32 s66, {sM}, 2\ns_and_b32 s67, {sj}, 3\ns_add_u32 s66, s66, s67\ns_lshl_b32 s66, s66, 2\ns_lshl_b32 s67, {sWV}, 8\ns_add_u32 s66, s66, s67")
    Q(f"v_lshlrev_b32 {va}, 8, v0\nv_add_u32 {va}, s66, {va}")
    Q(f"s_getreg_b32 s66, hwreg(HW_REG_XCC_ID)\ns_and_b32 s66, s66, 15\ns_and_b32 s67, {sj}, 12\ns_add_u32 s67, s67, 12\ns_lshl_b32 s66, s66, s67\ns_add_u32 s66, s66, 1\nv_mov_b32 {vb}, s66")
    Q(f"buffer_atomic_add {vb}, {va}, {sDBG}, 0 offen sc1", tag='hsk', cost=8)
    return Q.l

def sel32(P, SEL):
    P("v_and_b32 v2, 1, v0\nv_lshlrev_b32 v2, 4, v2\nv_mov_b32 v3, 0x3f80\nv_lshlrev_b32 v2, v2, v3")
    P("v_bfe_u32 v3, v0, 2, 1\nv_lshlrev_b32 v3, 1, v3\nv_lshrrev_b32 v4, 4, v0\nv_cmp_eq_u32 vcc, v3, v4\nv_cndmask_b32 v2, 0, v2, vcc")
    P("v_bfe_u32 v3, v0, 3, 1\nv_lshlrev_b32 v3, 1, v3\nv_bfe_u32 v4, v0, 1, 1\nv_add_u32 v3, v3, v4")
    for j in range(4): P(f"v_cmp_eq_u32 vcc, {j}, v3\nv_cndmask_b32 v{SEL+j}, 0, v2, vcc")

def dgroups(lst):
    G = []; cur = []
    for x in lst:
        cur.append(x)
        if x.kind == 'vmem': G.append(cur); cur = []
    if cur: G[-1] += cur
    return G

def flat(groups): return [x for g in groups for x in g]

def ffn():
    P = Prog()
    P(f"s_mov_b32 s50, {sROT}" if OPT['rot'] else "s_mov_b32 s50, 0")
    P(f"s_add_u32 s51, s50, 1\ns_cmp_ge_u32 s51, 3\ns_cselect_b32 s51, 0, s51\ns_add_u32 s52, s51, 1\ns_cmp_ge_u32 s52, 3\ns_cselect_b32 s52, 0, s52")
    P(f"s_mul_i32 {sSL}, s38, 3\ns_add_u32 {sSL}, {sSL}, {sROT}")
    P(f"s_mov_b32 s16, s40\ns_mov_b32 s17, s41\ns_mov_b32 s18, {576*4608*2}\ns_mov_b32 s19, 0x20000")
    P(f"s_mov_b32 s20, s42\ns_mov_b32 s21, s43\ns_mov_b32 s22, {576*4608*2}\ns_mov_b32 s23, 0x20000")
    P(f"s_mul_i32 s59, {sSL}, 768")
    P(f"s_mul_i32 s63, {sSL}, {384*1152}\ns_mul_i32 s64, {sWV}, 6144")
    if OPT['fuse']: P(f"s_lshl_b32 {sSL}, {sROT}, 2\ns_add_u32 {sSL}, {sSL}, s38")
    P("s_load_dwordx2 s[72:73], s[0:1], 48")
    vFLW = 39
    if OPT['fuse']:
        flag_setup(P, vFLW, sSL, 'v14', True)
        hsk = handshake(sSL, 'v10', 'v11', True); P.add(hsk[:-1])
    def pf_w(which):
        Q = Prog()
        if which == 1:
            Q(f"s_mul_i32 s66, {sMEM}, {72*9216}\ns_add_u32 s66, s66, s59\ns_lshl_b32 s67, {sWV}, 6\ns_mov_b32 s68, {-(-(1<<32)//6)}")
            for i in range(2):
                Q(f"v_add_u32 v10, s67, v0")
                if i: Q(f"v_add_u32 v10, 256, v10\nv_min_u32 v10, 431, v10")
                Q(f"v_mul_hi_u32 v11, v10, s68\nv_lshlrev_b32 v10, 7, v10\nv_mul_u32_u24 v11, {9216-768}, v11\nv_add_u32 v10, v10, v11")
                Q(f"buffer_load_dword v47, v10, {sWA}, s66 offen", tag='dummy', cost=8)
        else:
            nb = OPT['nb2']; n = 108 // nb
            Q(f"s_lshl_b32 s71, {sMEM}, 2\ns_add_u32 s71, s71, {sWV}\ns_mul_i32 s71, s71, {108*128}\ns_add_u32 s71, s71, s63")
            Q(f"v_min_u32 v44, {n-1}, v0\nv_lshlrev_b32 v44, 7, v44")
            for i in range(nb):
                Q(f"buffer_load_dword v47, v44, {sWB}, s71 offen", tag='dummy', cost=8)
                if i < nb - 1: Q(f"s_add_u32 s71, s71, {n*128}")
        return Q.l
    P(f"v_lshrrev_b32 v2, 3, v0\nv_and_b32 v3, 7, v0")
    P(f"s_mul_i32 s58, {sWV}, 48\nv_add_u32 v4, s58, v2")
    P(f"v_bfe_u32 v5, v0, 4, 1\nv_lshlrev_b32 v5, 2, v5\nv_xor_b32 v5, v5, v3\nv_lshlrev_b32 v5, 4, v5")
    P(f"v_mul_u32_u24 v6, 9216, v4\nv_add_u32 v{vD1[0]}, v6, v5")
    for i in range(1, 4): P(f"v_add_u32 v{vD1[i]}, {i*(8*9216-1024)}, v{vD1[0]}")
    P(f"v_bfe_u32 v5, v0, 4, 2\nv_lshlrev_b32 v5, 1, v5\nv_xor_b32 v5, v5, v3\nv_lshlrev_b32 v5, 4, v5")
    P(f"v_mul_u32_u24 v6, 1152, v4\nv_add_u32 v{vD2[0]}, v6, v5")
    for i in range(1, 4): P(f"v_add_u32 v{vD2[i]}, {i*(8*1152-1024)}, v{vD2[0]}")
    P(f"s_and_b32 s35, {sMEM}, {1 if OPT['prot'] else 0}\ns_mul_i32 s39, s35, 384\ns_add_u32 s59, s59, s39\ns_lshl_b32 s39, s39, 1")
    for st in range(3): P(f"s_mul_i32 s{60+st}, s{50+st}, {192*9216}\ns_add_u32 s{60+st}, s{60+st}, s59")

    PA, PS = 40, 3
    g2 = [(0,0),(1,0),(2,0),(0,1),(1,1),(2,1)] + [(p,k) for p in range(3,9) for k in range(2)]
    def dma(s):
        slot = (s % NSLOT) * RING
        G = []
        if s < 18:
            p, st = s // 3, s % 3
            if p == 3: G += mk(f"s_sub_u32 s{60+st}, s{60+st}, s39")
            srd, vD, first, big = sWA, vD1, f"s_add_u32 s65, s{60+st}, {p*128}", 32 * 9216
        else:
            p, k = g2[s - 18]
            srd, vD, first, big = sWB, vD2, f"s_add_u32 s65, s{PA+p}, s{k}", 32 * 1152
        t = f"d{s}"
        G += mk(f"s_add_u32 m0, s64, {slot}\n{first}")
        for i in range(4): G += mk(f"buffer_load_dwordx4 v{vD[i]}, {srd}, s65 offen offset:{1024*i} lds", tag=t, cost=8)
        if OPT['d6'] and 6 <= s < 18:
            G += mk(f"s_add_u32 m0, s64, {slot+4096}")
            for i in range(2): G += mk(f"buffer_load_dwordx4 v{42+i}, {srd}, s65 offen offset:{1024*i} lds", tag=t, cost=8)
        else:
            G += mk(f"s_add_u32 m0, s64, {slot+4096}\ns_add_u32 s65, s65, {big}")
            for i in range(2): G += mk(f"buffer_load_dwordx4 v{vD[i]}, {srd}, s65 offen offset:{1024*i} lds", tag=t, cost=8)
        return G
    P(f"v_lshrrev_b32 v2, 5, v0\nv_lshlrev_b32 v2, 12, v2\nv_bfe_u32 v3, v0, 2, 2\nv_lshlrev_b32 v3, 7, v3\nv_add_u32 v2, v2, v3")
    P(f"v_bfe_u32 v3, v0, 4, 1\nv_lshlrev_b32 v3, 5, v3\nv_add_u32 v2, v2, v3\nv_and_b32 v3, 3, v0\nv_lshlrev_b32 v3, 3, v3\nv_add_u32 v2, v2, v3")
    P(f"v_bfe_u32 v3, v0, 3, 1\nv_lshlrev_b32 v3, 6, v3\nv_add_u32 v{vA1[0][0]}, v2, v3\nv_xor_b32 v{vA1[1][0]}, 64, v{vA1[0][0]}")
    P(f"v_lshrrev_b32 v2, 2, v0\nv_lshlrev_b32 v2, 7, v2\nv_and_b32 v3, 3, v0\nv_lshlrev_b32 v3, 3, v3\nv_add_u32 v2, v2, v3")
    P(f"s_and_b32 s69, {sWV}, 1\ns_lshl_b32 s69, s69, 1\nv_bfe_u32 v3, v0, 3, 2\nv_xor_b32 v3, s69, v3\nv_lshlrev_b32 v3, 5, v3")
    P(f"v_add_u32 v{vA2[0][0]}, v2, v3\nv_xor_b32 v{vA2[1][0]}, 32, v{vA2[0][0]}")
    for vA in (vA1, vA2):
        for u in range(2):
            for b in (1, 2): P(f"v_add_u32 v{vA[u][b]}, {b*2*RING}, v{vA[u][0]}")
    P(f"v_bfe_u32 v2, v0, 4, 1\nv_lshlrev_b32 v2, 10, v2\nv_lshrrev_b32 v3, 5, v0\nv_lshlrev_b32 v3, 8, v3\nv_add_u32 v2, v2, v3")
    P(f"v_and_b32 v3, 15, v0\nv_lshlrev_b32 v3, 4, v3\nv_add_u32 v2, v2, v3\ns_lshl_b32 s69, {sWV}, 11\ns_add_u32 s69, s69, {HX}\nv_add_u32 v{vHW}, s69, v2")
    if OPT['fuse']: P(f"s_and_b32 s69, {sSL}, 3\ns_lshl_b32 s69, s69, 10\nv_xor_b32 v{vHW}, s69, v{vHW}")
    P(f"v_lshlrev_b32 v{vST}, 4, v0\ns_lshr_b32 s69, {sWV}, 1\ns_lshl_b32 s69, s69, 12\ns_add_u32 s69, s69, {HX}\nv_add_u32 v{vHR}, s69, v{vST}")
    P(f"s_lshl_b32 s70, s38, 1\ns_lshr_b32 s69, {sWV}, 1\ns_add_u32 s70, s70, s69")
    P(f"s_mul_i32 s70, s70, 18\ns_and_b32 s69, {sWV}, 1\ns_add_u32 s70, s70, s69\ns_lshl_b32 s70, s70, 12\ns_add_u32 s70, s70, {WS_FIN}")
    P(f"s_lshr_b32 s66, {sSL}, 2\ns_mul_i32 s67, {sM}, 43\ns_lshr_b32 s67, s67, 7")
    P(f"s_mul_i32 s68, s67, 3\ns_sub_u32 s68, {sM}, s68\ns_add_u32 s68, s68, s66\ns_add_u32 s68, s68, 1")
    P(f"s_cmp_ge_u32 s68, 3\ns_cselect_b32 s69, 3, 0\ns_sub_u32 s68, s68, s69")
    P(f"s_cmp_ge_u32 s67, 3\ns_cselect_b32 s69, 3, 0\ns_sub_u32 s67, s67, s69")
    if not OPT['fuse']: P("s_mov_b32 s67, 0\ns_mov_b32 s68, 0")
    for ph in range(3):
        for k in range(3):
            p = 3 * ph + k
            P(f"s_mul_i32 s69, s68, 3\ns_add_u32 s69, s69, s67\ns_lshl_b32 s{PA+p}, s69, 7\ns_add_u32 s{PA+p}, s{PA+p}, s63\ns_lshl_b32 s{PS+p}, s69, 13\ns_add_u32 s{PS+p}, s{PS+p}, s70")
            P("s_add_u32 s67, s67, 1\ns_cmp_eq_u32 s67, 3\ns_cselect_b32 s67, 0, s67")
        if ph < 2: P("s_add_u32 s68, s68, 1\ns_cmp_eq_u32 s68, 3\ns_cselect_b32 s68, 0, s68")
    P(f"s_and_b32 s67, {sSL}, 3")
    for d in range(4): P(f"s_xor_b32 s{96+d}, s67, {d}\ns_mul_i32 s{96+d}, s{96+d}, {JS}\ns_add_u32 s{96+d}, s{96+d}, {1024*d}")
    P(f"s_and_b32 s68, {sWV}, 2\ns_lshl_b32 s68, s68, 1\ns_add_u32 s50, s67, s68\ns_mul_i32 s50, s50, 18\ns_and_b32 s68, {sWV}, 1\ns_add_u32 s50, s50, s68\ns_lshl_b32 s50, s50, 10\ns_add_u32 s50, s50, {WS_S}")
    P(f"s_mul_i32 s101, s66, {4*JS}\ns_add_u32 s101, s101, {WS_FB - WS_FIN}")
    P(f"s_add_u32 s68, s66, 1\ns_cmp_ge_u32 s68, 3\ns_cselect_b32 s68, 0, s68\ns_lshl_b32 s69, s68, 2\ns_add_u32 s51, s69, s67\ns_mul_i32 s100, s68, {4*JS}\ns_add_u32 s100, s100, {WS_FB - WS_FIN}")
    P(f"s_mul_i32 s49, s67, {-JS}\ns_lshl_b32 s68, s66, 2\ns_lshl_b32 s53, 15, s68\ns_lshl_b32 s68, 1, {sSL}\ns_andn2_b32 s53, s53, s68\ns_mov_b32 s52, 0xf000")
    P(f"v_and_b32 v2, 31, v0\nv_lshlrev_b32 v2, 7, v2\nv_add_u32 v2, s54, v2\nv_bfe_u32 v3, v0, 1, 3\nv_lshrrev_b32 v4, 5, v0\nv_lshlrev_b32 v4, 2, v4\nv_xor_b32 v3, v3, v4\nv_lshlrev_b32 v3, 4, v3")
    P(f"v_add_u32 v80, v2, v3\nv_xor_b32 v81, 16, v80\nv_xor_b32 v82, 32, v80\nv_xor_b32 v83, 48, v80")
    for j in range(4): P(f"v_add_u32 v{84+j}, 98304, v{80+j}")
    SEL = 40
    sel32(P, SEL)
    P("v_mov_b32 v8, 0\nv_mov_b32 v9, 0\nv_mov_b32 v12, 0\nv_mov_b32 v13, 0\ns_mov_b32 s57, 0x3f803f80")
    P(f"s_waitcnt lgkmcnt(0)\ns_mul_i32 s0, s35, {192*1152}\ns_sub_u32 s1, {192*1152}, s0\ns_mov_b32 s74, {2048*576*2}\ns_mov_b32 s75, 0x20000")
    setup = P.l; P.l = []
    fr = [[(XR + 4 * (4 * S + f), (80 if S < 6 else 84) + f, ((S // 3) % 2) * 49152 + (S % 3) * 4096, 0) for f in range(4)] for S in range(9)]
    d0, d1, d2 = dma(0), dma(1), dma(2)
    xphase(P, setup, fr, [[8, 9]], [[12, 13]], {5: d0[:6], 6: d0[6:], 7: d1[:6], 8: d1[6:] + (d2[:6] if OPT['dpre'] == 3 else []), 9: d2[6:] if OPT['dpre'] == 3 else []})
    P("v_add_f32 v8, v8, v9\nv_add_f32 v12, v12, v13\nv_mov_b32 v9, v8\nv_mov_b32 v13, v12\nv_permlane32_swap_b32 v8, v9\nv_permlane32_swap_b32 v12, v13\nv_add_f32 v8, v8, v9\nv_add_f32 v12, v12, v13")
    def um(F): return mk(f"v_mfma_f32_32x32x16_bf16 {vr(ACC1+32+16*(F%2),16)}, {vr(SEL,4)}, {vr(XR+4*F,4)}, 0")
    def nv(F):
        d = ACC1 + 32 + 16 * (F % 2); x = XR + 4 * F
        o = []
        for j in range(8): o += mk(f"v_fma_f32 v{d+j}, v{d+j}, v2, v3")
        for j in range(4): o += mk(f"v_cvt_pk_bf16_f32 v{x+j}, v{d+2*j}, v{d+2*j+1}")
        return o
    P.add(um(0)); P.add(um(1))
    ln_stats(P, 'v8', 'v12', 'v4', 'v2', 'v3')
    P(f"v_mul_f32 v2, {hx(LOG2E)}, v2\nv_mul_f32 v3, v4, v2")

    uses = []
    for p in range(6):
        for st in range(3):
            s = 3 * p + st; slot = s % NSLOT
            for S in range(3):
                for ss in range(4):
                    F = st * 12 + S * 4 + ss
                    for u in range(2):
                        n = len(uses); af = AF + 4 * (n % 16)
                        off = (slot % 2) * RING + (64 * S + 8 * ss) * 128
                        va = vA1[u][slot // 2]
                        rd = mk(f"ds_read_b64_tr_b16 {ar(af,2)}, v{va} offset:{off}\nds_read_b64_tr_b16 {ar(af+2,2)}, v{va} offset:{off+512}", tag=f"r{n}")
                        acc = vr(ACC1 + 32 * (p % 2) + 16 * u, 16)
                        mf = mk(f"v_mfma_f32_32x32x16_bf16 {acc}, {ar(af,4)}, {vr(XR+4*F,4)}, {'0' if F == 0 else acc}")
                        uses.append((s, rd, mf))
    N1 = len(uses)
    ACC2 = XR; STG = XR + 128
    for si, (p, k) in enumerate(g2):
        s = 18 + si; slot = s % NSLOT
        for kk in range(6):
            ks = 6 * k + kk
            for u in range(2):
                n = len(uses); af = AF + 4 * (n % 16)
                off = (slot % 2) * RING + 32 * kk * 128
                va = vA2[u][slot // 2]
                rd = mk(f"ds_read_b64_tr_b16 {ar(af,2)}, v{va} offset:{off}\nds_read_b64_tr_b16 {ar(af+2,2)}, v{va} offset:{off+2048}", tag=f"r{n}")
                mf = []
                for j in (range(4) if not (OPT['snake'] and u) else range(3, -1, -1)):
                    acc = vr(ACC2 + 32 * (p % 4) + 8 * j + 4 * u, 4)
                    mf += mk(f"v_mfma_f32_16x16x32_bf16 {acc}, {ar(af,4)}, {ar(16*ks+4*j,4)}, {'0' if ks == 0 else acc}")
                uses.append((s, rd, mf))
    NU = len(uses)
    PD1, PD2 = OPT['pd1'], OPT['pd2']
    rd_at = {}
    for n in range(NU):
        if n < N1: g = n - PD1
        else:
            g = n - PD2
            if g < N1: g = N1 - 1 - 2 * (N1 - 1 - g)
        rd_at.setdefault(g, []).append(n)
    bar_at = {}
    for g in sorted(rd_at):
        for n in rd_at[g]:
            s = uses[n][0]
            if s not in bar_at: bar_at[s] = g
    extra_lw = {}
    def hw_tag(ks): return f"hw{ks}"
    def rstage(ks):
        p = ks // 2
        if p <= 3: return 3 * (p + 2) + 1
        if p == 4: return 19
        return 21
    for ks in range(1, 12, 2): extra_lw[rstage(ks)] = hw_tag(ks)
    def barrier(s):
        if s in extra_lw: return mk(f"WAITVL d{s}, {extra_lw[s]}\ns_barrier")
        return mk(f"WAITV d{s}\ns_barrier")
    P.add(barrier(0))
    for g in sorted(rd_at):
        if g < 0:
            for n in rd_at[g]: P.add(uses[n][1])
    P.add(nv(0))
    P("WAITL r3")
    stamp(P, 3)
    S16 = 16
    def ustart(p): return N1 + 12 * (6 + 2 * (p - 3))
    QP = {3: OPT['q3'], 4: OPT['q4'], 5: OPT['q5'], 6: 168 - OPT['lat1'], 7: 192 - OPT['lat1'], 8: 216 - OPT['lat1']}
    AP = {p: max(12 * (8 + 2 * (p - 3)), QP[p] + (OPT['lat0'] if p < 6 else OPT['lat1'])) for p in range(3, 9)}
    nacc = {N1 + AP[p]: p for p in range(3, 8)} if OPT['fuse'] else {}
    gacc = {}
    def HB(p): return 48 + 16 * (p % 2)
    def accum(dst, src, first=False):
        return mk(f"v_mfma_f32_16x16x32_bf16 {vr(dst,4)}, {vr(S16+2,4)}, {src}, {'0' if first else vr(dst,4)}\nv_mfma_f32_16x16x32_bf16 {vr(dst+4,4)}, {vr(S16,4)}, {src}, {'0' if first else vr(dst+4,4)}")
    def hopacc(p):
        L = []
        for j in range(4): L += accum(ACC2 + 32 * (p % 4) + 8 * j, vr(HB(p) + 4 * j, 4))
        return L[0::2] + L[1::2]
    SC = Sched()
    gi = {}
    gu = {}
    for n in range(NU):
        mf = uses[n][2]
        if n in nacc:
            SC.tail[-1] += mk(f"WAITV hl{nacc[n]}")
            for m_ in hopacc(nacc[n]): gacc[nacc[n]] = SC.gap([m_], 16)
        if n < 72 and n % 2 == 0 and n // 2 + 2 < 36:
            gu[n // 2 + 2] = SC.gap(um(n // 2 + 2), 32)
        bar = []
        for s, g in bar_at.items():
            if g == n: bar = barrier(s)
        rds = []
        for nn in rd_at.get(n, []): rds += uses[nn][1]
        if n < N1:
            g = SC.gap(mf, 32); gi[n] = g
            SC.mand[g] += bar + rds
            if n % 4 == 3 and n + 1 < N1: SC.tail[g] += mk(f"WAITL r{n+4}")
            if n == N1 - 1: SC.tail[g] += mk(f"WAITL r{n+2}")
        else:
            gs = [SC.gap([m], 16) for m in mf]; gi[n] = gs[0]
            if bar:
                SC.mand[gs[0]] += bar
                for i, t in enumerate(rds): SC.mand[gs[1 + i]].append(t)
            else:
                for i, t in enumerate(rds): SC.mand[gs[2 * i]].append(t)
            if (n - N1) % 2 == 1 and n + 1 < NU: SC.tail[gs[3]] += mk(f"WAITL r{n+2}")
    gi[NU] = len(SC.head)

    def silu(ks):
        p, u = ks // 2, ks % 2
        a = ACC1 + 32 * (p % 2) + 16 * u
        F = []
        T = [1, 2, 3, 4, 5, 6, 7, 46]
        stg = 8
        def E(q, j): return mk(f"v_exp_f32_e64 v{T[4*(q%2)+j]}, -v{a+4*q+j}")
        def Ad(q, j): return mk(f"v_add_f32 v{T[4*(q%2)+j]}, 1.0, v{T[4*(q%2)+j]}")
        def R(q, j): return mk(f"v_rcp_f32 v{T[4*(q%2)+j]}, v{T[4*(q%2)+j]}")
        def M(q, j): return mk(f"v_mul_f32 v{T[4*(q%2)+j]}, v{a+4*q+j}, v{T[4*(q%2)+j]}")
        def C(q):
            d = stg + 4 * (q % 2) + 2 * (q // 2); t = T[4*(q%2):4*(q%2)+4]
            o = mk(f"v_cvt_pk_bf16_f32 v{d}, v{t[0]}, v{t[1]}\nv_cvt_pk_bf16_f32 v{d+1}, v{t[2]}, v{t[3]}")
            if OPT['w64']: o += mk(f"ds_write_b64 v{vHW}, {vr(d,2)} offset:{(ks%4)*8192+512*(q%2)+8*(q//2)}", tag=hw_tag(ks), cost=OPT['w64'])
            elif q >= 2: o += mk(f"ds_write_b128 v{vHW}, {vr(stg+4*(q%2),4)} offset:{(ks%4)*8192+512*(q%2)}", tag=hw_tag(ks), cost=OPT['wcost'])
            return o
        for q in range(4):
            F += E(q, 0) + E(q, 1)
            F += E(q, 2) + Ad(q, 0) + Ad(q, 1)
            F += E(q, 3) + Ad(q, 2)
            F += R(q, 0) + Ad(q, 3)
            F += R(q, 1) + M(q, 0)
            F += R(q, 2) + M(q, 1)
            F += R(q, 3) + M(q, 2)
            c = C(q)
            F += [c[0]] + M(q, 3) + c[1:]
        return F
    def hread(ks):
        return flat([mk(f"ds_read_b128 {ar(16*ks+4*j,4)}, v{vHR} offset:{(ks%4)*8192+1024*j}", tag=f"hr{ks}") for j in range(4)])
    def epi(p):
        a = ACC2 + 32 * (p % 4)
        F = []
        for j in range(4):
            if OPT['fuse'] and p >= 6 and j == 0: continue
            for u in range(2):
                for h in range(2): F += mk(f"v_cvt_pk_bf16_f32 v{STG+4*j+2*u+h}, v{a+8*j+4*u+2*h}, v{a+8*j+4*u+2*h+1}")
            F += mk(f"buffer_store_dwordx4 {vr(STG+4*j,4)}, v{vST}, {sWS}, s{PS+p} offen offset:{1024*j}{STMOD if (p >= 6 or (p < 3 and OPT['hop0']) or OPT['hop1'] or not OPT['fuse']) else ''}", tag=f'st{p}', cost=8)
        return F

    for s in range(0, 33):
        g0 = gi[bar_at[s]] + 1 if bar_at[s] >= 0 else 0
        g1 = gi[bar_at[s + 1]]
        SC.place((dma(2) if (s == 0 and OPT['dpre'] == 2) else []) + dma(s + 3), g0, g1, 'spread', f'dma{s+3}')
    for ks in range(12):
        g0 = gi[bar_at[rstage(ks)]] + 1 + (ks % 2) * 8
        SC.place(hread(ks), g0, g0 + 8, 'spread', f'hr{ks}')
    if OPT['fuse']:
        SC.place(hsk[-1:] + mk(f"v_add_u32 v42, {32*9216}, v{vD1[0]}\nv_add_u32 v43, {32*9216}, v{vD1[1]}"), gi[68], gi[74], 'asap', 'hsk')
        SC.place(mk(f"buffer_load_dword v47, v{vFLW}, {sWS}, s37 offen sc1", tag='dummy', cost=8), gi[205], gi[215], 'asap', 'pfflag')
        SC.place(mk(f"s_lshl_b32 s66, {sM}, 4\nv_and_b32 v40, 3, v0\nv_lshl_add_u32 v40, v40, 2, s66") + mk(f"buffer_load_dword v41, v40, {sDBG}, 0 offen sc1", tag='hc', cost=8), gi[426], gi[N1], 'asap', 'hc')
    if OPT['pfw'] & 1: SC.place(pf_w(1), 20, 70, 'spread', 'pf1')
    if OPT['pfw'] & 2: SC.place(pf_w(2), gi[90], gi[400], 'spread', 'pf2')
    for F in range(1, 36):
        g0 = gu.get(F + 1, gi[2 * (F - 1)]); g1 = gi[2 * (F - 1) + 1] + 1
        SC.place(nv(F), g0, g1, 'asap', f'nv{F}')
    for p in range(5):
        b = 72 * (p + 1)
        SC.place(silu(2 * p) + silu(2 * p + 1), gi[b + 2], gi[b + 72], 'asap', f'silu{p}')
    SC.place(silu(10) + silu(11), gi[N1] + 6, gi[bar_at[21]] - 2, 'asap', 'silu5')
    last_stage = {}; gepi = {}
    for si, (p, k) in enumerate(g2):
        if k == 1: last_stage[p] = si
    for p in range(8):
        g0 = gi[N1 + 12 * (last_stage[p] + 1)] + 5
        if p in gacc: g0 = gacc[p] + 5
        if OPT['fuse'] and p in (1, 2): g0 = gi[N1 + OPT['e%d' % p]]
        gepi[p] = SC.place(epi(p), g0, g0 + (42 if not OPT['fuse'] else 30), 'spread' if not OPT['fuse'] else 'asap', f'epi{p}')[-1]
    slow = []
    def gs(si, off=0): return gi[N1 + 12 * si] + off
    if OPT['fuse']:
        vFR, vFV, vXO, vC = 28, 29, 30, 31
        def site(name, load, tag, chk, g0, g1):
            L = mk(f"WAITV {tag}") + mk(chk) + mk(f"s_cbranch_scc0 L_slow{name}\nL_back{name}:")
            head, tailp = L[:-4], L[-4:]
            pos = SC.place(head, g0, g1, 'asap', name)
            SC.fill[pos[-1] + 1] += tailp
            slow.extend(mk(f"L_slow{name}:\ns_mov_b32 s68, 0\nL_spin{name}:\n{load}\ns_waitcnt vmcnt(0)\n{chk}\ns_cbranch_scc1 L_back{name}\ns_sleep 1\ns_add_u32 s68, s68, 1\ns_cmp_lt_u32 s68, 0x80000\ns_cbranch_scc1 L_spin{name}\ns_branch L_back{name}", cond=True))
            return pos[-1] + 2
        hload = f"buffer_load_dword v41, v40, {sDBG}, 0 offen sc1"
        g = site('H', hload, 'hc', f"v_and_b32 v42, 0xff, v41\nv_cmp_le_u32 vcc, 4, v42\ns_and_b32 s66, vcc_lo, 15\ns_cmp_eq_u32 s66, 15", gi[bar_at[21]], gi[bar_at[21]] + 16)
        MD = mk(f"v_readlane_b32 s66, v41, s38\ns_lshr_b32 s67, s66, 4\ns_xor_b32 s66, s66, s67")
        pos = SC.place(MD, g, g + 12, 'asap', 'mode')
        fb = "s_or_b32 s66, s66, 0x1000\n" if OPT['forcefb'] else ""
        SC.fill[pos[-1] + 1] += mk(f"{fb}s_and_b32 s66, s66, 0xff000\ns_cselect_b32 s58, 0, 1\n{'s_cmp_eq_u32 0, 0' if OPT['hop1'] else ''}\ns_cselect_b32 s100, s100, {4*JS}\ns_cselect_b32 s101, s101, {4*JS}\ns_sub_u32 s59, s100, s101")
        gfix = SC.place(mk("\n".join(f"s_add_u32 s{PS+p}, s{PS+p}, s101" for p in range(6))), pos[-1] + 2, gs(4), 'asap', 'psfix')[-1]
        SQ = Prog()
        SQ(f"s_lshl_b32 s66, {sM}, 7\ns_and_b32 s67, {sWV}, 2\ns_lshl_b32 s67, s67, 5\ns_add_u32 s66, s66, s67\ns_and_b32 s67, {sSL}, 2\ns_lshl_b32 s67, s67, 4\ns_add_u32 s66, s66, s67\ns_and_b32 s67, {sSL}, 1\ns_add_u32 s66, s66, s67")
        SQ(f"v_lshrrev_b32 v40, 2, v0\nv_lshlrev_b32 v40, 1, v40\nv_add_u32 v40, s66, v40\nv_mul_u32_u24 v40, 1152, v40\nv_and_b32 v41, 3, v0\nv_lshlrev_b32 v41, 4, v41\ns_and_b32 s67, {sWV}, 1\ns_lshl_b32 s67, s67, 6\nv_add3_u32 v{vXO}, v40, v41, s67")
        XV = 92; vL1, vL2, vL3 = 1, 2, 3
        SQ(f"s_lshl_b32 s36, {sWV}, 13\ns_add_u32 s36, s36, {HX}")
        SQ(f"v_and_b32 v40, 15, v0\nv_lshrrev_b32 v41, 4, v0\nv_lshlrev_b32 v41, 3, v41\nv_add_u32 v41, s36, v41\nv_lshl_add_u32 v{vL1}, v40, 6, v41\nv_mul_u32_u24 v40, 80, v40\nv_add_u32 v{vL2}, v40, v41")
        SQ(f"v_lshrrev_b32 v40, 2, v0\nv_mul_u32_u24 v40, 80, v40\nv_and_b32 v41, 3, v0\nv_lshlrev_b32 v41, 4, v41\nv_add3_u32 v{vL3}, v40, v41, s36")
        for k in range(3): SQ(f"s_sub_u32 s{60+k}, s{PA+6+k}, s63")
        SQ(f"s_lshl_b32 s67, {sWV}, 11\ns_and_b32 s66, {sWV}, 2\ns_bfe_u32 s68, {sSL}, 0x10001\ns_add_u32 s66, s66, s68\ns_lshl_b32 s66, s66, 11")
        SQ(f"s_lshl_b32 s51, s51, 7\ns_add_u32 s51, s51, s67\ns_add_u32 s51, s51, {WS_FLAG + HFOFF}\nv_mov_b32 v43, s51")
        SQ(f"v_and_b32 v40, 15, v0\nv_mov_b32 v41, s67\nv_mov_b32 v42, s66\nv_cmp_gt_u32 vcc, 12, v40\nv_lshlrev_b32 v40, 7, v40\nv_add_u32 v40, {WS_FLAG}, v40\nv_cndmask_b32 v41, v42, v41, vcc\nv_add_u32 v{vFR}, v40, v41")
        SQ(f"s_or_b32 vcc_lo, s52, s53\ns_mov_b32 vcc_hi, 0\nv_mov_b32 v40, 2.0\nv_cndmask_b32 v{vFR}, v40, v{vFR}, vcc")
        sel_consts(SQ, S16, 'v40', 'v41', 'v42')
        SQ('s_mov_b32 s16, s24\ns_mov_b32 s17, s25\ns_mov_b32 s57, 0xffff0000')
        SQ('v_lshlrev_b32 v41, 3, v0')
        SC.place(SQ.l, gfix + 1, gs(6, 20), 'asap', 'tailsetup')
        fload = f"buffer_load_dword v{vFV}, v{vFR}, {sWS}, 0 offen sc1"
        def chk(thr, mask): return f"v_cmp_le_u32 vcc, {thr}, v{vFV}\ns_and_b32 s66, vcc_lo, {mask}\ns_cmp_eq_u32 s66, {mask}"
        def fstore(val): return mk(f"buffer_store_dword v{vC}, v{vFLW}, {sWS}, 0 offen sc1", tag=f'fl{val}', cost=8)
        for p in range(6):
            g = gepi[p] + 4 * (OPT['fd0'] if ((p < 3 and OPT['hop0']) or OPT['hop1']) else OPT['fd1'])
            pos = SC.place(mk(f"v_mov_b32 v{vC}, {p+1}") + mk(f"WAITV st{p}"), g, g + 20, 'asap', f'flag{p}')
            hst = f"buffer_store_dword v{vC}, v{vFLW}, {sWS}, s37 offen"
            SC.fill[pos[-1] + 1] += mk(f"s_cmp_eq_u32 s58, 0\ns_cbranch_scc1 L_rel{p}") + mk(hst, tag=f'fl{p+1}', cost=8) + mk(f"L_relb{p}:")
            slow.extend(mk(f"L_rel{p}:\nbuffer_wbl2 sc1\ns_waitcnt vmcnt(0)\n{hst} sc1\ns_branch L_relb{p}", cond=True))
        pload = f"buffer_load_dword v{vFV}, v43, {sWS}, 0 offen sc1"
        def hloads(p):
            L = mk(f"s_add_u32 s69, s{PS+p}, {'s59' if p < 6 else 's100'}")
            for j in range(4): L += mk(f"buffer_load_dwordx4 {vr(HB(p)+4*j,4)}, v{vST}, {sWS}, s69 offen offset:{1024*j} sc1", tag=f"hl{p}", cost=8)
            return L
        ghl = {}
        for p in range(3, 9):
            u0 = N1 + QP[p]
            SC.place(mk(pload, tag=f'pp{p}', cost=8), gi[u0 - 1], gi[u0 + 1], 'asap', f'pp{p}')
            ck = f"v_cmp_le_u32 vcc, {p-2}, v{vFV}"
            pos = SC.place(mk(f"WAITV pp{p}") + mk(ck), gi[u0 + OPT['pchk']], gi[u0 + OPT['pchk'] + 1], 'asap', f'chk{p}')
            SC.fill[pos[-1] + 2] += mk(f"s_cbranch_vccz L_slowP{p}\nL_backP{p}:")
            slow.extend(mk(f"L_slowP{p}:\n" + (f"s_add_u32 s93, s93, {1 << (4*(p-3))}\n" if OPT['stamp'] else "") + f"s_mov_b32 s68, 0\nL_spinP{p}:\n{pload}\ns_waitcnt vmcnt(0)\n{ck}\ns_add_u32 s68, s68, 1\ns_nop 4\ns_cbranch_vccnz L_backP{p}\ns_cmp_lt_u32 s68, 0x80000\ns_cbranch_scc1 L_spinP{p}\ns_branch L_backP{p}", cond=True))
            ghl[p] = SC.place(hloads(p), pos[-1] + 3, gi[u0 + OPT['pchk'] + 5], 'asap', f'hl{p}')[-1]
        sQ = 's[16:19]'
        RS = [80, 84, 88]
        def sloads(srd, tag, cond=False):
            L = []
            for k in range(3):
                L += mk(f"s_lshl_b32 s69, s{60+k}, 4\ns_add_u32 s69, s69, s50", cond=cond)
                for u in range(2): L += mk(f"buffer_load_dwordx2 {vr(RS[k]+2*u,2)}, v41, {srd}, s69 offen offset:{512*u} sc1", tag=tag, cond=cond, cost=8)
            return L
        L = []
        for k in range(3): L += mk(f"s_add_u32 m0, s36, {1024*k}") + mk(f"buffer_load_dwordx4 v{vXO}, {sX}, s{60+k} offen lds", tag='xo', cost=8)
        L += mk(f"buffer_load_dword v42, v{vFR}, {sWS}, 0 offen sc1", tag='p0', cost=8)
        SC.place(L, max(ghl[7], gi[bar_at[33]]) + 1, ghl[7] + 30, 'asap', 'p0')
        pos = SC.place(mk("WAITV p0\nv_cmp_le_u32 s[70:71], 9, v42"), ghl[8] - 6, ghl[8] + 8, 'asap', 'chkS')
        SC.fill[pos[-1] + 1] += mk(f"s_and_b32 s66, s70, s52\ns_cmp_eq_u32 s66, s52\ns_cselect_b32 s18, {WS_BYTES}, 0\ns_cselect_b32 s54, 1, 0")
        L = []
        for k in range(3):
            for u in range(2): L += mk(f"ds_read_b64 {vr(XV+4*k+2*u,2)}, v{vL1} offset:{1024*k+32*u}", tag='xr')
        SC.place(L, pos[-1] + 2, gs(17, 30), 'asap', 'xr')
        g = SC.place(sloads(sQ, 'ls') + mk(fload, tag='p1', cost=8), max(ghl[8] + 1, pos[-1] + 2), gs(17, 40), 'asap', 'ls')[-1]
        SC.place(mk(f"v_mov_b32 v{vC}, 8") + mk("WAITV st7") + fstore(8), max(g + 1, gs(17, 32)), len(SC.head), 'asap', 'flag8')
    print("; gemm2 per-stage planned cycles:", [sum(16 + max(0, SC.used(g) - SC.cap[g]) for g in range(gs(i), gs(i + 1) if i < 17 else len(SC.head))) for i in range(18)], file=sys.stderr)
    print("; overflow cycles: pass0 %d, pass1-5 %d, gemm2 %d" % (SC.overflow(0, gi[72]), SC.overflow(gi[72], gi[N1]), SC.overflow(gi[N1])), file=sys.stderr)
    marks = [gi[72], gi[144], gi[N1], gi[N1 + 72]]
    ids = [4, 5, 6, 7]
    if OPT['marks'] == 2:
        marks = [gs(12), gs(13), gs(14), gs(15), gs(16), gs(17), len(SC.head)]; ids = [1, 2, 3, 4, 5, 6, 7]
    if OPT['marks'] == 3:
        marks = [gs(6), gs(7), gs(8), gs(9), gs(10), gs(11), gs(12)]; ids = [1, 2, 3, 4, 5, 6, 7]
    if OPT['marks'] == 5:
        marks = [gs(0), gs(1), gs(2), gs(3), gs(4), gs(5), gs(6)]; ids = [1, 2, 3, 4, 5, 6, 7]
    if OPT['marks'] == 6:
        marks = [gi[72], gi[144], gi[216], gi[288], gi[360], gi[N1]]; ids = [2, 3, 4, 5, 6, 7]
    if OPT['marks'] == 1:
        marks = [gs(0), gs(6), gs(8), gs(10), gs(12), gs(14), gs(16)]; ids = [1, 2, 3, 4, 5, 6, 7]
    prev = 0
    for i, g in zip(ids, marks):
        P.add(SC.emit(prev, g)); stamp(P, i); prev = g
    P.add(SC.emit(prev))
    if OPT['fuse']:
        P("WAITV hl8"); P.add(hopacc(8))
    P.add(epi(8))
    k0 = [i for i, x in enumerate(P.l) if x.text.startswith('WAITL r3')][0]
    def keep(x):
        if OPT['nosilu'] and x.base in ('v_exp_f32', 'v_rcp_f32', 'v_add_f32', 'v_mul_f32'): return False
        if OPT['nodma'] and x.kind == 'vmem' and 'lds' in x.mods: return False
        if OPT['nodma'] and x.op == 'WAITV': return False
        if OPT['nobar'] and x.kind == 'bar': return False
        if OPT['nost'] and (x.tag or '').startswith('st'): return False
        return True
    def fix(x):
        if OPT['nodma'] and x.op == 'WAITVL': return I('WAITL ' + x.ops[1])
        return x
    P.l = P.l[:k0] + [fix(x) for x in P.l[k0:] if keep(x)]
    stamp(P, 8)
    if OPT['fuse']:
        G = [ACC2 + 32 * ((6 + k) % 4) for k in range(3)]
        SS = [g + 8 for g in G]
        XU = 144
        def cloads(ks, srd, tag, cond=False):
            for k in ks:
                P(f"s_add_u32 s67, s{PS+6+k}, s49", cond=cond)
                for d in range(1, 4): P(f"s_add_u32 s69, s67, s{96+d}\nbuffer_load_dwordx4 {ar(12*k+4*(d-1),4)}, v{vST}, {srd}, s69 offen sc1", tag=tag, cond=cond)
        def spin(name, thr, mask):
            P(f"s_mov_b32 s68, 0\nL_spin{name}:", cond=True)
            P(fload + "\ns_waitcnt vmcnt(0)\n" + chk(thr, mask) + f"\ns_cbranch_scc1 L_done{name}\ns_sleep {OPT['slp']}\ns_add_u32 s68, s68, 1\ns_cmp_lt_u32 s68, 0x80000\ns_cbranch_scc1 L_spin{name}\nL_done{name}:", cond=True)
        def unitT(ks, acc=True):
            for k in (ks if acc else []):
                for d in range(3): P.add(accum(G[k], ar(12 * k + 4 * d, 4)))
            for k in ks:
                g_, t_ = G[k], G[k] + 16
                for i in range(8): P(f"v_exp_f32_e64 v{t_+i}, -v{g_+i}")
                for i in range(8): P(f"v_fma_f32 v{t_+i}, v{t_+i}, s71, s71")
                for i in range(8): P(f"v_rcp_f32 v{t_+i}, v{t_+i}")
                for i in range(8): P(f"v_mul_f32 v{g_+i}, v{g_+i}, v{t_+i}")
        P("WAITV p1\n" + chk(8, 's53') + f"\ns_cselect_b32 s18, {WS_BYTES}, 0\ns_cselect_b32 s55, 1, 0")
        cloads([0, 1], sQ, 'lc0')
        P(chk(9, 's53') + f"\ns_cselect_b32 s18, {WS_BYTES}, 0\ns_cselect_b32 s56, 1, 0")
        cloads([2], sQ, 'lc2')
        P(f"v_mov_b32 v{vC}, 9\ns_mov_b32 s71, {hx(LOG2E)}")
        for d in range(12): P(f"v_lshlrev_b32 v{XU+2*d}, 16, v{XV+d}\nv_and_b32 v{XU+2*d+1}, s57, v{XV+d}")
        P("WAITV st8"); P.add(fstore(9)); stamp(P, 12)
        P("s_cmp_eq_u32 s54, 1\ns_cbranch_scc1 L_chk8")
        P(chk(9, 's52') + "\ns_cbranch_scc0 L_chk8\ns_mov_b32 s54, 1", cond=True)
        P.add(sloads(sWS, 'ls1', True))
        P("L_chk8:")
        P("s_cmp_eq_u32 s55, 1\ns_cbranch_scc1 L_have8")
        spin('8', 8, 's53')
        cloads([0, 1], sWS, 'lc0b', True)
        P(chk(9, 's53') + f"\ns_cselect_b32 s18, {WS_BYTES}, 0\ns_cselect_b32 s56, 1, 0", cond=True)
        cloads([2], sQ, 'lc2c', True); P("s_waitcnt vmcnt(3)", cond=True)
        P("L_have8:")
        P(fload, tag='p2')
        P("WAITV lc0")
        stamp(P, 9)
        unitT([0, 1])
        P("s_waitcnt vmcnt(0)")
        P("s_cmp_eq_u32 s54, 1\ns_cbranch_scc1 L_chk9")
        P(chk(9, 's52') + "\ns_cbranch_scc0 L_chk9\ns_mov_b32 s54, 1", cond=True)
        P.add(sloads(sWS, 'ls2', True))
        P("L_chk9:")
        P("s_cmp_eq_u32 s56, 1\ns_cbranch_scc0 L_no9\ns_waitcnt vmcnt(0)\ns_branch L_have9\nL_no9:")
        P(chk(9, 's53') + "\ns_cbranch_scc1 L_done9", cond=True)
        spin('9', 9, 's53')
        cloads([2], sWS, 'lc2b', True); P("s_waitcnt vmcnt(3)", cond=True)
        P("L_have9:")
        stamp(P, 10)
        P("s_cmp_eq_u32 s54, 1\ns_cbranch_scc1 L_haveS")
        spin('S', 9, 's52')
        P.add(sloads(sWS, 'ls3', True)); P("s_waitcnt vmcnt(0)", cond=True)
        P("L_haveS:")
        def fin(k):
            g_, s_, pk = G[k], SS[k], G[k] + 24
            for i in range(8): P(f"v_fma_f32 v{g_+i}, v{g_+i}, v{s_+i}, v{XU+8*k+i}")
            for d in range(4): P(f"v_cvt_pk_bf16_f32 v{pk+d}, v{g_+2*d}, v{g_+2*d+1}")
            P(f"ds_write_b64 v{vL2}, {vr(pk,2)} offset:{4096+1280*k}\nds_write_b64 v{vL2}, {vr(pk+2,2)} offset:{4096+1280*k+32}", tag=f'ow{k}')
            P(f"ds_read_b128 {vr(pk+4,4)}, v{vL3} offset:{4096+1280*k}", tag=f'or{k}')
        def ost(k): P(f"WAITL or{k}\nbuffer_store_dwordx4 {vr(G[k]+28,4)}, v{vXO}, s[72:75], s{60+k} offen{['', ' sc1', ' nt'][OPT['omod']]}")
        for k in range(3):
            for d in range(4): P(f"v_lshlrev_b32 v{SS[k]+2*d}, 16, v{RS[k]+d}\nv_and_b32 v{SS[k]+2*d+1}, s57, v{RS[k]+d}")
        fin(0); fin(1)
        P("s_waitcnt vmcnt(0)")
        for d in range(3): P.add(accum(G[2], ar(24 + 4 * d, 4)))
        ost(0); ost(1)
        unitT([2], False)
        fin(2); ost(2)
        stamp(P, 11)
    stamp_flush(P, 12)
    P("s_endpgm")
    P.add(slow)
    return P.l

def attn():
    P = Prog()
    P("s_endpgm")
    return P.l

def final():
    P = Prog()
    P("s_endpgm")
    return P.l

def finish(lst):
    lst = resolve_waits(ungroup(lst))
    lst, nfix = fix_hazards(lst, OPT['verbose'])
    errs = check_scoreboard(lst)
    for e in errs[:20]: print("; SCOREBOARD ERR", e, file=sys.stderr)
    assert not errs
    lst, mis, sz = align_pass(lst)
    print(f"; hazard nops inserted: {nfix}, instrs: {len(lst)}, misaligned {mis}, bytes {sz}", file=sys.stderr)
    return lst

def main():
    try:
        import gen_attn
    except ImportError:
        gen_attn = None
    P0 = Prog(); common_prologue(P0)
    f = finish(P0.l + ffn())[:]
    a = finish(P0.l + (gen_attn.attn(globals()) if gen_attn and OPT['attn'] else attn()))
    a = a[[i for i, x in enumerate(a) if x.text.startswith('s_cbranch_scc1 L_attn')][0] + 1:]
    k2 = finish(gen_attn.final(globals()) if gen_attn else final())
    out = []
    MK = NAME + "_kernel" if OPT['fuse'] else "main_kernel"
    if OPT['fuse']: out.append(f"; @launch grid=(256,1,1) block=(256,1,1) lds={LDS_BYTES}")
    else:
        out.append(f"; @launch kernel=main_kernel grid=(256,1,1) block=(256,1,1) lds={LDS_BYTES}")
        out.append(f"; @launch kernel=final_kernel grid=(576,1,1) block=(256,1,1) lds=0")
    out.append('.amdgcn_target "amdgcn-amd-amdhsa--gfx950"\n.text')
    out.append(f".globl {MK}\n.p2align 8\n.type {MK},@function\n{MK}:\nL_main_start:")
    out += [x.text for x in f]
    out.append(".p2align 6\nL_attn:")
    out += [x.text for x in a]
    out.append("L_exit:\ns_endpgm\nL_main_end:")
    if not OPT['fuse']:
        out.append(".globl final_kernel\n.p2align 8\n.type final_kernel,@function\nfinal_kernel:")
        out += [x.text for x in k2]
    out.append('.section .rodata,"a"')
    for nm, nv, ao in ((MK, 512, 256), ("final_kernel", 96, 96))[:1 if OPT['fuse'] else 2]:
        out.append(f".p2align 6\n.amdhsa_kernel {nm}\n  .amdhsa_next_free_vgpr {nv}\n  .amdhsa_next_free_sgpr 102\n  .amdhsa_accum_offset {ao}\n  .amdhsa_group_segment_fixed_size 0\n  .amdhsa_kernarg_size 72\n  .amdhsa_user_sgpr_count 2\n  .amdhsa_user_sgpr_kernarg_segment_ptr 1\n  .amdhsa_system_sgpr_workgroup_id_x 1\n  .amdhsa_float_denorm_mode_32 3\n.end_amdhsa_kernel")
    txt = "\n".join(out) + "\n"
    import subprocess, re as _re, tempfile, os
    d = tempfile.mkdtemp()
    open(d + "/a.s", "w").write(txt.replace("CODE_PF_MAX", "0x12345"))
    r = subprocess.run(["clang", "-x", "assembler", "-target", "amdgcn-amd-amdhsa", "-mcpu=gfx950", "-c", d + "/a.s", "-o", d + "/a.o"], capture_output=True, text=True)
    assert r.returncode == 0, r.stderr
    sy = subprocess.run(["llvm-readelf", "-s", d + "/a.o"], capture_output=True, text=True).stdout
    def sym(n): return int([l for l in sy.splitlines() if l.strip().endswith(" " + n)][0].split()[1], 16)
    size = sym("L_main_end") - sym("L_main_start")
    print(f"; main code bytes {size}, attn at {sym('L_attn')}", file=sys.stderr)
    print(txt.replace("CODE_PF_MAX", str(size - 1024)))

if __name__ == "__main__":
    main()
```

```python
import sys
from asmlib import *

def attn(G):
    globals().update({k: v for k, v in G.items() if not k.startswith('__') and k not in ('attn', 'final')})
    P = Prog()
    ARING = 18432; ANS = 8
    ACC = 40; XR = 112; AF = 192
    KO, KP, VV = 0, 36, 72
    vDQ = [16, 17, 18, 19, 20]; vDW = [21, 22, 23, 24, 25]
    vRX = [26, 27, 28]; vRR = [29, 30, 31]
    vST, vFL = 32, 33
    vFLW = 39
    sG = sSL
    TQ = 58
    TW = 67
    TS = 40
    sLB = 's3'
    sHS = 's[8:11]'
    sFS = 's[4:7]'
    HOFF = 's100'
    P(f"s_and_b32 {sG}, s39, 3")
    P(f"s_mov_b32 s16, s6\ns_mov_b32 s17, s7\ns_mov_b32 s18, {576*1728*2}\ns_mov_b32 s19, 0x20000")
    if OPT['pf0']:
        P(f"s_lshl_b32 s99, s50, 2\ns_add_u32 s99, s99, {sWV}\ns_mul_i32 s99, s99, {16*3456}\ns_mul_i32 s61, {sG}, 288\ns_add_u32 s99, s99, s61\ns_add_u32 s99, s99, 1152")
        P(f"v_lshrrev_b32 v7, 2, v0\nv_mul_u32_u24 v7, 3456, v7\nv_and_b32 v4, 3, v0\nv_mul_u32_u24 v4, 92, v4\nv_add_u32 v7, v7, v4")
        P(f"buffer_load_dword v47, v7, {sWA}, s99 offen", tag='dummy')
    P(f"s_mov_b32 s20, s8\ns_mov_b32 s21, s9\ns_mov_b32 s22, {576*576*2}\ns_mov_b32 s23, 0x20000")
    if OPT['fuse']:
        P(f"s_add_u32 s96, {sG}, 12")
        flag_setup(P, vFLW, 's96', 'v21', True)
        hsk = handshake('s96', 'v1', 'v38')
        P.add(hsk[:-1])
    P(f"s_mul_i32 s49, {sWV}, 9\ns_lshr_b32 s49, s49, 1\ns_lshl_b32 {sLB}, s49, 10")
    P(f"s_mul_i32 s51, {sG}, 288")
    for st in range(9):
        P(f"s_mul_i32 s{TQ+st}, s50, {64*3456}\ns_add_u32 s{TQ+st}, s{TQ+st}, s51")
        if st < 8: P(f"s_add_u32 s50, s50, 1\ns_cmp_eq_u32 s50, 9\ns_cselect_b32 s50, 0, s50")
    P(f"s_mov_b32 s96, {-(-(1<<32)//18)}\ns_lshl_b32 s97, s49, 6\ns_mov_b32 s98, 3456")
    for n in range(5):
        imm = 1024 * n if n < 4 else 0
        P(f"v_add_u32 v2, s97, v0")
        if n < 4: P(f"s_add_u32 s97, s97, 64")
        P(f"v_mul_hi_u32 v3, v2, s96\nv_mul_u32_u24 v4, 18, v3\nv_sub_u32 v2, v2, v4\nv_lshlrev_b32 v2, 4, v2")
        P(f"v_and_b32 v4, 35, v3\nv_bfe_u32 v5, v3, 2, 2\nv_lshl_add_u32 v4, v5, 3, v4\nv_bfe_u32 v5, v3, 4, 1\nv_lshl_add_u32 v4, v5, 2, v4")
        P(f"v_mad_u32_u24 v{vDQ[n]}, v4, s98, v2")
        if imm: P(f"v_subrev_u32 v{vDQ[n]}, {imm}, v{vDQ[n]}")
    D = Prog()
    D(f"v_lshlrev_b32 v{vST}, 4, v0\ns_lshl_b32 s96, {sG}, 2\ns_add_u32 s96, s96, {sWV}\ns_mul_i32 {HOFF}, s96, {18*1024}\ns_add_u32 {HOFF}, {HOFF}, {WS_KV}")
    D(f"s_min_u32 s97, {sWV}, 1\ns_min_u32 s96, {sM}, 1\ns_andn2_b32 s96, s96, s97")
    D(f"s_mul_i32 s97, s97, {18*1024}\ns_sub_u32 s8, {HOFF}, s97\ns_mul_i32 s97, s96, {BB - 3*18*1024}\ns_sub_u32 s8, s8, s97\ns_xor_b32 s96, s96, 1\ns_lshl_b32 s9, s96, 30")
    D(f"s_lshl_b32 s96, {sG}, 7\ns_add_u32 s96, s96, {WS_FLAG - BB + 3*2048 + 12*128}\ns_add_u32 s96, s96, s9\nv_mov_b32 v1, s96\nv_mov_b32 v38, 1")
    nD0 = len(D.l)
    OO = TW + 4
    D(f"s_lshl_b32 s53, {sM}, 2")
    for d in range(4):
        D(f"s_xor_b32 s52, {sG}, {d}\ns_mul_i32 s{TW+d}, s52, {144*1152}\ns_add_u32 s{TW+d}, s{TW+d}, s51")
        D(f"s_lshl_b32 s52, s52, 2\ns_add_u32 s52, s52, {sWV}\ns_mul_i32 s{OO+d}, s52, 9216\ns_add_u32 s{OO+d}, s{OO+d}, {WS_O}")
    D(f"s_mul_i32 s40, {sWV}, 72\ns_mul_i32 s52, {sG}, 9\ns_add_u32 s40, s40, s52\ns_lshl_b32 s40, s40, 9\ns_add_u32 s40, s40, {WS_S}")
    def wvoff(Q, dst, last):
        Q(f"s_mov_b32 s96, {-(-(1<<32)//18)}\ns_lshl_b32 s97, s49, 6\ns_mov_b32 s98, 1152")
        for n in range(5):
            imm = (1024 * n if n < 4 else 0)
            Q(f"v_add_u32 v34, s97, v0")
            if n < 4: Q(f"s_add_u32 s97, s97, 64")
            Q(f"v_mul_hi_u32 v35, v34, s96\nv_mul_u32_u24 v36, 18, v35\nv_sub_u32 v34, v34, v36\nv_lshlrev_b32 v34, 4, v34\nv_lshrrev_b32 v36, 4, v35")
            if not last: Q(f"v_add_u32 v36, 1, v36\nv_and_b32 v36, 6, v36\nv_lshl_add_u32 v35, v36, 1, v35")
            else: Q(f"v_xor_b32 v36, {sG}, v36\nv_mul_u32_u24 v36, 144, v36\nv_bfe_u32 v37, v35, 2, 2\nv_mad_u32_u24 v36, v37, 36, v36\nv_and_b32 v35, 3, v35\nv_add3_u32 v35, v35, v36, 16")
            Q(f"v_mad_u32_u24 v{dst[n]}, v35, s98, v34")
            if imm: Q(f"v_subrev_u32 v{dst[n]}, {imm}, v{dst[n]}")
    wvoff(D, vDW, False)
    if OPT['pfwo']:
        D(f"s_add_u32 s96, s53, {sG}\ns_mul_i32 s96, s96, 81\ns_mul_i32 s97, {sWV}, 20\ns_add_u32 s96, s96, s97\ns_lshl_b32 s96, s96, 7\nv_min_u32 v34, 20, v0\nv_lshlrev_b32 v34, 7, v34")
        D(f"buffer_load_dword a191, v34, {sWB}, s96 offen", tag='dummy', cost=8)
    PCOL = [1152, 2304, 0]
    def slotof(s): return s % ANS
    WORD = [(0, 0), (0, 1), (1, 0), (2, 0), (3, 0), (1, 1), (2, 1), (3, 1)]
    def dma(s):
        slot = slotof(s) * ARING
        if s < 18: srd, vD, pre, so = sWA, vDQ, f"\ns_add_u32 s99, s{TQ + s % 9}, {PCOL[s // 9]}", 's99'
        elif s < 27: srd, vD, pre, so = sWA, vDQ, "", f"s{TQ + s % 9}"
        elif s < 35 and WORD[s - 27][1] == 0: srd, vD, pre, so = sWB, vDW, "", f"s{TW + WORD[s - 27][0]}"
        elif s < 35: srd, vD, pre, so = sWB, vDW, f"\ns_add_u32 s10, s{TW + WORD[s - 27][0]}, {72*1152}", 's10'
        else: srd, vD, pre, so = sWB, vDQ, "", 's41'
        t = f"d{s}"
        L = mk(f"s_add_u32 m0, {sLB}, {slot}{pre}")
        for n in range(4): L += mk(f"buffer_load_dwordx4 v{vD[n]}, {srd}, {so} offen offset:{1024*n} lds", tag=t, cost=8)
        L += mk(f"s_add_u32 m0, {sLB}, {slot+4096}")
        L += mk(f"buffer_load_dwordx4 v{vD[4]}, {srd}, {so} offen lds", tag=t, cost=8)
        return L
    P(f"v_lshrrev_b32 v2, 2, v0\nv_mul_u32_u24 v2, 288, v2\nv_and_b32 v3, 3, v0\nv_lshl_add_u32 v{vRX[0]}, v3, 3, v2")
    P(f"v_mul_u32_u24 v4, 72, v3\nv_add3_u32 v{vRR[0]}, v2, v4, 32")
    for b_ in (1, 2): P(f"v_add_u32 v{vRX[b_]}, {3*b_*ARING}, v{vRX[0]}\nv_add_u32 v{vRR[b_]}, {3*b_*ARING}, v{vRR[0]}")
    P(f"v_and_b32 v2, 15, v0\nv_lshlrev_b32 v2, 7, v2\nv_add_u32 v2, s54, v2\nv_bfe_u32 v3, v0, 1, 3\nv_lshrrev_b32 v4, 4, v0\nv_xor_b32 v3, v3, v4")
    P(f"v_lshl_add_u32 v34, v3, 4, v2\nv_xor_b32 v35, 64, v34\nv_add_u32 v36, 98304, v34\nv_add_u32 v37, 98304, v35")
    SEL = 40
    sel_consts(P, 48, 'v2', 'v3', 'v4')
    for r in range(6): P(f'v_accvgpr_write_b32 a{144+r}, v{48+r}')
    for r in range(8, 16): P(f"v_mov_b32 v{r}, 0")
    P("s_mov_b32 s57, 0x3f803f80")
    setup = P.l; P.l = []
    fr = [[(XR + 8 * (2 * S + f // 2) + 4 * (f % 2), (34 if S < 6 else 36) + (f // 2), ((S // 3) % 2) * 49152 + (S % 3) * 4096 + (f % 2) * 2048, f % 2) for f in range(4)] for S in range(9)]
    xphase(P, setup, fr, [[8, 9], [10, 11]], [[12, 13], [14, 15]], {5: dma(0), 7: dma(1), 9: dma(2)})
    DB = [[8, 12], [22, 32]]
    def um(F, db=None):
        d = db or DB[F % 2]
        return mk(f"v_mfma_f32_16x16x32_bf16 {vr(d[0],4)}, a[146:149], {vr(XR+4*F,4)}, 0\nv_mfma_f32_16x16x32_bf16 {vr(d[1],4)}, a[144:147], {vr(XR+4*F,4)}, 0")
    def nv(F, db=None):
        d = db or DB[F % 2]; x = XR + 4 * F; r = [d[0] + j for j in range(4)] + [d[1] + j for j in range(4)]
        return mk("\n".join(f"v_fma_f32 v{q}, v{q}, v{2+F%2}, v{4+F%2}" for q in r) + "\n" + "\n".join(f"v_cvt_pk_bf16_f32 v{x+j}, v{r[2*j]}, v{r[2*j+1]}" for j in range(4)))
    for a in (8, 10, 12, 14): P(f"v_add_f32 v{a}, v{a}, v{a+1}")
    P.add(um(0, [48, 52])); P.add(um(1, [56, 60])); P.add(um(2, [64, 68]))
    for sw in ('32', '16'):
        for a in (8, 10, 12, 14): P(f"v_mov_b32 v{a+1}, v{a}")
        for a in (8, 10, 12, 14): P(f"v_permlane{sw}_swap_b32 v{a}, v{a+1}")
        for a in (8, 10, 12, 14): P(f"v_add_f32 v{a}, v{a}, v{a+1}")
    A1 = Prog(); ln_stats(A1, 'v8', 'v12', 'v4', 'v2', None)
    A2 = Prog(); ln_stats(A2, 'v10', 'v14', 'v5', 'v3', None)
    for a, b in zip(A1.l, A2.l): P.add([a, b])
    P("v_mul_f32 v4, v4, v2\nv_mul_f32 v5, v5, v3")
    uses = []
    for ps in range(3):
        for ks in range(18):
            s = 9 * ps + ks // 2; slot = s % ANS
            for j in range(9):
                n = len(uses); af = AF + 4 * (n % 16)
                off = (slot % 3) * ARING + (ks & 1) * 9216 + (36 * j + 4 * (j & 1) if j < 8 else 0)
                va = (vRX if j < 8 else vRR)[slot // 3]
                rd = mk(f"ds_read_b64_tr_b16 {ar(af,2)}, v{va} offset:{off}\nds_read_b64_tr_b16 {ar(af+2,2)}, v{va} offset:{off+4608}", tag=f"r{n}")
                mf = []
                for Pp in range(2):
                    acc = vr(ACC + 8 * j + 4 * Pp, 4); x = vr(XR + 8 * ks + 4 * Pp, 4)
                    a, b = (ar(af, 4), x) if ps != 1 else (x, ar(af, 4))
                    mf += mk(f"v_mfma_f32_16x16x32_bf16 {acc}, {a}, {b}, {'0' if ks == 0 else acc}")
                uses.append((s, rd, mf))
    NQ = len(uses); PD = 5
    BARS = [0, 1] + list(range(2, 27, 2))
    extra_w = {2: 'fz', 16: 'hs0', 22: 'hs1'}
    def barrier(s):
        L = mk(f"WAITV d{s if (s < 2 or s >= 26) else s + 1}")
        if s in extra_w: L += mk(f"WAITV {extra_w[s]}")
        return L + mk("s_barrier")
    P.add(barrier(0))
    for n in range(PD): P.add(uses[n][1])
    P.add(nv(0, [48, 52])); P.add(nv(1, [56, 60])); P.add(nv(2, [64, 68]))
    P("WAITL r2")
    stamp(P, 3)
    SC = Sched(); gi = {}; gbar = {0: -1}; gst = {}; gu = {}
    for n in range(NQ):
        mf = uses[n][2]
        if n % 9 in (0, 5):
            F = 2 * (n // 9) + (n % 9) // 5 + 3
            if F < 36:
                for m_ in um(F): gu[F] = SC.gap([m_], 16)
        g0 = SC.gap([mf[0]], 16); g1 = SC.gap([mf[1]], 16); gi[n] = g0
        if n + PD < NQ:
            s_ = uses[n + PD][0]
            if s_ != uses[n + PD - 1][0]: gst[s_] = g0
            if s_ != uses[n + PD - 1][0] and s_ in BARS:
                SC.mand[g0] += barrier(s_); gbar[s_] = g0
                SC.mand[g1] += uses[n + PD][1]
            else: SC.mand[g0] += uses[n + PD][1]
        if n % 3 == 2 and n + 1 < NQ: SC.tail[g1] += mk(f"WAITL r{n+3}")
    gi[NQ] = len(SC.head); gbar[28] = gst[27] = len(SC.head)
    stg = [8, 12]
    for ps in range(2):
        for j in range(9):
            nlast = 162 * ps + 153 + j
            d = stg[j % 2]; a = ACC + 8 * j
            L = mk("\n".join(f"v_cvt_pk_bf16_f32 v{d+q}, v{a+2*q}, v{a+2*q+1}" for q in range(4)))
            g = gi[nlast + 5]
            SC.fill[g] += L[:1]; SC.fill[g + 1] += L[1:]
            dst = [KO + 4 * j + q for q in range(4)] if ps == 0 else [VV + 8 * j + q for q in (0, 1, 6, 7)]
            L = mk("\n".join(f"v_accvgpr_write_b32 a{dst[q]}, v{d+q}" for q in range(4)))
            if ps == 1:
                if j % 4 == 0: L += mk(f"s_add_u32 s101, {HOFF}, {(9*ps+j)*1024}")
                L += mk(f"buffer_store_dwordx4 {vr(d,4)}, v{vST}, {sWS}, s101 offen offset:{1024*(j%4)} sc1", tag=f"hs{ps}", cost=8)
            SC.fill[g + 2] += L[:2]; SC.fill[g + 3] += L[2:]
    SC.place(dma(3) + dma(4), 0, gbar[1], 'spread', 'dma3')
    SC.place(dma(5) + dma(6), gbar[1] + 1, gbar[2], 'spread', 'dma5')
    for s in range(2, 27, 2): SC.place(dma(s + 5) + dma(s + 6), gbar[s] + 1, gbar[s + 2], 'spread', f'dma{s+5}')
    for F in range(3, 36):
        SC.place(nv(F), gu[F] + 3, (gu[F + 1] + 3) if F < 35 else gu[F] + 15, 'asap', f'nv{F}')
    SC.place(hsk[-1:], gbar[2] + 1, gbar[2] + 12, 'asap', 'hsk')
    g = SC.place(D.l[:nD0], gst[10], gst[12], 'asap', 'deferred0')[-1]
    L = []
    for j in range(9):
        if j % 4 == 0: L += mk(f"s_add_u32 s101, {HOFF}, {j*1024}")
        L += mk(f"buffer_store_dwordx4 {ar(KO+4*j,4)}, v{vST}, {sWS}, s101 offen offset:{1024*(j%4)} sc1", tag="hs0", cost=8)
    SC.place(L, g + 1, gst[13], 'spread', 'hs0')
    hsl = f"buffer_load_dword v7, v6, {sDBG}, 0 offen sc1"
    D2 = D.l[nD0:]
    k_ = len(D2) // 2
    D2 = D2[:k_] + mk(f"s_mov_b32 s41, s51\ns_max_u32 s42, {sM}, 1\ns_lshl_b32 s42, s42, 4\ns_sub_u32 s42, s42, 16\ns_min_u32 s4, {sM}, 1\ns_lshl_b32 s4, s4, 2\ns_or_b32 s4, s4, 3\nv_xor_b32 v6, 4, v0\nv_and_b32 v6, s4, v6\nv_lshlrev_b32 v6, 2, v6\nv_add_u32 v6, s42, v6") + mk(hsl, tag='hc', cost=8) + D2[k_:] + mk(f"buffer_load_dword a191, v{vFLW}, {sWS}, s37 offen sc1", tag='dummy', cost=8)
    SC.place(D2, g + 1, gst[17], 'asap', 'deferred1')
    fl = f"buffer_store_dword v38, v{vFLW}, {sWS}, 0 offen sc1"
    SC.place(mk(fl, tag='fl', cost=8) + mk("v_mov_b32 v38, 2"), gbar[16] + 1, gst[17], 'asap', 'flagK')
    SC.place(mk(fl, tag='fl', cost=8), gbar[22] + 1, gbar[22] + 12, 'asap', 'flagV')
    hck = "v_and_b32 v5, 0xff, v7\nv_cmp_le_u32 vcc, 4, v5\ns_and_b32 s96, vcc_lo, 0xff\ns_cmp_eq_u32 s96, 0xff"
    L = mk("WAITV hc") + mk(hck)
    pos = SC.place(L[:-2], gst[19] + 2, gst[19] + 14, 'asap', 'hck')
    SC.fill[pos[-1] + 1] += L[-2:] + mk("s_cbranch_scc0 L_aslowH\nL_abackH:")
    slow = mk(f"L_aslowH:\ns_mov_b32 s97, 0\nL_aspinH:\n{hsl}\ns_waitcnt vmcnt(0)\n{hck}\ns_cbranch_scc1 L_abackH\ns_sleep 1\ns_add_u32 s97, s97, 1\ns_cmp_lt_u32 s97, 0x80000\ns_cbranch_scc1 L_aspinH\ns_branch L_abackH", cond=True)
    pos = SC.place(mk("v_lshrrev_b32 v7, 24, v7\nv_readfirstlane_b32 s96, v7\nv_cmp_ne_u32 vcc, s96, v7"), pos[-1] + 2, gst[20] - 4, 'spread', 'mode')
    SC.fill[pos[-1] + 3] += mk(("s_or_b32 vcc_lo, vcc_lo, 1\n" if OPT['forcefb'] else "") + "s_and_b32 s96, vcc_lo, 15\ns_cselect_b32 s46, 0, 1")
    CO, CP, MO, MP = 4, 8, 12, 14
    sGRP = ["s[50:51]", "s[52:53]", "s[54:55]", "s[56:57]"]
    Mk = Prog()
    Mk(f"s_or_b32 s98, {sM}, {sWV}\ns_min_u32 s98, s98, 1\ns_mul_i32 s98, s98, -90\ns_add_u32 s98, s98, 99")
    Mk("v_and_b32 v34, 15, v0\nv_lshrrev_b32 v35, 4, v0")
    for g in range(4): Mk(f"v_cmp_eq_u32 {sGRP[g]}, {g}, v35")
    Mk("v_lshlrev_b32 v35, 2, v35\nv_sub_u32 v35, v35, v34\nv_add_u32 v35, 7, v35")
    Mk(f"v_mov_b32 v36, 0xff7f0000\nv_mov_b32 v2, 0xffff\nv_mov_b32 v3, 0xffff0000\ns_add_u32 s98, s98, 7")
    for r in range(4):
        Mk(f"v_add_u32 v34, {r}, v35")
        Mk(f"v_cmp_gt_u32 vcc, 8, v34")
        Mk(f"v_cmp_le_i32 s[96:97], s98, v34")
        Mk(f"v_cndmask_b32 v{CO+r}, v36, 0, vcc".replace("v36, 0, vcc", "v36, 0, vcc"))
        Mk(f"v_cndmask_b32 v37, 0, v{2+r%2}, vcc")
        Mk(f"v_mov_b32 v{MO+r//2}, v37" if r % 2 == 0 else f"v_or_b32 v{MO+r//2}, v{MO+r//2}, v37")
        Mk(f"v_cndmask_b32 v{CP+r}, v36, 0, s[96:97]")
        Mk(f"v_cndmask_b32 v37, 0, v{2+r%2}, s[96:97]")
        Mk(f"v_mov_b32 v{MP+r//2}, v37" if r % 2 == 0 else f"v_or_b32 v{MP+r//2}, v{MP+r//2}, v37")
    Mk(f"s_mov_b32 s99, {hx(18 ** -0.5 * LOG2E)}\nv_mov_b32 v2, 0x3f803f80\nv_mov_b32 v3, 0x3f803f80")
    SC.place(Mk.l, gst[20] + 2, gst[25], 'asap', 'masks')
    def halo(name, bit, gp, gc, g1, loads, dst):
        hload = f"buffer_load_dword v{dst}, v1, {sWS}, 0 offen sc1"
        SC.place(mk(hload, tag=f'hp{name}', cost=8), gp, gp + 12, 'asap', 'hp' + name)
        pos = SC.place(mk(f"WAITV hp{name}\nv_readfirstlane_b32 s11, v{dst}"), gc, gc + 12, 'asap', 'hc' + name)
        SC.fill[pos[-1] + 1] += mk(f"s_or_b32 s11, s11, s9\ns_cmp_lt_u32 s11, {bit}\ns_cbranch_scc1 L_hslow{name}\nL_hback{name}:")
        slow.extend(mk(f"L_hslow{name}:\ns_mov_b32 s42, 0\nL_hspin{name}:\n{hload}\ns_waitcnt vmcnt(0)\nv_readfirstlane_b32 s11, v{dst}\ns_add_u32 s42, s42, 1\ns_cmp_ge_u32 s11, {bit}\ns_cbranch_scc1 L_hback{name}\ns_sleep 1\ns_cmp_lt_u32 s42, 0x80000\ns_cbranch_scc1 L_hspin{name}\ns_branch L_hback{name}", cond=True))
        SC.place(loads, pos[-1] + 2, g1, 'asap', 'hl' + name)
    L = []
    for j in range(9):
        if j % 4 == 0: L += mk(f"s_add_u32 s101, s8, {j*1024}")
        L += mk(f"buffer_load_dwordx4 {ar(KP+4*j,4)}, v{vST}, {sWS}, s101 offen offset:{1024*(j%4)} sc1", tag='hk', cost=8)
    halo('K', 1, gst[20] + 2, gst[23], gst[25], L, 33)
    L = []
    for j in range(9):
        if j % 4 == 0: L += mk(f"s_add_u32 s101, s8, {(9+j)*1024}")
        L += mk(f"buffer_load_dwordx4 {ar(VV+8*j+2,4)}, v{vST}, {sWS}, s101 offen offset:{1024*(j%4)} sc1", tag='hv', cost=8)
    hvL = L
    hloadV = f"buffer_load_dword v33, v1, {sWS}, 0 offen sc1"
    SC.place(mk(hloadV, tag='hpV', cost=8), gbar[26] + 1, gbar[26] + 12, 'asap', 'hpV')
    hvC = mk("WAITV hpV\nv_readfirstlane_b32 s11, v33\ns_or_b32 s11, s11, s9\ns_cmp_lt_u32 s11, 2\ns_cbranch_scc1 L_hslowV\nL_hbackV:")
    slow.extend(mk(f"L_hslowV:\ns_mov_b32 s42, 0\nL_hspinV:\n{hloadV}\ns_waitcnt vmcnt(0)\nv_readfirstlane_b32 s11, v33\ns_add_u32 s42, s42, 1\ns_cmp_ge_u32 s11, 2\ns_cbranch_scc1 L_hbackV\ns_sleep 1\ns_cmp_lt_u32 s42, 0x80000\ns_cbranch_scc1 L_hspinV\ns_branch L_hbackV", cond=True))
    QX = XR
    qtail = []
    for j in range(9):
        L = mk("\n".join(f"v_cvt_pk_bf16_f32 v{QX+4*j+q}, v{ACC+8*j+2*q}, v{ACC+8*j+2*q+1}" for q in range(4)))
        n = 324 + 153 + j + 4
        if n < NQ: SC.fill[gi[n]] += L[:2]; SC.fill[gi[n] + 1] += L[2:]
        else: qtail += L
    print("; attn qkv overflow %d" % SC.overflow(), file=sys.stderr)
    P.add(SC.emit(0, gi[162])); stamp(P, 4)
    P.add(SC.emit(gi[162], gi[324])); stamp(P, 5)
    P.add(SC.emit(gi[324]))
    SB = 148; QRM = 104; W = 40; POP = 72; SM = 88; OP = 212
    P.add(qtail)
    for Pp in range(2): P(f"v_mov_b32 v{QRM+4*Pp+1}, 0\nv_mov_b32 v{QRM+4*Pp+2}, 0")
    P("s_barrier")
    stamp(P, 6)
    def sbuf(e, hh, Pp): return SB + 32 * (e % 2) + 16 * hh + 8 * Pp
    def Sm(e):
        L = []
        for hh in range(2):
            for Pp in range(2): L += mk(f"v_cndmask_b32 v{QRM+4*Pp+3*hh}, 0, v{QX+32+2*Pp+hh}, {sGRP[e]}")
        for k, KB in enumerate((KO, KP)):
            if e == 0 and k == 1: L += mk("WAITV hk")
            for part in range(2):
                for hh in range(2):
                    h = 2 * e + hh
                    for Pp in range(2):
                        d = vr(sbuf(e, hh, Pp) + 4 * k, 4)
                        if part == 0: L += mk(f"v_mfma_f32_16x16x16_bf16 {d}, {ar(KB+4*h+2*Pp,2)}, {vr(QX+4*h+2*Pp,2)}, {vr((CO,CP)[k],4)}")
                        else: L += mk(f"v_mfma_f32_16x16x16_bf16 {d}, {ar(KB+32+2*Pp,2)}, {vr(QRM+4*Pp+2*hh,2)}, {d}")
        return L
    def head(e, hh):
        L = []
        w = W + 16 * hh
        T = [[w + 8 * Pp + r for r in range(4)] for Pp in range(2)]
        K = [[w + 8 * Pp + 4, w + 8 * Pp + 5] for Pp in range(2)]
        M = [w + 6, w + 14]
        def both(f):
            a, b = mk(f(0)), mk(f(1))
            for x, y in zip(a, b): L.append(x); L.append(y)
        both(lambda p: "\n".join(f"v_max_f32 v{T[p][r]}, v{sbuf(e,hh,p)+4+r}, v{sbuf(e,hh,p)+r}" for r in range(4)))
        both(lambda p: f"v_max3_f32 v{M[p]}, v{T[p][0]}, v{T[p][1]}, v{T[p][2]}\nv_max_f32 v{M[p]}, v{M[p]}, v{T[p][3]}")
        L += mk(f"v_permlane32_swap_b32 v{M[0]}, v{M[1]}\nv_max_f32 v{M[0]}, v{M[0]}, v{M[1]}\nv_mov_b32 v{M[1]}, v{M[0]}\nv_permlane16_swap_b32 v{M[0]}, v{M[1]}\nv_max_f32 v{M[0]}, v{M[0]}, v{M[1]}")
        L += mk(f"v_mul_f32 v{M[0]}, s99, v{M[0]}\nv_mov_b32 v{M[1]}, v{M[0]}\nv_permlane32_swap_b32 v{M[0]}, v{M[1]}")
        both(lambda p: "\n".join(f"v_fma_f32 v{T[p][r]}, v{T[p][r]}, s99, -v{M[p]}" for r in range(4)))
        both(lambda p: "\n".join(f"v_exp_f32 v{T[p][r]}, v{T[p][r]}" for r in range(4)))
        both(lambda p: f"v_cvt_pk_bf16_f32 v{K[p][0]}, v{T[p][0]}, v{T[p][1]}\nv_cvt_pk_bf16_f32 v{K[p][1]}, v{T[p][2]}, v{T[p][3]}")
        po = lambda p: POP + 8 * hh + 4 * p
        both(lambda p: f"v_and_b32 v{po(p)+2-2*p}, v{MP}, v{K[p][0]}\nv_and_b32 v{po(p)+3-2*p}, v{MP+1}, v{K[p][1]}\nv_and_b32 v{po(p)+2*p}, v{MO}, v{K[p][0]}\nv_and_b32 v{po(p)+1+2*p}, v{MO+1}, v{K[p][1]}")
        return L
    def PVm(e):
        L = []
        if e == 0: L += mk("WAITV hv")
        for hh in range(2):
            for Pp in range(2):
                L += mk(f"v_mfma_f32_16x16x16_bf16 {vr(SM+8*hh+4*Pp,4)}, v[2:3], {vr(W+16*hh+8*Pp+4,2)}, 0")
        for hh in range(2):
            h = 2 * e + hh
            for Pp in range(2):
                for k, tile in enumerate((h, 8)):
                    L += mk(f"v_mfma_f32_16x16x32_bf16 {vr(sbuf(e,hh,Pp)+4*k,4)}, {ar(VV+8*tile+4*Pp,4)}, {vr(POP+8*hh+4*Pp,4)}, 0")
        return L
    def Oc(e):
        L = []
        U = [(hh, Pp) for hh in range(2) for Pp in range(2)]
        for hh, Pp in U: L += mk(f"v_rcp_f32 v{SM+8*hh+4*Pp}, v{SM+8*hh+4*Pp}")
        for hh, Pp in U:
            d = sbuf(e, hh, Pp); rr = SM + 8 * hh + 4 * Pp
            for q in (0, 1, 2, 3, 4 + 2 * hh, 5 + 2 * hh): L += mk(f"v_mul_f32 v{d+q}, v{rr}, v{d+q}")
        for hh, Pp in U:
            d = sbuf(e, hh, Pp); o = OP + 20 * Pp + 4 * e + 2 * hh
            L += mk(f"v_cvt_pk_bf16_f32 v{o}, v{d}, v{d+1}\nv_cvt_pk_bf16_f32 v{o+1}, v{d+2}, v{d+3}")
            if e == 0: L += mk(f"v_cvt_pk_bf16_f32 v{OP+20*Pp+16+hh}, v{d+4+2*hh}, v{d+5+2*hh}")
            else: L += mk(f"v_cvt_pk_bf16_f32 v{d+4}, v{d+4+2*hh}, v{d+5+2*hh}")
        if e:
            for hh, Pp in U:
                d = sbuf(e, hh, Pp); o = OP + 20 * Pp + 16 + hh
                L += mk(f"v_cndmask_b32 v{o}, v{o}, v{d+4}, {sGRP[e]}")
        return L
    WA = Prog(); wvoff(WA, vDQ, True)
    WA(f"s_lshl_b32 s96, {sWV}, 11\ns_add_u32 s96, s96, {WS_FLAG + HFOFF + 12*128}\nv_and_b32 v1, 3, v0\nv_lshlrev_b32 v1, 7, v1\nv_add_u32 v1, s96, v1\nv_lshlrev_b32 v38, 3, v0")
    WA(f"s_mov_b32 s43, s{OO}\ns_add_u32 s44, s{OO}, 4096\ns_add_u32 s45, s{OO}, 8192")
    def ostore(e): return mk("\n".join(f"buffer_store_dwordx4 {vr(OP+20*Pp+4*e,4)}, v{vST}, {sWS}, s{43+Pp} offen offset:{1024*e} sc1" for Pp in range(2)), tag=f'os{e//2}', cost=8)
    fst = f"buffer_store_dword v33, v{vFLW}, {sWS}, s37 offen"
    def oflag(h):
        slow.extend(mk(f"L_orel{h}:\n{fst} sc1\ns_branch L_orelb{h}", cond=True))
        return mk(f"v_mov_b32 v33, {h+1}\nWAITV os{h}") + mk(f"s_cmp_eq_u32 s46, 0\ns_cbranch_scc1 L_orel{h}") + mk(fst, tag='ofl', cost=8) + mk(f"L_orelb{h}:")
    opl = f"buffer_load_dword v34, v1, {sWS}, 0 offen sc1"
    def ochk(h):
        ck = f"v_cmp_ge_u32 vcc, {h}, v34"
        slow.extend(mk(f"L_oslow{h}:\ns_mov_b32 s97, 0\nL_ospin{h}:\n{opl}\ns_waitcnt vmcnt(0)\n{ck}\ns_add_u32 s97, s97, 1\ns_nop 4\ns_cbranch_vccz L_oback{h}\ns_cmp_lt_u32 s97, 0x80000\ns_cbranch_scc1 L_ospin{h}\ns_branch L_oback{h}", cond=True))
        return mk(f"WAITV op{h}\n{ck}"), mk(f"s_cbranch_vccnz L_oslow{h}\nL_oback{h}:")
    s0 = Sm(0)
    P.add(hvC)
    P.add(weave(weave(s0, [WA.l[i:i+4] for i in range(0, len(WA.l), 4)], 1), dgroups(hvL), 8))
    for e in range(4):
        a, b = head(e, 0), head(e, 1)
        merged = []
        for x, y in zip(a, b): merged += [x, y]
        if e == 0: P.add(weave(Sm(1)[:12], [], 1)); P.add(weave(weave(merged, [[x] for x in Sm(1)[12:]], 3), dgroups(dma(33) + dma(34)), 9))
        else:
            pre = Oc(e - 1) + (ostore(e - 1) if e < 3 else []) + (Sm(e + 1) if e + 1 < 4 else [])
            body = merged[:16] + weave(merged[16:], [[x] for x in pre], 1)
            if e == 3:
                k_ = len(body) * OPT['ofl1'] // 100
                body = body[:k_] + oflag(0) + body[k_:] + mk(opl, tag='op0')
            P.add(body)
        P.add(PVm(e))
    stamp(P, 7)
    def breg(d, e, Pp): return ar((144 if e < 2 else 0) + 16 * (d - 1) + 8 * (e % 2) + 4 * Pp, 4)
    def bop(step, Pp):
        if step < 4: return vr(OP + 20 * Pp + 4 * step, 4)
        if step < 16: d, h = WORD[step // 2]; return breg(d, 2 * h + step % 2, Pp)
        if step == 16: return vr(OP + 20 * Pp + 16, 4)
        return ar(96 + 4 * Pp, 4)
    def oloads(h):
        L = []
        for d in range(1, 4):
            L += mk(f"s_add_u32 s47, s{OO+d}, 4096")
            for e in (2 * h, 2 * h + 1):
                for Pp in range(2): L += mk(f"buffer_load_dwordx4 {breg(d, e, Pp)}, v{vST}, {sWS}, s{(OO+d) if Pp == 0 else 47} offen offset:{1024*e} sc1", tag=f"ol{2*WORD.index((d, h)) + e % 2}", cost=8)
        return L
    uses = []
    for ks in range(18):
        s = 27 + ks // 2; slot = slotof(s)
        for j in range(9):
            n = len(uses); af = AF + 4 * (n % 16)
            off = (slot % 3) * ARING + (ks & 1) * 9216 + 32 * j
            va = vRX[slot // 3]
            rd = mk(f"ds_read_b64_tr_b16 {ar(af,2)}, v{va} offset:{off}\nds_read_b64_tr_b16 {ar(af+2,2)}, v{va} offset:{off+4608}", tag=f"w{n}")
            mf = []
            for Pp in range(2):
                acc = vr(ACC + 8 * j + 4 * Pp, 4)
                mf += mk(f"v_mfma_f32_16x16x32_bf16 {acc}, {ar(af,4)}, {bop(ks, Pp)}, {'0' if ks == 0 else acc}")
            uses.append((s, rd, mf))
    NW = len(uses)
    P("WAITV d34\ns_barrier")
    for n in range(PD): P.add(uses[n][1])
    oc = Oc(3); c0, c1 = ochk(0)
    P.add(oc[:30] + c0 + oc[30:] + c1)
    ol0 = oloads(0)
    P.add(ol0[:5])
    P("WAITL w2")
    SC = Sched(); gi = {}; gbar = {27: -1}
    for n in range(NW):
        mf = uses[n][2]
        g0 = SC.gap([mf[0]], 16); g1 = SC.gap([mf[1]], 16); gi[n] = g0
        if n + PD < NW:
            if uses[n + PD][0] != uses[n + PD - 1][0] and uses[n + PD][0] in (30, 35):
                SC.mand[g0] += barrier(35) if uses[n + PD][0] == 35 else mk("s_barrier"); gbar[uses[n + PD][0]] = g0
                SC.mand[g1] += uses[n + PD][1]
            else: SC.mand[g0] += uses[n + PD][1]
        if n % 3 == 2 and n + 1 < NW: SC.tail[g1] += mk(f"WAITL w{n+3}")
        if (n + 1) % 9 == 0 and 4 <= (n + 1) // 9 < 18: SC.tail[g1] += mk(f"WAITV ol{(n+1)//9}")
    gi[NW] = len(SC.head)
    L = ostore(2) + ostore(3) + mk(f"buffer_store_dwordx2 {vr(OP+16,2)}, v38, {sWS}, s45 offen sc1\nbuffer_store_dwordx2 {vr(OP+36,2)}, v38, {sWS}, s45 offen offset:512 sc1", tag='os1', cost=8) + ol0[5:]
    SC.place(L, 0, gi[28], 'asap', 'os1')
    SC.fill[gi[OPT['ofl']] + 1] += oflag(1)
    SC.fill[gi[OPT['opl']] + 1] += mk(opl, tag='op1', cost=8)
    g = gi[OPT['opl'] + 10] + 1
    c0, c1 = ochk(1)
    SC.fill[g] += c0; SC.fill[g + 2] += c1
    g = SC.place(oloads(1), g + 3, gi[88], 'asap', 'ol1')[-1] + 1
    L = []
    for d in range(1, 4):
        L += mk(f"s_add_u32 s44, s{OO+d}, 8192")
        for Pp in range(2):
            dst = vr(OP + 20 * Pp + 18, 2) if d == 1 else ar(96 + 4 * Pp + 2 * (d - 2), 2)
            L += mk(f"buffer_load_dwordx2 {dst}, v38, {sWS}, s44 offen offset:{512*Pp} sc1", tag="ol16" if d == 1 else "ol17", cost=8)
    g = SC.place(L, g, gi[130], 'asap', 'olR')[-1]
    SC.place(dma(35), max(g, gbar[30]) + 1, gi[130], 'asap', 'dma35')
    WSTG = 112
    tailE = mk(f"s_add_u32 s41, s40, {36*512}\ns_add_u32 s43, s40, 4096\ns_add_u32 s44, s41, 4096")
    SC.place(tailE, gi[140], gi[150], 'asap', 'sb'); tailE = []
    for j in range(9):
        L = []
        for Pp in range(2):
            a_ = ACC + 8 * j + 4 * Pp; d = WSTG + 4 * j + 2 * Pp
            L += mk(f"v_cvt_pk_bf16_f32 v{d}, v{a_}, v{a_+1}\nv_cvt_pk_bf16_f32 v{d+1}, v{a_+2}, v{a_+3}")
        for Pp in range(2):
            d = WSTG + 4 * j + 2 * Pp
            L += mk(f"buffer_store_dwordx2 {vr(d,2)}, v38, {sWS}, s{(40+Pp) if j < 8 else (43+Pp)} offen offset:{512*(j%8)} sc1", tag='st', cost=8)
        n = 153 + j + 4
        if n < NW: SC.fill[gi[n]] += L[:3]; SC.fill[gi[n] + 1] += L[3:]
        else: tailE += L
    print("; attn wo overflow %d" % SC.overflow(), file=sys.stderr)
    if OPT['marks'] == 4:
        mk_ = [0, gi[30], gi[37], gi[73], gi[135], gi[145], len(SC.head)]
        for i in range(6): stamp(P, 1 + i); P.add(SC.emit(mk_[i], mk_[i + 1]))
    else: P.add(SC.emit())
    P.add(tailE)
    stamp(P, 8)
    if OPT['fuse']: P(f"v_mov_b32 v2, 15\ns_waitcnt vmcnt(0)\nbuffer_store_dword v2, v{vFLW}, {sWS}, 0 offen sc1")
    stamp(P, 9)
    stamp_flush(P, 10)
    P("s_endpgm")
    P.add(slow)
    return P.l

def final(G):
    globals().update({k: v for k, v in G.items() if not k.startswith('__') and k not in ('attn', 'final')})
    P = Prog()
    P("s_cmp_ge_u32 s2, 576\ns_cbranch_scc1 L_fexit")
    if OPT['stamp']: P("s_memrealtime s[40:41]\ns_load_dwordx2 s[44:45], s[0:1], 56")
    P("s_load_dwordx2 s[4:5], s[0:1], 0\ns_load_dwordx2 s[8:9], s[0:1], 48\ns_load_dwordx2 s[12:13], s[0:1], 64")
    P(f"s_mov_b32 s16, {-(-(1<<32)//36)}\ns_mul_hi_u32 s17, s2, s16\ns_mul_i32 s18, s17, 36\ns_sub_u32 s18, s2, s18")
    P(f"s_cmp_ge_u32 s18, 18\ns_cselect_b32 s19, 1, 0\ns_mul_i32 s20, s19, 18\ns_sub_u32 s20, s18, s20")
    P(f"s_mul_i32 s21, s17, {16*36*4096}\ns_lshl_b32 s22, s18, 12\ns_add_u32 s21, s21, s22")
    P("v_lshlrev_b32 v1, 4, v0")
    P("v_lshrrev_b32 v2, 7, v0\nv_lshlrev_b32 v2, 5, v2\nv_bfe_u32 v3, v0, 6, 1\nv_add_u32 v2, v2, v3\nv_and_b32 v3, 15, v0\nv_lshlrev_b32 v3, 1, v3\nv_add_u32 v2, v2, v3")
    P("s_lshl_b32 s22, s17, 7\ns_lshl_b32 s23, s19, 6\ns_add_u32 s22, s22, s23\nv_add_u32 v2, s22, v2\nv_mul_u32_u24 v2, 1152, v2")
    P("v_bfe_u32 v3, v0, 4, 2\nv_lshlrev_b32 v3, 3, v3\nv_add_u32 v2, v2, v3\ns_lshl_b32 s23, s20, 6")
    P("s_waitcnt lgkmcnt(0)")
    P(f"s_mov_b32 s6, {2048*576*2}\ns_mov_b32 s7, 0x20000\ns_mov_b32 s10, {2048*576*2}\ns_mov_b32 s11, 0x20000\ns_mov_b32 s14, {WS_BYTES}\ns_mov_b32 s15, 0x20000")
    for j in range(16):
        P(f"buffer_load_dwordx4 {vr(32+4*j,4)}, v1, s[12:15], s21 offen", tag=f"p{j}")
        if j < 15: P(f"s_add_u32 s21, s21, {36*4096}")
    P("buffer_load_dwordx2 v[4:5], v2, s[4:7], s23 offen\nbuffer_load_dwordx2 v[6:7], v2, s[4:7], s23 offen offset:32", tag="x")
    P("s_mov_b32 s24, 0x3f80\ns_mov_b32 s25, 0x3f800000\ns_mov_b32 s26, 0xffff0000")
    for i in range(8, 24): P(f"v_mov_b32 v{i}, 0")
    for j in range(16):
        P(f"WAITV p{j}")
        b = 8 if j < 12 else 16
        for d in range(4):
            P(f"v_dot2c_f32_bf16 v{b+2*d}, s24, v{32+4*j+d}\nv_dot2c_f32_bf16 v{b+2*d+1}, s25, v{32+4*j+d}")
    def rnd(b):
        for d in range(4): P(f"v_cvt_pk_bf16_f32 v{24+d}, v{b+2*d}, v{b+2*d+1}")
        for d in range(4): P(f"v_lshlrev_b32 v{b+2*d}, 16, v{24+d}\nv_and_b32 v{b+2*d+1}, s26, v{24+d}")
    for i in range(8): P(f"v_mul_f32 v{8+i}, {hx(LN2)}, v{8+i}")
    rnd(8)
    for i in range(8): P(f"v_mul_f32 v{32+i}, {hx(-LOG2E)}, v{8+i}")
    for i in range(8): P(f"v_exp_f32 v{32+i}, v{32+i}")
    for i in range(8): P(f"v_add_f32 v{32+i}, 1.0, v{32+i}")
    for i in range(8): P(f"v_rcp_f32 v{32+i}, v{32+i}")
    for i in range(8): P(f"v_mul_f32 v{8+i}, v{8+i}, v{32+i}")
    rnd(8); rnd(16)
    for i in range(8): P(f"v_mul_f32 v{8+i}, v{8+i}, v{16+i}")
    rnd(8)
    P("WAITV x")
    for d in range(4): P(f"v_lshlrev_b32 v{16+2*d}, 16, v{4+d}\nv_and_b32 v{17+2*d}, s26, v{4+d}")
    for i in range(8): P(f"v_add_f32 v{8+i}, v{8+i}, v{16+i}")
    for d in range(4): P(f"v_cvt_pk_bf16_f32 v{24+d}, v{8+2*d}, v{9+2*d}")
    P("buffer_store_dwordx2 v[24:25], v2, s[8:11], s23 offen\nbuffer_store_dwordx2 v[26:27], v2, s[8:11], s23 offen offset:32")
    if OPT['stamp'] == 2:
        P("s_cmp_lg_u32 s2, 0\ns_cbranch_scc1 L_fexit")
        P(f"s_mov_b32 s48, {WS_STAMP}\nv_mov_b32 v1, 0\nbuffer_load_dword v4, v1, s[12:15], s48 offen offset:56\ns_waitcnt vmcnt(0)\nv_readfirstlane_b32 s50, v4\ns_nop 4")
        P("L_spin:\ns_memrealtime s[42:43]\ns_waitcnt lgkmcnt(0)\ns_sub_u32 s42, s42, s50\ns_cmp_lt_u32 s42, 10000\ns_cbranch_scc1 L_spin")
    if OPT['stamp'] == 1:
        P("s_waitcnt vmcnt(0)\ns_memrealtime s[42:43]\ns_mov_b32 s46, 256\ns_mov_b32 s47, 0x20000\ns_waitcnt lgkmcnt(0)")
        P("v_lshlrev_b32 v1, 8, v0\nv_mov_b32 v3, s42\nbuffer_atomic_umax v3, v1, s[44:47], 0 offen offset:12")
        P("s_cmp_lg_u32 s2, 0\ns_cbranch_scc1 L_fexit")
        P(f"s_mov_b32 s48, {WS_STAMP}\nbuffer_load_dwordx2 v[4:5], v1, s[12:15], s48 offen offset:56\nv_mov_b32 v6, 0\nv_mov_b32 v7, s40\ns_waitcnt vmcnt(0)\nv_not_b32 v4, v4")
        P("buffer_atomic_umax v4, v6, s[44:47], 0 offen\nbuffer_atomic_umax v5, v6, s[44:47], 0 offen offset:4\nbuffer_store_dword v7, v1, s[44:47], 0 offen offset:8")
        P(f"v_lshlrev_b32 v1, 2, v0\ns_mov_b32 s48, {WS_STAMP + OPT['dbgwg']*256}\nbuffer_load_dword v4, v1, s[12:15], s48 offen\nv_add_u32 v1, 16, v1\ns_mov_b32 s46, 64\ns_waitcnt vmcnt(0)\nbuffer_store_dword v4, v1, s[44:47], 0 offen")
    P("L_fexit:\ns_endpgm")
    return P.l
```

```python
import sys, math
from asmlib import *

OPT = dict(pf0=1, pf0n=36, prot=2, snake=1, w64=0, d6=1, bbx=1024, omod=0, q3=80, q4=94, q5=118, lat0=26, lat1=22, e1=62, e2=81, fd0=17, fd1=9, hop1=0, hop0=1, fdel0=44, pfwo=1, ofl=36, opl=50, ofl1=55, pfh0=216, nb2=2, hsplit=2, dpre=3, pst=0, xlead=3, slp=4, rt=0, pfh=0, pchk=9, fdel=32, a3=8, a4=3, cin=22, sat=15*12+4,  forcefb=0, marks=0, wcost=16, fuse=1, stmod=1, dbgwg=64, nosilu=0, nodma=0, nobar=0, nost=0, pd1=7, pd2=3, stamp=0, ffn=1, attn=1, verbose=0, rot=1, pfw=0, pfcode=1)
for a in sys.argv[1:]:
    k, v = a.split('='); OPT[k] = int(v)

STMOD = ['', ' sc1', ' nt', ' sc0 sc1', ' sc1 nt'][OPT['stmod']]
NAME = "recurrent_scan__sliding_local_dilated__dense_activation_silu__prompt"
LOG2E = 1.4426950408889634
LN2 = 0.6931471805599453
import struct
def f2u(f): return struct.unpack('<I', struct.pack('<f', f))[0]
def hx(f): return "0x%08x" % f2u(f)

JS = 147456
BB = 13 * JS + OPT['bbx']
WS_FIN = BB
WS_HOP = BB + 4 * JS
WS_S = BB + 8 * JS
WS_O = BB + 9 * JS
WS_KV = BB + 10 * JS
WS_FLAG = BB + 12 * JS
HFOFF = 8192
WS_FB = 34 << 20
WS_STAMP = 80 << 20
WS_BYTES = 96 << 20
LDS_BYTES = 155648

sX, sWA, sWB, sWS, sDBG = 's[12:15]', 's[16:19]', 's[20:23]', 's[24:27]', 's[28:31]'
sM, sSL, sWV, sROT, sMEM = 's32', 's33', 's34', 's35', 's36'

def vr(a, n): return f"v[{a}:{a+n-1}]" if n > 1 else f"v{a}"
def ar(a, n): return f"a[{a}:{a+n-1}]" if n > 1 else f"a{a}"

stamp_n = [0]
def stamp(P, idx):
    if not OPT['stamp']: return
    if OPT['pst']:
        if idx < 100 and idx != 3: return
        idx = 9 if idx == 3 else idx - 100
    elif idx >= 100: return
    P(f"{'s_memrealtime' if OPT['rt'] else 's_memtime'} s[78:79]\ns_waitcnt lgkmcnt(0)\ns_mov_b32 s{80+idx}, s78")
def stamp_flush(P, n):
    if not OPT['stamp']: return
    P(f"s_memrealtime s[78:79]\ns_waitcnt lgkmcnt(0)\ns_mov_b32 s{80+15}, s78")
    P(f"s_lshl_b32 s76, s2, 2\ns_add_u32 s76, s76, {sWV}\ns_lshl_b32 s76, s76, 6\ns_add_u32 s76, s76, {WS_STAMP}\ns_mul_i32 s77, {sM}, {BB}\ns_sub_u32 s76, s76, s77")
    P("v_mov_b32 v1, 0")
    for i in range(4):
        for j in range(4): P(f"v_mov_b32 v{4+j}, s{80+4*i+j}")
        P(f"buffer_store_dwordx4 v[4:7], v1, {sWS}, s76 offen offset:{16*i}")
        P("s_nop 1")

def round_bf16(P, dst, src):
    P(f"v_cvt_pk_bf16_f32 {dst}, {src}, {src}\nv_and_b32 {dst}, 0xffff0000, {dst}")

def ln_stats(P, vsum, vsq, vnegm, vr_, tmp):
    P(f"v_mul_f32 {vsum}, {hx(1/576)}, {vsum}")
    P(f"v_mul_f32 {vsq}, {hx(1/576)}, {vsq}")
    P(f"v_fma_f32 {vsq}, -{vsum}, {vsum}, {vsq}")
    P(f"v_max_f32 {vsq}, 0, {vsq}")
    round_bf16(P, vnegm, vsum)
    P(f"v_xor_b32 {vnegm}, 0x80000000, {vnegm}")
    round_bf16(P, vsq, vsq)
    P(f"v_add_f32 {vsq}, {hx(1e-5)}, {vsq}")
    round_bf16(P, vsq, vsq)
    P(f"v_sqrt_f32 {vsq}, {vsq}")
    round_bf16(P, vsq, vsq)
    P(f"v_rcp_f32 {vr_}, {vsq}")

def sel_consts(P, vsel, t0, t1, t2):
    P(f"v_mov_b32 v{vsel}, 0\nv_mov_b32 v{vsel+1}, 0\nv_mov_b32 v{vsel+4}, 0\nv_mov_b32 v{vsel+5}, 0")
    P(f"v_and_b32 {t0}, 1, v0\nv_lshlrev_b32 {t0}, 4, {t0}\nv_mov_b32 {t1}, 0x3f80\nv_lshlrev_b32 {t0}, {t0}, {t1}")
    P(f"v_bfe_u32 {t1}, v0, 2, 2\nv_lshrrev_b32 {t2}, 4, v0")
    P(f"v_cmp_eq_u32 vcc, {t1}, {t2}\nv_cndmask_b32 {t0}, 0, {t0}, vcc")
    P(f"v_and_b32 {t1}, 2, v0\nv_cmp_eq_u32 vcc, 0, {t1}")
    P(f"v_cndmask_b32 v{vsel+2}, 0, {t0}, vcc\nv_cndmask_b32 v{vsel+3}, {t0}, v{vsel}, vcc")

def common_prologue(P):
    P("s_cmp_ge_u32 s2, 256\ns_cbranch_scc1 L_exit")
    P("s_load_dwordx4 s[4:7], s[0:1], 0\ns_load_dwordx2 s[8:9], s[0:1], 16\ns_load_dwordx4 s[40:43], s[0:1], 32\ns_load_dwordx4 s[44:47], s[0:1], 56")
    P(f"v_lshrrev_b32 v1, 6, v0\nv_lshlrev_b32 v46, 7, v0\nv_readfirstlane_b32 {sWV}, v1\nv_and_b32 v0, 63, v0")
    if OPT['stamp']: P("s_memrealtime s[78:79]\ns_memtime s[76:77]")
    if OPT['pfcode']:
        P("s_getpc_b64 s[48:49]\ns_bfe_u32 s58, s2, 0x20003\ns_lshl_b32 s58, s58, 15\nv_add_u32 v46, s58, v46")
        P("v_min_u32 v46, CODE_PF_MAX, v46\nglobal_load_dword v47, v46, s[48:49]", tag='dummy')
    if OPT['stamp']:
        for i in range(80, 96): P(f's_mov_b32 s{i}, 0')
    P("s_and_b32 s37, s2, 1\ns_lshl_b32 s37, s37, 3")
    P("s_bfe_u32 s38, s2, 0x20001")
    P(f"s_lshr_b32 s39, s2, 3\ns_and_b32 {sMEM}, s39, 7\ns_add_u32 {sM}, s37, {sMEM}")
    P(f"s_lshl_b32 s51, s38, 1\ns_add_u32 s51, s51, s37\ns_lshr_b32 s52, s39, 2\ns_add_u32 s51, s51, s52")
    P(f"s_lshl_b32 s52, s39, 1\ns_and_b32 s52, s52, 6\ns_add_u32 s52, s52, s51\ns_mul_i32 s53, s52, 57\ns_lshr_b32 s53, s53, 9\ns_mul_i32 s53, s53, 9\ns_sub_u32 s52, s52, s53")
    P(f"s_lshr_b32 {sROT}, s39, 3\ns_sub_u32 {sROT}, {sROT}, 1\ns_mul_i32 s50, {sROT}, 3\ns_cmp_lt_u32 s39, 8\ns_cselect_b32 s50, s52, s50\ns_cselect_b32 {sM}, s51, {sM}")
    if not OPT['rot']: P(f"s_mov_b32 s50, 0")
    P(f"s_lshl_b32 s53, {sM}, 7\ns_lshl_b32 s54, {sWV}, 5\ns_add_u32 s53, s53, s54\ns_mul_i32 s53, s53, 1152")
    P(f"v_lshrrev_b32 v2, 3, v0\nv_mul_u32_u24 v2, 2304, v2\nv_lshrrev_b32 v3, 4, v0\nv_and_b32 v44, 7, v0\nv_xor_b32 v3, v3, v44\nv_lshlrev_b32 v3, 4, v3")
    P(f"v_add_u32 v44, v2, v3\nv_add_u32 v44, s53, v44\nv_xor_b32 v45, 64, v44\nv_add_u32 v45, {16*1152-1024}, v45")
    P(f"s_lshl_b32 s55, s50, 7\ns_mul_i32 s54, {sWV}, 12288")
    P("s_waitcnt lgkmcnt(0)")
    if OPT['stamp']: P("s_mov_b32 s94, s78\ns_mov_b32 s80, s76")
    P(f"s_mov_b32 s12, s4\ns_mov_b32 s13, s5\ns_mov_b32 s14, {2048*576*2}\ns_mov_b32 s15, 0x20000")
    stamp(P, 101)
    P.add(xdma(0, 0)); P.add(xdma(0, 1)); P.add(xdma(0, 2))
    stamp(P, 102)
    P(f"s_mul_i32 s24, {sM}, {BB}\ns_add_u32 s24, s24, s46\ns_addc_u32 s25, s47, 0\ns_mov_b32 s26, {WS_BYTES}\ns_mov_b32 s27, 0x20000")
    P(f"s_mov_b32 s28, s44\ns_mov_b32 s29, s45\ns_mov_b32 s30, 256\ns_mov_b32 s31, 0x20000")
    P("s_cmp_lt_u32 s39, 8\ns_cbranch_scc1 L_attn")

def xdma(st, S):
    Q = Prog()
    Q(f"s_add_u32 m0, s54, {st*49152+S*4096}\ns_add_u32 s56, s55, 1152")
    Q(f"buffer_load_dwordx4 v44, {sX}, s55 offen lds\nbuffer_load_dwordx4 v45, {sX}, s55 offen offset:1024 lds", tag=f"x{3*st+S}")
    Q(f"s_add_u32 m0, m0, 2048\ns_add_u32 s55, s55, 128")
    Q(f"buffer_load_dwordx4 v44, {sX}, s56 offen lds\nbuffer_load_dwordx4 v45, {sX}, s56 offen offset:1024 lds", tag=f"x{3*st+S}")
    Q(f"s_cmp_eq_u32 s55, 1152\ns_cselect_b32 s55, 0, s55")
    return Q.l

def weave(main, extra, every):
    out = []; k = 0; cnt = 0
    for idx, ins in enumerate(main):
        out.append(ins); cnt += 1
        nxt = main[idx + 1] if idx + 1 < len(main) else None
        safe = nxt is None or ('scc' not in nxt.rd and 'm0' not in nxt.rd)
        if k < len(extra) and cnt >= every and safe:
            out += extra[k]; k += 1; cnt = 0
    for g in extra[k:]: out += g
    return out

def xphase(P, setup, frags, sums, sqs, dmas, nfirst=3):
    lead = OPT['xlead']
    late = [x for x in setup if x.kind == 'vmem' and x.tag != 'dummy']
    P.add([x for x in setup if x.kind != 'vmem' or (x.tag == 'dummy' and OPT['pf0'] == 1)])
    if OPT['pf0'] == 2: P.add([x for x in setup if x.kind == 'vmem' and x.tag == 'dummy'])
    for S in range(nfirst, lead + 1): P.add(xdma(S // 3, S % 3))
    dmas = dict(dmas); dmas[9] = dmas.get(9, []) + late
    stamp(P, 1); stamp(P, 103)
    def dots(S):
        L = []
        for (d, a, o, k) in frags[S]:
            for j in range(4): L += mk(f"v_dot2c_f32_bf16 v{sums[k][j%2]}, s57, v{d+j}\nv_dot2c_f32_bf16 v{sqs[k][j%2]}, v{d+j}, v{d+j}")
        return L
    for S in range(10):
        if S < 9:
            P(f"WAITV x{S}")
            if S in (0, 2, 5, 8): stamp(P, 104 + (0, 2, 5, 8).index(S))
            for n, (d, a, o, k) in enumerate(frags[S]): P(f"ds_read_b128 {vr(d,4)}, v{a} offset:{o}", tag=f"xr{S}")
        if S == 8: stamp(P, 2)
        if S >= 1:
            P(f"WAITL xr{S-1}")
            if S - 1 in (2, 5): P("s_barrier")
        extra = []
        if S + lead + 1 < 9: extra += dgroups(xdma((S + lead + 1) // 3, (S + lead + 1) % 3))
        if S in dmas: extra += dgroups(dmas[S])
        body = dots(S - 1) if S >= 1 else []
        P.add(weave(body, extra, max(1, len(body) // (len(extra) + 1))))
    stamp(P, 108)

RING = 24576; NSLOT = 5; HX = RING * NSLOT
vA1 = [[16, 17, 18], [19, 20, 21]]; vA2 = [[22, 23, 24], [25, 26, 27]]
vD1 = [28, 29, 30, 31]; vD2 = [32, 33, 34, 35]
vHW, vHR, vST = 36, 37, 38
ACC1 = 48; XR = 112
AF = 192

def flag_setup(P, vFLW, sj, tmpv, hop=False):
    P(f"s_lshl_b32 s66, {sWV}, 11\ns_lshl_b32 s67, {sj}, 7\ns_add_u32 s66, s66, s67\ns_add_u32 s66, s66, {WS_FLAG}")
    P(f"v_lshrrev_b32 {tmpv}, 5, v0\nv_lshlrev_b32 {tmpv}, 30, {tmpv}\nv_lshl_add_u32 {tmpv}, v0, 2, {tmpv}\nv_add_u32 v{vFLW}, s66, {tmpv}\nv_mov_b32 {tmpv}, 0")
    P(f"buffer_store_dword {tmpv}, v{vFLW}, {sWS}, 0 offen sc1", tag='fz')
    if hop: P(f"s_mov_b32 s37, {HFOFF}\nbuffer_store_dword {tmpv}, v{vFLW}, {sWS}, s37 offen sc1", tag='fz')
def handshake(sj, va, vb, xcc=False):
    Q = Prog()
    Q(f"s_lshl_b32 s66, {sM}, 2\ns_and_b32 s67, {sj}, 3\ns_add_u32 s66, s66, s67\ns_lshl_b32 s66, s66, 2\ns_lshl_b32 s67, {sWV}, 8\ns_add_u32 s66, s66, s67")
    Q(f"v_lshlrev_b32 {va}, 8, v0\nv_add_u32 {va}, s66, {va}")
    Q(f"s_getreg_b32 s66, hwreg(HW_REG_XCC_ID)\ns_and_b32 s66, s66, 15\ns_and_b32 s67, {sj}, 12\ns_add_u32 s67, s67, 12\ns_lshl_b32 s66, s66, s67\ns_add_u32 s66, s66, 1\nv_mov_b32 {vb}, s66")
    Q(f"buffer_atomic_add {vb}, {va}, {sDBG}, 0 offen sc1", tag='hsk', cost=8)
    return Q.l

def sel32(P, SEL):
    P("v_and_b32 v2, 1, v0\nv_lshlrev_b32 v2, 4, v2\nv_mov_b32 v3, 0x3f80\nv_lshlrev_b32 v2, v2, v3")
    P("v_bfe_u32 v3, v0, 2, 1\nv_lshlrev_b32 v3, 1, v3\nv_lshrrev_b32 v4, 4, v0\nv_cmp_eq_u32 vcc, v3, v4\nv_cndmask_b32 v2, 0, v2, vcc")
    P("v_bfe_u32 v3, v0, 3, 1\nv_lshlrev_b32 v3, 1, v3\nv_bfe_u32 v4, v0, 1, 1\nv_add_u32 v3, v3, v4")
    for j in range(4): P(f"v_cmp_eq_u32 vcc, {j}, v3\nv_cndmask_b32 v{SEL+j}, 0, v2, vcc")

def dgroups(lst):
    G = []; cur = []
    for x in lst:
        cur.append(x)
        if x.kind == 'vmem': G.append(cur); cur = []
    if cur: G[-1] += cur
    return G

def flat(groups): return [x for g in groups for x in g]

def ffn():
    P = Prog()
    P(f"s_mov_b32 s50, {sROT}" if OPT['rot'] else "s_mov_b32 s50, 0")
    P(f"s_add_u32 s51, s50, 1\ns_cmp_ge_u32 s51, 3\ns_cselect_b32 s51, 0, s51\ns_add_u32 s52, s51, 1\ns_cmp_ge_u32 s52, 3\ns_cselect_b32 s52, 0, s52")
    P(f"s_mul_i32 {sSL}, s38, 3\ns_add_u32 {sSL}, {sSL}, {sROT}")
    P(f"s_mov_b32 s16, s40\ns_mov_b32 s17, s41\ns_mov_b32 s18, {576*4608*2}\ns_mov_b32 s19, 0x20000")
    P(f"s_mov_b32 s20, s42\ns_mov_b32 s21, s43\ns_mov_b32 s22, {576*4608*2}\ns_mov_b32 s23, 0x20000")
    P(f"s_mul_i32 s59, {sSL}, 768")
    if OPT['pf0']:
        n = OPT['pf0n']
        P(f"s_lshr_b32 s58, {sMEM}, 1\ns_lshl_b32 s58, s58, 2\ns_add_u32 s58, s58, {sWV}\ns_mul_i32 s58, s58, {n}\ns_mul_i32 s60, s50, 192\ns_add_u32 s58, s58, s60")
        P(f"s_and_b32 s60, {sMEM}, {1 if OPT['prot'] else 0}\ns_mul_i32 s60, s60, 384\ns_add_u32 s65, s59, s60")
        P(f"v_min_u32 v15, {n-1}, v0\nv_add_u32 v15, s58, v15\nv_subrev_u32 v3, 576, v15\nv_min_u32 v15, v15, v3\nv_mul_u32_u24 v15, 9216, v15")
        P(f"buffer_load_dword v47, v15, {sWA}, s65 offen", tag='dummy')
    P(f"s_mul_i32 s63, {sSL}, {384*1152}\ns_mul_i32 s64, {sWV}, 6144")
    if OPT['fuse']: P(f"s_lshl_b32 {sSL}, {sROT}, 2\ns_add_u32 {sSL}, {sSL}, s38")
    P("s_load_dwordx2 s[72:73], s[0:1], 48")
    vFLW = 39
    if OPT['fuse']:
        flag_setup(P, vFLW, sSL, 'v14', True)
        hsk = handshake(sSL, 'v10', 'v11', True); P.add(hsk[:-1])
    def pf_w(which):
        Q = Prog()
        if which == 1:
            Q(f"s_mul_i32 s66, {sMEM}, {72*9216}\ns_add_u32 s66, s66, s59\ns_lshl_b32 s67, {sWV}, 6\ns_mov_b32 s68, {-(-(1<<32)//6)}")
            for i in range(2):
                Q(f"v_add_u32 v10, s67, v0")
                if i: Q(f"v_add_u32 v10, 256, v10\nv_min_u32 v10, 431, v10")
                Q(f"v_mul_hi_u32 v11, v10, s68\nv_lshlrev_b32 v10, 7, v10\nv_mul_u32_u24 v11, {9216-768}, v11\nv_add_u32 v10, v10, v11")
                Q(f"buffer_load_dword v47, v10, {sWA}, s66 offen", tag='dummy', cost=8)
        else:
            nb = OPT['nb2']; n = 108 // nb
            Q(f"s_lshl_b32 s71, {sMEM}, 2\ns_add_u32 s71, s71, {sWV}\ns_mul_i32 s71, s71, {108*128}\ns_add_u32 s71, s71, s63")
            Q(f"v_min_u32 v44, {n-1}, v0\nv_lshlrev_b32 v44, 7, v44")
            for i in range(nb):
                Q(f"buffer_load_dword v47, v44, {sWB}, s71 offen", tag='dummy', cost=8)
                if i < nb - 1: Q(f"s_add_u32 s71, s71, {n*128}")
        return Q.l
    P(f"v_lshrrev_b32 v2, 3, v0\nv_and_b32 v3, 7, v0")
    P(f"s_mul_i32 s58, {sWV}, 48\nv_add_u32 v4, s58, v2")
    P(f"v_bfe_u32 v5, v0, 4, 1\nv_lshlrev_b32 v5, 2, v5\nv_xor_b32 v5, v5, v3\nv_lshlrev_b32 v5, 4, v5")
    P(f"v_mul_u32_u24 v6, 9216, v4\nv_add_u32 v{vD1[0]}, v6, v5")
    for i in range(1, 4): P(f"v_add_u32 v{vD1[i]}, {i*(8*9216-1024)}, v{vD1[0]}")
    P(f"v_bfe_u32 v5, v0, 4, 2\nv_lshlrev_b32 v5, 1, v5\nv_xor_b32 v5, v5, v3\nv_lshlrev_b32 v5, 4, v5")
    P(f"v_mul_u32_u24 v6, 1152, v4\nv_add_u32 v{vD2[0]}, v6, v5")
    for i in range(1, 4): P(f"v_add_u32 v{vD2[i]}, {i*(8*1152-1024)}, v{vD2[0]}")
    P(f"s_and_b32 s35, {sMEM}, {1 if OPT['prot'] else 0}\ns_mul_i32 s39, s35, 384\ns_add_u32 s59, s59, s39\ns_lshl_b32 s39, s39, 1")
    for st in range(3): P(f"s_mul_i32 s{60+st}, s{50+st}, {192*9216}\ns_add_u32 s{60+st}, s{60+st}, s59")

    PA, PS = 40, 3
    g2 = [(0,0),(1,0),(2,0),(0,1),(1,1),(2,1)] + [(p,k) for p in range(3,9) for k in range(2)]
    def dma(s):
        slot = (s % NSLOT) * RING
        G = []
        if s < 18:
            p, st = s // 3, s % 3
            if p == 3: G += mk(f"s_sub_u32 s{60+st}, s{60+st}, s39")
            srd, vD, first, big = sWA, vD1, f"s_add_u32 s65, s{60+st}, {p*128}", 32 * 9216
        else:
            p, k = g2[s - 18]
            srd, vD, first, big = sWB, vD2, f"s_add_u32 s65, s{PA+p}, s{k}", 32 * 1152
        t = f"d{s}"
        G += mk(f"s_add_u32 m0, s64, {slot}\n{first}")
        for i in range(4): G += mk(f"buffer_load_dwordx4 v{vD[i]}, {srd}, s65 offen offset:{1024*i} lds", tag=t, cost=8)
        if OPT['d6'] and 6 <= s < 18:
            G += mk(f"s_add_u32 m0, s64, {slot+4096}")
            for i in range(2): G += mk(f"buffer_load_dwordx4 v{42+i}, {srd}, s65 offen offset:{1024*i} lds", tag=t, cost=8)
        else:
            G += mk(f"s_add_u32 m0, s64, {slot+4096}\ns_add_u32 s65, s65, {big}")
            for i in range(2): G += mk(f"buffer_load_dwordx4 v{vD[i]}, {srd}, s65 offen offset:{1024*i} lds", tag=t, cost=8)
        return G
    P(f"v_lshrrev_b32 v2, 5, v0\nv_lshlrev_b32 v2, 12, v2\nv_bfe_u32 v3, v0, 2, 2\nv_lshlrev_b32 v3, 7, v3\nv_add_u32 v2, v2, v3")
    P(f"v_bfe_u32 v3, v0, 4, 1\nv_lshlrev_b32 v3, 5, v3\nv_add_u32 v2, v2, v3\nv_and_b32 v3, 3, v0\nv_lshlrev_b32 v3, 3, v3\nv_add_u32 v2, v2, v3")
    P(f"v_bfe_u32 v3, v0, 3, 1\nv_lshlrev_b32 v3, 6, v3\nv_add_u32 v{vA1[0][0]}, v2, v3\nv_xor_b32 v{vA1[1][0]}, 64, v{vA1[0][0]}")
    P(f"v_lshrrev_b32 v2, 2, v0\nv_lshlrev_b32 v2, 7, v2\nv_and_b32 v3, 3, v0\nv_lshlrev_b32 v3, 3, v3\nv_add_u32 v2, v2, v3")
    P(f"s_and_b32 s69, {sWV}, 1\ns_lshl_b32 s69, s69, 1\nv_bfe_u32 v3, v0, 3, 2\nv_xor_b32 v3, s69, v3\nv_lshlrev_b32 v3, 5, v3")
    P(f"v_add_u32 v{vA2[0][0]}, v2, v3\nv_xor_b32 v{vA2[1][0]}, 32, v{vA2[0][0]}")
    for vA in (vA1, vA2):
        for u in range(2):
            for b in (1, 2): P(f"v_add_u32 v{vA[u][b]}, {b*2*RING}, v{vA[u][0]}")
    P(f"v_bfe_u32 v2, v0, 4, 1\nv_lshlrev_b32 v2, 10, v2\nv_lshrrev_b32 v3, 5, v0\nv_lshlrev_b32 v3, 8, v3\nv_add_u32 v2, v2, v3")
    P(f"v_and_b32 v3, 15, v0\nv_lshlrev_b32 v3, 4, v3\nv_add_u32 v2, v2, v3\ns_lshl_b32 s69, {sWV}, 11\ns_add_u32 s69, s69, {HX}\nv_add_u32 v{vHW}, s69, v2")
    if OPT['fuse']: P(f"s_and_b32 s69, {sSL}, 3\ns_lshl_b32 s69, s69, 10\nv_xor_b32 v{vHW}, s69, v{vHW}")
    P(f"v_lshlrev_b32 v{vST}, 4, v0\ns_lshr_b32 s69, {sWV}, 1\ns_lshl_b32 s69, s69, 12\ns_add_u32 s69, s69, {HX}\nv_add_u32 v{vHR}, s69, v{vST}")
    P(f"s_lshl_b32 s70, s38, 1\ns_lshr_b32 s69, {sWV}, 1\ns_add_u32 s70, s70, s69")
    P(f"s_mul_i32 s70, s70, 18\ns_and_b32 s69, {sWV}, 1\ns_add_u32 s70, s70, s69\ns_lshl_b32 s70, s70, 12\ns_add_u32 s70, s70, {WS_FIN}")
    P(f"s_lshr_b32 s66, {sSL}, 2\ns_mul_i32 s67, {sM}, 43\ns_lshr_b32 s67, s67, 7")
    P(f"s_mul_i32 s68, s67, 3\ns_sub_u32 s68, {sM}, s68\ns_add_u32 s68, s68, s66\ns_add_u32 s68, s68, 1")
    P(f"s_cmp_ge_u32 s68, 3\ns_cselect_b32 s69, 3, 0\ns_sub_u32 s68, s68, s69")
    P(f"s_cmp_ge_u32 s67, 3\ns_cselect_b32 s69, 3, 0\ns_sub_u32 s67, s67, s69")
    if not OPT['fuse']: P("s_mov_b32 s67, 0\ns_mov_b32 s68, 0")
    for ph in range(3):
        for k in range(3):
            p = 3 * ph + k
            P(f"s_mul_i32 s69, s68, 3\ns_add_u32 s69, s69, s67\ns_lshl_b32 s{PA+p}, s69, 7\ns_add_u32 s{PA+p}, s{PA+p}, s63\ns_lshl_b32 s{PS+p}, s69, 13\ns_add_u32 s{PS+p}, s{PS+p}, s70")
            P("s_add_u32 s67, s67, 1\ns_cmp_eq_u32 s67, 3\ns_cselect_b32 s67, 0, s67")
        if ph < 2: P("s_add_u32 s68, s68, 1\ns_cmp_eq_u32 s68, 3\ns_cselect_b32 s68, 0, s68")
    P(f"s_and_b32 s67, {sSL}, 3")
    for d in range(4): P(f"s_xor_b32 s{96+d}, s67, {d}\ns_mul_i32 s{96+d}, s{96+d}, {JS}\ns_add_u32 s{96+d}, s{96+d}, {1024*d}")
    P(f"s_and_b32 s68, {sWV}, 2\ns_lshl_b32 s68, s68, 1\ns_add_u32 s50, s67, s68\ns_mul_i32 s50, s50, 18\ns_and_b32 s68, {sWV}, 1\ns_add_u32 s50, s50, s68\ns_lshl_b32 s50, s50, 10\ns_add_u32 s50, s50, {WS_S}")
    P(f"s_mul_i32 s101, s66, {4*JS}\ns_add_u32 s101, s101, {WS_FB - WS_FIN}")
    P(f"s_add_u32 s68, s66, 1\ns_cmp_ge_u32 s68, 3\ns_cselect_b32 s68, 0, s68\ns_lshl_b32 s69, s68, 2\ns_add_u32 s51, s69, s67\ns_mul_i32 s100, s68, {4*JS}\ns_add_u32 s100, s100, {WS_FB - WS_FIN}")
    P(f"s_mul_i32 s49, s67, {-JS}\ns_lshl_b32 s68, s66, 2\ns_lshl_b32 s53, 15, s68\ns_lshl_b32 s68, 1, {sSL}\ns_andn2_b32 s53, s53, s68\ns_mov_b32 s52, 0xf000")
    P(f"v_and_b32 v2, 31, v0\nv_lshlrev_b32 v2, 7, v2\nv_add_u32 v2, s54, v2\nv_bfe_u32 v3, v0, 1, 3\nv_lshrrev_b32 v4, 5, v0\nv_lshlrev_b32 v4, 2, v4\nv_xor_b32 v3, v3, v4\nv_lshlrev_b32 v3, 4, v3")
    P(f"v_add_u32 v80, v2, v3\nv_xor_b32 v81, 16, v80\nv_xor_b32 v82, 32, v80\nv_xor_b32 v83, 48, v80")
    for j in range(4): P(f"v_add_u32 v{84+j}, 98304, v{80+j}")
    SEL = 40
    sel32(P, SEL)
    P("v_mov_b32 v8, 0\nv_mov_b32 v9, 0\nv_mov_b32 v12, 0\nv_mov_b32 v13, 0\ns_mov_b32 s57, 0x3f803f80")
    P(f"s_waitcnt lgkmcnt(0)\ns_mul_i32 s0, s35, {192*1152}\ns_sub_u32 s1, {192*1152}, s0\ns_mov_b32 s74, {2048*576*2}\ns_mov_b32 s75, 0x20000")
    setup = P.l; P.l = []
    fr = [[(XR + 4 * (4 * S + f), (80 if S < 6 else 84) + f, ((S // 3) % 2) * 49152 + (S % 3) * 4096, 0) for f in range(4)] for S in range(9)]
    d0, d1, d2 = dma(0), dma(1), dma(2)
    xphase(P, setup, fr, [[8, 9]], [[12, 13]], {5: d0[:6], 6: d0[6:], 7: d1[:6] if OPT['dpre'] > 1 else [], 8: (d1[6:] if OPT['dpre'] > 1 else []) + (d2[:6] if OPT['dpre'] == 3 else []), 9: d2[6:] if OPT['dpre'] == 3 else []})
    P("v_add_f32 v8, v8, v9\nv_add_f32 v12, v12, v13\nv_mov_b32 v9, v8\nv_mov_b32 v13, v12\nv_permlane32_swap_b32 v8, v9\nv_permlane32_swap_b32 v12, v13\nv_add_f32 v8, v8, v9\nv_add_f32 v12, v12, v13")
    def um(F): return mk(f"v_mfma_f32_32x32x16_bf16 {vr(ACC1+32+16*(F%2),16)}, {vr(SEL,4)}, {vr(XR+4*F,4)}, 0")
    def nv(F):
        d = ACC1 + 32 + 16 * (F % 2); x = XR + 4 * F
        o = []
        for j in range(8): o += mk(f"v_fma_f32 v{d+j}, v{d+j}, v2, v3")
        for j in range(4): o += mk(f"v_cvt_pk_bf16_f32 v{x+j}, v{d+2*j}, v{d+2*j+1}")
        return o
    P.add(um(0)); P.add(um(1))
    ln_stats(P, 'v8', 'v12', 'v4', 'v2', 'v3')
    P(f"v_mul_f32 v2, {hx(LOG2E)}, v2\nv_mul_f32 v3, v4, v2")

    uses = []
    for p in range(6):
        for st in range(3):
            s = 3 * p + st; slot = s % NSLOT
            for S in range(3):
                for ss in range(4):
                    F = st * 12 + S * 4 + ss
                    for u in range(2):
                        n = len(uses); af = AF + 4 * (n % 16)
                        off = (slot % 2) * RING + (64 * S + 8 * ss) * 128
                        va = vA1[u][slot // 2]
                        rd = mk(f"ds_read_b64_tr_b16 {ar(af,2)}, v{va} offset:{off}\nds_read_b64_tr_b16 {ar(af+2,2)}, v{va} offset:{off+512}", tag=f"r{n}")
                        acc = vr(ACC1 + 32 * (p % 2) + 16 * u, 16)
                        mf = mk(f"v_mfma_f32_32x32x16_bf16 {acc}, {ar(af,4)}, {vr(XR+4*F,4)}, {'0' if F == 0 else acc}")
                        uses.append((s, rd, mf))
    N1 = len(uses)
    ACC2 = XR; STG = XR + 128
    for si, (p, k) in enumerate(g2):
        s = 18 + si; slot = s % NSLOT
        for kk in range(6):
            ks = 6 * k + kk
            for u in range(2):
                n = len(uses); af = AF + 4 * (n % 16)
                off = (slot % 2) * RING + 32 * kk * 128
                va = vA2[u][slot // 2]
                rd = mk(f"ds_read_b64_tr_b16 {ar(af,2)}, v{va} offset:{off}\nds_read_b64_tr_b16 {ar(af+2,2)}, v{va} offset:{off+2048}", tag=f"r{n}")
                mf = []
                for j in (range(4) if not (OPT['snake'] and u) else range(3, -1, -1)):
                    acc = vr(ACC2 + 32 * (p % 4) + 8 * j + 4 * u, 4)
                    mf += mk(f"v_mfma_f32_16x16x32_bf16 {acc}, {ar(af,4)}, {ar(16*ks+4*j,4)}, {'0' if ks == 0 else acc}")
                uses.append((s, rd, mf))
    NU = len(uses)
    PD1, PD2 = OPT['pd1'], OPT['pd2']
    rd_at = {}
    for n in range(NU):
        if n < N1: g = n - PD1
        else:
            g = n - PD2
            if g < N1: g = N1 - 1 - 2 * (N1 - 1 - g)
        rd_at.setdefault(g, []).append(n)
    bar_at = {}
    for g in sorted(rd_at):
        for n in rd_at[g]:
            s = uses[n][0]
            if s not in bar_at: bar_at[s] = g
    extra_lw = {}
    def hw_tag(ks): return f"hw{ks}"
    def rstage(ks):
        p = ks // 2
        if p <= 3: return 3 * (p + 2) + 1
        if p == 4: return 19
        return 21
    for ks in range(1, 12, 2): extra_lw[rstage(ks)] = hw_tag(ks)
    def barrier(s):
        if s in extra_lw: return mk(f"WAITVL d{s}, {extra_lw[s]}\ns_barrier")
        return mk(f"WAITV d{s}\ns_barrier")
    P.add(barrier(0))
    for g in sorted(rd_at):
        if g < 0:
            for n in rd_at[g]: P.add(uses[n][1])
    P.add(nv(0))
    P("WAITL r3")
    stamp(P, 3)
    S16 = 16
    def ustart(p): return N1 + 12 * (6 + 2 * (p - 3))
    QP = {3: OPT['q3'], 4: OPT['q4'], 5: OPT['q5'], 6: 168 - OPT['lat1'], 7: 192 - OPT['lat1'], 8: 216 - OPT['lat1']}
    AP = {p: max(12 * (8 + 2 * (p - 3)), QP[p] + (OPT['lat0'] if p < 6 else OPT['lat1'])) for p in range(3, 9)}
    nacc = {N1 + AP[p]: p for p in range(3, 8)} if OPT['fuse'] else {}
    gacc = {}
    def HB(p): return 48 + 16 * (p % 2)
    def accum(dst, src, first=False):
        return mk(f"v_mfma_f32_16x16x32_bf16 {vr(dst,4)}, {vr(S16+2,4)}, {src}, {'0' if first else vr(dst,4)}\nv_mfma_f32_16x16x32_bf16 {vr(dst+4,4)}, {vr(S16,4)}, {src}, {'0' if first else vr(dst+4,4)}")
    def hopacc(p):
        L = []
        for j in range(4): L += accum(ACC2 + 32 * (p % 4) + 8 * j, vr(HB(p) + 4 * j, 4))
        return L[0::2] + L[1::2]
    SC = Sched()
    gi = {}
    gu = {}
    for n in range(NU):
        mf = uses[n][2]
        if n in nacc:
            SC.tail[-1] += mk(f"WAITV hl{nacc[n]}")
            for m_ in hopacc(nacc[n]): gacc[nacc[n]] = SC.gap([m_], 16)
        if n < 72 and n % 2 == 0 and n // 2 + 2 < 36:
            gu[n // 2 + 2] = SC.gap(um(n // 2 + 2), 32)
        bar = []
        for s, g in bar_at.items():
            if g == n: bar = barrier(s)
        rds = []
        for nn in rd_at.get(n, []): rds += uses[nn][1]
        if n < N1:
            g = SC.gap(mf, 32); gi[n] = g
            SC.mand[g] += bar + rds
            if n % 4 == 3 and n + 1 < N1: SC.tail[g] += mk(f"WAITL r{n+4}")
            if n == N1 - 1: SC.tail[g] += mk(f"WAITL r{n+2}")
        else:
            gs = [SC.gap([m], 16) for m in mf]; gi[n] = gs[0]
            if bar:
                SC.mand[gs[0]] += bar
                for i, t in enumerate(rds): SC.mand[gs[1 + i]].append(t)
            else:
                for i, t in enumerate(rds): SC.mand[gs[2 * i]].append(t)
            if (n - N1) % 2 == 1 and n + 1 < NU: SC.tail[gs[3]] += mk(f"WAITL r{n+2}")
    gi[NU] = len(SC.head)

    def silu(ks):
        p, u = ks // 2, ks % 2
        a = ACC1 + 32 * (p % 2) + 16 * u
        F = []
        T = [1, 2, 3, 4, 5, 6, 7, 46]
        stg = 8
        def E(q, j): return mk(f"v_exp_f32_e64 v{T[4*(q%2)+j]}, -v{a+4*q+j}")
        def Ad(q, j): return mk(f"v_add_f32 v{T[4*(q%2)+j]}, 1.0, v{T[4*(q%2)+j]}")
        def R(q, j): return mk(f"v_rcp_f32 v{T[4*(q%2)+j]}, v{T[4*(q%2)+j]}")
        def M(q, j): return mk(f"v_mul_f32 v{T[4*(q%2)+j]}, v{a+4*q+j}, v{T[4*(q%2)+j]}")
        def C(q):
            d = stg + 4 * (q % 2) + 2 * (q // 2); t = T[4*(q%2):4*(q%2)+4]
            o = mk(f"v_cvt_pk_bf16_f32 v{d}, v{t[0]}, v{t[1]}\nv_cvt_pk_bf16_f32 v{d+1}, v{t[2]}, v{t[3]}")
            if OPT['w64']: o += mk(f"ds_write_b64 v{vHW}, {vr(d,2)} offset:{(ks%4)*8192+512*(q%2)+8*(q//2)}", tag=hw_tag(ks), cost=OPT['w64'])
            elif q >= 2: o += mk(f"ds_write_b128 v{vHW}, {vr(stg+4*(q%2),4)} offset:{(ks%4)*8192+512*(q%2)}", tag=hw_tag(ks), cost=OPT['wcost'])
            return o
        for q in range(4):
            F += E(q, 0) + E(q, 1)
            F += E(q, 2) + Ad(q, 0) + Ad(q, 1)
            F += E(q, 3) + Ad(q, 2)
            F += R(q, 0) + Ad(q, 3)
            F += R(q, 1) + M(q, 0)
            F += R(q, 2) + M(q, 1)
            F += R(q, 3) + M(q, 2)
            c = C(q)
            F += [c[0]] + M(q, 3) + c[1:]
        return F
    def hread(ks):
        return flat([mk(f"ds_read_b128 {ar(16*ks+4*j,4)}, v{vHR} offset:{(ks%4)*8192+1024*j}", tag=f"hr{ks}") for j in range(4)])
    def epi(p):
        a = ACC2 + 32 * (p % 4)
        F = []
        for j in range(4):
            if OPT['fuse'] and p >= 6 and j == 0: continue
            for u in range(2):
                for h in range(2): F += mk(f"v_cvt_pk_bf16_f32 v{STG+4*j+2*u+h}, v{a+8*j+4*u+2*h}, v{a+8*j+4*u+2*h+1}")
            F += mk(f"buffer_store_dwordx4 {vr(STG+4*j,4)}, v{vST}, {sWS}, s{PS+p} offen offset:{1024*j}{STMOD if (p >= 6 or (p < 3 and OPT['hop0']) or OPT['hop1'] or not OPT['fuse']) else ''}", tag=f'st{p}', cost=8)
        return F

    for s in range(0, 33):
        g0 = gi[bar_at[s]] + 1 if bar_at[s] >= 0 else 0
        g1 = gi[bar_at[s + 1]]
        if OPT['dpre'] == 1 and s < 2: SC.place(dma(2 * s + 1) + dma(2 * s + 2), g0, g1 - (8 if s == 0 else 0), 'spread', f'dma{s+3}')
        else: SC.place((dma(2) if (s == 0 and OPT['dpre'] == 2) else []) + dma(s + 3), g0, g1, 'spread', f'dma{s+3}')
    for ks in range(12):
        g0 = gi[bar_at[rstage(ks)]] + 1 + (ks % 2) * 8
        SC.place(hread(ks), g0, g0 + 8, 'spread', f'hr{ks}')
    if OPT['fuse']:
        SC.place(hsk[-1:] + mk(f"v_add_u32 v42, {32*9216}, v{vD1[0]}\nv_add_u32 v43, {32*9216}, v{vD1[1]}"), gi[68], gi[74], 'asap', 'hsk')
        SC.place(mk(f"buffer_load_dword v47, v{vFLW}, {sWS}, s37 offen sc1", tag='dummy', cost=8), gi[205], gi[215], 'asap', 'pfflag')
        SC.place(mk(f"s_lshl_b32 s66, {sM}, 4\nv_and_b32 v40, 3, v0\nv_lshl_add_u32 v40, v40, 2, s66") + mk(f"buffer_load_dword v41, v40, {sDBG}, 0 offen sc1", tag='hc', cost=8), gi[426], gi[N1], 'asap', 'hc')
    if OPT['pfw'] & 1: SC.place(pf_w(1), 20, 70, 'spread', 'pf1')
    if OPT['pfw'] & 2: SC.place(pf_w(2), gi[90], gi[400], 'spread', 'pf2')
    for F in range(1, 36):
        g0 = gu.get(F + 1, gi[2 * (F - 1)]); g1 = gi[2 * (F - 1) + 1] + 1
        SC.place(nv(F), g0, g1, 'asap', f'nv{F}')
    for p in range(5):
        b = 72 * (p + 1)
        SC.place(silu(2 * p) + silu(2 * p + 1), gi[b + 2], gi[b + 72], 'asap', f'silu{p}')
    SC.place(silu(10) + silu(11), gi[N1] + 6, gi[bar_at[21]] - 2, 'asap', 'silu5')
    last_stage = {}; gepi = {}
    for si, (p, k) in enumerate(g2):
        if k == 1: last_stage[p] = si
    for p in range(8):
        g0 = gi[N1 + 12 * (last_stage[p] + 1)] + 5
        if p in gacc: g0 = gacc[p] + 5
        if OPT['fuse'] and p in (1, 2): g0 = gi[N1 + OPT['e%d' % p]]
        gepi[p] = SC.place(epi(p), g0, g0 + (42 if not OPT['fuse'] else 30), 'spread' if not OPT['fuse'] else 'asap', f'epi{p}')[-1]
    slow = []
    def gs(si, off=0): return gi[N1 + 12 * si] + off
    if OPT['fuse']:
        vFR, vFV, vXO, vC = 28, 29, 30, 31
        def site(name, load, tag, chk, g0, g1):
            L = mk(f"WAITV {tag}") + mk(chk) + mk(f"s_cbranch_scc0 L_slow{name}\nL_back{name}:")
            head, tailp = L[:-4], L[-4:]
            pos = SC.place(head, g0, g1, 'asap', name)
            SC.fill[pos[-1] + 1] += tailp
            slow.extend(mk(f"L_slow{name}:\ns_mov_b32 s68, 0\nL_spin{name}:\n{load}\ns_waitcnt vmcnt(0)\n{chk}\ns_cbranch_scc1 L_back{name}\ns_sleep 1\ns_add_u32 s68, s68, 1\ns_cmp_lt_u32 s68, 0x80000\ns_cbranch_scc1 L_spin{name}\ns_branch L_back{name}", cond=True))
            return pos[-1] + 2
        hload = f"buffer_load_dword v41, v40, {sDBG}, 0 offen sc1"
        g = site('H', hload, 'hc', f"v_and_b32 v42, 0xff, v41\nv_cmp_le_u32 vcc, 4, v42\ns_and_b32 s66, vcc_lo, 15\ns_cmp_eq_u32 s66, 15", gi[bar_at[21]], gi[bar_at[21]] + 16)
        MD = mk(f"v_readlane_b32 s66, v41, s38\ns_lshr_b32 s67, s66, 4\ns_xor_b32 s66, s66, s67")
        pos = SC.place(MD, g, g + 12, 'asap', 'mode')
        fb = "s_or_b32 s66, s66, 0x1000\n" if OPT['forcefb'] else ""
        SC.fill[pos[-1] + 1] += mk(f"{fb}s_and_b32 s66, s66, 0xff000\ns_cselect_b32 s58, 0, 1\n{'s_cmp_eq_u32 0, 0' if OPT['hop1'] else ''}\ns_cselect_b32 s100, s100, {4*JS}\ns_cselect_b32 s101, s101, {4*JS}\ns_sub_u32 s59, s100, s101")
        gfix = SC.place(mk("\n".join(f"s_add_u32 s{PS+p}, s{PS+p}, s101" for p in range(6))), pos[-1] + 2, gs(4), 'asap', 'psfix')[-1]
        SQ = Prog()
        SQ(f"s_lshl_b32 s66, {sM}, 7\ns_and_b32 s67, {sWV}, 2\ns_lshl_b32 s67, s67, 5\ns_add_u32 s66, s66, s67\ns_and_b32 s67, {sSL}, 2\ns_lshl_b32 s67, s67, 4\ns_add_u32 s66, s66, s67\ns_and_b32 s67, {sSL}, 1\ns_add_u32 s66, s66, s67")
        SQ(f"v_lshrrev_b32 v40, 2, v0\nv_lshlrev_b32 v40, 1, v40\nv_add_u32 v40, s66, v40\nv_mul_u32_u24 v40, 1152, v40\nv_and_b32 v41, 3, v0\nv_lshlrev_b32 v41, 4, v41\ns_and_b32 s67, {sWV}, 1\ns_lshl_b32 s67, s67, 6\nv_add3_u32 v{vXO}, v40, v41, s67")
        XV = 92; vL1, vL2, vL3 = 1, 2, 3
        SQ(f"s_lshl_b32 s36, {sWV}, 13\ns_add_u32 s36, s36, {HX}")
        SQ(f"v_and_b32 v40, 15, v0\nv_lshrrev_b32 v41, 4, v0\nv_lshlrev_b32 v41, 3, v41\nv_add_u32 v41, s36, v41\nv_lshl_add_u32 v{vL1}, v40, 6, v41\nv_mul_u32_u24 v40, 80, v40\nv_add_u32 v{vL2}, v40, v41")
        SQ(f"v_lshrrev_b32 v40, 2, v0\nv_mul_u32_u24 v40, 80, v40\nv_and_b32 v41, 3, v0\nv_lshlrev_b32 v41, 4, v41\nv_add3_u32 v{vL3}, v40, v41, s36")
        for k in range(3): SQ(f"s_sub_u32 s{60+k}, s{PA+6+k}, s63")
        SQ(f"s_lshl_b32 s67, {sWV}, 11\ns_and_b32 s66, {sWV}, 2\ns_bfe_u32 s68, {sSL}, 0x10001\ns_add_u32 s66, s66, s68\ns_lshl_b32 s66, s66, 11")
        SQ(f"s_lshl_b32 s51, s51, 7\ns_add_u32 s51, s51, s67\ns_add_u32 s51, s51, {WS_FLAG + HFOFF}\nv_mov_b32 v43, s51")
        SQ(f"v_and_b32 v40, 15, v0\nv_mov_b32 v41, s67\nv_mov_b32 v42, s66\nv_cmp_gt_u32 vcc, 12, v40\nv_lshlrev_b32 v40, 7, v40\nv_add_u32 v40, {WS_FLAG}, v40\nv_cndmask_b32 v41, v42, v41, vcc\nv_add_u32 v{vFR}, v40, v41")
        SQ(f"s_or_b32 vcc_lo, s52, s53\ns_mov_b32 vcc_hi, 0\nv_mov_b32 v40, 2.0\nv_cndmask_b32 v{vFR}, v40, v{vFR}, vcc")
        sel_consts(SQ, S16, 'v40', 'v41', 'v42')
        SQ('s_mov_b32 s16, s24\ns_mov_b32 s17, s25\ns_mov_b32 s57, 0xffff0000')
        SQ('v_lshlrev_b32 v41, 3, v0')
        SC.place(SQ.l, gfix + 1, gs(6, 20), 'asap', 'tailsetup')
        fload = f"buffer_load_dword v{vFV}, v{vFR}, {sWS}, 0 offen sc1"
        def chk(thr, mask): return f"v_cmp_le_u32 vcc, {thr}, v{vFV}\ns_and_b32 s66, vcc_lo, {mask}\ns_cmp_eq_u32 s66, {mask}"
        def fstore(val): return mk(f"buffer_store_dword v{vC}, v{vFLW}, {sWS}, 0 offen sc1", tag=f'fl{val}', cost=8)
        for p in range(6):
            g = gepi[p] + 4 * (OPT['fd0'] if ((p < 3 and OPT['hop0']) or OPT['hop1']) else OPT['fd1'])
            pos = SC.place(mk(f"v_mov_b32 v{vC}, {p+1}") + mk(f"WAITV st{p}"), g, g + 20, 'asap', f'flag{p}')
            hst = f"buffer_store_dword v{vC}, v{vFLW}, {sWS}, s37 offen"
            SC.fill[pos[-1] + 1] += mk(f"s_cmp_eq_u32 s58, 0\ns_cbranch_scc1 L_rel{p}") + mk(hst, tag=f'fl{p+1}', cost=8) + mk(f"L_relb{p}:")
            slow.extend(mk(f"L_rel{p}:\nbuffer_wbl2 sc1\ns_waitcnt vmcnt(0)\n{hst} sc1\ns_branch L_relb{p}", cond=True))
        pload = f"buffer_load_dword v{vFV}, v43, {sWS}, 0 offen sc1"
        def hloads(p):
            L = mk(f"s_add_u32 s69, s{PS+p}, {'s59' if p < 6 else 's100'}")
            for j in range(4): L += mk(f"buffer_load_dwordx4 {vr(HB(p)+4*j,4)}, v{vST}, {sWS}, s69 offen offset:{1024*j} sc1", tag=f"hl{p}", cost=8)
            return L
        ghl = {}
        for p in range(3, 9):
            u0 = N1 + QP[p]
            SC.place(mk(pload, tag=f'pp{p}', cost=8), gi[u0 - 1], gi[u0 + 1], 'asap', f'pp{p}')
            ck = f"v_cmp_le_u32 vcc, {p-2}, v{vFV}"
            pos = SC.place(mk(f"WAITV pp{p}") + mk(ck), gi[u0 + OPT['pchk']], gi[u0 + OPT['pchk'] + 1], 'asap', f'chk{p}')
            SC.fill[pos[-1] + 2] += mk(f"s_cbranch_vccz L_slowP{p}\nL_backP{p}:")
            slow.extend(mk(f"L_slowP{p}:\n" + (f"s_add_u32 s93, s93, {1 << (4*(p-3))}\n" if OPT['stamp'] else "") + f"s_mov_b32 s68, 0\nL_spinP{p}:\n{pload}\ns_waitcnt vmcnt(0)\n{ck}\ns_add_u32 s68, s68, 1\ns_nop 4\ns_cbranch_vccnz L_backP{p}\ns_cmp_lt_u32 s68, 0x80000\ns_cbranch_scc1 L_spinP{p}\ns_branch L_backP{p}", cond=True))
            ghl[p] = SC.place(hloads(p), pos[-1] + 3, gi[u0 + OPT['pchk'] + 5], 'asap', f'hl{p}')[-1]
        sQ = 's[16:19]'
        RS = [80, 84, 88]
        def sloads(srd, tag, cond=False):
            L = []
            for k in range(3):
                L += mk(f"s_lshl_b32 s69, s{60+k}, 4\ns_add_u32 s69, s69, s50", cond=cond)
                for u in range(2): L += mk(f"buffer_load_dwordx2 {vr(RS[k]+2*u,2)}, v41, {srd}, s69 offen offset:{512*u} sc1", tag=tag, cond=cond, cost=8)
            return L
        L = []
        for k in range(3): L += mk(f"s_add_u32 m0, s36, {1024*k}") + mk(f"buffer_load_dwordx4 v{vXO}, {sX}, s{60+k} offen lds", tag='xo', cost=8)
        L += mk(f"buffer_load_dword v42, v{vFR}, {sWS}, 0 offen sc1", tag='p0', cost=8)
        SC.place(L, max(ghl[7], gi[bar_at[33]]) + 1, ghl[7] + 30, 'asap', 'p0')
        pos = SC.place(mk("WAITV p0\nv_cmp_le_u32 s[70:71], 9, v42"), ghl[8] - 6, ghl[8] + 8, 'asap', 'chkS')
        SC.fill[pos[-1] + 1] += mk(f"s_and_b32 s66, s70, s52\ns_cmp_eq_u32 s66, s52\ns_cselect_b32 s18, {WS_BYTES}, 0\ns_cselect_b32 s54, 1, 0")
        L = []
        for k in range(3):
            for u in range(2): L += mk(f"ds_read_b64 {vr(XV+4*k+2*u,2)}, v{vL1} offset:{1024*k+32*u}", tag='xr')
        SC.place(L, pos[-1] + 2, gs(17, 30), 'asap', 'xr')
        g = SC.place(sloads(sQ, 'ls') + mk(fload, tag='p1', cost=8), max(ghl[8] + 1, pos[-1] + 2), gs(17, 40), 'asap', 'ls')[-1]
        SC.place(mk(f"v_mov_b32 v{vC}, 8") + mk("WAITV st7") + fstore(8), max(g + 1, gs(17, 32)), len(SC.head), 'asap', 'flag8')
    print("; gemm2 per-stage planned cycles:", [sum(16 + max(0, SC.used(g) - SC.cap[g]) for g in range(gs(i), gs(i + 1) if i < 17 else len(SC.head))) for i in range(18)], file=sys.stderr)
    print("; overflow cycles: pass0 %d, pass1-5 %d, gemm2 %d" % (SC.overflow(0, gi[72]), SC.overflow(gi[72], gi[N1]), SC.overflow(gi[N1])), file=sys.stderr)
    marks = [gi[72], gi[144], gi[N1], gi[N1 + 72]]
    ids = [4, 5, 6, 7]
    if OPT['marks'] == 2:
        marks = [gs(12), gs(13), gs(14), gs(15), gs(16), gs(17), len(SC.head)]; ids = [1, 2, 3, 4, 5, 6, 7]
    if OPT['marks'] == 3:
        marks = [gs(6), gs(7), gs(8), gs(9), gs(10), gs(11), gs(12)]; ids = [1, 2, 3, 4, 5, 6, 7]
    if OPT['marks'] == 5:
        marks = [gs(0), gs(1), gs(2), gs(3), gs(4), gs(5), gs(6)]; ids = [1, 2, 3, 4, 5, 6, 7]
    if OPT['marks'] == 6:
        marks = [gi[72], gi[144], gi[216], gi[288], gi[360], gi[N1]]; ids = [2, 3, 4, 5, 6, 7]
    if OPT['marks'] == 1:
        marks = [gs(0), gs(6), gs(8), gs(10), gs(12), gs(14), gs(16)]; ids = [1, 2, 3, 4, 5, 6, 7]
    prev = 0
    for i, g in zip(ids, marks):
        P.add(SC.emit(prev, g)); stamp(P, i); prev = g
    P.add(SC.emit(prev))
    if OPT['fuse']:
        P("WAITV hl8"); P.add(hopacc(8))
    P.add(epi(8))
    k0 = [i for i, x in enumerate(P.l) if x.text.startswith('WAITL r3')][0]
    def keep(x):
        if OPT['nosilu'] and x.base in ('v_exp_f32', 'v_rcp_f32', 'v_add_f32', 'v_mul_f32'): return False
        if OPT['nodma'] and x.kind == 'vmem' and 'lds' in x.mods: return False
        if OPT['nodma'] and x.op == 'WAITV': return False
        if OPT['nobar'] and x.kind == 'bar': return False
        if OPT['nost'] and (x.tag or '').startswith('st'): return False
        return True
    def fix(x):
        if OPT['nodma'] and x.op == 'WAITVL': return I('WAITL ' + x.ops[1])
        return x
    P.l = P.l[:k0] + [fix(x) for x in P.l[k0:] if keep(x)]
    stamp(P, 8)
    if OPT['fuse']:
        G = [ACC2 + 32 * ((6 + k) % 4) for k in range(3)]
        SS = [g + 8 for g in G]
        XU = 144
        def cloads(ks, srd, tag, cond=False):
            for k in ks:
                P(f"s_add_u32 s67, s{PS+6+k}, s49", cond=cond)
                for d in range(1, 4): P(f"s_add_u32 s69, s67, s{96+d}\nbuffer_load_dwordx4 {ar(12*k+4*(d-1),4)}, v{vST}, {srd}, s69 offen sc1", tag=tag, cond=cond)
        def spin(name, thr, mask):
            P(f"s_mov_b32 s68, 0\nL_spin{name}:", cond=True)
            P(fload + "\ns_waitcnt vmcnt(0)\n" + chk(thr, mask) + f"\ns_cbranch_scc1 L_done{name}\ns_sleep {OPT['slp']}\ns_add_u32 s68, s68, 1\ns_cmp_lt_u32 s68, 0x80000\ns_cbranch_scc1 L_spin{name}\nL_done{name}:", cond=True)
        def unitT(ks, acc=True):
            for k in (ks if acc else []):
                for d in range(3): P.add(accum(G[k], ar(12 * k + 4 * d, 4)))
            for k in ks:
                g_, t_ = G[k], G[k] + 16
                for i in range(8): P(f"v_exp_f32_e64 v{t_+i}, -v{g_+i}")
                for i in range(8): P(f"v_fma_f32 v{t_+i}, v{t_+i}, s71, s71")
                for i in range(8): P(f"v_rcp_f32 v{t_+i}, v{t_+i}")
                for i in range(8): P(f"v_mul_f32 v{g_+i}, v{g_+i}, v{t_+i}")
        P("WAITV p1\n" + chk(8, 's53') + f"\ns_cselect_b32 s18, {WS_BYTES}, 0\ns_cselect_b32 s55, 1, 0")
        cloads([0, 1], sQ, 'lc0')
        P(chk(9, 's53') + f"\ns_cselect_b32 s18, {WS_BYTES}, 0\ns_cselect_b32 s56, 1, 0")
        cloads([2], sQ, 'lc2')
        P(f"v_mov_b32 v{vC}, 9\ns_mov_b32 s71, {hx(LOG2E)}")
        for d in range(12): P(f"v_lshlrev_b32 v{XU+2*d}, 16, v{XV+d}\nv_and_b32 v{XU+2*d+1}, s57, v{XV+d}")
        P("WAITV st8"); P.add(fstore(9)); stamp(P, 12)
        P("s_cmp_eq_u32 s54, 1\ns_cbranch_scc1 L_chk8")
        P(chk(9, 's52') + "\ns_cbranch_scc0 L_chk8\ns_mov_b32 s54, 1", cond=True)
        P.add(sloads(sWS, 'ls1', True))
        P("L_chk8:")
        P("s_cmp_eq_u32 s55, 1\ns_cbranch_scc1 L_have8")
        spin('8', 8, 's53')
        cloads([0, 1], sWS, 'lc0b', True)
        P(chk(9, 's53') + f"\ns_cselect_b32 s18, {WS_BYTES}, 0\ns_cselect_b32 s56, 1, 0", cond=True)
        cloads([2], sQ, 'lc2c', True); P("s_waitcnt vmcnt(3)", cond=True)
        P("L_have8:")
        P(fload, tag='p2')
        P("WAITV lc0")
        stamp(P, 9)
        unitT([0, 1])
        P("s_waitcnt vmcnt(0)")
        P("s_cmp_eq_u32 s54, 1\ns_cbranch_scc1 L_chk9")
        P(chk(9, 's52') + "\ns_cbranch_scc0 L_chk9\ns_mov_b32 s54, 1", cond=True)
        P.add(sloads(sWS, 'ls2', True))
        P("L_chk9:")
        P("s_cmp_eq_u32 s56, 1\ns_cbranch_scc0 L_no9\ns_waitcnt vmcnt(0)\ns_branch L_have9\nL_no9:")
        P(chk(9, 's53') + "\ns_cbranch_scc1 L_done9", cond=True)
        spin('9', 9, 's53')
        cloads([2], sWS, 'lc2b', True); P("s_waitcnt vmcnt(3)", cond=True)
        P("L_have9:")
        stamp(P, 10)
        P("s_cmp_eq_u32 s54, 1\ns_cbranch_scc1 L_haveS")
        spin('S', 9, 's52')
        P.add(sloads(sWS, 'ls3', True)); P("s_waitcnt vmcnt(0)", cond=True)
        P("L_haveS:")
        def fin(k):
            g_, s_, pk = G[k], SS[k], G[k] + 24
            for i in range(8): P(f"v_fma_f32 v{g_+i}, v{g_+i}, v{s_+i}, v{XU+8*k+i}")
            for d in range(4): P(f"v_cvt_pk_bf16_f32 v{pk+d}, v{g_+2*d}, v{g_+2*d+1}")
            P(f"ds_write_b64 v{vL2}, {vr(pk,2)} offset:{4096+1280*k}\nds_write_b64 v{vL2}, {vr(pk+2,2)} offset:{4096+1280*k+32}", tag=f'ow{k}')
            P(f"ds_read_b128 {vr(pk+4,4)}, v{vL3} offset:{4096+1280*k}", tag=f'or{k}')
        def ost(k): P(f"WAITL or{k}\nbuffer_store_dwordx4 {vr(G[k]+28,4)}, v{vXO}, s[72:75], s{60+k} offen{['', ' sc1', ' nt'][OPT['omod']]}")
        for k in range(3):
            for d in range(4): P(f"v_lshlrev_b32 v{SS[k]+2*d}, 16, v{RS[k]+d}\nv_and_b32 v{SS[k]+2*d+1}, s57, v{RS[k]+d}")
        fin(0); fin(1)
        P("s_waitcnt vmcnt(0)")
        for d in range(3): P.add(accum(G[2], ar(24 + 4 * d, 4)))
        ost(0); ost(1)
        unitT([2], False)
        fin(2); ost(2)
        stamp(P, 11)
    stamp_flush(P, 12)
    P("s_endpgm")
    P.add(slow)
    return P.l

def attn():
    P = Prog()
    P("s_endpgm")
    return P.l

def final():
    P = Prog()
    P("s_endpgm")
    return P.l

def finish(lst):
    lst = resolve_waits(ungroup(lst))
    lst, nfix = fix_hazards(lst, OPT['verbose'])
    errs = check_scoreboard(lst)
    for e in errs[:20]: print("; SCOREBOARD ERR", e, file=sys.stderr)
    assert not errs
    lst, mis, sz = align_pass(lst)
    print(f"; hazard nops inserted: {nfix}, instrs: {len(lst)}, misaligned {mis}, bytes {sz}", file=sys.stderr)
    return lst

def main():
    try:
        import gen_attn
    except ImportError:
        gen_attn = None
    P0 = Prog(); common_prologue(P0)
    f = finish(P0.l + ffn())[:]
    a = finish(P0.l + (gen_attn.attn(globals()) if gen_attn and OPT['attn'] else attn()))
    a = a[[i for i, x in enumerate(a) if x.text.startswith('s_cbranch_scc1 L_attn')][0] + 1:]
    k2 = finish(gen_attn.final(globals()) if gen_attn else final())
    out = []
    MK = NAME + "_kernel" if OPT['fuse'] else "main_kernel"
    if OPT['fuse']: out.append(f"; @launch grid=(256,1,1) block=(256,1,1) lds={LDS_BYTES}")
    else:
        out.append(f"; @launch kernel=main_kernel grid=(256,1,1) block=(256,1,1) lds={LDS_BYTES}")
        out.append(f"; @launch kernel=final_kernel grid=(576,1,1) block=(256,1,1) lds=0")
    out.append('.amdgcn_target "amdgcn-amd-amdhsa--gfx950"\n.text')
    out.append(f".globl {MK}\n.p2align 8\n.type {MK},@function\n{MK}:\nL_main_start:")
    out += [x.text for x in f]
    out.append(".p2align 6\nL_attn:")
    out += [x.text for x in a]
    out.append("L_exit:\ns_endpgm\nL_main_end:")
    if not OPT['fuse']:
        out.append(".globl final_kernel\n.p2align 8\n.type final_kernel,@function\nfinal_kernel:")
        out += [x.text for x in k2]
    out.append('.section .rodata,"a"')
    for nm, nv, ao in ((MK, 512, 256), ("final_kernel", 96, 96))[:1 if OPT['fuse'] else 2]:
        out.append(f".p2align 6\n.amdhsa_kernel {nm}\n  .amdhsa_next_free_vgpr {nv}\n  .amdhsa_next_free_sgpr 102\n  .amdhsa_accum_offset {ao}\n  .amdhsa_group_segment_fixed_size 0\n  .amdhsa_kernarg_size 72\n  .amdhsa_user_sgpr_count 2\n  .amdhsa_user_sgpr_kernarg_segment_ptr 1\n  .amdhsa_system_sgpr_workgroup_id_x 1\n  .amdhsa_float_denorm_mode_32 3\n.end_amdhsa_kernel")
    txt = "\n".join(out) + "\n"
    import subprocess, re as _re, tempfile, os
    d = tempfile.mkdtemp()
    open(d + "/a.s", "w").write(txt.replace("CODE_PF_MAX", "0x12345"))
    r = subprocess.run(["clang", "-x", "assembler", "-target", "amdgcn-amd-amdhsa", "-mcpu=gfx950", "-c", d + "/a.s", "-o", d + "/a.o"], capture_output=True, text=True)
    assert r.returncode == 0, r.stderr
    sy = subprocess.run(["llvm-readelf", "-s", d + "/a.o"], capture_output=True, text=True).stdout
    def sym(n): return int([l for l in sy.splitlines() if l.strip().endswith(" " + n)][0].split()[1], 16)
    size = sym("L_main_end") - sym("L_main_start")
    print(f"; main code bytes {size}, attn at {sym('L_attn')}", file=sys.stderr)
    print(txt.replace("CODE_PF_MAX", str(size - 1024)))

if __name__ == "__main__":
    main()
```

```python
import sys, math
from asmlib import *

OPT = dict(map4=0, pf0=0, pf0n=36, prot=2, snake=1, w64=0, d6=1, bbx=1024, omod=0, q3=80, q4=94, q5=118, lat0=26, lat1=22, e1=62, e2=81, fd0=17, fd1=9, hop1=0, hop0=1, fdel0=44, pfwo=1, ofl=36, opl=50, ofl1=55, pfh0=216, nb2=2, hsplit=2, dpre=2, pst=0, xlead=3, slp=4, rt=0, pfh=0, pchk=9, fdel=32, a3=8, a4=3, cin=22, sat=15*12+4,  forcefb=0, marks=0, wcost=16, fuse=1, stmod=1, dbgwg=64, nosilu=0, nodma=0, nobar=0, nost=0, pd1=7, pd2=3, stamp=0, ffn=1, attn=1, verbose=0, rot=1, pfw=0, pfcode=1)
for a in sys.argv[1:]:
    k, v = a.split('='); OPT[k] = int(v)

STMOD = ['', ' sc1', ' nt', ' sc0 sc1', ' sc1 nt'][OPT['stmod']]
NAME = "recurrent_scan__sliding_local_dilated__dense_activation_silu__prompt"
LOG2E = 1.4426950408889634
LN2 = 0.6931471805599453
import struct
def f2u(f): return struct.unpack('<I', struct.pack('<f', f))[0]
def hx(f): return "0x%08x" % f2u(f)

JS = 147456
BB = 13 * JS + OPT['bbx']
WS_FIN = BB
WS_HOP = BB + 4 * JS
WS_S = BB + 8 * JS
WS_O = BB + 9 * JS
WS_KV = BB + 10 * JS
WS_FLAG = BB + 12 * JS
HFOFF = 8192
WS_FB = 34 << 20
WS_STAMP = 80 << 20
WS_BYTES = 96 << 20
LDS_BYTES = 155648

sX, sWA, sWB, sWS, sDBG = 's[12:15]', 's[16:19]', 's[20:23]', 's[24:27]', 's[28:31]'
sM, sSL, sWV, sROT, sMEM = 's32', 's33', 's34', 's35', 's36'

def vr(a, n): return f"v[{a}:{a+n-1}]" if n > 1 else f"v{a}"
def ar(a, n): return f"a[{a}:{a+n-1}]" if n > 1 else f"a{a}"

stamp_n = [0]
def stamp(P, idx):
    if not OPT['stamp']: return
    if OPT['pst']:
        if idx < 100 and idx != 3: return
        idx = 9 if idx == 3 else idx - 100
    elif idx >= 100: return
    P(f"{'s_memrealtime' if OPT['rt'] else 's_memtime'} s[78:79]\ns_waitcnt lgkmcnt(0)\ns_mov_b32 s{80+idx}, s78")
def stamp_flush(P, n):
    if not OPT['stamp']: return
    P(f"s_memrealtime s[78:79]\ns_waitcnt lgkmcnt(0)\ns_mov_b32 s{80+15}, s78")
    P(f"s_lshl_b32 s76, s2, 2\ns_add_u32 s76, s76, {sWV}\ns_lshl_b32 s76, s76, 6\ns_add_u32 s76, s76, {WS_STAMP}\ns_mul_i32 s77, {sM}, {BB}\ns_sub_u32 s76, s76, s77")
    P("v_mov_b32 v1, 0")
    for i in range(4):
        for j in range(4): P(f"v_mov_b32 v{4+j}, s{80+4*i+j}")
        P(f"buffer_store_dwordx4 v[4:7], v1, {sWS}, s76 offen offset:{16*i}")
        P("s_nop 1")

def round_bf16(P, dst, src):
    P(f"v_cvt_pk_bf16_f32 {dst}, {src}, {src}\nv_and_b32 {dst}, 0xffff0000, {dst}")

def ln_stats(P, vsum, vsq, vnegm, vr_, tmp):
    P(f"v_mul_f32 {vsum}, {hx(1/576)}, {vsum}")
    P(f"v_mul_f32 {vsq}, {hx(1/576)}, {vsq}")
    P(f"v_fma_f32 {vsq}, -{vsum}, {vsum}, {vsq}")
    P(f"v_max_f32 {vsq}, 0, {vsq}")
    round_bf16(P, vnegm, vsum)
    P(f"v_xor_b32 {vnegm}, 0x80000000, {vnegm}")
    round_bf16(P, vsq, vsq)
    P(f"v_add_f32 {vsq}, {hx(1e-5)}, {vsq}")
    round_bf16(P, vsq, vsq)
    P(f"v_sqrt_f32 {vsq}, {vsq}")
    round_bf16(P, vsq, vsq)
    P(f"v_rcp_f32 {vr_}, {vsq}")

def sel_consts(P, vsel, t0, t1, t2):
    P(f"v_mov_b32 v{vsel}, 0\nv_mov_b32 v{vsel+1}, 0\nv_mov_b32 v{vsel+4}, 0\nv_mov_b32 v{vsel+5}, 0")
    P(f"v_and_b32 {t0}, 1, v0\nv_lshlrev_b32 {t0}, 4, {t0}\nv_mov_b32 {t1}, 0x3f80\nv_lshlrev_b32 {t0}, {t0}, {t1}")
    P(f"v_bfe_u32 {t1}, v0, 2, 2\nv_lshrrev_b32 {t2}, 4, v0")
    P(f"v_cmp_eq_u32 vcc, {t1}, {t2}\nv_cndmask_b32 {t0}, 0, {t0}, vcc")
    P(f"v_and_b32 {t1}, 2, v0\nv_cmp_eq_u32 vcc, 0, {t1}")
    P(f"v_cndmask_b32 v{vsel+2}, 0, {t0}, vcc\nv_cndmask_b32 v{vsel+3}, {t0}, v{vsel}, vcc")

def common_prologue(P):
    P("s_cmp_ge_u32 s2, 256\ns_cbranch_scc1 L_exit")
    P("s_load_dwordx4 s[4:7], s[0:1], 0\ns_load_dwordx2 s[8:9], s[0:1], 16\ns_load_dwordx4 s[40:43], s[0:1], 32\ns_load_dwordx4 s[44:47], s[0:1], 56")
    P(f"v_lshrrev_b32 v1, 6, v0\nv_lshlrev_b32 v46, 7, v0\nv_readfirstlane_b32 {sWV}, v1\nv_and_b32 v0, 63, v0")
    if OPT['stamp']: P("s_memrealtime s[78:79]\ns_memtime s[76:77]")
    if OPT['pfcode']:
        P("s_getpc_b64 s[48:49]\ns_bfe_u32 s58, s2, 0x20003\ns_lshl_b32 s58, s58, 15\nv_add_u32 v46, s58, v46")
        P("v_min_u32 v46, CODE_PF_MAX, v46\nglobal_load_dword v47, v46, s[48:49]", tag='dummy')
    if OPT['stamp']:
        for i in range(80, 96): P(f's_mov_b32 s{i}, 0')
    if not OPT['map4']:
        P("s_and_b32 s37, s2, 1\ns_lshl_b32 s37, s37, 3")
        P("s_bfe_u32 s38, s2, 0x20001")
        P(f"s_lshr_b32 s39, s2, 3\ns_and_b32 {sMEM}, s39, 7\ns_add_u32 {sM}, s37, {sMEM}")
        P(f"s_lshl_b32 s51, s38, 1\ns_add_u32 s51, s51, s37\ns_lshr_b32 s52, s39, 2\ns_add_u32 s51, s51, s52")
    else:
        P(f"s_and_b32 s37, s2, 3\ns_lshl_b32 s37, s37, 2\ns_bfe_u32 s51, s2, 0x10002\ns_lshl_b32 s51, s51, 1\ns_lshr_b32 s39, s2, 3")
        P(f"s_bfe_u32 s52, s39, 0x10002\ns_add_u32 s38, s51, s52\ns_and_b32 {sMEM}, s39, 3\ns_add_u32 {sM}, s37, {sMEM}\ns_add_u32 s51, s38, s37")
    P(f"s_lshl_b32 s52, s39, 1\ns_and_b32 s52, s52, 6\ns_add_u32 s52, s52, s51\ns_mul_i32 s53, s52, 57\ns_lshr_b32 s53, s53, 9\ns_mul_i32 s53, s53, 9\ns_sub_u32 s52, s52, s53")
    P(f"s_lshr_b32 {sROT}, s39, 3\ns_sub_u32 {sROT}, {sROT}, 1\ns_mul_i32 s50, {sROT}, 3\ns_cmp_lt_u32 s39, 8\ns_cselect_b32 s50, s52, s50\ns_cselect_b32 {sM}, s51, {sM}")
    if not OPT['rot']: P(f"s_mov_b32 s50, 0")
    P(f"s_lshl_b32 s53, {sM}, 7\ns_lshl_b32 s54, {sWV}, 5\ns_add_u32 s53, s53, s54\ns_mul_i32 s53, s53, 1152")
    P(f"v_lshrrev_b32 v2, 3, v0\nv_mul_u32_u24 v2, 2304, v2\nv_lshrrev_b32 v3, 4, v0\nv_and_b32 v44, 7, v0\nv_xor_b32 v3, v3, v44\nv_lshlrev_b32 v3, 4, v3")
    P(f"v_add_u32 v44, v2, v3\nv_add_u32 v44, s53, v44\nv_xor_b32 v45, 64, v44\nv_add_u32 v45, {16*1152-1024}, v45")
    P(f"s_lshl_b32 s55, s50, 7\ns_mul_i32 s54, {sWV}, 12288")
    P("s_waitcnt lgkmcnt(0)")
    if OPT['stamp']: P("s_mov_b32 s94, s78\ns_mov_b32 s80, s76")
    P(f"s_mov_b32 s12, s4\ns_mov_b32 s13, s5\ns_mov_b32 s14, {2048*576*2}\ns_mov_b32 s15, 0x20000")
    stamp(P, 101)
    P.add(xdma(0, 0)); P.add(xdma(0, 1)); P.add(xdma(0, 2))
    stamp(P, 102)
    P(f"s_mul_i32 s24, {sM}, {BB}\ns_add_u32 s24, s24, s46\ns_addc_u32 s25, s47, 0\ns_mov_b32 s26, {WS_BYTES}\ns_mov_b32 s27, 0x20000")
    P(f"s_mov_b32 s28, s44\ns_mov_b32 s29, s45\ns_mov_b32 s30, 256\ns_mov_b32 s31, 0x20000")
    P("s_cmp_lt_u32 s39, 8\ns_cbranch_scc1 L_attn")

def xdma(st, S):
    Q = Prog()
    Q(f"s_add_u32 m0, s54, {st*49152+S*4096}\ns_add_u32 s56, s55, 1152")
    Q(f"buffer_load_dwordx4 v44, {sX}, s55 offen lds\nbuffer_load_dwordx4 v45, {sX}, s55 offen offset:1024 lds", tag=f"x{3*st+S}")
    Q(f"s_add_u32 m0, m0, 2048\ns_add_u32 s55, s55, 128")
    Q(f"buffer_load_dwordx4 v44, {sX}, s56 offen lds\nbuffer_load_dwordx4 v45, {sX}, s56 offen offset:1024 lds", tag=f"x{3*st+S}")
    Q(f"s_cmp_eq_u32 s55, 1152\ns_cselect_b32 s55, 0, s55")
    return Q.l

def weave(main, extra, every):
    out = []; k = 0; cnt = 0
    for idx, ins in enumerate(main):
        out.append(ins); cnt += 1
        nxt = main[idx + 1] if idx + 1 < len(main) else None
        safe = nxt is None or ('scc' not in nxt.rd and 'm0' not in nxt.rd)
        if k < len(extra) and cnt >= every and safe:
            out += extra[k]; k += 1; cnt = 0
    for g in extra[k:]: out += g
    return out

def xphase(P, setup, frags, sums, sqs, dmas, nfirst=3):
    lead = OPT['xlead']
    late = [x for x in setup if x.kind == 'vmem' and x.tag != 'dummy']
    P.add([x for x in setup if x.kind != 'vmem' or (x.tag == 'dummy' and OPT['pf0'] == 1)])
    if OPT['pf0'] == 2: P.add([x for x in setup if x.kind == 'vmem' and x.tag == 'dummy'])
    for S in range(nfirst, lead + 1): P.add(xdma(S // 3, S % 3))
    dmas = dict(dmas); dmas[9] = dmas.get(9, []) + late
    stamp(P, 1); stamp(P, 103)
    def dots(S):
        L = []
        for (d, a, o, k) in frags[S]:
            for j in range(4): L += mk(f"v_dot2c_f32_bf16 v{sums[k][j%2]}, s57, v{d+j}\nv_dot2c_f32_bf16 v{sqs[k][j%2]}, v{d+j}, v{d+j}")
        return L
    for S in range(10):
        if S < 9:
            P(f"WAITV x{S}")
            if S in (0, 2, 5, 8): stamp(P, 104 + (0, 2, 5, 8).index(S))
            for n, (d, a, o, k) in enumerate(frags[S]): P(f"ds_read_b128 {vr(d,4)}, v{a} offset:{o}", tag=f"xr{S}")
        if S == 8: stamp(P, 2)
        if S >= 1:
            P(f"WAITL xr{S-1}")
            if S - 1 in (2, 5): P("s_barrier")
        extra = []
        if S + lead + 1 < 9: extra += dgroups(xdma((S + lead + 1) // 3, (S + lead + 1) % 3))
        if S in dmas: extra += dgroups(dmas[S])
        body = dots(S - 1) if S >= 1 else []
        P.add(weave(body, extra, max(1, len(body) // (len(extra) + 1))))
    stamp(P, 108)

RING = 24576; NSLOT = 5; HX = RING * NSLOT
vA1 = [[16, 17, 18], [19, 20, 21]]; vA2 = [[22, 23, 24], [25, 26, 27]]
vD1 = [28, 29, 30, 31]; vD2 = [32, 33, 34, 35]
vHW, vHR, vST = 36, 37, 38
ACC1 = 48; XR = 112
AF = 192

def flag_setup(P, vFLW, sj, tmpv, hop=False):
    P(f"s_lshl_b32 s66, {sWV}, 11\ns_lshl_b32 s67, {sj}, 7\ns_add_u32 s66, s66, s67\ns_add_u32 s66, s66, {WS_FLAG}")
    P(f"v_lshrrev_b32 {tmpv}, 5, v0\nv_lshlrev_b32 {tmpv}, 30, {tmpv}\nv_lshl_add_u32 {tmpv}, v0, 2, {tmpv}\nv_add_u32 v{vFLW}, s66, {tmpv}\nv_mov_b32 {tmpv}, 0")
    P(f"buffer_store_dword {tmpv}, v{vFLW}, {sWS}, 0 offen sc1", tag='fz')
    if hop: P(f"s_mov_b32 s37, {HFOFF}\nbuffer_store_dword {tmpv}, v{vFLW}, {sWS}, s37 offen sc1", tag='fz')
def handshake(sj, va, vb, xcc=False):
    Q = Prog()
    Q(f"s_lshl_b32 s66, {sM}, 2\ns_and_b32 s67, {sj}, 3\ns_add_u32 s66, s66, s67\ns_lshl_b32 s66, s66, 2\ns_lshl_b32 s67, {sWV}, 8\ns_add_u32 s66, s66, s67")
    Q(f"v_lshlrev_b32 {va}, 8, v0\nv_add_u32 {va}, s66, {va}")
    Q(f"s_getreg_b32 s66, hwreg(HW_REG_XCC_ID)\ns_and_b32 s66, s66, 15\ns_and_b32 s67, {sj}, 12\ns_add_u32 s67, s67, 12\ns_lshl_b32 s66, s66, s67\ns_add_u32 s66, s66, 1\nv_mov_b32 {vb}, s66")
    Q(f"buffer_atomic_add {vb}, {va}, {sDBG}, 0 offen sc1", tag='hsk', cost=8)
    return Q.l

def sel32(P, SEL):
    P("v_and_b32 v2, 1, v0\nv_lshlrev_b32 v2, 4, v2\nv_mov_b32 v3, 0x3f80\nv_lshlrev_b32 v2, v2, v3")
    P("v_bfe_u32 v3, v0, 2, 1\nv_lshlrev_b32 v3, 1, v3\nv_lshrrev_b32 v4, 4, v0\nv_cmp_eq_u32 vcc, v3, v4\nv_cndmask_b32 v2, 0, v2, vcc")
    P("v_bfe_u32 v3, v0, 3, 1\nv_lshlrev_b32 v3, 1, v3\nv_bfe_u32 v4, v0, 1, 1\nv_add_u32 v3, v3, v4")
    for j in range(4): P(f"v_cmp_eq_u32 vcc, {j}, v3\nv_cndmask_b32 v{SEL+j}, 0, v2, vcc")

def dgroups(lst):
    G = []; cur = []
    for x in lst:
        cur.append(x)
        if x.kind == 'vmem': G.append(cur); cur = []
    if cur: G[-1] += cur
    return G

def flat(groups): return [x for g in groups for x in g]

def ffn():
    P = Prog()
    P(f"s_mov_b32 s50, {sROT}" if OPT['rot'] else "s_mov_b32 s50, 0")
    P(f"s_add_u32 s51, s50, 1\ns_cmp_ge_u32 s51, 3\ns_cselect_b32 s51, 0, s51\ns_add_u32 s52, s51, 1\ns_cmp_ge_u32 s52, 3\ns_cselect_b32 s52, 0, s52")
    P(f"s_mul_i32 {sSL}, s38, 3\ns_add_u32 {sSL}, {sSL}, {sROT}")
    P(f"s_mov_b32 s16, s40\ns_mov_b32 s17, s41\ns_mov_b32 s18, {576*4608*2}\ns_mov_b32 s19, 0x20000")
    P(f"s_mov_b32 s20, s42\ns_mov_b32 s21, s43\ns_mov_b32 s22, {576*4608*2}\ns_mov_b32 s23, 0x20000")
    P(f"s_mul_i32 s59, {sSL}, 768")
    if OPT['pf0']:
        n = OPT['pf0n']
        P(f"s_lshr_b32 s58, {sMEM}, 1\ns_lshl_b32 s58, s58, 2\ns_add_u32 s58, s58, {sWV}\ns_mul_i32 s58, s58, {n}\ns_mul_i32 s60, s50, 192\ns_add_u32 s58, s58, s60")
        P(f"s_and_b32 s60, {sMEM}, {1 if OPT['prot'] else 0}\ns_mul_i32 s60, s60, 384\ns_add_u32 s65, s59, s60")
        P(f"v_min_u32 v15, {n-1}, v0\nv_add_u32 v15, s58, v15\nv_subrev_u32 v3, 576, v15\nv_min_u32 v15, v15, v3\nv_mul_u32_u24 v15, 9216, v15")
        P(f"buffer_load_dword v47, v15, {sWA}, s65 offen", tag='dummy')
    P(f"s_mul_i32 s63, {sSL}, {384*1152}\ns_mul_i32 s64, {sWV}, 6144")
    if OPT['fuse']: P(f"s_lshl_b32 {sSL}, {sROT}, 2\ns_add_u32 {sSL}, {sSL}, s38")
    P("s_load_dwordx2 s[72:73], s[0:1], 48")
    vFLW = 39
    if OPT['fuse']:
        flag_setup(P, vFLW, sSL, 'v14', True)
        hsk = handshake(sSL, 'v10', 'v11', True); P.add(hsk[:-1])
    def pf_w(which):
        Q = Prog()
        if which == 1:
            Q(f"s_mul_i32 s66, {sMEM}, {72*9216}\ns_add_u32 s66, s66, s59\ns_lshl_b32 s67, {sWV}, 6\ns_mov_b32 s68, {-(-(1<<32)//6)}")
            for i in range(2):
                Q(f"v_add_u32 v10, s67, v0")
                if i: Q(f"v_add_u32 v10, 256, v10\nv_min_u32 v10, 431, v10")
                Q(f"v_mul_hi_u32 v11, v10, s68\nv_lshlrev_b32 v10, 7, v10\nv_mul_u32_u24 v11, {9216-768}, v11\nv_add_u32 v10, v10, v11")
                Q(f"buffer_load_dword v47, v10, {sWA}, s66 offen", tag='dummy', cost=8)
        else:
            nb = OPT['nb2']; n = 108 // nb
            Q(f"s_lshl_b32 s71, {sMEM}, 2\ns_add_u32 s71, s71, {sWV}\ns_mul_i32 s71, s71, {108*128}\ns_add_u32 s71, s71, s63")
            Q(f"v_min_u32 v44, {n-1}, v0\nv_lshlrev_b32 v44, 7, v44")
            for i in range(nb):
                Q(f"buffer_load_dword v47, v44, {sWB}, s71 offen", tag='dummy', cost=8)
                if i < nb - 1: Q(f"s_add_u32 s71, s71, {n*128}")
        return Q.l
    P(f"v_lshrrev_b32 v2, 3, v0\nv_and_b32 v3, 7, v0")
    P(f"s_mul_i32 s58, {sWV}, 48\nv_add_u32 v4, s58, v2")
    P(f"v_bfe_u32 v5, v0, 4, 1\nv_lshlrev_b32 v5, 2, v5\nv_xor_b32 v5, v5, v3\nv_lshlrev_b32 v5, 4, v5")
    P(f"v_mul_u32_u24 v6, 9216, v4\nv_add_u32 v{vD1[0]}, v6, v5")
    for i in range(1, 4): P(f"v_add_u32 v{vD1[i]}, {i*(8*9216-1024)}, v{vD1[0]}")
    P(f"v_bfe_u32 v5, v0, 4, 2\nv_lshlrev_b32 v5, 1, v5\nv_xor_b32 v5, v5, v3\nv_lshlrev_b32 v5, 4, v5")
    P(f"v_mul_u32_u24 v6, 1152, v4\nv_add_u32 v{vD2[0]}, v6, v5")
    for i in range(1, 4): P(f"v_add_u32 v{vD2[i]}, {i*(8*1152-1024)}, v{vD2[0]}")
    P(f"s_and_b32 s35, {sMEM}, {1 if OPT['prot'] else 0}\ns_mul_i32 s39, s35, 384\ns_add_u32 s59, s59, s39\ns_lshl_b32 s39, s39, 1")
    for st in range(3): P(f"s_mul_i32 s{60+st}, s{50+st}, {192*9216}\ns_add_u32 s{60+st}, s{60+st}, s59")

    PA, PS = 40, 3
    g2 = [(0,0),(1,0),(2,0),(0,1),(1,1),(2,1)] + [(p,k) for p in range(3,9) for k in range(2)]
    def dma(s):
        slot = (s % NSLOT) * RING
        G = []
        if s < 18:
            p, st = s // 3, s % 3
            if p == 3: G += mk(f"s_sub_u32 s{60+st}, s{60+st}, s39")
            srd, vD, first, big = sWA, vD1, f"s_add_u32 s65, s{60+st}, {p*128}", 32 * 9216
        else:
            p, k = g2[s - 18]
            srd, vD, first, big = sWB, vD2, f"s_add_u32 s65, s{PA+p}, s{k}", 32 * 1152
        t = f"d{s}"
        G += mk(f"s_add_u32 m0, s64, {slot}\n{first}")
        for i in range(4): G += mk(f"buffer_load_dwordx4 v{vD[i]}, {srd}, s65 offen offset:{1024*i} lds", tag=t, cost=8)
        if OPT['d6'] and 6 <= s < 18:
            G += mk(f"s_add_u32 m0, s64, {slot+4096}")
            for i in range(2): G += mk(f"buffer_load_dwordx4 v{42+i}, {srd}, s65 offen offset:{1024*i} lds", tag=t, cost=8)
        else:
            G += mk(f"s_add_u32 m0, s64, {slot+4096}\ns_add_u32 s65, s65, {big}")
            for i in range(2): G += mk(f"buffer_load_dwordx4 v{vD[i]}, {srd}, s65 offen offset:{1024*i} lds", tag=t, cost=8)
        return G
    P(f"v_lshrrev_b32 v2, 5, v0\nv_lshlrev_b32 v2, 12, v2\nv_bfe_u32 v3, v0, 2, 2\nv_lshlrev_b32 v3, 7, v3\nv_add_u32 v2, v2, v3")
    P(f"v_bfe_u32 v3, v0, 4, 1\nv_lshlrev_b32 v3, 5, v3\nv_add_u32 v2, v2, v3\nv_and_b32 v3, 3, v0\nv_lshlrev_b32 v3, 3, v3\nv_add_u32 v2, v2, v3")
    P(f"v_bfe_u32 v3, v0, 3, 1\nv_lshlrev_b32 v3, 6, v3\nv_add_u32 v{vA1[0][0]}, v2, v3\nv_xor_b32 v{vA1[1][0]}, 64, v{vA1[0][0]}")
    P(f"v_lshrrev_b32 v2, 2, v0\nv_lshlrev_b32 v2, 7, v2\nv_and_b32 v3, 3, v0\nv_lshlrev_b32 v3, 3, v3\nv_add_u32 v2, v2, v3")
    P(f"s_and_b32 s69, {sWV}, 1\ns_lshl_b32 s69, s69, 1\nv_bfe_u32 v3, v0, 3, 2\nv_xor_b32 v3, s69, v3\nv_lshlrev_b32 v3, 5, v3")
    P(f"v_add_u32 v{vA2[0][0]}, v2, v3\nv_xor_b32 v{vA2[1][0]}, 32, v{vA2[0][0]}")
    for vA in (vA1, vA2):
        for u in range(2):
            for b in (1, 2): P(f"v_add_u32 v{vA[u][b]}, {b*2*RING}, v{vA[u][0]}")
    P(f"v_bfe_u32 v2, v0, 4, 1\nv_lshlrev_b32 v2, 10, v2\nv_lshrrev_b32 v3, 5, v0\nv_lshlrev_b32 v3, 8, v3\nv_add_u32 v2, v2, v3")
    P(f"v_and_b32 v3, 15, v0\nv_lshlrev_b32 v3, 4, v3\nv_add_u32 v2, v2, v3\ns_lshl_b32 s69, {sWV}, 11\ns_add_u32 s69, s69, {HX}\nv_add_u32 v{vHW}, s69, v2")
    if OPT['fuse']: P(f"s_and_b32 s69, {sSL}, 3\ns_lshl_b32 s69, s69, 10\nv_xor_b32 v{vHW}, s69, v{vHW}")
    P(f"v_lshlrev_b32 v{vST}, 4, v0\ns_lshr_b32 s69, {sWV}, 1\ns_lshl_b32 s69, s69, 12\ns_add_u32 s69, s69, {HX}\nv_add_u32 v{vHR}, s69, v{vST}")
    P(f"s_lshl_b32 s70, s38, 1\ns_lshr_b32 s69, {sWV}, 1\ns_add_u32 s70, s70, s69")
    P(f"s_mul_i32 s70, s70, 18\ns_and_b32 s69, {sWV}, 1\ns_add_u32 s70, s70, s69\ns_lshl_b32 s70, s70, 12\ns_add_u32 s70, s70, {WS_FIN}")
    P(f"s_lshr_b32 s66, {sSL}, 2\ns_mul_i32 s67, {sM}, 43\ns_lshr_b32 s67, s67, 7")
    P(f"s_mul_i32 s68, s67, 3\ns_sub_u32 s68, {sM}, s68\ns_add_u32 s68, s68, s66\ns_add_u32 s68, s68, 1")
    P(f"s_cmp_ge_u32 s68, 3\ns_cselect_b32 s69, 3, 0\ns_sub_u32 s68, s68, s69")
    P(f"s_cmp_ge_u32 s67, 3\ns_cselect_b32 s69, 3, 0\ns_sub_u32 s67, s67, s69")
    if not OPT['fuse']: P("s_mov_b32 s67, 0\ns_mov_b32 s68, 0")
    for ph in range(3):
        for k in range(3):
            p = 3 * ph + k
            P(f"s_mul_i32 s69, s68, 3\ns_add_u32 s69, s69, s67\ns_lshl_b32 s{PA+p}, s69, 7\ns_add_u32 s{PA+p}, s{PA+p}, s63\ns_lshl_b32 s{PS+p}, s69, 13\ns_add_u32 s{PS+p}, s{PS+p}, s70")
            P("s_add_u32 s67, s67, 1\ns_cmp_eq_u32 s67, 3\ns_cselect_b32 s67, 0, s67")
        if ph < 2: P("s_add_u32 s68, s68, 1\ns_cmp_eq_u32 s68, 3\ns_cselect_b32 s68, 0, s68")
    P(f"s_and_b32 s67, {sSL}, 3")
    for d in range(4): P(f"s_xor_b32 s{96+d}, s67, {d}\ns_mul_i32 s{96+d}, s{96+d}, {JS}\ns_add_u32 s{96+d}, s{96+d}, {1024*d}")
    P(f"s_and_b32 s68, {sWV}, 2\ns_lshl_b32 s68, s68, 1\ns_add_u32 s50, s67, s68\ns_mul_i32 s50, s50, 18\ns_and_b32 s68, {sWV}, 1\ns_add_u32 s50, s50, s68\ns_lshl_b32 s50, s50, 10\ns_add_u32 s50, s50, {WS_S}")
    P(f"s_mul_i32 s101, s66, {4*JS}\ns_add_u32 s101, s101, {WS_FB - WS_FIN}")
    P(f"s_add_u32 s68, s66, 1\ns_cmp_ge_u32 s68, 3\ns_cselect_b32 s68, 0, s68\ns_lshl_b32 s69, s68, 2\ns_add_u32 s51, s69, s67\ns_mul_i32 s100, s68, {4*JS}\ns_add_u32 s100, s100, {WS_FB - WS_FIN}")
    P(f"s_mul_i32 s49, s67, {-JS}\ns_lshl_b32 s68, s66, 2\ns_lshl_b32 s53, 15, s68\ns_lshl_b32 s68, 1, {sSL}\ns_andn2_b32 s53, s53, s68\ns_mov_b32 s52, 0xf000")
    P(f"v_and_b32 v2, 31, v0\nv_lshlrev_b32 v2, 7, v2\nv_add_u32 v2, s54, v2\nv_bfe_u32 v3, v0, 1, 3\nv_lshrrev_b32 v4, 5, v0\nv_lshlrev_b32 v4, 2, v4\nv_xor_b32 v3, v3, v4\nv_lshlrev_b32 v3, 4, v3")
    P(f"v_add_u32 v80, v2, v3\nv_xor_b32 v81, 16, v80\nv_xor_b32 v82, 32, v80\nv_xor_b32 v83, 48, v80")
    for j in range(4): P(f"v_add_u32 v{84+j}, 98304, v{80+j}")
    SEL = 40
    sel32(P, SEL)
    P("v_mov_b32 v8, 0\nv_mov_b32 v9, 0\nv_mov_b32 v12, 0\nv_mov_b32 v13, 0\ns_mov_b32 s57, 0x3f803f80")
    P(f"s_waitcnt lgkmcnt(0)\ns_mul_i32 s0, s35, {192*1152}\ns_sub_u32 s1, {192*1152}, s0\ns_mov_b32 s74, {2048*576*2}\ns_mov_b32 s75, 0x20000")
    setup = P.l; P.l = []
    fr = [[(XR + 4 * (4 * S + f), (80 if S < 6 else 84) + f, ((S // 3) % 2) * 49152 + (S % 3) * 4096, 0) for f in range(4)] for S in range(9)]
    d0, d1, d2 = dma(0), dma(1), dma(2)
    xphase(P, setup, fr, [[8, 9]], [[12, 13]], {5: d0[:6], 6: d0[6:], 7: d1[:6] if OPT['dpre'] > 1 else [], 8: (d1[6:] if OPT['dpre'] > 1 else []) + (d2[:6] if OPT['dpre'] == 3 else []), 9: d2[6:] if OPT['dpre'] == 3 else []})
    P("v_add_f32 v8, v8, v9\nv_add_f32 v12, v12, v13\nv_mov_b32 v9, v8\nv_mov_b32 v13, v12\nv_permlane32_swap_b32 v8, v9\nv_permlane32_swap_b32 v12, v13\nv_add_f32 v8, v8, v9\nv_add_f32 v12, v12, v13")
    def um(F): return mk(f"v_mfma_f32_32x32x16_bf16 {vr(ACC1+32+16*(F%2),16)}, {vr(SEL,4)}, {vr(XR+4*F,4)}, 0")
    def nv(F):
        d = ACC1 + 32 + 16 * (F % 2); x = XR + 4 * F
        o = []
        for j in range(8): o += mk(f"v_fma_f32 v{d+j}, v{d+j}, v2, v3")
        for j in range(4): o += mk(f"v_cvt_pk_bf16_f32 v{x+j}, v{d+2*j}, v{d+2*j+1}")
        return o
    P.add(um(0)); P.add(um(1))
    ln_stats(P, 'v8', 'v12', 'v4', 'v2', 'v3')
    P(f"v_mul_f32 v2, {hx(LOG2E)}, v2\nv_mul_f32 v3, v4, v2")

    uses = []
    for p in range(6):
        for st in range(3):
            s = 3 * p + st; slot = s % NSLOT
            for S in range(3):
                for ss in range(4):
                    F = st * 12 + S * 4 + ss
                    for u in range(2):
                        n = len(uses); af = AF + 4 * (n % 16)
                        off = (slot % 2) * RING + (64 * S + 8 * ss) * 128
                        va = vA1[u][slot // 2]
                        rd = mk(f"ds_read_b64_tr_b16 {ar(af,2)}, v{va} offset:{off}\nds_read_b64_tr_b16 {ar(af+2,2)}, v{va} offset:{off+512}", tag=f"r{n}")
                        acc = vr(ACC1 + 32 * (p % 2) + 16 * u, 16)
                        mf = mk(f"v_mfma_f32_32x32x16_bf16 {acc}, {ar(af,4)}, {vr(XR+4*F,4)}, {'0' if F == 0 else acc}")
                        uses.append((s, rd, mf))
    N1 = len(uses)
    ACC2 = XR; STG = XR + 128
    for si, (p, k) in enumerate(g2):
        s = 18 + si; slot = s % NSLOT
        for kk in range(6):
            ks = 6 * k + kk
            for u in range(2):
                n = len(uses); af = AF + 4 * (n % 16)
                off = (slot % 2) * RING + 32 * kk * 128
                va = vA2[u][slot // 2]
                rd = mk(f"ds_read_b64_tr_b16 {ar(af,2)}, v{va} offset:{off}\nds_read_b64_tr_b16 {ar(af+2,2)}, v{va} offset:{off+2048}", tag=f"r{n}")
                mf = []
                for j in (range(4) if not (OPT['snake'] and u) else range(3, -1, -1)):
                    acc = vr(ACC2 + 32 * (p % 4) + 8 * j + 4 * u, 4)
                    mf += mk(f"v_mfma_f32_16x16x32_bf16 {acc}, {ar(af,4)}, {ar(16*ks+4*j,4)}, {'0' if ks == 0 else acc}")
                uses.append((s, rd, mf))
    NU = len(uses)
    PD1, PD2 = OPT['pd1'], OPT['pd2']
    rd_at = {}
    for n in range(NU):
        if n < N1: g = n - PD1
        else:
            g = n - PD2
            if g < N1: g = N1 - 1 - 2 * (N1 - 1 - g)
        rd_at.setdefault(g, []).append(n)
    bar_at = {}
    for g in sorted(rd_at):
        for n in rd_at[g]:
            s = uses[n][0]
            if s not in bar_at: bar_at[s] = g
    extra_lw = {}
    def hw_tag(ks): return f"hw{ks}"
    def rstage(ks):
        p = ks // 2
        if p <= 3: return 3 * (p + 2) + 1
        if p == 4: return 19
        return 21
    for ks in range(1, 12, 2): extra_lw[rstage(ks)] = hw_tag(ks)
    def barrier(s):
        if s in extra_lw: return mk(f"WAITVL d{s}, {extra_lw[s]}\ns_barrier")
        return mk(f"WAITV d{s}\ns_barrier")
    P.add(barrier(0))
    for g in sorted(rd_at):
        if g < 0:
            for n in rd_at[g]: P.add(uses[n][1])
    P.add(nv(0))
    P("WAITL r3")
    stamp(P, 3)
    S16 = 16
    def ustart(p): return N1 + 12 * (6 + 2 * (p - 3))
    QP = {3: OPT['q3'], 4: OPT['q4'], 5: OPT['q5'], 6: 168 - OPT['lat1'], 7: 192 - OPT['lat1'], 8: 216 - OPT['lat1']}
    AP = {p: max(12 * (8 + 2 * (p - 3)), QP[p] + (OPT['lat0'] if p < 6 else OPT['lat1'])) for p in range(3, 9)}
    nacc = {N1 + AP[p]: p for p in range(3, 8)} if OPT['fuse'] else {}
    gacc = {}
    def HB(p): return 48 + 16 * (p % 2)
    def accum(dst, src, first=False):
        return mk(f"v_mfma_f32_16x16x32_bf16 {vr(dst,4)}, {vr(S16+2,4)}, {src}, {'0' if first else vr(dst,4)}\nv_mfma_f32_16x16x32_bf16 {vr(dst+4,4)}, {vr(S16,4)}, {src}, {'0' if first else vr(dst+4,4)}")
    def hopacc(p):
        L = []
        for j in range(4): L += accum(ACC2 + 32 * (p % 4) + 8 * j, vr(HB(p) + 4 * j, 4))
        return L[0::2] + L[1::2]
    SC = Sched()
    gi = {}
    gu = {}
    for n in range(NU):
        mf = uses[n][2]
        if n in nacc:
            SC.tail[-1] += mk(f"WAITV hl{nacc[n]}")
            for m_ in hopacc(nacc[n]): gacc[nacc[n]] = SC.gap([m_], 16)
        if n < 72 and n % 2 == 0 and n // 2 + 2 < 36:
            gu[n // 2 + 2] = SC.gap(um(n // 2 + 2), 32)
        bar = []
        for s, g in bar_at.items():
            if g == n: bar = barrier(s)
        rds = []
        for nn in rd_at.get(n, []): rds += uses[nn][1]
        if n < N1:
            g = SC.gap(mf, 32); gi[n] = g
            SC.mand[g] += bar + rds
            if n % 4 == 3 and n + 1 < N1: SC.tail[g] += mk(f"WAITL r{n+4}")
            if n == N1 - 1: SC.tail[g] += mk(f"WAITL r{n+2}")
        else:
            gs = [SC.gap([m], 16) for m in mf]; gi[n] = gs[0]
            if bar:
                SC.mand[gs[0]] += bar
                for i, t in enumerate(rds): SC.mand[gs[1 + i]].append(t)
            else:
                for i, t in enumerate(rds): SC.mand[gs[2 * i]].append(t)
            if (n - N1) % 2 == 1 and n + 1 < NU: SC.tail[gs[3]] += mk(f"WAITL r{n+2}")
    gi[NU] = len(SC.head)

    def silu(ks):
        p, u = ks // 2, ks % 2
        a = ACC1 + 32 * (p % 2) + 16 * u
        F = []
        T = [1, 2, 3, 4, 5, 6, 7, 46]
        stg = 8
        def E(q, j): return mk(f"v_exp_f32_e64 v{T[4*(q%2)+j]}, -v{a+4*q+j}")
        def Ad(q, j): return mk(f"v_add_f32 v{T[4*(q%2)+j]}, 1.0, v{T[4*(q%2)+j]}")
        def R(q, j): return mk(f"v_rcp_f32 v{T[4*(q%2)+j]}, v{T[4*(q%2)+j]}")
        def M(q, j): return mk(f"v_mul_f32 v{T[4*(q%2)+j]}, v{a+4*q+j}, v{T[4*(q%2)+j]}")
        def C(q):
            d = stg + 4 * (q % 2) + 2 * (q // 2); t = T[4*(q%2):4*(q%2)+4]
            o = mk(f"v_cvt_pk_bf16_f32 v{d}, v{t[0]}, v{t[1]}\nv_cvt_pk_bf16_f32 v{d+1}, v{t[2]}, v{t[3]}")
            if OPT['w64']: o += mk(f"ds_write_b64 v{vHW}, {vr(d,2)} offset:{(ks%4)*8192+512*(q%2)+8*(q//2)}", tag=hw_tag(ks), cost=OPT['w64'])
            elif q >= 2: o += mk(f"ds_write_b128 v{vHW}, {vr(stg+4*(q%2),4)} offset:{(ks%4)*8192+512*(q%2)}", tag=hw_tag(ks), cost=OPT['wcost'])
            return o
        for q in range(4):
            F += E(q, 0) + E(q, 1)
            F += E(q, 2) + Ad(q, 0) + Ad(q, 1)
            F += E(q, 3) + Ad(q, 2)
            F += R(q, 0) + Ad(q, 3)
            F += R(q, 1) + M(q, 0)
            F += R(q, 2) + M(q, 1)
            F += R(q, 3) + M(q, 2)
            c = C(q)
            F += [c[0]] + M(q, 3) + c[1:]
        return F
    def hread(ks):
        return flat([mk(f"ds_read_b128 {ar(16*ks+4*j,4)}, v{vHR} offset:{(ks%4)*8192+1024*j}", tag=f"hr{ks}") for j in range(4)])
    def epi(p):
        a = ACC2 + 32 * (p % 4)
        F = []
        for j in range(4):
            if OPT['fuse'] and p >= 6 and j == 0: continue
            for u in range(2):
                for h in range(2): F += mk(f"v_cvt_pk_bf16_f32 v{STG+4*j+2*u+h}, v{a+8*j+4*u+2*h}, v{a+8*j+4*u+2*h+1}")
            F += mk(f"buffer_store_dwordx4 {vr(STG+4*j,4)}, v{vST}, {sWS}, s{PS+p} offen offset:{1024*j}{STMOD if (p >= 6 or (p < 3 and OPT['hop0']) or OPT['hop1'] or not OPT['fuse']) else ''}", tag=f'st{p}', cost=8)
        return F

    for s in range(0, 33):
        g0 = gi[bar_at[s]] + 1 if bar_at[s] >= 0 else 0
        g1 = gi[bar_at[s + 1]]
        if OPT['dpre'] == 1 and s < 2: SC.place(dma(2 * s + 1) + dma(2 * s + 2), g0, g1 - (8 if s == 0 else 0), 'spread', f'dma{s+3}')
        else: SC.place((dma(2) if (s == 0 and OPT['dpre'] == 2) else []) + dma(s + 3), g0, g1, 'spread', f'dma{s+3}')
    for ks in range(12):
        g0 = gi[bar_at[rstage(ks)]] + 1 + (ks % 2) * 8
        SC.place(hread(ks), g0, g0 + 8, 'spread', f'hr{ks}')
    if OPT['fuse']:
        SC.place(hsk[-1:] + mk(f"v_add_u32 v42, {32*9216}, v{vD1[0]}\nv_add_u32 v43, {32*9216}, v{vD1[1]}"), gi[68], gi[74], 'asap', 'hsk')
        SC.place(mk(f"buffer_load_dword v47, v{vFLW}, {sWS}, s37 offen sc1", tag='dummy', cost=8), gi[205], gi[215], 'asap', 'pfflag')
        SC.place(mk(f"s_lshl_b32 s66, {sM}, 4\nv_and_b32 v40, 3, v0\nv_lshl_add_u32 v40, v40, 2, s66") + mk(f"buffer_load_dword v41, v40, {sDBG}, 0 offen sc1", tag='hc', cost=8), gi[426], gi[N1], 'asap', 'hc')
    if OPT['pfw'] & 1: SC.place(pf_w(1), 20, 70, 'spread', 'pf1')
    if OPT['pfw'] & 2: SC.place(pf_w(2), gi[90], gi[400], 'spread', 'pf2')
    for F in range(1, 36):
        g0 = gu.get(F + 1, gi[2 * (F - 1)]); g1 = gi[2 * (F - 1) + 1] + 1
        SC.place(nv(F), g0, g1, 'asap', f'nv{F}')
    for p in range(5):
        b = 72 * (p + 1)
        SC.place(silu(2 * p) + silu(2 * p + 1), gi[b + 2], gi[b + 72], 'asap', f'silu{p}')
    SC.place(silu(10) + silu(11), gi[N1] + 6, gi[bar_at[21]] - 2, 'asap', 'silu5')
    last_stage = {}; gepi = {}
    for si, (p, k) in enumerate(g2):
        if k == 1: last_stage[p] = si
    for p in range(8):
        g0 = gi[N1 + 12 * (last_stage[p] + 1)] + 5
        if p in gacc: g0 = gacc[p] + 5
        if OPT['fuse'] and p in (1, 2): g0 = gi[N1 + OPT['e%d' % p]]
        gepi[p] = SC.place(epi(p), g0, g0 + (42 if not OPT['fuse'] else 30), 'spread' if not OPT['fuse'] else 'asap', f'epi{p}')[-1]
    slow = []
    def gs(si, off=0): return gi[N1 + 12 * si] + off
    if OPT['fuse']:
        vFR, vFV, vXO, vC = 28, 29, 30, 31
        def site(name, load, tag, chk, g0, g1):
            L = mk(f"WAITV {tag}") + mk(chk) + mk(f"s_cbranch_scc0 L_slow{name}\nL_back{name}:")
            head, tailp = L[:-4], L[-4:]
            pos = SC.place(head, g0, g1, 'asap', name)
            SC.fill[pos[-1] + 1] += tailp
            slow.extend(mk(f"L_slow{name}:\ns_mov_b32 s68, 0\nL_spin{name}:\n{load}\ns_waitcnt vmcnt(0)\n{chk}\ns_cbranch_scc1 L_back{name}\ns_sleep 1\ns_add_u32 s68, s68, 1\ns_cmp_lt_u32 s68, 0x80000\ns_cbranch_scc1 L_spin{name}\ns_branch L_back{name}", cond=True))
            return pos[-1] + 2
        hload = f"buffer_load_dword v41, v40, {sDBG}, 0 offen sc1"
        g = site('H', hload, 'hc', f"v_and_b32 v42, 0xff, v41\nv_cmp_le_u32 vcc, 4, v42\ns_and_b32 s66, vcc_lo, 15\ns_cmp_eq_u32 s66, 15", gi[bar_at[21]], gi[bar_at[21]] + 16)
        MD = mk(f"v_readlane_b32 s66, v41, s38\ns_lshr_b32 s67, s66, 4\ns_xor_b32 s66, s66, s67")
        pos = SC.place(MD, g, g + 12, 'asap', 'mode')
        fb = "s_or_b32 s66, s66, 0x1000\n" if OPT['forcefb'] else ""
        SC.fill[pos[-1] + 1] += mk(f"{fb}s_and_b32 s66, s66, 0xff000\ns_cselect_b32 s58, 0, 1\n{'s_cmp_eq_u32 0, 0' if OPT['hop1'] else ''}\ns_cselect_b32 s100, s100, {4*JS}\ns_cselect_b32 s101, s101, {4*JS}\ns_sub_u32 s59, s100, s101")
        gfix = SC.place(mk("\n".join(f"s_add_u32 s{PS+p}, s{PS+p}, s101" for p in range(6))), pos[-1] + 2, gs(4), 'asap', 'psfix')[-1]
        SQ = Prog()
        SQ(f"s_lshl_b32 s66, {sM}, 7\ns_and_b32 s67, {sWV}, 2\ns_lshl_b32 s67, s67, 5\ns_add_u32 s66, s66, s67\ns_and_b32 s67, {sSL}, 2\ns_lshl_b32 s67, s67, 4\ns_add_u32 s66, s66, s67\ns_and_b32 s67, {sSL}, 1\ns_add_u32 s66, s66, s67")
        SQ(f"v_lshrrev_b32 v40, 2, v0\nv_lshlrev_b32 v40, 1, v40\nv_add_u32 v40, s66, v40\nv_mul_u32_u24 v40, 1152, v40\nv_and_b32 v41, 3, v0\nv_lshlrev_b32 v41, 4, v41\ns_and_b32 s67, {sWV}, 1\ns_lshl_b32 s67, s67, 6\nv_add3_u32 v{vXO}, v40, v41, s67")
        XV = 92; vL1, vL2, vL3 = 1, 2, 3
        SQ(f"s_lshl_b32 s36, {sWV}, 13\ns_add_u32 s36, s36, {HX}")
        SQ(f"v_and_b32 v40, 15, v0\nv_lshrrev_b32 v41, 4, v0\nv_lshlrev_b32 v41, 3, v41\nv_add_u32 v41, s36, v41\nv_lshl_add_u32 v{vL1}, v40, 6, v41\nv_mul_u32_u24 v40, 80, v40\nv_add_u32 v{vL2}, v40, v41")
        SQ(f"v_lshrrev_b32 v40, 2, v0\nv_mul_u32_u24 v40, 80, v40\nv_and_b32 v41, 3, v0\nv_lshlrev_b32 v41, 4, v41\nv_add3_u32 v{vL3}, v40, v41, s36")
        for k in range(3): SQ(f"s_sub_u32 s{60+k}, s{PA+6+k}, s63")
        SQ(f"s_lshl_b32 s67, {sWV}, 11\ns_and_b32 s66, {sWV}, 2\ns_bfe_u32 s68, {sSL}, 0x10001\ns_add_u32 s66, s66, s68\ns_lshl_b32 s66, s66, 11")
        SQ(f"s_lshl_b32 s51, s51, 7\ns_add_u32 s51, s51, s67\ns_add_u32 s51, s51, {WS_FLAG + HFOFF}\nv_mov_b32 v43, s51")
        SQ(f"v_and_b32 v40, 15, v0\nv_mov_b32 v41, s67\nv_mov_b32 v42, s66\nv_cmp_gt_u32 vcc, 12, v40\nv_lshlrev_b32 v40, 7, v40\nv_add_u32 v40, {WS_FLAG}, v40\nv_cndmask_b32 v41, v42, v41, vcc\nv_add_u32 v{vFR}, v40, v41")
        SQ(f"s_or_b32 vcc_lo, s52, s53\ns_mov_b32 vcc_hi, 0\nv_mov_b32 v40, 2.0\nv_cndmask_b32 v{vFR}, v40, v{vFR}, vcc")
        sel_consts(SQ, S16, 'v40', 'v41', 'v42')
        SQ('s_mov_b32 s16, s24\ns_mov_b32 s17, s25\ns_mov_b32 s57, 0xffff0000')
        SQ('v_lshlrev_b32 v41, 3, v0')
        SC.place(SQ.l, gfix + 1, gs(6, 20), 'asap', 'tailsetup')
        fload = f"buffer_load_dword v{vFV}, v{vFR}, {sWS}, 0 offen sc1"
        def chk(thr, mask): return f"v_cmp_le_u32 vcc, {thr}, v{vFV}\ns_and_b32 s66, vcc_lo, {mask}\ns_cmp_eq_u32 s66, {mask}"
        def fstore(val): return mk(f"buffer_store_dword v{vC}, v{vFLW}, {sWS}, 0 offen sc1", tag=f'fl{val}', cost=8)
        for p in range(6):
            g = gepi[p] + 4 * (OPT['fd0'] if ((p < 3 and OPT['hop0']) or OPT['hop1']) else OPT['fd1'])
            pos = SC.place(mk(f"v_mov_b32 v{vC}, {p+1}") + mk(f"WAITV st{p}"), g, g + 20, 'asap', f'flag{p}')
            hst = f"buffer_store_dword v{vC}, v{vFLW}, {sWS}, s37 offen"
            SC.fill[pos[-1] + 1] += mk(f"s_cmp_eq_u32 s58, 0\ns_cbranch_scc1 L_rel{p}") + mk(hst, tag=f'fl{p+1}', cost=8) + mk(f"L_relb{p}:")
            slow.extend(mk(f"L_rel{p}:\nbuffer_wbl2 sc1\ns_waitcnt vmcnt(0)\n{hst} sc1\ns_branch L_relb{p}", cond=True))
        pload = f"buffer_load_dword v{vFV}, v43, {sWS}, 0 offen sc1"
        def hloads(p):
            L = mk(f"s_add_u32 s69, s{PS+p}, {'s59' if p < 6 else 's100'}")
            for j in range(4): L += mk(f"buffer_load_dwordx4 {vr(HB(p)+4*j,4)}, v{vST}, {sWS}, s69 offen offset:{1024*j} sc1", tag=f"hl{p}", cost=8)
            return L
        ghl = {}
        for p in range(3, 9):
            u0 = N1 + QP[p]
            SC.place(mk(pload, tag=f'pp{p}', cost=8), gi[u0 - 1], gi[u0 + 1], 'asap', f'pp{p}')
            ck = f"v_cmp_le_u32 vcc, {p-2}, v{vFV}"
            pos = SC.place(mk(f"WAITV pp{p}") + mk(ck), gi[u0 + OPT['pchk']], gi[u0 + OPT['pchk'] + 1], 'asap', f'chk{p}')
            SC.fill[pos[-1] + 2] += mk(f"s_cbranch_vccz L_slowP{p}\nL_backP{p}:")
            slow.extend(mk(f"L_slowP{p}:\n" + (f"s_add_u32 s93, s93, {1 << (4*(p-3))}\n" if OPT['stamp'] else "") + f"s_mov_b32 s68, 0\nL_spinP{p}:\n{pload}\ns_waitcnt vmcnt(0)\n{ck}\ns_add_u32 s68, s68, 1\ns_nop 4\ns_cbranch_vccnz L_backP{p}\ns_cmp_lt_u32 s68, 0x80000\ns_cbranch_scc1 L_spinP{p}\ns_branch L_backP{p}", cond=True))
            ghl[p] = SC.place(hloads(p), pos[-1] + 3, gi[u0 + OPT['pchk'] + 5], 'asap', f'hl{p}')[-1]
        sQ = 's[16:19]'
        RS = [80, 84, 88]
        def sloads(srd, tag, cond=False):
            L = []
            for k in range(3):
                L += mk(f"s_lshl_b32 s69, s{60+k}, 4\ns_add_u32 s69, s69, s50", cond=cond)
                for u in range(2): L += mk(f"buffer_load_dwordx2 {vr(RS[k]+2*u,2)}, v41, {srd}, s69 offen offset:{512*u} sc1", tag=tag, cond=cond, cost=8)
            return L
        L = []
        for k in range(3): L += mk(f"s_add_u32 m0, s36, {1024*k}") + mk(f"buffer_load_dwordx4 v{vXO}, {sX}, s{60+k} offen lds", tag='xo', cost=8)
        L += mk(f"buffer_load_dword v42, v{vFR}, {sWS}, 0 offen sc1", tag='p0', cost=8)
        SC.place(L, max(ghl[7], gi[bar_at[33]]) + 1, ghl[7] + 30, 'asap', 'p0')
        pos = SC.place(mk("WAITV p0\nv_cmp_le_u32 s[70:71], 9, v42"), ghl[8] - 6, ghl[8] + 8, 'asap', 'chkS')
        SC.fill[pos[-1] + 1] += mk(f"s_and_b32 s66, s70, s52\ns_cmp_eq_u32 s66, s52\ns_cselect_b32 s18, {WS_BYTES}, 0\ns_cselect_b32 s54, 1, 0")
        L = []
        for k in range(3):
            for u in range(2): L += mk(f"ds_read_b64 {vr(XV+4*k+2*u,2)}, v{vL1} offset:{1024*k+32*u}", tag='xr')
        SC.place(L, pos[-1] + 2, gs(17, 30), 'asap', 'xr')
        g = SC.place(sloads(sQ, 'ls') + mk(fload, tag='p1', cost=8), max(ghl[8] + 1, pos[-1] + 2), gs(17, 40), 'asap', 'ls')[-1]
        SC.place(mk(f"v_mov_b32 v{vC}, 8") + mk("WAITV st7") + fstore(8), max(g + 1, gs(17, 32)), len(SC.head), 'asap', 'flag8')
    print("; gemm2 per-stage planned cycles:", [sum(16 + max(0, SC.used(g) - SC.cap[g]) for g in range(gs(i), gs(i + 1) if i < 17 else len(SC.head))) for i in range(18)], file=sys.stderr)
    print("; overflow cycles: pass0 %d, pass1-5 %d, gemm2 %d" % (SC.overflow(0, gi[72]), SC.overflow(gi[72], gi[N1]), SC.overflow(gi[N1])), file=sys.stderr)
    marks = [gi[72], gi[144], gi[N1], gi[N1 + 72]]
    ids = [4, 5, 6, 7]
    if OPT['marks'] == 2:
        marks = [gs(12), gs(13), gs(14), gs(15), gs(16), gs(17), len(SC.head)]; ids = [1, 2, 3, 4, 5, 6, 7]
    if OPT['marks'] == 3:
        marks = [gs(6), gs(7), gs(8), gs(9), gs(10), gs(11), gs(12)]; ids = [1, 2, 3, 4, 5, 6, 7]
    if OPT['marks'] == 5:
        marks = [gs(0), gs(1), gs(2), gs(3), gs(4), gs(5), gs(6)]; ids = [1, 2, 3, 4, 5, 6, 7]
    if OPT['marks'] == 6:
        marks = [gi[72], gi[144], gi[216], gi[288], gi[360], gi[N1]]; ids = [2, 3, 4, 5, 6, 7]
    if OPT['marks'] == 1:
        marks = [gs(0), gs(6), gs(8), gs(10), gs(12), gs(14), gs(16)]; ids = [1, 2, 3, 4, 5, 6, 7]
    prev = 0
    for i, g in zip(ids, marks):
        P.add(SC.emit(prev, g)); stamp(P, i); prev = g
    P.add(SC.emit(prev))
    if OPT['fuse']:
        P("WAITV hl8"); P.add(hopacc(8))
    P.add(epi(8))
    k0 = [i for i, x in enumerate(P.l) if x.text.startswith('WAITL r3')][0]
    def keep(x):
        if OPT['nosilu'] and x.base in ('v_exp_f32', 'v_rcp_f32', 'v_add_f32', 'v_mul_f32'): return False
        if OPT['nodma'] and x.kind == 'vmem' and 'lds' in x.mods: return False
        if OPT['nodma'] and x.op == 'WAITV': return False
        if OPT['nobar'] and x.kind == 'bar': return False
        if OPT['nost'] and (x.tag or '').startswith('st'): return False
        return True
    def fix(x):
        if OPT['nodma'] and x.op == 'WAITVL': return I('WAITL ' + x.ops[1])
        return x
    P.l = P.l[:k0] + [fix(x) for x in P.l[k0:] if keep(x)]
    stamp(P, 8)
    if OPT['fuse']:
        G = [ACC2 + 32 * ((6 + k) % 4) for k in range(3)]
        SS = [g + 8 for g in G]
        XU = 144
        def cloads(ks, srd, tag, cond=False):
            for k in ks:
                P(f"s_add_u32 s67, s{PS+6+k}, s49", cond=cond)
                for d in range(1, 4): P(f"s_add_u32 s69, s67, s{96+d}\nbuffer_load_dwordx4 {ar(12*k+4*(d-1),4)}, v{vST}, {srd}, s69 offen sc1", tag=tag, cond=cond)
        def spin(name, thr, mask):
            P(f"s_mov_b32 s68, 0\nL_spin{name}:", cond=True)
            P(fload + "\ns_waitcnt vmcnt(0)\n" + chk(thr, mask) + f"\ns_cbranch_scc1 L_done{name}\ns_sleep {OPT['slp']}\ns_add_u32 s68, s68, 1\ns_cmp_lt_u32 s68, 0x80000\ns_cbranch_scc1 L_spin{name}\nL_done{name}:", cond=True)
        def unitT(ks, acc=True):
            for k in (ks if acc else []):
                for d in range(3): P.add(accum(G[k], ar(12 * k + 4 * d, 4)))
            for k in ks:
                g_, t_ = G[k], G[k] + 16
                for i in range(8): P(f"v_exp_f32_e64 v{t_+i}, -v{g_+i}")
                for i in range(8): P(f"v_fma_f32 v{t_+i}, v{t_+i}, s71, s71")
                for i in range(8): P(f"v_rcp_f32 v{t_+i}, v{t_+i}")
                for i in range(8): P(f"v_mul_f32 v{g_+i}, v{g_+i}, v{t_+i}")
        P("WAITV p1\n" + chk(8, 's53') + f"\ns_cselect_b32 s18, {WS_BYTES}, 0\ns_cselect_b32 s55, 1, 0")
        cloads([0, 1], sQ, 'lc0')
        P(chk(9, 's53') + f"\ns_cselect_b32 s18, {WS_BYTES}, 0\ns_cselect_b32 s56, 1, 0")
        cloads([2], sQ, 'lc2')
        P(f"v_mov_b32 v{vC}, 9\ns_mov_b32 s71, {hx(LOG2E)}")
        for d in range(12): P(f"v_lshlrev_b32 v{XU+2*d}, 16, v{XV+d}\nv_and_b32 v{XU+2*d+1}, s57, v{XV+d}")
        P("WAITV st8"); P.add(fstore(9)); stamp(P, 12)
        P("s_cmp_eq_u32 s54, 1\ns_cbranch_scc1 L_chk8")
        P(chk(9, 's52') + "\ns_cbranch_scc0 L_chk8\ns_mov_b32 s54, 1", cond=True)
        P.add(sloads(sWS, 'ls1', True))
        P("L_chk8:")
        P("s_cmp_eq_u32 s55, 1\ns_cbranch_scc1 L_have8")
        spin('8', 8, 's53')
        cloads([0, 1], sWS, 'lc0b', True)
        P(chk(9, 's53') + f"\ns_cselect_b32 s18, {WS_BYTES}, 0\ns_cselect_b32 s56, 1, 0", cond=True)
        cloads([2], sQ, 'lc2c', True); P("s_waitcnt vmcnt(3)", cond=True)
        P("L_have8:")
        P(fload, tag='p2')
        P("WAITV lc0")
        stamp(P, 9)
        unitT([0, 1])
        P("s_waitcnt vmcnt(0)")
        P("s_cmp_eq_u32 s54, 1\ns_cbranch_scc1 L_chk9")
        P(chk(9, 's52') + "\ns_cbranch_scc0 L_chk9\ns_mov_b32 s54, 1", cond=True)
        P.add(sloads(sWS, 'ls2', True))
        P("L_chk9:")
        P("s_cmp_eq_u32 s56, 1\ns_cbranch_scc0 L_no9\ns_waitcnt vmcnt(0)\ns_branch L_have9\nL_no9:")
        P(chk(9, 's53') + "\ns_cbranch_scc1 L_done9", cond=True)
        spin('9', 9, 's53')
        cloads([2], sWS, 'lc2b', True); P("s_waitcnt vmcnt(3)", cond=True)
        P("L_have9:")
        stamp(P, 10)
        P("s_cmp_eq_u32 s54, 1\ns_cbranch_scc1 L_haveS")
        spin('S', 9, 's52')
        P.add(sloads(sWS, 'ls3', True)); P("s_waitcnt vmcnt(0)", cond=True)
        P("L_haveS:")
        def fin(k):
            g_, s_, pk = G[k], SS[k], G[k] + 24
            for i in range(8): P(f"v_fma_f32 v{g_+i}, v{g_+i}, v{s_+i}, v{XU+8*k+i}")
            for d in range(4): P(f"v_cvt_pk_bf16_f32 v{pk+d}, v{g_+2*d}, v{g_+2*d+1}")
            P(f"ds_write_b64 v{vL2}, {vr(pk,2)} offset:{4096+1280*k}\nds_write_b64 v{vL2}, {vr(pk+2,2)} offset:{4096+1280*k+32}", tag=f'ow{k}')
            P(f"ds_read_b128 {vr(pk+4,4)}, v{vL3} offset:{4096+1280*k}", tag=f'or{k}')
        def ost(k): P(f"WAITL or{k}\nbuffer_store_dwordx4 {vr(G[k]+28,4)}, v{vXO}, s[72:75], s{60+k} offen{['', ' sc1', ' nt'][OPT['omod']]}")
        for k in range(3):
            for d in range(4): P(f"v_lshlrev_b32 v{SS[k]+2*d}, 16, v{RS[k]+d}\nv_and_b32 v{SS[k]+2*d+1}, s57, v{RS[k]+d}")
        fin(0); fin(1)
        P("s_waitcnt vmcnt(0)")
        for d in range(3): P.add(accum(G[2], ar(24 + 4 * d, 4)))
        ost(0); ost(1)
        unitT([2], False)
        fin(2); ost(2)
        stamp(P, 11)
    stamp_flush(P, 12)
    P("s_endpgm")
    P.add(slow)
    return P.l

def attn():
    P = Prog()
    P("s_endpgm")
    return P.l

def final():
    P = Prog()
    P("s_endpgm")
    return P.l

def finish(lst):
    lst = resolve_waits(ungroup(lst))
    lst, nfix = fix_hazards(lst, OPT['verbose'])
    errs = check_scoreboard(lst)
    for e in errs[:20]: print("; SCOREBOARD ERR", e, file=sys.stderr)
    assert not errs
    lst, mis, sz = align_pass(lst)
    print(f"; hazard nops inserted: {nfix}, instrs: {len(lst)}, misaligned {mis}, bytes {sz}", file=sys.stderr)
    return lst

def main():
    try:
        import gen_attn
    except ImportError:
        gen_attn = None
    P0 = Prog(); common_prologue(P0)
    f = finish(P0.l + ffn())[:]
    a = finish(P0.l + (gen_attn.attn(globals()) if gen_attn and OPT['attn'] else attn()))
    a = a[[i for i, x in enumerate(a) if x.text.startswith('s_cbranch_scc1 L_attn')][0] + 1:]
    k2 = finish(gen_attn.final(globals()) if gen_attn else final())
    out = []
    MK = NAME + "_kernel" if OPT['fuse'] else "main_kernel"
    if OPT['fuse']: out.append(f"; @launch grid=(256,1,1) block=(256,1,1) lds={LDS_BYTES}")
    else:
        out.append(f"; @launch kernel=main_kernel grid=(256,1,1) block=(256,1,1) lds={LDS_BYTES}")
        out.append(f"; @launch kernel=final_kernel grid=(576,1,1) block=(256,1,1) lds=0")
    out.append('.amdgcn_target "amdgcn-amd-amdhsa--gfx950"\n.text')
    out.append(f".globl {MK}\n.p2align 8\n.type {MK},@function\n{MK}:\nL_main_start:")
    out += [x.text for x in f]
    out.append(".p2align 6\nL_attn:")
    out += [x.text for x in a]
    out.append("L_exit:\ns_endpgm\nL_main_end:")
    if not OPT['fuse']:
        out.append(".globl final_kernel\n.p2align 8\n.type final_kernel,@function\nfinal_kernel:")
        out += [x.text for x in k2]
    out.append('.section .rodata,"a"')
    for nm, nv, ao in ((MK, 512, 256), ("final_kernel", 96, 96))[:1 if OPT['fuse'] else 2]:
        out.append(f".p2align 6\n.amdhsa_kernel {nm}\n  .amdhsa_next_free_vgpr {nv}\n  .amdhsa_next_free_sgpr 102\n  .amdhsa_accum_offset {ao}\n  .amdhsa_group_segment_fixed_size 0\n  .amdhsa_kernarg_size 72\n  .amdhsa_user_sgpr_count 2\n  .amdhsa_user_sgpr_kernarg_segment_ptr 1\n  .amdhsa_system_sgpr_workgroup_id_x 1\n  .amdhsa_float_denorm_mode_32 3\n.end_amdhsa_kernel")
    txt = "\n".join(out) + "\n"
    import subprocess, re as _re, tempfile, os
    d = tempfile.mkdtemp()
    open(d + "/a.s", "w").write(txt.replace("CODE_PF_MAX", "0x12345"))
    r = subprocess.run(["clang", "-x", "assembler", "-target", "amdgcn-amd-amdhsa", "-mcpu=gfx950", "-c", d + "/a.s", "-o", d + "/a.o"], capture_output=True, text=True)
    assert r.returncode == 0, r.stderr
    sy = subprocess.run(["llvm-readelf", "-s", d + "/a.o"], capture_output=True, text=True).stdout
    def sym(n): return int([l for l in sy.splitlines() if l.strip().endswith(" " + n)][0].split()[1], 16)
    size = sym("L_main_end") - sym("L_main_start")
    print(f"; main code bytes {size}, attn at {sym('L_attn')}", file=sys.stderr)
    print(txt.replace("CODE_PF_MAX", str(size - 1024)))

if __name__ == "__main__":
    main()
```

```python
import sys, math
from asmlib import *

OPT = dict(ash=0, msh=0, map4=0, pf0=0, pf0n=36, prot=2, snake=1, w64=0, d6=1, bbx=1024, omod=0, q3=80, q4=94, q5=118, lat0=26, lat1=22, e1=62, e2=81, fd0=17, fd1=9, hop1=0, hop0=1, fdel0=44, pfwo=1, ofl=36, opl=50, ofl1=55, pfh0=216, nb2=2, hsplit=2, dpre=2, pst=0, xlead=3, slp=4, rt=0, pfh=0, pchk=9, fdel=32, a3=8, a4=3, cin=22, sat=15*12+4,  forcefb=0, marks=0, wcost=16, fuse=1, stmod=1, dbgwg=64, nosilu=0, nodma=0, nobar=0, nost=0, pd1=7, pd2=3, stamp=0, ffn=1, attn=1, verbose=0, rot=1, pfw=0, pfcode=1)
for a in sys.argv[1:]:
    k, v = a.split('='); OPT[k] = int(v)

STMOD = ['', ' sc1', ' nt', ' sc0 sc1', ' sc1 nt'][OPT['stmod']]
NAME = "recurrent_scan__sliding_local_dilated__dense_activation_silu__prompt"
LOG2E = 1.4426950408889634
LN2 = 0.6931471805599453
import struct
def f2u(f): return struct.unpack('<I', struct.pack('<f', f))[0]
def hx(f): return "0x%08x" % f2u(f)

JS = 147456
BB = 13 * JS + OPT['bbx']
WS_FIN = BB
WS_HOP = BB + 4 * JS
WS_S = BB + 8 * JS
WS_O = BB + 9 * JS
WS_KV = BB + 10 * JS
WS_FLAG = BB + 12 * JS
HFOFF = 8192
WS_FB = 34 << 20
WS_STAMP = 80 << 20
WS_BYTES = 96 << 20
LDS_BYTES = 155648

sX, sWA, sWB, sWS, sDBG = 's[12:15]', 's[16:19]', 's[20:23]', 's[24:27]', 's[28:31]'
sM, sSL, sWV, sROT, sMEM = 's32', 's33', 's34', 's35', 's36'

def vr(a, n): return f"v[{a}:{a+n-1}]" if n > 1 else f"v{a}"
def ar(a, n): return f"a[{a}:{a+n-1}]" if n > 1 else f"a{a}"

stamp_n = [0]
def stamp(P, idx):
    if not OPT['stamp']: return
    if OPT['pst']:
        if idx < 100 and idx != 3: return
        idx = 9 if idx == 3 else idx - 100
    elif idx >= 100: return
    P(f"{'s_memrealtime' if OPT['rt'] else 's_memtime'} s[78:79]\ns_waitcnt lgkmcnt(0)\ns_mov_b32 s{80+idx}, s78")
def stamp_flush(P, n):
    if not OPT['stamp']: return
    P(f"s_memrealtime s[78:79]\ns_waitcnt lgkmcnt(0)\ns_mov_b32 s{80+15}, s78")
    P(f"s_lshl_b32 s76, s2, 2\ns_add_u32 s76, s76, {sWV}\ns_lshl_b32 s76, s76, 6\ns_add_u32 s76, s76, {WS_STAMP}\ns_mul_i32 s77, {sM}, {BB}\ns_sub_u32 s76, s76, s77")
    P("v_mov_b32 v1, 0")
    for i in range(4):
        for j in range(4): P(f"v_mov_b32 v{4+j}, s{80+4*i+j}")
        P(f"buffer_store_dwordx4 v[4:7], v1, {sWS}, s76 offen offset:{16*i}")
        P("s_nop 1")

def round_bf16(P, dst, src):
    P(f"v_cvt_pk_bf16_f32 {dst}, {src}, {src}\nv_and_b32 {dst}, 0xffff0000, {dst}")

def ln_stats(P, vsum, vsq, vnegm, vr_, tmp):
    P(f"v_mul_f32 {vsum}, {hx(1/576)}, {vsum}")
    P(f"v_mul_f32 {vsq}, {hx(1/576)}, {vsq}")
    P(f"v_fma_f32 {vsq}, -{vsum}, {vsum}, {vsq}")
    P(f"v_max_f32 {vsq}, 0, {vsq}")
    round_bf16(P, vnegm, vsum)
    P(f"v_xor_b32 {vnegm}, 0x80000000, {vnegm}")
    round_bf16(P, vsq, vsq)
    P(f"v_add_f32 {vsq}, {hx(1e-5)}, {vsq}")
    round_bf16(P, vsq, vsq)
    P(f"v_sqrt_f32 {vsq}, {vsq}")
    round_bf16(P, vsq, vsq)
    P(f"v_rcp_f32 {vr_}, {vsq}")

def sel_consts(P, vsel, t0, t1, t2):
    P(f"v_mov_b32 v{vsel}, 0\nv_mov_b32 v{vsel+1}, 0\nv_mov_b32 v{vsel+4}, 0\nv_mov_b32 v{vsel+5}, 0")
    P(f"v_and_b32 {t0}, 1, v0\nv_lshlrev_b32 {t0}, 4, {t0}\nv_mov_b32 {t1}, 0x3f80\nv_lshlrev_b32 {t0}, {t0}, {t1}")
    P(f"v_bfe_u32 {t1}, v0, 2, 2\nv_lshrrev_b32 {t2}, 4, v0")
    P(f"v_cmp_eq_u32 vcc, {t1}, {t2}\nv_cndmask_b32 {t0}, 0, {t0}, vcc")
    P(f"v_and_b32 {t1}, 2, v0\nv_cmp_eq_u32 vcc, 0, {t1}")
    P(f"v_cndmask_b32 v{vsel+2}, 0, {t0}, vcc\nv_cndmask_b32 v{vsel+3}, {t0}, v{vsel}, vcc")

def common_prologue(P):
    P("s_cmp_ge_u32 s2, 256\ns_cbranch_scc1 L_exit")
    P("s_load_dwordx4 s[4:7], s[0:1], 0\ns_load_dwordx2 s[8:9], s[0:1], 16\ns_load_dwordx4 s[40:43], s[0:1], 32\ns_load_dwordx4 s[44:47], s[0:1], 56")
    P(f"v_lshrrev_b32 v1, 6, v0\nv_lshlrev_b32 v46, 7, v0\nv_readfirstlane_b32 {sWV}, v1\nv_and_b32 v0, 63, v0")
    if OPT['stamp']: P("s_memrealtime s[78:79]\ns_memtime s[76:77]")
    if OPT['pfcode']:
        P("s_getpc_b64 s[48:49]\ns_bfe_u32 s58, s2, 0x20003\ns_lshl_b32 s58, s58, 15\nv_add_u32 v46, s58, v46")
        P("v_min_u32 v46, CODE_PF_MAX, v46\nglobal_load_dword v47, v46, s[48:49]", tag='dummy')
    if OPT['stamp']:
        for i in range(80, 96): P(f's_mov_b32 s{i}, 0')
    if not OPT['map4']:
        P("s_and_b32 s37, s2, 1\ns_lshl_b32 s37, s37, 3")
        P("s_bfe_u32 s38, s2, 0x20001")
        P(f"s_lshr_b32 s39, s2, 3\ns_and_b32 {sMEM}, s39, 7\ns_add_u32 {sM}, s37, {sMEM}")
        P(f"s_lshl_b32 s51, s38, 1\ns_add_u32 s51, s51, s37\ns_lshr_b32 s52, s39, 2\ns_add_u32 s51, s51, s52")
    elif OPT['map4'] == 2:
        P(f"s_and_b32 s37, s2, 7\ns_lshl_b32 s37, s37, 1\ns_lshr_b32 s39, s2, 3\ns_bfe_u32 s38, s39, 0x20001\ns_and_b32 {sMEM}, s39, 1\ns_add_u32 {sM}, s37, {sMEM}\ns_lshr_b32 s52, s39, 2\ns_add_u32 s51, s37, s52")
    else:
        P(f"s_and_b32 s37, s2, 3\ns_lshl_b32 s37, s37, 2\ns_bfe_u32 s51, s2, 0x10002\ns_lshl_b32 s51, s51, 1\ns_lshr_b32 s39, s2, 3")
        P(f"s_bfe_u32 s52, s39, 0x10002\ns_add_u32 s38, s51, s52\ns_and_b32 {sMEM}, s39, 3\ns_add_u32 {sM}, s37, {sMEM}\ns_add_u32 s51, s38, s37")
    P(f"s_lshl_b32 s52, s39, 1\ns_and_b32 s52, s52, 6\ns_lshr_b32 s53, s51, {OPT['ash']}\ns_add_u32 s52, s52, s53\ns_mul_i32 s53, s52, 57\ns_lshr_b32 s53, s53, 9\ns_mul_i32 s53, s53, 9\ns_sub_u32 s52, s52, s53")
    P(f"s_lshr_b32 {sROT}, s39, 3\ns_sub_u32 {sROT}, {sROT}, 1\ns_mul_i32 s50, {sROT}, 3\ns_cmp_lt_u32 s39, 8\ns_cselect_b32 s50, s52, s50\ns_cselect_b32 {sM}, s51, {sM}")
    if not OPT['rot']: P(f"s_mov_b32 s50, 0")
    P(f"s_lshl_b32 s53, {sM}, 7\ns_lshl_b32 s54, {sWV}, 5\ns_add_u32 s53, s53, s54\ns_mul_i32 s53, s53, 1152")
    P(f"v_lshrrev_b32 v2, 3, v0\nv_mul_u32_u24 v2, 2304, v2\nv_lshrrev_b32 v3, 4, v0\nv_and_b32 v44, 7, v0\nv_xor_b32 v3, v3, v44\nv_lshlrev_b32 v3, 4, v3")
    P(f"v_add_u32 v44, v2, v3\nv_add_u32 v44, s53, v44\nv_xor_b32 v45, 64, v44\nv_add_u32 v45, {16*1152-1024}, v45")
    P(f"s_lshl_b32 s55, s50, 7\ns_mul_i32 s54, {sWV}, 12288")
    P("s_waitcnt lgkmcnt(0)")
    if OPT['stamp']: P("s_mov_b32 s94, s78\ns_mov_b32 s80, s76")
    P(f"s_mov_b32 s12, s4\ns_mov_b32 s13, s5\ns_mov_b32 s14, {2048*576*2}\ns_mov_b32 s15, 0x20000")
    stamp(P, 101)
    P.add(xdma(0, 0)); P.add(xdma(0, 1)); P.add(xdma(0, 2))
    stamp(P, 102)
    P(f"s_mul_i32 s24, {sM}, {BB}\ns_add_u32 s24, s24, s46\ns_addc_u32 s25, s47, 0\ns_mov_b32 s26, {WS_BYTES}\ns_mov_b32 s27, 0x20000")
    P(f"s_mov_b32 s28, s44\ns_mov_b32 s29, s45\ns_mov_b32 s30, 256\ns_mov_b32 s31, 0x20000")
    P("s_cmp_lt_u32 s39, 8\ns_cbranch_scc1 L_attn")

def xdma(st, S):
    Q = Prog()
    Q(f"s_add_u32 m0, s54, {st*49152+S*4096}\ns_add_u32 s56, s55, 1152")
    Q(f"buffer_load_dwordx4 v44, {sX}, s55 offen lds\nbuffer_load_dwordx4 v45, {sX}, s55 offen offset:1024 lds", tag=f"x{3*st+S}")
    Q(f"s_add_u32 m0, m0, 2048\ns_add_u32 s55, s55, 128")
    Q(f"buffer_load_dwordx4 v44, {sX}, s56 offen lds\nbuffer_load_dwordx4 v45, {sX}, s56 offen offset:1024 lds", tag=f"x{3*st+S}")
    Q(f"s_cmp_eq_u32 s55, 1152\ns_cselect_b32 s55, 0, s55")
    return Q.l

def weave(main, extra, every):
    out = []; k = 0; cnt = 0
    for idx, ins in enumerate(main):
        out.append(ins); cnt += 1
        nxt = main[idx + 1] if idx + 1 < len(main) else None
        safe = nxt is None or ('scc' not in nxt.rd and 'm0' not in nxt.rd)
        if k < len(extra) and cnt >= every and safe:
            out += extra[k]; k += 1; cnt = 0
    for g in extra[k:]: out += g
    return out

def xphase(P, setup, frags, sums, sqs, dmas, nfirst=3):
    lead = OPT['xlead']
    late = [x for x in setup if x.kind == 'vmem' and x.tag != 'dummy']
    P.add([x for x in setup if x.kind != 'vmem' or (x.tag == 'dummy' and OPT['pf0'] == 1)])
    if OPT['pf0'] == 2: P.add([x for x in setup if x.kind == 'vmem' and x.tag == 'dummy'])
    for S in range(nfirst, lead + 1): P.add(xdma(S // 3, S % 3))
    dmas = dict(dmas); dmas[9] = dmas.get(9, []) + late
    stamp(P, 1); stamp(P, 103)
    def dots(S):
        L = []
        for (d, a, o, k) in frags[S]:
            for j in range(4): L += mk(f"v_dot2c_f32_bf16 v{sums[k][j%2]}, s57, v{d+j}\nv_dot2c_f32_bf16 v{sqs[k][j%2]}, v{d+j}, v{d+j}")
        return L
    for S in range(10):
        if S < 9:
            P(f"WAITV x{S}")
            if S in (0, 2, 5, 8): stamp(P, 104 + (0, 2, 5, 8).index(S))
            for n, (d, a, o, k) in enumerate(frags[S]): P(f"ds_read_b128 {vr(d,4)}, v{a} offset:{o}", tag=f"xr{S}")
        if S == 8: stamp(P, 2)
        if S >= 1:
            P(f"WAITL xr{S-1}")
            if S - 1 in (2, 5): P("s_barrier")
        extra = []
        if S + lead + 1 < 9: extra += dgroups(xdma((S + lead + 1) // 3, (S + lead + 1) % 3))
        if S in dmas: extra += dgroups(dmas[S])
        body = dots(S - 1) if S >= 1 else []
        P.add(weave(body, extra, max(1, len(body) // (len(extra) + 1))))
    stamp(P, 108)

RING = 24576; NSLOT = 5; HX = RING * NSLOT
vA1 = [[16, 17, 18], [19, 20, 21]]; vA2 = [[22, 23, 24], [25, 26, 27]]
vD1 = [28, 29, 30, 31]; vD2 = [32, 33, 34, 35]
vHW, vHR, vST = 36, 37, 38
ACC1 = 48; XR = 112
AF = 192

def flag_setup(P, vFLW, sj, tmpv, hop=False):
    P(f"s_lshl_b32 s66, {sWV}, 11\ns_lshl_b32 s67, {sj}, 7\ns_add_u32 s66, s66, s67\ns_add_u32 s66, s66, {WS_FLAG}")
    P(f"v_lshrrev_b32 {tmpv}, 5, v0\nv_lshlrev_b32 {tmpv}, 30, {tmpv}\nv_lshl_add_u32 {tmpv}, v0, 2, {tmpv}\nv_add_u32 v{vFLW}, s66, {tmpv}\nv_mov_b32 {tmpv}, 0")
    P(f"buffer_store_dword {tmpv}, v{vFLW}, {sWS}, 0 offen sc1", tag='fz')
    if hop: P(f"s_mov_b32 s37, {HFOFF}\nbuffer_store_dword {tmpv}, v{vFLW}, {sWS}, s37 offen sc1", tag='fz')
def handshake(sj, va, vb, xcc=False):
    Q = Prog()
    Q(f"s_lshl_b32 s66, {sM}, 2\ns_and_b32 s67, {sj}, 3\ns_add_u32 s66, s66, s67\ns_lshl_b32 s66, s66, 2\ns_lshl_b32 s67, {sWV}, 8\ns_add_u32 s66, s66, s67")
    Q(f"v_lshlrev_b32 {va}, 8, v0\nv_add_u32 {va}, s66, {va}")
    Q(f"s_getreg_b32 s66, hwreg(HW_REG_XCC_ID)\ns_and_b32 s66, s66, 15\ns_and_b32 s67, {sj}, 12\ns_add_u32 s67, s67, 12\ns_lshl_b32 s66, s66, s67\ns_add_u32 s66, s66, 1\nv_mov_b32 {vb}, s66")
    Q(f"buffer_atomic_add {vb}, {va}, {sDBG}, 0 offen sc1", tag='hsk', cost=8)
    return Q.l

def sel32(P, SEL):
    P("v_and_b32 v2, 1, v0\nv_lshlrev_b32 v2, 4, v2\nv_mov_b32 v3, 0x3f80\nv_lshlrev_b32 v2, v2, v3")
    P("v_bfe_u32 v3, v0, 2, 1\nv_lshlrev_b32 v3, 1, v3\nv_lshrrev_b32 v4, 4, v0\nv_cmp_eq_u32 vcc, v3, v4\nv_cndmask_b32 v2, 0, v2, vcc")
    P("v_bfe_u32 v3, v0, 3, 1\nv_lshlrev_b32 v3, 1, v3\nv_bfe_u32 v4, v0, 1, 1\nv_add_u32 v3, v3, v4")
    for j in range(4): P(f"v_cmp_eq_u32 vcc, {j}, v3\nv_cndmask_b32 v{SEL+j}, 0, v2, vcc")

def dgroups(lst):
    G = []; cur = []
    for x in lst:
        cur.append(x)
        if x.kind == 'vmem': G.append(cur); cur = []
    if cur: G[-1] += cur
    return G

def flat(groups): return [x for g in groups for x in g]

def ffn():
    P = Prog()
    P(f"s_mov_b32 s50, {sROT}" if OPT['rot'] else "s_mov_b32 s50, 0")
    P(f"s_add_u32 s51, s50, 1\ns_cmp_ge_u32 s51, 3\ns_cselect_b32 s51, 0, s51\ns_add_u32 s52, s51, 1\ns_cmp_ge_u32 s52, 3\ns_cselect_b32 s52, 0, s52")
    P(f"s_mul_i32 {sSL}, s38, 3\ns_add_u32 {sSL}, {sSL}, {sROT}")
    P(f"s_mov_b32 s16, s40\ns_mov_b32 s17, s41\ns_mov_b32 s18, {576*4608*2}\ns_mov_b32 s19, 0x20000")
    P(f"s_mov_b32 s20, s42\ns_mov_b32 s21, s43\ns_mov_b32 s22, {576*4608*2}\ns_mov_b32 s23, 0x20000")
    P(f"s_mul_i32 s59, {sSL}, 768")
    if OPT['pf0']:
        n = OPT['pf0n']
        P(f"s_lshr_b32 s58, {sMEM}, 1\ns_lshl_b32 s58, s58, 2\ns_add_u32 s58, s58, {sWV}\ns_mul_i32 s58, s58, {n}\ns_mul_i32 s60, s50, 192\ns_add_u32 s58, s58, s60")
        P(f"s_and_b32 s60, {sMEM}, {1 if OPT['prot'] else 0}\ns_mul_i32 s60, s60, 384\ns_add_u32 s65, s59, s60")
        P(f"v_min_u32 v15, {n-1}, v0\nv_add_u32 v15, s58, v15\nv_subrev_u32 v3, 576, v15\nv_min_u32 v15, v15, v3\nv_mul_u32_u24 v15, 9216, v15")
        P(f"buffer_load_dword v47, v15, {sWA}, s65 offen", tag='dummy')
    P(f"s_mul_i32 s63, {sSL}, {384*1152}\ns_mul_i32 s64, {sWV}, 6144")
    if OPT['fuse']: P(f"s_lshl_b32 {sSL}, {sROT}, 2\ns_add_u32 {sSL}, {sSL}, s38")
    P("s_load_dwordx2 s[72:73], s[0:1], 48")
    vFLW = 39
    if OPT['fuse']:
        flag_setup(P, vFLW, sSL, 'v14', True)
        hsk = handshake(sSL, 'v10', 'v11', True); P.add(hsk[:-1])
    def pf_w(which):
        Q = Prog()
        if which == 1:
            Q(f"s_mul_i32 s66, {sMEM}, {72*9216}\ns_add_u32 s66, s66, s59\ns_lshl_b32 s67, {sWV}, 6\ns_mov_b32 s68, {-(-(1<<32)//6)}")
            for i in range(2):
                Q(f"v_add_u32 v10, s67, v0")
                if i: Q(f"v_add_u32 v10, 256, v10\nv_min_u32 v10, 431, v10")
                Q(f"v_mul_hi_u32 v11, v10, s68\nv_lshlrev_b32 v10, 7, v10\nv_mul_u32_u24 v11, {9216-768}, v11\nv_add_u32 v10, v10, v11")
                Q(f"buffer_load_dword v47, v10, {sWA}, s66 offen", tag='dummy', cost=8)
        else:
            nb = OPT['nb2']; n = 108 // nb
            Q(f"s_lshl_b32 s71, {sMEM}, 2\ns_add_u32 s71, s71, {sWV}\ns_mul_i32 s71, s71, {108*128}\ns_add_u32 s71, s71, s63")
            Q(f"v_min_u32 v44, {n-1}, v0\nv_lshlrev_b32 v44, 7, v44")
            for i in range(nb):
                Q(f"buffer_load_dword v47, v44, {sWB}, s71 offen", tag='dummy', cost=8)
                if i < nb - 1: Q(f"s_add_u32 s71, s71, {n*128}")
        return Q.l
    P(f"v_lshrrev_b32 v2, 3, v0\nv_and_b32 v3, 7, v0")
    P(f"s_mul_i32 s58, {sWV}, 48\nv_add_u32 v4, s58, v2")
    P(f"v_bfe_u32 v5, v0, 4, 1\nv_lshlrev_b32 v5, 2, v5\nv_xor_b32 v5, v5, v3\nv_lshlrev_b32 v5, 4, v5")
    P(f"v_mul_u32_u24 v6, 9216, v4\nv_add_u32 v{vD1[0]}, v6, v5")
    for i in range(1, 4): P(f"v_add_u32 v{vD1[i]}, {i*(8*9216-1024)}, v{vD1[0]}")
    P(f"v_bfe_u32 v5, v0, 4, 2\nv_lshlrev_b32 v5, 1, v5\nv_xor_b32 v5, v5, v3\nv_lshlrev_b32 v5, 4, v5")
    P(f"v_mul_u32_u24 v6, 1152, v4\nv_add_u32 v{vD2[0]}, v6, v5")
    for i in range(1, 4): P(f"v_add_u32 v{vD2[i]}, {i*(8*1152-1024)}, v{vD2[0]}")
    P(f"s_lshr_b32 {sMEM}, {sM}, {OPT['msh']}\ns_and_b32 s35, {sMEM}, {1 if OPT['prot'] else 0}\ns_mul_i32 s39, s35, 384\ns_add_u32 s59, s59, s39\ns_lshl_b32 s39, s39, 1")
    for st in range(3): P(f"s_mul_i32 s{60+st}, s{50+st}, {192*9216}\ns_add_u32 s{60+st}, s{60+st}, s59")

    PA, PS = 40, 3
    g2 = [(0,0),(1,0),(2,0),(0,1),(1,1),(2,1)] + [(p,k) for p in range(3,9) for k in range(2)]
    def dma(s):
        slot = (s % NSLOT) * RING
        G = []
        if s < 18:
            p, st = s // 3, s % 3
            if p == 3: G += mk(f"s_sub_u32 s{60+st}, s{60+st}, s39")
            srd, vD, first, big = sWA, vD1, f"s_add_u32 s65, s{60+st}, {p*128}", 32 * 9216
        else:
            p, k = g2[s - 18]
            srd, vD, first, big = sWB, vD2, f"s_add_u32 s65, s{PA+p}, s{k}", 32 * 1152
        t = f"d{s}"
        G += mk(f"s_add_u32 m0, s64, {slot}\n{first}")
        for i in range(4): G += mk(f"buffer_load_dwordx4 v{vD[i]}, {srd}, s65 offen offset:{1024*i} lds", tag=t, cost=8)
        if OPT['d6'] and 6 <= s < 18:
            G += mk(f"s_add_u32 m0, s64, {slot+4096}")
            for i in range(2): G += mk(f"buffer_load_dwordx4 v{42+i}, {srd}, s65 offen offset:{1024*i} lds", tag=t, cost=8)
        else:
            G += mk(f"s_add_u32 m0, s64, {slot+4096}\ns_add_u32 s65, s65, {big}")
            for i in range(2): G += mk(f"buffer_load_dwordx4 v{vD[i]}, {srd}, s65 offen offset:{1024*i} lds", tag=t, cost=8)
        return G
    P(f"v_lshrrev_b32 v2, 5, v0\nv_lshlrev_b32 v2, 12, v2\nv_bfe_u32 v3, v0, 2, 2\nv_lshlrev_b32 v3, 7, v3\nv_add_u32 v2, v2, v3")
    P(f"v_bfe_u32 v3, v0, 4, 1\nv_lshlrev_b32 v3, 5, v3\nv_add_u32 v2, v2, v3\nv_and_b32 v3, 3, v0\nv_lshlrev_b32 v3, 3, v3\nv_add_u32 v2, v2, v3")
    P(f"v_bfe_u32 v3, v0, 3, 1\nv_lshlrev_b32 v3, 6, v3\nv_add_u32 v{vA1[0][0]}, v2, v3\nv_xor_b32 v{vA1[1][0]}, 64, v{vA1[0][0]}")
    P(f"v_lshrrev_b32 v2, 2, v0\nv_lshlrev_b32 v2, 7, v2\nv_and_b32 v3, 3, v0\nv_lshlrev_b32 v3, 3, v3\nv_add_u32 v2, v2, v3")
    P(f"s_and_b32 s69, {sWV}, 1\ns_lshl_b32 s69, s69, 1\nv_bfe_u32 v3, v0, 3, 2\nv_xor_b32 v3, s69, v3\nv_lshlrev_b32 v3, 5, v3")
    P(f"v_add_u32 v{vA2[0][0]}, v2, v3\nv_xor_b32 v{vA2[1][0]}, 32, v{vA2[0][0]}")
    for vA in (vA1, vA2):
        for u in range(2):
            for b in (1, 2): P(f"v_add_u32 v{vA[u][b]}, {b*2*RING}, v{vA[u][0]}")
    P(f"v_bfe_u32 v2, v0, 4, 1\nv_lshlrev_b32 v2, 10, v2\nv_lshrrev_b32 v3, 5, v0\nv_lshlrev_b32 v3, 8, v3\nv_add_u32 v2, v2, v3")
    P(f"v_and_b32 v3, 15, v0\nv_lshlrev_b32 v3, 4, v3\nv_add_u32 v2, v2, v3\ns_lshl_b32 s69, {sWV}, 11\ns_add_u32 s69, s69, {HX}\nv_add_u32 v{vHW}, s69, v2")
    if OPT['fuse']: P(f"s_and_b32 s69, {sSL}, 3\ns_lshl_b32 s69, s69, 10\nv_xor_b32 v{vHW}, s69, v{vHW}")
    P(f"v_lshlrev_b32 v{vST}, 4, v0\ns_lshr_b32 s69, {sWV}, 1\ns_lshl_b32 s69, s69, 12\ns_add_u32 s69, s69, {HX}\nv_add_u32 v{vHR}, s69, v{vST}")
    P(f"s_lshl_b32 s70, s38, 1\ns_lshr_b32 s69, {sWV}, 1\ns_add_u32 s70, s70, s69")
    P(f"s_mul_i32 s70, s70, 18\ns_and_b32 s69, {sWV}, 1\ns_add_u32 s70, s70, s69\ns_lshl_b32 s70, s70, 12\ns_add_u32 s70, s70, {WS_FIN}")
    P(f"s_lshr_b32 s66, {sSL}, 2\ns_mul_i32 s67, {sMEM}, 43\ns_lshr_b32 s67, s67, 7")
    P(f"s_mul_i32 s68, s67, 3\ns_sub_u32 s68, {sMEM}, s68\ns_add_u32 s68, s68, s66\ns_add_u32 s68, s68, 1")
    P(f"s_cmp_ge_u32 s68, 3\ns_cselect_b32 s69, 3, 0\ns_sub_u32 s68, s68, s69")
    P(f"s_cmp_ge_u32 s67, 3\ns_cselect_b32 s69, 3, 0\ns_sub_u32 s67, s67, s69")
    if not OPT['fuse']: P("s_mov_b32 s67, 0\ns_mov_b32 s68, 0")
    for ph in range(3):
        for k in range(3):
            p = 3 * ph + k
            P(f"s_mul_i32 s69, s68, 3\ns_add_u32 s69, s69, s67\ns_lshl_b32 s{PA+p}, s69, 7\ns_add_u32 s{PA+p}, s{PA+p}, s63\ns_lshl_b32 s{PS+p}, s69, 13\ns_add_u32 s{PS+p}, s{PS+p}, s70")
            P("s_add_u32 s67, s67, 1\ns_cmp_eq_u32 s67, 3\ns_cselect_b32 s67, 0, s67")
        if ph < 2: P("s_add_u32 s68, s68, 1\ns_cmp_eq_u32 s68, 3\ns_cselect_b32 s68, 0, s68")
    P(f"s_and_b32 s67, {sSL}, 3")
    for d in range(4): P(f"s_xor_b32 s{96+d}, s67, {d}\ns_mul_i32 s{96+d}, s{96+d}, {JS}\ns_add_u32 s{96+d}, s{96+d}, {1024*d}")
    P(f"s_and_b32 s68, {sWV}, 2\ns_lshl_b32 s68, s68, 1\ns_add_u32 s50, s67, s68\ns_mul_i32 s50, s50, 18\ns_and_b32 s68, {sWV}, 1\ns_add_u32 s50, s50, s68\ns_lshl_b32 s50, s50, 10\ns_add_u32 s50, s50, {WS_S}")
    P(f"s_mul_i32 s101, s66, {4*JS}\ns_add_u32 s101, s101, {WS_FB - WS_FIN}")
    P(f"s_add_u32 s68, s66, 1\ns_cmp_ge_u32 s68, 3\ns_cselect_b32 s68, 0, s68\ns_lshl_b32 s69, s68, 2\ns_add_u32 s51, s69, s67\ns_mul_i32 s100, s68, {4*JS}\ns_add_u32 s100, s100, {WS_FB - WS_FIN}")
    P(f"s_mul_i32 s49, s67, {-JS}\ns_lshl_b32 s68, s66, 2\ns_lshl_b32 s53, 15, s68\ns_lshl_b32 s68, 1, {sSL}\ns_andn2_b32 s53, s53, s68\ns_mov_b32 s52, 0xf000")
    P(f"v_and_b32 v2, 31, v0\nv_lshlrev_b32 v2, 7, v2\nv_add_u32 v2, s54, v2\nv_bfe_u32 v3, v0, 1, 3\nv_lshrrev_b32 v4, 5, v0\nv_lshlrev_b32 v4, 2, v4\nv_xor_b32 v3, v3, v4\nv_lshlrev_b32 v3, 4, v3")
    P(f"v_add_u32 v80, v2, v3\nv_xor_b32 v81, 16, v80\nv_xor_b32 v82, 32, v80\nv_xor_b32 v83, 48, v80")
    for j in range(4): P(f"v_add_u32 v{84+j}, 98304, v{80+j}")
    SEL = 40
    sel32(P, SEL)
    P("v_mov_b32 v8, 0\nv_mov_b32 v9, 0\nv_mov_b32 v12, 0\nv_mov_b32 v13, 0\ns_mov_b32 s57, 0x3f803f80")
    P(f"s_waitcnt lgkmcnt(0)\ns_mul_i32 s0, s35, {192*1152}\ns_sub_u32 s1, {192*1152}, s0\ns_mov_b32 s74, {2048*576*2}\ns_mov_b32 s75, 0x20000")
    setup = P.l; P.l = []
    fr = [[(XR + 4 * (4 * S + f), (80 if S < 6 else 84) + f, ((S // 3) % 2) * 49152 + (S % 3) * 4096, 0) for f in range(4)] for S in range(9)]
    d0, d1, d2 = dma(0), dma(1), dma(2)
    xphase(P, setup, fr, [[8, 9]], [[12, 13]], {5: d0[:6], 6: d0[6:], 7: d1[:6] if OPT['dpre'] > 1 else [], 8: (d1[6:] if OPT['dpre'] > 1 else []) + (d2[:6] if OPT['dpre'] == 3 else []), 9: d2[6:] if OPT['dpre'] == 3 else []})
    P("v_add_f32 v8, v8, v9\nv_add_f32 v12, v12, v13\nv_mov_b32 v9, v8\nv_mov_b32 v13, v12\nv_permlane32_swap_b32 v8, v9\nv_permlane32_swap_b32 v12, v13\nv_add_f32 v8, v8, v9\nv_add_f32 v12, v12, v13")
    def um(F): return mk(f"v_mfma_f32_32x32x16_bf16 {vr(ACC1+32+16*(F%2),16)}, {vr(SEL,4)}, {vr(XR+4*F,4)}, 0")
    def nv(F):
        d = ACC1 + 32 + 16 * (F % 2); x = XR + 4 * F
        o = []
        for j in range(8): o += mk(f"v_fma_f32 v{d+j}, v{d+j}, v2, v3")
        for j in range(4): o += mk(f"v_cvt_pk_bf16_f32 v{x+j}, v{d+2*j}, v{d+2*j+1}")
        return o
    P.add(um(0)); P.add(um(1))
    ln_stats(P, 'v8', 'v12', 'v4', 'v2', 'v3')
    P(f"v_mul_f32 v2, {hx(LOG2E)}, v2\nv_mul_f32 v3, v4, v2")

    uses = []
    for p in range(6):
        for st in range(3):
            s = 3 * p + st; slot = s % NSLOT
            for S in range(3):
                for ss in range(4):
                    F = st * 12 + S * 4 + ss
                    for u in range(2):
                        n = len(uses); af = AF + 4 * (n % 16)
                        off = (slot % 2) * RING + (64 * S + 8 * ss) * 128
                        va = vA1[u][slot // 2]
                        rd = mk(f"ds_read_b64_tr_b16 {ar(af,2)}, v{va} offset:{off}\nds_read_b64_tr_b16 {ar(af+2,2)}, v{va} offset:{off+512}", tag=f"r{n}")
                        acc = vr(ACC1 + 32 * (p % 2) + 16 * u, 16)
                        mf = mk(f"v_mfma_f32_32x32x16_bf16 {acc}, {ar(af,4)}, {vr(XR+4*F,4)}, {'0' if F == 0 else acc}")
                        uses.append((s, rd, mf))
    N1 = len(uses)
    ACC2 = XR; STG = XR + 128
    for si, (p, k) in enumerate(g2):
        s = 18 + si; slot = s % NSLOT
        for kk in range(6):
            ks = 6 * k + kk
            for u in range(2):
                n = len(uses); af = AF + 4 * (n % 16)
                off = (slot % 2) * RING + 32 * kk * 128
                va = vA2[u][slot // 2]
                rd = mk(f"ds_read_b64_tr_b16 {ar(af,2)}, v{va} offset:{off}\nds_read_b64_tr_b16 {ar(af+2,2)}, v{va} offset:{off+2048}", tag=f"r{n}")
                mf = []
                for j in (range(4) if not (OPT['snake'] and u) else range(3, -1, -1)):
                    acc = vr(ACC2 + 32 * (p % 4) + 8 * j + 4 * u, 4)
                    mf += mk(f"v_mfma_f32_16x16x32_bf16 {acc}, {ar(af,4)}, {ar(16*ks+4*j,4)}, {'0' if ks == 0 else acc}")
                uses.append((s, rd, mf))
    NU = len(uses)
    PD1, PD2 = OPT['pd1'], OPT['pd2']
    rd_at = {}
    for n in range(NU):
        if n < N1: g = n - PD1
        else:
            g = n - PD2
            if g < N1: g = N1 - 1 - 2 * (N1 - 1 - g)
        rd_at.setdefault(g, []).append(n)
    bar_at = {}
    for g in sorted(rd_at):
        for n in rd_at[g]:
            s = uses[n][0]
            if s not in bar_at: bar_at[s] = g
    extra_lw = {}
    def hw_tag(ks): return f"hw{ks}"
    def rstage(ks):
        p = ks // 2
        if p <= 3: return 3 * (p + 2) + 1
        if p == 4: return 19
        return 21
    for ks in range(1, 12, 2): extra_lw[rstage(ks)] = hw_tag(ks)
    def barrier(s):
        if s in extra_lw: return mk(f"WAITVL d{s}, {extra_lw[s]}\ns_barrier")
        return mk(f"WAITV d{s}\ns_barrier")
    P.add(barrier(0))
    for g in sorted(rd_at):
        if g < 0:
            for n in rd_at[g]: P.add(uses[n][1])
    P.add(nv(0))
    P("WAITL r3")
    stamp(P, 3)
    S16 = 16
    def ustart(p): return N1 + 12 * (6 + 2 * (p - 3))
    QP = {3: OPT['q3'], 4: OPT['q4'], 5: OPT['q5'], 6: 168 - OPT['lat1'], 7: 192 - OPT['lat1'], 8: 216 - OPT['lat1']}
    AP = {p: max(12 * (8 + 2 * (p - 3)), QP[p] + (OPT['lat0'] if p < 6 else OPT['lat1'])) for p in range(3, 9)}
    nacc = {N1 + AP[p]: p for p in range(3, 8)} if OPT['fuse'] else {}
    gacc = {}
    def HB(p): return 48 + 16 * (p % 2)
    def accum(dst, src, first=False):
        return mk(f"v_mfma_f32_16x16x32_bf16 {vr(dst,4)}, {vr(S16+2,4)}, {src}, {'0' if first else vr(dst,4)}\nv_mfma_f32_16x16x32_bf16 {vr(dst+4,4)}, {vr(S16,4)}, {src}, {'0' if first else vr(dst+4,4)}")
    def hopacc(p):
        L = []
        for j in range(4): L += accum(ACC2 + 32 * (p % 4) + 8 * j, vr(HB(p) + 4 * j, 4))
        return L[0::2] + L[1::2]
    SC = Sched()
    gi = {}
    gu = {}
    for n in range(NU):
        mf = uses[n][2]
        if n in nacc:
            SC.tail[-1] += mk(f"WAITV hl{nacc[n]}")
            for m_ in hopacc(nacc[n]): gacc[nacc[n]] = SC.gap([m_], 16)
        if n < 72 and n % 2 == 0 and n // 2 + 2 < 36:
            gu[n // 2 + 2] = SC.gap(um(n // 2 + 2), 32)
        bar = []
        for s, g in bar_at.items():
            if g == n: bar = barrier(s)
        rds = []
        for nn in rd_at.get(n, []): rds += uses[nn][1]
        if n < N1:
            g = SC.gap(mf, 32); gi[n] = g
            SC.mand[g] += bar + rds
            if n % 4 == 3 and n + 1 < N1: SC.tail[g] += mk(f"WAITL r{n+4}")
            if n == N1 - 1: SC.tail[g] += mk(f"WAITL r{n+2}")
        else:
            gs = [SC.gap([m], 16) for m in mf]; gi[n] = gs[0]
            if bar:
                SC.mand[gs[0]] += bar
                for i, t in enumerate(rds): SC.mand[gs[1 + i]].append(t)
            else:
                for i, t in enumerate(rds): SC.mand[gs[2 * i]].append(t)
            if (n - N1) % 2 == 1 and n + 1 < NU: SC.tail[gs[3]] += mk(f"WAITL r{n+2}")
    gi[NU] = len(SC.head)

    def silu(ks):
        p, u = ks // 2, ks % 2
        a = ACC1 + 32 * (p % 2) + 16 * u
        F = []
        T = [1, 2, 3, 4, 5, 6, 7, 46]
        stg = 8
        def E(q, j): return mk(f"v_exp_f32_e64 v{T[4*(q%2)+j]}, -v{a+4*q+j}")
        def Ad(q, j): return mk(f"v_add_f32 v{T[4*(q%2)+j]}, 1.0, v{T[4*(q%2)+j]}")
        def R(q, j): return mk(f"v_rcp_f32 v{T[4*(q%2)+j]}, v{T[4*(q%2)+j]}")
        def M(q, j): return mk(f"v_mul_f32 v{T[4*(q%2)+j]}, v{a+4*q+j}, v{T[4*(q%2)+j]}")
        def C(q):
            d = stg + 4 * (q % 2) + 2 * (q // 2); t = T[4*(q%2):4*(q%2)+4]
            o = mk(f"v_cvt_pk_bf16_f32 v{d}, v{t[0]}, v{t[1]}\nv_cvt_pk_bf16_f32 v{d+1}, v{t[2]}, v{t[3]}")
            if OPT['w64']: o += mk(f"ds_write_b64 v{vHW}, {vr(d,2)} offset:{(ks%4)*8192+512*(q%2)+8*(q//2)}", tag=hw_tag(ks), cost=OPT['w64'])
            elif q >= 2: o += mk(f"ds_write_b128 v{vHW}, {vr(stg+4*(q%2),4)} offset:{(ks%4)*8192+512*(q%2)}", tag=hw_tag(ks), cost=OPT['wcost'])
            return o
        for q in range(4):
            F += E(q, 0) + E(q, 1)
            F += E(q, 2) + Ad(q, 0) + Ad(q, 1)
            F += E(q, 3) + Ad(q, 2)
            F += R(q, 0) + Ad(q, 3)
            F += R(q, 1) + M(q, 0)
            F += R(q, 2) + M(q, 1)
            F += R(q, 3) + M(q, 2)
            c = C(q)
            F += [c[0]] + M(q, 3) + c[1:]
        return F
    def hread(ks):
        return flat([mk(f"ds_read_b128 {ar(16*ks+4*j,4)}, v{vHR} offset:{(ks%4)*8192+1024*j}", tag=f"hr{ks}") for j in range(4)])
    def epi(p):
        a = ACC2 + 32 * (p % 4)
        F = []
        for j in range(4):
            if OPT['fuse'] and p >= 6 and j == 0: continue
            for u in range(2):
                for h in range(2): F += mk(f"v_cvt_pk_bf16_f32 v{STG+4*j+2*u+h}, v{a+8*j+4*u+2*h}, v{a+8*j+4*u+2*h+1}")
            F += mk(f"buffer_store_dwordx4 {vr(STG+4*j,4)}, v{vST}, {sWS}, s{PS+p} offen offset:{1024*j}{STMOD if (p >= 6 or (p < 3 and OPT['hop0']) or OPT['hop1'] or not OPT['fuse']) else ''}", tag=f'st{p}', cost=8)
        return F

    for s in range(0, 33):
        g0 = gi[bar_at[s]] + 1 if bar_at[s] >= 0 else 0
        g1 = gi[bar_at[s + 1]]
        if OPT['dpre'] == 1 and s < 2: SC.place(dma(2 * s + 1) + dma(2 * s + 2), g0, g1 - (8 if s == 0 else 0), 'spread', f'dma{s+3}')
        else: SC.place((dma(2) if (s == 0 and OPT['dpre'] == 2) else []) + dma(s + 3), g0, g1, 'spread', f'dma{s+3}')
    for ks in range(12):
        g0 = gi[bar_at[rstage(ks)]] + 1 + (ks % 2) * 8
        SC.place(hread(ks), g0, g0 + 8, 'spread', f'hr{ks}')
    if OPT['fuse']:
        SC.place(hsk[-1:] + mk(f"v_add_u32 v42, {32*9216}, v{vD1[0]}\nv_add_u32 v43, {32*9216}, v{vD1[1]}"), gi[68], gi[74], 'asap', 'hsk')
        SC.place(mk(f"buffer_load_dword v47, v{vFLW}, {sWS}, s37 offen sc1", tag='dummy', cost=8), gi[205], gi[215], 'asap', 'pfflag')
        SC.place(mk(f"s_lshl_b32 s66, {sM}, 4\nv_and_b32 v40, 3, v0\nv_lshl_add_u32 v40, v40, 2, s66") + mk(f"buffer_load_dword v41, v40, {sDBG}, 0 offen sc1", tag='hc', cost=8), gi[426], gi[N1], 'asap', 'hc')
    if OPT['pfw'] & 1: SC.place(pf_w(1), 20, 70, 'spread', 'pf1')
    if OPT['pfw'] & 2: SC.place(pf_w(2), gi[90], gi[400], 'spread', 'pf2')
    for F in range(1, 36):
        g0 = gu.get(F + 1, gi[2 * (F - 1)]); g1 = gi[2 * (F - 1) + 1] + 1
        SC.place(nv(F), g0, g1, 'asap', f'nv{F}')
    for p in range(5):
        b = 72 * (p + 1)
        SC.place(silu(2 * p) + silu(2 * p + 1), gi[b + 2], gi[b + 72], 'asap', f'silu{p}')
    SC.place(silu(10) + silu(11), gi[N1] + 6, gi[bar_at[21]] - 2, 'asap', 'silu5')
    last_stage = {}; gepi = {}
    for si, (p, k) in enumerate(g2):
        if k == 1: last_stage[p] = si
    for p in range(8):
        g0 = gi[N1 + 12 * (last_stage[p] + 1)] + 5
        if p in gacc: g0 = gacc[p] + 5
        if OPT['fuse'] and p in (1, 2): g0 = gi[N1 + OPT['e%d' % p]]
        gepi[p] = SC.place(epi(p), g0, g0 + (42 if not OPT['fuse'] else 30), 'spread' if not OPT['fuse'] else 'asap', f'epi{p}')[-1]
    slow = []
    def gs(si, off=0): return gi[N1 + 12 * si] + off
    if OPT['fuse']:
        vFR, vFV, vXO, vC = 28, 29, 30, 31
        def site(name, load, tag, chk, g0, g1):
            L = mk(f"WAITV {tag}") + mk(chk) + mk(f"s_cbranch_scc0 L_slow{name}\nL_back{name}:")
            head, tailp = L[:-4], L[-4:]
            pos = SC.place(head, g0, g1, 'asap', name)
            SC.fill[pos[-1] + 1] += tailp
            slow.extend(mk(f"L_slow{name}:\ns_mov_b32 s68, 0\nL_spin{name}:\n{load}\ns_waitcnt vmcnt(0)\n{chk}\ns_cbranch_scc1 L_back{name}\ns_sleep 1\ns_add_u32 s68, s68, 1\ns_cmp_lt_u32 s68, 0x80000\ns_cbranch_scc1 L_spin{name}\ns_branch L_back{name}", cond=True))
            return pos[-1] + 2
        hload = f"buffer_load_dword v41, v40, {sDBG}, 0 offen sc1"
        g = site('H', hload, 'hc', f"v_and_b32 v42, 0xff, v41\nv_cmp_le_u32 vcc, 4, v42\ns_and_b32 s66, vcc_lo, 15\ns_cmp_eq_u32 s66, 15", gi[bar_at[21]], gi[bar_at[21]] + 16)
        MD = mk(f"v_readlane_b32 s66, v41, s38\ns_lshr_b32 s67, s66, 4\ns_xor_b32 s66, s66, s67")
        pos = SC.place(MD, g, g + 12, 'asap', 'mode')
        fb = "s_or_b32 s66, s66, 0x1000\n" if OPT['forcefb'] else ""
        SC.fill[pos[-1] + 1] += mk(f"{fb}s_and_b32 s66, s66, 0xff000\ns_cselect_b32 s58, 0, 1\n{'s_cmp_eq_u32 0, 0' if OPT['hop1'] else ''}\ns_cselect_b32 s100, s100, {4*JS}\ns_cselect_b32 s101, s101, {4*JS}\ns_sub_u32 s59, s100, s101")
        gfix = SC.place(mk("\n".join(f"s_add_u32 s{PS+p}, s{PS+p}, s101" for p in range(6))), pos[-1] + 2, gs(4), 'asap', 'psfix')[-1]
        SQ = Prog()
        SQ(f"s_lshl_b32 s66, {sM}, 7\ns_and_b32 s67, {sWV}, 2\ns_lshl_b32 s67, s67, 5\ns_add_u32 s66, s66, s67\ns_and_b32 s67, {sSL}, 2\ns_lshl_b32 s67, s67, 4\ns_add_u32 s66, s66, s67\ns_and_b32 s67, {sSL}, 1\ns_add_u32 s66, s66, s67")
        SQ(f"v_lshrrev_b32 v40, 2, v0\nv_lshlrev_b32 v40, 1, v40\nv_add_u32 v40, s66, v40\nv_mul_u32_u24 v40, 1152, v40\nv_and_b32 v41, 3, v0\nv_lshlrev_b32 v41, 4, v41\ns_and_b32 s67, {sWV}, 1\ns_lshl_b32 s67, s67, 6\nv_add3_u32 v{vXO}, v40, v41, s67")
        XV = 92; vL1, vL2, vL3 = 1, 2, 3
        SQ(f"s_lshl_b32 s36, {sWV}, 13\ns_add_u32 s36, s36, {HX}")
        SQ(f"v_and_b32 v40, 15, v0\nv_lshrrev_b32 v41, 4, v0\nv_lshlrev_b32 v41, 3, v41\nv_add_u32 v41, s36, v41\nv_lshl_add_u32 v{vL1}, v40, 6, v41\nv_mul_u32_u24 v40, 80, v40\nv_add_u32 v{vL2}, v40, v41")
        SQ(f"v_lshrrev_b32 v40, 2, v0\nv_mul_u32_u24 v40, 80, v40\nv_and_b32 v41, 3, v0\nv_lshlrev_b32 v41, 4, v41\nv_add3_u32 v{vL3}, v40, v41, s36")
        for k in range(3): SQ(f"s_sub_u32 s{60+k}, s{PA+6+k}, s63")
        SQ(f"s_lshl_b32 s67, {sWV}, 11\ns_and_b32 s66, {sWV}, 2\ns_bfe_u32 s68, {sSL}, 0x10001\ns_add_u32 s66, s66, s68\ns_lshl_b32 s66, s66, 11")
        SQ(f"s_lshl_b32 s51, s51, 7\ns_add_u32 s51, s51, s67\ns_add_u32 s51, s51, {WS_FLAG + HFOFF}\nv_mov_b32 v43, s51")
        SQ(f"v_and_b32 v40, 15, v0\nv_mov_b32 v41, s67\nv_mov_b32 v42, s66\nv_cmp_gt_u32 vcc, 12, v40\nv_lshlrev_b32 v40, 7, v40\nv_add_u32 v40, {WS_FLAG}, v40\nv_cndmask_b32 v41, v42, v41, vcc\nv_add_u32 v{vFR}, v40, v41")
        SQ(f"s_or_b32 vcc_lo, s52, s53\ns_mov_b32 vcc_hi, 0\nv_mov_b32 v40, 2.0\nv_cndmask_b32 v{vFR}, v40, v{vFR}, vcc")
        sel_consts(SQ, S16, 'v40', 'v41', 'v42')
        SQ('s_mov_b32 s16, s24\ns_mov_b32 s17, s25\ns_mov_b32 s57, 0xffff0000')
        SQ('v_lshlrev_b32 v41, 3, v0')
        SC.place(SQ.l, gfix + 1, gs(6, 20), 'asap', 'tailsetup')
        fload = f"buffer_load_dword v{vFV}, v{vFR}, {sWS}, 0 offen sc1"
        def chk(thr, mask): return f"v_cmp_le_u32 vcc, {thr}, v{vFV}\ns_and_b32 s66, vcc_lo, {mask}\ns_cmp_eq_u32 s66, {mask}"
        def fstore(val): return mk(f"buffer_store_dword v{vC}, v{vFLW}, {sWS}, 0 offen sc1", tag=f'fl{val}', cost=8)
        for p in range(6):
            g = gepi[p] + 4 * (OPT['fd0'] if ((p < 3 and OPT['hop0']) or OPT['hop1']) else OPT['fd1'])
            pos = SC.place(mk(f"v_mov_b32 v{vC}, {p+1}") + mk(f"WAITV st{p}"), g, g + 20, 'asap', f'flag{p}')
            hst = f"buffer_store_dword v{vC}, v{vFLW}, {sWS}, s37 offen"
            SC.fill[pos[-1] + 1] += mk(f"s_cmp_eq_u32 s58, 0\ns_cbranch_scc1 L_rel{p}") + mk(hst, tag=f'fl{p+1}', cost=8) + mk(f"L_relb{p}:")
            slow.extend(mk(f"L_rel{p}:\nbuffer_wbl2 sc1\ns_waitcnt vmcnt(0)\n{hst} sc1\ns_branch L_relb{p}", cond=True))
        pload = f"buffer_load_dword v{vFV}, v43, {sWS}, 0 offen sc1"
        def hloads(p):
            L = mk(f"s_add_u32 s69, s{PS+p}, {'s59' if p < 6 else 's100'}")
            for j in range(4): L += mk(f"buffer_load_dwordx4 {vr(HB(p)+4*j,4)}, v{vST}, {sWS}, s69 offen offset:{1024*j} sc1", tag=f"hl{p}", cost=8)
            return L
        ghl = {}
        for p in range(3, 9):
            u0 = N1 + QP[p]
            SC.place(mk(pload, tag=f'pp{p}', cost=8), gi[u0 - 1], gi[u0 + 1], 'asap', f'pp{p}')
            ck = f"v_cmp_le_u32 vcc, {p-2}, v{vFV}"
            pos = SC.place(mk(f"WAITV pp{p}") + mk(ck), gi[u0 + OPT['pchk']], gi[u0 + OPT['pchk'] + 1], 'asap', f'chk{p}')
            SC.fill[pos[-1] + 2] += mk(f"s_cbranch_vccz L_slowP{p}\nL_backP{p}:")
            slow.extend(mk(f"L_slowP{p}:\n" + (f"s_add_u32 s93, s93, {1 << (4*(p-3))}\n" if OPT['stamp'] else "") + f"s_mov_b32 s68, 0\nL_spinP{p}:\n{pload}\ns_waitcnt vmcnt(0)\n{ck}\ns_add_u32 s68, s68, 1\ns_nop 4\ns_cbranch_vccnz L_backP{p}\ns_cmp_lt_u32 s68, 0x80000\ns_cbranch_scc1 L_spinP{p}\ns_branch L_backP{p}", cond=True))
            ghl[p] = SC.place(hloads(p), pos[-1] + 3, gi[u0 + OPT['pchk'] + 5], 'asap', f'hl{p}')[-1]
        sQ = 's[16:19]'
        RS = [80, 84, 88]
        def sloads(srd, tag, cond=False):
            L = []
            for k in range(3):
                L += mk(f"s_lshl_b32 s69, s{60+k}, 4\ns_add_u32 s69, s69, s50", cond=cond)
                for u in range(2): L += mk(f"buffer_load_dwordx2 {vr(RS[k]+2*u,2)}, v41, {srd}, s69 offen offset:{512*u} sc1", tag=tag, cond=cond, cost=8)
            return L
        L = []
        for k in range(3): L += mk(f"s_add_u32 m0, s36, {1024*k}") + mk(f"buffer_load_dwordx4 v{vXO}, {sX}, s{60+k} offen lds", tag='xo', cost=8)
        L += mk(f"buffer_load_dword v42, v{vFR}, {sWS}, 0 offen sc1", tag='p0', cost=8)
        SC.place(L, max(ghl[7], gi[bar_at[33]]) + 1, ghl[7] + 30, 'asap', 'p0')
        pos = SC.place(mk("WAITV p0\nv_cmp_le_u32 s[70:71], 9, v42"), ghl[8] - 6, ghl[8] + 8, 'asap', 'chkS')
        SC.fill[pos[-1] + 1] += mk(f"s_and_b32 s66, s70, s52\ns_cmp_eq_u32 s66, s52\ns_cselect_b32 s18, {WS_BYTES}, 0\ns_cselect_b32 s54, 1, 0")
        L = []
        for k in range(3):
            for u in range(2): L += mk(f"ds_read_b64 {vr(XV+4*k+2*u,2)}, v{vL1} offset:{1024*k+32*u}", tag='xr')
        SC.place(L, pos[-1] + 2, gs(17, 30), 'asap', 'xr')
        g = SC.place(sloads(sQ, 'ls') + mk(fload, tag='p1', cost=8), max(ghl[8] + 1, pos[-1] + 2), gs(17, 40), 'asap', 'ls')[-1]
        SC.place(mk(f"v_mov_b32 v{vC}, 8") + mk("WAITV st7") + fstore(8), max(g + 1, gs(17, 32)), len(SC.head), 'asap', 'flag8')
    print("; gemm2 per-stage planned cycles:", [sum(16 + max(0, SC.used(g) - SC.cap[g]) for g in range(gs(i), gs(i + 1) if i < 17 else len(SC.head))) for i in range(18)], file=sys.stderr)
    print("; overflow cycles: pass0 %d, pass1-5 %d, gemm2 %d" % (SC.overflow(0, gi[72]), SC.overflow(gi[72], gi[N1]), SC.overflow(gi[N1])), file=sys.stderr)
    marks = [gi[72], gi[144], gi[N1], gi[N1 + 72]]
    ids = [4, 5, 6, 7]
    if OPT['marks'] == 2:
        marks = [gs(12), gs(13), gs(14), gs(15), gs(16), gs(17), len(SC.head)]; ids = [1, 2, 3, 4, 5, 6, 7]
    if OPT['marks'] == 3:
        marks = [gs(6), gs(7), gs(8), gs(9), gs(10), gs(11), gs(12)]; ids = [1, 2, 3, 4, 5, 6, 7]
    if OPT['marks'] == 5:
        marks = [gs(0), gs(1), gs(2), gs(3), gs(4), gs(5), gs(6)]; ids = [1, 2, 3, 4, 5, 6, 7]
    if OPT['marks'] == 6:
        marks = [gi[72], gi[144], gi[216], gi[288], gi[360], gi[N1]]; ids = [2, 3, 4, 5, 6, 7]
    if OPT['marks'] == 1:
        marks = [gs(0), gs(6), gs(8), gs(10), gs(12), gs(14), gs(16)]; ids = [1, 2, 3, 4, 5, 6, 7]
    prev = 0
    for i, g in zip(ids, marks):
        P.add(SC.emit(prev, g)); stamp(P, i); prev = g
    P.add(SC.emit(prev))
    if OPT['fuse']:
        P("WAITV hl8"); P.add(hopacc(8))
    P.add(epi(8))
    k0 = [i for i, x in enumerate(P.l) if x.text.startswith('WAITL r3')][0]
    def keep(x):
        if OPT['nosilu'] and x.base in ('v_exp_f32', 'v_rcp_f32', 'v_add_f32', 'v_mul_f32'): return False
        if OPT['nodma'] and x.kind == 'vmem' and 'lds' in x.mods: return False
        if OPT['nodma'] and x.op == 'WAITV': return False
        if OPT['nobar'] and x.kind == 'bar': return False
        if OPT['nost'] and (x.tag or '').startswith('st'): return False
        return True
    def fix(x):
        if OPT['nodma'] and x.op == 'WAITVL': return I('WAITL ' + x.ops[1])
        return x
    P.l = P.l[:k0] + [fix(x) for x in P.l[k0:] if keep(x)]
    stamp(P, 8)
    if OPT['fuse']:
        G = [ACC2 + 32 * ((6 + k) % 4) for k in range(3)]
        SS = [g + 8 for g in G]
        XU = 144
        def cloads(ks, srd, tag, cond=False):
            for k in ks:
                P(f"s_add_u32 s67, s{PS+6+k}, s49", cond=cond)
                for d in range(1, 4): P(f"s_add_u32 s69, s67, s{96+d}\nbuffer_load_dwordx4 {ar(12*k+4*(d-1),4)}, v{vST}, {srd}, s69 offen sc1", tag=tag, cond=cond)
        def spin(name, thr, mask):
            P(f"s_mov_b32 s68, 0\nL_spin{name}:", cond=True)
            P(fload + "\ns_waitcnt vmcnt(0)\n" + chk(thr, mask) + f"\ns_cbranch_scc1 L_done{name}\ns_sleep {OPT['slp']}\ns_add_u32 s68, s68, 1\ns_cmp_lt_u32 s68, 0x80000\ns_cbranch_scc1 L_spin{name}\nL_done{name}:", cond=True)
        def unitT(ks, acc=True):
            for k in (ks if acc else []):
                for d in range(3): P.add(accum(G[k], ar(12 * k + 4 * d, 4)))
            for k in ks:
                g_, t_ = G[k], G[k] + 16
                for i in range(8): P(f"v_exp_f32_e64 v{t_+i}, -v{g_+i}")
                for i in range(8): P(f"v_fma_f32 v{t_+i}, v{t_+i}, s71, s71")
                for i in range(8): P(f"v_rcp_f32 v{t_+i}, v{t_+i}")
                for i in range(8): P(f"v_mul_f32 v{g_+i}, v{g_+i}, v{t_+i}")
        P("WAITV p1\n" + chk(8, 's53') + f"\ns_cselect_b32 s18, {WS_BYTES}, 0\ns_cselect_b32 s55, 1, 0")
        cloads([0, 1], sQ, 'lc0')
        P(chk(9, 's53') + f"\ns_cselect_b32 s18, {WS_BYTES}, 0\ns_cselect_b32 s56, 1, 0")
        cloads([2], sQ, 'lc2')
        P(f"v_mov_b32 v{vC}, 9\ns_mov_b32 s71, {hx(LOG2E)}")
        for d in range(12): P(f"v_lshlrev_b32 v{XU+2*d}, 16, v{XV+d}\nv_and_b32 v{XU+2*d+1}, s57, v{XV+d}")
        P("WAITV st8"); P.add(fstore(9)); stamp(P, 12)
        P("s_cmp_eq_u32 s54, 1\ns_cbranch_scc1 L_chk8")
        P(chk(9, 's52') + "\ns_cbranch_scc0 L_chk8\ns_mov_b32 s54, 1", cond=True)
        P.add(sloads(sWS, 'ls1', True))
        P("L_chk8:")
        P("s_cmp_eq_u32 s55, 1\ns_cbranch_scc1 L_have8")
        spin('8', 8, 's53')
        cloads([0, 1], sWS, 'lc0b', True)
        P(chk(9, 's53') + f"\ns_cselect_b32 s18, {WS_BYTES}, 0\ns_cselect_b32 s56, 1, 0", cond=True)
        cloads([2], sQ, 'lc2c', True); P("s_waitcnt vmcnt(3)", cond=True)
        P("L_have8:")
        P(fload, tag='p2')
        P("WAITV lc0")
        stamp(P, 9)
        unitT([0, 1])
        P("s_waitcnt vmcnt(0)")
        P("s_cmp_eq_u32 s54, 1\ns_cbranch_scc1 L_chk9")
        P(chk(9, 's52') + "\ns_cbranch_scc0 L_chk9\ns_mov_b32 s54, 1", cond=True)
        P.add(sloads(sWS, 'ls2', True))
        P("L_chk9:")
        P("s_cmp_eq_u32 s56, 1\ns_cbranch_scc0 L_no9\ns_waitcnt vmcnt(0)\ns_branch L_have9\nL_no9:")
        P(chk(9, 's53') + "\ns_cbranch_scc1 L_done9", cond=True)
        spin('9', 9, 's53')
        cloads([2], sWS, 'lc2b', True); P("s_waitcnt vmcnt(3)", cond=True)
        P("L_have9:")
        stamp(P, 10)
        P("s_cmp_eq_u32 s54, 1\ns_cbranch_scc1 L_haveS")
        spin('S', 9, 's52')
        P.add(sloads(sWS, 'ls3', True)); P("s_waitcnt vmcnt(0)", cond=True)
        P("L_haveS:")
        def fin(k):
            g_, s_, pk = G[k], SS[k], G[k] + 24
            for i in range(8): P(f"v_fma_f32 v{g_+i}, v{g_+i}, v{s_+i}, v{XU+8*k+i}")
            for d in range(4): P(f"v_cvt_pk_bf16_f32 v{pk+d}, v{g_+2*d}, v{g_+2*d+1}")
            P(f"ds_write_b64 v{vL2}, {vr(pk,2)} offset:{4096+1280*k}\nds_write_b64 v{vL2}, {vr(pk+2,2)} offset:{4096+1280*k+32}", tag=f'ow{k}')
            P(f"ds_read_b128 {vr(pk+4,4)}, v{vL3} offset:{4096+1280*k}", tag=f'or{k}')
        def ost(k): P(f"WAITL or{k}\nbuffer_store_dwordx4 {vr(G[k]+28,4)}, v{vXO}, s[72:75], s{60+k} offen{['', ' sc1', ' nt'][OPT['omod']]}")
        for k in range(3):
            for d in range(4): P(f"v_lshlrev_b32 v{SS[k]+2*d}, 16, v{RS[k]+d}\nv_and_b32 v{SS[k]+2*d+1}, s57, v{RS[k]+d}")
        fin(0); fin(1)
        P("s_waitcnt vmcnt(0)")
        for d in range(3): P.add(accum(G[2], ar(24 + 4 * d, 4)))
        ost(0); ost(1)
        unitT([2], False)
        fin(2); ost(2)
        stamp(P, 11)
    stamp_flush(P, 12)
    P("s_endpgm")
    P.add(slow)
    return P.l

def attn():
    P = Prog()
    P("s_endpgm")
    return P.l

def final():
    P = Prog()
    P("s_endpgm")
    return P.l

def finish(lst):
    lst = resolve_waits(ungroup(lst))
    lst, nfix = fix_hazards(lst, OPT['verbose'])
    errs = check_scoreboard(lst)
    for e in errs[:20]: print("; SCOREBOARD ERR", e, file=sys.stderr)
    assert not errs
    lst, mis, sz = align_pass(lst)
    print(f"; hazard nops inserted: {nfix}, instrs: {len(lst)}, misaligned {mis}, bytes {sz}", file=sys.stderr)
    return lst

def main():
    try:
        import gen_attn
    except ImportError:
        gen_attn = None
    P0 = Prog(); common_prologue(P0)
    f = finish(P0.l + ffn())[:]
    a = finish(P0.l + (gen_attn.attn(globals()) if gen_attn and OPT['attn'] else attn()))
    a = a[[i for i, x in enumerate(a) if x.text.startswith('s_cbranch_scc1 L_attn')][0] + 1:]
    k2 = finish(gen_attn.final(globals()) if gen_attn else final())
    out = []
    MK = NAME + "_kernel" if OPT['fuse'] else "main_kernel"
    if OPT['fuse']: out.append(f"; @launch grid=(256,1,1) block=(256,1,1) lds={LDS_BYTES}")
    else:
        out.append(f"; @launch kernel=main_kernel grid=(256,1,1) block=(256,1,1) lds={LDS_BYTES}")
        out.append(f"; @launch kernel=final_kernel grid=(576,1,1) block=(256,1,1) lds=0")
    out.append('.amdgcn_target "amdgcn-amd-amdhsa--gfx950"\n.text')
    out.append(f".globl {MK}\n.p2align 8\n.type {MK},@function\n{MK}:\nL_main_start:")
    out += [x.text for x in f]
    out.append(".p2align 6\nL_attn:")
    out += [x.text for x in a]
    out.append("L_exit:\ns_endpgm\nL_main_end:")
    if not OPT['fuse']:
        out.append(".globl final_kernel\n.p2align 8\n.type final_kernel,@function\nfinal_kernel:")
        out += [x.text for x in k2]
    out.append('.section .rodata,"a"')
    for nm, nv, ao in ((MK, 512, 256), ("final_kernel", 96, 96))[:1 if OPT['fuse'] else 2]:
        out.append(f".p2align 6\n.amdhsa_kernel {nm}\n  .amdhsa_next_free_vgpr {nv}\n  .amdhsa_next_free_sgpr 102\n  .amdhsa_accum_offset {ao}\n  .amdhsa_group_segment_fixed_size 0\n  .amdhsa_kernarg_size 72\n  .amdhsa_user_sgpr_count 2\n  .amdhsa_user_sgpr_kernarg_segment_ptr 1\n  .amdhsa_system_sgpr_workgroup_id_x 1\n  .amdhsa_float_denorm_mode_32 3\n.end_amdhsa_kernel")
    txt = "\n".join(out) + "\n"
    import subprocess, re as _re, tempfile, os
    d = tempfile.mkdtemp()
    open(d + "/a.s", "w").write(txt.replace("CODE_PF_MAX", "0x12345"))
    r = subprocess.run(["clang", "-x", "assembler", "-target", "amdgcn-amd-amdhsa", "-mcpu=gfx950", "-c", d + "/a.s", "-o", d + "/a.o"], capture_output=True, text=True)
    assert r.returncode == 0, r.stderr
    sy = subprocess.run(["llvm-readelf", "-s", d + "/a.o"], capture_output=True, text=True).stdout
    def sym(n): return int([l for l in sy.splitlines() if l.strip().endswith(" " + n)][0].split()[1], 16)
    size = sym("L_main_end") - sym("L_main_start")
    print(f"; main code bytes {size}, attn at {sym('L_attn')}", file=sys.stderr)
    print(txt.replace("CODE_PF_MAX", str(size - 1024)))

if __name__ == "__main__":
    main()
```
